```python
import torch

def _softmax(x, axis=-1):
    return torch.softmax(x, dim=axis)
def _gelu(x):
    return torch.nn.functional.gelu(x, approximate="tanh")
def _silu(x):
    return torch.nn.functional.silu(x)
def _sigmoid(x):
    return torch.sigmoid(x)
def _layernorm(x, axis=-1, eps=1e-5):
    m = x.mean(dim=axis, keepdim=True)
    v = x.var(dim=axis, keepdim=True, unbiased=False)
    return (x - m) / torch.sqrt(v + eps)
def _scatter_add(tgt, idx, src, axis=0):
    return tgt.clone().index_add_(axis, idx, src)
def _segment_sum(src, seg, n):
    out = torch.zeros((n,) + src.shape[1:], dtype=src.dtype)
    return out.index_add_(0, seg, src)
def _pad(x, pw):
    flat = tuple(v for pair in reversed(pw) for v in pair)
    return torch.nn.functional.pad(x, flat)

kernel_name = 'parallel_sum__grouped_kv_mqa__dense_activation_relu__prompt'

def setup_inputs():

    _w = (lambda a: (lambda t: t.to(torch.bfloat16) if t.is_floating_point() else t)(torch.as_tensor(a)))
    def _A_setup():
        B, S, D, H = 1, 2048, 640, 32
        Dh = D // H
        return {
            "x": _w((lambda *s: torch.randn(*s, dtype=torch.bfloat16) * 0.05)(B, S, D)),
            "wq": _w((lambda *s: torch.randn(*s, dtype=torch.bfloat16) * 0.1)(D, H * Dh)),
            "wk": _w((lambda *s: torch.randn(*s, dtype=torch.bfloat16) * 0.1)(D, Dh)),
            "wv": _w((lambda *s: torch.randn(*s, dtype=torch.bfloat16) * 0.05)(D, Dh)),
            "wo": _w((lambda *s: torch.randn(*s, dtype=torch.bfloat16) * 0.05)(H * Dh, D)),
        }
    _A_in = _A_setup()

    def _B_setup():
        B, S, D, Dff = 1, 2048, 640, 1728
        return {
            "x": _w((lambda *s: torch.randn(*s, dtype=torch.bfloat16) * 0.05)(B, S, D)),
            "w1": _w((lambda *s: torch.randn(*s, dtype=torch.bfloat16) * 0.05)(D, Dff)),
            "w2": _w((lambda *s: torch.randn(*s, dtype=torch.bfloat16) * 0.05)(Dff, D)),
        }
    _B_in = _B_setup()

    return {
        "A_x": _A_in["x"],
        "A_wq": _A_in["wq"],
        "A_wk": _A_in["wk"],
        "A_wv": _A_in["wv"],
        "A_wo": _A_in["wo"],
        "B_x": _B_in["x"],
        "B_w1": _B_in["w1"],
        "B_w2": _B_in["w2"],
    }

def reference(A_x, A_wq, A_wk, A_wv, A_wo, B_x, B_w1, B_w2):
    def _A_ref(x, wq, wk, wv, wo):
        B, S, D = x.shape
        H = 32
        Dh = D // H
        q = (lambda x, *d: x.permute(*d))((x @ wq).reshape(B, S, H, Dh), 0, 2, 1, 3)
        k = x @ wk
        v = x @ wv
        scores = torch.einsum("bhqd,bkd->bhqk", q, k) * (Dh ** -0.5)
        p = _softmax(scores, axis=-1)
        o = torch.einsum("bhqk,bkd->bhqd", p, v)
        return (lambda x, *d: x.permute(*d))(o, 0, 2, 1, 3).reshape(B, S, H * Dh) @ wo

    def _B_ref(x, w1, w2):
        h = torch.einsum("bsd,df->bsf", x, w1)
        zero = torch.zeros_like(h)
        h = torch.maximum(h, zero)
        return torch.einsum("bsf,fd->bsd", h, w2)

    x = A_x
    xn = _layernorm(x, axis=-1)
    return x + _A_ref(xn, A_wq, A_wk, A_wv, A_wo) + _B_ref(xn, B_w1, B_w2)
```

```python
from gen import *

RING_ST = 20992
L_OP = 4 * RING_ST
L_MREC = L_OP + 73728
L_BAD = L_MREC + 2048
K2_LDS = L_BAD + 64

SWS, SW2, SWO, SX, SOUT = 4, 8, 12, 16, 20
sT, sC, sW, sQ, sG, sMODE = 24, 25, 26, 27, 28, 29
sT0, sT1, sT2 = 30, 31, 32
sKV, sCNT, sOB = 33, 34, 35
sPm = 52
sPt = 56
sSO, sSTEP, sHO, sM0 = 60, 61, 62, 63

def final_stage(a, vL, base_item, X, R, vA, vG, load_x, do_rest):
    if load_x:
        if base_item: a(f"v_add_u32 v{vA}, {base_item}, v0")
        else: a(f"v_mov_b32 v{vA}, v0")
        a(f"v_mul_u32_u24 v{vG}, 3277, v{vA}")
        a(f"v_lshrrev_b32 v{vG}, 16, v{vG}")
        a(f"v_lshlrev_b32 v{vA}, 4, v{vA}")
        a(f"v_lshlrev_b32 v{X}, 4, v{vG}")
        a(f"v_mul_u32_u24 v{vG}, 960, v{vG}")
        a(f"v_add_u32 v{vG}, v{vG}, v{vA}")
        a(f"v_lshl_add_u32 v{vA}, v{vA}, 1, v{X}")
        a(f"buffer_load_dwordx4 {vr(X, 4)}, v{vG}, {sr(SX, 4)}, s{sOB} offen")
    if do_rest:
        for s in range(4):
            a(f"ds_read_b128 {vr(R+8*s, 4)}, v{vA} offset:{s*RING_ST}")
            a(f"ds_read_b128 {vr(R+8*s+4, 4)}, v{vA} offset:{s*RING_ST+16}")
        a("s_waitcnt vmcnt(0)")
        for j in range(4):
            a(f"v_lshlrev_b32 v{R+32+2*j}, 16, v{X+j}")
            a(f"v_and_b32 v{R+33+2*j}, 0xffff0000, v{X+j}")
        for s in range(4):
            a(f"s_waitcnt lgkmcnt({6-2*s})")
            for j in range(4):
                a(f"v_pk_add_f32 {vr(R+32+2*j, 2)}, {vr(R+32+2*j, 2)}, {vr(R+8*s+2*j, 2)}")
        for j in range(4): a(f"v_cvt_pk_bf16_f32 v{X+j}, v{R+32+2*j}, v{R+33+2*j}")
        a(f"buffer_store_dwordx4 {vr(X, 4)}, v{vG}, {sr(SOUT, 4)}, s{sOB} offen")

def gen_k2(a):
    a.label("k2_kernel")
    a("s_cmp_ge_u32 s2, 256")
    a("s_cbranch_scc1 K2_END")
    a("s_load_dwordx2 s[36:37], s[0:1], 0")
    a("s_load_dwordx2 s[38:39], s[0:1], 32")
    a("s_load_dwordx4 s[40:43], s[0:1], 56")
    a("s_load_dwordx2 s[44:45], s[0:1], 80")
    a("v_lshrrev_b32 v2, 6, v0")
    a("v_and_b32 v1, 63, v0")
    a(f"v_readfirstlane_b32 s{sW}, v2")
    a(f"s_and_b32 s{sT}, s2, 7")
    a(f"s_lshl_b32 s{sT}, s{sT}, 3")
    a(f"s_lshr_b32 s{sT0}, s2, 5")
    a(f"s_add_u32 s{sT}, s{sT}, s{sT0}")
    a(f"s_bfe_u32 s{sC}, s2, 0x20003")
    a(f"s_and_b32 s{sQ}, s{sW}, 3")
    a(f"s_mul_i32 s{sG}, s{sT}, {G_TSTRIDE}")
    a(f"s_mov_b32 s{sMODE}, 0")
    a(f"s_mul_i32 s{sOB}, s{sT}, {32*1280}")
    a(f"s_mul_i32 s{sT0}, s{sC}, 320")
    a(f"s_add_u32 s{sOB}, s{sOB}, s{sT0}")
    a("v_lshlrev_b32 v2, 4, v1")
    a("s_waitcnt lgkmcnt(0)")
    srd(a, SWS, 44, 45, WS_END)
    srd(a, SX, 36, 37, 2048 * 1280)
    srd(a, SOUT, 42, 43, 2048 * 1280)
    a(f"s_cmp_ge_u32 s{sW}, 4")
    a("s_cbranch_scc1 K2_FFN")
    gen_att(a)
    a.label("K2_FFN")
    gen_ffn(a)
    a.label("K2_END")
    a("s_endpgm")

def gen_att(a):
    vL, vKM, vV, vKT, vQT, vIDX = 1, 2, 3, 4, 5, 6
    vT0, vT1, vT2, vT3 = 8, 9, 10, 11
    vP = 12
    S = [16, 32, 48, 64]
    O = lambda i: 80 + 12 * i
    QM = lambda i: 180 + 4 * i
    QT = lambda i: 212 + 2 * i
    KM = [228, 242]; KT = [232, 246]; V0 = [234, 248]; V1 = [238, 252]
    def qk1(s, kb, q): a(f"v_mfma_f32_32x32x16_bf16 {vr(S[s], 16)}, {vr(KM[kb], 4)}, {vr(QM(q), 4)}, 0")
    def qk2(s, kb, q): a(f"v_mfma_f32_32x32x8_bf16 {vr(S[s], 16)}, {vr(KT[kb], 2)}, {vr(QT(q), 2)}, {vr(S[s], 16)}")
    def pv(u, s, vb, q): a(f"v_smfmac_f32_32x32x32_bf16 {vr(O(q), 16)}, {vr((V0, V1)[u][vb], 4)}, {vr(S[s]+8*u, 8)}, v{vIDX}")
    def ldkm(b, so, off=0): a(f"buffer_load_dwordx4 {vr(KM[b], 4)}, v{vKM}, {sr(SWS, 4)}, s{so} offen" + (f" offset:{off}" if off else ""))
    def ldkt(b, so): a(f"buffer_load_dwordx2 {vr(KT[b], 2)}, v{vKT}, {sr(SWS, 4)}, s{so} offen")
    def ldv(u, b, so): a(f"buffer_load_dwordx4 {vr((V0, V1)[u][b], 4)}, v{vV}, {sr(SWS, 4)}, s{so} offen" + (" offset:768" if u else ""))
    def rowmax(s, dst):
        b = S[s]
        a(f"v_max3_f32 v{dst}, v{b}, v{b+1}, v{b+2}")
        for j in range(3, 15, 2): a(f"v_max3_f32 v{dst}, v{dst}, v{b+j}, v{b+j+1}")
        a(f"v_max_f32 v{dst}, v{dst}, v{b+15}")
    def halfmax(r, t):
        a(f"v_mov_b32 v{t}, v{r}")
        a("s_nop 1")
        a(f"v_permlane32_swap_b32 v{t}, v{r}")
        a(f"v_max_f32 v{r}, v{r}, v{t}")

    a(f"v_and_b32 v{vT0}, 31, v{vL}")
    a(f"v_lshrrev_b32 v{vT1}, 5, v{vL}")
    a(f"v_mul_u32_u24 v{vV}, 384, v{vT1}")
    a(f"v_lshl_add_u32 v{vV}, v{vT0}, 4, v{vV}")
    a(f"v_add_u32 v{vV}, 1024, v{vV}")
    a(f"v_mov_b32 v{vT2}, {OOB:#x}")
    a(f"v_cmp_gt_u32 vcc, 24, v{vT0}")
    a(f"v_min_u32 v{vKT}, 32, v{vL}")
    a(f"v_lshlrev_b32 v{vKT}, 3, v{vKT}")
    a(f"v_cndmask_b32 v{vV}, v{vT2}, v{vV}, vcc")
    a(f"v_cmp_gt_u32 vcc, 32, v{vL}")
    a(f"v_add_u32 v{vKT}, 2560, v{vKT}")
    a(f"v_mov_b32 v{vIDX}, 0xdddddddd")
    a(f"v_cndmask_b32 v{vQT}, v{vT2}, v{vKM}, vcc")
    a(f"s_mul_i32 s{sT2}, s{sC}, 10240")
    a(f"s_add_u32 s{sT2}, s{sT2}, s{sG}")
    for j in range(4):
        a(f"s_add_u32 s{sT0}, s{sQ}, {j}")
        a(f"s_and_b32 s{sT0}, s{sT0}, 3")
        a(f"s_lshl_b32 s{sPm+j}, s{sT0}, 11")
        a(f"s_add_u32 s{sPm+j}, s{sPm+j}, s{sT2}")
        a(f"s_lshr_b32 s{sT1}, s{sT0}, 1")
        a(f"s_lshl_b32 s{sT1}, s{sT1}, 10")
        a(f"s_and_b32 s{sT0}, s{sT0}, 1")
        a(f"s_lshl_b32 s{sT0}, s{sT0}, 3")
        a(f"s_add_u32 s{sT1}, s{sT1}, s{sT0}")
        a(f"s_add_u32 s{sT1}, s{sT1}, s{sT2}")
        a(f"s_add_u32 s{sPt+j}, s{sT1}, 8192")
    a.label("K2_RESTART")
    a(f"s_mul_i32 s{sKV}, s{sQ}, {16*KV_REC}")
    a(f"s_add_u32 s{sKV}, s{sKV}, {WS_KV}")
    ldkm(0, sKV); ldkt(0, sKV)
    for i in range(8):
        a(f"buffer_load_dwordx4 {vr(QM(i), 4)}, v{vKM}, {sr(SWS, 4)}, s{sPm+i//2} offen" + (" offset:1024" if i & 1 else ""))
        a(f"buffer_load_dwordx2 {vr(QT(i), 2)}, v{vQT}, {sr(SWS, 4)}, s{sPt+i//2} offen" + (" offset:512" if i & 1 else ""))
    ldv(0, 0, sKV); ldv(1, 0, sKV)
    a(f"s_add_u32 s{sKV}, s{sKV}, {KV_REC}")
    ldkm(1, sKV); ldkt(1, sKV)
    for r in range(O(0), O(0) + 100): a(f"v_mov_b32 v{r}, 0")
    for r in range(S[3], S[3] + 16): a(f"v_mov_b32 v{r}, 0")
    for r in range(V0[1], V0[1] + 8): a(f"v_mov_b32 v{r}, 0")
    a(f"v_and_b32 v{vT0}, 31, v{vL}")
    for j in range(4):
        a(f"s_add_u32 s{sT0}, s{sQ}, {j}")
        a(f"s_and_b32 s{sT0}, s{sT0}, 3")
        a(f"s_lshl_b32 s{sT0}, s{sT0}, 9")
        a(f"s_add_u32 s{sT0}, s{sT0}, {L_MREC}")
        a(f"v_lshl_add_u32 v{vP+j}, v{vT0}, 3, s{sT0}")
    a(f"s_cmp_lg_u32 s{sMODE}, 0")
    a("s_cbranch_scc1 K2_TRUEMAX")
    a.c("stand-in for the row max: max over this wave's first 32 keys (checked after the loop)")
    a(f"v_mov_b32 v{vT0}, {L_BAD}")
    a(f"ds_write_b32 v{vT0}, v{O(0)}")
    a("s_waitcnt vmcnt(16)")
    qk1(0, 0, 0); qk2(0, 0, 0); qk1(1, 0, 1); qk2(1, 0, 1)
    a("s_nop 9")
    rowmax(0, S[2]); rowmax(1, S[2] + 1)
    halfmax(S[2], vT0); halfmax(S[2] + 1, vT0)
    a.label("K2_HAVEMAX")
    for e in range(2):
        a(f"v_sub_f32 v{S[2]+e}, 0, v{S[2]+e}")
        split3(a, S[2] + e, vT0, vT1, S[2] + 2 + 2 * e, S[2] + 3 + 2 * e)
        a(f"ds_write_b64 v{vP}, {vr(S[2]+2+2*e, 2)} offset:{256*e}")
    a("s_waitcnt vmcnt(4) lgkmcnt(0)")
    a("s_barrier")
    a("s_mov_b32 exec_lo, 0")
    for i in range(8): a(f"ds_read_b64 {vr(QT(i), 2)}, v{vP+i//2} offset:{256*(i&1)}")
    a("s_mov_b32 exec_lo, -1")
    a(f"s_mov_b32 s{sCNT}, 8")
    a("s_setprio 3")
    a("s_waitcnt lgkmcnt(0)")
    qk1(0, 0, 0); qk2(0, 0, 0)
    a("s_nop 11")
    a.raw(".p2align 6")
    a.label("K2_LOOP")
    PAT = (3, 4, 3, 3, 3)
    for kb in range(2):
        for q in range(8):
            sc = q & 3
            e = [0]
            def exps(n):
                for _ in range(n):
                    a(f"v_exp_f32 v{S[sc]+e[0]}, v{S[sc]+e[0]}"); e[0] += 1
            nq, nkb = (q + 1) & 7, (kb if q < 7 else kb ^ 1)
            pq, pvb = (q - 1) & 7, (kb if q > 0 else kb ^ 1)
            qk1((q + 1) & 3, nkb, nq); exps(PAT[0])
            qk2((q + 1) & 3, nkb, nq); exps(PAT[1])
            pv(0, (q - 1) & 3, pvb, pq); exps(PAT[2])
            pv(1, (q - 1) & 3, pvb, pq); exps(PAT[3])
            if q == 0: a("s_waitcnt vmcnt(2)"); ldv(0, kb ^ 1, sKV)
            elif q == 1: ldv(1, kb ^ 1, sKV)
            elif q == 2: a(f"s_add_u32 s{sKV}, s{sKV}, {KV_REC}")
            elif q == 3 and kb == 1: a(f"s_sub_u32 s{sCNT}, s{sCNT}, 1")
            elif q == 4 and kb == 1: a(f"s_cmp_lg_u32 s{sCNT}, 0")
            elif q == 5: a("s_waitcnt vmcnt(2)")
            elif q == 6: ldkm(kb, sKV)
            elif q == 7: ldkt(kb, sKV)
            else: a("s_nop 0")
            exps(PAT[4])
    a("s_cbranch_scc1 K2_LOOP")
    a("s_nop 0")
    pv(0, 3, 1, 7); pv(1, 3, 1, 7)
    a("s_setprio 0")
    for j in range(4):
        a(f"s_add_u32 s{sT0}, s{sQ}, {j}")
        a(f"s_and_b32 s{sT0}, s{sT0}, 3")
        a(f"s_mul_i32 s{sT0}, s{sT0}, 18432")
        a(f"s_add_u32 s{sT0}, s{sT0}, {L_OP}")
        a(f"v_add_u32 v{vP+j}, s{sT0}, v{vKM}")
    for i in range(2, 8):
        for j in range(3):
            a(f"ds_write_b128 v{vP+i//2}, {vr(O(i)+4*j, 4)} offset:{(i&1)*9216 + (i//2-1)*3072 + j*1024}")
    a("s_waitcnt vmcnt(0) lgkmcnt(0)")
    a("s_barrier")
    RB = [16, 180]
    for e in range(2):
        for s in range(3):
            for j in range(3):
                a(f"ds_read_b128 {vr(RB[e]+12*s+4*j, 4)}, v{vP} offset:{e*9216 + s*3072 + j*1024}")
    a(f"s_mul_i32 s{sT2}, s{sT}, 40960")
    a(f"s_add_u32 s{sT2}, s{sT2}, {WS_O}")
    a(f"s_sub_u32 s{sT2}, s{sT2}, s{sG}")
    a(f"s_add_u32 s{sT0}, s{sPm}, s{sT2}")
    a(f"s_add_u32 s{sT1}, s{sPt}, s{sT2}")
    a("s_mov_b64 s[46:47], 0")
    a(f"s_mov_b32 s48, {f32bits(2.0**100):#x}")
    for e in range(2):
        A = O(e); P = 128 + 8 * e
        for s in range(3):
            a(f"s_waitcnt lgkmcnt({min(15, 18 - 9*e - 3*s - 3)})")
            for j in range(6): a(f"v_pk_add_f32 {vr(A+2*j, 2)}, {vr(A+2*j, 2)}, {vr(RB[e]+12*s+2*j, 2)}")
        a(f"v_mov_b32 v{vT0}, v{A+8}")
        a(f"v_mov_b32 v{vT2}, v{A+8}")
        a(f"v_mul_f32 v{vT1}, 0, v{A}")
        a(f"v_mul_f32 v7, 0, v{A+8}")
        a(f"v_permlane32_swap_b32 v{vT0}, v{vT2}")
        for j in range(1, 8): a(f"v_fmac_f32 v{vT1}, 0, v{A+j}")
        for j in range(9, 12): a(f"v_fmac_f32 v7, 0, v{A+j}")
        a(f"v_cmp_nlt_f32 vcc, v{vT2}, s48")
        a(f"v_rcp_f32 v{vT2}, v{vT2}")
        a("s_or_b64 s[46:47], s[46:47], vcc")
        a(f"v_cmp_u_f32 vcc, v{vT1}, v{vT1}")
        a(f"v_mov_b32 v{vT3}, v{vT2}")
        a("s_or_b64 s[46:47], s[46:47], vcc")
        a("v_cmp_u_f32 vcc, v7, v7")
        for j in range(6): a(f"v_pk_mul_f32 {vr(A+2*j, 2)}, {vr(A+2*j, 2)}, {vr(vT2, 2)}")
        a("s_or_b32 s46, s46, vcc_lo")
        for j in range(6): a(f"v_cvt_pk_bf16_f32 v{P+j}, v{A+2*j}, v{A+2*j+1}")
        a(f"buffer_store_dwordx4 {vr(P, 4)}, v{vKM}, {sr(SWS, 4)}, s{sT0} offen offset:{1024*e} sc1")
        a(f"buffer_store_dwordx2 {vr(P+4, 2)}, v{vQT}, {sr(SWS, 4)}, s{sT1} offen offset:{512*e} sc1")
    a("s_cmp_eq_u64 s[46:47], 0")
    a("s_cbranch_scc1 K2_NOTBAD")
    a(f"v_mov_b32 v{vT0}, {L_BAD}")
    a(f"ds_write_b32 v{vT0}, v{vT0}")
    a.label("K2_NOTBAD")
    a("s_waitcnt vmcnt(0) lgkmcnt(0)")
    a("s_barrier")
    a(f"v_mov_b32 v{vT0}, {L_BAD}")
    a(f"ds_read_b32 v{vT0}, v{vT0}")
    a("s_waitcnt lgkmcnt(0)")
    a(f"v_readfirstlane_b32 s{sT0}, v{vT0}")
    a(f"s_cmp_lg_u32 s{sMODE}, 0")
    a(f"s_cselect_b32 s{sT0}, 0, s{sT0}")
    a(f"s_cmp_lg_u32 s{sT0}, 0")
    a(f"s_cselect_b32 s{sMODE}, 1, s{sMODE}")
    a("s_cbranch_scc1 K2_RESTART")
    a(f"s_cmp_lg_u32 s{sW}, 0")
    a("s_cbranch_scc1 K2_NOPUB")
    a(f"s_lshl_b32 s{sT0}, s{sT}, 2")
    a(f"s_add_u32 s{sT0}, s{sT0}, s{sC}")
    a(f"s_lshl_b32 s{sT0}, s{sT0}, 7")
    a(f"s_add_u32 s{sT0}, s{sT0}, {WS_FL}")
    a(f"v_mov_b32 v{vT0}, 0")
    a(f"v_mov_b32 v{vT1}, 1")
    a("s_mov_b64 exec, 1")
    a(f"buffer_store_dword v{vT1}, v{vT0}, {sr(SWS, 4)}, s{sT0} offen sc1")
    a("s_mov_b64 exec, -1")
    a.label("K2_NOPUB")
    final_stage(a, vL, 0, 16, 32, 20, 21, True, False)
    a(f"s_cmp_ge_u32 s{sW}, 2")
    a("s_cbranch_scc1 K2_F1")
    final_stage(a, vL, 512, 24, 80, 22, 23, True, False)
    a.label("K2_F1")
    a("s_barrier")
    final_stage(a, vL, 0, 16, 32, 20, 21, False, True)
    a(f"s_cmp_ge_u32 s{sW}, 2")
    a("s_cbranch_scc1 K2_END")
    final_stage(a, vL, 512, 24, 80, 22, 23, False, True)
    a("s_endpgm")
    a.label("K2_TRUEMAX")
    M = S[2]
    for i in range(8): a(f"v_mov_b32 v{M+i}, 0xff800000")
    a(f"s_sub_u32 s{sT2}, s{sKV}, {KV_REC}")
    a(f"s_mov_b32 s{sCNT}, 16")
    TK, TT = S[1], S[1] + 4
    a.label("K2_TM_LOOP")
    a(f"buffer_load_dwordx4 {vr(TK, 4)}, v{vKM}, {sr(SWS, 4)}, s{sT2} offen")
    a(f"buffer_load_dwordx2 {vr(TT, 2)}, v{vKT}, {sr(SWS, 4)}, s{sT2} offen")
    a("s_waitcnt vmcnt(0)")
    for i in range(8):
        a(f"v_mfma_f32_32x32x16_bf16 {vr(S[0], 16)}, {vr(TK, 4)}, {vr(QM(i), 4)}, 0")
        a(f"v_mfma_f32_32x32x8_bf16 {vr(S[0], 16)}, {vr(TT, 2)}, {vr(QT(i), 2)}, {vr(S[0], 16)}")
        a("s_nop 11")
        for j in range(0, 16, 2): a(f"v_max3_f32 v{M+i}, v{M+i}, v{S[0]+j}, v{S[0]+j+1}")
    a(f"s_add_u32 s{sT2}, s{sT2}, {KV_REC}")
    a(f"s_sub_u32 s{sCNT}, s{sCNT}, 1")
    a(f"s_cmp_lg_u32 s{sCNT}, 0")
    a("s_cbranch_scc1 K2_TM_LOOP")
    for i in range(8):
        halfmax(M + i, vT0)
        a(f"v_add_u32 v{vT1}, {L_OP - L_MREC}, v{vP+i//2}")
        a(f"ds_write_b32 v{vT1}, v{M+i} offset:{(i//2)*2048 + (i&1)*256}")
    a("s_waitcnt lgkmcnt(0)")
    a("s_barrier")
    a(f"v_add_u32 v{vT1}, {L_OP - L_MREC}, v{vP}")
    for e in range(2):
        for s in range(1, 4): a(f"ds_read_b32 v{S[0]+4*e+s}, v{vT1} offset:{s*2048 + e*256}")
    a("s_waitcnt lgkmcnt(0)")
    for e in range(2):
        a(f"v_max3_f32 v{M+e}, v{M+e}, v{S[0]+4*e+1}, v{S[0]+4*e+2}")
        a(f"v_max_f32 v{M+e}, v{M+e}, v{S[0]+4*e+3}")
    a("s_branch K2_HAVEMAX")

def gen_ffn(a):
    vL, vL16, vTR = 1, 2, 3
    vD, vD2 = 4, 9
    vT0, vT1 = 14, 15
    F = lambda t: 16 + 16 * t
    WO = lambda k: 96 + 20 * k
    HB = lambda u: 216 + 4 * u
    srd(a, SW2, 40, 41, 1728 * 1280)
    def dma_piece(p, slot, vd):
        a(f"s_add_u32 m0, s{sM0}, {slot*5120 + p*1024}")
        a("s_nop 0")
        a(f"buffer_load_dwordx4 v{vd+p}, {sr(SW2, 4)}, s{sSO} offen lds")
    def trr(dst, slot, t):
        a(f"ds_read_b64_tr_b16 {vr(dst+4*t, 2)}, v{vTR} offset:{slot*5120 + 64*t}")
        a(f"ds_read_b64_tr_b16 {vr(dst+4*t+2, 2)}, v{vTR} offset:{slot*5120 + 64*t + 2560}")
    def hload(u):
        a(f"buffer_load_dwordx4 {vr(HB(u), 4)}, v{vL16}, {sr(SWS, 4)}, s{sHO} offen")
        a(f"s_add_u32 s{sHO}, s{sHO}, 1024")
    for p in range(5):
        a(f"v_add_u32 v{vT0}, {64*p}, v{vL}")
        a(f"v_mul_u32_u24 v{vT1}, 3277, v{vT0}")
        a(f"v_lshrrev_b32 v{vT1}, 16, v{vT1}")
        a(f"v_lshlrev_b32 v{vT0}, 4, v{vT0}")
        a(f"v_mul_u32_u24 v{vD+p}, 960, v{vT1}")
        a(f"v_add_u32 v{vD+p}, v{vD+p}, v{vT0}")
        a(f"v_lshrrev_b32 v{vT1}, 2, v{vT1}")
        a(f"v_mul_u32_u24 v{vT1}, {16*1280}, v{vT1}")
        a(f"v_add_u32 v{vD2+p}, v{vD+p}, v{vT1}")
    a(f"s_mul_i32 s{sM0}, s{sQ}, {RING_ST}")
    a(f"s_mul_i32 s{sSO}, s{sQ}, {27*16*1280}")
    a(f"s_mul_i32 s{sT2}, s{sC}, 320")
    a(f"s_add_u32 s{sSO}, s{sSO}, s{sT2}")
    a(f"s_mov_b32 s{sSTEP}, {16*1280}")
    a(f"s_mul_i32 s{sHO}, s{sQ}, {27*1024}")
    a(f"s_add_u32 s{sHO}, s{sHO}, s{sG}")
    a(f"s_add_u32 s{sHO}, s{sHO}, {20*2048}")
    for j in range(4):
        for p in range(5): dma_piece(p, j, vD)
        a(f"s_add_u32 s{sSO}, s{sSO}, s{sSTEP}")
        hload(j)
    a(f"v_lshrrev_b32 v{vT0}, 5, v{vL}")
    a(f"v_bfe_u32 v{vT1}, v{vL}, 2, 2")
    a(f"v_lshl_add_u32 v{vT0}, v{vT0}, 2, v{vT1}")
    a(f"v_mul_u32_u24 v{vTR}, 320, v{vT0}")
    a(f"v_bfe_u32 v{vT0}, v{vL}, 4, 1")
    a(f"v_lshl_add_u32 v{vTR}, v{vT0}, 5, v{vTR}")
    a(f"v_and_b32 v{vT0}, 3, v{vL}")
    a(f"v_lshl_add_u32 v{vTR}, v{vT0}, 3, v{vTR}")
    a(f"v_add_u32 v{vTR}, s{sM0}, v{vTR}")
    for r in range(F(0), F(5)): a(f"v_mov_b32 v{r}, 0")
    a("s_waitcnt vmcnt(19)")
    for t in range(5): trr(WO(0), 0, t)
    a(f"s_mov_b32 s{sCNT}, 0")
    a("s_barrier")
    a.raw(".p2align 3")
    a.label("K2_FLOOP")
    for u in range(4):
        if u == 3:
            a(f"s_cmp_eq_u32 s{sCNT}, 6")
            a("s_cbranch_scc1 K2_FDONE")
            a(f"s_cmp_lg_u32 s{sCNT}, 5")
            a("s_cbranch_scc1 K2_FNS")
            srd(a, SW2, 38, 39, 640 * 1280)
            a(f"s_mul_i32 s{sSO}, s{sQ}, {160*1280}")
            a(f"s_add_u32 s{sSO}, s{sSO}, s{sT2}")
            a(f"s_mov_b32 s{sSTEP}, {20*1280}")
            a.label("K2_FNS")
        a("s_waitcnt vmcnt(13) lgkmcnt(0)")
        for t in range(5):
            a(f"v_mfma_f32_32x32x16_bf16 {vr(F(t), 16)}, {vr(WO(0)+4*t, 4)}, {vr(HB(u), 4)}, {vr(F(t), 16)}")
            trr(WO(0), (u + 1) & 3, t)
            dma_piece(t, u, vD)
        a(f"s_add_u32 s{sSO}, s{sSO}, s{sSTEP}")
        hload(u)
    a(f"s_add_u32 s{sCNT}, s{sCNT}, 1")
    a("s_branch K2_FLOOP")
    a.label("K2_FDONE")
    for k in range(1, 6):
        wait = {1: 13, 2: 12, 3: 11, 4: 10, 5: 10}[k]
        a(f"s_waitcnt vmcnt({wait}) lgkmcnt(0)")
        if k + 3 == 8:
            a(f"s_mul_i32 s{sSO}, s{sQ}, {160*1280}")
            a(f"s_add_u32 s{sSO}, s{sSO}, s{sT2}")
            a(f"s_add_u32 s{sSO}, s{sSO}, {16*1280}")
            a(f"s_mov_b32 s{sSTEP}, {80*1280}")
        for t in range(5):
            trr(WO(k), (k + 3) & 3, t)
            dma_piece(t, (k + 2) & 3, vD2 if k + 3 >= 8 else vD)
        a(f"s_add_u32 s{sSO}, s{sSO}, s{sSTEP}")
    a("s_waitcnt lgkmcnt(0)")
    for t in range(5): dma_piece(t, (6 + 2) & 3, vD2)
    final_stage(a, vL, 0, 4, 96, 8, 9, True, False)
    a(f"v_and_b32 v{vT0}, 31, v{vL}")
    a(f"v_mul_u32_u24 v{vT0}, 656, v{vT0}")
    a(f"v_lshrrev_b32 v{vT1}, 5, v{vL}")
    a(f"v_lshl_add_u32 v{vT0}, v{vT1}, 4, v{vT0}")
    a(f"v_add_u32 v10, s{sM0}, v{vT0}")
    a(f"s_lshl_b32 s{sT0}, s{sT}, 2")
    a(f"s_add_u32 s{sT0}, s{sT0}, s{sQ}")
    a(f"s_mul_i32 s{sHO}, s{sT0}, 10240")
    a(f"s_add_u32 s{sHO}, s{sHO}, {WS_O}")
    a(f"s_lshl_b32 s{sSO}, s{sT0}, 7")
    a(f"s_add_u32 s{sSO}, s{sSO}, {WS_FL}")
    a("s_barrier")
    a.label("K2_FB3")
    a("s_barrier")
    a(f"v_mov_b32 v{vT0}, {L_BAD}")
    a(f"ds_read_b32 v{vT0}, v{vT0}")
    a("s_waitcnt lgkmcnt(0)")
    a(f"v_readfirstlane_b32 s{sT0}, v{vT0}")
    a(f"s_cmp_lg_u32 s{sMODE}, 0")
    a(f"s_cselect_b32 s{sT0}, 0, s{sT0}")
    a(f"s_cmp_eq_u32 s{sT0}, 0")
    a("s_cbranch_scc1 K2_POLL")
    a(f"s_mov_b32 s{sMODE}, 1")
    a("s_barrier")
    a("s_barrier")
    a("s_barrier")
    a("s_branch K2_FB3")
    a.label("K2_POLL")
    a(f"v_mov_b32 v{vT1}, 0")
    a(f"s_mov_b32 s{sCNT}, 0x100000")
    a.label("K2_POLL1")
    a(f"buffer_load_dword v{vT0}, v{vT1}, {sr(SWS, 4)}, s{sSO} offen sc1")
    a("s_waitcnt vmcnt(0)")
    a(f"v_readfirstlane_b32 s{sT0}, v{vT0}")
    a(f"s_cmp_eq_u32 s{sT0}, 1")
    a("s_cbranch_scc1 K2_GOT")
    a("s_sleep 1")
    a(f"s_sub_u32 s{sCNT}, s{sCNT}, 1")
    a(f"s_cmp_lg_u32 s{sCNT}, 0")
    a("s_cbranch_scc1 K2_POLL1")
    a.label("K2_GOT")
    a(f"s_add_u32 s{sT0}, s{sHO}, 4096")
    a(f"s_add_u32 s{sT1}, s{sHO}, 8192")
    for k in range(10):
        so = (sHO, sT0, sT1)[k // 4]
        a(f"buffer_load_dwordx4 {vr(HB(k), 4)}, v{vL16}, {sr(SWS, 4)}, s{so} offen offset:{(k%4)*1024} sc1")
    for k in range(10):
        w = WO(k) if k < 6 else WO(k - 6)
        if k >= 6: a(f"s_waitcnt vmcnt({9-k}) lgkmcnt({min(15, 10*(9-k))})")
        else: a(f"s_waitcnt vmcnt({9-k})")
        for t in range(5):
            a(f"v_mfma_f32_32x32x16_bf16 {vr(F(t), 16)}, {vr(w+4*t, 4)}, {vr(HB(k), 4)}, {vr(F(t), 16)}")
            if k < 4: trr(WO(k), (k + 6 + 3) & 3, t)
    a("s_nop 7")
    for t in range(5):
        for g in range(4):
            a(f"ds_write_b128 v10, {vr(F(t)+4*g, 4)} offset:{128*t + 32*g}")
    a("s_waitcnt lgkmcnt(0)")
    a("s_barrier")
    final_stage(a, vL, 0, 4, 96, 8, 9, False, True)
    a("s_endpgm")
```

```python
import sys, struct, math

NAME = "parallel_sum__grouped_kv_mqa__dense_activation_relu__prompt"
G_TSTRIDE = 75 * 2048
WS_G = 0
WS_KV = 64 * G_TSTRIDE
KV_REC = 3072
WS_O = WS_KV + 66 * KV_REC
WS_O = (WS_O + 4095) // 4096 * 4096
WS_FL = WS_O + 64 * 40 * 1024
WS_END = WS_FL + 256 * 128
OOB = 0x80000000
QSCALE = math.log2(math.e) / math.sqrt(20.0)

def f32bits(x): return struct.unpack("<I", struct.pack("<f", x))[0]

class Asm:
    def __init__(self): self.lines = []
    def __call__(self, s): self.lines.append("    " + s)
    def label(self, s): self.lines.append(s + ":")
    def raw(self, s): self.lines.append(s)
    def c(self, s): self.lines.append("    ; " + s)
    def text(self): return "\n".join(self.lines) + "\n"

def vr(b, n=1): return f"v{b}" if n == 1 else f"v[{b}:{b+n-1}]"
def sr(b, n=1): return f"s{b}" if n == 1 else f"s[{b}:{b+n-1}]"

def srd(a, d, lo, hi, size):
    a(f"s_mov_b32 s{d}, s{lo}")
    a(f"s_mov_b32 s{d+1}, s{hi}")
    a(f"s_mov_b32 s{d+2}, {size}")
    a(f"s_mov_b32 s{d+3}, 0x00020000")

def csel(a, d, t, f):
    a(f"s_mov_b32 s{d}, {f}")
    a(f"s_cmov_b32 s{d}, {t}")

def split3(a, src, t0, t1, d0, d1):
    a(f"v_and_b32 v{t0}, 0xffff0000, v{src}")
    a(f"v_sub_f32 v{t1}, v{src}, v{t0}")
    a(f"v_lshrrev_b32 v{d0}, 16, v{src}")
    a(f"v_and_b32 v{t0}, 0xffff0000, v{t1}")
    a(f"v_or_b32 v{d0}, v{d0}, v{t0}")
    a(f"v_sub_f32 v{t1}, v{t1}, v{t0}")
    a(f"v_lshrrev_b32 v{d1}, 16, v{t1}")

K1_SLOT = 36864
K1_XOFF = 20480
K1_CS = 4 * K1_SLOT
K1_ST = K1_CS + 2560
K1_LDS = K1_ST + 1024

def gen_k1(a):
    SX, SW, SW2, SWS = 4, 8, 12, 16
    sRB, sCG, sW, sTT, sWST, sSO, sSTEP, sM0, sC, sDEL, sONE, sLO, sQS = range(20, 33)
    sT0, sT1, sT2, sT3 = 33, 34, 35, 48
    sTI = 50
    sOUT = 53
    vL, vN, vH, vT0, vT1, vT2 = 1, 2, 3, 4, 5, 6
    vX = 8
    vTR = 12
    vD = 16
    vSUM, vSQ, vCS = 21, 22, 23
    vROW = 24
    FB = [28, 32]
    FA = [36, 48]
    ACC = 64
    a.label("k1_kernel")
    a("s_cmp_ge_u32 s2, 256")
    a("s_cbranch_scc1 K1_END")
    a("s_load_dwordx8 s[36:43], s[0:1], 0")
    a("s_load_dwordx2 s[44:45], s[0:1], 48")
    a("s_load_dwordx2 s[46:47], s[0:1], 80")
    a(f"v_lshrrev_b32 v{vT0}, 6, v0")
    a(f"v_and_b32 v{vL}, 63, v0")
    a(f"v_readfirstlane_b32 s{sW}, v{vT0}")
    a(f"s_bfe_u32 s{sRB}, s2, 0x20001")
    a(f"s_lshl_b32 s{sRB}, s{sRB}, 2")
    a(f"s_bfe_u32 s{sT0}, s2, 0x20003")
    a(f"s_add_u32 s{sRB}, s{sRB}, s{sT0}")
    a(f"s_and_b32 s{sCG}, s2, 1")
    a(f"s_lshl_b32 s{sCG}, s{sCG}, 3")
    a(f"s_lshr_b32 s{sT0}, s2, 5")
    a(f"s_add_u32 s{sCG}, s{sCG}, s{sT0}")
    a(f"s_and_b32 s{sTT}, s{sW}, 3")
    a(f"s_mov_b32 s{sONE}, 0x3f803f80")
    a(f"v_and_b32 v{vN}, 31, v{vL}")
    a(f"v_lshrrev_b32 v{vH}, 5, v{vL}")
    a(f"v_bfe_u32 v{vT0}, v{vL}, 1, 3")
    a(f"v_xor_b32 v{vT0}, v{vT0}, v{vH}")
    a(f"s_lshl_b32 s{sT0}, s{sTT}, 12")
    a(f"s_add_u32 s{sT0}, s{sT0}, {K1_XOFF}")
    a(f"v_lshl_add_u32 v{vT1}, v{vN}, 7, s{sT0}")
    for s in range(4):
        a(f"v_xor_b32 v{vT2}, {2*s}, v{vT0}")
        a(f"v_lshl_add_u32 v{vX+s}, v{vT2}, 4, v{vT1}")
    a(f"v_bfe_u32 v{vT0}, v{vL}, 2, 2")
    a(f"v_lshl_add_u32 v{vROW}, v{vH}, 3, v{vT0}")
    a(f"v_mov_b32 v{vSUM}, 0")
    a(f"v_mov_b32 v{vSQ}, 0")
    a(f"v_mov_b32 v{vCS}, 0")
    a(f"s_lshl_b32 s{sT0}, s{sRB}, 2")
    a(f"s_add_u32 s{sT3}, s{sT0}, s{sTT}")
    a(f"s_mul_i32 s{sOUT}, s{sT3}, {G_TSTRIDE}")
    a(f"s_mul_i32 s{sT0}, s{sCG}, 10240")
    a(f"s_add_u32 s{sOUT}, s{sOUT}, s{sT0}")
    a(f"s_cmp_lt_u32 s{sCG}, 4")
    csel(a, sWST, 1280, 3456)
    a(f"s_cselect_b32 s{sLO}, 0x80008000, 0")
    a(f"s_cselect_b32 s{sQS}, {f32bits(QSCALE):#x}, 1.0")
    a("s_waitcnt lgkmcnt(0)")
    a(f"s_cselect_b32 s{SW}, s38, s44")
    a(f"s_cselect_b32 s{SW+1}, s39, s45")
    csel(a, SW+2, 640*640*2, 640*1728*2)
    a(f"s_mov_b32 s{SW+3}, 0x00020000")
    srd(a, SX, 36, 37, 2048 * 640 * 2)
    srd(a, SWS, 46, 47, WS_END)
    a(f"s_cmp_eq_u32 s{sCG}, 15")
    a("s_cbranch_scc1 K1_KV")
    a(f"s_cmp_ge_u32 s{sW}, 4")
    a("s_cbranch_scc1 K1_GB")

    def x_dma_setup():
        a(f"s_lshl_b32 s{sT0}, s{sT3}, 5")
        a(f"v_lshrrev_b32 v{vT0}, 3, v{vL}")
        a(f"v_add_u32 v{vT0}, s{sT0}, v{vT0}")
        a(f"v_mul_u32_u24 v{vT0}, 1280, v{vT0}")
        a(f"v_lshrrev_b32 v{vT1}, 4, v{vL}")
        a(f"v_and_b32 v{vT2}, 7, v{vL}")
        a(f"v_xor_b32 v{vT1}, v{vT1}, v{vT2}")
        a(f"v_lshl_add_u32 v{vD}, v{vT1}, 4, v{vT0}")
        a(f"v_xor_b32 v{vT1}, 4, v{vT1}")
        a(f"v_lshl_add_u32 v{vD+1}, v{vT1}, 4, v{vT0}")
        a(f"v_add_u32 v{vD+1}, {8*1280}, v{vD+1}")
        a(f"v_add_u32 v{vD+2}, {16*1280}, v{vD}")
        a(f"v_add_u32 v{vD+3}, {16*1280}, v{vD+1}")
        a(f"s_mov_b32 s{sSO}, 0")
        a(f"s_mov_b32 s{sSTEP}, 128")
        a(f"s_lshl_b32 s{sM0}, s{sTT}, 12")
        a(f"s_add_u32 s{sM0}, s{sM0}, {K1_XOFF}")

    def w_dma_setup():
        a(f"s_sub_u32 s{sT0}, s{sCG}, 4")
        a(f"s_cmp_lt_u32 s{sCG}, 4")
        a(f"s_cselect_b32 s{sT0}, s{sCG}, s{sT0}")
        a(f"s_mul_i32 s{sT0}, s{sT0}, 320")
        a(f"s_lshl_b32 s{sT1}, s{sW}, 4")
        a(f"s_mul_i32 s{sT1}, s{sT1}, s{sWST}")
        a(f"s_add_u32 s{sSO}, s{sT0}, s{sT1}")
        a(f"s_sub_u32 s{sT2}, s{sWST}, 320")
        for p in range(5):
            a(f"v_add_u32 v{vT0}, {64*p}, v{vL}")
            a(f"v_mul_u32_u24 v{vT1}, 3277, v{vT0}")
            a(f"v_lshrrev_b32 v{vT1}, 16, v{vT1}")
            a(f"v_lshlrev_b32 v{vT0}, 4, v{vT0}")
            a(f"v_mad_u32_u24 v{vD+p}, v{vT1}, s{sT2}, v{vT0}")
        a(f"s_lshl_b32 s{sSTEP}, s{sWST}, 6")
        a(f"s_mul_i32 s{sM0}, s{sW}, 5120")

    def tr_setup_generic(role):
        nt = 3 if role == "A" else 2
        for i in range(nt):
            a(f"s_add_u32 s{sTI+i}, s{sTT}, {i}")
            if role == "A":
                a(f"s_sub_u32 s{sT0}, s{sTI+i}, 3")
                a(f"s_cmp_ge_u32 s{sTI+i}, 3")
                a(f"s_cselect_b32 s{sTI+i}, s{sT0}, s{sTI+i}")
            else:
                a(f"s_and_b32 s{sTI+i}, s{sTI+i}, 1")
                a(f"s_add_u32 s{sTI+i}, s{sTI+i}, 3")
        a(f"v_bfe_u32 v{vT0}, v{vL}, 4, 1")
        a(f"v_and_b32 v{vT1}, 3, v{vL}")
        a(f"v_mul_u32_u24 v{vROW}, 320, v{vROW}")
        for i in range(nt):
            a(f"s_cmp_lt_u32 s{sCG}, 4")
            a(f"s_cselect_b32 s{sT0}, 80, 64")
            a(f"s_cselect_b32 s{sT1}, 40, 32")
            a(f"s_mul_i32 s{sT0}, s{sT0}, s{sTI+i}")
            a(f"s_mov_b32 s{sT2}, 8")
            if role == "B":
                a(f"s_cmp_eq_u32 s{sT0}, 320")
                a(f"s_cselect_b32 s{sT0}, 32, s{sT0}")
                a(f"s_cselect_b32 s{sT1}, 160, s{sT1}")
                a(f"s_cselect_b32 s{sT2}, 40, s{sT2}")
            a(f"v_mad_u32_u24 v{vTR+i}, v{vT0}, s{sT1}, v{vROW}")
            a(f"v_mad_u32_u24 v{vTR+i}, v{vT1}, s{sT2}, v{vTR+i}")
            a(f"v_add_u32 v{vTR+i}, s{sT0}, v{vTR+i}")

    def body(tag, role, kv):
        nt = 1 if kv else (3 if role == "A" else 2)
        sstr, rstr = (1024, 40) if kv else (5120, 320)
        if role == "B": ndma = 4
        else: ndma = 2 if kv else 5
        def dma():
            for p in range(ndma):
                if role == "A" and kv:
                    a(f"s_add_u32 m0, s{sM0}, {4096*p}")
                    a("s_nop 0")
                    a(f"buffer_load_dwordx4 v{vD}, {sr(SW if p == 0 else SW2, 4)}, s{sSO} offen lds")
                else:
                    a(f"s_add_u32 m0, s{sM0}, {1024*p}")
                    a("s_nop 0")
                    a(f"buffer_load_dwordx4 v{vD+p}, {sr(SX if role == 'B' else SW, 4)}, s{sSO} offen lds")
            a(f"s_add_u32 s{sSO}, s{sSO}, s{sSTEP}")
        def reads(s, p):
            a(f"ds_read_b128 {vr(FB[p], 4)}, v{vX+s}")
            for i in range(nt):
                a(f"ds_read_b64_tr_b16 {vr(FA[p]+4*i, 2)}, v{vTR+i} offset:{s*sstr}")
                a(f"ds_read_b64_tr_b16 {vr(FA[p]+4*i+2, 2)}, v{vTR+i} offset:{s*sstr+4*rstr}")
        def mfmas(p):
            dots = [f"v_dot2c_f32_bf16 v{vCS}, s{sONE}, v{FA[p]+j}" for j in range(4)]
            if role == "B":
                d2 = []
                for j in range(4):
                    d2 += [f"v_dot2c_f32_bf16 v{vSUM}, s{sONE}, v{FB[p]+j}", f"v_dot2c_f32_bf16 v{vSQ}, v{FB[p]+j}, v{FB[p]+j}", dots[j]]
                dots = d2
            per = (len(dots) + nt - 1) // nt
            per += per & 1
            for i in range(nt):
                a(f"v_mfma_f32_32x32x16_bf16 {vr(ACC+16*i, 16)}, {vr(FA[p]+4*i, 4)}, {vr(FB[p], 4)}, {vr(ACC+16*i, 16)}")
                for d in dots[i*per:(i+1)*per]: a(d)
        nrd = 1 + 2 * nt
        for c in range(4):
            dma()
            a(f"s_add_u32 s{sM0}, s{sM0}, {K1_SLOT}")
        a(f"s_sub_u32 s{sM0}, s{sM0}, {4*K1_SLOT}")
        for i in range(16 * nt): a(f"v_mov_b32 v{ACC+i}, 0")
        if role == "A":
            a(f"s_lshl_b32 s{sT0}, s2, 7")
            a(f"s_add_u32 s{sT0}, s{sT0}, {WS_FL}")
            a(f"v_mov_b32 v{vT0}, 0")
            a(f"buffer_store_dword v{vT0}, v{vT0}, {sr(SWS, 4)}, s{sT0} offen")
            a(f"s_waitcnt vmcnt({3*ndma+1})")
        else:
            a(f"s_waitcnt vmcnt({3*ndma})")
        a("s_barrier")
        reads(0, 0)
        a(f"s_mov_b32 s{sC}, 0")
        a.raw(".p2align 3")
        a.label(f"K1_L{tag}")
        for s in range(3):
            reads(s + 1, (s + 1) & 1)
            a(f"s_waitcnt lgkmcnt({nrd})")
            mfmas(s & 1)
        a(f"s_and_b32 s{sT0}, s{sC}, 3")
        a(f"s_cmp_eq_u32 s{sT0}, 3")
        csel(a, sDEL, -3*K1_SLOT, K1_SLOT)
        a(f"s_cmp_ge_u32 s{sC}, 7")
        a(f"s_cbranch_scc1 K1_W0{tag}")
        a(f"s_waitcnt vmcnt({2*ndma}) lgkmcnt(0)")
        a(f"s_branch K1_W1{tag}")
        a.label(f"K1_W0{tag}")
        a(f"s_waitcnt vmcnt(0) lgkmcnt(0)")
        a.label(f"K1_W1{tag}")
        for s in range(4): a(f"v_add_u32 v{vX+s}, s{sDEL}, v{vX+s}")
        for i in range(nt): a(f"v_add_u32 v{vTR+i}, s{sDEL}, v{vTR+i}")
        a("s_barrier")
        reads(0, 0)
        a(f"s_cmp_ge_u32 s{sC}, 6")
        a(f"s_cbranch_scc1 K1_ND{tag}")
        dma()
        a(f"s_add_u32 s{sM0}, s{sM0}, s{sDEL}")
        a.label(f"K1_ND{tag}")
        mfmas(1)
        a(f"s_add_u32 s{sC}, s{sC}, 1")
        a(f"s_cmp_lt_u32 s{sC}, 10")
        a(f"s_cbranch_scc1 K1_L{tag}")
        a("s_waitcnt lgkmcnt(0)")
        R0 = FB[0]
        a("s_nop 2")
        split3(a, vCS, vT0, vT1, R0, R0 + 1)
        a(f"s_lshl_b32 s{sT0}, s{sTI}, 9")
        a(f"s_add_u32 s{sT0}, s{sT0}, {K1_CS}")
        a(f"v_lshl_add_u32 v{vT2}, v{vL}, 3, s{sT0}")
        a(f"ds_write_b64 v{vT2}, {vr(R0, 2)}")
        a(f"s_lshl_b32 s{sT0}, s{sTT}, 8")
        a(f"s_add_u32 s{sT0}, s{sT0}, {K1_ST}")
        a(f"v_lshl_add_u32 v{vX}, v{vN}, 3, s{sT0}")
        if role == "B":
            S = R0 + 4
            a(f"v_mov_b32 v{S}, v{vSUM}")
            a(f"v_mov_b32 v{S+1}, v{vSQ}")
            a("s_nop 1")
            a(f"v_permlane32_swap_b32 v{S}, v{vSUM}")
            a(f"v_permlane32_swap_b32 v{S+1}, v{vSQ}")
            a(f"v_add_f32 v{vSUM}, v{vSUM}, v{S}")
            a(f"v_add_f32 v{vSQ}, v{vSQ}, v{S+1}")
            a(f"v_mul_f32 v{vSUM}, {f32bits(1.0/640):#x}, v{vSUM}")
            a(f"v_mul_f32 v{vSQ}, {f32bits(1.0/640):#x}, v{vSQ}")
            a(f"v_fma_f32 v{vSQ}, -v{vSUM}, v{vSUM}, v{vSQ}")
            a(f"v_max_f32 v{vSQ}, 0, v{vSQ}")
            a(f"v_cvt_pk_bf16_f32 v{S}, -v{vSUM}, -v{vSUM}")
            a(f"v_cvt_pk_bf16_f32 v{vSQ}, v{vSQ}, v{vSQ}")
            a(f"v_and_b32 v{vSQ}, 0xffff0000, v{vSQ}")
            a(f"v_add_f32 v{vSQ}, {f32bits(1e-5):#x}, v{vSQ}")
            a(f"v_cvt_pk_bf16_f32 v{vSQ}, v{vSQ}, v{vSQ}")
            a(f"v_and_b32 v{vSQ}, 0xffff0000, v{vSQ}")
            a(f"v_sqrt_f32 v{vSQ}, v{vSQ}")
            a("s_nop 0")
            a(f"v_cvt_pk_bf16_f32 v{vSQ}, v{vSQ}, v{vSQ}")
            a(f"v_and_b32 v{vSQ}, 0xffff0000, v{vSQ}")
            a(f"v_rcp_f32 v{vSQ}, v{vSQ}")
            a("s_nop 0")
            a(f"v_mul_f32 v{S+1}, s{sQS}, v{vSQ}")
            a(f"ds_write_b64 v{vX}, {vr(S, 2)}")
        for i in range(nt):
            a(f"s_lshl_b32 s{sT0}, s{sTI+i}, 9")
            a(f"s_add_u32 s{sT0}, s{sT0}, {K1_CS}")
            a(f"v_lshl_add_u32 v{vTR+i}, v{vL}, 3, s{sT0}")
        a("s_waitcnt lgkmcnt(0)")
        a("s_barrier")
        ST = R0 + 8
        NM = R0 + 10
        CSR = R0 + 12
        a(f"ds_read_b64 {vr(ST, 2)}, v{vX}")
        for i in range(nt): a(f"ds_read_b64 {vr(CSR+2*i, 2)}, v{vTR+i}")
        a(f"v_lshlrev_b32 v{vT2}, 4, v{vL}")
        a("s_waitcnt lgkmcnt(0)")
        a(f"v_mov_b32 v{NM}, v{ST}")
        a(f"v_mov_b32 v{NM+1}, v{ST}")
        a(f"v_mov_b32 v{ST}, v{ST+1}")
        a("s_nop 0")
        for i in range(nt):
            a(f"v_mfma_f32_32x32x8_bf16 {vr(ACC+16*i, 16)}, {vr(CSR+2*i, 2)}, {vr(NM, 2)}, {vr(ACC+16*i, 16)}")
        a("s_nop 11")
        if not kv:
            for i in range(nt):
                P = 128 + 8 * i
                for j in range(8): a(f"v_pk_mul_f32 {vr(ACC+16*i+2*j, 2)}, {vr(ACC+16*i+2*j, 2)}, {vr(ST, 2)}")
                for j in range(8): a(f"v_cvt_pk_bf16_f32 v{P+j}, v{ACC+16*i+2*j}, v{ACC+16*i+2*j+1}")
                for j in range(8): a(f"v_pk_max_i16 v{P+j}, v{P+j}, s{sLO}")
                a(f"s_lshl_b32 s{sT0}, s{sTI+i}, 11")
                a(f"s_add_u32 s{sT0}, s{sT0}, s{sOUT}")
                a(f"buffer_store_dwordx4 {vr(P, 4)}, v{vT2}, {sr(SWS, 4)}, s{sT0} offen")
                a(f"buffer_store_dwordx4 {vr(P+4, 4)}, v{vT2}, {sr(SWS, 4)}, s{sT0} offen offset:1024")
        else:
            P = 128
            a(f"s_mul_i32 s{sT0}, s{sT3}, {KV_REC}")
            a(f"s_add_u32 s{sT0}, s{sT0}, {WS_KV}")
            for j in range(6): a(f"v_pk_mul_f32 {vr(ACC+2*j, 2)}, {vr(ACC+2*j, 2)}, {vr(ST, 2)}")
            if role == "A":
                for j in range(6): a(f"v_cvt_pk_bf16_f32 v{P+j}, v{ACC+2*j}, v{ACC+2*j+1}")
                a(f"v_min_u32 v{vT0}, 32, v{vL}")
                a(f"v_lshlrev_b32 v{vT0}, 3, v{vT0}")
                a("s_mov_b32 exec_lo, 0")
                a(f"v_mov_b32 v{P+4}, 0x3f803f80")
                a(f"v_mov_b32 v{P+5}, 0x3f80")
                a("s_mov_b32 exec_lo, -1")
                a(f"buffer_store_dwordx4 {vr(P, 4)}, v{vT2}, {sr(SWS, 4)}, s{sT0} offen")
                a(f"buffer_store_dwordx2 {vr(P+4, 2)}, v{vT0}, {sr(SWS, 4)}, s{sT0} offen offset:2560")
            else:
                a("s_mov_b32 exec_lo, 0")
                a(f"v_mov_b32 v{ACC+8}, 1.0")
                a("s_mov_b32 exec_lo, -1")
                for j in range(6): a(f"v_cvt_pk_bf16_f32 v{P+j}, v{ACC+2*j}, v{ACC+2*j+1}")
                a(f"v_lshrrev_b32 v{vT0}, 3, v{vN}")
                a(f"v_mul_u32_u24 v{vT0}, 384, v{vT0}")
                a(f"v_and_b32 v{vT1}, 7, v{vN}")
                a(f"v_lshl_add_u32 v{vT0}, v{vT1}, 1, v{vT0}")
                a(f"v_lshl_add_u32 v{vT0}, v{vH}, 6, v{vT0}")
                for r in range(12):
                    op = "buffer_store_short" if r % 2 == 0 else "buffer_store_short_d16_hi"
                    a(f"{op} v{P+r//2}, v{vT0}, {sr(SWS, 4)}, s{sT0} offen offset:{1024 + (r//4)*128 + (r%4)*16}")
        a("s_endpgm")

    w_dma_setup(); tr_setup_generic("A"); body("GA", "A", False)
    a.label("K1_GB")
    x_dma_setup(); tr_setup_generic("B"); body("GB", "B", False)
    a.label("K1_KV")
    srd(a, SW, 40, 41, 640 * 40)
    srd(a, SW2, 42, 43, 640 * 40)
    a(f"v_bfe_u32 v{vT0}, v{vL}, 4, 1")
    a(f"v_and_b32 v{vT1}, 3, v{vL}")
    a(f"v_lshl_add_u32 v{vT0}, v{vT0}, 2, v{vT1}")
    a(f"v_min_u32 v{vT0}, 4, v{vT0}")
    a(f"v_mul_u32_u24 v{vROW}, 40, v{vROW}")
    a(f"v_lshl_add_u32 v{vTR}, v{vT0}, 3, v{vROW}")
    a(f"s_lshr_b32 s{sTI}, s{sW}, 2")
    a(f"s_cmp_ge_u32 s{sW}, 4")
    a("s_cbranch_scc1 K1_KB")
    a(f"v_lshlrev_b32 v{vD}, 4, v{vL}")
    a(f"s_mul_i32 s{sSO}, s{sW}, 640")
    a(f"s_mov_b32 s{sSTEP}, 2560")
    a(f"s_lshl_b32 s{sM0}, s{sW}, 10")
    body("KA", "A", True)
    a.label("K1_KB")
    a(f"v_add_u32 v{vTR}, 4096, v{vTR}")
    x_dma_setup()
    body("KB", "B", True)
    a.label("K1_END")
    a("s_endpgm")

def kdesc(name, nv, ns=96):
    return f""".amdhsa_kernel {name}
  .amdhsa_next_free_vgpr {nv}
  .amdhsa_next_free_sgpr {ns}
  .amdhsa_accum_offset {(nv+3)//4*4}
  .amdhsa_group_segment_fixed_size 0
  .amdhsa_kernarg_size 88
  .amdhsa_user_sgpr_count 2
  .amdhsa_user_sgpr_kernarg_segment_ptr 1
  .amdhsa_system_sgpr_workgroup_id_x 1
.end_amdhsa_kernel
"""

def build(with_k2=True):
    from gen_k2 import gen_k2, K2_LDS
    hdr = open("cdna_kernels/" + NAME + ".s.ref").read().split("; Override launch")[0]
    out = hdr
    out += f"; @launch kernel=k1_kernel grid=(256,1,1) block=(512,1,1) lds={K1_LDS}\n"
    if with_k2: out += f"; @launch kernel=k2_kernel grid=(256,1,1) block=(512,1,1) lds={K2_LDS}\n"
    out += '.amdgcn_target "amdgcn-amd-amdhsa--gfx950"\n.text\n'
    a = Asm()
    a.raw(".globl k1_kernel\n.p2align 8\n.type k1_kernel,@function")
    gen_k1(a)
    if with_k2:
        a.raw(".globl k2_kernel\n.p2align 8\n.type k2_kernel,@function")
        gen_k2(a)
    out += a.text()
    out += '.section .rodata,"a"\n.p2align 6\n' + kdesc("k1_kernel", 152)
    if with_k2: out += ".p2align 6\n" + kdesc("k2_kernel", 256)
    return out

if __name__ == "__main__":
    path = sys.argv[1] if len(sys.argv) > 1 else "cdna_kernels/" + NAME + ".s"
    open(path, "w").write(build(with_k2=("--k1" not in sys.argv)))
```

```python
from gen import *

RING_ST = 20992
L_OP = 4 * RING_ST
L_MREC = L_OP + 73728
L_BAD = L_MREC + 2048
K2_LDS = L_BAD + 64

SWS, SW2, SWO, SX, SOUT = 4, 8, 12, 16, 20
sT, sC, sW, sQ, sG, sMODE = 24, 25, 26, 27, 28, 29
sT0, sT1, sT2 = 30, 31, 32
sKV, sCNT, sOB = 33, 34, 35
sPm = 52
sPt = 56
sSO, sSTEP, sHO, sM0 = 60, 61, 62, 63

def final_stage(a, vL, base_item, X, R, vA, vG, load_x, do_rest):
    if load_x:
        if base_item: a(f"v_add_u32 v{vA}, {base_item}, v0")
        else: a(f"v_mov_b32 v{vA}, v0")
        a(f"v_mul_u32_u24 v{vG}, 3277, v{vA}")
        a(f"v_lshrrev_b32 v{vG}, 16, v{vG}")
        a(f"v_lshlrev_b32 v{vA}, 4, v{vA}")
        a(f"v_lshlrev_b32 v{X}, 4, v{vG}")
        a(f"v_mul_u32_u24 v{vG}, 960, v{vG}")
        a(f"v_add_u32 v{vG}, v{vG}, v{vA}")
        a(f"v_lshl_add_u32 v{vA}, v{vA}, 1, v{X}")
        a(f"buffer_load_dwordx4 {vr(X, 4)}, v{vG}, {sr(SX, 4)}, s{sOB} offen")
    if do_rest:
        for s in range(4):
            a(f"ds_read_b128 {vr(R+8*s, 4)}, v{vA} offset:{s*RING_ST}")
            a(f"ds_read_b128 {vr(R+8*s+4, 4)}, v{vA} offset:{s*RING_ST+16}")
        a("s_waitcnt vmcnt(0)")
        for j in range(4):
            a(f"v_lshlrev_b32 v{R+32+2*j}, 16, v{X+j}")
            a(f"v_and_b32 v{R+33+2*j}, 0xffff0000, v{X+j}")
        for s in range(4):
            a(f"s_waitcnt lgkmcnt({6-2*s})")
            for j in range(4):
                a(f"v_pk_add_f32 {vr(R+32+2*j, 2)}, {vr(R+32+2*j, 2)}, {vr(R+8*s+2*j, 2)}")
        for j in range(4): a(f"v_cvt_pk_bf16_f32 v{X+j}, v{R+32+2*j}, v{R+33+2*j}")
        a(f"buffer_store_dwordx4 {vr(X, 4)}, v{vG}, {sr(SOUT, 4)}, s{sOB} offen")

def gen_k2(a):
    a.label("k2_kernel")
    a("s_cmp_ge_u32 s2, 256")
    a("s_cbranch_scc1 K2_END")
    a.stamp(0)
    a("s_load_dwordx2 s[36:37], s[0:1], 0")
    a("s_load_dwordx2 s[38:39], s[0:1], 32")
    a("s_load_dwordx4 s[40:43], s[0:1], 56")
    a("s_load_dwordx2 s[44:45], s[0:1], 80")
    a("v_lshrrev_b32 v2, 6, v0")
    a("v_and_b32 v1, 63, v0")
    a(f"v_readfirstlane_b32 s{sW}, v2")
    a(f"s_and_b32 s{sT}, s2, 7")
    a(f"s_lshl_b32 s{sT}, s{sT}, 3")
    a(f"s_lshr_b32 s{sT0}, s2, 5")
    a(f"s_add_u32 s{sT}, s{sT}, s{sT0}")
    a(f"s_bfe_u32 s{sC}, s2, 0x20003")
    a(f"s_and_b32 s{sQ}, s{sW}, 3")
    a(f"s_mul_i32 s{sG}, s{sT}, {G_TSTRIDE}")
    a(f"s_mov_b32 s{sMODE}, 0")
    a(f"s_mul_i32 s{sOB}, s{sT}, {32*1280}")
    a(f"s_mul_i32 s{sT0}, s{sC}, 320")
    a(f"s_add_u32 s{sOB}, s{sOB}, s{sT0}")
    a("v_lshlrev_b32 v2, 4, v1")
    a("s_waitcnt lgkmcnt(0)")
    srd(a, SWS, 44, 45, WS_END)
    srd(a, SX, 36, 37, 2048 * 1280)
    srd(a, SOUT, 42, 43, 2048 * 1280)
    a(f"s_cmp_ge_u32 s{sW}, 4")
    a("s_cbranch_scc1 K2_FFN")
    gen_att(a)
    a.label("K2_FFN")
    gen_ffn(a)
    a.label("K2_END")
    a("s_endpgm")

def gen_att(a):
    vL, vKM, vV, vKT, vQT, vIDX = 1, 2, 3, 4, 5, 6
    vT0, vT1, vT2, vT3 = 8, 9, 10, 11
    vP = 12
    S = [16, 32, 48, 64]
    O = lambda i: 80 + 12 * i
    QM = lambda i: 180 + 4 * i
    QT = lambda i: 212 + 2 * i
    KM = [228, 242]; KT = [232, 246]; V0 = [234, 248]; V1 = [238, 252]
    def qk1(s, kb, q): a(f"v_mfma_f32_32x32x16_bf16 {vr(S[s], 16)}, {vr(KM[kb], 4)}, {vr(QM(q), 4)}, 0")
    def qk2(s, kb, q): a(f"v_mfma_f32_32x32x8_bf16 {vr(S[s], 16)}, {vr(KT[kb], 2)}, {vr(QT(q), 2)}, {vr(S[s], 16)}")
    def pv(u, s, vb, q): a(f"v_smfmac_f32_32x32x32_bf16 {vr(O(q), 16)}, {vr((V0, V1)[u][vb], 4)}, {vr(S[s]+8*u, 8)}, v{vIDX}")
    def ldkm(b, so, off=0): a(f"buffer_load_dwordx4 {vr(KM[b], 4)}, v{vKM}, {sr(SWS, 4)}, s{so} offen" + (f" offset:{off}" if off else ""))
    def ldkt(b, so): a(f"buffer_load_dwordx2 {vr(KT[b], 2)}, v{vKT}, {sr(SWS, 4)}, s{so} offen")
    def ldv(u, b, so): a(f"buffer_load_dwordx4 {vr((V0, V1)[u][b], 4)}, v{vV}, {sr(SWS, 4)}, s{so} offen" + (" offset:768" if u else ""))
    def rowmax(s, dst):
        b = S[s]
        a(f"v_max3_f32 v{dst}, v{b}, v{b+1}, v{b+2}")
        for j in range(3, 15, 2): a(f"v_max3_f32 v{dst}, v{dst}, v{b+j}, v{b+j+1}")
        a(f"v_max_f32 v{dst}, v{dst}, v{b+15}")
    def halfmax(r, t):
        a(f"v_mov_b32 v{t}, v{r}")
        a("s_nop 1")
        a(f"v_permlane32_swap_b32 v{t}, v{r}")
        a(f"v_max_f32 v{r}, v{r}, v{t}")

    a(f"v_and_b32 v{vT0}, 31, v{vL}")
    a(f"v_lshrrev_b32 v{vT1}, 5, v{vL}")
    a(f"v_mul_u32_u24 v{vV}, 384, v{vT1}")
    a(f"v_lshl_add_u32 v{vV}, v{vT0}, 4, v{vV}")
    a(f"v_add_u32 v{vV}, 1024, v{vV}")
    a(f"v_mov_b32 v{vT2}, {OOB:#x}")
    a(f"v_cmp_gt_u32 vcc, 24, v{vT0}")
    a(f"v_min_u32 v{vKT}, 32, v{vL}")
    a(f"v_lshlrev_b32 v{vKT}, 3, v{vKT}")
    a(f"v_cndmask_b32 v{vV}, v{vT2}, v{vV}, vcc")
    a(f"v_cmp_gt_u32 vcc, 32, v{vL}")
    a(f"v_add_u32 v{vKT}, 2560, v{vKT}")
    a(f"v_mov_b32 v{vIDX}, 0xdddddddd")
    a(f"v_cndmask_b32 v{vQT}, v{vT2}, v{vKM}, vcc")
    a(f"s_mul_i32 s{sT2}, s{sC}, 10240")
    a(f"s_add_u32 s{sT2}, s{sT2}, s{sG}")
    for j in range(4):
        a(f"s_add_u32 s{sT0}, s{sQ}, {j}")
        a(f"s_and_b32 s{sT0}, s{sT0}, 3")
        a(f"s_lshl_b32 s{sPm+j}, s{sT0}, 11")
        a(f"s_add_u32 s{sPm+j}, s{sPm+j}, s{sT2}")
        a(f"s_lshr_b32 s{sT1}, s{sT0}, 1")
        a(f"s_lshl_b32 s{sT1}, s{sT1}, 10")
        a(f"s_and_b32 s{sT0}, s{sT0}, 1")
        a(f"s_lshl_b32 s{sT0}, s{sT0}, 3")
        a(f"s_add_u32 s{sT1}, s{sT1}, s{sT0}")
        a(f"s_add_u32 s{sT1}, s{sT1}, s{sT2}")
        a(f"s_add_u32 s{sPt+j}, s{sT1}, 8192")
    a.label("K2_RESTART")
    a.stamp(1)
    a(f"s_mul_i32 s{sKV}, s{sQ}, {16*KV_REC}")
    a(f"s_add_u32 s{sKV}, s{sKV}, {WS_KV}")
    ldkm(0, sKV); ldkt(0, sKV)
    for i in range(8):
        a(f"buffer_load_dwordx4 {vr(QM(i), 4)}, v{vKM}, {sr(SWS, 4)}, s{sPm+i//2} offen" + (" offset:1024" if i & 1 else ""))
        a(f"buffer_load_dwordx2 {vr(QT(i), 2)}, v{vQT}, {sr(SWS, 4)}, s{sPt+i//2} offen" + (" offset:512" if i & 1 else ""))
    ldv(0, 0, sKV); ldv(1, 0, sKV)
    a(f"s_add_u32 s{sKV}, s{sKV}, {KV_REC}")
    ldkm(1, sKV); ldkt(1, sKV)
    for r in range(O(0), O(0) + 100): a(f"v_mov_b32 v{r}, 0")
    for r in range(S[3], S[3] + 16): a(f"v_mov_b32 v{r}, 0")
    for r in range(V0[1], V0[1] + 8): a(f"v_mov_b32 v{r}, 0")
    a(f"v_and_b32 v{vT0}, 31, v{vL}")
    for j in range(4):
        a(f"s_add_u32 s{sT0}, s{sQ}, {j}")
        a(f"s_and_b32 s{sT0}, s{sT0}, 3")
        a(f"s_lshl_b32 s{sT0}, s{sT0}, 9")
        a(f"s_add_u32 s{sT0}, s{sT0}, {L_MREC}")
        a(f"v_lshl_add_u32 v{vP+j}, v{vT0}, 3, s{sT0}")
    a(f"s_cmp_lg_u32 s{sMODE}, 0")
    a("s_cbranch_scc1 K2_TRUEMAX")
    a.c("stand-in for the row max: max over this wave's first 32 keys (checked after the loop)")
    a(f"v_mov_b32 v{vT0}, {L_BAD}")
    a(f"ds_write_b32 v{vT0}, v{O(0)}")
    a("s_waitcnt vmcnt(16)")
    a.stamp(2)
    qk1(0, 0, 0); qk2(0, 0, 0); qk1(1, 0, 1); qk2(1, 0, 1)
    a("s_nop 9")
    rowmax(0, S[2]); rowmax(1, S[2] + 1)
    halfmax(S[2], vT0); halfmax(S[2] + 1, vT0)
    a.label("K2_HAVEMAX")
    for e in range(2):
        a(f"v_sub_f32 v{S[2]+e}, 0, v{S[2]+e}")
        split3(a, S[2] + e, vT0, vT1, S[2] + 2 + 2 * e, S[2] + 3 + 2 * e)
        a(f"ds_write_b64 v{vP}, {vr(S[2]+2+2*e, 2)} offset:{256*e}")
    a("s_waitcnt vmcnt(4) lgkmcnt(0)")
    a.stamp(3)
    a("s_barrier")
    a.stamp(4)
    a("s_mov_b32 exec_lo, 0")
    for i in range(8): a(f"ds_read_b64 {vr(QT(i), 2)}, v{vP+i//2} offset:{256*(i&1)}")
    a("s_mov_b32 exec_lo, -1")
    a(f"s_mov_b32 s{sCNT}, 8")
    a("s_setprio 3")
    a("s_waitcnt lgkmcnt(0)")
    qk1(0, 0, 0); qk2(0, 0, 0)
    a("s_nop 11")
    a.raw(".p2align 6")
    a.label("K2_LOOP")
    PAT = (3, 4, 3, 3, 3)
    for kb in range(2):
        for q in range(8):
            sc = q & 3
            e = [0]
            def exps(n):
                for _ in range(n):
                    a(f"v_exp_f32 v{S[sc]+e[0]}, v{S[sc]+e[0]}"); e[0] += 1
            nq, nkb = (q + 1) & 7, (kb if q < 7 else kb ^ 1)
            pq, pvb = (q - 1) & 7, (kb if q > 0 else kb ^ 1)
            qk1((q + 1) & 3, nkb, nq); exps(PAT[0])
            qk2((q + 1) & 3, nkb, nq); exps(PAT[1])
            pv(0, (q - 1) & 3, pvb, pq); exps(PAT[2])
            pv(1, (q - 1) & 3, pvb, pq); exps(PAT[3])
            if q == 0: a("s_waitcnt vmcnt(2)"); ldv(0, kb ^ 1, sKV)
            elif q == 1: ldv(1, kb ^ 1, sKV)
            elif q == 2: a(f"s_add_u32 s{sKV}, s{sKV}, {KV_REC}")
            elif q == 3 and kb == 1: a(f"s_sub_u32 s{sCNT}, s{sCNT}, 1")
            elif q == 4 and kb == 1: a(f"s_cmp_lg_u32 s{sCNT}, 0")
            elif q == 5: a("s_waitcnt vmcnt(2)")
            elif q == 6: ldkm(kb, sKV)
            elif q == 7: ldkt(kb, sKV)
            else: a("s_nop 0")
            exps(PAT[4])
    a("s_cbranch_scc1 K2_LOOP")
    a("s_nop 0")
    pv(0, 3, 1, 7); pv(1, 3, 1, 7)
    a("s_setprio 0")
    a.stamp(5)
    for j in range(4):
        a(f"s_add_u32 s{sT0}, s{sQ}, {j}")
        a(f"s_and_b32 s{sT0}, s{sT0}, 3")
        a(f"s_mul_i32 s{sT0}, s{sT0}, 18432")
        a(f"s_add_u32 s{sT0}, s{sT0}, {L_OP}")
        a(f"v_add_u32 v{vP+j}, s{sT0}, v{vKM}")
    for i in range(2, 8):
        for j in range(3):
            a(f"ds_write_b128 v{vP+i//2}, {vr(O(i)+4*j, 4)} offset:{(i&1)*9216 + (i//2-1)*3072 + j*1024}")
    a("s_waitcnt vmcnt(0) lgkmcnt(0)")
    a.stamp(6)
    a("s_barrier")
    a.stamp(7)
    RB = [16, 180]
    for e in range(2):
        for s in range(3):
            for j in range(3):
                a(f"ds_read_b128 {vr(RB[e]+12*s+4*j, 4)}, v{vP} offset:{e*9216 + s*3072 + j*1024}")
    a(f"s_mul_i32 s{sT2}, s{sT}, 40960")
    a(f"s_add_u32 s{sT2}, s{sT2}, {WS_O}")
    a(f"s_sub_u32 s{sT2}, s{sT2}, s{sG}")
    a(f"s_add_u32 s{sT0}, s{sPm}, s{sT2}")
    a(f"s_add_u32 s{sT1}, s{sPt}, s{sT2}")
    a("s_mov_b64 s[46:47], 0")
    a(f"s_mov_b32 s48, {f32bits(2.0**100):#x}")
    for e in range(2):
        A = O(e); P = 128 + 8 * e
        for s in range(3):
            a(f"s_waitcnt lgkmcnt({min(15, 18 - 9*e - 3*s - 3)})")
            for j in range(6): a(f"v_pk_add_f32 {vr(A+2*j, 2)}, {vr(A+2*j, 2)}, {vr(RB[e]+12*s+2*j, 2)}")
        a(f"v_mov_b32 v{vT0}, v{A+8}")
        a(f"v_mov_b32 v{vT2}, v{A+8}")
        a(f"v_mul_f32 v{vT1}, 0, v{A}")
        a(f"v_mul_f32 v7, 0, v{A+8}")
        a(f"v_permlane32_swap_b32 v{vT0}, v{vT2}")
        for j in range(1, 8): a(f"v_fmac_f32 v{vT1}, 0, v{A+j}")
        for j in range(9, 12): a(f"v_fmac_f32 v7, 0, v{A+j}")
        a(f"v_cmp_nlt_f32 vcc, v{vT2}, s48")
        a(f"v_rcp_f32 v{vT2}, v{vT2}")
        a("s_or_b64 s[46:47], s[46:47], vcc")
        a(f"v_cmp_u_f32 vcc, v{vT1}, v{vT1}")
        a(f"v_mov_b32 v{vT3}, v{vT2}")
        a("s_or_b64 s[46:47], s[46:47], vcc")
        a("v_cmp_u_f32 vcc, v7, v7")
        for j in range(6): a(f"v_pk_mul_f32 {vr(A+2*j, 2)}, {vr(A+2*j, 2)}, {vr(vT2, 2)}")
        a("s_or_b32 s46, s46, vcc_lo")
        for j in range(6): a(f"v_cvt_pk_bf16_f32 v{P+j}, v{A+2*j}, v{A+2*j+1}")
        a(f"buffer_store_dwordx4 {vr(P, 4)}, v{vKM}, {sr(SWS, 4)}, s{sT0} offen offset:{1024*e} sc1")
        a(f"buffer_store_dwordx2 {vr(P+4, 2)}, v{vQT}, {sr(SWS, 4)}, s{sT1} offen offset:{512*e} sc1")
    a("s_cmp_eq_u64 s[46:47], 0")
    a("s_cbranch_scc1 K2_NOTBAD")
    a(f"v_mov_b32 v{vT0}, {L_BAD}")
    a(f"ds_write_b32 v{vT0}, v{vT0}")
    a.label("K2_NOTBAD")
    a.stamp(8)
    a("s_waitcnt vmcnt(0) lgkmcnt(0)")
    a.stamp(9)
    a("s_barrier")
    a(f"v_mov_b32 v{vT0}, {L_BAD}")
    a(f"ds_read_b32 v{vT0}, v{vT0}")
    a("s_waitcnt lgkmcnt(0)")
    a(f"v_readfirstlane_b32 s{sT0}, v{vT0}")
    a(f"s_cmp_lg_u32 s{sMODE}, 0")
    a(f"s_cselect_b32 s{sT0}, 0, s{sT0}")
    a(f"s_cmp_lg_u32 s{sT0}, 0")
    a(f"s_cselect_b32 s{sMODE}, 1, s{sMODE}")
    a("s_cbranch_scc1 K2_RESTART")
    a(f"s_cmp_lg_u32 s{sW}, 0")
    a("s_cbranch_scc1 K2_NOPUB")
    a(f"s_lshl_b32 s{sT0}, s{sT}, 2")
    a(f"s_add_u32 s{sT0}, s{sT0}, s{sC}")
    a(f"s_lshl_b32 s{sT0}, s{sT0}, 7")
    a(f"s_add_u32 s{sT0}, s{sT0}, {WS_FL}")
    a(f"v_mov_b32 v{vT0}, 0")
    a(f"v_mov_b32 v{vT1}, 1")
    a("s_mov_b64 exec, 1")
    a(f"buffer_store_dword v{vT1}, v{vT0}, {sr(SWS, 4)}, s{sT0} offen sc1")
    a("s_mov_b64 exec, -1")
    a.label("K2_NOPUB")
    final_stage(a, vL, 0, 16, 32, 20, 21, True, False)
    a(f"s_cmp_ge_u32 s{sW}, 2")
    a("s_cbranch_scc1 K2_F1")
    final_stage(a, vL, 512, 24, 80, 22, 23, True, False)
    a.label("K2_F1")
    a.stamp(10)
    a("s_barrier")
    a.stamp(11)
    final_stage(a, vL, 0, 16, 32, 20, 21, False, True)
    a(f"s_cmp_ge_u32 s{sW}, 2")
    a("s_cbranch_scc1 K2_F2")
    final_stage(a, vL, 512, 24, 80, 22, 23, False, True)
    a.label("K2_F2")
    a.end(1, sW, SWS, 13)
    a.label("K2_TRUEMAX")
    M = S[2]
    for i in range(8): a(f"v_mov_b32 v{M+i}, 0xff800000")
    a(f"s_sub_u32 s{sT2}, s{sKV}, {KV_REC}")
    a(f"s_mov_b32 s{sCNT}, 16")
    TK, TT = S[1], S[1] + 4
    a.label("K2_TM_LOOP")
    a(f"buffer_load_dwordx4 {vr(TK, 4)}, v{vKM}, {sr(SWS, 4)}, s{sT2} offen")
    a(f"buffer_load_dwordx2 {vr(TT, 2)}, v{vKT}, {sr(SWS, 4)}, s{sT2} offen")
    a("s_waitcnt vmcnt(0)")
    for i in range(8):
        a(f"v_mfma_f32_32x32x16_bf16 {vr(S[0], 16)}, {vr(TK, 4)}, {vr(QM(i), 4)}, 0")
        a(f"v_mfma_f32_32x32x8_bf16 {vr(S[0], 16)}, {vr(TT, 2)}, {vr(QT(i), 2)}, {vr(S[0], 16)}")
        a("s_nop 11")
        for j in range(0, 16, 2): a(f"v_max3_f32 v{M+i}, v{M+i}, v{S[0]+j}, v{S[0]+j+1}")
    a(f"s_add_u32 s{sT2}, s{sT2}, {KV_REC}")
    a(f"s_sub_u32 s{sCNT}, s{sCNT}, 1")
    a(f"s_cmp_lg_u32 s{sCNT}, 0")
    a("s_cbranch_scc1 K2_TM_LOOP")
    for i in range(8):
        halfmax(M + i, vT0)
        a(f"v_add_u32 v{vT1}, {L_OP - L_MREC}, v{vP+i//2}")
        a(f"ds_write_b32 v{vT1}, v{M+i} offset:{(i//2)*2048 + (i&1)*256}")
    a("s_waitcnt lgkmcnt(0)")
    a("s_barrier")
    a(f"v_add_u32 v{vT1}, {L_OP - L_MREC}, v{vP}")
    for e in range(2):
        for s in range(1, 4): a(f"ds_read_b32 v{S[0]+4*e+s}, v{vT1} offset:{s*2048 + e*256}")
    a("s_waitcnt lgkmcnt(0)")
    for e in range(2):
        a(f"v_max3_f32 v{M+e}, v{M+e}, v{S[0]+4*e+1}, v{S[0]+4*e+2}")
        a(f"v_max_f32 v{M+e}, v{M+e}, v{S[0]+4*e+3}")
    a("s_branch K2_HAVEMAX")

def gen_ffn(a):
    vL, vL16, vTR = 1, 2, 3
    vD, vD2 = 4, 9
    vT0, vT1 = 14, 15
    F = lambda t: 16 + 16 * t
    WO = lambda k: 96 + 20 * k
    HB = lambda u: 216 + 4 * u
    srd(a, SW2, 40, 41, 1728 * 1280)
    def dma_piece(p, slot, vd):
        a(f"s_add_u32 m0, s{sM0}, {slot*5120 + p*1024}")
        a("s_nop 0")
        a(f"buffer_load_dwordx4 v{vd+p}, {sr(SW2, 4)}, s{sSO} offen lds")
    def trr(dst, slot, t):
        a(f"ds_read_b64_tr_b16 {vr(dst+4*t, 2)}, v{vTR} offset:{slot*5120 + 64*t}")
        a(f"ds_read_b64_tr_b16 {vr(dst+4*t+2, 2)}, v{vTR} offset:{slot*5120 + 64*t + 2560}")
    def hload(u):
        a(f"buffer_load_dwordx4 {vr(HB(u), 4)}, v{vL16}, {sr(SWS, 4)}, s{sHO} offen")
        a(f"s_add_u32 s{sHO}, s{sHO}, 1024")
    for p in range(5):
        a(f"v_add_u32 v{vT0}, {64*p}, v{vL}")
        a(f"v_mul_u32_u24 v{vT1}, 3277, v{vT0}")
        a(f"v_lshrrev_b32 v{vT1}, 16, v{vT1}")
        a(f"v_lshlrev_b32 v{vT0}, 4, v{vT0}")
        a(f"v_mul_u32_u24 v{vD+p}, 960, v{vT1}")
        a(f"v_add_u32 v{vD+p}, v{vD+p}, v{vT0}")
        a(f"v_lshrrev_b32 v{vT1}, 2, v{vT1}")
        a(f"v_mul_u32_u24 v{vT1}, {16*1280}, v{vT1}")
        a(f"v_add_u32 v{vD2+p}, v{vD+p}, v{vT1}")
    a(f"s_mul_i32 s{sM0}, s{sQ}, {RING_ST}")
    a(f"s_mul_i32 s{sSO}, s{sQ}, {27*16*1280}")
    a(f"s_mul_i32 s{sT2}, s{sC}, 320")
    a(f"s_add_u32 s{sSO}, s{sSO}, s{sT2}")
    a(f"s_mov_b32 s{sSTEP}, {16*1280}")
    a(f"s_mul_i32 s{sHO}, s{sQ}, {27*1024}")
    a(f"s_add_u32 s{sHO}, s{sHO}, s{sG}")
    a(f"s_add_u32 s{sHO}, s{sHO}, {20*2048}")
    a.stamp(1)
    for j in range(4):
        for p in range(5): dma_piece(p, j, vD)
        a(f"s_add_u32 s{sSO}, s{sSO}, s{sSTEP}")
        hload(j)
    a(f"v_lshrrev_b32 v{vT0}, 5, v{vL}")
    a(f"v_bfe_u32 v{vT1}, v{vL}, 2, 2")
    a(f"v_lshl_add_u32 v{vT0}, v{vT0}, 2, v{vT1}")
    a(f"v_mul_u32_u24 v{vTR}, 320, v{vT0}")
    a(f"v_bfe_u32 v{vT0}, v{vL}, 4, 1")
    a(f"v_lshl_add_u32 v{vTR}, v{vT0}, 5, v{vTR}")
    a(f"v_and_b32 v{vT0}, 3, v{vL}")
    a(f"v_lshl_add_u32 v{vTR}, v{vT0}, 3, v{vTR}")
    a(f"v_add_u32 v{vTR}, s{sM0}, v{vTR}")
    for r in range(F(0), F(5)): a(f"v_mov_b32 v{r}, 0")
    a.stamp(2)
    a("s_waitcnt vmcnt(19)")
    a.stamp(3)
    for t in range(5): trr(WO(0), 0, t)
    a(f"s_mov_b32 s{sCNT}, 0")
    a("s_barrier")
    a.stamp(4)
    a.raw(".p2align 3")
    a.label("K2_FLOOP")
    for u in range(4):
        if u == 3:
            a(f"s_cmp_eq_u32 s{sCNT}, 6")
            a("s_cbranch_scc1 K2_FDONE")
            a(f"s_cmp_lg_u32 s{sCNT}, 5")
            a("s_cbranch_scc1 K2_FNS")
            srd(a, SW2, 38, 39, 640 * 1280)
            a(f"s_mul_i32 s{sSO}, s{sQ}, {160*1280}")
            a(f"s_add_u32 s{sSO}, s{sSO}, s{sT2}")
            a(f"s_mov_b32 s{sSTEP}, {20*1280}")
            a.label("K2_FNS")
        a("s_waitcnt vmcnt(13) lgkmcnt(0)")
        for t in range(5):
            if not opt("noffnm"): a(f"v_mfma_f32_32x32x16_bf16 {vr(F(t), 16)}, {vr(WO(0)+4*t, 4)}, {vr(HB(u), 4)}, {vr(F(t), 16)}")
            else: a("s_sleep 2")
            if not opt("noffnl"):
                trr(WO(0), (u + 1) & 3, t)
                dma_piece(t, u, vD)
        a(f"s_add_u32 s{sSO}, s{sSO}, s{sSTEP}")
        hload(u)
    a(f"s_add_u32 s{sCNT}, s{sCNT}, 1")
    a("s_branch K2_FLOOP")
    a.label("K2_FDONE")
    a.stamp(5)
    for k in range(1, 6):
        wait = {1: 13, 2: 12, 3: 11, 4: 10, 5: 10}[k]
        a(f"s_waitcnt vmcnt({wait}) lgkmcnt(0)")
        if k + 3 == 8:
            a(f"s_mul_i32 s{sSO}, s{sQ}, {160*1280}")
            a(f"s_add_u32 s{sSO}, s{sSO}, s{sT2}")
            a(f"s_add_u32 s{sSO}, s{sSO}, {16*1280}")
            a(f"s_mov_b32 s{sSTEP}, {80*1280}")
        for t in range(5):
            trr(WO(k), (k + 3) & 3, t)
            dma_piece(t, (k + 2) & 3, vD2 if k + 3 >= 8 else vD)
        a(f"s_add_u32 s{sSO}, s{sSO}, s{sSTEP}")
    a("s_waitcnt lgkmcnt(0)")
    for t in range(5): dma_piece(t, (6 + 2) & 3, vD2)
    final_stage(a, vL, 0, 4, 96, 8, 9, True, False)
    a(f"v_and_b32 v{vT0}, 31, v{vL}")
    a(f"v_mul_u32_u24 v{vT0}, 656, v{vT0}")
    a(f"v_lshrrev_b32 v{vT1}, 5, v{vL}")
    a(f"v_lshl_add_u32 v{vT0}, v{vT1}, 4, v{vT0}")
    a(f"v_add_u32 v10, s{sM0}, v{vT0}")
    a(f"s_lshl_b32 s{sT0}, s{sT}, 2")
    a(f"s_add_u32 s{sT0}, s{sT0}, s{sQ}")
    a(f"s_mul_i32 s{sHO}, s{sT0}, 10240")
    a(f"s_add_u32 s{sHO}, s{sHO}, {WS_O}")
    a(f"s_lshl_b32 s{sSO}, s{sT0}, 7")
    a(f"s_add_u32 s{sSO}, s{sSO}, {WS_FL}")
    a.stamp(6)
    a("s_barrier")
    a.stamp(7)
    a.label("K2_FB3")
    a("s_barrier")
    a(f"v_mov_b32 v{vT0}, {L_BAD}")
    a(f"ds_read_b32 v{vT0}, v{vT0}")
    a("s_waitcnt lgkmcnt(0)")
    a(f"v_readfirstlane_b32 s{sT0}, v{vT0}")
    a(f"s_cmp_lg_u32 s{sMODE}, 0")
    a(f"s_cselect_b32 s{sT0}, 0, s{sT0}")
    a(f"s_cmp_eq_u32 s{sT0}, 0")
    a("s_cbranch_scc1 K2_POLL")
    a(f"s_mov_b32 s{sMODE}, 1")
    a("s_barrier")
    a("s_barrier")
    a("s_barrier")
    a("s_branch K2_FB3")
    a.label("K2_POLL")
    a.stamp(8)
    a(f"v_mov_b32 v{vT1}, 0")
    a(f"s_mov_b32 s{sCNT}, 0x100000")
    a.label("K2_POLL1")
    a(f"buffer_load_dword v{vT0}, v{vT1}, {sr(SWS, 4)}, s{sSO} offen sc1")
    a("s_waitcnt vmcnt(0)")
    a(f"v_readfirstlane_b32 s{sT0}, v{vT0}")
    a(f"s_cmp_eq_u32 s{sT0}, 1")
    a("s_cbranch_scc1 K2_GOT")
    a("s_sleep 1")
    a(f"s_sub_u32 s{sCNT}, s{sCNT}, 1")
    a(f"s_cmp_lg_u32 s{sCNT}, 0")
    a("s_cbranch_scc1 K2_POLL1")
    a.label("K2_GOT")
    a.stamp(9)
    a(f"s_add_u32 s{sT0}, s{sHO}, 4096")
    a(f"s_add_u32 s{sT1}, s{sHO}, 8192")
    for k in range(10):
        so = (sHO, sT0, sT1)[k // 4]
        a(f"buffer_load_dwordx4 {vr(HB(k), 4)}, v{vL16}, {sr(SWS, 4)}, s{so} offen offset:{(k%4)*1024} sc1")
    for k in range(10):
        w = WO(k) if k < 6 else WO(k - 6)
        if k >= 6: a(f"s_waitcnt vmcnt({9-k}) lgkmcnt({min(15, 10*(9-k))})")
        else: a(f"s_waitcnt vmcnt({9-k})")
        for t in range(5):
            a(f"v_mfma_f32_32x32x16_bf16 {vr(F(t), 16)}, {vr(w+4*t, 4)}, {vr(HB(k), 4)}, {vr(F(t), 16)}")
            if k < 4: trr(WO(k), (k + 6 + 3) & 3, t)
    a("s_nop 7")
    a.stamp(10)
    for t in range(5):
        for g in range(4):
            a(f"ds_write_b128 v10, {vr(F(t)+4*g, 4)} offset:{128*t + 32*g}")
    a("s_waitcnt lgkmcnt(0)")
    a("s_barrier")
    a.stamp(11)
    final_stage(a, vL, 0, 4, 96, 8, 9, False, True)
    a.end(1, sW, SWS, 13)
```

```python
import sys, struct, math

NAME = "parallel_sum__grouped_kv_mqa__dense_activation_relu__prompt"
G_TSTRIDE = 75 * 2048
WS_G = 0
WS_KV = 64 * G_TSTRIDE
KV_REC = 3072
WS_O = WS_KV + 66 * KV_REC
WS_O = (WS_O + 4095) // 4096 * 4096
WS_FL = WS_O + 64 * 40 * 1024
WS_PROF = WS_FL + 256 * 128
PROFILE = "--prof" in sys.argv
WS_END = WS_PROF + (2 * 256 * 8 * 64 if PROFILE else 0)
OOB = 0x80000000
def opt(name): return ("--" + name) in sys.argv
QSCALE = math.log2(math.e) / math.sqrt(20.0)

def f32bits(x): return struct.unpack("<I", struct.pack("<f", x))[0]

class Asm:
    def __init__(self): self.lines = []; self.c0 = 3
    def __call__(self, s): self.lines.append("    " + s)
    def label(self, s): self.lines.append(s + ":")
    def raw(self, s): self.lines.append(s)
    def c(self, s): self.lines.append("    ; " + s)
    def stamp(self, i):
        if PROFILE:
            self(f"s_memrealtime s[{64+2*i}:{65+2*i}]")
            if i == self.c0: self("s_memtime s[92:93]")
            if i == self.c0 + 1: self("s_memtime s[94:95]")
    def end(self, kid, sw, sws, n):
        if PROFILE:
            self("s_waitcnt vmcnt(0)")
            self.stamp(n - 1)
            self("s_waitcnt lgkmcnt(0)")
            self(f"s_lshl_b32 s3, s2, 3")
            self(f"s_add_u32 s3, s3, s{sw}")
            self(f"s_lshl_b32 s3, s3, 6")
            self(f"s_add_u32 s3, s3, {WS_PROF + kid*256*8*64}")
            self("s_mov_b64 exec, 1")
            self("v_mov_b32 v1, 0")
            for i in list(range(n)) + [14, 15]:
                self(f"v_mov_b32 v2, s{64+2*i}")
                self(f"buffer_store_dword v2, v1, s[{sws}:{sws+3}], s3 offen offset:{4*i}")
            if opt("dbgprof"):
                self("s_load_dwordx2 s[60:61], s[0:1], 72")
                self("s_waitcnt lgkmcnt(0)")
                if kid:
                    self("s_sub_u32 s60, s60, 512")
                    self("s_subb_u32 s61, s61, 0")
                self("s_mov_b32 s62, 256")
                self("s_mov_b32 s63, 0x00020000")
                for j, (i, inv) in enumerate(((0, 1), (0, 0), (1, 0), (self.c0, 1), (self.c0, 0), (self.c0 + 1, 1), (self.c0 + 1, 0), (n - 1, 0))):
                    self(f"v_not_b32 v2, s{64+2*i}" if inv else f"v_mov_b32 v2, s{64+2*i}")
                    self(f"buffer_atomic_umax v2, v1, s[60:63], 0 offen offset:{32*kid+4*j}")
        self("s_endpgm")
    def text(self): return "\n".join(self.lines) + "\n"

def vr(b, n=1): return f"v{b}" if n == 1 else f"v[{b}:{b+n-1}]"
def sr(b, n=1): return f"s{b}" if n == 1 else f"s[{b}:{b+n-1}]"

def srd(a, d, lo, hi, size):
    a(f"s_mov_b32 s{d}, s{lo}")
    a(f"s_mov_b32 s{d+1}, s{hi}")
    a(f"s_mov_b32 s{d+2}, {size}")
    a(f"s_mov_b32 s{d+3}, 0x00020000")

def csel(a, d, t, f):
    a(f"s_mov_b32 s{d}, {f}")
    a(f"s_cmov_b32 s{d}, {t}")

def split3(a, src, t0, t1, d0, d1):
    a(f"v_and_b32 v{t0}, 0xffff0000, v{src}")
    a(f"v_sub_f32 v{t1}, v{src}, v{t0}")
    a(f"v_lshrrev_b32 v{d0}, 16, v{src}")
    a(f"v_and_b32 v{t0}, 0xffff0000, v{t1}")
    a(f"v_or_b32 v{d0}, v{d0}, v{t0}")
    a(f"v_sub_f32 v{t1}, v{t1}, v{t0}")
    a(f"v_lshrrev_b32 v{d1}, 16, v{t1}")

K1_SLOT = 36864
K1_XOFF = 20480
K1_CS = 4 * K1_SLOT
K1_ST = K1_CS + 2560
K1_LDS = K1_ST + 1024

def gen_k1(a):
    SX, SW, SW2, SWS = 4, 8, 12, 16
    sRB, sCG, sW, sTT, sWST, sSO, sSTEP, sM0, sC, sDEL, sONE, sLO, sQS = range(20, 33)
    sT0, sT1, sT2, sT3 = 33, 34, 35, 48
    sTI = 50
    sOUT = 53
    vL, vN, vH, vT0, vT1, vT2 = 1, 2, 3, 4, 5, 6
    vX = 8
    vTR = 12
    vD = 16
    vSUM, vSQ, vCS = 21, 22, 23
    vROW = 24
    FB = [28, 32]
    FA = [36, 48]
    ACC = 64
    a.label("k1_kernel")
    a("s_cmp_ge_u32 s2, 256")
    a("s_cbranch_scc1 K1_END")
    a.stamp(0)
    a("s_load_dwordx8 s[36:43], s[0:1], 0")
    a("s_load_dwordx2 s[44:45], s[0:1], 48")
    a("s_load_dwordx2 s[46:47], s[0:1], 80")
    a(f"v_lshrrev_b32 v{vT0}, 6, v0")
    a(f"v_and_b32 v{vL}, 63, v0")
    a(f"v_readfirstlane_b32 s{sW}, v{vT0}")
    a(f"s_bfe_u32 s{sRB}, s2, 0x20001")
    a(f"s_lshl_b32 s{sRB}, s{sRB}, 2")
    a(f"s_bfe_u32 s{sT0}, s2, 0x20003")
    a(f"s_add_u32 s{sRB}, s{sRB}, s{sT0}")
    a(f"s_and_b32 s{sCG}, s2, 1")
    a(f"s_lshl_b32 s{sCG}, s{sCG}, 3")
    a(f"s_lshr_b32 s{sT0}, s2, 5")
    a(f"s_add_u32 s{sCG}, s{sCG}, s{sT0}")
    a(f"s_and_b32 s{sTT}, s{sW}, 3")
    a(f"s_mov_b32 s{sONE}, 0x3f803f80")
    a(f"v_and_b32 v{vN}, 31, v{vL}")
    a(f"v_lshrrev_b32 v{vH}, 5, v{vL}")
    a(f"v_bfe_u32 v{vT0}, v{vL}, 1, 3")
    a(f"v_xor_b32 v{vT0}, v{vT0}, v{vH}")
    a(f"s_lshl_b32 s{sT0}, s{sTT}, 12")
    a(f"s_add_u32 s{sT0}, s{sT0}, {K1_XOFF}")
    a(f"v_lshl_add_u32 v{vT1}, v{vN}, 7, s{sT0}")
    for s in range(4):
        a(f"v_xor_b32 v{vT2}, {2*s}, v{vT0}")
        a(f"v_lshl_add_u32 v{vX+s}, v{vT2}, 4, v{vT1}")
    a(f"v_bfe_u32 v{vT0}, v{vL}, 2, 2")
    a(f"v_lshl_add_u32 v{vROW}, v{vH}, 3, v{vT0}")
    a(f"v_mov_b32 v{vSUM}, 0")
    a(f"v_mov_b32 v{vSQ}, 0")
    a(f"v_mov_b32 v{vCS}, 0")
    a(f"s_lshl_b32 s{sT0}, s{sRB}, 2")
    a(f"s_add_u32 s{sT3}, s{sT0}, s{sTT}")
    a(f"s_mul_i32 s{sOUT}, s{sT3}, {G_TSTRIDE}")
    a(f"s_mul_i32 s{sT0}, s{sCG}, 10240")
    a(f"s_add_u32 s{sOUT}, s{sOUT}, s{sT0}")
    a(f"s_cmp_lt_u32 s{sCG}, 4")
    csel(a, sWST, 1280, 3456)
    a(f"s_cselect_b32 s{sLO}, 0x80008000, 0")
    a(f"s_cselect_b32 s{sQS}, {f32bits(QSCALE):#x}, 1.0")
    a("s_waitcnt lgkmcnt(0)")
    a(f"s_cselect_b32 s{SW}, s38, s44")
    a(f"s_cselect_b32 s{SW+1}, s39, s45")
    csel(a, SW+2, 640*640*2, 640*1728*2)
    a(f"s_mov_b32 s{SW+3}, 0x00020000")
    srd(a, SX, 36, 37, 2048 * 640 * 2)
    srd(a, SWS, 46, 47, WS_END)
    a(f"s_cmp_eq_u32 s{sCG}, 15")
    a("s_cbranch_scc1 K1_KV")
    a(f"s_cmp_ge_u32 s{sW}, 4")
    a("s_cbranch_scc1 K1_GB")

    def x_dma_setup():
        a(f"s_lshl_b32 s{sT0}, s{sT3}, 5")
        a(f"v_lshrrev_b32 v{vT0}, 3, v{vL}")
        a(f"v_add_u32 v{vT0}, s{sT0}, v{vT0}")
        a(f"v_mul_u32_u24 v{vT0}, 1280, v{vT0}")
        a(f"v_lshrrev_b32 v{vT1}, 4, v{vL}")
        a(f"v_and_b32 v{vT2}, 7, v{vL}")
        a(f"v_xor_b32 v{vT1}, v{vT1}, v{vT2}")
        a(f"v_lshl_add_u32 v{vD}, v{vT1}, 4, v{vT0}")
        a(f"v_xor_b32 v{vT1}, 4, v{vT1}")
        a(f"v_lshl_add_u32 v{vD+1}, v{vT1}, 4, v{vT0}")
        a(f"v_add_u32 v{vD+1}, {8*1280}, v{vD+1}")
        a(f"v_add_u32 v{vD+2}, {16*1280}, v{vD}")
        a(f"v_add_u32 v{vD+3}, {16*1280}, v{vD+1}")
        a(f"s_mov_b32 s{sSO}, 0")
        a(f"s_mov_b32 s{sSTEP}, 128")
        a(f"s_lshl_b32 s{sM0}, s{sTT}, 12")
        a(f"s_add_u32 s{sM0}, s{sM0}, {K1_XOFF}")

    def w_dma_setup():
        a(f"s_sub_u32 s{sT0}, s{sCG}, 4")
        a(f"s_cmp_lt_u32 s{sCG}, 4")
        a(f"s_cselect_b32 s{sT0}, s{sCG}, s{sT0}")
        a(f"s_mul_i32 s{sT0}, s{sT0}, 320")
        a(f"s_lshl_b32 s{sT1}, s{sW}, 4")
        a(f"s_mul_i32 s{sT1}, s{sT1}, s{sWST}")
        a(f"s_add_u32 s{sSO}, s{sT0}, s{sT1}")
        a(f"s_sub_u32 s{sT2}, s{sWST}, 320")
        for p in range(5):
            a(f"v_add_u32 v{vT0}, {64*p}, v{vL}")
            a(f"v_mul_u32_u24 v{vT1}, 3277, v{vT0}")
            a(f"v_lshrrev_b32 v{vT1}, 16, v{vT1}")
            a(f"v_lshlrev_b32 v{vT0}, 4, v{vT0}")
            a(f"v_mad_u32_u24 v{vD+p}, v{vT1}, s{sT2}, v{vT0}")
        a(f"s_lshl_b32 s{sSTEP}, s{sWST}, 6")
        a(f"s_mul_i32 s{sM0}, s{sW}, 5120")

    def tr_setup_generic(role):
        nt = 3 if role == "A" else 2
        for i in range(nt):
            a(f"s_add_u32 s{sTI+i}, s{sTT}, {i}")
            if role == "A":
                a(f"s_sub_u32 s{sT0}, s{sTI+i}, 3")
                a(f"s_cmp_ge_u32 s{sTI+i}, 3")
                a(f"s_cselect_b32 s{sTI+i}, s{sT0}, s{sTI+i}")
            else:
                a(f"s_and_b32 s{sTI+i}, s{sTI+i}, 1")
                a(f"s_add_u32 s{sTI+i}, s{sTI+i}, 3")
        a(f"v_bfe_u32 v{vT0}, v{vL}, 4, 1")
        a(f"v_and_b32 v{vT1}, 3, v{vL}")
        a(f"v_mul_u32_u24 v{vROW}, 320, v{vROW}")
        for i in range(nt):
            a(f"s_cmp_lt_u32 s{sCG}, 4")
            a(f"s_cselect_b32 s{sT0}, 80, 64")
            a(f"s_cselect_b32 s{sT1}, 40, 32")
            a(f"s_mul_i32 s{sT0}, s{sT0}, s{sTI+i}")
            a(f"s_mov_b32 s{sT2}, 8")
            if role == "B":
                a(f"s_cmp_eq_u32 s{sT0}, 320")
                a(f"s_cselect_b32 s{sT0}, 32, s{sT0}")
                a(f"s_cselect_b32 s{sT1}, 160, s{sT1}")
                a(f"s_cselect_b32 s{sT2}, 40, s{sT2}")
            a(f"v_mad_u32_u24 v{vTR+i}, v{vT0}, s{sT1}, v{vROW}")
            a(f"v_mad_u32_u24 v{vTR+i}, v{vT1}, s{sT2}, v{vTR+i}")
            a(f"v_add_u32 v{vTR+i}, s{sT0}, v{vTR+i}")

    def body(tag, role, kv):
        nt = 1 if kv else (3 if role == "A" else 2)
        sstr, rstr = (1024, 40) if kv else (5120, 320)
        if role == "B": ndma = 4
        else: ndma = 2 if kv else 5
        def dma():
            for p in range(ndma):
                if role == "A" and kv:
                    a(f"s_add_u32 m0, s{sM0}, {4096*p}")
                    a("s_nop 0")
                    a(f"buffer_load_dwordx4 v{vD}, {sr(SW if p == 0 else SW2, 4)}, s{sSO} offen lds")
                else:
                    a(f"s_add_u32 m0, s{sM0}, {1024*p}")
                    a("s_nop 0")
                    a(f"buffer_load_dwordx4 v{vD+p}, {sr(SX if role == 'B' else SW, 4)}, s{sSO} offen lds")
            a(f"s_add_u32 s{sSO}, s{sSO}, s{sSTEP}")
        def reads(s, p):
            a(f"ds_read_b128 {vr(FB[p], 4)}, v{vX+s}")
            for i in range(nt):
                a(f"ds_read_b64_tr_b16 {vr(FA[p]+4*i, 2)}, v{vTR+i} offset:{s*sstr}")
                a(f"ds_read_b64_tr_b16 {vr(FA[p]+4*i+2, 2)}, v{vTR+i} offset:{s*sstr+4*rstr}")
        def mfmas(p):
            dots = [f"v_dot2c_f32_bf16 v{vCS}, s{sONE}, v{FA[p]+j}" for j in range(4)]
            if role == "B":
                d2 = []
                for j in range(4):
                    d2 += [f"v_dot2c_f32_bf16 v{vSUM}, s{sONE}, v{FB[p]+j}", f"v_dot2c_f32_bf16 v{vSQ}, v{FB[p]+j}, v{FB[p]+j}", dots[j]]
                dots = d2
            per = (len(dots) + nt - 1) // nt
            per += per & 1
            for i in range(nt):
                a(f"v_mfma_f32_32x32x16_bf16 {vr(ACC+16*i, 16)}, {vr(FA[p]+4*i, 4)}, {vr(FB[p], 4)}, {vr(ACC+16*i, 16)}")
                if not opt("nodot"):
                    for d in dots[i*per:(i+1)*per]: a(d)
        nrd = 1 + 2 * nt
        a.stamp(1)
        for c in range(4):
            dma()
            a(f"s_add_u32 s{sM0}, s{sM0}, {K1_SLOT}")
        a(f"s_sub_u32 s{sM0}, s{sM0}, {4*K1_SLOT}")
        for i in range(16 * nt): a(f"v_mov_b32 v{ACC+i}, 0")
        if role == "A":
            a(f"s_lshl_b32 s{sT0}, s2, 7")
            a(f"s_add_u32 s{sT0}, s{sT0}, {WS_FL}")
            a(f"v_mov_b32 v{vT0}, 0")
            a(f"buffer_store_dword v{vT0}, v{vT0}, {sr(SWS, 4)}, s{sT0} offen")
            a(f"s_waitcnt vmcnt({3*ndma+1})")
        else:
            a(f"s_waitcnt vmcnt({3*ndma})")
        a.stamp(2)
        a("s_barrier")
        a.stamp(3)
        reads(0, 0)
        a(f"s_mov_b32 s{sC}, 0")
        a.raw(".p2align 3")
        a.label(f"K1_L{tag}")
        for s in range(3):
            reads(s + 1, (s + 1) & 1)
            a(f"s_waitcnt lgkmcnt({nrd})")
            mfmas(s & 1)
        a(f"s_and_b32 s{sT0}, s{sC}, 3")
        a(f"s_cmp_eq_u32 s{sT0}, 3")
        csel(a, sDEL, -3*K1_SLOT, K1_SLOT)
        a(f"s_cmp_ge_u32 s{sC}, 7")
        a(f"s_cbranch_scc1 K1_W0{tag}")
        a(f"s_waitcnt vmcnt({2*ndma}) lgkmcnt(0)")
        a(f"s_branch K1_W1{tag}")
        a.label(f"K1_W0{tag}")
        a(f"s_waitcnt vmcnt(0) lgkmcnt(0)")
        a.label(f"K1_W1{tag}")
        for s in range(4): a(f"v_add_u32 v{vX+s}, s{sDEL}, v{vX+s}")
        for i in range(nt): a(f"v_add_u32 v{vTR+i}, s{sDEL}, v{vTR+i}")
        a("s_barrier")
        reads(0, 0)
        a(f"s_cmp_ge_u32 s{sC}, 6")
        a(f"s_cbranch_scc1 K1_ND{tag}")
        dma()
        a(f"s_add_u32 s{sM0}, s{sM0}, s{sDEL}")
        a.label(f"K1_ND{tag}")
        mfmas(1)
        a(f"s_add_u32 s{sC}, s{sC}, 1")
        a(f"s_cmp_lt_u32 s{sC}, 10")
        a(f"s_cbranch_scc1 K1_L{tag}")
        a.stamp(4)
        a("s_waitcnt lgkmcnt(0)")
        R0 = FB[0]
        a("s_nop 2")
        split3(a, vCS, vT0, vT1, R0, R0 + 1)
        a(f"s_lshl_b32 s{sT0}, s{sTI}, 9")
        a(f"s_add_u32 s{sT0}, s{sT0}, {K1_CS}")
        a(f"v_lshl_add_u32 v{vT2}, v{vL}, 3, s{sT0}")
        a(f"ds_write_b64 v{vT2}, {vr(R0, 2)}")
        a(f"s_lshl_b32 s{sT0}, s{sTT}, 8")
        a(f"s_add_u32 s{sT0}, s{sT0}, {K1_ST}")
        a(f"v_lshl_add_u32 v{vX}, v{vN}, 3, s{sT0}")
        if role == "B":
            S = R0 + 4
            a(f"v_mov_b32 v{S}, v{vSUM}")
            a(f"v_mov_b32 v{S+1}, v{vSQ}")
            a("s_nop 1")
            a(f"v_permlane32_swap_b32 v{S}, v{vSUM}")
            a(f"v_permlane32_swap_b32 v{S+1}, v{vSQ}")
            a(f"v_add_f32 v{vSUM}, v{vSUM}, v{S}")
            a(f"v_add_f32 v{vSQ}, v{vSQ}, v{S+1}")
            a(f"v_mul_f32 v{vSUM}, {f32bits(1.0/640):#x}, v{vSUM}")
            a(f"v_mul_f32 v{vSQ}, {f32bits(1.0/640):#x}, v{vSQ}")
            a(f"v_fma_f32 v{vSQ}, -v{vSUM}, v{vSUM}, v{vSQ}")
            a(f"v_max_f32 v{vSQ}, 0, v{vSQ}")
            a(f"v_cvt_pk_bf16_f32 v{S}, -v{vSUM}, -v{vSUM}")
            a(f"v_cvt_pk_bf16_f32 v{vSQ}, v{vSQ}, v{vSQ}")
            a(f"v_and_b32 v{vSQ}, 0xffff0000, v{vSQ}")
            a(f"v_add_f32 v{vSQ}, {f32bits(1e-5):#x}, v{vSQ}")
            a(f"v_cvt_pk_bf16_f32 v{vSQ}, v{vSQ}, v{vSQ}")
            a(f"v_and_b32 v{vSQ}, 0xffff0000, v{vSQ}")
            a(f"v_sqrt_f32 v{vSQ}, v{vSQ}")
            a("s_nop 0")
            a(f"v_cvt_pk_bf16_f32 v{vSQ}, v{vSQ}, v{vSQ}")
            a(f"v_and_b32 v{vSQ}, 0xffff0000, v{vSQ}")
            a(f"v_rcp_f32 v{vSQ}, v{vSQ}")
            a("s_nop 0")
            a(f"v_mul_f32 v{S+1}, s{sQS}, v{vSQ}")
            a(f"ds_write_b64 v{vX}, {vr(S, 2)}")
        for i in range(nt):
            a(f"s_lshl_b32 s{sT0}, s{sTI+i}, 9")
            a(f"s_add_u32 s{sT0}, s{sT0}, {K1_CS}")
            a(f"v_lshl_add_u32 v{vTR+i}, v{vL}, 3, s{sT0}")
        a("s_waitcnt lgkmcnt(0)")
        a("s_barrier")
        ST = R0 + 8
        NM = R0 + 10
        CSR = R0 + 12
        a(f"ds_read_b64 {vr(ST, 2)}, v{vX}")
        for i in range(nt): a(f"ds_read_b64 {vr(CSR+2*i, 2)}, v{vTR+i}")
        a(f"v_lshlrev_b32 v{vT2}, 4, v{vL}")
        a("s_waitcnt lgkmcnt(0)")
        a(f"v_mov_b32 v{NM}, v{ST}")
        a(f"v_mov_b32 v{NM+1}, v{ST}")
        a(f"v_mov_b32 v{ST}, v{ST+1}")
        a("s_nop 0")
        for i in range(nt):
            a(f"v_mfma_f32_32x32x8_bf16 {vr(ACC+16*i, 16)}, {vr(CSR+2*i, 2)}, {vr(NM, 2)}, {vr(ACC+16*i, 16)}")
        a("s_nop 11")
        a.stamp(5)
        if not kv:
            for i in range(nt):
                P = 128 + 8 * i
                for j in range(8): a(f"v_pk_mul_f32 {vr(ACC+16*i+2*j, 2)}, {vr(ACC+16*i+2*j, 2)}, {vr(ST, 2)}")
                for j in range(8): a(f"v_cvt_pk_bf16_f32 v{P+j}, v{ACC+16*i+2*j}, v{ACC+16*i+2*j+1}")
                for j in range(8): a(f"v_pk_max_i16 v{P+j}, v{P+j}, s{sLO}")
                a(f"s_lshl_b32 s{sT0}, s{sTI+i}, 11")
                a(f"s_add_u32 s{sT0}, s{sT0}, s{sOUT}")
                a(f"buffer_store_dwordx4 {vr(P, 4)}, v{vT2}, {sr(SWS, 4)}, s{sT0} offen")
                a(f"buffer_store_dwordx4 {vr(P+4, 4)}, v{vT2}, {sr(SWS, 4)}, s{sT0} offen offset:1024")
        else:
            P = 128
            a(f"s_mul_i32 s{sT0}, s{sT3}, {KV_REC}")
            a(f"s_add_u32 s{sT0}, s{sT0}, {WS_KV}")
            for j in range(6): a(f"v_pk_mul_f32 {vr(ACC+2*j, 2)}, {vr(ACC+2*j, 2)}, {vr(ST, 2)}")
            if role == "A":
                for j in range(6): a(f"v_cvt_pk_bf16_f32 v{P+j}, v{ACC+2*j}, v{ACC+2*j+1}")
                a(f"v_min_u32 v{vT0}, 32, v{vL}")
                a(f"v_lshlrev_b32 v{vT0}, 3, v{vT0}")
                a("s_mov_b32 exec_lo, 0")
                a(f"v_mov_b32 v{P+4}, 0x3f803f80")
                a(f"v_mov_b32 v{P+5}, 0x3f80")
                a("s_mov_b32 exec_lo, -1")
                a(f"buffer_store_dwordx4 {vr(P, 4)}, v{vT2}, {sr(SWS, 4)}, s{sT0} offen")
                a(f"buffer_store_dwordx2 {vr(P+4, 2)}, v{vT0}, {sr(SWS, 4)}, s{sT0} offen offset:2560")
            else:
                a("s_mov_b32 exec_lo, 0")
                a(f"v_mov_b32 v{ACC+8}, 1.0")
                a("s_mov_b32 exec_lo, -1")
                for j in range(6): a(f"v_cvt_pk_bf16_f32 v{P+j}, v{ACC+2*j}, v{ACC+2*j+1}")
                a(f"v_lshrrev_b32 v{vT0}, 3, v{vN}")
                a(f"v_mul_u32_u24 v{vT0}, 384, v{vT0}")
                a(f"v_and_b32 v{vT1}, 7, v{vN}")
                a(f"v_lshl_add_u32 v{vT0}, v{vT1}, 1, v{vT0}")
                a(f"v_lshl_add_u32 v{vT0}, v{vH}, 6, v{vT0}")
                for r in range(12):
                    op = "buffer_store_short" if r % 2 == 0 else "buffer_store_short_d16_hi"
                    a(f"{op} v{P+r//2}, v{vT0}, {sr(SWS, 4)}, s{sT0} offen offset:{1024 + (r//4)*128 + (r%4)*16}")
        a.stamp(6)
        a.end(0, sW, SWS, 8)

    w_dma_setup(); tr_setup_generic("A"); body("GA", "A", False)
    a.label("K1_GB")
    x_dma_setup(); tr_setup_generic("B"); body("GB", "B", False)
    a.label("K1_KV")
    srd(a, SW, 40, 41, 640 * 40)
    srd(a, SW2, 42, 43, 640 * 40)
    a(f"v_bfe_u32 v{vT0}, v{vL}, 4, 1")
    a(f"v_and_b32 v{vT1}, 3, v{vL}")
    a(f"v_lshl_add_u32 v{vT0}, v{vT0}, 2, v{vT1}")
    a(f"v_min_u32 v{vT0}, 4, v{vT0}")
    a(f"v_mul_u32_u24 v{vROW}, 40, v{vROW}")
    a(f"v_lshl_add_u32 v{vTR}, v{vT0}, 3, v{vROW}")
    a(f"s_lshr_b32 s{sTI}, s{sW}, 2")
    a(f"s_cmp_ge_u32 s{sW}, 4")
    a("s_cbranch_scc1 K1_KB")
    a(f"v_lshlrev_b32 v{vD}, 4, v{vL}")
    a(f"s_mul_i32 s{sSO}, s{sW}, 640")
    a(f"s_mov_b32 s{sSTEP}, 2560")
    a(f"s_lshl_b32 s{sM0}, s{sW}, 10")
    body("KA", "A", True)
    a.label("K1_KB")
    a(f"v_add_u32 v{vTR}, 4096, v{vTR}")
    x_dma_setup()
    body("KB", "B", True)
    a.label("K1_END")
    a("s_endpgm")

def kdesc(name, nv, ns=96):
    return f""".amdhsa_kernel {name}
  .amdhsa_next_free_vgpr {nv}
  .amdhsa_next_free_sgpr {ns}
  .amdhsa_accum_offset {(nv+3)//4*4}
  .amdhsa_group_segment_fixed_size 0
  .amdhsa_kernarg_size 88
  .amdhsa_user_sgpr_count 2
  .amdhsa_user_sgpr_kernarg_segment_ptr 1
  .amdhsa_system_sgpr_workgroup_id_x 1
.end_amdhsa_kernel
"""

def build(with_k2=True):
    from gen_k2 import gen_k2, K2_LDS
    hdr = open("cdna_kernels/" + NAME + ".s.ref").read().split("; Override launch")[0]
    out = hdr
    out += f"; @launch kernel=k1_kernel grid=(256,1,1) block=(512,1,1) lds={K1_LDS}\n"
    if with_k2: out += f"; @launch kernel=k2_kernel grid=(256,1,1) block=(512,1,1) lds={K2_LDS}\n"
    out += '.amdgcn_target "amdgcn-amd-amdhsa--gfx950"\n.text\n'
    a = Asm()
    a.raw(".globl k1_kernel\n.p2align 8\n.type k1_kernel,@function")
    gen_k1(a)
    if with_k2:
        a.raw(".globl k2_kernel\n.p2align 8\n.type k2_kernel,@function")
        a.c0 = 4
        gen_k2(a)
    out += a.text()
    out += '.section .rodata,"a"\n.p2align 6\n' + kdesc("k1_kernel", 152)
    if with_k2: out += ".p2align 6\n" + kdesc("k2_kernel", 256)
    return out

if __name__ == "__main__":
    path = sys.argv[1] if len(sys.argv) > 1 else "cdna_kernels/" + NAME + ".s"
    open(path, "w").write(build(with_k2=("--k1" not in sys.argv)))
```

```python
import sys, struct, math

NAME = "parallel_sum__grouped_kv_mqa__dense_activation_relu__prompt"
G_TSTRIDE = 75 * 2048
WS_G = 0
WS_KV = 64 * G_TSTRIDE
KV_REC = 3072
WS_O = WS_KV + 66 * KV_REC
WS_O = (WS_O + 4095) // 4096 * 4096
WS_FL = WS_O + 64 * 40 * 1024
WS_PROF = WS_FL + 256 * 128
PROFILE = "--prof" in sys.argv
WS_END = WS_PROF + (2 * 256 * 8 * 64 if PROFILE else 0)
OOB = 0x80000000
DBGWG = int(sys.argv[sys.argv.index("--dbgwg") + 1]) if "--dbgwg" in sys.argv else 0
def opt(name): return ("--" + name) in sys.argv
QSCALE = math.log2(math.e) / math.sqrt(20.0)

def f32bits(x): return struct.unpack("<I", struct.pack("<f", x))[0]

class Asm:
    def __init__(self): self.lines = []; self.c0 = 3
    def __call__(self, s): self.lines.append("    " + s)
    def label(self, s): self.lines.append(s + ":")
    def raw(self, s): self.lines.append(s)
    def c(self, s): self.lines.append("    ; " + s)
    def stamp(self, i):
        if PROFILE:
            self(f"s_memrealtime s[{64+2*i}:{65+2*i}]")
            if i == self.c0: self("s_memtime s[92:93]")
            if i == self.c0 + 1: self("s_memtime s[94:95]")
    def end(self, kid, sw, sws, n):
        if PROFILE:
            self("s_waitcnt vmcnt(0)")
            self.stamp(n - 1)
            self("s_waitcnt lgkmcnt(0)")
            self(f"s_lshl_b32 s3, s2, 3")
            self(f"s_add_u32 s3, s3, s{sw}")
            self(f"s_lshl_b32 s3, s3, 6")
            self(f"s_add_u32 s3, s3, {WS_PROF + kid*256*8*64}")
            self("s_mov_b64 exec, 1")
            self("v_mov_b32 v1, 0")
            for i in list(range(n)) + [14, 15]:
                self(f"v_mov_b32 v2, s{64+2*i}")
                self(f"buffer_store_dword v2, v1, s[{sws}:{sws+3}], s3 offen offset:{4*i}")
            if opt("dbgprof") and kid == 1:
                lab = f"DBGP{len(self.lines)}"
                self(f"s_cmp_lg_u32 s3, {WS_PROF + 256*8*64 + DBGWG*8*64}")
                self(f"s_cbranch_scc1 {lab}")
                self("s_load_dwordx2 s[60:61], s[0:1], 72")
                self(f"s_mov_b32 s3, {WS_PROF + DBGWG*8*64}")
                self(f"buffer_load_dwordx4 v[4:7], v1, s[{sws}:{sws+3}], s3 offen")
                self(f"buffer_load_dwordx4 v[8:11], v1, s[{sws}:{sws+3}], s3 offen offset:16")
                self("s_waitcnt lgkmcnt(0) vmcnt(0)")
                self("s_mov_b32 s62, 256")
                self("s_mov_b32 s63, 0x00020000")
                self("buffer_store_dwordx4 v[4:7], v1, s[60:63], 0 offen")
                self("buffer_store_dwordx4 v[8:11], v1, s[60:63], 0 offen offset:16")
                for j, i in enumerate((0, 1, 2, 4, 5, 7, 11, 12)):
                    self(f"v_mov_b32 v2, s{64+2*i}")
                    self(f"buffer_store_dword v2, v1, s[60:63], 0 offen offset:{32+4*j}")
                self.label(lab)
        self("s_endpgm")
    def text(self): return "\n".join(self.lines) + "\n"

def vr(b, n=1): return f"v{b}" if n == 1 else f"v[{b}:{b+n-1}]"
def sr(b, n=1): return f"s{b}" if n == 1 else f"s[{b}:{b+n-1}]"

def srd(a, d, lo, hi, size):
    a(f"s_mov_b32 s{d}, s{lo}")
    a(f"s_mov_b32 s{d+1}, s{hi}")
    a(f"s_mov_b32 s{d+2}, {size}")
    a(f"s_mov_b32 s{d+3}, 0x00020000")

def csel(a, d, t, f):
    a(f"s_mov_b32 s{d}, {f}")
    a(f"s_cmov_b32 s{d}, {t}")

def split3(a, src, t0, t1, d0, d1):
    a(f"v_and_b32 v{t0}, 0xffff0000, v{src}")
    a(f"v_sub_f32 v{t1}, v{src}, v{t0}")
    a(f"v_lshrrev_b32 v{d0}, 16, v{src}")
    a(f"v_and_b32 v{t0}, 0xffff0000, v{t1}")
    a(f"v_or_b32 v{d0}, v{d0}, v{t0}")
    a(f"v_sub_f32 v{t1}, v{t1}, v{t0}")
    a(f"v_lshrrev_b32 v{d1}, 16, v{t1}")

K1_SLOT = 36864
K1_XOFF = 20480
K1_CS = 4 * K1_SLOT
K1_ST = K1_CS + 2560
K1_LDS = K1_ST + 1024

def gen_k1(a):
    SX, SW, SW2, SWS = 4, 8, 12, 16
    sRB, sCG, sW, sTT, sWST, sSO, sSTEP, sM0, sC, sDEL, sONE, sLO, sQS = range(20, 33)
    sT0, sT1, sT2, sT3 = 33, 34, 35, 48
    sTI = 50
    sOUT = 53
    vL, vN, vH, vT0, vT1, vT2 = 1, 2, 3, 4, 5, 6
    vX = 8
    vTR = 12
    vD = 16
    vSUM, vSQ, vCS = 21, 22, 23
    vROW = 24
    FB = [28, 32]
    FA = [36, 48]
    ACC = 64
    a.label("k1_kernel")
    a("s_cmp_ge_u32 s2, 256")
    a("s_cbranch_scc1 K1_END")
    a.stamp(0)
    a("s_load_dwordx8 s[36:43], s[0:1], 0")
    a("s_load_dwordx2 s[44:45], s[0:1], 48")
    a("s_load_dwordx2 s[46:47], s[0:1], 80")
    a(f"v_lshrrev_b32 v{vT0}, 6, v0")
    a(f"v_and_b32 v{vL}, 63, v0")
    a(f"v_readfirstlane_b32 s{sW}, v{vT0}")
    a(f"s_bfe_u32 s{sRB}, s2, 0x20001")
    a(f"s_lshl_b32 s{sRB}, s{sRB}, 2")
    a(f"s_bfe_u32 s{sT0}, s2, 0x20003")
    a(f"s_add_u32 s{sRB}, s{sRB}, s{sT0}")
    a(f"s_and_b32 s{sCG}, s2, 1")
    a(f"s_lshl_b32 s{sCG}, s{sCG}, 3")
    a(f"s_lshr_b32 s{sT0}, s2, 5")
    a(f"s_add_u32 s{sCG}, s{sCG}, s{sT0}")
    a(f"s_and_b32 s{sTT}, s{sW}, 3")
    a(f"s_mov_b32 s{sONE}, 0x3f803f80")
    a(f"v_and_b32 v{vN}, 31, v{vL}")
    a(f"v_lshrrev_b32 v{vH}, 5, v{vL}")
    a(f"v_bfe_u32 v{vT0}, v{vL}, 1, 3")
    a(f"v_xor_b32 v{vT0}, v{vT0}, v{vH}")
    a(f"s_lshl_b32 s{sT0}, s{sTT}, 12")
    a(f"s_add_u32 s{sT0}, s{sT0}, {K1_XOFF}")
    a(f"v_lshl_add_u32 v{vT1}, v{vN}, 7, s{sT0}")
    for s in range(4):
        a(f"v_xor_b32 v{vT2}, {2*s}, v{vT0}")
        a(f"v_lshl_add_u32 v{vX+s}, v{vT2}, 4, v{vT1}")
    a(f"v_bfe_u32 v{vT0}, v{vL}, 2, 2")
    a(f"v_lshl_add_u32 v{vROW}, v{vH}, 3, v{vT0}")
    a(f"v_mov_b32 v{vSUM}, 0")
    a(f"v_mov_b32 v{vSQ}, 0")
    a(f"v_mov_b32 v{vCS}, 0")
    a(f"s_lshl_b32 s{sT0}, s{sRB}, 2")
    a(f"s_add_u32 s{sT3}, s{sT0}, s{sTT}")
    a(f"s_mul_i32 s{sOUT}, s{sT3}, {G_TSTRIDE}")
    a(f"s_mul_i32 s{sT0}, s{sCG}, 10240")
    a(f"s_add_u32 s{sOUT}, s{sOUT}, s{sT0}")
    a(f"s_cmp_lt_u32 s{sCG}, 4")
    csel(a, sWST, 1280, 3456)
    a(f"s_cselect_b32 s{sLO}, 0x80008000, 0")
    a(f"s_cselect_b32 s{sQS}, {f32bits(QSCALE):#x}, 1.0")
    a("s_waitcnt lgkmcnt(0)")
    a(f"s_cselect_b32 s{SW}, s38, s44")
    a(f"s_cselect_b32 s{SW+1}, s39, s45")
    csel(a, SW+2, 640*640*2, 640*1728*2)
    a(f"s_mov_b32 s{SW+3}, 0x00020000")
    srd(a, SX, 36, 37, 2048 * 640 * 2)
    srd(a, SWS, 46, 47, WS_END)
    a(f"s_cmp_eq_u32 s{sCG}, 15")
    a("s_cbranch_scc1 K1_KV")
    a(f"s_cmp_ge_u32 s{sW}, 4")
    a("s_cbranch_scc1 K1_GB")

    def x_dma_setup():
        a(f"s_lshl_b32 s{sT0}, s{sT3}, 5")
        a(f"v_lshrrev_b32 v{vT0}, 3, v{vL}")
        a(f"v_add_u32 v{vT0}, s{sT0}, v{vT0}")
        a(f"v_mul_u32_u24 v{vT0}, 1280, v{vT0}")
        a(f"v_lshrrev_b32 v{vT1}, 4, v{vL}")
        a(f"v_and_b32 v{vT2}, 7, v{vL}")
        a(f"v_xor_b32 v{vT1}, v{vT1}, v{vT2}")
        a(f"v_lshl_add_u32 v{vD}, v{vT1}, 4, v{vT0}")
        a(f"v_xor_b32 v{vT1}, 4, v{vT1}")
        a(f"v_lshl_add_u32 v{vD+1}, v{vT1}, 4, v{vT0}")
        a(f"v_add_u32 v{vD+1}, {8*1280}, v{vD+1}")
        a(f"v_add_u32 v{vD+2}, {16*1280}, v{vD}")
        a(f"v_add_u32 v{vD+3}, {16*1280}, v{vD+1}")
        a(f"s_mov_b32 s{sSO}, 0")
        a(f"s_mov_b32 s{sSTEP}, 128")
        a(f"s_lshl_b32 s{sM0}, s{sTT}, 12")
        a(f"s_add_u32 s{sM0}, s{sM0}, {K1_XOFF}")

    def w_dma_setup():
        a(f"s_sub_u32 s{sT0}, s{sCG}, 4")
        a(f"s_cmp_lt_u32 s{sCG}, 4")
        a(f"s_cselect_b32 s{sT0}, s{sCG}, s{sT0}")
        a(f"s_mul_i32 s{sT0}, s{sT0}, 320")
        a(f"s_lshl_b32 s{sT1}, s{sW}, 4")
        a(f"s_mul_i32 s{sT1}, s{sT1}, s{sWST}")
        a(f"s_add_u32 s{sSO}, s{sT0}, s{sT1}")
        a(f"s_sub_u32 s{sT2}, s{sWST}, 320")
        for p in range(5):
            a(f"v_add_u32 v{vT0}, {64*p}, v{vL}")
            a(f"v_mul_u32_u24 v{vT1}, 3277, v{vT0}")
            a(f"v_lshrrev_b32 v{vT1}, 16, v{vT1}")
            a(f"v_lshlrev_b32 v{vT0}, 4, v{vT0}")
            a(f"v_mad_u32_u24 v{vD+p}, v{vT1}, s{sT2}, v{vT0}")
        a(f"s_lshl_b32 s{sSTEP}, s{sWST}, 6")
        a(f"s_mul_i32 s{sM0}, s{sW}, 5120")

    def tr_setup_generic(role):
        nt = 3 if role == "A" else 2
        for i in range(nt):
            a(f"s_add_u32 s{sTI+i}, s{sTT}, {i}")
            if role == "A":
                a(f"s_sub_u32 s{sT0}, s{sTI+i}, 3")
                a(f"s_cmp_ge_u32 s{sTI+i}, 3")
                a(f"s_cselect_b32 s{sTI+i}, s{sT0}, s{sTI+i}")
            else:
                a(f"s_and_b32 s{sTI+i}, s{sTI+i}, 1")
                a(f"s_add_u32 s{sTI+i}, s{sTI+i}, 3")
        a(f"v_bfe_u32 v{vT0}, v{vL}, 4, 1")
        a(f"v_and_b32 v{vT1}, 3, v{vL}")
        a(f"v_mul_u32_u24 v{vROW}, 320, v{vROW}")
        for i in range(nt):
            a(f"s_cmp_lt_u32 s{sCG}, 4")
            a(f"s_cselect_b32 s{sT0}, 80, 64")
            a(f"s_cselect_b32 s{sT1}, 40, 32")
            a(f"s_mul_i32 s{sT0}, s{sT0}, s{sTI+i}")
            a(f"s_mov_b32 s{sT2}, 8")
            if role == "B":
                a(f"s_cmp_eq_u32 s{sT0}, 320")
                a(f"s_cselect_b32 s{sT0}, 32, s{sT0}")
                a(f"s_cselect_b32 s{sT1}, 160, s{sT1}")
                a(f"s_cselect_b32 s{sT2}, 40, s{sT2}")
            a(f"v_mad_u32_u24 v{vTR+i}, v{vT0}, s{sT1}, v{vROW}")
            a(f"v_mad_u32_u24 v{vTR+i}, v{vT1}, s{sT2}, v{vTR+i}")
            a(f"v_add_u32 v{vTR+i}, s{sT0}, v{vTR+i}")

    def body(tag, role, kv):
        nt = 1 if kv else (3 if role == "A" else 2)
        sstr, rstr = (1024, 40) if kv else (5120, 320)
        if role == "B": ndma = 4
        else: ndma = 2 if kv else 5
        def dma():
            for p in range(ndma):
                if role == "A" and kv:
                    a(f"s_add_u32 m0, s{sM0}, {4096*p}")
                    a("s_nop 0")
                    a(f"buffer_load_dwordx4 v{vD}, {sr(SW if p == 0 else SW2, 4)}, s{sSO} offen lds")
                else:
                    a(f"s_add_u32 m0, s{sM0}, {1024*p}")
                    a("s_nop 0")
                    a(f"buffer_load_dwordx4 v{vD+p}, {sr(SX if role == 'B' else SW, 4)}, s{sSO} offen lds")
            a(f"s_add_u32 s{sSO}, s{sSO}, s{sSTEP}")
        def reads(s, p):
            a(f"ds_read_b128 {vr(FB[p], 4)}, v{vX+s}")
            for i in range(nt):
                a(f"ds_read_b64_tr_b16 {vr(FA[p]+4*i, 2)}, v{vTR+i} offset:{s*sstr}")
                a(f"ds_read_b64_tr_b16 {vr(FA[p]+4*i+2, 2)}, v{vTR+i} offset:{s*sstr+4*rstr}")
        def mfmas(p):
            dots = [f"v_dot2c_f32_bf16 v{vCS}, s{sONE}, v{FA[p]+j}" for j in range(4)]
            if role == "B":
                d2 = []
                for j in range(4):
                    d2 += [f"v_dot2c_f32_bf16 v{vSUM}, s{sONE}, v{FB[p]+j}", f"v_dot2c_f32_bf16 v{vSQ}, v{FB[p]+j}, v{FB[p]+j}", dots[j]]
                dots = d2
            per = (len(dots) + nt - 1) // nt
            per += per & 1
            for i in range(nt):
                a(f"v_mfma_f32_32x32x16_bf16 {vr(ACC+16*i, 16)}, {vr(FA[p]+4*i, 4)}, {vr(FB[p], 4)}, {vr(ACC+16*i, 16)}")
                if not opt("nodot"):
                    for d in dots[i*per:(i+1)*per]: a(d)
        nrd = 1 + 2 * nt
        a.stamp(1)
        for c in range(4):
            dma()
            a(f"s_add_u32 s{sM0}, s{sM0}, {K1_SLOT}")
        a(f"s_sub_u32 s{sM0}, s{sM0}, {4*K1_SLOT}")
        for i in range(16 * nt): a(f"v_mov_b32 v{ACC+i}, 0")
        if role == "A":
            a(f"s_lshl_b32 s{sT0}, s2, 7")
            a(f"s_add_u32 s{sT0}, s{sT0}, {WS_FL}")
            a(f"v_mov_b32 v{vT0}, 0")
            a(f"buffer_store_dword v{vT0}, v{vT0}, {sr(SWS, 4)}, s{sT0} offen")
            a(f"s_waitcnt vmcnt({3*ndma+1})")
        else:
            a(f"s_waitcnt vmcnt({3*ndma})")
        a.stamp(2)
        a("s_barrier")
        a.stamp(3)
        reads(0, 0)
        a(f"s_mov_b32 s{sC}, 0")
        a.raw(".p2align 3")
        a.label(f"K1_L{tag}")
        for s in range(3):
            reads(s + 1, (s + 1) & 1)
            a(f"s_waitcnt lgkmcnt({nrd})")
            mfmas(s & 1)
        a(f"s_and_b32 s{sT0}, s{sC}, 3")
        a(f"s_cmp_eq_u32 s{sT0}, 3")
        csel(a, sDEL, -3*K1_SLOT, K1_SLOT)
        a(f"s_cmp_ge_u32 s{sC}, 7")
        a(f"s_cbranch_scc1 K1_W0{tag}")
        a(f"s_waitcnt vmcnt({2*ndma}) lgkmcnt(0)")
        a(f"s_branch K1_W1{tag}")
        a.label(f"K1_W0{tag}")
        a(f"s_waitcnt vmcnt(0) lgkmcnt(0)")
        a.label(f"K1_W1{tag}")
        for s in range(4): a(f"v_add_u32 v{vX+s}, s{sDEL}, v{vX+s}")
        for i in range(nt): a(f"v_add_u32 v{vTR+i}, s{sDEL}, v{vTR+i}")
        a("s_barrier")
        reads(0, 0)
        a(f"s_cmp_ge_u32 s{sC}, 6")
        a(f"s_cbranch_scc1 K1_ND{tag}")
        dma()
        a(f"s_add_u32 s{sM0}, s{sM0}, s{sDEL}")
        a.label(f"K1_ND{tag}")
        mfmas(1)
        a(f"s_add_u32 s{sC}, s{sC}, 1")
        a(f"s_cmp_lt_u32 s{sC}, 10")
        a(f"s_cbranch_scc1 K1_L{tag}")
        a.stamp(4)
        a("s_waitcnt lgkmcnt(0)")
        R0 = FB[0]
        a("s_nop 2")
        split3(a, vCS, vT0, vT1, R0, R0 + 1)
        a(f"s_lshl_b32 s{sT0}, s{sTI}, 9")
        a(f"s_add_u32 s{sT0}, s{sT0}, {K1_CS}")
        a(f"v_lshl_add_u32 v{vT2}, v{vL}, 3, s{sT0}")
        a(f"ds_write_b64 v{vT2}, {vr(R0, 2)}")
        a(f"s_lshl_b32 s{sT0}, s{sTT}, 8")
        a(f"s_add_u32 s{sT0}, s{sT0}, {K1_ST}")
        a(f"v_lshl_add_u32 v{vX}, v{vN}, 3, s{sT0}")
        if role == "B":
            S = R0 + 4
            a(f"v_mov_b32 v{S}, v{vSUM}")
            a(f"v_mov_b32 v{S+1}, v{vSQ}")
            a("s_nop 1")
            a(f"v_permlane32_swap_b32 v{S}, v{vSUM}")
            a(f"v_permlane32_swap_b32 v{S+1}, v{vSQ}")
            a(f"v_add_f32 v{vSUM}, v{vSUM}, v{S}")
            a(f"v_add_f32 v{vSQ}, v{vSQ}, v{S+1}")
            a(f"v_mul_f32 v{vSUM}, {f32bits(1.0/640):#x}, v{vSUM}")
            a(f"v_mul_f32 v{vSQ}, {f32bits(1.0/640):#x}, v{vSQ}")
            a(f"v_fma_f32 v{vSQ}, -v{vSUM}, v{vSUM}, v{vSQ}")
            a(f"v_max_f32 v{vSQ}, 0, v{vSQ}")
            a(f"v_cvt_pk_bf16_f32 v{S}, -v{vSUM}, -v{vSUM}")
            a(f"v_cvt_pk_bf16_f32 v{vSQ}, v{vSQ}, v{vSQ}")
            a(f"v_and_b32 v{vSQ}, 0xffff0000, v{vSQ}")
            a(f"v_add_f32 v{vSQ}, {f32bits(1e-5):#x}, v{vSQ}")
            a(f"v_cvt_pk_bf16_f32 v{vSQ}, v{vSQ}, v{vSQ}")
            a(f"v_and_b32 v{vSQ}, 0xffff0000, v{vSQ}")
            a(f"v_sqrt_f32 v{vSQ}, v{vSQ}")
            a("s_nop 0")
            a(f"v_cvt_pk_bf16_f32 v{vSQ}, v{vSQ}, v{vSQ}")
            a(f"v_and_b32 v{vSQ}, 0xffff0000, v{vSQ}")
            a(f"v_rcp_f32 v{vSQ}, v{vSQ}")
            a("s_nop 0")
            a(f"v_mul_f32 v{S+1}, s{sQS}, v{vSQ}")
            a(f"ds_write_b64 v{vX}, {vr(S, 2)}")
        for i in range(nt):
            a(f"s_lshl_b32 s{sT0}, s{sTI+i}, 9")
            a(f"s_add_u32 s{sT0}, s{sT0}, {K1_CS}")
            a(f"v_lshl_add_u32 v{vTR+i}, v{vL}, 3, s{sT0}")
        a("s_waitcnt lgkmcnt(0)")
        a("s_barrier")
        ST = R0 + 8
        NM = R0 + 10
        CSR = R0 + 12
        a(f"ds_read_b64 {vr(ST, 2)}, v{vX}")
        for i in range(nt): a(f"ds_read_b64 {vr(CSR+2*i, 2)}, v{vTR+i}")
        a(f"v_lshlrev_b32 v{vT2}, 4, v{vL}")
        a("s_waitcnt lgkmcnt(0)")
        a(f"v_mov_b32 v{NM}, v{ST}")
        a(f"v_mov_b32 v{NM+1}, v{ST}")
        a(f"v_mov_b32 v{ST}, v{ST+1}")
        a("s_nop 0")
        for i in range(nt):
            a(f"v_mfma_f32_32x32x8_bf16 {vr(ACC+16*i, 16)}, {vr(CSR+2*i, 2)}, {vr(NM, 2)}, {vr(ACC+16*i, 16)}")
        a("s_nop 11")
        a.stamp(5)
        if not kv:
            for i in range(nt):
                P = 128 + 8 * i
                for j in range(8): a(f"v_pk_mul_f32 {vr(ACC+16*i+2*j, 2)}, {vr(ACC+16*i+2*j, 2)}, {vr(ST, 2)}")
                for j in range(8): a(f"v_cvt_pk_bf16_f32 v{P+j}, v{ACC+16*i+2*j}, v{ACC+16*i+2*j+1}")
                for j in range(8): a(f"v_pk_max_i16 v{P+j}, v{P+j}, s{sLO}")
                a(f"s_lshl_b32 s{sT0}, s{sTI+i}, 11")
                a(f"s_add_u32 s{sT0}, s{sT0}, s{sOUT}")
                a(f"buffer_store_dwordx4 {vr(P, 4)}, v{vT2}, {sr(SWS, 4)}, s{sT0} offen")
                a(f"buffer_store_dwordx4 {vr(P+4, 4)}, v{vT2}, {sr(SWS, 4)}, s{sT0} offen offset:1024")
        else:
            P = 128
            a(f"s_mul_i32 s{sT0}, s{sT3}, {KV_REC}")
            a(f"s_add_u32 s{sT0}, s{sT0}, {WS_KV}")
            for j in range(6): a(f"v_pk_mul_f32 {vr(ACC+2*j, 2)}, {vr(ACC+2*j, 2)}, {vr(ST, 2)}")
            if role == "A":
                for j in range(6): a(f"v_cvt_pk_bf16_f32 v{P+j}, v{ACC+2*j}, v{ACC+2*j+1}")
                a(f"v_min_u32 v{vT0}, 32, v{vL}")
                a(f"v_lshlrev_b32 v{vT0}, 3, v{vT0}")
                a("s_mov_b32 exec_lo, 0")
                a(f"v_mov_b32 v{P+4}, 0x3f803f80")
                a(f"v_mov_b32 v{P+5}, 0x3f80")
                a("s_mov_b32 exec_lo, -1")
                a(f"buffer_store_dwordx4 {vr(P, 4)}, v{vT2}, {sr(SWS, 4)}, s{sT0} offen")
                a(f"buffer_store_dwordx2 {vr(P+4, 2)}, v{vT0}, {sr(SWS, 4)}, s{sT0} offen offset:2560")
            else:
                a("s_mov_b32 exec_lo, 0")
                a(f"v_mov_b32 v{ACC+8}, 1.0")
                a("s_mov_b32 exec_lo, -1")
                for j in range(6): a(f"v_cvt_pk_bf16_f32 v{P+j}, v{ACC+2*j}, v{ACC+2*j+1}")
                a(f"v_lshrrev_b32 v{vT0}, 3, v{vN}")
                a(f"v_mul_u32_u24 v{vT0}, 384, v{vT0}")
                a(f"v_and_b32 v{vT1}, 7, v{vN}")
                a(f"v_lshl_add_u32 v{vT0}, v{vT1}, 1, v{vT0}")
                a(f"v_lshl_add_u32 v{vT0}, v{vH}, 6, v{vT0}")
                for r in range(12):
                    op = "buffer_store_short" if r % 2 == 0 else "buffer_store_short_d16_hi"
                    a(f"{op} v{P+r//2}, v{vT0}, {sr(SWS, 4)}, s{sT0} offen offset:{1024 + (r//4)*128 + (r%4)*16}")
        a.stamp(6)
        a.end(0, sW, SWS, 8)

    w_dma_setup(); tr_setup_generic("A"); body("GA", "A", False)
    a.label("K1_GB")
    x_dma_setup(); tr_setup_generic("B"); body("GB", "B", False)
    a.label("K1_KV")
    srd(a, SW, 40, 41, 640 * 40)
    srd(a, SW2, 42, 43, 640 * 40)
    a(f"v_bfe_u32 v{vT0}, v{vL}, 4, 1")
    a(f"v_and_b32 v{vT1}, 3, v{vL}")
    a(f"v_lshl_add_u32 v{vT0}, v{vT0}, 2, v{vT1}")
    a(f"v_min_u32 v{vT0}, 4, v{vT0}")
    a(f"v_mul_u32_u24 v{vROW}, 40, v{vROW}")
    a(f"v_lshl_add_u32 v{vTR}, v{vT0}, 3, v{vROW}")
    a(f"s_lshr_b32 s{sTI}, s{sW}, 2")
    a(f"s_cmp_ge_u32 s{sW}, 4")
    a("s_cbranch_scc1 K1_KB")
    a(f"v_lshlrev_b32 v{vD}, 4, v{vL}")
    a(f"s_mul_i32 s{sSO}, s{sW}, 640")
    a(f"s_mov_b32 s{sSTEP}, 2560")
    a(f"s_lshl_b32 s{sM0}, s{sW}, 10")
    body("KA", "A", True)
    a.label("K1_KB")
    a(f"v_add_u32 v{vTR}, 4096, v{vTR}")
    x_dma_setup()
    body("KB", "B", True)
    a.label("K1_END")
    a("s_endpgm")

def kdesc(name, nv, ns=96):
    return f""".amdhsa_kernel {name}
  .amdhsa_next_free_vgpr {nv}
  .amdhsa_next_free_sgpr {ns}
  .amdhsa_accum_offset {(nv+3)//4*4}
  .amdhsa_group_segment_fixed_size 0
  .amdhsa_kernarg_size 88
  .amdhsa_user_sgpr_count 2
  .amdhsa_user_sgpr_kernarg_segment_ptr 1
  .amdhsa_system_sgpr_workgroup_id_x 1
.end_amdhsa_kernel
"""

def build(with_k2=True):
    from gen_k2 import gen_k2, K2_LDS
    hdr = open("cdna_kernels/" + NAME + ".s.ref").read().split("; Override launch")[0]
    out = hdr
    out += f"; @launch kernel=k1_kernel grid=(256,1,1) block=(512,1,1) lds={K1_LDS}\n"
    if with_k2: out += f"; @launch kernel=k2_kernel grid=(256,1,1) block=(512,1,1) lds={K2_LDS}\n"
    out += '.amdgcn_target "amdgcn-amd-amdhsa--gfx950"\n.text\n'
    a = Asm()
    a.raw(".globl k1_kernel\n.p2align 8\n.type k1_kernel,@function")
    gen_k1(a)
    if with_k2:
        a.raw(".globl k2_kernel\n.p2align 8\n.type k2_kernel,@function")
        a.c0 = 4
        gen_k2(a)
    out += a.text()
    out += '.section .rodata,"a"\n.p2align 6\n' + kdesc("k1_kernel", 152)
    if with_k2: out += ".p2align 6\n" + kdesc("k2_kernel", 256)
    return out

if __name__ == "__main__":
    path = sys.argv[1] if len(sys.argv) > 1 else "cdna_kernels/" + NAME + ".s"
    open(path, "w").write(build(with_k2=("--k1" not in sys.argv)))
```

```python
from g2 import *

RING_ST = 20992
L_OP = 4 * RING_ST
L_MREC = L_OP + 73728
L_BAD = L_MREC + 2048
LDS_BYTES = L_BAD + 64

def p2_ids(a):
    a(f"s_lshl_b32 s{sT0}, s{sRB}, 4")
    a(f"s_add_u32 s{sT0}, s{sT0}, s{sCG}")
    a(f"s_lshl_b32 s{sT0}, s{sT0}, 7")
    a(f"s_add_u32 s{sT2}, s{sT0}, {WS_F1}")
    a(f"s_and_b32 s{sT}, s2, 7")
    a(f"s_lshl_b32 s{sT}, s{sT}, 3")
    a(f"s_lshr_b32 s{sT0}, s2, 5")
    a(f"s_add_u32 s{sT}, s{sT}, s{sT0}")
    a(f"s_bfe_u32 s{sHG}, s2, 0x20003")
    a(f"s_mul_i32 s{sG}, s{sT}, {G_TSTRIDE}")
    a(f"s_mov_b32 s{sMODE}, 0")
    a(f"s_mul_i32 s{sOB}, s{sT}, {32*1280}")
    a(f"s_mul_i32 s{sT0}, s{sHG}, 320")
    a(f"s_add_u32 s{sOB}, s{sOB}, s{sT0}")
    a("v_lshlrev_b32 v2, 4, v1")
    srd(a, SX, pX, 2048 * 1280)
    srd(a, SB, pOUT, 2048 * 1280)
    a(f"s_mov_b32 s{sFL}, s{sT2}")

sFL = 96
def p2_sync(a, publisher, younger=0):
    a(f"s_waitcnt vmcnt({younger}) lgkmcnt(0)")
    a.stamp(6)
    a("s_barrier")
    if publisher:
        L = a.uid("NOPUB")
        a(f"s_cmp_lg_u32 s{sW}, 0")
        a(f"s_cbranch_scc1 {L}")
        a(f"v_mov_b32 v4, s{sNON}")
        a("s_mov_b64 exec, 1")
        a(f"buffer_store_dword v4, v7, {sr(SWS)}, s{sFL} offen sc1")
        a("s_mov_b64 exec, -1")
        a.label(L)

sTGT, sKVWG = 63, 57
def abar(a, vaddr, vtmp, inc="1", last=None):
    L, D = a.uid("AB"), a.uid("ABD")
    a(f"s_add_u32 s{sTGT}, s{sTGT}, 4")
    a(f"v_mov_b32 v{vtmp}, {inc}")
    a("s_mov_b64 exec, 1")
    a(f"ds_add_rtn_u32 v{vtmp}, v{vaddr}, v{vtmp}")
    a(f"s_mov_b32 s{sSPIN}, {SPIN}")
    a("s_waitcnt lgkmcnt(0)")
    a(f"v_readfirstlane_b32 s{sT0}, v{vtmp}")
    a(f"s_add_u32 s{sT0}, s{sT0}, {inc}")
    a(f"s_and_b32 s{sT2}, s{sT0}, 0xffff")
    a(f"s_cmp_lt_u32 s{sT2}, s{sTGT}")
    a(f"s_cbranch_scc1 {L}")
    if last: last()
    a(f"s_branch {D}")
    a.label(L)
    a(f"ds_read_b32 v{vtmp}, v{vaddr}")
    a(f"s_sub_u32 s{sSPIN}, s{sSPIN}, 1")
    a(f"s_cbranch_scc1 {D}")
    a("s_waitcnt lgkmcnt(0)")
    a(f"v_readfirstlane_b32 s{sT0}, v{vtmp}")
    a(f"s_and_b32 s{sT2}, s{sT0}, 0xffff")
    a(f"s_cmp_lt_u32 s{sT2}, s{sTGT}")
    a(f"s_cbranch_scc1 {L}")
    a.label(D)
    a("s_mov_b64 exec, -1")

def final_stage(a, base_item, X, R, vA, vG, load_x, do_rest):
    if load_x:
        if base_item: a(f"v_add_u32 v{vA}, {base_item}, v0")
        else: a(f"v_mov_b32 v{vA}, v0")
        a(f"v_mul_u32_u24 v{vG}, 3277, v{vA}")
        a(f"v_lshrrev_b32 v{vG}, 16, v{vG}")
        a(f"v_lshlrev_b32 v{vA}, 4, v{vA}")
        a(f"v_lshlrev_b32 v{X}, 4, v{vG}")
        a(f"v_mul_u32_u24 v{vG}, 960, v{vG}")
        a(f"v_add_u32 v{vG}, v{vG}, v{vA}")
        a(f"v_lshl_add_u32 v{vA}, v{vA}, 1, v{X}")
        a(f"buffer_load_dwordx4 {vr(X, 4)}, v{vG}, {sr(SX)}, s{sOB} offen")
    if do_rest == 1:
        for s in range(4):
            a(f"ds_read_b128 {vr(R+8*s, 4)}, v{vA} offset:{s*RING_ST}")
            a(f"ds_read_b128 {vr(R+8*s+4, 4)}, v{vA} offset:{s*RING_ST+16}")
    if do_rest == 2:
        for j in range(4):
            a(f"v_lshlrev_b32 v{R+32+2*j}, 16, v{X+j}")
            a(f"v_and_b32 v{R+33+2*j}, 0xffff0000, v{X+j}")
    if do_rest >= 3:
        for s in range(4):
            a(f"s_waitcnt lgkmcnt({6-2*s + (do_rest-3)})")
            for j in range(4):
                a(f"v_pk_add_f32 {vr(R+32+2*j, 2)}, {vr(R+32+2*j, 2)}, {vr(R+8*s+2*j, 2)}")
        for j in range(4): a(f"v_cvt_pk_bf16_f32 v{X+j}, v{R+32+2*j}, v{R+33+2*j}")
        a(f"buffer_store_dwordx4 {vr(X, 4)}, v{vG}, {sr(SB)}, s{sOB} offen")

def gen_att(a):
    vL, vKM, vV, vKT, vQT, vIDX = 1, 2, 3, 4, 5, 6
    vT0, vT1, vT2, vT3 = 8, 9, 10, 11
    vP = 12
    S = [16, 32, 48, 64]
    O = lambda i: 80 + 12 * i
    QM = lambda i: 180 + 4 * i
    QT = lambda i: 212 + 2 * i
    KM = [228, 242]; KT = [232, 246]; V0 = [234, 248]; V1 = [238, 252]
    def qk1(s, kb, q): a(f"v_mfma_f32_32x32x16_bf16 {vr(S[s], 16)}, {vr(KM[kb], 4)}, {vr(QM(q), 4)}, 0")
    def qk2(s, kb, q): a(f"v_mfma_f32_32x32x8_bf16 {vr(S[s], 16)}, {vr(KT[kb], 2)}, {vr(QT(q), 2)}, {vr(S[s], 16)}")
    def pv(u, s, vb, q): a(f"v_smfmac_f32_32x32x32_bf16 {vr(O(q), 16)}, {vr((V0, V1)[u][vb], 4)}, {vr(S[s]+8*u, 8)}, v{vIDX}")
    def ldkm(b, so): a(f"buffer_load_dwordx4 {vr(KM[b], 4)}, v{vKM}, {sr(SWS)}, s{so} offen sc1")
    def ldkt(b, so): a(f"buffer_load_dwordx2 {vr(KT[b], 2)}, v{vKT}, {sr(SWS)}, s{so} offen sc1")
    def ldv(u, b, so): a(f"buffer_load_dwordx4 {vr((V0, V1)[u][b], 4)}, v{vV}, {sr(SWS)}, s{so} offen" + (" offset:768" if u else "") + " sc1")
    def rowmax(s, dst):
        b = S[s]
        a(f"v_max3_f32 v{dst}, v{b}, v{b+1}, v{b+2}")
        for j in range(3, 15, 2): a(f"v_max3_f32 v{dst}, v{dst}, v{b+j}, v{b+j+1}")
        a(f"v_max_f32 v{dst}, v{dst}, v{b+15}")
    def zero_state():
        for r in range(O(0), O(0) + 100): a(f"v_mov_b32 v{r}, 0")
        for r in range(S[3], S[3] + 16): a(f"v_mov_b32 v{r}, 0")
        for r in range(V0[1], V0[1] + 8): a(f"v_mov_b32 v{r}, 0")

    a(f"v_mov_b32 v{vT2}, {L_BAD}")
    a(f"ds_write_b32 v{vT2}, v7")
    a(f"s_mov_b32 s{sTGT}, 0")
    a(f"s_cmp_eq_u32 s{sCG}, 15")
    a(f"s_cselect_b32 s{sKVWG}, 1, 0")
    p2_ids(a)
    a(f"v_and_b32 v{vT0}, 31, v{vL}")
    a(f"v_lshrrev_b32 v{vT1}, 5, v{vL}")
    a(f"v_mul_u32_u24 v{vV}, 384, v{vT1}")
    a(f"v_lshl_add_u32 v{vV}, v{vT0}, 4, v{vV}")
    a(f"v_add_u32 v{vV}, 1024, v{vV}")
    a(f"v_mov_b32 v{vT2}, {OOB:#x}")
    a(f"v_cmp_gt_u32 vcc, 21, v{vT0}")
    a(f"v_min_u32 v{vKT}, 32, v{vL}")
    a(f"v_lshlrev_b32 v{vKT}, 3, v{vKT}")
    a(f"v_cndmask_b32 v{vV}, v{vT2}, v{vV}, vcc")
    a(f"v_cmp_gt_u32 vcc, 32, v{vL}")
    a(f"v_add_u32 v{vKT}, 2560, v{vKT}")
    a(f"v_mov_b32 v{vIDX}, 0xdddddddd")
    a(f"v_cndmask_b32 v{vQT}, v{vT2}, v{vKM}, vcc")
    a(f"s_mul_i32 s{sT2}, s{sHG}, 10240")
    a(f"s_add_u32 s{sT2}, s{sT2}, s{sG}")
    for j in range(4):
        a(f"s_add_u32 s{sT0}, s{sQ}, {j}")
        a(f"s_and_b32 s{sT0}, s{sT0}, 3")
        a(f"s_lshl_b32 s{sPm+j}, s{sT0}, 11")
        a(f"s_add_u32 s{sPm+j}, s{sPm+j}, s{sT2}")
        a(f"s_lshr_b32 s{sT1}, s{sT0}, 1")
        a(f"s_lshl_b32 s{sT1}, s{sT1}, 10")
        a(f"s_and_b32 s{sT0}, s{sT0}, 1")
        a(f"s_lshl_b32 s{sT0}, s{sT0}, 3")
        a(f"s_add_u32 s{sT1}, s{sT1}, s{sT0}")
        a(f"s_add_u32 s{sT1}, s{sT1}, s{sT2}")
        a(f"s_add_u32 s{sPt+j}, s{sT1}, 8192")
    a(f"v_and_b32 v{vT3}, 15, v{vL}")
    a(f"v_lshlrev_b32 v{vT3}, 11, v{vT3}")
    a(f"s_lshr_b32 s{sT0}, s{sT}, 2")
    a(f"s_lshl_b32 s{sT0}, s{sT0}, 4")
    a(f"s_add_u32 s{sT0}, s{sT0}, s{sHG}")
    a(f"s_lshl_b32 s{sT0}, s{sT0}, 7")
    a(f"s_add_u32 s{sHO}, s{sT0}, {WS_F1}")
    a.label("A_RESTART")
    zero_state()
    a(f"v_and_b32 v{vT0}, 31, v{vL}")
    for j in range(4):
        a(f"s_add_u32 s{sT0}, s{sQ}, {j}")
        a(f"s_and_b32 s{sT0}, s{sT0}, 3")
        a(f"s_lshl_b32 s{sT0}, s{sT0}, 9")
        a(f"s_add_u32 s{sT0}, s{sT0}, {L_MREC}")
        a(f"v_lshl_add_u32 v{vP+j}, v{vT0}, 3, s{sT0}")
    a(f"s_mul_i32 s{sKV}, s{sQ}, {16*KV_REC}")
    a(f"s_add_u32 s{sKV}, s{sKV}, {WS_KV}")
    a(f"s_cmp_lg_u32 s{sMODE}, 0")
    a("s_cbranch_scc1 A_NOPOLL")
    a(f"s_cmp_eq_u32 s{sKVWG}, 0")
    a("s_cbranch_scc1 A_B0L")
    p2_sync(a, False)
    a.label("A_B0L")
    a(f"s_mov_b32 s{sT2}, {WS_F1 + 15*128}")
    poll(a, vT3, vT0, sT2)
    a.label("A_NOPOLL")
    a.stamp(7)
    ldkm(0, sKV); ldkt(0, sKV)
    ldv(0, 0, sKV); ldv(1, 0, sKV)
    a(f"s_add_u32 s{sKV}, s{sKV}, {KV_REC}")
    ldkm(1, sKV); ldkt(1, sKV)
    a(f"s_or_b32 s{sT0}, s{sKVWG}, s{sMODE}")
    a("s_cbranch_scc1 A_B0D")
    p2_sync(a, False, 6)
    a.label("A_B0D")
    poll(a, 7, vT0, sHO)
    a.stamp(8)
    for i in range(8):
        a(f"buffer_load_dwordx4 {vr(QM(i), 4)}, v{vKM}, {sr(SWS)}, s{sPm+i//2} offen" + (" offset:1024" if i & 1 else "") + " sc1")
        a(f"buffer_load_dwordx2 {vr(QT(i), 2)}, v{vQT}, {sr(SWS)}, s{sPt+i//2} offen" + (" offset:512" if i & 1 else "") + " sc1")
    a(f"s_cmp_lg_u32 s{sMODE}, 0")
    a("s_cbranch_scc1 A_TRUEMAX")
    a.c("stand-in for the row max: max over this wave's first 32 keys; checked after the loop, exact-max rerun if unsafe")
    a("s_waitcnt vmcnt(12)")
    qk1(0, 0, 0); qk2(0, 0, 0); qk1(1, 0, 1); qk2(1, 0, 1)
    a("s_nop 9")
    rowmax(0, S[2]); rowmax(1, S[2] + 1)
    halfop(a, "v_max_f32", S[2], vT0); halfop(a, "v_max_f32", S[2] + 1, vT0)
    a.label("A_HAVEMAX")
    for e in range(2):
        a(f"v_sub_f32 v{S[2]+e}, 0, v{S[2]+e}")
        split3(a, S[2] + e, vT0, vT1, S[2] + 2 + 2 * e, S[2] + 3 + 2 * e)
        a(f"ds_write_b64 v{vP}, {vr(S[2]+2+2*e, 2)} offset:{256*e}")
    a(f"v_mov_b32 v{vT1}, {L_BAD}")
    a.stamp(9)
    abar(a, vT1, vT0)
    a("s_waitcnt vmcnt(0)")
    a("s_mov_b32 exec_lo, 0")
    for i in range(8): a(f"ds_read_b64 {vr(QT(i), 2)}, v{vP+i//2} offset:{256*(i&1)}")
    a("s_mov_b32 exec_lo, -1")
    a(f"s_mov_b32 s{sCNT}, 8")
    a("s_setprio 3")
    a("s_waitcnt lgkmcnt(0)")
    a.stamp(10); a.stamp(NSTAMP + 2, True)
    qk1(0, 0, 0); qk2(0, 0, 0)
    a("s_nop 11")
    a.raw(".p2align 6")
    a.label("A_LOOP")
    PAT = (3, 4, 3, 3, 3)
    if opt("pat"): PAT = tuple(int(ch) for ch in sys.argv[sys.argv.index("--pat") + 1])
    for kb in range(2):
        for q in range(8):
            sc = q & 3
            e = [0]
            def exps(n):
                for _ in range(n):
                    a(f"v_exp_f32 v{S[sc]+e[0]}, v{S[sc]+e[0]}"); e[0] += 1
            nq, nkb = (q + 1) & 7, (kb if q < 7 else kb ^ 1)
            pq, pvb = (q - 1) & 7, (kb if q > 0 else kb ^ 1)
            qk1((q + 1) & 3, nkb, nq); exps(PAT[0])
            qk2((q + 1) & 3, nkb, nq); exps(PAT[1])
            pv(0, (q - 1) & 3, pvb, pq); exps(PAT[2])
            pv(1, (q - 1) & 3, pvb, pq); exps(PAT[3])
            if q == 0: a("s_waitcnt vmcnt(2)"); ldv(0, kb ^ 1, sKV)
            elif q == 1: ldv(1, kb ^ 1, sKV)
            elif q == 2: a(f"s_add_u32 s{sKV}, s{sKV}, {KV_REC}")
            elif q == 3 and kb == 1: a(f"s_sub_u32 s{sCNT}, s{sCNT}, 1")
            elif q == 4 and kb == 1: a(f"s_cmp_lg_u32 s{sCNT}, 0")
            elif q == 5: a("s_waitcnt vmcnt(2)")
            elif q == 6: ldkm(kb, sKV)
            elif q == 7: ldkt(kb, sKV)
            else: a("s_nop 0")
            exps(PAT[4])
    a("s_cbranch_scc1 A_LOOP")
    a("s_nop 0")
    pv(0, 3, 1, 7); pv(1, 3, 1, 7)
    a.stamp(11); a.stamp(NSTAMP + 3, True)
    for j in range(4):
        a(f"s_add_u32 s{sT0}, s{sQ}, {j}")
        a(f"s_and_b32 s{sT0}, s{sT0}, 3")
        a(f"s_mul_i32 s{sT0}, s{sT0}, 18432")
        a(f"s_add_u32 s{sT0}, s{sT0}, {L_OP}")
        a(f"v_add_u32 v{vP+j}, s{sT0}, v{vKM}")
    for i in range(2, 8):
        for j in range(3):
            a(f"ds_write_b128 v{vP+i//2}, {vr(O(i)+4*j, 4)} offset:{(i&1)*9216 + (i//2-1)*3072 + j*1024}")
    a(f"v_mov_b32 v{vT1}, {L_BAD}")
    a.stamp(12)
    abar(a, vT1, vT0)
    RB = [16, 180]
    for e in range(2):
        for s in range(3):
            for j in range(3):
                a(f"ds_read_b128 {vr(RB[e]+12*s+4*j, 4)}, v{vP} offset:{e*9216 + s*3072 + j*1024}")
    a(f"s_mul_i32 s{sT2}, s{sT}, 40960")
    a(f"s_add_u32 s{sT2}, s{sT2}, {WS_O}")
    a(f"s_sub_u32 s{sT2}, s{sT2}, s{sG}")
    a(f"s_add_u32 s{sT0}, s{sPm}, s{sT2}")
    a(f"s_add_u32 s{sT1}, s{sPt}, s{sT2}")
    a(f"s_mov_b64 {sr(sBAD, 2)}, 0")
    a(f"s_mov_b32 s{sT2}, {f32bits(2.0**100):#x}")
    for e in range(2):
        A = O(e); P = 128 + 8 * e
        for s in range(3):
            a(f"s_waitcnt lgkmcnt({min(15, 18 - 9*e - 3*s - 3)})")
            for j in range(6): a(f"v_pk_add_f32 {vr(A+2*j, 2)}, {vr(A+2*j, 2)}, {vr(RB[e]+12*s+2*j, 2)}")
        a(f"v_mov_b32 v{vT0}, v{A+8}")
        a(f"v_mov_b32 v{vT2}, v{A+8}")
        a(f"v_mul_f32 v{vT1}, 0, v{A}")
        a(f"v_fmac_f32 v{vT1}, 0, v{A+1}")
        a(f"v_permlane32_swap_b32 v{vT0}, v{vT2}")
        for j in range(2, 12): a(f"v_fmac_f32 v{vT1}, 0, v{A+j}")
        a(f"v_cmp_nlt_f32 vcc, v{vT2}, s{sT2}")
        a(f"v_rcp_f32 v{vT2}, v{vT2}")
        a(f"s_or_b64 {sr(sBAD, 2)}, {sr(sBAD, 2)}, vcc")
        a(f"v_cmp_u_f32 vcc, v{vT1}, v{vT1}")
        a(f"v_mov_b32 v{vT3}, v{vT2}")
        a(f"s_or_b64 {sr(sBAD, 2)}, {sr(sBAD, 2)}, vcc")
        for j in range(6): a(f"v_pk_mul_f32 {vr(A+2*j, 2)}, {vr(A+2*j, 2)}, {vr(vT2, 2)}")
        for j in range(6): a(f"v_cvt_pk_bf16_f32 v{P+j}, v{A+2*j}, v{A+2*j+1}")
        a(f"buffer_store_dwordx4 {vr(P, 4)}, v{vKM}, {sr(SWS)}, s{sT0} offen offset:{1024*e} sc1")
        a(f"buffer_store_dwordx2 {vr(P+4, 2)}, v{vQT}, {sr(SWS)}, s{sT1} offen offset:{512*e} sc1")
    a(f"v_mov_b32 v{vT1}, {L_BAD}")
    a(f"s_lshl_b32 s{sT1}, s{sT}, 2")
    a(f"s_add_u32 s{sT1}, s{sT1}, s{sHG}")
    a(f"s_lshl_b32 s{sT1}, s{sT1}, 7")
    a(f"s_add_u32 s{sT1}, s{sT1}, {WS_F2}")
    a(f"v_mov_b32 v{vT2}, s{sNON}")
    a(f"s_cmp_eq_u64 {sr(sBAD, 2)}, 0")
    a(f"s_cselect_b32 s{sBAD}, 1, 0x10001")
    a(f"s_cmp_lg_u32 s{sMODE}, 0")
    a(f"s_cselect_b32 s{sBAD+1}, 0, 0xffff0000")
    a.stamp(13)
    a("s_waitcnt vmcnt(0)")
    a.stamp(14)
    def publish():
        L = a.uid("NOPUB")
        a(f"s_and_b32 s{sT2}, s{sT0}, s{sBAD+1}")
        a(f"s_cbranch_scc1 {L}")
        a(f"buffer_store_dword v{vT2}, v7, {sr(SWS)}, s{sT1} offen sc1")
        a.label(L)
    abar(a, vT1, vT0, f"s{sBAD}", publish)
    a(f"s_and_b32 s{sT2}, s{sT0}, s{sBAD+1}")
    a(f"s_cselect_b32 s{sMODE}, 1, s{sMODE}")
    a("s_cbranch_scc1 A_RESTART")
    a("s_setprio 0")
    final_stage(a, 0, 16, 32, 20, 21, True, 0)
    a(f"s_cmp_ge_u32 s{sW}, 6")
    a("s_cbranch_scc1 A_F1")
    final_stage(a, 256, 24, 80, 22, 23, True, 0)
    a("s_waitcnt vmcnt(0)")
    final_stage(a, 0, 16, 32, 20, 21, False, 2)
    final_stage(a, 256, 24, 80, 22, 23, False, 2)
    a.stamp(15)
    a("s_barrier")
    a.stamp(16)
    final_stage(a, 0, 16, 32, 20, 21, False, 1)
    final_stage(a, 256, 24, 80, 22, 23, False, 1)
    final_stage(a, 0, 16, 32, 20, 21, False, 11)
    final_stage(a, 256, 24, 80, 22, 23, False, 3)
    a.end()
    a.label("A_F1")
    a("s_waitcnt vmcnt(0)")
    final_stage(a, 0, 16, 32, 20, 21, False, 2)
    a.stamp(15)
    a("s_barrier")
    a.stamp(16)
    final_stage(a, 0, 16, 32, 20, 21, False, 1)
    final_stage(a, 0, 16, 32, 20, 21, False, 3)
    a.end()
    a.label("A_TRUEMAX")
    M = S[2]
    for i in range(8): a(f"v_mov_b32 v{M+i}, 0xff800000")
    a(f"s_sub_u32 s{sT2}, s{sKV}, {KV_REC}")
    a(f"s_mov_b32 s{sCNT}, 16")
    TK, TT = S[1], S[1] + 4
    a.label("A_TM_LOOP")
    a(f"buffer_load_dwordx4 {vr(TK, 4)}, v{vKM}, {sr(SWS)}, s{sT2} offen sc1")
    a(f"buffer_load_dwordx2 {vr(TT, 2)}, v{vKT}, {sr(SWS)}, s{sT2} offen sc1")
    a("s_waitcnt vmcnt(0)")
    for i in range(8):
        a(f"v_mfma_f32_32x32x16_bf16 {vr(S[0], 16)}, {vr(TK, 4)}, {vr(QM(i), 4)}, 0")
        a(f"v_mfma_f32_32x32x8_bf16 {vr(S[0], 16)}, {vr(TT, 2)}, {vr(QT(i), 2)}, {vr(S[0], 16)}")
        a("s_nop 11")
        for j in range(0, 16, 2): a(f"v_max3_f32 v{M+i}, v{M+i}, v{S[0]+j}, v{S[0]+j+1}")
    a(f"s_add_u32 s{sT2}, s{sT2}, {KV_REC}")
    a(f"s_sub_u32 s{sCNT}, s{sCNT}, 1")
    a(f"s_cmp_lg_u32 s{sCNT}, 0")
    a("s_cbranch_scc1 A_TM_LOOP")
    for i in range(8):
        halfop(a, "v_max_f32", M + i, vT0)
        a(f"v_add_u32 v{vT1}, {L_OP - L_MREC}, v{vP+i//2}")
        a(f"ds_write_b32 v{vT1}, v{M+i} offset:{(i//2)*2048 + (i&1)*256}")
    a(f"v_mov_b32 v{vT1}, {L_BAD}")
    abar(a, vT1, vT0)
    a(f"v_add_u32 v{vT1}, {L_OP - L_MREC}, v{vP}")
    for e in range(2):
        for s in range(1, 4): a(f"ds_read_b32 v{S[0]+4*e+s}, v{vT1} offset:{s*2048 + e*256}")
    a("s_waitcnt lgkmcnt(0)")
    for e in range(2):
        a(f"v_max3_f32 v{M+e}, v{M+e}, v{S[0]+4*e+1}, v{S[0]+4*e+2}")
        a(f"v_max_f32 v{M+e}, v{M+e}, v{S[0]+4*e+3}")
    a("s_branch A_HAVEMAX")

def gen_ffn(a):
    vL, vL16, vTR = 1, 2, 3
    vD = 8
    vT0, vT1 = 14, 15
    F = lambda t: 16 + 16 * t
    WO = lambda k: 96 + 20 * k
    HB = lambda u: 216 + 4 * u
    sCOL = 63
    def dma_piece(p, slot, vd):
        a(f"s_add_u32 m0, s{sM0}, {slot*5120 + p*1024}")
        a("s_nop 0")
        a(f"buffer_load_dwordx4 v{vd+p}, {sr(SA)}, s{sSO} offen lds")
    def trr(dst, slot, t):
        a(f"ds_read_b64_tr_b16 {vr(dst+4*t, 2)}, v{vTR} offset:{slot*5120 + 64*t}")
        a(f"ds_read_b64_tr_b16 {vr(dst+4*t+2, 2)}, v{vTR} offset:{slot*5120 + 64*t + 2560}")
    def hload(u):
        a(f"buffer_load_dwordx4 {vr(HB(u), 4)}, v{vL16}, {sr(SWS)}, s{sHO} offen sc1")
        a(f"s_add_u32 s{sHO}, s{sHO}, 1024")
    def wo_rows(row):
        a(f"s_mul_i32 s{sSO}, s{sQ}, {160*1280}")
        a(f"s_add_u32 s{sSO}, s{sSO}, s{sCOL}")
        if row: a(f"s_add_u32 s{sSO}, s{sSO}, {row*1280}")
    a(f"v_lshrrev_b32 v{vT0}, 5, v{vL}")
    a(f"v_bfe_u32 v{vT1}, v{vL}, 2, 2")
    a(f"v_lshl_add_u32 v{vT0}, v{vT0}, 2, v{vT1}")
    a(f"v_mul_u32_u24 v{vTR}, 320, v{vT0}")
    a(f"v_bfe_u32 v{vT0}, v{vL}, 4, 1")
    a(f"v_lshl_add_u32 v{vTR}, v{vT0}, 5, v{vTR}")
    a(f"v_and_b32 v{vT0}, 3, v{vL}")
    a(f"v_lshl_add_u32 v{vTR}, v{vT0}, 3, v{vTR}")
    a(f"s_mul_i32 s{sT0}, s{sQ}, 5120")
    a(f"s_add_u32 s{sT0}, s{sT0}, {WO_STAGE[0]}")
    a(f"v_add_u32 v{vT1}, s{sT0}, v{vTR}")
    for i in range(3):
        va, off = (vT1, WO_STAGE[i] - WO_STAGE[0])
        for t in range(5):
            a(f"ds_read_b64_tr_b16 {vr(WO(3+i)+4*t, 2)}, v{va} offset:{off + 64*t}")
            a(f"ds_read_b64_tr_b16 {vr(WO(3+i)+4*t+2, 2)}, v{va} offset:{off + 64*t + 2560}")
    for p in range(5): a(f"v_mov_b32 v{vD+p}, v{vWD+p}")
    a(f"s_mul_i32 s{sM0}, s{sQ}, {RING_ST}")
    a(f"v_add_u32 v{vTR}, s{sM0}, v{vTR}")
    p2_ids(a)
    a(f"s_mul_i32 s{sCOL}, s{sHG}, 320")
    srd(a, SA, pW2, 1728 * 1280)
    a(f"s_mul_i32 s{sSO}, s{sQ}, {27*16*1280}")
    a(f"s_add_u32 s{sSO}, s{sSO}, s{sCOL}")
    a(f"s_mov_b32 s{sSTEP}, {16*1280}")
    SL = lambda j: j & 3
    NPRE = optv("npre", 4)
    def fill(js):
        for j in js:
            for p in range(5): dma_piece(p, SL(j), vD)
            a(f"s_add_u32 s{sSO}, s{sSO}, s{sSTEP}")
    fill(range(NPRE))
    a.stamp(7)
    p2_sync(a, True, 5 * NPRE)
    for r in range(F(0), F(5)): a(f"v_mov_b32 v{r}, 0")
    fill(range(NPRE, 4))
    a.stamp(8)
    a(f"s_mul_i32 s{sT0}, s{sQ}, 27")
    a(f"s_mul_i32 s{sT0}, s{sT0}, 26")
    a(f"s_lshr_b32 s{sT0}, s{sT0}, 8")
    a(f"s_add_u32 s{sT0}, s{sT0}, 4")
    a(f"v_min_u32 v{vT0}, 3, v{vL}")
    a(f"v_add_u32 v{vT0}, s{sT0}, v{vT0}")
    a(f"v_min_u32 v{vT0}, 14, v{vT0}")
    a(f"v_lshlrev_b32 v{vT0}, 7, v{vT0}")
    a(f"s_lshr_b32 s{sT2}, s{sT}, 2")
    a(f"s_lshl_b32 s{sT2}, s{sT2}, 11")
    a(f"s_add_u32 s{sT2}, s{sT2}, {WS_F1}")
    a(f"s_mul_i32 s{sHO}, s{sQ}, {27*1024}")
    a(f"s_add_u32 s{sHO}, s{sHO}, s{sG}")
    a(f"s_add_u32 s{sHO}, s{sHO}, {20*2048}")
    poll(a, vT0, vT1, sT2, 4)
    a.stamp(9)
    for u in range(4): hload(u)
    for t in range(5): trr(WO(0), SL(0), t)
    a(f"s_mov_b32 s{sCNT}, 0")
    a("s_waitcnt vmcnt(0)")
    a.stamp(10); a.stamp(NSTAMP + 2, True)
    a.raw(".p2align 3")
    a.label("F_LOOP")
    for u in range(4):
        if u == 3:
            a(f"s_cmp_eq_u32 s{sCNT}, 6")
            a("s_cbranch_scc1 F_DONE")
            a(f"s_cmp_lg_u32 s{sCNT}, 5")
            a("s_cbranch_scc1 F_NS")
            srd(a, SA, pWO, 640 * 1280)
            wo_rows(0)
            a(f"s_mov_b32 s{sSTEP}, {20*1280}")
            a(f"s_mov_b32 s{sHO}, 0x40000000")
            a.label("F_NS")
        a("s_waitcnt vmcnt(13) lgkmcnt(0)")
        for t in range(5):
            a(f"v_mfma_f32_32x32x16_bf16 {vr(F(t), 16)}, {vr(WO(0)+4*t, 4)}, {vr(HB(u), 4)}, {vr(F(t), 16)}")
            trr(WO(0), SL(u + 1), t)
            dma_piece(t, SL(u), vD)
        a(f"s_add_u32 s{sSO}, s{sSO}, s{sSTEP}")
        hload(u)
    a(f"s_add_u32 s{sCNT}, s{sCNT}, 1")
    a("s_branch F_LOOP")
    a.label("F_DONE")
    a.stamp(11); a.stamp(NSTAMP + 3, True)
    a("s_waitcnt vmcnt(13) lgkmcnt(0)")
    for t in range(5):
        trr(WO(1), SL(28), t)
        dma_piece(t, SL(27), vD)
    for p in range(5):
        a(f"v_add_u32 v{vT0}, {64*p}, v{vL}")
        a(f"v_mul_u32_u24 v{vT0}, 3277, v{vT0}")
        a(f"v_lshrrev_b32 v{vT0}, 18, v{vT0}")
        a(f"v_mul_u32_u24 v{vT0}, {16*1280}, v{vT0}")
        a(f"v_add_u32 v{vD+p}, v{vD+p}, v{vT0}")
    wo_rows(16)
    a("s_waitcnt vmcnt(12) lgkmcnt(0)")
    for t in range(5):
        trr(WO(2), SL(29), t)
        dma_piece(t, SL(28), vD)
    a(f"s_add_u32 s{sSO}, s{sSO}, {80*1280}")
    a("s_waitcnt lgkmcnt(0)")
    for t in range(5): dma_piece(t, SL(29), vD)
    final_stage(a, 0, 4, 96, 8, 9, True, 0)
    a(f"v_and_b32 v{vT0}, 31, v{vL}")
    a(f"v_mul_u32_u24 v{vT0}, 656, v{vT0}")
    a(f"v_lshrrev_b32 v{vT1}, 5, v{vL}")
    a(f"v_lshl_add_u32 v{vT0}, v{vT1}, 4, v{vT0}")
    a(f"v_add_u32 v10, s{sM0}, v{vT0}")
    a(f"s_lshl_b32 s{sT0}, s{sT}, 2")
    a(f"s_add_u32 s{sT0}, s{sT0}, s{sQ}")
    a(f"s_mul_i32 s{sHO}, s{sT0}, 10240")
    a(f"s_add_u32 s{sHO}, s{sHO}, {WS_O}")
    a(f"s_lshl_b32 s{sSO}, s{sT0}, 7")
    a(f"s_add_u32 s{sSO}, s{sSO}, {WS_F2}")
    a(f"v_mov_b32 v11, 0")
    a.stamp(13)
    a(f"s_add_u32 s{sT0}, s{sHO}, 4096")
    a(f"s_add_u32 s{sT1}, s{sHO}, 8192")
    poll(a, 11, vT0, sSO, 2)
    a.stamp(14)
    order = [0, 1, 2, 5, 6, 7, 3, 4, 8, 9]
    for k in order:
        so = (sHO, sT0, sT1)[k // 4]
        a(f"buffer_load_dwordx4 {vr(HB(k), 4)}, v{vL16}, {sr(SWS)}, s{so} offen offset:{(k%4)*1024} sc1")
    for n, k in enumerate(order):
        w = WO(n) if n < 6 else WO(n - 6)
        if n >= 6: a(f"s_waitcnt vmcnt({9-n}) lgkmcnt({min(15, 10*(9-n))})")
        else: a(f"s_waitcnt vmcnt({9-n})")
        for t in range(5):
            a(f"v_mfma_f32_32x32x16_bf16 {vr(F(t), 16)}, {vr(w+4*t, 4)}, {vr(HB(k), 4)}, {vr(F(t), 16)}")
            if n < 4: trr(WO(n), SL(30 + n), t)
    final_stage(a, 0, 4, 176, 8, 9, False, 2)
    a.stamp(15)
    for t in range(5):
        for g in range(4):
            a(f"ds_write_b128 v10, {vr(F(t)+4*g, 4)} offset:{128*t + 32*g}")
    a("s_waitcnt lgkmcnt(0)")
    a("s_barrier")
    a.stamp(16)
    final_stage(a, 0, 4, 176, 8, 9, False, 1)
    final_stage(a, 0, 4, 176, 8, 9, False, 3)
    a.end()
```

```python
import sys, struct, math

NAME = "parallel_sum__grouped_kv_mqa__dense_activation_relu__prompt"
def opt(name): return ("--" + name) in sys.argv
def optv(name, d): return int(sys.argv[sys.argv.index("--" + name) + 1]) if opt(name) else d
G_TSTRIDE = 75 * 2048
WS_G = 0
WS_KV = 64 * G_TSTRIDE
KV_REC = 3072
WS_O = (WS_KV + 66 * KV_REC + 4095) // 4096 * 4096
WS_RP = WS_O + 64 * 40 * 1024
WS_CP = WS_RP + 64 * 5120
WS_F1 = WS_CP + 64 * 5120
WS_F2 = WS_F1 + 256 * 128
WS_PROF = WS_F2 + 256 * 128
PROFILE = opt("prof")
NSTAMP = 18
WS_END = WS_PROF + (256 * 8 * 256 if PROFILE else 0)
OOB = 0x80000000
QSCALE = math.log2(math.e) / math.sqrt(20.0)
SPIN = 0x40000
PUBIT = 3 if optv("rot", 3) == 3 else 2

def f32bits(x): return struct.unpack("<I", struct.pack("<f", x))[0]

class Asm:
    def __init__(self): self.lines = []; self.n = 0
    def __call__(self, s): self.lines.append("    " + s)
    def label(self, s): self.lines.append(s + ":")
    def raw(self, s): self.lines.append(s)
    def c(self, s): self.lines.append("    ; " + s)
    def uid(self, p): self.n += 1; return f"{p}_{self.n}"
    def stamp(self, i, cyc=False):
        if PROFILE:
            self(f"s_memtime s[100:101]" if cyc else "s_memrealtime s[100:101]")
            self("s_waitcnt lgkmcnt(0)")
            self(f"s_mov_b32 s{64+i}, s100")
    def lstamp(self, slane):
        if PROFILE:
            self("s_memrealtime s[100:101]")
            self("s_waitcnt lgkmcnt(0)")
            self(f"s_mov_b32 m0, s{slane}")
            self("v_writelane_b32 v232, s100, m0")
    def ldump(self):
        if PROFILE:
            self(f"s_lshl_b32 s100, s2, 3")
            self(f"s_add_u32 s100, s100, s{sW}")
            self(f"s_lshl_b32 s100, s100, 8")
            self(f"s_add_u32 s100, s100, {WS_PROF+128}")
            self("v_lshlrev_b32 v233, 2, v1")
            self("s_mov_b64 exec, 0xffff")
            self(f"buffer_store_dword v232, v233, s[{SWS}:{SWS+3}], s100 offen")
            self("s_mov_b64 exec, -1")
    def end(self):
        if PROFILE:
            self("s_waitcnt vmcnt(0)")
            self.stamp(NSTAMP - 1)
            self(f"s_lshl_b32 s3, s2, 3")
            self(f"s_add_u32 s3, s3, s{sW}")
            self(f"s_lshl_b32 s3, s3, 8")
            self(f"s_add_u32 s3, s3, {WS_PROF}")
            self("s_mov_b64 exec, 1")
            self("v_mov_b32 v1, 0")
            for i in range(NSTAMP + 4):
                self(f"v_mov_b32 v2, s{64+i}")
                self(f"buffer_store_dword v2, v1, s[{SWS}:{SWS+3}], s3 offen offset:{4*i}")
        self("s_endpgm")
    def text(self): return "\n".join(self.lines) + "\n"

def vr(b, n=1): return f"v{b}" if n == 1 else f"v[{b}:{b+n-1}]"
def sr(b, n=4): return f"s{b}" if n == 1 else f"s[{b}:{b+n-1}]"
def srd(a, d, p, size):
    a(f"s_mov_b32 s{d}, s{p}")
    a(f"s_mov_b32 s{d+1}, s{p+1}")
    a(f"s_mov_b32 s{d+2}, {size}")
    a(f"s_mov_b32 s{d+3}, 0x00020000")
def csel(a, d, t, f):
    a(f"s_mov_b32 s{d}, {f}")
    a(f"s_cmov_b32 s{d}, {t}")
def split3(a, src, t0, t1, d0, d1):
    a(f"v_and_b32 v{t0}, 0xffff0000, v{src}")
    a(f"v_sub_f32 v{t1}, v{src}, v{t0}")
    a(f"v_lshrrev_b32 v{d0}, 16, v{src}")
    a(f"v_and_b32 v{t0}, 0xffff0000, v{t1}")
    a(f"v_or_b32 v{d0}, v{d0}, v{t0}")
    a(f"v_sub_f32 v{t1}, v{t1}, v{t0}")
    a(f"v_lshrrev_b32 v{d1}, 16, v{t1}")
def halfop(a, op, r, t):
    a(f"v_mov_b32 v{t}, v{r}")
    a("s_nop 1")
    a(f"v_permlane32_swap_b32 v{t}, v{r}")
    a(f"{op} v{r}, v{r}, v{t}")

SWS, SA, SB, SX, SDBG = 4, 8, 12, 16, 20
sW, sNON = 24, 25
sT0, sT1, sT2 = 29, 30, 31
pX, pWQ, pWK, pWV, pWO, pW1, pW2, pOUT, pDBG, pWS = 32, 34, 36, 38, 40, 44, 46, 48, 50, 52
sRB, sCG, sTT = 26, 27, 28
sWST, sSO, sSTEP, sM0, sC, sDEL, sCC, sOUT, sLO, sQS = range(54, 64)
sT3, sONE, sST, sSPIN = 96, 97, 98, 99
sSI = 3
sT, sHG, sQ = 26, 27, 28
sG, sMODE, sKV, sCNT, sOB, sHO = 54, 58, 59, 60, 61, 62
sPm, sPt, sBAD = 34, 42, 38

def poll(a, vaddr, vtmp, soff, sleep=1):
    L, D = a.uid("POLL"), a.uid("POLLED")
    a(f"s_mov_b32 s{sSPIN}, {SPIN}")
    a.label(L)
    a(f"buffer_load_dword v{vtmp}, v{vaddr}, {sr(SWS)}, s{soff} offen sc1")
    a("s_waitcnt vmcnt(0)")
    a(f"v_cmp_ne_u32 vcc, s{sNON}, v{vtmp}")
    a(f"s_cbranch_vccz {D}")
    a(f"s_sleep {sleep}")
    a(f"s_sub_u32 s{sSPIN}, s{sSPIN}, 1")
    a(f"s_cmp_lg_u32 s{sSPIN}, 0")
    a(f"s_cbranch_scc1 {L}")
    a.label(D)

K1_SLOT = 36864
K1_XOFF = 20480
K1_CS = 155648
K1_ST = K1_CS + 2560

WO_STAGE = [83968, 110592, 131072]
vWD = 240
sPB = 93
def gen_p1(a, p2_ffn, p2_att):
    vL, vN, vH, vT0, vT1, vT2 = 1, 2, 3, 4, 5, 6
    vZ = 7
    vX = 8
    vTR = 12
    vD = 16
    vNON = 21
    vROW = 22
    vSA = 24
    vG16, vC4 = 26, 27
    FB = [28, 32]
    FA = [36, 48]
    ACC = 64
    PUB = 112
    GAT = 160
    a(f"s_cmp_ge_u32 s2, 256")
    a("s_cbranch_scc1 L_END")
    a("s_load_dwordx16 s[32:47], s[0:1], 0")
    a("s_load_dwordx4 s[48:51], s[0:1], 64")
    a("s_load_dwordx2 s[52:53], s[0:1], 80")
    a("s_memrealtime s[100:101]")
    a(f"v_lshrrev_b32 v{vT0}, 6, v0")
    a(f"v_and_b32 v{vL}, 63, v0")
    a(f"v_readfirstlane_b32 s{sW}, v{vT0}")
    rbits = optv("rbits", 2)
    cb = rbits - 1
    a(f"s_bfe_u32 s{sRB}, s2, {((3-cb) << 16) | cb:#x}")
    a(f"s_lshl_b32 s{sRB}, s{sRB}, {rbits}")
    a(f"s_bfe_u32 s{sT0}, s2, {(rbits << 16) | 3:#x}")
    a(f"s_add_u32 s{sRB}, s{sRB}, s{sT0}")
    a(f"s_and_b32 s{sCG}, s2, {(1 << cb) - 1}")
    a(f"s_lshl_b32 s{sCG}, s{sCG}, {5-rbits}")
    a(f"s_lshr_b32 s{sT0}, s2, {3+rbits}")
    a(f"s_add_u32 s{sCG}, s{sCG}, s{sT0}")
    a(f"s_and_b32 s{sTT}, s{sW}, 3")
    a(f"s_mul_i32 s{sST}, s{sRB}, 3")
    a(f"s_add_u32 s{sST}, s{sST}, s{sCG}")
    a(f"s_mul_i32 s{sT0}, s{sST}, 26")
    a(f"s_lshr_b32 s{sT0}, s{sT0}, 8")
    a(f"s_mul_i32 s{sT0}, s{sT0}, 10")
    a(f"s_sub_u32 s{sST}, s{sST}, s{sT0}")
    rot = optv("rot", 3)
    if rot == 10:
        a(f"s_mov_b32 s{sCC}, s{sST}")
    elif rot == 5:
        a(f"s_and_b32 s{sCC}, s{sST}, 14")
    elif rot == 3:
        a(f"s_mul_i32 s{sCC}, s{sST}, 86")
        a(f"s_lshr_b32 s{sCC}, s{sCC}, 8")
        a(f"s_min_u32 s{sCC}, s{sCC}, 2")
        a(f"s_mul_i32 s{sCC}, s{sCC}, 3")
    a(f"s_sub_u32 s{sSI}, s{sST}, s{sCC}")
    a(f"s_max_u32 s95, s{sSI}, 1")
    a(f"s_lshl_b32 s{sT0}, s{sRB}, 2")
    a(f"s_add_u32 s{sT3}, s{sT0}, s{sTT}")
    a(f"v_mov_b32 v{vZ}, 0")
    a(f"s_cmp_ge_u32 s{sW}, 4")
    a("s_cbranch_scc1 P1_B")
    a(f"s_cmp_eq_u32 s{sCG}, 15")
    a("s_cbranch_scc1 P1_KA")

    def common_setup():
        srd(a, SWS, pWS, WS_END)
        srd(a, SDBG, pDBG, 256)
        a(f"s_mov_b32 s{sONE}, 0x3f803f80")
        a(f"v_and_b32 v{vN}, 31, v{vL}")
        a(f"v_lshrrev_b32 v{vH}, 5, v{vL}")
        a(f"v_bfe_u32 v{vT0}, v{vL}, 1, 3")
        a(f"v_xor_b32 v{vT0}, v{vT0}, v{vH}")
        a(f"s_lshl_b32 s{sT0}, s{sTT}, 12")
        a(f"s_add_u32 s{sT0}, s{sT0}, {K1_XOFF}")
        a(f"v_lshl_add_u32 v{vT1}, v{vN}, 7, s{sT0}")
        for s in range(4):
            a(f"v_xor_b32 v{vT2}, {2*s}, v{vT0}")
            a(f"v_lshl_add_u32 v{vX+s}, v{vT2}, 4, v{vT1}")
        a(f"v_bfe_u32 v{vT0}, v{vL}, 2, 2")
        a(f"v_lshl_add_u32 v{vROW}, v{vH}, 3, v{vT0}")
        a(f"v_bfe_u32 v{vG16}, v{vL}, 4, 1")
        a(f"v_and_b32 v{vC4}, 3, v{vL}")
        a(f"s_mul_i32 s{sOUT}, s{sT3}, {G_TSTRIDE}")
        a(f"s_mul_i32 s{sT0}, s{sCG}, 10240")
        a(f"s_add_u32 s{sOUT}, s{sOUT}, s{sT0}")
        a(f"s_cmp_lt_u32 s{sCG}, 4")
        a(f"s_cselect_b32 s{sLO}, 0x80008000, 0")
        a(f"s_cselect_b32 s{sQS}, {f32bits(QSCALE):#x}, 1.0")

    def x_dma_setup():
        a(f"s_lshl_b32 s{sT0}, s{sT3}, 5")
        a(f"v_lshrrev_b32 v{vT0}, 3, v{vL}")
        a(f"v_add_u32 v{vT0}, s{sT0}, v{vT0}")
        a(f"v_mul_u32_u24 v{vT0}, 1280, v{vT0}")
        a(f"v_lshrrev_b32 v{vT1}, 4, v{vL}")
        a(f"v_and_b32 v{vT2}, 7, v{vL}")
        a(f"v_xor_b32 v{vT1}, v{vT1}, v{vT2}")
        a(f"v_lshl_add_u32 v{vD}, v{vT1}, 4, v{vT0}")
        a(f"v_xor_b32 v{vT1}, 4, v{vT1}")
        a(f"v_lshl_add_u32 v{vD+1}, v{vT1}, 4, v{vT0}")
        a(f"v_add_u32 v{vD+1}, {8*1280}, v{vD+1}")
        a(f"v_add_u32 v{vD+2}, {16*1280}, v{vD}")
        a(f"v_add_u32 v{vD+3}, {16*1280}, v{vD+1}")
        a(f"s_lshl_b32 s{sSO}, s{sCC}, 7")
        a(f"s_mov_b32 s{sSTEP}, 128")
        a(f"s_lshl_b32 s{sM0}, s{sTT}, 12")
        a(f"s_add_u32 s{sM0}, s{sM0}, {K1_XOFF}")
        a("s_waitcnt lgkmcnt(0)")
        srd(a, SX, pX, 2048 * 1280)

    def w_dma_setup():
        a(f"s_sub_u32 s{sT0}, s{sCG}, 4")
        a(f"s_cmp_lt_u32 s{sCG}, 4")
        csel(a, sWST, 1280, 3456)
        a(f"s_cselect_b32 s{sT0}, s{sCG}, s{sT0}")
        a(f"s_mul_i32 s{sT0}, s{sT0}, 320")
        a(f"s_lshl_b32 s{sT1}, s{sCC}, 2")
        a(f"s_add_u32 s{sT1}, s{sT1}, s{sW}")
        a(f"s_lshl_b32 s{sT1}, s{sT1}, 4")
        a(f"s_mul_i32 s{sT1}, s{sT1}, s{sWST}")
        a(f"s_add_u32 s{sSO}, s{sT0}, s{sT1}")
        a(f"s_sub_u32 s{sT2}, s{sWST}, 320")
        for p in range(5):
            a(f"v_add_u32 v{vT0}, {64*p}, v{vL}")
            a(f"v_mul_u32_u24 v{vT1}, 3277, v{vT0}")
            a(f"v_lshrrev_b32 v{vT1}, 16, v{vT1}")
            a(f"v_lshlrev_b32 v{vT0}, 4, v{vT0}")
            a(f"v_mad_u32_u24 v{vD+p}, v{vT1}, s{sT2}, v{vT0}")
        a(f"s_lshl_b32 s{sSTEP}, s{sWST}, 6")
        a(f"s_mul_i32 s{sM0}, s{sW}, 5120")
        a(f"s_cmp_lt_u32 s{sCG}, 4")
        a("s_waitcnt lgkmcnt(0)")
        a(f"s_cselect_b32 s{SA}, s{pWQ}, s{pW1}")
        a(f"s_cselect_b32 s{SA+1}, s{pWQ+1}, s{pW1+1}")
        csel(a, SA + 2, 640 * 640 * 2, 640 * 1728 * 2)
        a(f"s_mov_b32 s{SA+3}, 0x00020000")

    def tr_addr(dst, tile):
        a(f"s_cmp_lt_u32 s{sCG}, 4")
        if tile == 4:
            a(f"s_cselect_b32 s{sT0}, 32, 256" if False else f"s_cselect_b32 s{sT0}, 32, 0x100")
            a(f"s_cselect_b32 s{sT1}, 160, 32")
            a(f"s_cselect_b32 s{sT2}, 40, 8")
            a(f"v_mad_u32_u24 v{dst}, v{vC4}, s{sT2}, v{vROW}")
        else:
            a(f"s_cselect_b32 s{sT1}, 40, 32")
            if isinstance(tile, tuple):
                a(f"s_lshl_b32 s{sT0}, s{sT1}, 1")
                a(f"s_mul_i32 s{sT0}, s{sT0}, s{tile[1]}")
            else:
                a(f"s_mul_i32 s{sT0}, s{sT1}, {2*tile}")
            a(f"v_lshl_add_u32 v{dst}, v{vC4}, 3, v{vROW}")
        a(f"v_mad_u32_u24 v{dst}, v{vG16}, s{sT1}, v{dst}")
        a(f"v_add_u32 v{dst}, s{sT0}, v{dst}")

    def body(tag, role, kv):
        nt = 1 if kv else (3 if role == "A" else 2)
        tiles = [0 if role == "A" else 1] if kv else ([0, 1, 2] if role == "A" else [3, 4])
        sstr, rstr = (1024, 40) if kv else (5120, 320)
        ndma = 4 if role == "B" else (2 if kv else 5)
        ng = 5
        def piece(p, nop=True):
            if role == "A" and kv:
                a(f"s_add_u32 m0, s{sM0}, {4096*p}")
                a("s_nop 0")
                a(f"buffer_load_dwordx4 v{vD}, {sr(SA if p == 0 else SB)}, s{sSO} offen lds")
            else:
                a(f"s_add_u32 m0, s{sM0}, {1024*p}")
                a("s_nop 0")
                a(f"buffer_load_dwordx4 v{vD+p}, {sr(SX if role == 'B' else SA)}, s{sSO} offen lds")
        def advance():
            a(f"s_mul_i32 s{sT0}, s{sSTEP}, -9")
            a(f"s_add_u32 s{sCC}, s{sCC}, 1")
            a(f"s_cmp_eq_u32 s{sCC}, 10")
            a(f"s_cselect_b32 s{sCC}, 0, s{sCC}")
            a(f"s_cselect_b32 s{sT0}, s{sT0}, s{sSTEP}")
            a(f"s_add_u32 s{sSO}, s{sSO}, s{sT0}")
        def dma_next():
            for p in range(ndma): piece(p)
            advance()
            a(f"s_add_u32 s{sM0}, s{sM0}, {K1_SLOT}")
        if PROFILE: a("s_mov_b32 s64, s100")
        a.stamp(1)
        dma_next()
        common_setup()
        if role == "A":
            L = a.uid("NONCE")
            a(f"s_or_b32 s{sT0}, s2, s{sW}")
            a(f"s_cbranch_scc1 {L}")
            if PROFILE: a("s_or_b32 s100, s65, 1")
            else: a("s_or_b32 s100, s100, 1")
            a(f"v_mov_b32 v{vT0}, s100")
            a(f"buffer_store_dword v{vT0}, v{vZ}, {sr(SDBG)}, 0 offen sc1")
            a.label(L)
        dma_next()
        if kv:
            a(f"v_lshl_add_u32 v{vT0}, v{vG16}, 2, v{vC4}")
            a(f"v_min_u32 v{vT0}, 4, v{vT0}")
            a(f"v_mul_u32_u24 v{vROW}, 40, v{vROW}")
            a(f"v_lshl_add_u32 v{vSA}, v{vT0}, 3, v{vROW}")
            a(f"v_add_u32 v{vSA+1}, 4096, v{vSA}")
            a(f"v_mov_b32 v{vTR}, v{vSA + tiles[0]}")
        else:
            a(f"v_mul_u32_u24 v{vROW}, 320, v{vROW}")
            for i, t in enumerate(tiles): tr_addr(vTR + i, t)
            if role == "A":
                tr_addr(vSA, ("s", sW)); tr_addr(vSA + 1, 4)
        if role == "A":
            a(f"s_mul_i32 s{sT0}, s{sSI}, {K1_SLOT}")
            a(f"v_add_u32 v{vSA}, s{sT0}, v{vSA}")
            a(f"v_add_u32 v{vSA+1}, s{sT0}, v{vSA+1}")
        dma_next()
        if kv:
            a(f"s_lshl_b32 s{sT0}, s{sRB}, 3")
            a(f"s_add_u32 s{sT0}, s{sT0}, s{sW}")
            srd(a, 88, pWO, 640 * 1280)
            a(f"s_mul_i32 s{sT1}, s{sT0}, {50*128}")
            a(f"v_lshlrev_b32 v{vT0}, 7, v{vL}")
            a(f"buffer_load_dword v230, v{vT0}, s[88:91], s{sT1} offen")
        for i in range(16 * nt): a(f"v_mov_b32 v{ACC+i}, 0")
        for i in range(4): a(f"v_mov_b32 v{PUB+i}, 0")
        if role == "A":
            for p in range(5):
                a(f"v_add_u32 v{vT0}, {64*p}, v{vL}")
                a(f"v_mul_u32_u24 v{vT1}, 3277, v{vT0}")
                a(f"v_lshrrev_b32 v{vT1}, 16, v{vT1}")
                a(f"v_lshlrev_b32 v{vT0}, 4, v{vT0}")
                a(f"v_mul_u32_u24 v{vWD+p}, 960, v{vT1}")
                a(f"v_add_u32 v{vWD+p}, v{vWD+p}, v{vT0}")
        if role == "B":
            a(f"s_mul_i32 s{sPB}, s{sT3}, 5120")
            a(f"s_add_u32 s{sPB}, s{sPB}, {WS_RP}")
        else:
            a(f"s_lshl_b32 s{sPB}, s{sCG}, 2")
            a(f"s_add_u32 s{sPB}, s{sPB}, s{sW}")
            a(f"s_mul_i32 s{sPB}, s{sPB}, 5120")
            a(f"s_add_u32 s{sPB}, s{sPB}, {WS_CP}")
        a(f"s_waitcnt vmcnt({2*ndma + (1 if kv else 0)})")
        a.stamp(2)
        a("s_barrier")
        a(f"ds_read_b128 {vr(FB[0], 4)}, v{vX}")
        for i in range(nt):
            a(f"ds_read_b64_tr_b16 {vr(FA[0]+4*i, 2)}, v{vTR+i}")
            a(f"ds_read_b64_tr_b16 {vr(FA[0]+4*i+2, 2)}, v{vTR+i} offset:{4*rstr}")
        a(f"buffer_load_dword v{vNON}, v{vZ}, {sr(SDBG)}, 0 offen sc1")
        a(f"s_mov_b32 s{sC}, 0")
        a.stamp(3); a.stamp(NSTAMP, True)
        a.raw(".p2align 3")
        a.label(f"P1_L{tag}")
        a(f"s_cmp_eq_u32 s{sC}, s{sSI}")
        a(f"s_cbranch_scc1 P1_ST{tag}")
        a.label(f"P1_M{tag}")
        slots = [(s, i) for s in range(3) for i in range(nt)]
        where = {}
        for p in range(ndma):
            where.setdefault(slots[(p * len(slots)) // ndma + (1 if (role == "B" and not kv) else 0)], []).append(p)
        def step(s, pre=None):
            p, q, ns = s & 1, (s + 1) & 1, (s + 1) & 3
            for i in range(nt):
                if pre is None:
                    a(f"s_waitcnt lgkmcnt({2*(nt-1-i) + ((1 + 2*i) if i else 0)})")
                a(f"v_mfma_f32_32x32x16_bf16 {vr(ACC+16*i, 16)}, {vr(FA[p]+4*i, 4)}, {vr(FB[p], 4)}, {vr(ACC+16*i, 16)}")
                if i == 0:
                    if pre is not None: pre()
                    a(f"ds_read_b128 {vr(FB[q], 4)}, v{vX+ns}")
                a(f"ds_read_b64_tr_b16 {vr(FA[q]+4*i, 2)}, v{vTR+i} offset:{ns*sstr}")
                a(f"ds_read_b64_tr_b16 {vr(FA[q]+4*i+2, 2)}, v{vTR+i} offset:{ns*sstr+4*rstr}")
                for pp in where.get((s, i), []): piece(pp)
        for s in range(3): step(s)
        advance()
        a(f"s_and_b32 s{sT0}, s{sC}, 3")
        a(f"s_cmp_eq_u32 s{sT0}, 0")
        csel(a, sT1, -3*K1_SLOT, K1_SLOT)
        a(f"s_add_u32 s{sM0}, s{sM0}, s{sT1}")
        a(f"s_cmp_eq_u32 s{sT0}, 3")
        csel(a, sDEL, -3*K1_SLOT, K1_SLOT)
        for s in range(4): a(f"v_add_u32 v{vX+s}, s{sDEL}, v{vX+s}")
        for i in range(nt): a(f"v_add_u32 v{vTR+i}, s{sDEL}, v{vTR+i}")
        a(f"s_cmp_ge_u32 s{sC}, 7")
        a("s_waitcnt lgkmcnt(0)")
        def pre():
            a(f"s_cbranch_scc1 P1_W0{tag}")
            a(f"s_waitcnt vmcnt({2*ndma})")
            a.label(f"P1_W0{tag}")
            a(f"s_waitcnt vmcnt({2*ndma + ng + 1})")
            a("s_barrier")
        step(3, pre)
        a(f"s_cmp_ge_u32 s{sC}, 6")
        a(f"s_cbranch_scc1 P1_ND{tag}")
        a(f"s_cmp_eq_u32 s{sC}, s95")
        a(f"s_cbranch_scc1 P1_PUB{tag}")
        a.label(f"P1_NX{tag}")
        a.lstamp(sC)
        a(f"s_add_u32 s{sC}, s{sC}, 1")
        a(f"s_branch P1_L{tag}")
        a.label(f"P1_ST{tag}")
        if role == "B":
            for s in range(4): a(f"ds_read_b128 {vr(GAT+4*s, 4)}, v{vX+s}")
        else:
            for e in range(2):
                for s in range(4):
                    a(f"ds_read_b64_tr_b16 {vr(GAT+16*e+4*s, 2)}, v{vSA+e} offset:{s*sstr}")
                    a(f"ds_read_b64_tr_b16 {vr(GAT+16*e+4*s+2, 2)}, v{vSA+e} offset:{s*sstr+4*rstr}")
        a("s_waitcnt lgkmcnt(0)")
        for j in range(16):
            if role == "B":
                a(f"v_dot2c_f32_bf16 v{PUB}, s{sONE}, v{GAT+j}")
                a(f"v_dot2c_f32_bf16 v{PUB+2}, v{GAT+j}, v{GAT+j}")
            else:
                a(f"v_dot2c_f32_bf16 v{PUB}, s{sONE}, v{GAT+j}")
                a(f"v_dot2c_f32_bf16 v{PUB+2}, s{sONE}, v{GAT+16+j}")
        a(f"s_branch P1_M{tag}")
        a.label(f"P1_PUB{tag}")
        a(f"s_mov_b32 s{sSPIN}, {SPIN}")
        a.label(f"P1_PB0{tag}")
        a(f"v_readfirstlane_b32 s{sNON}, v{vNON}")
        a(f"s_cmp_lg_u32 s{sNON}, 0")
        a(f"s_cbranch_scc1 P1_PB1{tag}")
        a(f"buffer_load_dword v{vNON}, v{vZ}, {sr(SDBG)}, 0 offen sc1")
        a(f"s_sub_u32 s{sSPIN}, s{sSPIN}, 1")
        a(f"s_cmp_lg_u32 s{sSPIN}, 0")
        a("s_waitcnt vmcnt(0)")
        a(f"s_cbranch_scc1 P1_PB0{tag}")
        a.label(f"P1_PB1{tag}")
        halfop(a, "v_add_f32", PUB, vT0); halfop(a, "v_add_f32", PUB + 2, vT0)
        a(f"v_mov_b32 v{PUB+1}, v{vNON}")
        a(f"v_mov_b32 v{PUB+3}, v{vNON}")
        a(f"s_lshl_b32 s{sT1}, s{sST}, 9")
        a(f"s_add_u32 s{sT0}, s{sPB}, s{sT1}")
        a(f"v_lshlrev_b32 v{vT0}, 4, v{vN}")
        a("s_mov_b32 exec_hi, 0")
        a(f"buffer_store_dwordx4 {vr(PUB, 4)}, v{vT0}, {sr(SWS)}, s{sT0} offen sc1")
        a("s_mov_b32 exec_hi, -1")
        a(f"s_branch P1_NX{tag}")
        a.label(f"P1_ND{tag}")
        a(f"s_cmp_eq_u32 s{sC}, 9")
        a(f"s_cbranch_scc1 P1_DONE{tag}")
        if role == "A" and not kv:
            a(f"s_cmp_eq_u32 s{sC}, 7")
            csel(a, sT0, WO_STAGE[1], WO_STAGE[0])
            a(f"s_cmp_eq_u32 s{sC}, 8")
            a(f"s_cmov_b32 s{sT0}, {WO_STAGE[2]}")
            a(f"s_mul_i32 s{sM0}, s{sW}, 5120")
            a(f"s_add_u32 s{sM0}, s{sM0}, s{sT0}")
        else:
            a(f"s_mov_b32 s{sM0}, 0x30000")
        if kv and role == "A":
            a(f"s_cmp_lg_u32 s{sC}, 8")
            a(f"s_cbranch_scc1 P1_NI{tag}")
            a(f"s_mul_i32 s{sT2}, s{sW}, 5120")
            for i in range(3):
                for p in range(5):
                    a(f"s_add_u32 m0, s{sT2}, {WO_STAGE[i] + p*1024}")
                    a("s_nop 0")
                    a(f"buffer_load_dwordx4 v{vWD+p}, s[88:91], s94 offen lds")
                a(f"s_add_u32 s94, s94, {20*1280}")
            a.label(f"P1_NI{tag}")
        a(f"s_cmp_eq_u32 s{sC}, 7")
        a(f"s_cbranch_scc1 P1_NX{tag}")
        a(f"s_mov_b32 s{sSPIN}, {SPIN}")
        a(f"s_cmp_eq_u32 s{sC}, 8")
        a(f"s_cbranch_scc1 P1_FIN{tag}")
        if role == "A":
            a(f"s_bfe_u32 s{sT0}, s2, 0x20003")
            a(f"s_mul_i32 s{sT0}, s{sT0}, 320")
            a(f"s_mul_i32 s94, s{sW}, {160*1280}")
            a(f"s_add_u32 s94, s94, s{sT0}")
            a(f"s_add_u32 s94, s94, {100*1280}")
        if role == "A" and not kv:
            srd(a, SA, pWO, 640 * 1280)
            a(f"s_mov_b32 s{sSO}, s94")
            a(f"s_mov_b32 s{sSTEP}, {20*1280}")
            a(f"s_mov_b32 s{sCC}, 0")
            for p in range(5): a(f"v_mov_b32 v{vD+p}, v{vWD+p}")
        elif role == "A":
            a(f"s_mov_b32 s{SA+2}, 0")
            a(f"s_mov_b32 s{SB+2}, 0")
        else:
            a(f"s_mov_b32 s{SX+2}, 0")
        a.label(f"P1_GA{tag}")
        a(f"v_mul_u32_u24 v{vT0}, 2560, v{vH}")
        a(f"v_lshl_add_u32 v{vT0}, v{vN}, 4, v{vT0}")
        for j in range(5): a(f"buffer_load_dwordx4 {vr(GAT+4*j, 4)}, v{vT0}, {sr(SWS)}, s{sPB} offen offset:{512*j} sc1")
        a(f"s_cmp_lg_u32 s{sC}, 6")
        a(f"s_cbranch_scc1 P1_GW{tag}")
        srd(a, SDBG, pW2, 1728 * 1280)
        a(f"s_lshl_b32 s{sT0}, s2, 3")
        a(f"s_add_u32 s{sT0}, s{sT0}, s{sW}")
        a(f"s_mul_i32 s{sT0}, s{sT0}, {9*128}")
        a(f"v_lshlrev_b32 v{vT0}, 7, v{vL}")
        a("s_mov_b64 exec, 0x1ff")
        a(f"buffer_load_dword v231, v{vT0}, {sr(SDBG)}, s{sT0} offen")
        a("s_mov_b64 exec, -1")
        a(f"s_branch P1_NX{tag}")
        a.label(f"P1_GW{tag}")
        a("s_waitcnt vmcnt(0)")
        a.label(f"P1_FIN{tag}")
        a(f"s_waitcnt vmcnt({2*ndma + 1 + (15 if (kv and role == 'A') else 0)})")
        a(f"v_xor_b32 v{vT1}, s{sNON}, v{GAT+1}")
        for j in range(1, 10):
            a(f"v_xor_b32 v{vT2}, s{sNON}, v{GAT+2*j+1}")
            a(f"v_or_b32 v{vT1}, v{vT1}, v{vT2}")
        a(f"v_cmp_ne_u32 vcc, 0, v{vT1}")
        a(f"s_cbranch_vccz P1_FOK{tag}")
        a("s_sleep 1")
        a(f"s_sub_u32 s{sSPIN}, s{sSPIN}, 1")
        a(f"s_cmp_lg_u32 s{sSPIN}, 0")
        a(f"s_cbranch_scc1 P1_GA{tag}")
        a.label(f"P1_FOK{tag}")
        for j in range(1, 5):
            a(f"v_add_f32 v{GAT}, v{GAT}, v{GAT+4*j}")
            a(f"v_add_f32 v{GAT+2}, v{GAT+2}, v{GAT+4*j+2}")
        if role == "B":
            SU, SQ, S = GAT, GAT + 2, PUB
            halfop(a, "v_add_f32", SU, vT0); halfop(a, "v_add_f32", SQ, vT0)
            a(f"v_mul_f32 v{SU}, {f32bits(1.0/640):#x}, v{SU}")
            a(f"v_mul_f32 v{SQ}, {f32bits(1.0/640):#x}, v{SQ}")
            a(f"v_fma_f32 v{SQ}, -v{SU}, v{SU}, v{SQ}")
            a(f"v_max_f32 v{SQ}, 0, v{SQ}")
            a(f"v_cvt_pk_bf16_f32 v{S}, -v{SU}, -v{SU}")
            a(f"v_cvt_pk_bf16_f32 v{SQ}, v{SQ}, v{SQ}")
            a(f"v_and_b32 v{SQ}, 0xffff0000, v{SQ}")
            a(f"v_add_f32 v{SQ}, {f32bits(1e-5):#x}, v{SQ}")
            a(f"v_cvt_pk_bf16_f32 v{SQ}, v{SQ}, v{SQ}")
            a(f"v_and_b32 v{SQ}, 0xffff0000, v{SQ}")
            a(f"v_sqrt_f32 v{SQ}, v{SQ}")
            a(f"s_lshl_b32 s{sT0}, s{sTT}, 8")
            a(f"v_cvt_pk_bf16_f32 v{SQ}, v{SQ}, v{SQ}")
            a(f"v_and_b32 v{SQ}, 0xffff0000, v{SQ}")
            a(f"v_rcp_f32 v{SQ}, v{SQ}")
            a(f"s_add_u32 s{sT0}, s{sT0}, {K1_ST}")
            a(f"v_mul_f32 v{S+1}, s{sQS}, v{SQ}")
            a(f"v_lshl_add_u32 v{vT0}, v{vN}, 3, s{sT0}")
            a(f"ds_write_b64 v{vT0}, {vr(S, 2)}")
        else:
            for e in range(2):
                split3(a, GAT + 2 * e, vT0, vT1, PUB + 2 * e, PUB + 2 * e + 1)
                if kv or e == 1:
                    a(f"v_lshlrev_b32 v{vT0}, 3, v{vL}")
                    a(f"v_add_u32 v{vT0}, {K1_CS + 512 * (e if kv else 4)}, v{vT0}")
                else:
                    a(f"s_lshl_b32 s{sT0}, s{sW}, 9")
                    a(f"s_add_u32 s{sT0}, s{sT0}, {K1_CS}")
                    a(f"v_lshl_add_u32 v{vT0}, v{vL}, 3, s{sT0}")
                a(f"ds_write_b64 v{vT0}, {vr(PUB+2*e, 2)}")
        a(f"s_branch P1_NX{tag}")
        a.label(f"P1_DONE{tag}")
        a.stamp(4); a.stamp(NSTAMP + 1, True)
        if role == "B": a("s_setprio 1")
        ST, NM, CSR = GAT, GAT + 2, GAT + 4
        a(f"s_lshl_b32 s{sT0}, s{sTT}, 8")
        a(f"s_add_u32 s{sT0}, s{sT0}, {K1_ST}")
        a(f"v_lshl_add_u32 v{vT0}, v{vN}, 3, s{sT0}")
        a(f"v_lshlrev_b32 v{vT1}, 3, v{vL}")
        a(f"v_add_u32 v{vT1}, {K1_CS}, v{vT1}")
        a(f"ds_read_b64 {vr(ST, 2)}, v{vT0}")
        for i, t in enumerate(tiles): a(f"ds_read_b64 {vr(CSR+2*i, 2)}, v{vT1} offset:{512*t}")
        a(f"v_lshlrev_b32 v{vT2}, 4, v{vL}")
        a("s_waitcnt lgkmcnt(0)")
        a(f"v_mov_b32 v{NM}, v{ST}")
        a(f"v_mov_b32 v{NM+1}, v{ST}")
        a(f"v_mov_b32 v{ST}, v{ST+1}")
        a("s_nop 0")
        for i in range(nt):
            a(f"v_mfma_f32_32x32x8_bf16 {vr(ACC+16*i, 16)}, {vr(CSR+2*i, 2)}, {vr(NM, 2)}, {vr(ACC+16*i, 16)}")
        a(f"s_nop {12 - nt}")
        if not kv:
            for i, t in enumerate(tiles):
                P = 128 + 8 * i
                for j in range(8): a(f"v_pk_mul_f32 {vr(ACC+16*i+2*j, 2)}, {vr(ACC+16*i+2*j, 2)}, {vr(ST, 2)}")
                for j in range(8): a(f"v_cvt_pk_bf16_f32 v{P+j}, v{ACC+16*i+2*j}, v{ACC+16*i+2*j+1}")
                for j in range(8): a(f"v_pk_max_i16 v{P+j}, v{P+j}, s{sLO}")
                a(f"s_add_u32 s{sT0}, s{sOUT}, {2048*t}")
                a(f"buffer_store_dwordx4 {vr(P, 4)}, v{vT2}, {sr(SWS)}, s{sT0} offen sc1")
                a(f"buffer_store_dwordx4 {vr(P+4, 4)}, v{vT2}, {sr(SWS)}, s{sT0} offen offset:1024 sc1")
        else:
            P = 128
            a(f"s_mul_i32 s{sT0}, s{sT3}, {KV_REC}")
            a(f"s_add_u32 s{sT0}, s{sT0}, {WS_KV}")
            for j in range(6): a(f"v_pk_mul_f32 {vr(ACC+2*j, 2)}, {vr(ACC+2*j, 2)}, {vr(ST, 2)}")
            if role == "A":
                for j in range(6): a(f"v_cvt_pk_bf16_f32 v{P+j}, v{ACC+2*j}, v{ACC+2*j+1}")
                a(f"v_min_u32 v{vT0}, 32, v{vL}")
                a(f"v_lshlrev_b32 v{vT0}, 3, v{vT0}")
                a("s_mov_b32 exec_lo, 0")
                a(f"v_mov_b32 v{P+4}, 0x3f803f80")
                a(f"v_mov_b32 v{P+5}, 0x3f80")
                a("s_mov_b32 exec_lo, -1")
                a(f"buffer_store_dwordx4 {vr(P, 4)}, v{vT2}, {sr(SWS)}, s{sT0} offen sc1")
                a(f"buffer_store_dwordx2 {vr(P+4, 2)}, v{vT0}, {sr(SWS)}, s{sT0} offen offset:2560 sc1")
            else:
                a("s_mov_b32 exec_lo, 0")
                a(f"v_mov_b32 v{ACC+8}, 1.0")
                a("s_mov_b32 exec_lo, -1")
                for j in range(6): a(f"v_cvt_pk_bf16_f32 v{P+j}, v{ACC+2*j}, v{ACC+2*j+1}")
                a(f"s_mul_i32 s{sT1}, s{sTT}, 1536")
                a(f"s_add_u32 s{sT1}, s{sT1}, 104448")
                a(f"v_lshrrev_b32 v{vT0}, 3, v{vN}")
                a(f"v_mul_u32_u24 v{vT0}, 384, v{vT0}")
                a(f"v_and_b32 v{vT1}, 7, v{vN}")
                a(f"v_lshl_add_u32 v{vT0}, v{vT1}, 1, v{vT0}")
                a(f"v_lshl_add_u32 v{vT0}, v{vH}, 6, v{vT0}")
                a(f"v_add_u32 v{vT0}, s{sT1}, v{vT0}")
                for r in range(12):
                    op = "ds_write_b16" if r % 2 == 0 else "ds_write_b16_d16_hi"
                    a(f"{op} v{vT0}, v{P+r//2} offset:{(r//4)*128 + (r%4)*16}")
                a(f"v_add_u32 v{vT0}, s{sT1}, v{vT2}")
                a("s_waitcnt lgkmcnt(0)")
                a(f"ds_read_b128 {vr(P+8, 4)}, v{vT0}")
                a(f"ds_read_b128 {vr(P+12, 4)}, v{vT0} offset:1024")
                a("s_waitcnt lgkmcnt(0)")
                a(f"buffer_store_dwordx4 {vr(P+8, 4)}, v{vT2}, {sr(SWS)}, s{sT0} offen offset:1024 sc1")
                a("s_mov_b32 exec_hi, 0")
                a(f"buffer_store_dwordx4 {vr(P+12, 4)}, v{vT2}, {sr(SWS)}, s{sT0} offen offset:2048 sc1")
                a("s_mov_b32 exec_hi, -1")
        a.stamp(5)
        if role == "A": a(f"s_waitcnt vmcnt({2*nt})")
        a.ldump()
        a(f"s_branch {'P2_FFN' if role == 'A' else 'P2_ATT'}")

    w_dma_setup(); body("GA", "A", False)
    a.label("P1_B")
    x_dma_setup()
    a(f"s_cmp_eq_u32 s{sCG}, 15")
    a("s_cbranch_scc1 P1_KB")
    body("GB", "B", False)
    a.label("P1_KA")
    a(f"v_lshlrev_b32 v{vD}, 4, v{vL}")
    a(f"s_lshl_b32 s{sSO}, s{sCC}, 2")
    a(f"s_add_u32 s{sSO}, s{sSO}, s{sW}")
    a(f"s_mul_i32 s{sSO}, s{sSO}, 640")
    a(f"s_mov_b32 s{sSTEP}, 2560")
    a(f"s_lshl_b32 s{sM0}, s{sW}, 10")
    a("s_waitcnt lgkmcnt(0)")
    srd(a, SA, pWK, 640 * 40)
    srd(a, SB, pWV, 640 * 40)
    body("KA", "A", True)
    a.label("P1_KB")
    body("KB", "B", True)

def kdesc(name, nv, ns=102):
    return f""".amdhsa_kernel {name}
  .amdhsa_next_free_vgpr {nv}
  .amdhsa_next_free_sgpr {ns}
  .amdhsa_accum_offset {(nv+3)//4*4}
  .amdhsa_group_segment_fixed_size 0
  .amdhsa_kernarg_size 88
  .amdhsa_user_sgpr_count 2
  .amdhsa_user_sgpr_kernarg_segment_ptr 1
  .amdhsa_system_sgpr_workgroup_id_x 1
.end_amdhsa_kernel
"""

def build():
    from g2p2 import gen_ffn, gen_att, LDS_BYTES
    hdr = open("cdna_kernels/" + NAME + ".s.ref").read().split("; Override launch")[0]
    out = hdr
    out += f"; @launch grid=(256,1,1) block=(512,1,1) lds={LDS_BYTES}\n"
    out += '.amdgcn_target "amdgcn-amd-amdhsa--gfx950"\n.text\n'
    a = Asm()
    k = NAME + "_kernel"
    a.raw(f".globl {k}\n.p2align 8\n.type {k},@function")
    a.label(k)
    gen_p1(a, None, None)
    a.label("P2_ATT")
    gen_att(a)
    a.label("P2_FFN")
    gen_ffn(a)
    a.label("L_END")
    a("s_endpgm")
    out += a.text()
    out += '.section .rodata,"a"\n.p2align 6\n' + kdesc(k, 256)
    return out

if __name__ == "__main__":
    path = sys.argv[1] if len(sys.argv) > 1 and not sys.argv[1].startswith("--") else "cdna_kernels/" + NAME + ".s"
    open(path, "w").write(build())
```

```python
from g2 import *

RING_ST = 20992
L_OP = 4 * RING_ST
L_MREC = L_OP + 73728
L_BAD = L_MREC + 2048
LDS_BYTES = L_BAD + 64

def p2_ids(a):
    a(f"s_lshl_b32 s{sT0}, s{sRB}, 4")
    a(f"s_add_u32 s{sT0}, s{sT0}, s{sCG}")
    a(f"s_lshl_b32 s{sT0}, s{sT0}, 7")
    a(f"s_add_u32 s{sT2}, s{sT0}, {WS_F1}")
    a(f"s_and_b32 s{sT}, s2, 7")
    a(f"s_lshl_b32 s{sT}, s{sT}, 3")
    a(f"s_lshr_b32 s{sT0}, s2, 5")
    a(f"s_add_u32 s{sT}, s{sT}, s{sT0}")
    a(f"s_bfe_u32 s{sHG}, s2, 0x20003")
    a(f"s_mul_i32 s{sG}, s{sT}, {G_TSTRIDE}")
    a(f"s_mov_b32 s{sMODE}, 0")
    a(f"s_mul_i32 s{sOB}, s{sT}, {32*1280}")
    a(f"s_mul_i32 s{sT0}, s{sHG}, 320")
    a(f"s_add_u32 s{sOB}, s{sOB}, s{sT0}")
    a("v_lshlrev_b32 v2, 4, v1")
    srd(a, SX, pX, 2048 * 1280)
    srd(a, SB, pOUT, 2048 * 1280)
    a(f"s_mov_b32 s{sFL}, s{sT2}")

sFL = 96
def p2_sync(a, publisher, younger=0):
    a(f"s_waitcnt vmcnt({younger}) lgkmcnt(0)")
    a.stamp(6)
    a("s_barrier")
    if publisher:
        L = a.uid("NOPUB")
        a(f"s_cmp_lg_u32 s{sW}, 0")
        a(f"s_cbranch_scc1 {L}")
        a(f"v_mov_b32 v4, s{sNON}")
        a("s_mov_b64 exec, 1")
        a(f"buffer_store_dword v4, v7, {sr(SWS)}, s{sFL} offen sc1")
        a("s_mov_b64 exec, -1")
        a.label(L)

sTGT, sKVWG = 63, 57
def abar(a, vaddr, vtmp, inc="1", last=None):
    L, D = a.uid("AB"), a.uid("ABD")
    a(f"s_add_u32 s{sTGT}, s{sTGT}, 4")
    a(f"v_mov_b32 v{vtmp}, {inc}")
    a("s_mov_b64 exec, 1")
    a(f"ds_add_rtn_u32 v{vtmp}, v{vaddr}, v{vtmp}")
    a(f"s_mov_b32 s{sSPIN}, {SPIN}")
    a("s_waitcnt lgkmcnt(0)")
    a(f"v_readfirstlane_b32 s{sT0}, v{vtmp}")
    a(f"s_add_u32 s{sT0}, s{sT0}, {inc}")
    a(f"s_and_b32 s{sT2}, s{sT0}, 0xffff")
    a(f"s_cmp_lt_u32 s{sT2}, s{sTGT}")
    a(f"s_cbranch_scc1 {L}")
    if last: last()
    a(f"s_branch {D}")
    a.label(L)
    a(f"ds_read_b32 v{vtmp}, v{vaddr}")
    a(f"s_sub_u32 s{sSPIN}, s{sSPIN}, 1")
    a(f"s_cbranch_scc1 {D}")
    a("s_waitcnt lgkmcnt(0)")
    a(f"v_readfirstlane_b32 s{sT0}, v{vtmp}")
    a(f"s_and_b32 s{sT2}, s{sT0}, 0xffff")
    a(f"s_cmp_lt_u32 s{sT2}, s{sTGT}")
    a(f"s_cbranch_scc1 {L}")
    a.label(D)
    a("s_mov_b64 exec, -1")

def final_stage(a, base_item, X, R, vA, vG, load_x, do_rest):
    if load_x:
        if base_item: a(f"v_add_u32 v{vA}, {base_item}, v0")
        else: a(f"v_mov_b32 v{vA}, v0")
        a(f"v_mul_u32_u24 v{vG}, 3277, v{vA}")
        a(f"v_lshrrev_b32 v{vG}, 16, v{vG}")
        a(f"v_lshlrev_b32 v{vA}, 4, v{vA}")
        a(f"v_lshlrev_b32 v{X}, 4, v{vG}")
        a(f"v_mul_u32_u24 v{vG}, 960, v{vG}")
        a(f"v_add_u32 v{vG}, v{vG}, v{vA}")
        a(f"v_lshl_add_u32 v{vA}, v{vA}, 1, v{X}")
        a(f"buffer_load_dwordx4 {vr(X, 4)}, v{vG}, {sr(SX)}, s{sOB} offen")
    if do_rest == 1:
        for s in range(4):
            a(f"ds_read_b128 {vr(R+8*s, 4)}, v{vA} offset:{s*RING_ST}")
            a(f"ds_read_b128 {vr(R+8*s+4, 4)}, v{vA} offset:{s*RING_ST+16}")
    if do_rest == 2:
        for j in range(4):
            a(f"v_lshlrev_b32 v{R+32+2*j}, 16, v{X+j}")
            a(f"v_and_b32 v{R+33+2*j}, 0xffff0000, v{X+j}")
    if do_rest >= 3:
        for s in range(4):
            a(f"s_waitcnt lgkmcnt({6-2*s + (do_rest-3)})")
            for j in range(4):
                a(f"v_pk_add_f32 {vr(R+32+2*j, 2)}, {vr(R+32+2*j, 2)}, {vr(R+8*s+2*j, 2)}")
        for j in range(4): a(f"v_cvt_pk_bf16_f32 v{X+j}, v{R+32+2*j}, v{R+33+2*j}")
        a(f"buffer_store_dwordx4 {vr(X, 4)}, v{vG}, {sr(SB)}, s{sOB} offen" + (" sc1" if opt("outsc1") else "") + (" nt" if opt("outnt") else ""))

def gen_att(a):
    vL, vKM, vV, vKT, vQT, vIDX = 1, 2, 3, 4, 5, 6
    vT0, vT1, vT2, vT3 = 8, 9, 10, 11
    vP = 12
    S = [16, 32, 48, 64]
    O = lambda i: 80 + 12 * i
    QM = lambda i: 180 + 4 * i
    QT = lambda i: 212 + 2 * i
    KM = [228, 242]; KT = [232, 246]; V0 = [234, 248]; V1 = [238, 252]
    def qk1(s, kb, q): a(f"v_mfma_f32_32x32x16_bf16 {vr(S[s], 16)}, {vr(KM[kb], 4)}, {vr(QM(q), 4)}, 0")
    def qk2(s, kb, q): a(f"v_mfma_f32_32x32x8_bf16 {vr(S[s], 16)}, {vr(KT[kb], 2)}, {vr(QT(q), 2)}, {vr(S[s], 16)}")
    def pv(u, s, vb, q): a(f"v_smfmac_f32_32x32x32_bf16 {vr(O(q), 16)}, {vr((V0, V1)[u][vb], 4)}, {vr(S[s]+8*u, 8)}, v{vIDX}")
    def ldkm(b, so): a(f"buffer_load_dwordx4 {vr(KM[b], 4)}, v{vKM}, {sr(SWS)}, s{so} offen sc1")
    def ldkt(b, so): a(f"buffer_load_dwordx2 {vr(KT[b], 2)}, v{vKT}, {sr(SWS)}, s{so} offen sc1")
    def ldv(u, b, so): a(f"buffer_load_dwordx4 {vr((V0, V1)[u][b], 4)}, v{vV}, {sr(SWS)}, s{so} offen" + (" offset:768" if u else "") + " sc1")
    def rowmax(s, dst):
        b = S[s]
        a(f"v_max3_f32 v{dst}, v{b}, v{b+1}, v{b+2}")
        for j in range(3, 15, 2): a(f"v_max3_f32 v{dst}, v{dst}, v{b+j}, v{b+j+1}")
        a(f"v_max_f32 v{dst}, v{dst}, v{b+15}")
    def zero_state():
        for r in range(O(0), O(0) + 100): a(f"v_mov_b32 v{r}, 0")
        for r in range(S[3], S[3] + 16): a(f"v_mov_b32 v{r}, 0")
        for r in range(V0[1], V0[1] + 8): a(f"v_mov_b32 v{r}, 0")

    a(f"v_mov_b32 v{vT2}, {L_BAD}")
    a(f"ds_write_b32 v{vT2}, v7")
    a(f"s_mov_b32 s{sTGT}, 0")
    a(f"s_cmp_eq_u32 s{sCG}, 15")
    a(f"s_cselect_b32 s{sKVWG}, 1, 0")
    p2_ids(a)
    a(f"v_and_b32 v{vT0}, 31, v{vL}")
    a(f"v_lshrrev_b32 v{vT1}, 5, v{vL}")
    a(f"v_mul_u32_u24 v{vV}, 384, v{vT1}")
    a(f"v_lshl_add_u32 v{vV}, v{vT0}, 4, v{vV}")
    a(f"v_add_u32 v{vV}, 1024, v{vV}")
    a(f"v_mov_b32 v{vT2}, {OOB:#x}")
    a(f"v_cmp_gt_u32 vcc, 21, v{vT0}")
    a(f"v_min_u32 v{vKT}, 32, v{vL}")
    a(f"v_lshlrev_b32 v{vKT}, 3, v{vKT}")
    a(f"v_cndmask_b32 v{vV}, v{vT2}, v{vV}, vcc")
    a(f"v_cmp_gt_u32 vcc, 32, v{vL}")
    a(f"v_add_u32 v{vKT}, 2560, v{vKT}")
    a(f"v_mov_b32 v{vIDX}, 0xdddddddd")
    a(f"v_cndmask_b32 v{vQT}, v{vT2}, v{vKM}, vcc")
    a(f"s_mul_i32 s{sT2}, s{sHG}, 10240")
    a(f"s_add_u32 s{sT2}, s{sT2}, s{sG}")
    for j in range(4):
        a(f"s_add_u32 s{sT0}, s{sQ}, {j}")
        a(f"s_and_b32 s{sT0}, s{sT0}, 3")
        a(f"s_lshl_b32 s{sPm+j}, s{sT0}, 11")
        a(f"s_add_u32 s{sPm+j}, s{sPm+j}, s{sT2}")
        a(f"s_lshr_b32 s{sT1}, s{sT0}, 1")
        a(f"s_lshl_b32 s{sT1}, s{sT1}, 10")
        a(f"s_and_b32 s{sT0}, s{sT0}, 1")
        a(f"s_lshl_b32 s{sT0}, s{sT0}, 3")
        a(f"s_add_u32 s{sT1}, s{sT1}, s{sT0}")
        a(f"s_add_u32 s{sT1}, s{sT1}, s{sT2}")
        a(f"s_add_u32 s{sPt+j}, s{sT1}, 8192")
    a(f"v_and_b32 v{vT3}, 15, v{vL}")
    a(f"v_lshlrev_b32 v{vT3}, 11, v{vT3}")
    a(f"s_lshr_b32 s{sT0}, s{sT}, 2")
    a(f"s_lshl_b32 s{sT0}, s{sT0}, 4")
    a(f"s_add_u32 s{sT0}, s{sT0}, s{sHG}")
    a(f"s_lshl_b32 s{sT0}, s{sT0}, 7")
    a(f"s_add_u32 s{sHO}, s{sT0}, {WS_F1}")
    a.label("A_RESTART")
    zero_state()
    a(f"v_and_b32 v{vT0}, 31, v{vL}")
    for j in range(4):
        a(f"s_add_u32 s{sT0}, s{sQ}, {j}")
        a(f"s_and_b32 s{sT0}, s{sT0}, 3")
        a(f"s_lshl_b32 s{sT0}, s{sT0}, 9")
        a(f"s_add_u32 s{sT0}, s{sT0}, {L_MREC}")
        a(f"v_lshl_add_u32 v{vP+j}, v{vT0}, 3, s{sT0}")
    a(f"s_mul_i32 s{sKV}, s{sQ}, {16*KV_REC}")
    a(f"s_add_u32 s{sKV}, s{sKV}, {WS_KV}")
    a(f"s_cmp_lg_u32 s{sMODE}, 0")
    a("s_cbranch_scc1 A_NOPOLL")
    a(f"s_cmp_eq_u32 s{sKVWG}, 0")
    a("s_cbranch_scc1 A_B0L")
    p2_sync(a, False)
    a.label("A_B0L")
    a(f"s_mov_b32 s{sT2}, {WS_F1 + 15*128}")
    poll(a, vT3, vT0, sT2)
    a.label("A_NOPOLL")
    a.stamp(7)
    ldkm(0, sKV); ldkt(0, sKV)
    ldv(0, 0, sKV); ldv(1, 0, sKV)
    a(f"s_add_u32 s{sKV}, s{sKV}, {KV_REC}")
    ldkm(1, sKV); ldkt(1, sKV)
    a(f"s_or_b32 s{sT0}, s{sKVWG}, s{sMODE}")
    a("s_cbranch_scc1 A_B0D")
    p2_sync(a, False, 6)
    a.label("A_B0D")
    poll(a, 7, vT0, sHO)
    a.stamp(8)
    for i in range(8):
        a(f"buffer_load_dwordx4 {vr(QM(i), 4)}, v{vKM}, {sr(SWS)}, s{sPm+i//2} offen" + (" offset:1024" if i & 1 else "") + " sc1")
        a(f"buffer_load_dwordx2 {vr(QT(i), 2)}, v{vQT}, {sr(SWS)}, s{sPt+i//2} offen" + (" offset:512" if i & 1 else "") + " sc1")
    a(f"s_cmp_lg_u32 s{sMODE}, 0")
    a("s_cbranch_scc1 A_TRUEMAX")
    a.c("stand-in for the row max: max over this wave's first 32 keys; checked after the loop, exact-max rerun if unsafe")
    a("s_waitcnt vmcnt(12)")
    qk1(0, 0, 0); qk2(0, 0, 0); qk1(1, 0, 1); qk2(1, 0, 1)
    a("s_nop 9")
    rowmax(0, S[2]); rowmax(1, S[2] + 1)
    halfop(a, "v_max_f32", S[2], vT0); halfop(a, "v_max_f32", S[2] + 1, vT0)
    a.label("A_HAVEMAX")
    for e in range(2):
        a(f"v_sub_f32 v{S[2]+e}, 0, v{S[2]+e}")
        split3(a, S[2] + e, vT0, vT1, S[2] + 2 + 2 * e, S[2] + 3 + 2 * e)
        a(f"ds_write_b64 v{vP}, {vr(S[2]+2+2*e, 2)} offset:{256*e}")
    a(f"v_mov_b32 v{vT1}, {L_BAD}")
    a.stamp(9)
    abar(a, vT1, vT0)
    a("s_waitcnt vmcnt(0)")
    a("s_mov_b32 exec_lo, 0")
    for i in range(8): a(f"ds_read_b64 {vr(QT(i), 2)}, v{vP+i//2} offset:{256*(i&1)}")
    a("s_mov_b32 exec_lo, -1")
    a(f"s_mov_b32 s{sCNT}, 8")
    a("s_setprio 3")
    a("s_waitcnt lgkmcnt(0)")
    a.stamp(10); a.stamp(NSTAMP + 2, True)
    qk1(0, 0, 0); qk2(0, 0, 0)
    a("s_nop 11")
    a.raw(".p2align 6")
    a.label("A_LOOP")
    PAT = (3, 3, 4, 3, 3)
    ORD = sys.argv[sys.argv.index("--ord") + 1] if opt("ord") else "acbd"
    if opt("pat"): PAT = tuple(int(ch) for ch in sys.argv[sys.argv.index("--pat") + 1])
    for kb in range(2):
        for q in range(8):
            sc = q & 3
            e = [0]
            def exps(n):
                for _ in range(n):
                    a(f"v_exp_f32 v{S[sc]+e[0]}, v{S[sc]+e[0]}"); e[0] += 1
            nq, nkb = (q + 1) & 7, (kb if q < 7 else kb ^ 1)
            pq, pvb = (q - 1) & 7, (kb if q > 0 else kb ^ 1)
            ms = {"a": lambda: qk1((q + 1) & 3, nkb, nq), "b": lambda: qk2((q + 1) & 3, nkb, nq),
                  "c": lambda: pv(0, (q - 1) & 3, pvb, pq), "d": lambda: pv(1, (q - 1) & 3, pvb, pq)}
            for j, ch in enumerate(ORD):
                ms[ch](); exps(PAT[j])
            if q == 0: a("s_waitcnt vmcnt(2)"); ldv(0, kb ^ 1, sKV)
            elif q == 1: ldv(1, kb ^ 1, sKV)
            elif q == 2: a(f"s_add_u32 s{sKV}, s{sKV}, {KV_REC}")
            elif q == 3 and kb == 1: a(f"s_sub_u32 s{sCNT}, s{sCNT}, 1")
            elif q == 4 and kb == 1: a(f"s_cmp_lg_u32 s{sCNT}, 0")
            elif q == 5: a("s_waitcnt vmcnt(2)")
            elif q == 6: ldkm(kb, sKV)
            elif q == 7: ldkt(kb, sKV)
            else: a("s_nop 0")
            exps(PAT[4])
    a("s_cbranch_scc1 A_LOOP")
    a("s_nop 0")
    pv(0, 3, 1, 7); pv(1, 3, 1, 7)
    a.stamp(11); a.stamp(NSTAMP + 3, True)
    a.spin("spinatt")
    for j in range(4):
        a(f"s_add_u32 s{sT0}, s{sQ}, {j}")
        a(f"s_and_b32 s{sT0}, s{sT0}, 3")
        a(f"s_mul_i32 s{sT0}, s{sT0}, 18432")
        a(f"s_add_u32 s{sT0}, s{sT0}, {L_OP}")
        a(f"v_add_u32 v{vP+j}, s{sT0}, v{vKM}")
    for i in range(2, 8):
        for j in range(3):
            a(f"ds_write_b128 v{vP+i//2}, {vr(O(i)+4*j, 4)} offset:{(i&1)*9216 + (i//2-1)*3072 + j*1024}")
    a(f"v_mov_b32 v{vT1}, {L_BAD}")
    a.stamp(12)
    abar(a, vT1, vT0)
    RB = [16, 180]
    for e in range(2):
        for s in range(3):
            for j in range(3):
                a(f"ds_read_b128 {vr(RB[e]+12*s+4*j, 4)}, v{vP} offset:{e*9216 + s*3072 + j*1024}")
    a(f"s_mul_i32 s{sT2}, s{sT}, 40960")
    a(f"s_add_u32 s{sT2}, s{sT2}, {WS_O}")
    a(f"s_sub_u32 s{sT2}, s{sT2}, s{sG}")
    a(f"s_add_u32 s{sT0}, s{sPm}, s{sT2}")
    a(f"s_add_u32 s{sT1}, s{sPt}, s{sT2}")
    a(f"s_mov_b64 {sr(sBAD, 2)}, 0")
    a(f"s_mov_b32 s{sT2}, {f32bits(2.0**100):#x}")
    for e in range(2):
        A = O(e); P = 128 + 8 * e
        for s in range(3):
            a(f"s_waitcnt lgkmcnt({min(15, 18 - 9*e - 3*s - 3)})")
            for j in range(6): a(f"v_pk_add_f32 {vr(A+2*j, 2)}, {vr(A+2*j, 2)}, {vr(RB[e]+12*s+2*j, 2)}")
        a(f"v_mov_b32 v{vT0}, v{A+8}")
        a(f"v_mov_b32 v{vT2}, v{A+8}")
        a(f"v_mul_f32 v{vT1}, 0, v{A}")
        a(f"v_fmac_f32 v{vT1}, 0, v{A+1}")
        a(f"v_permlane32_swap_b32 v{vT0}, v{vT2}")
        for j in range(2, 12): a(f"v_fmac_f32 v{vT1}, 0, v{A+j}")
        a(f"v_cmp_nlt_f32 vcc, v{vT2}, s{sT2}")
        a(f"v_rcp_f32 v{vT2}, v{vT2}")
        a(f"s_or_b64 {sr(sBAD, 2)}, {sr(sBAD, 2)}, vcc")
        a(f"v_cmp_u_f32 vcc, v{vT1}, v{vT1}")
        a(f"v_mov_b32 v{vT3}, v{vT2}")
        a(f"s_or_b64 {sr(sBAD, 2)}, {sr(sBAD, 2)}, vcc")
        for j in range(6): a(f"v_pk_mul_f32 {vr(A+2*j, 2)}, {vr(A+2*j, 2)}, {vr(vT2, 2)}")
        for j in range(6): a(f"v_cvt_pk_bf16_f32 v{P+j}, v{A+2*j}, v{A+2*j+1}")
        a(f"buffer_store_dwordx4 {vr(P, 4)}, v{vKM}, {sr(SWS)}, s{sT0} offen offset:{1024*e} sc1")
        a(f"buffer_store_dwordx2 {vr(P+4, 2)}, v{vQT}, {sr(SWS)}, s{sT1} offen offset:{512*e} sc1")
    a(f"v_mov_b32 v{vT1}, {L_BAD}")
    a(f"s_lshl_b32 s{sT1}, s{sT}, 2")
    a(f"s_add_u32 s{sT1}, s{sT1}, s{sHG}")
    a(f"s_lshl_b32 s{sT1}, s{sT1}, 7")
    a(f"s_add_u32 s{sT1}, s{sT1}, {WS_F2}")
    a(f"v_mov_b32 v{vT2}, s{sNON}")
    a(f"s_cmp_eq_u64 {sr(sBAD, 2)}, 0")
    a(f"s_cselect_b32 s{sBAD}, 1, 0x10001")
    a(f"s_cmp_lg_u32 s{sMODE}, 0")
    a(f"s_cselect_b32 s{sBAD+1}, 0, 0xffff0000")
    a.stamp(13)
    a("s_waitcnt vmcnt(0)")
    a.stamp(14)
    def publish():
        L = a.uid("NOPUB")
        a(f"s_and_b32 s{sT2}, s{sT0}, s{sBAD+1}")
        a(f"s_cbranch_scc1 {L}")
        a(f"buffer_store_dword v{vT2}, v7, {sr(SWS)}, s{sT1} offen sc1")
        a.label(L)
    abar(a, vT1, vT0, f"s{sBAD}", publish)
    a(f"s_and_b32 s{sT2}, s{sT0}, s{sBAD+1}")
    a(f"s_cselect_b32 s{sMODE}, 1, s{sMODE}")
    a("s_cbranch_scc1 A_RESTART")
    a("s_setprio 0")
    final_stage(a, 0, 16, 32, 20, 21, True, 0)
    a(f"s_cmp_ge_u32 s{sW}, 6")
    a("s_cbranch_scc1 A_F1")
    final_stage(a, 256, 24, 80, 22, 23, True, 0)
    a("s_waitcnt vmcnt(0)")
    final_stage(a, 0, 16, 32, 20, 21, False, 2)
    final_stage(a, 256, 24, 80, 22, 23, False, 2)
    a.stamp(15)
    a("s_barrier")
    a.stamp(16)
    final_stage(a, 0, 16, 32, 20, 21, False, 1)
    final_stage(a, 256, 24, 80, 22, 23, False, 1)
    final_stage(a, 0, 16, 32, 20, 21, False, 11)
    final_stage(a, 256, 24, 80, 22, 23, False, 3)
    a.end()
    a.label("A_F1")
    a("s_waitcnt vmcnt(0)")
    final_stage(a, 0, 16, 32, 20, 21, False, 2)
    a.stamp(15)
    a("s_barrier")
    a.stamp(16)
    final_stage(a, 0, 16, 32, 20, 21, False, 1)
    final_stage(a, 0, 16, 32, 20, 21, False, 3)
    a.end()
    a.label("A_TRUEMAX")
    M = S[2]
    for i in range(8): a(f"v_mov_b32 v{M+i}, 0xff800000")
    a(f"s_sub_u32 s{sT2}, s{sKV}, {KV_REC}")
    a(f"s_mov_b32 s{sCNT}, 16")
    TK, TT = S[1], S[1] + 4
    a.label("A_TM_LOOP")
    a(f"buffer_load_dwordx4 {vr(TK, 4)}, v{vKM}, {sr(SWS)}, s{sT2} offen sc1")
    a(f"buffer_load_dwordx2 {vr(TT, 2)}, v{vKT}, {sr(SWS)}, s{sT2} offen sc1")
    a("s_waitcnt vmcnt(0)")
    for i in range(8):
        a(f"v_mfma_f32_32x32x16_bf16 {vr(S[0], 16)}, {vr(TK, 4)}, {vr(QM(i), 4)}, 0")
        a(f"v_mfma_f32_32x32x8_bf16 {vr(S[0], 16)}, {vr(TT, 2)}, {vr(QT(i), 2)}, {vr(S[0], 16)}")
        a("s_nop 11")
        for j in range(0, 16, 2): a(f"v_max3_f32 v{M+i}, v{M+i}, v{S[0]+j}, v{S[0]+j+1}")
    a(f"s_add_u32 s{sT2}, s{sT2}, {KV_REC}")
    a(f"s_sub_u32 s{sCNT}, s{sCNT}, 1")
    a(f"s_cmp_lg_u32 s{sCNT}, 0")
    a("s_cbranch_scc1 A_TM_LOOP")
    for i in range(8):
        halfop(a, "v_max_f32", M + i, vT0)
        a(f"v_add_u32 v{vT1}, {L_OP - L_MREC}, v{vP+i//2}")
        a(f"ds_write_b32 v{vT1}, v{M+i} offset:{(i//2)*2048 + (i&1)*256}")
    a(f"v_mov_b32 v{vT1}, {L_BAD}")
    abar(a, vT1, vT0)
    a(f"v_add_u32 v{vT1}, {L_OP - L_MREC}, v{vP}")
    for e in range(2):
        for s in range(1, 4): a(f"ds_read_b32 v{S[0]+4*e+s}, v{vT1} offset:{s*2048 + e*256}")
    a("s_waitcnt lgkmcnt(0)")
    for e in range(2):
        a(f"v_max3_f32 v{M+e}, v{M+e}, v{S[0]+4*e+1}, v{S[0]+4*e+2}")
        a(f"v_max_f32 v{M+e}, v{M+e}, v{S[0]+4*e+3}")
    a("s_branch A_HAVEMAX")

def gen_ffn(a):
    vL, vL16, vTR = 1, 2, 3
    vD = 8
    vT0, vT1 = 14, 15
    F = lambda t: 16 + 16 * t
    WO = lambda k: 96 + 20 * k
    HB = lambda u: 216 + 4 * u
    sCOL = 63
    def dma_piece(p, slot, vd):
        a(f"s_add_u32 m0, s{sM0}, {slot*5120 + p*1024}")
        a("s_nop 0")
        a(f"buffer_load_dwordx4 v{vd+p}, {sr(SA)}, s{sSO} offen lds")
    def trr(dst, slot, t):
        a(f"ds_read_b64_tr_b16 {vr(dst+4*t, 2)}, v{vTR} offset:{slot*5120 + 64*t}")
        a(f"ds_read_b64_tr_b16 {vr(dst+4*t+2, 2)}, v{vTR} offset:{slot*5120 + 64*t + 2560}")
    def hload(u):
        a(f"buffer_load_dwordx4 {vr(HB(u), 4)}, v{vL16}, {sr(SWS)}, s{sHO} offen sc1")
        a(f"s_add_u32 s{sHO}, s{sHO}, 1024")
    def wo_rows(row):
        a(f"s_mul_i32 s{sSO}, s{sQ}, {160*1280}")
        a(f"s_add_u32 s{sSO}, s{sSO}, s{sCOL}")
        if row: a(f"s_add_u32 s{sSO}, s{sSO}, {row*1280}")
    a(f"v_lshrrev_b32 v{vT0}, 5, v{vL}")
    a(f"v_bfe_u32 v{vT1}, v{vL}, 2, 2")
    a(f"v_lshl_add_u32 v{vT0}, v{vT0}, 2, v{vT1}")
    a(f"v_mul_u32_u24 v{vTR}, 320, v{vT0}")
    a(f"v_bfe_u32 v{vT0}, v{vL}, 4, 1")
    a(f"v_lshl_add_u32 v{vTR}, v{vT0}, 5, v{vTR}")
    a(f"v_and_b32 v{vT0}, 3, v{vL}")
    a(f"v_lshl_add_u32 v{vTR}, v{vT0}, 3, v{vTR}")
    a(f"s_mul_i32 s{sT0}, s{sQ}, 5120")
    a(f"s_add_u32 s{sT0}, s{sT0}, {WO_STAGE[0]}")
    a(f"v_add_u32 v{vT1}, s{sT0}, v{vTR}")
    for i in range(3):
        va, off = (vT1, WO_STAGE[i] - WO_STAGE[0])
        for t in range(5):
            a(f"ds_read_b64_tr_b16 {vr(WO(3+i)+4*t, 2)}, v{va} offset:{off + 64*t}")
            a(f"ds_read_b64_tr_b16 {vr(WO(3+i)+4*t+2, 2)}, v{va} offset:{off + 64*t + 2560}")
    for p in range(5): a(f"v_mov_b32 v{vD+p}, v{vWD+p}")
    a(f"s_mul_i32 s{sM0}, s{sQ}, {RING_ST}")
    a(f"v_add_u32 v{vTR}, s{sM0}, v{vTR}")
    p2_ids(a)
    a(f"s_mul_i32 s{sCOL}, s{sHG}, 320")
    srd(a, SA, pW2, 1728 * 1280)
    a(f"s_mul_i32 s{sSO}, s{sQ}, {27*16*1280}")
    a(f"s_add_u32 s{sSO}, s{sSO}, s{sCOL}")
    a(f"s_mov_b32 s{sSTEP}, {16*1280}")
    SL = lambda j: j & 3
    NPRE = optv("npre", 2)
    def fill(js):
        for j in js:
            for p in range(5): dma_piece(p, SL(j), vD)
            a(f"s_add_u32 s{sSO}, s{sSO}, s{sSTEP}")
    fill(range(NPRE))
    a.stamp(7)
    p2_sync(a, True, 5 * NPRE)
    for r in range(F(0), F(5)): a(f"v_mov_b32 v{r}, 0")
    fill(range(NPRE, 4))
    a.stamp(8)
    a(f"s_mul_i32 s{sT0}, s{sQ}, 27")
    a(f"s_mul_i32 s{sT0}, s{sT0}, 26")
    a(f"s_lshr_b32 s{sT0}, s{sT0}, 8")
    a(f"s_add_u32 s{sT0}, s{sT0}, 4")
    a(f"v_min_u32 v{vT0}, 3, v{vL}")
    a(f"v_add_u32 v{vT0}, s{sT0}, v{vT0}")
    a(f"v_min_u32 v{vT0}, 14, v{vT0}")
    a(f"v_lshlrev_b32 v{vT0}, 7, v{vT0}")
    a(f"s_lshr_b32 s{sT2}, s{sT}, 2")
    a(f"s_lshl_b32 s{sT2}, s{sT2}, 11")
    a(f"s_add_u32 s{sT2}, s{sT2}, {WS_F1}")
    a(f"s_mul_i32 s{sHO}, s{sQ}, {27*1024}")
    a(f"s_add_u32 s{sHO}, s{sHO}, s{sG}")
    a(f"s_add_u32 s{sHO}, s{sHO}, {20*2048}")
    poll(a, vT0, vT1, sT2, 4)
    a.stamp(9)
    for u in range(4): hload(u)
    for t in range(5): trr(WO(0), SL(0), t)
    a(f"s_mov_b32 s{sCNT}, 0")
    a("s_waitcnt vmcnt(0)")
    a.stamp(10); a.stamp(NSTAMP + 2, True)
    a.raw(".p2align 3")
    a.label("F_LOOP")
    for u in range(4):
        if u == 3:
            a(f"s_cmp_eq_u32 s{sCNT}, 6")
            a("s_cbranch_scc1 F_DONE")
            a(f"s_cmp_lg_u32 s{sCNT}, 5")
            a("s_cbranch_scc1 F_NS")
            srd(a, SA, pWO, 640 * 1280)
            wo_rows(0)
            a(f"s_mov_b32 s{sSTEP}, {20*1280}")
            a(f"s_mov_b32 s{sHO}, 0x40000000")
            a.label("F_NS")
        a("s_waitcnt vmcnt(13) lgkmcnt(0)")
        for t in range(5):
            a(f"v_mfma_f32_32x32x16_bf16 {vr(F(t), 16)}, {vr(WO((1+(u&1)) if opt('xdirect') else 0)+4*t, 4)}, {vr(HB(u), 4)}, {vr(F(t), 16)}")
            if opt("xdirect"):
                a(f"buffer_load_dwordx4 {vr(WO(1+(u&1))+4*t, 4)}, v{vD+t}, {sr(SA)}, s{sSO} offen")
            else:
                trr(WO(0), SL(u + 1), t)
                dma_piece(t, SL(u), vD)
        a(f"s_add_u32 s{sSO}, s{sSO}, s{sSTEP}")
        hload(u)
    a(f"s_add_u32 s{sCNT}, s{sCNT}, 1")
    a("s_branch F_LOOP")
    a.label("F_DONE")
    a.stamp(11); a.stamp(NSTAMP + 3, True)
    a("s_waitcnt vmcnt(13) lgkmcnt(0)")
    for t in range(5):
        trr(WO(1), SL(28), t)
        dma_piece(t, SL(27), vD)
    for p in range(5):
        a(f"v_add_u32 v{vT0}, {64*p}, v{vL}")
        a(f"v_mul_u32_u24 v{vT0}, 3277, v{vT0}")
        a(f"v_lshrrev_b32 v{vT0}, 18, v{vT0}")
        a(f"v_mul_u32_u24 v{vT0}, {16*1280}, v{vT0}")
        a(f"v_add_u32 v{vD+p}, v{vD+p}, v{vT0}")
    wo_rows(16)
    a("s_waitcnt vmcnt(12) lgkmcnt(0)")
    for t in range(5):
        trr(WO(2), SL(29), t)
        dma_piece(t, SL(28), vD)
    a(f"s_add_u32 s{sSO}, s{sSO}, {80*1280}")
    a("s_waitcnt lgkmcnt(0)")
    for t in range(5): dma_piece(t, SL(29), vD)
    final_stage(a, 0, 4, 96, 8, 9, True, 0)
    a(f"v_and_b32 v{vT0}, 31, v{vL}")
    a(f"v_mul_u32_u24 v{vT0}, 656, v{vT0}")
    a(f"v_lshrrev_b32 v{vT1}, 5, v{vL}")
    a(f"v_lshl_add_u32 v{vT0}, v{vT1}, 4, v{vT0}")
    a(f"v_add_u32 v10, s{sM0}, v{vT0}")
    a(f"s_lshl_b32 s{sT0}, s{sT}, 2")
    a(f"s_add_u32 s{sT0}, s{sT0}, s{sQ}")
    a(f"s_mul_i32 s{sHO}, s{sT0}, 10240")
    a(f"s_add_u32 s{sHO}, s{sHO}, {WS_O}")
    a(f"s_lshl_b32 s{sSO}, s{sT0}, 7")
    a(f"s_add_u32 s{sSO}, s{sSO}, {WS_F2}")
    a(f"v_mov_b32 v11, 0")
    a.stamp(13)
    a(f"s_add_u32 s{sT0}, s{sHO}, 4096")
    a(f"s_add_u32 s{sT1}, s{sHO}, 8192")
    poll(a, 11, vT0, sSO, 2)
    a.stamp(14)
    order = [0, 1, 2, 5, 6, 7, 3, 4, 8, 9]
    for k in order:
        so = (sHO, sT0, sT1)[k // 4]
        a(f"buffer_load_dwordx4 {vr(HB(k), 4)}, v{vL16}, {sr(SWS)}, s{so} offen offset:{(k%4)*1024} sc1")
    for n, k in enumerate(order):
        w = WO(n) if n < 6 else WO(n - 6)
        if n >= 6: a(f"s_waitcnt vmcnt({9-n}) lgkmcnt({min(15, 10*(9-n))})")
        else: a(f"s_waitcnt vmcnt({9-n})")
        for t in range(5):
            a(f"v_mfma_f32_32x32x16_bf16 {vr(F(t), 16)}, {vr(w+4*t, 4)}, {vr(HB(k), 4)}, {vr(F(t), 16)}")
            if n < 4: trr(WO(n), SL(30 + n), t)
    final_stage(a, 0, 4, 176, 8, 9, False, 2)
    a.stamp(15)
    for t in range(5):
        for g in range(4):
            a(f"ds_write_b128 v10, {vr(F(t)+4*g, 4)} offset:{128*t + 32*g}")
    a("s_waitcnt lgkmcnt(0)")
    a("s_barrier")
    a.stamp(16)
    final_stage(a, 0, 4, 176, 8, 9, False, 1)
    final_stage(a, 0, 4, 176, 8, 9, False, 3)
    a.end()
```

```python
import sys, struct, math

NAME = "parallel_sum__grouped_kv_mqa__dense_activation_relu__prompt"
def opt(name): return ("--" + name) in sys.argv
def optv(name, d): return int(sys.argv[sys.argv.index("--" + name) + 1]) if opt(name) else d
G_TSTRIDE = 75 * 2048
WS_G = 0
WS_KV = 64 * G_TSTRIDE
KV_REC = 3072
WS_O = (WS_KV + 66 * KV_REC + 4095) // 4096 * 4096
WS_RP = WS_O + 64 * 40 * 1024
WS_CP = WS_RP + 64 * 5120
WS_F1 = WS_CP + 64 * 5120
WS_F2 = WS_F1 + 256 * 128
WS_PROF = WS_F2 + 256 * 128
PROFILE = opt("prof")
NSTAMP = 18
WS_END = WS_PROF + (256 * 8 * 256 if PROFILE else 0)
OOB = 0x80000000
QSCALE = math.log2(math.e) / math.sqrt(20.0)
SPIN = 0x40000
PUBIT = 3 if optv("rot", 3) == 3 else 2

def f32bits(x): return struct.unpack("<I", struct.pack("<f", x))[0]

class Asm:
    def __init__(self): self.lines = []; self.n = 0
    def __call__(self, s): self.lines.append("    " + s)
    def label(self, s): self.lines.append(s + ":")
    def raw(self, s): self.lines.append(s)
    def c(self, s): self.lines.append("    ; " + s)
    def uid(self, p): self.n += 1; return f"{p}_{self.n}"
    def stamp(self, i, cyc=False):
        if PROFILE:
            self(f"s_memtime s[100:101]" if cyc else "s_memrealtime s[100:101]")
            self("s_waitcnt lgkmcnt(0)")
            self(f"s_mov_b32 s{64+i}, s100")
    def lstamp(self, slane):
        if PROFILE:
            self("s_memrealtime s[100:101]")
            self("s_waitcnt lgkmcnt(0)")
            self(f"s_mov_b32 m0, s{slane}")
            self("v_writelane_b32 v232, s100, m0")
    def ldump(self):
        if PROFILE:
            self(f"s_lshl_b32 s100, s2, 3")
            self(f"s_add_u32 s100, s100, s{sW}")
            self(f"s_lshl_b32 s100, s100, 8")
            self(f"s_add_u32 s100, s100, {WS_PROF+128}")
            self("v_lshlrev_b32 v233, 2, v1")
            self("s_mov_b64 exec, 0xffff")
            self(f"buffer_store_dword v232, v233, s[{SWS}:{SWS+3}], s100 offen")
            self("s_mov_b64 exec, -1")
    def spin(self, name):
        if opt(name):
            L = self.uid("SPIN")
            self.label(L)
            self("s_memrealtime s[100:101]")
            self("s_waitcnt lgkmcnt(0)")
            self(f"s_sub_u32 s100, s100, s{sNON if opt('spinnon') else 92}")
            self(f"s_cmp_lt_u32 s100, {optv(name, 0) * 100}")
            self(f"s_cbranch_scc1 {L}")
    def end(self):
        self.spin("spinend")
        if PROFILE:
            self("s_waitcnt vmcnt(0)")
            self.stamp(NSTAMP - 1)
            self(f"s_lshl_b32 s3, s2, 3")
            self(f"s_add_u32 s3, s3, s{sW}")
            self(f"s_lshl_b32 s3, s3, 8")
            self(f"s_add_u32 s3, s3, {WS_PROF}")
            self("s_mov_b64 exec, 1")
            self("v_mov_b32 v1, 0")
            for i in range(NSTAMP + 4):
                self(f"v_mov_b32 v2, s{64+i}")
                self(f"buffer_store_dword v2, v1, s[{SWS}:{SWS+3}], s3 offen offset:{4*i}")
        self("s_endpgm")
    def text(self): return "\n".join(self.lines) + "\n"

def vr(b, n=1): return f"v{b}" if n == 1 else f"v[{b}:{b+n-1}]"
def sr(b, n=4): return f"s{b}" if n == 1 else f"s[{b}:{b+n-1}]"
def srd(a, d, p, size):
    a(f"s_mov_b32 s{d}, s{p}")
    a(f"s_mov_b32 s{d+1}, s{p+1}")
    a(f"s_mov_b32 s{d+2}, {size}")
    a(f"s_mov_b32 s{d+3}, 0x00020000")
def csel(a, d, t, f):
    a(f"s_mov_b32 s{d}, {f}")
    a(f"s_cmov_b32 s{d}, {t}")
def split3(a, src, t0, t1, d0, d1):
    a(f"v_and_b32 v{t0}, 0xffff0000, v{src}")
    a(f"v_sub_f32 v{t1}, v{src}, v{t0}")
    a(f"v_lshrrev_b32 v{d0}, 16, v{src}")
    a(f"v_and_b32 v{t0}, 0xffff0000, v{t1}")
    a(f"v_or_b32 v{d0}, v{d0}, v{t0}")
    a(f"v_sub_f32 v{t1}, v{t1}, v{t0}")
    a(f"v_lshrrev_b32 v{d1}, 16, v{t1}")
def halfop(a, op, r, t):
    a(f"v_mov_b32 v{t}, v{r}")
    a("s_nop 1")
    a(f"v_permlane32_swap_b32 v{t}, v{r}")
    a(f"{op} v{r}, v{r}, v{t}")

SWS, SA, SB, SX, SDBG = 4, 8, 12, 16, 20
sW, sNON = 24, 25
sT0, sT1, sT2 = 29, 30, 31
pX, pWQ, pWK, pWV, pWO, pW1, pW2, pOUT, pDBG, pWS = 32, 34, 36, 38, 40, 44, 46, 48, 50, 52
sRB, sCG, sTT = 26, 27, 28
sWST, sSO, sSTEP, sM0, sC, sDEL, sCC, sOUT, sLO, sQS = range(54, 64)
sT3, sONE, sST, sSPIN = 96, 97, 98, 99
sSI = 3
sT, sHG, sQ = 26, 27, 28
sG, sMODE, sKV, sCNT, sOB, sHO = 54, 58, 59, 60, 61, 62
sPm, sPt, sBAD = 34, 42, 38

def poll(a, vaddr, vtmp, soff, sleep=1):
    L, D = a.uid("POLL"), a.uid("POLLED")
    a(f"s_mov_b32 s{sSPIN}, {SPIN}")
    a.label(L)
    a(f"buffer_load_dword v{vtmp}, v{vaddr}, {sr(SWS)}, s{soff} offen sc1")
    a("s_waitcnt vmcnt(0)")
    a(f"v_cmp_ne_u32 vcc, s{sNON}, v{vtmp}")
    a(f"s_cbranch_vccz {D}")
    a(f"s_sleep {sleep}")
    a(f"s_sub_u32 s{sSPIN}, s{sSPIN}, 1")
    a(f"s_cmp_lg_u32 s{sSPIN}, 0")
    a(f"s_cbranch_scc1 {L}")
    a.label(D)

K1_SLOT = 36864
K1_XOFF = 20480
K1_CS = 155648
K1_ST = K1_CS + 2560

WO_STAGE = [83968, 110592, 131072]
vWD = 240
sPB = 93
def gen_p1(a, p2_ffn, p2_att):
    vL, vN, vH, vT0, vT1, vT2 = 1, 2, 3, 4, 5, 6
    vZ = 7
    vX = 8
    vTR = 12
    vD = 16
    vNON = 21
    vROW = 22
    vSA = 24
    vG16, vC4 = 26, 27
    FB = [28, 32]
    FA = [36, 48]
    ACC = 64
    PUB = 112
    GAT = 160
    a(f"s_cmp_ge_u32 s2, 256")
    a("s_cbranch_scc1 L_END")
    a("s_load_dwordx16 s[32:47], s[0:1], 0")
    a("s_load_dwordx4 s[48:51], s[0:1], 64")
    a("s_load_dwordx2 s[52:53], s[0:1], 80")
    a("s_memrealtime s[100:101]")
    a(f"v_lshrrev_b32 v{vT0}, 6, v0")
    a(f"v_and_b32 v{vL}, 63, v0")
    a(f"v_readfirstlane_b32 s{sW}, v{vT0}")
    rbits = optv("rbits", 2)
    cb = rbits - 1
    a(f"s_bfe_u32 s{sRB}, s2, {((3-cb) << 16) | cb:#x}")
    a(f"s_lshl_b32 s{sRB}, s{sRB}, {rbits}")
    a(f"s_bfe_u32 s{sT0}, s2, {(rbits << 16) | 3:#x}")
    a(f"s_add_u32 s{sRB}, s{sRB}, s{sT0}")
    a(f"s_and_b32 s{sCG}, s2, {(1 << cb) - 1}")
    a(f"s_lshl_b32 s{sCG}, s{sCG}, {5-rbits}")
    a(f"s_lshr_b32 s{sT0}, s2, {3+rbits}")
    a(f"s_add_u32 s{sCG}, s{sCG}, s{sT0}")
    a(f"s_and_b32 s{sTT}, s{sW}, 3")
    a(f"s_mul_i32 s{sST}, s{sRB}, 3")
    a(f"s_add_u32 s{sST}, s{sST}, s{sCG}")
    a(f"s_mul_i32 s{sT0}, s{sST}, 26")
    a(f"s_lshr_b32 s{sT0}, s{sT0}, 8")
    a(f"s_mul_i32 s{sT0}, s{sT0}, 10")
    a(f"s_sub_u32 s{sST}, s{sST}, s{sT0}")
    rot = optv("rot", 3)
    if rot == 10:
        a(f"s_mov_b32 s{sCC}, s{sST}")
    elif rot == 5:
        a(f"s_and_b32 s{sCC}, s{sST}, 14")
    elif rot == 3:
        a(f"s_mul_i32 s{sCC}, s{sST}, 86")
        a(f"s_lshr_b32 s{sCC}, s{sCC}, 8")
        a(f"s_min_u32 s{sCC}, s{sCC}, 2")
        a(f"s_mul_i32 s{sCC}, s{sCC}, 3")
    a(f"s_sub_u32 s{sSI}, s{sST}, s{sCC}")
    a(f"s_max_u32 s95, s{sSI}, 1")
    a(f"s_lshl_b32 s{sT0}, s{sRB}, 2")
    a(f"s_add_u32 s{sT3}, s{sT0}, s{sTT}")
    a(f"v_mov_b32 v{vZ}, 0")
    a(f"s_cmp_ge_u32 s{sW}, 4")
    a("s_cbranch_scc1 P1_B")
    a(f"s_cmp_eq_u32 s{sCG}, 15")
    a("s_cbranch_scc1 P1_KA")

    def common_setup():
        srd(a, SWS, pWS, WS_END)
        srd(a, SDBG, pDBG, 256)
        a(f"s_mov_b32 s{sONE}, 0x3f803f80")
        a(f"v_and_b32 v{vN}, 31, v{vL}")
        a(f"v_lshrrev_b32 v{vH}, 5, v{vL}")
        a(f"v_bfe_u32 v{vT0}, v{vL}, 1, 3")
        a(f"v_xor_b32 v{vT0}, v{vT0}, v{vH}")
        a(f"s_lshl_b32 s{sT0}, s{sTT}, 12")
        a(f"s_add_u32 s{sT0}, s{sT0}, {K1_XOFF}")
        a(f"v_lshl_add_u32 v{vT1}, v{vN}, 7, s{sT0}")
        for s in range(4):
            a(f"v_xor_b32 v{vT2}, {2*s}, v{vT0}")
            a(f"v_lshl_add_u32 v{vX+s}, v{vT2}, 4, v{vT1}")
        a(f"v_bfe_u32 v{vT0}, v{vL}, 2, 2")
        a(f"v_lshl_add_u32 v{vROW}, v{vH}, 3, v{vT0}")
        a(f"v_bfe_u32 v{vG16}, v{vL}, 4, 1")
        a(f"v_and_b32 v{vC4}, 3, v{vL}")
        a(f"s_mul_i32 s{sOUT}, s{sT3}, {G_TSTRIDE}")
        a(f"s_mul_i32 s{sT0}, s{sCG}, 10240")
        a(f"s_add_u32 s{sOUT}, s{sOUT}, s{sT0}")
        a(f"s_cmp_lt_u32 s{sCG}, 4")
        a(f"s_cselect_b32 s{sLO}, 0x80008000, 0")
        a(f"s_cselect_b32 s{sQS}, {f32bits(QSCALE):#x}, 1.0")

    def x_dma_setup():
        a(f"s_lshl_b32 s{sT0}, s{sT3}, 5")
        a(f"v_lshrrev_b32 v{vT0}, 3, v{vL}")
        a(f"v_add_u32 v{vT0}, s{sT0}, v{vT0}")
        a(f"v_mul_u32_u24 v{vT0}, 1280, v{vT0}")
        a(f"v_lshrrev_b32 v{vT1}, 4, v{vL}")
        a(f"v_and_b32 v{vT2}, 7, v{vL}")
        a(f"v_xor_b32 v{vT1}, v{vT1}, v{vT2}")
        a(f"v_lshl_add_u32 v{vD}, v{vT1}, 4, v{vT0}")
        a(f"v_xor_b32 v{vT1}, 4, v{vT1}")
        a(f"v_lshl_add_u32 v{vD+1}, v{vT1}, 4, v{vT0}")
        a(f"v_add_u32 v{vD+1}, {8*1280}, v{vD+1}")
        a(f"v_add_u32 v{vD+2}, {16*1280}, v{vD}")
        a(f"v_add_u32 v{vD+3}, {16*1280}, v{vD+1}")
        a(f"s_lshl_b32 s{sSO}, s{sCC}, 7")
        a(f"s_mov_b32 s{sSTEP}, 128")
        a(f"s_lshl_b32 s{sM0}, s{sTT}, 12")
        a(f"s_add_u32 s{sM0}, s{sM0}, {K1_XOFF}")
        a("s_waitcnt lgkmcnt(0)")
        srd(a, SX, pX, 2048 * 1280)

    def w_dma_setup():
        a(f"s_sub_u32 s{sT0}, s{sCG}, 4")
        a(f"s_cmp_lt_u32 s{sCG}, 4")
        csel(a, sWST, 1280, 3456)
        a(f"s_cselect_b32 s{sT0}, s{sCG}, s{sT0}")
        a(f"s_mul_i32 s{sT0}, s{sT0}, 320")
        a(f"s_lshl_b32 s{sT1}, s{sCC}, 2")
        a(f"s_add_u32 s{sT1}, s{sT1}, s{sW}")
        a(f"s_lshl_b32 s{sT1}, s{sT1}, 4")
        a(f"s_mul_i32 s{sT1}, s{sT1}, s{sWST}")
        a(f"s_add_u32 s{sSO}, s{sT0}, s{sT1}")
        a(f"s_sub_u32 s{sT2}, s{sWST}, 320")
        for p in range(5):
            a(f"v_add_u32 v{vT0}, {64*p}, v{vL}")
            a(f"v_mul_u32_u24 v{vT1}, 3277, v{vT0}")
            a(f"v_lshrrev_b32 v{vT1}, 16, v{vT1}")
            a(f"v_lshlrev_b32 v{vT0}, 4, v{vT0}")
            a(f"v_mad_u32_u24 v{vD+p}, v{vT1}, s{sT2}, v{vT0}")
        a(f"s_lshl_b32 s{sSTEP}, s{sWST}, 6")
        a(f"s_mul_i32 s{sM0}, s{sW}, 5120")
        a(f"s_cmp_lt_u32 s{sCG}, 4")
        a("s_waitcnt lgkmcnt(0)")
        a(f"s_cselect_b32 s{SA}, s{pWQ}, s{pW1}")
        a(f"s_cselect_b32 s{SA+1}, s{pWQ+1}, s{pW1+1}")
        csel(a, SA + 2, 640 * 640 * 2, 640 * 1728 * 2)
        a(f"s_mov_b32 s{SA+3}, 0x00020000")

    def tr_addr(dst, tile):
        a(f"s_cmp_lt_u32 s{sCG}, 4")
        if tile == 4:
            a(f"s_cselect_b32 s{sT0}, 32, 256" if False else f"s_cselect_b32 s{sT0}, 32, 0x100")
            a(f"s_cselect_b32 s{sT1}, 160, 32")
            a(f"s_cselect_b32 s{sT2}, 40, 8")
            a(f"v_mad_u32_u24 v{dst}, v{vC4}, s{sT2}, v{vROW}")
        else:
            a(f"s_cselect_b32 s{sT1}, 40, 32")
            if isinstance(tile, tuple):
                a(f"s_lshl_b32 s{sT0}, s{sT1}, 1")
                a(f"s_mul_i32 s{sT0}, s{sT0}, s{tile[1]}")
            else:
                a(f"s_mul_i32 s{sT0}, s{sT1}, {2*tile}")
            a(f"v_lshl_add_u32 v{dst}, v{vC4}, 3, v{vROW}")
        a(f"v_mad_u32_u24 v{dst}, v{vG16}, s{sT1}, v{dst}")
        a(f"v_add_u32 v{dst}, s{sT0}, v{dst}")

    def body(tag, role, kv):
        nt = 1 if kv else (3 if role == "A" else 2)
        tiles = [0 if role == "A" else 1] if kv else ([0, 1, 2] if role == "A" else [3, 4])
        sstr, rstr = (1024, 40) if kv else (5120, 320)
        ndma = 4 if role == "B" else (2 if kv else 5)
        ng = 5
        def piece(p, nop=True):
            if role == "A" and kv:
                a(f"s_add_u32 m0, s{sM0}, {4096*p}")
                a("s_nop 0")
                a(f"buffer_load_dwordx4 v{vD}, {sr(SA if p == 0 else SB)}, s{sSO} offen lds")
            else:
                a(f"s_add_u32 m0, s{sM0}, {1024*p}")
                a("s_nop 0")
                a(f"buffer_load_dwordx4 v{vD+p}, {sr(SX if role == 'B' else SA)}, s{sSO} offen lds")
        def advance():
            a(f"s_mul_i32 s{sT0}, s{sSTEP}, -9")
            a(f"s_add_u32 s{sCC}, s{sCC}, 1")
            a(f"s_cmp_eq_u32 s{sCC}, 10")
            a(f"s_cselect_b32 s{sCC}, 0, s{sCC}")
            a(f"s_cselect_b32 s{sT0}, s{sT0}, s{sSTEP}")
            a(f"s_add_u32 s{sSO}, s{sSO}, s{sT0}")
        def dma_next():
            for p in range(ndma): piece(p)
            advance()
            a(f"s_add_u32 s{sM0}, s{sM0}, {K1_SLOT}")
        if PROFILE: a("s_mov_b32 s64, s100")
        if opt("spinend") or opt("spinmid") or opt("spin0") or opt("spinatt"): a("s_mov_b32 s92, s100")
        a.stamp(1)
        dma_next()
        if opt("bar0"): a("s_barrier")
        common_setup()
        if role == "A":
            L = a.uid("NONCE")
            a(f"s_or_b32 s{sT0}, s2, s{sW}")
            a(f"s_cbranch_scc1 {L}")
            if PROFILE: a("s_or_b32 s100, s65, 1")
            else: a("s_or_b32 s100, s100, 1")
            a(f"v_mov_b32 v{vT0}, s100")
            a(f"buffer_store_dword v{vT0}, v{vZ}, {sr(SDBG)}, 0 offen sc1")
            a.label(L)
        dma_next()
        if opt("bar1"): a("s_barrier")
        if kv:
            a(f"v_lshl_add_u32 v{vT0}, v{vG16}, 2, v{vC4}")
            a(f"v_min_u32 v{vT0}, 4, v{vT0}")
            a(f"v_mul_u32_u24 v{vROW}, 40, v{vROW}")
            a(f"v_lshl_add_u32 v{vSA}, v{vT0}, 3, v{vROW}")
            a(f"v_add_u32 v{vSA+1}, 4096, v{vSA}")
            a(f"v_mov_b32 v{vTR}, v{vSA + tiles[0]}")
        else:
            a(f"v_mul_u32_u24 v{vROW}, 320, v{vROW}")
            for i, t in enumerate(tiles): tr_addr(vTR + i, t)
            if role == "A":
                tr_addr(vSA, ("s", sW)); tr_addr(vSA + 1, 4)
        if role == "A":
            a(f"s_mul_i32 s{sT0}, s{sSI}, {K1_SLOT}")
            a(f"v_add_u32 v{vSA}, s{sT0}, v{vSA}")
            a(f"v_add_u32 v{vSA+1}, s{sT0}, v{vSA+1}")
        dma_next()
        if kv:
            a(f"s_lshl_b32 s{sT0}, s{sRB}, 3")
            a(f"s_add_u32 s{sT0}, s{sT0}, s{sW}")
            srd(a, 88, pWO, 640 * 1280)
            a(f"s_mul_i32 s{sT1}, s{sT0}, {50*128}")
            a(f"v_lshlrev_b32 v{vT0}, 7, v{vL}")
            a(f"buffer_load_dword v230, v{vT0}, s[88:91], s{sT1} offen")
        for i in range(16 * nt): a(f"v_mov_b32 v{ACC+i}, 0")
        for i in range(4): a(f"v_mov_b32 v{PUB+i}, 0")
        if role == "A":
            for p in range(5):
                a(f"v_add_u32 v{vT0}, {64*p}, v{vL}")
                a(f"v_mul_u32_u24 v{vT1}, 3277, v{vT0}")
                a(f"v_lshrrev_b32 v{vT1}, 16, v{vT1}")
                a(f"v_lshlrev_b32 v{vT0}, 4, v{vT0}")
                a(f"v_mul_u32_u24 v{vWD+p}, 960, v{vT1}")
                a(f"v_add_u32 v{vWD+p}, v{vWD+p}, v{vT0}")
        if role == "B":
            a(f"s_mul_i32 s{sPB}, s{sT3}, 5120")
            a(f"s_add_u32 s{sPB}, s{sPB}, {WS_RP}")
        else:
            a(f"s_lshl_b32 s{sPB}, s{sCG}, 2")
            a(f"s_add_u32 s{sPB}, s{sPB}, s{sW}")
            a(f"s_mul_i32 s{sPB}, s{sPB}, 5120")
            a(f"s_add_u32 s{sPB}, s{sPB}, {WS_CP}")
        a(f"s_waitcnt vmcnt({2*ndma + (1 if kv else 0)})")
        a.stamp(2)
        a("s_barrier")
        a(f"ds_read_b128 {vr(FB[0], 4)}, v{vX}")
        for i in range(nt):
            a(f"ds_read_b64_tr_b16 {vr(FA[0]+4*i, 2)}, v{vTR+i}")
            a(f"ds_read_b64_tr_b16 {vr(FA[0]+4*i+2, 2)}, v{vTR+i} offset:{4*rstr}")
        a.spin("spin0")
        a(f"buffer_load_dword v{vNON}, v{vZ}, {sr(SDBG)}, 0 offen sc1")
        a(f"s_mov_b32 s{sC}, 0")
        a.stamp(3); a.stamp(NSTAMP, True)
        a.raw(".p2align 3")
        a.label(f"P1_L{tag}")
        a(f"s_cmp_eq_u32 s{sC}, s{sSI}")
        a(f"s_cbranch_scc1 P1_ST{tag}")
        a.label(f"P1_M{tag}")
        slots = [(s, i) for s in range(3) for i in range(nt)]
        where = {}
        for p in range(ndma):
            where.setdefault(slots[(p * len(slots)) // ndma + (1 if (role == "B" and not kv) else 0)], []).append(p)
        def step(s, pre=None):
            p, q, ns = s & 1, (s + 1) & 1, (s + 1) & 3
            for i in range(nt):
                if pre is None:
                    a(f"s_waitcnt lgkmcnt({2*(nt-1-i) + ((1 + 2*i) if i else 0)})")
                a(f"v_mfma_f32_32x32x16_bf16 {vr(ACC+16*i, 16)}, {vr(FA[p]+4*i, 4)}, {vr(FB[p], 4)}, {vr(ACC+16*i, 16)}")
                if i == 0:
                    if pre is not None: pre()
                    a(f"ds_read_b128 {vr(FB[q], 4)}, v{vX+ns}")
                a(f"ds_read_b64_tr_b16 {vr(FA[q]+4*i, 2)}, v{vTR+i} offset:{ns*sstr}")
                a(f"ds_read_b64_tr_b16 {vr(FA[q]+4*i+2, 2)}, v{vTR+i} offset:{ns*sstr+4*rstr}")
                for pp in where.get((s, i), []): piece(pp)
        for s in range(3): step(s)
        advance()
        a(f"s_and_b32 s{sT0}, s{sC}, 3")
        a(f"s_cmp_eq_u32 s{sT0}, 0")
        csel(a, sT1, -3*K1_SLOT, K1_SLOT)
        a(f"s_add_u32 s{sM0}, s{sM0}, s{sT1}")
        a(f"s_cmp_eq_u32 s{sT0}, 3")
        csel(a, sDEL, -3*K1_SLOT, K1_SLOT)
        for s in range(4): a(f"v_add_u32 v{vX+s}, s{sDEL}, v{vX+s}")
        for i in range(nt): a(f"v_add_u32 v{vTR+i}, s{sDEL}, v{vTR+i}")
        a(f"s_cmp_ge_u32 s{sC}, 7")
        a("s_waitcnt lgkmcnt(0)")
        def pre():
            a(f"s_cbranch_scc1 P1_W0{tag}")
            a(f"s_waitcnt vmcnt({2*ndma})")
            a.label(f"P1_W0{tag}")
            a(f"s_waitcnt vmcnt({2*ndma + ng + 1})")
            a("s_barrier")
        step(3, pre)
        a(f"s_cmp_ge_u32 s{sC}, 6")
        a(f"s_cbranch_scc1 P1_ND{tag}")
        a(f"s_cmp_eq_u32 s{sC}, s95")
        a(f"s_cbranch_scc1 P1_PUB{tag}")
        a.label(f"P1_NX{tag}")
        a.lstamp(sC)
        a(f"s_add_u32 s{sC}, s{sC}, 1")
        a(f"s_branch P1_L{tag}")
        a.label(f"P1_ST{tag}")
        if role == "B":
            for s in range(4): a(f"ds_read_b128 {vr(GAT+4*s, 4)}, v{vX+s}")
        else:
            for e in range(2):
                for s in range(4):
                    a(f"ds_read_b64_tr_b16 {vr(GAT+16*e+4*s, 2)}, v{vSA+e} offset:{s*sstr}")
                    a(f"ds_read_b64_tr_b16 {vr(GAT+16*e+4*s+2, 2)}, v{vSA+e} offset:{s*sstr+4*rstr}")
        a("s_waitcnt lgkmcnt(0)")
        for j in range(16):
            if role == "B":
                a(f"v_dot2c_f32_bf16 v{PUB}, s{sONE}, v{GAT+j}")
                a(f"v_dot2c_f32_bf16 v{PUB+2}, v{GAT+j}, v{GAT+j}")
            else:
                a(f"v_dot2c_f32_bf16 v{PUB}, s{sONE}, v{GAT+j}")
                a(f"v_dot2c_f32_bf16 v{PUB+2}, s{sONE}, v{GAT+16+j}")
        a(f"s_branch P1_M{tag}")
        a.label(f"P1_PUB{tag}")
        a(f"s_mov_b32 s{sSPIN}, {SPIN}")
        a.label(f"P1_PB0{tag}")
        a(f"v_readfirstlane_b32 s{sNON}, v{vNON}")
        a(f"s_cmp_lg_u32 s{sNON}, 0")
        a(f"s_cbranch_scc1 P1_PB1{tag}")
        a(f"buffer_load_dword v{vNON}, v{vZ}, {sr(SDBG)}, 0 offen sc1")
        a(f"s_sub_u32 s{sSPIN}, s{sSPIN}, 1")
        a(f"s_cmp_lg_u32 s{sSPIN}, 0")
        a("s_waitcnt vmcnt(0)")
        a(f"s_cbranch_scc1 P1_PB0{tag}")
        a.label(f"P1_PB1{tag}")
        halfop(a, "v_add_f32", PUB, vT0); halfop(a, "v_add_f32", PUB + 2, vT0)
        a(f"v_mov_b32 v{PUB+1}, v{vNON}")
        a(f"v_mov_b32 v{PUB+3}, v{vNON}")
        a(f"s_lshl_b32 s{sT1}, s{sST}, 9")
        a(f"s_add_u32 s{sT0}, s{sPB}, s{sT1}")
        a(f"v_lshlrev_b32 v{vT0}, 4, v{vN}")
        a("s_mov_b32 exec_hi, 0")
        a(f"buffer_store_dwordx4 {vr(PUB, 4)}, v{vT0}, {sr(SWS)}, s{sT0} offen sc1")
        a("s_mov_b32 exec_hi, -1")
        a(f"s_branch P1_NX{tag}")
        a.label(f"P1_ND{tag}")
        a(f"s_cmp_eq_u32 s{sC}, 9")
        a(f"s_cbranch_scc1 P1_DONE{tag}")
        if role == "A" and not kv:
            a(f"s_cmp_eq_u32 s{sC}, 7")
            csel(a, sT0, WO_STAGE[1], WO_STAGE[0])
            a(f"s_cmp_eq_u32 s{sC}, 8")
            a(f"s_cmov_b32 s{sT0}, {WO_STAGE[2]}")
            a(f"s_mul_i32 s{sM0}, s{sW}, 5120")
            a(f"s_add_u32 s{sM0}, s{sM0}, s{sT0}")
        else:
            a(f"s_mov_b32 s{sM0}, 0x30000")
        if kv and role == "A":
            a(f"s_cmp_lg_u32 s{sC}, 8")
            a(f"s_cbranch_scc1 P1_NI{tag}")
            a(f"s_mul_i32 s{sT2}, s{sW}, 5120")
            for i in range(3):
                for p in range(5):
                    a(f"s_add_u32 m0, s{sT2}, {WO_STAGE[i] + p*1024}")
                    a("s_nop 0")
                    a(f"buffer_load_dwordx4 v{vWD+p}, s[88:91], s94 offen lds")
                a(f"s_add_u32 s94, s94, {20*1280}")
            a.label(f"P1_NI{tag}")
        a(f"s_cmp_eq_u32 s{sC}, 7")
        a(f"s_cbranch_scc1 P1_NX{tag}")
        a(f"s_mov_b32 s{sSPIN}, {SPIN}")
        a(f"s_cmp_eq_u32 s{sC}, 8")
        a(f"s_cbranch_scc1 P1_FIN{tag}")
        if role == "A":
            a(f"s_bfe_u32 s{sT0}, s2, 0x20003")
            a(f"s_mul_i32 s{sT0}, s{sT0}, 320")
            a(f"s_mul_i32 s94, s{sW}, {160*1280}")
            a(f"s_add_u32 s94, s94, s{sT0}")
            a(f"s_add_u32 s94, s94, {100*1280}")
        if role == "A" and not kv:
            srd(a, SA, pWO, 640 * 1280)
            a(f"s_mov_b32 s{sSO}, s94")
            a(f"s_mov_b32 s{sSTEP}, {20*1280}")
            a(f"s_mov_b32 s{sCC}, 0")
            for p in range(5): a(f"v_mov_b32 v{vD+p}, v{vWD+p}")
        elif role == "A":
            a(f"s_mov_b32 s{SA+2}, 0")
            a(f"s_mov_b32 s{SB+2}, 0")
        else:
            a(f"s_mov_b32 s{SX+2}, 0")
        a.label(f"P1_GA{tag}")
        a(f"v_mul_u32_u24 v{vT0}, 2560, v{vH}")
        a(f"v_lshl_add_u32 v{vT0}, v{vN}, 4, v{vT0}")
        for j in range(5): a(f"buffer_load_dwordx4 {vr(GAT+4*j, 4)}, v{vT0}, {sr(SWS)}, s{sPB} offen offset:{512*j} sc1")
        a(f"s_cmp_lg_u32 s{sC}, 6")
        a(f"s_cbranch_scc1 P1_GW{tag}")
        srd(a, SDBG, pW2, 1728 * 1280)
        a(f"s_lshl_b32 s{sT0}, s2, 3")
        a(f"s_add_u32 s{sT0}, s{sT0}, s{sW}")
        a(f"s_mul_i32 s{sT0}, s{sT0}, {9*128}")
        a(f"v_lshlrev_b32 v{vT0}, 7, v{vL}")
        a("s_mov_b64 exec, 0x1ff")
        a(f"buffer_load_dword v231, v{vT0}, {sr(SDBG)}, s{sT0} offen")
        a("s_mov_b64 exec, -1")
        a(f"s_branch P1_NX{tag}")
        a.label(f"P1_GW{tag}")
        a("s_waitcnt vmcnt(0)")
        a.label(f"P1_FIN{tag}")
        a(f"s_waitcnt vmcnt({2*ndma + 1 + (15 if (kv and role == 'A') else 0)})")
        a(f"v_xor_b32 v{vT1}, s{sNON}, v{GAT+1}")
        for j in range(1, 10):
            a(f"v_xor_b32 v{vT2}, s{sNON}, v{GAT+2*j+1}")
            a(f"v_or_b32 v{vT1}, v{vT1}, v{vT2}")
        a(f"v_cmp_ne_u32 vcc, 0, v{vT1}")
        a(f"s_cbranch_vccz P1_FOK{tag}")
        a("s_sleep 1")
        a(f"s_sub_u32 s{sSPIN}, s{sSPIN}, 1")
        a(f"s_cmp_lg_u32 s{sSPIN}, 0")
        a(f"s_cbranch_scc1 P1_GA{tag}")
        a.label(f"P1_FOK{tag}")
        for j in range(1, 5):
            a(f"v_add_f32 v{GAT}, v{GAT}, v{GAT+4*j}")
            a(f"v_add_f32 v{GAT+2}, v{GAT+2}, v{GAT+4*j+2}")
        if role == "B":
            SU, SQ, S = GAT, GAT + 2, PUB
            halfop(a, "v_add_f32", SU, vT0); halfop(a, "v_add_f32", SQ, vT0)
            a(f"v_mul_f32 v{SU}, {f32bits(1.0/640):#x}, v{SU}")
            a(f"v_mul_f32 v{SQ}, {f32bits(1.0/640):#x}, v{SQ}")
            a(f"v_fma_f32 v{SQ}, -v{SU}, v{SU}, v{SQ}")
            a(f"v_max_f32 v{SQ}, 0, v{SQ}")
            a(f"v_cvt_pk_bf16_f32 v{S}, -v{SU}, -v{SU}")
            a(f"v_cvt_pk_bf16_f32 v{SQ}, v{SQ}, v{SQ}")
            a(f"v_and_b32 v{SQ}, 0xffff0000, v{SQ}")
            a(f"v_add_f32 v{SQ}, {f32bits(1e-5):#x}, v{SQ}")
            a(f"v_cvt_pk_bf16_f32 v{SQ}, v{SQ}, v{SQ}")
            a(f"v_and_b32 v{SQ}, 0xffff0000, v{SQ}")
            a(f"v_sqrt_f32 v{SQ}, v{SQ}")
            a(f"s_lshl_b32 s{sT0}, s{sTT}, 8")
            a(f"v_cvt_pk_bf16_f32 v{SQ}, v{SQ}, v{SQ}")
            a(f"v_and_b32 v{SQ}, 0xffff0000, v{SQ}")
            a(f"v_rcp_f32 v{SQ}, v{SQ}")
            a(f"s_add_u32 s{sT0}, s{sT0}, {K1_ST}")
            a(f"v_mul_f32 v{S+1}, s{sQS}, v{SQ}")
            a(f"v_lshl_add_u32 v{vT0}, v{vN}, 3, s{sT0}")
            a(f"ds_write_b64 v{vT0}, {vr(S, 2)}")
        else:
            for e in range(2):
                split3(a, GAT + 2 * e, vT0, vT1, PUB + 2 * e, PUB + 2 * e + 1)
                if kv or e == 1:
                    a(f"v_lshlrev_b32 v{vT0}, 3, v{vL}")
                    a(f"v_add_u32 v{vT0}, {K1_CS + 512 * (e if kv else 4)}, v{vT0}")
                else:
                    a(f"s_lshl_b32 s{sT0}, s{sW}, 9")
                    a(f"s_add_u32 s{sT0}, s{sT0}, {K1_CS}")
                    a(f"v_lshl_add_u32 v{vT0}, v{vL}, 3, s{sT0}")
                a(f"ds_write_b64 v{vT0}, {vr(PUB+2*e, 2)}")
        a(f"s_branch P1_NX{tag}")
        a.label(f"P1_DONE{tag}")
        a.stamp(4); a.stamp(NSTAMP + 1, True)
        a.spin("spinmid")
        if role == "B": a("s_setprio 1")
        ST, NM, CSR = GAT, GAT + 2, GAT + 4
        a(f"s_lshl_b32 s{sT0}, s{sTT}, 8")
        a(f"s_add_u32 s{sT0}, s{sT0}, {K1_ST}")
        a(f"v_lshl_add_u32 v{vT0}, v{vN}, 3, s{sT0}")
        a(f"v_lshlrev_b32 v{vT1}, 3, v{vL}")
        a(f"v_add_u32 v{vT1}, {K1_CS}, v{vT1}")
        a(f"ds_read_b64 {vr(ST, 2)}, v{vT0}")
        for i, t in enumerate(tiles): a(f"ds_read_b64 {vr(CSR+2*i, 2)}, v{vT1} offset:{512*t}")
        a(f"v_lshlrev_b32 v{vT2}, 4, v{vL}")
        a("s_waitcnt lgkmcnt(0)")
        a(f"v_mov_b32 v{NM}, v{ST}")
        a(f"v_mov_b32 v{NM+1}, v{ST}")
        a(f"v_mov_b32 v{ST}, v{ST+1}")
        a("s_nop 0")
        for i in range(nt):
            a(f"v_mfma_f32_32x32x8_bf16 {vr(ACC+16*i, 16)}, {vr(CSR+2*i, 2)}, {vr(NM, 2)}, {vr(ACC+16*i, 16)}")
        a(f"s_nop {12 - nt}")
        if not kv:
            for i, t in enumerate(tiles):
                P = 128 + 8 * i
                for j in range(8): a(f"v_pk_mul_f32 {vr(ACC+16*i+2*j, 2)}, {vr(ACC+16*i+2*j, 2)}, {vr(ST, 2)}")
                for j in range(8): a(f"v_cvt_pk_bf16_f32 v{P+j}, v{ACC+16*i+2*j}, v{ACC+16*i+2*j+1}")
                for j in range(8): a(f"v_pk_max_i16 v{P+j}, v{P+j}, s{sLO}")
                a(f"s_add_u32 s{sT0}, s{sOUT}, {2048*t}")
                a(f"buffer_store_dwordx4 {vr(P, 4)}, v{vT2}, {sr(SWS)}, s{sT0} offen sc1")
                a(f"buffer_store_dwordx4 {vr(P+4, 4)}, v{vT2}, {sr(SWS)}, s{sT0} offen offset:1024 sc1")
        else:
            P = 128
            a(f"s_mul_i32 s{sT0}, s{sT3}, {KV_REC}")
            a(f"s_add_u32 s{sT0}, s{sT0}, {WS_KV}")
            for j in range(6): a(f"v_pk_mul_f32 {vr(ACC+2*j, 2)}, {vr(ACC+2*j, 2)}, {vr(ST, 2)}")
            if role == "A":
                for j in range(6): a(f"v_cvt_pk_bf16_f32 v{P+j}, v{ACC+2*j}, v{ACC+2*j+1}")
                a(f"v_min_u32 v{vT0}, 32, v{vL}")
                a(f"v_lshlrev_b32 v{vT0}, 3, v{vT0}")
                a("s_mov_b32 exec_lo, 0")
                a(f"v_mov_b32 v{P+4}, 0x3f803f80")
                a(f"v_mov_b32 v{P+5}, 0x3f80")
                a("s_mov_b32 exec_lo, -1")
                a(f"buffer_store_dwordx4 {vr(P, 4)}, v{vT2}, {sr(SWS)}, s{sT0} offen sc1")
                a(f"buffer_store_dwordx2 {vr(P+4, 2)}, v{vT0}, {sr(SWS)}, s{sT0} offen offset:2560 sc1")
            else:
                a("s_mov_b32 exec_lo, 0")
                a(f"v_mov_b32 v{ACC+8}, 1.0")
                a("s_mov_b32 exec_lo, -1")
                for j in range(6): a(f"v_cvt_pk_bf16_f32 v{P+j}, v{ACC+2*j}, v{ACC+2*j+1}")
                a(f"s_mul_i32 s{sT1}, s{sTT}, 1536")
                a(f"s_add_u32 s{sT1}, s{sT1}, 104448")
                a(f"v_lshrrev_b32 v{vT0}, 3, v{vN}")
                a(f"v_mul_u32_u24 v{vT0}, 384, v{vT0}")
                a(f"v_and_b32 v{vT1}, 7, v{vN}")
                a(f"v_lshl_add_u32 v{vT0}, v{vT1}, 1, v{vT0}")
                a(f"v_lshl_add_u32 v{vT0}, v{vH}, 6, v{vT0}")
                a(f"v_add_u32 v{vT0}, s{sT1}, v{vT0}")
                for r in range(12):
                    op = "ds_write_b16" if r % 2 == 0 else "ds_write_b16_d16_hi"
                    a(f"{op} v{vT0}, v{P+r//2} offset:{(r//4)*128 + (r%4)*16}")
                a(f"v_add_u32 v{vT0}, s{sT1}, v{vT2}")
                a("s_waitcnt lgkmcnt(0)")
                a(f"ds_read_b128 {vr(P+8, 4)}, v{vT0}")
                a(f"ds_read_b128 {vr(P+12, 4)}, v{vT0} offset:1024")
                a("s_waitcnt lgkmcnt(0)")
                a(f"buffer_store_dwordx4 {vr(P+8, 4)}, v{vT2}, {sr(SWS)}, s{sT0} offen offset:1024 sc1")
                a("s_mov_b32 exec_hi, 0")
                a(f"buffer_store_dwordx4 {vr(P+12, 4)}, v{vT2}, {sr(SWS)}, s{sT0} offen offset:2048 sc1")
                a("s_mov_b32 exec_hi, -1")
        a.stamp(5)
        if role == "A": a(f"s_waitcnt vmcnt({2*nt})")
        a.ldump()
        a(f"s_branch {'P2_FFN' if role == 'A' else 'P2_ATT'}")

    w_dma_setup(); body("GA", "A", False)
    a.label("P1_B")
    x_dma_setup()
    a(f"s_cmp_eq_u32 s{sCG}, 15")
    a("s_cbranch_scc1 P1_KB")
    body("GB", "B", False)
    a.label("P1_KA")
    a(f"v_lshlrev_b32 v{vD}, 4, v{vL}")
    a(f"s_lshl_b32 s{sSO}, s{sCC}, 2")
    a(f"s_add_u32 s{sSO}, s{sSO}, s{sW}")
    a(f"s_mul_i32 s{sSO}, s{sSO}, 640")
    a(f"s_mov_b32 s{sSTEP}, 2560")
    a(f"s_lshl_b32 s{sM0}, s{sW}, 10")
    a("s_waitcnt lgkmcnt(0)")
    srd(a, SA, pWK, 640 * 40)
    srd(a, SB, pWV, 640 * 40)
    body("KA", "A", True)
    a.label("P1_KB")
    body("KB", "B", True)

def kdesc(name, nv, ns=102):
    return f""".amdhsa_kernel {name}
  .amdhsa_next_free_vgpr {nv}
  .amdhsa_next_free_sgpr {ns}
  .amdhsa_accum_offset {(nv+3)//4*4}
  .amdhsa_group_segment_fixed_size 0
  .amdhsa_kernarg_size 88
  .amdhsa_user_sgpr_count 2
  .amdhsa_user_sgpr_kernarg_segment_ptr 1
  .amdhsa_system_sgpr_workgroup_id_x 1
.end_amdhsa_kernel
"""

def build():
    from g2p2 import gen_ffn, gen_att, LDS_BYTES
    hdr = open("cdna_kernels/" + NAME + ".s.ref").read().split("; Override launch")[0]
    out = hdr
    out += f"; @launch grid=(256,1,1) block=(512,1,1) lds={LDS_BYTES}\n"
    out += '.amdgcn_target "amdgcn-amd-amdhsa--gfx950"\n.text\n'
    a = Asm()
    k = NAME + "_kernel"
    a.raw(f".globl {k}\n.p2align 8\n.type {k},@function")
    a.label(k)
    gen_p1(a, None, None)
    a.label("P2_ATT")
    gen_att(a)
    a.label("P2_FFN")
    gen_ffn(a)
    a.label("L_END")
    a("s_endpgm")
    out += a.text()
    out += '.section .rodata,"a"\n.p2align 6\n' + kdesc(k, 256)
    return out

if __name__ == "__main__":
    path = sys.argv[1] if len(sys.argv) > 1 and not sys.argv[1].startswith("--") else "cdna_kernels/" + NAME + ".s"
    open(path, "w").write(build())
```

```python
from g6 import *

def cnt_arrive(a, vaddr, vtmp, inc="1", off=0):
    a(f"v_mov_b32 v{vtmp}, {inc}")
    a("s_mov_b64 exec, 1")
    a(f"ds_add_u32 v{vaddr}, v{vtmp}" + (f" offset:{off}" if off else ""))
    a("s_mov_b64 exec, -1")
def cnt_wait(a, vaddr, vtmp, tgt, sleep=0, off=0):
    L, D = a.uid("CW"), a.uid("CWD")
    a(f"s_mov_b32 s{sSPIN}, {SPIN * 16}")
    a.label(L)
    a(f"ds_read_b32 v{vtmp}, v{vaddr}" + (f" offset:{off}" if off else ""))
    a("s_waitcnt lgkmcnt(0)")
    a(f"v_readfirstlane_b32 s{sT0}, v{vtmp}")
    a(f"s_and_b32 s{sT2}, s{sT0}, 0xffff")
    a(f"s_cmp_ge_u32 s{sT2}, {tgt}")
    a(f"s_cbranch_scc1 {D}")
    if sleep: a(f"s_sleep {sleep}")
    spin_tail(a, L)
    a.label(D)

def final_stage(a, base_item, X, R, vA, vG, load_x, do_rest):
    if load_x and load_x != "load":
        if base_item: a(f"v_add_u32 v{vA}, {base_item}, v0")
        else: a(f"v_mov_b32 v{vA}, v0")
        a(f"v_mul_u32_u24 v{vG}, 3277, v{vA}")
        a(f"v_lshrrev_b32 v{vG}, 16, v{vG}")
        a(f"v_lshlrev_b32 v{vA}, 4, v{vA}")
        a(f"v_lshlrev_b32 v{X}, 4, v{vG}")
        a(f"v_mul_u32_u24 v{vG}, 960, v{vG}")
        a(f"v_add_u32 v{vG}, v{vG}, v{vA}")
        a(f"v_lshl_add_u32 v{vA}, v{vA}, 1, v{X}")
    if load_x and load_x != "addr":
        a(f"buffer_load_dwordx4 {vr(X, 4)}, v{vG}, {sr(SX)}, s{sOB} offen")
    if do_rest == 1:
        for s in range(4):
            a(f"ds_read_b128 {vr(R+8*s, 4)}, v{vA} offset:{s*RING_ST}")
            a(f"ds_read_b128 {vr(R+8*s+4, 4)}, v{vA} offset:{s*RING_ST+16}")
    if do_rest == 2:
        for j in range(4):
            a(f"v_lshlrev_b32 v{R+32+2*j}, 16, v{X+j}")
            a(f"v_and_b32 v{R+33+2*j}, 0xffff0000, v{X+j}")
    if do_rest >= 3:
        for s in range(4):
            a(f"s_waitcnt lgkmcnt({6-2*s + (do_rest-3)})")
            for j in range(4):
                a(f"v_pk_add_f32 {vr(R+32+2*j, 2)}, {vr(R+32+2*j, 2)}, {vr(R+8*s+2*j, 2)}")
        for j in range(4): a(f"v_cvt_pk_bf16_f32 v{X+j}, v{R+32+2*j}, v{R+33+2*j}")
        a(f"buffer_store_dwordx4 {vr(X, 4)}, v{vG}, {sr(SB)}, s{sOB} offen")

def gen_att(a):
    vL, vKM, vQT, vIDX, vT0, vT1, vCNT = 1, 2, 3, 4, 5, 6, 7
    vP = 8
    vT2, vT3 = 12, 13
    vFL = 23
    S, O, QM, QT, KM, KT, V0, V1 = aS, aO, aQM, aQT, aKM, aKT, aV0, aV1
    def qk1(s, kb, q): a(f"v_mfma_f32_32x32x16_bf16 {vr(S[s], 16)}, {vr(KM[kb], 4)}, {vr(QM(q), 4)}, 0")
    def qk2(s, kb, q): a(f"v_mfma_f32_32x32x8_bf16 {vr(S[s], 16)}, {vr(KT[kb], 2)}, {vr(QT(q), 2)}, {vr(S[s], 16)}")
    def pv(u, s, vb, q): a(f"v_smfmac_f32_32x32x32_bf16 {vr(O(q), 16)}, {vr((V0, V1)[u][vb], 4)}, {vr(S[s]+8*u, 8)}, v{vIDX}")
    def ldq(i):
        a(f"buffer_load_dwordx4 {vr(QM(i), 4)}, v{vKM}, {sr(SWS)}, s{sPm+i//2} offen" + (" offset:1024" if i & 1 else "") + " sc1")
        a(f"buffer_load_dwordx2 {vr(QT(i), 2)}, v{vQT}, {sr(SWS)}, s{sPt+i//2} offen" + (" offset:512" if i & 1 else "") + " sc1")
    def qregs(lo, hi): return list(range(QM(lo), QM(hi))) + list(range(QT(lo), QT(hi)))
    def rowmax(s, dst):
        b = S[s]
        a(f"v_max3_f32 v{dst}, v{b}, v{b+1}, v{b+2}")
        for j in range(3, 15, 2): a(f"v_max3_f32 v{dst}, v{dst}, v{b+j}, v{b+j+1}")
        a(f"v_max_f32 v{dst}, v{dst}, v{b+15}")
    def pair_addr(mul, base, vlane, shift):
        for j in range(4):
            a(f"s_add_u32 s{sT0}, s{sQ}, {j}")
            a(f"s_and_b32 s{sT0}, s{sT0}, 3")
            a(f"s_mul_i32 s{sT0}, s{sT0}, {mul}")
            a(f"s_add_u32 s{sT0}, s{sT0}, {base}")
            a(f"v_lshl_add_u32 v{vP+j}, v{vlane}, {shift}, s{sT0}")

    a("s_setprio 3")
    a(f"s_mov_b32 s{sMODE}, 0")
    a(f"v_lshlrev_b32 v{vKM}, 4, v{vL}")
    a(f"v_mov_b32 v{vT0}, {OOB:#x}")
    a(f"v_cmp_gt_u32 vcc, 32, v{vL}")
    a(f"v_mov_b32 v{vIDX}, 0xdddddddd")
    a(f"v_mov_b32 v{vCNT}, {L_CNT}")
    a(f"v_cndmask_b32 v{vQT}, v{vT0}, v{vKM}, vcc")
    a.stamp(6)
    a(f"s_cmp_lg_u32 s{sKOK}, 0")
    a("s_cbranch_scc1 A_HAVEKV")
    a("s_mov_b32 exec_hi, 0")
    poll(a, vFL, vT0, "0")
    a("s_mov_b32 exec_hi, -1")
    a.label("A_RELOAD")
    kv_first(a, vKM)
    a.label("A_HAVEKV")
    a(f"v_and_b32 v{vT1}, 31, v{vL}")
    pair_addr(512, L_MREC, vT1, 3)
    a(f"v_and_b32 v{vT1}, 16, v{vL}")
    a.stamp(7)
    poll(a, vT1, vT0, f"s{sFQ}", optv("qsleep", 1))
    check_fast(a, vT1, vT0)
    a.stamp(8)
    for i in range(8): ldq(i)
    a(f"s_cmp_lg_u32 s{sMODE}, 0")
    a("s_cbranch_scc1 A_TRUEMAX")
    a.c("stand-in for the row max: max over this wave's first 32 keys; checked after the loop, exact-max rerun if unsafe")
    a("s_waitcnt vmcnt(12)")
    qk1(0, 0, 0); qk2(0, 0, 0); qk1(1, 0, 1); qk2(1, 0, 1)
    a("s_nop 9")
    rowmax(0, S[2]); rowmax(1, S[2] + 1)
    halfop(a, "v_max_f32", S[2], vT0); halfop(a, "v_max_f32", S[2] + 1, vT0)
    a.label("A_HAVEMAX")
    a("s_mov_b32 exec_lo, 0")
    for e in range(2):
        a(f"v_sub_f32 v{S[2]+e}, 0, v{S[2]+e}")
        split3(a, S[2] + e, vT0, vT1, QT(e), QT(e) + 1)
        a(f"ds_write_b64 v{vP}, {vr(QT(e), 2)} offset:{256*e}")
    a("s_mov_b32 exec_lo, -1")
    cnt_arrive(a, vCNT, vT0)
    a(f"s_add_u32 s{sTGT}, s{sTGT}, 4")
    a(f"s_mov_b32 s{sCNT}, 8")
    a.stamp(9)
    a.stamp(10); a.stamp(NSTAMP + 2, True)
    qk1(0, 0, 0); qk2(0, 0, 0)
    a("s_cmp_lg_u32 0, 0")
    a("s_nop 10")
    a.raw(".p2align 6")
    a.label("A_LOOP")
    PAT0 = (3, 3, 4, 3, 3)
    PAT1 = tuple(int(ch) for ch in sys.argv[sys.argv.index("--pat1") + 1]) if opt("pat1") else PAT0
    PMASK = optv("pmask", 0)
    def slot(sc, nxt, prv, holes, PAT=PAT0):
        e = [0]
        def exps(n):
            for _ in range(n):
                a(f"v_exp_f32 v{S[sc]+e[0]}, v{S[sc]+e[0]}"); e[0] += 1
        ms = [lambda: qk1((sc + 1) & 3, *nxt), lambda: pv(0, (sc - 1) & 3, *prv), lambda: qk2((sc + 1) & 3, *nxt), lambda: pv(1, (sc - 1) & 3, *prv)]
        for j in range(4):
            if nxt is not None or j & 1: ms[j]()
            if j in holes: holes[j]()
            exps(PAT[j])
        holes[4]()
        exps(PAT[4])
    for kb in range(2):
        for q in range(8):
            def hole():
                if q == 0:
                    if kb == 0:
                        a("s_cbranch_scc0 A_FIRST")
                        a.label("A_FIRSTD")
                    a("s_waitcnt vmcnt(2)"); ldv(a, 0, kb ^ 1)
                elif q == 1: ldv(a, 1, kb ^ 1)
                elif q == 2: a(f"s_add_u32 s{sKV}, s{sKV}, {KV_REC}")
                elif q == 3 and kb == 0: a(f"s_sub_u32 s{sCNT}, s{sCNT}, 1")
                elif q == 4 and kb == 0: a(f"s_cmp_eq_u32 s{sCNT}, 0")
                elif q == 4: a("s_cmp_eq_u32 0, 0")
                elif q == 5: a("s_waitcnt vmcnt(2)")
                elif q == 6: ldkm(a, kb, vKM)
                elif q == 7: ldkt(a, kb)
                else: a("s_nop 0")
            slot(q & 3, ((kb if q < 7 else kb ^ 1), (q + 1) & 7), ((kb if q > 0 else kb ^ 1), (q - 1) & 7), {4: hole}, PAT1 if (PMASK >> q) & 1 else PAT0)
        if kb == 0:
            a.lstamp(sCNT, 0)
            a("s_cbranch_scc1 A_LAST")
    a("s_branch A_LOOP")
    a.label("A_FIRST")
    cnt_wait(a, vCNT, vT0, f"s{sTGT}")
    a("s_waitcnt vmcnt(0)")
    a("s_mov_b32 exec_lo, 0")
    for i in range(2, 8): a(f"ds_read_b64 {vr(QT(i), 2)}, v{vP+i//2} offset:{256*(i&1)}")
    a("s_mov_b32 exec_lo, -1")
    pair_addr(18432, L_OP, vL, 4)
    a("s_waitcnt lgkmcnt(0)")
    a.lstamp("8", 0)
    a("s_branch A_FIRSTD")
    a.label("A_LAST")
    def wr(i, j): a(f"ds_write_b128 v{vP+i//2}, {vr(O(i)+4*j, 4)} offset:{(i&1)*9216 + (i//2-1)*3072 + j*1024}")
    seq = [0, 2, 3, 4, 5, 6, 7, 1]
    for n in range(8):
        nxt = (1, seq[n + 1]) if n < 7 else None
        prv = (1, seq[n - 1]) if n > 0 else (0, 7)
        holes = {4: lambda: a("s_nop 0")}
        if n == 0: holes = {4: lambda: a("s_waitcnt vmcnt(2)")}
        if n >= 3:
            i = seq[n - 2]
            holes = {2: lambda: wr(i, 0), 3: lambda: wr(i, 1), 4: lambda: wr(i, 2)}
        slot(n & 3, nxt, prv, holes)
    a("s_nop 1")
    pv(0, 3, 1, 1); pv(1, 3, 1, 1)
    a.stamp(11); a.stamp(NSTAMP + 3, True)
    a("s_nop 1")
    for j in range(3): wr(7, j)
    cnt_arrive(a, vCNT, vT0)
    a(f"s_add_u32 s{sTGT}, s{sTGT}, 4")
    a(f"s_max_u32 s{sTGT}, s{sTGT}, 12")
    a(f"s_mov_b64 {sr(sBAD, 2)}, 0")
    a(f"s_mov_b32 s{sT1}, {f32bits(2.0**100):#x}")
    cnt_wait(a, vCNT, vT0, f"s{sTGT}")
    a.stamp(12)
    RB = [16, 180]
    for e in range(2):
        for s in range(3):
            for j in range(3):
                a(f"ds_read_b128 {vr(RB[e]+12*s+4*j, 4)}, v{vP} offset:{e*9216 + s*3072 + j*1024}")
    Z = 52
    for e in range(2):
        A = O(e); P = 128 + 8 * e
        for s in range(3):
            a(f"s_waitcnt lgkmcnt({min(15, 18 - 9*e - 3*s - 3)})")
            for j in range(6): a(f"v_pk_add_f32 {vr(A+2*j, 2)}, {vr(A+2*j, 2)}, {vr(RB[e]+12*s+2*j, 2)}")
        a(f"v_mov_b32 v{vT0}, v{A+8}")
        a(f"v_mov_b32 v{vT2}, v{A+8}")
        a(f"v_pk_mul_f32 {vr(Z, 2)}, {vr(A, 2)}, 0 op_sel_hi:[1,0]")
        a(f"v_pk_fma_f32 {vr(Z, 2)}, {vr(A+2, 2)}, 0, {vr(Z, 2)} op_sel_hi:[1,0,1]")
        a(f"v_permlane32_swap_b32 v{vT0}, v{vT2}")
        a(f"v_rcp_f32 v{vT3}, v{vT2}")
        a(f"v_cmp_nlt_f32 vcc, v{vT2}, s{sT1}")
        for j in range(2, 6): a(f"v_pk_fma_f32 {vr(Z, 2)}, {vr(A+2*j, 2)}, 0, {vr(Z, 2)} op_sel_hi:[1,0,1]")
        a(f"s_or_b64 {sr(sBAD, 2)}, {sr(sBAD, 2)}, vcc")
        for j in range(6): a(f"v_pk_mul_f32 {vr(A+2*j, 2)}, {vr(A+2*j, 2)}, {vr(vT2, 2)} op_sel:[0,1] op_sel_hi:[1,1]")
        a(f"v_cmp_u_f32 vcc, v{Z}, v{Z+1}")
        for j in range(6): a(f"v_cvt_pk_bf16_f32 v{P+j}, v{A+2*j}, v{A+2*j+1}")
        a(f"s_or_b64 {sr(sBAD, 2)}, {sr(sBAD, 2)}, vcc")
        a(f"s_cmp_lg_u32 s{sMODE}, 0")
        a(f"s_cselect_b64 {sr(sBAD, 2)}, 0, {sr(sBAD, 2)}")
        for j in range(6): a(f"v_min_u32 v{P+j}, -2, v{P+j}")
        L = a.uid("NOST")
        a(f"s_cmp_lg_u64 {sr(sBAD, 2)}, 0")
        a(f"s_cbranch_scc1 {L}")
        stores(a, [f"buffer_store_dwordx4 {vr(P, 4)}, v{vKM}, {sr(SWS)}, s{sOm} offen offset:{1024*e}",
                   f"buffer_store_dwordx2 {vr(P+4, 2)}, v{vQT}, {sr(SWS)}, s{sOt} offen offset:{512*e}"])
        a.label(L)
    a(f"s_cmp_lg_u64 {sr(sBAD, 2)}, 0")
    a(f"s_cselect_b32 s{sBAD}, 0x10001, 1")
    cnt_arrive(a, vCNT, vT0, f"s{sBAD}")
    a.stamp(13)
    a("s_setprio 0")
    a(f"s_add_u32 s{sTGT}, s{sTGT}, 4")
    srd(a, SX, pX, 2048 * 1280)
    cnt_wait(a, vCNT, vT0, f"s{sTGT}")
    a(f"s_lshr_b32 s{sT0}, s{sT0}, 16")
    a(f"s_cmp_lg_u32 s{sMODE}, 0")
    a(f"s_cselect_b32 s{sT0}, 0, s{sT0}")
    a(f"s_cmp_lg_u32 s{sT0}, 0")
    a("s_cbranch_scc1 A_RESTART")
    a.stamp(14)
    if PROFILE and opt("iter"):
        a.ldump(0)
        a(f"s_lshl_b32 s100, s{sW}, 6")
        a("v_add_u32 v0, s100, v1")
    final_stage(a, 0, 16, 32, 20, 21, True, 0)
    a(f"s_cmp_ge_u32 s{sW}, 6")
    a("s_cbranch_scc1 A_F1")
    final_stage(a, 256, 24, 80, 22, 23, True, 0)
    a("s_waitcnt vmcnt(0)")
    final_stage(a, 0, 16, 32, 20, 21, False, 2)
    final_stage(a, 256, 24, 80, 22, 23, False, 2)
    a.stamp(15)
    a("s_barrier")
    a.stamp(16)
    final_stage(a, 0, 16, 32, 20, 21, False, 1)
    final_stage(a, 256, 24, 80, 22, 23, False, 1)
    final_stage(a, 0, 16, 32, 20, 21, False, 11)
    final_stage(a, 256, 24, 80, 22, 23, False, 3)
    a.end()
    a.label("A_F1")
    a("s_waitcnt vmcnt(0)")
    final_stage(a, 0, 16, 32, 20, 21, False, 2)
    a.stamp(15)
    a("s_barrier")
    a.stamp(16)
    final_stage(a, 0, 16, 32, 20, 21, False, 1)
    final_stage(a, 0, 16, 32, 20, 21, False, 3)
    a.end()
    a.label("A_RESTART")
    a(f"s_mov_b32 s{sMODE}, 1")
    a("s_waitcnt vmcnt(0)")
    att_zero(a)
    a("s_branch A_RELOAD")
    a.label("A_TRUEMAX")
    M = S[2]
    for i in range(8): a(f"v_mov_b32 v{M+i}, 0xff800000")
    a(f"s_sub_u32 s{sT1}, s{sKV}, {KV_REC}")
    a(f"s_mov_b32 s{sCNT}, 16")
    TK, TT = S[1], S[1] + 4
    a.label("A_TM_LOOP")
    a(f"buffer_load_dwordx4 {vr(TK, 4)}, v{vKM}, {sr(SWS)}, s{sT1} offen sc1")
    a(f"buffer_load_dwordx2 {vr(TT, 2)}, v{avKT}, {sr(SWS)}, s{sT1} offen sc1")
    a("s_waitcnt vmcnt(0)")
    for i in range(8):
        a(f"v_mfma_f32_32x32x16_bf16 {vr(S[0], 16)}, {vr(TK, 4)}, {vr(QM(i), 4)}, 0")
        a(f"v_mfma_f32_32x32x8_bf16 {vr(S[0], 16)}, {vr(TT, 2)}, {vr(QT(i), 2)}, {vr(S[0], 16)}")
        a("s_nop 11")
        for j in range(0, 16, 2): a(f"v_max3_f32 v{M+i}, v{M+i}, v{S[0]+j}, v{S[0]+j+1}")
    a(f"s_add_u32 s{sT1}, s{sT1}, {KV_REC}")
    a(f"s_sub_u32 s{sCNT}, s{sCNT}, 1")
    a(f"s_cmp_lg_u32 s{sCNT}, 0")
    a("s_cbranch_scc1 A_TM_LOOP")
    for i in range(8):
        halfop(a, "v_max_f32", M + i, vT0)
        a(f"v_add_u32 v{vT1}, {L_OP - L_MREC}, v{vP+i//2}")
        a(f"ds_write_b32 v{vT1}, v{M+i} offset:{(i//2)*2048 + (i&1)*256}")
    cnt_arrive(a, vCNT, vT0)
    a(f"s_add_u32 s{sTGT}, s{sTGT}, 4")
    cnt_wait(a, vCNT, vT0, f"s{sTGT}")
    a(f"v_add_u32 v{vT1}, {L_OP - L_MREC}, v{vP}")
    for e in range(2):
        for s in range(1, 4): a(f"ds_read_b32 v{S[0]+4*e+s}, v{vT1} offset:{s*2048 + e*256}")
    a("s_waitcnt lgkmcnt(0)")
    for e in range(2):
        a(f"v_max3_f32 v{M+e}, v{M+e}, v{S[0]+4*e+1}, v{S[0]+4*e+2}")
        a(f"v_max_f32 v{M+e}, v{M+e}, v{S[0]+4*e+3}")
    a("s_branch A_HAVEMAX")

def gen_ffn(a):
    vL, vL16, vTR, vZ = 1, 2, 3, 7
    vD = 8
    vCNT, vT0, vT1 = 13, 14, 15
    F = lambda t: 16 + 16 * t
    WO = lambda k: 96 + 20 * k
    HB = lambda u: 216 + 4 * u
    SL = lambda j: j & 3
    def dma_piece(p, slot, vd):
        a(f"s_add_u32 m0, s{sM0}, {slot*5120 + p*1024}")
        a("s_nop 0")
        a(f"buffer_load_dwordx4 v{vd+p}, {sr(SA)}, s{sSO} offen lds")
    def trr(dst, slot, t):
        a(f"ds_read_b64_tr_b16 {vr(dst+4*t, 2)}, v{vTR} offset:{slot*5120 + 64*t}")
        a(f"ds_read_b64_tr_b16 {vr(dst+4*t+2, 2)}, v{vTR} offset:{slot*5120 + 64*t + 2560}")
    def hload(u):
        a(f"buffer_load_dwordx4 {vr(HB(u), 4)}, v{vL16}, {sr(SWS)}, s{sHO} offen sc1")
        a(f"s_add_u32 s{sHO}, s{sHO}, 1024")
    def wo_rows(row):
        a(f"s_mul_i32 s{sSO}, s{sQ}, {160*1280}")
        a(f"s_add_u32 s{sSO}, s{sSO}, s{sCOL}")
        if row: a(f"s_add_u32 s{sSO}, s{sSO}, {row*1280}")
    def mf(t, w, h): a(f"v_mfma_f32_32x32x16_bf16 {vr(F(t), 16)}, {vr(w+4*t, 4)}, {vr(h, 4)}, {vr(F(t), 16)}")
    a(f"v_lshlrev_b32 v{vL16}, 4, v{vL}")
    a(f"s_mul_i32 s{sM0}, s{sQ}, {RING_ST}")
    for p in range(5): a(f"v_mov_b32 v{vD+p}, v{vWD+p}")
    a(f"v_lshrrev_b32 v{vT0}, 5, v{vL}")
    a(f"v_bfe_u32 v{vT1}, v{vL}, 2, 2")
    a(f"v_lshl_add_u32 v{vT0}, v{vT0}, 2, v{vT1}")
    a(f"v_mul_u32_u24 v{vTR}, 320, v{vT0}")
    a(f"v_bfe_u32 v{vT0}, v{vL}, 4, 1")
    a(f"v_lshl_add_u32 v{vTR}, v{vT0}, 5, v{vTR}")
    a(f"v_and_b32 v{vT0}, 3, v{vL}")
    a(f"v_lshl_add_u32 v{vTR}, v{vT0}, 3, v{vTR}")
    a(f"s_mul_i32 s{sT0}, s{sQ}, 5120")
    a(f"s_add_u32 s{sT0}, s{sT0}, {WO_STAGE[0]}")
    a(f"v_add_u32 v{vT1}, s{sT0}, v{vTR}")
    a("s_waitcnt vmcnt(0)")
    for i in range(3):
        off = WO_STAGE[i] - WO_STAGE[0]
        for t in range(5):
            a(f"ds_read_b64_tr_b16 {vr(WO(3+i)+4*t, 2)}, v{vT1} offset:{off + 64*t}")
            a(f"ds_read_b64_tr_b16 {vr(WO(3+i)+4*t+2, 2)}, v{vT1} offset:{off + 64*t + 2560}")
    a(f"v_add_u32 v{vTR}, s{sM0}, v{vTR}")
    a(f"v_mov_b32 v{vCNT}, {L_CNT}")
    a(f"v_mov_b32 v4, s{sNON}")
    srd(a, SX, pX, 2048 * 1280)
    srd(a, SB, pOUT, 2048 * 1280)
    srd(a, SA, pW2, 1728 * 1280)
    a(f"s_mul_i32 s{sCOL}, s{sHG}, 320")
    a(f"s_mul_i32 s{sSO}, s{sQ}, {27*16*1280}")
    a(f"s_add_u32 s{sSO}, s{sSO}, s{sCOL}")
    a(f"s_mov_b32 s{sSTEP}, {16*1280}")
    for r in range(F(0), F(5)): a(f"v_mov_b32 v{r}, 0")
    for j in range(4): a(f"v_mov_b32 v{224+j}, -1")
    a(f"s_mul_i32 s{sT0}, s{sQ}, {27*26}")
    a(f"s_lshr_b32 s{sT0}, s{sT0}, 8")
    a(f"s_add_u32 s{sT0}, s{sT0}, 4")
    a(f"v_add_u32 v5, s{sT0}, v{vT0}")
    a(f"v_min_u32 v5, 14, v5")
    a(f"s_lshr_b32 s{sT2}, s{sT}, 2")
    a(f"s_lshl_b32 s{sT2}, s{sT2}, 11")
    a(f"s_and_b32 s{sT0}, s{sT}, 3")
    a(f"s_lshl_b32 s{sT0}, s{sT0}, 2")
    a(f"s_add_u32 s{sT2}, s{sT2}, s{sT0}")
    a(f"s_add_u32 s{sT2}, s{sT2}, {WS_F1 + 32}")
    a(f"v_lshl_add_u32 v5, v5, 7, s{sT2}")
    a(f"v_and_b32 v{vT1}, 16, v{vL}")
    a(f"v_add_u32 v5, v5, v{vT1}")
    a(f"s_lshl_b32 s{sFC}, s{sT}, 2")
    a(f"s_add_u32 s{sFC}, s{sFC}, s{sQ}")
    a(f"s_lshl_b32 s{sT2}, s{sFC}, 7")
    a(f"s_add_u32 s{sT2}, s{sT2}, {WS_F2 + 16}")
    a(f"v_lshl_add_u32 v6, v{vT0}, 2, s{sT2}")
    a(f"s_mul_i32 s{sHO}, s{sQ}, {27*1024}")
    a(f"s_add_u32 s{sHO}, s{sHO}, s{sG}")
    a(f"s_add_u32 s{sHO}, s{sHO}, {20*2048}")
    vD2 = 232
    for p in range(5):
        a(f"v_add_u32 v{vT0}, {64*p}, v{vL}")
        a(f"v_mul_u32_u24 v{vT0}, 3277, v{vT0}")
        a(f"v_lshrrev_b32 v{vT0}, 18, v{vT0}")
        a(f"v_mul_u32_u24 v{vT0}, {16*1280}, v{vT0}")
        a(f"v_add_u32 v{vD2+p}, v{vD+p}, v{vT0}")
    final_stage(a, 0, vT0, 0, 238, 239, "addr", 0)
    a(f"v_and_b32 v{vT0}, 31, v{vL}")
    a(f"v_mul_u32_u24 v{vT0}, 656, v{vT0}")
    a(f"v_lshrrev_b32 v0, 5, v{vL}")
    a(f"v_lshl_add_u32 v0, v0, 4, v{vT0}")
    a(f"v_add_u32 v0, s{sM0}, v0")
    a.stamp(6)
    def fill(js):
        for j in js:
            for p in range(5): dma_piece(p, SL(j), vD)
            a(f"s_add_u32 s{sSO}, s{sSO}, s{sSTEP}")
    NPRE = optv("npre", 0)
    fill(range(NPRE))
    cnt_wait(a, vCNT, vT0, 4, 1)
    a.stamp(7)
    fill(range(NPRE, 4))
    check_fast(a, vT1, vT0)
    a.stamp(8)
    a(f"s_lshl_b32 s{sT1}, s{sT}, 2")
    a(f"s_add_u32 s{sT1}, s{sT1}, s{sHG}")
    a(f"s_mul_i32 s{sT1}, s{sT1}, 10240")
    a(f"s_mul_i32 s{sT0}, s{sQ}, 3072")
    a(f"s_min_u32 s{sT0}, s{sT0}, 7168")
    a(f"s_add_u32 s{sT0}, s{sT0}, s{sT1}")
    a(f"s_add_u32 s{sT0}, s{sT0}, {WS_O}")
    stores(a, [f"buffer_store_dwordx4 v[224:227], v{vL16}, {sr(SWS)}, s{sT0} offen offset:{1024*e}" for e in range(3)])
    poll(a, 5, vT1, "0", 4)
    cnt_arrive(a, vCNT, vT0)
    a(f"s_lshl_b32 s{sT0}, s{sQ}, 2")
    a(f"s_add_u32 s{sT0}, s{sT0}, s{sF2}")
    a("s_mov_b64 exec, 1")
    stores(a, [f"buffer_store_dword v4, v{vZ}, {sr(SWS)}, s{sT0} offen offset:16"])
    a("s_mov_b64 exec, -1")
    a.stamp(9)
    a("v_mov_b32 v4, v238")
    a("v_mov_b32 v7, v239")
    for u in range(4): hload(u)
    for t in range(5): trr(WO(0), SL(0), t)
    a(f"s_mov_b32 s{sC}, 0")
    a("s_waitcnt vmcnt(0)")
    a.stamp(10); a.stamp(NSTAMP + 2, True)
    a.raw(".p2align 3")
    a.label("F_LOOP")
    for u in range(4):
        if u == 3:
            a(f"s_cmp_eq_u32 s{sC}, 6")
            a("s_cbranch_scc1 F_DONE")
            a(f"s_cmp_lg_u32 s{sC}, 5")
            a("s_cbranch_scc1 F_NS")
            srd(a, SA, pWO, 640 * 1280)
            wo_rows(0)
            a(f"s_mov_b32 s{sSTEP}, {20*1280}")
            a(f"s_mov_b32 s{sHO}, 0x40000000")
            a(f"buffer_load_dword v5, v6, {sr(SWS)}, 0 offen sc1")
            a.label("F_NS")
        a("s_waitcnt vmcnt(13) lgkmcnt(0)")
        for t in range(5):
            mf(t, WO(0), HB(u))
            trr(WO(0), SL(u + 1), t)
            dma_piece(t, SL(u), vD)
        a(f"s_add_u32 s{sSO}, s{sSO}, s{sSTEP}")
        hload(u)
    a(f"s_add_u32 s{sC}, s{sC}, 1")
    a("s_branch F_LOOP")
    a.label("F_DONE")
    a.stamp(11); a.stamp(NSTAMP + 3, True)
    a("s_waitcnt vmcnt(13) lgkmcnt(0)")
    for t in range(5):
        trr(WO(1), SL(28), t)
        dma_piece(t, SL(27), vD)
    wo_rows(16)
    a("s_waitcnt vmcnt(12) lgkmcnt(0)")
    for t in range(5):
        trr(WO(2), SL(29), t)
        dma_piece(t, SL(28), vD2)
    a(f"s_add_u32 s{sSO}, s{sSO}, {80*1280}")
    a("s_waitcnt lgkmcnt(0)")
    for t in range(5): dma_piece(t, SL(29), vD2)
    final_stage(a, 0, 8, 0, 4, 7, "load", 0)
    a(f"v_cmp_ne_u32 vcc, s{sNON}, v5")
    a("s_cbranch_vccz F_BOK")
    poll(a, 6, vT1, "0", 4)
    a.label("F_BOK")
    a(f"s_mul_i32 s{sHO}, s{sFC}, 10240")
    a(f"s_add_u32 s{sHO}, s{sHO}, {WS_O}")
    a(f"s_add_u32 s{sSO}, s{sHO}, 4096")
    a(f"s_add_u32 s{sT1}, s{sHO}, 8192")
    a.stamp(12)
    cnt_wait(a, vCNT, vT0, 16, 2)
    a.stamp(13)
    order = [0, 1, 2, 5, 6, 7, 3, 4, 8, 9]
    a(f"s_mov_b32 s{sSPIN}, {SPIN}")
    a.label("F_O")
    for k in order:
        so = (sHO, sSO, sT1)[k // 4]
        a(f"buffer_load_dwordx4 {vr(HB(k), 4)}, v{vL16}, {sr(SWS)}, s{so} offen offset:{(k%4)*1024} sc1")
    for n, k in enumerate(order):
        a(f"s_waitcnt vmcnt({9-n})")
        if n == 0:
            a(f"v_max3_u32 v{vT0}, v{HB(k)}, v{HB(k)+1}, v{HB(k)+2}")
            a(f"v_max_u32 v{vT0}, v{vT0}, v{HB(k)+3}")
        else:
            a(f"v_max3_u32 v{vT0}, v{vT0}, v{HB(k)}, v{HB(k)+1}")
            a(f"v_max3_u32 v{vT0}, v{vT0}, v{HB(k)+2}, v{HB(k)+3}")
    a(f"v_cmp_eq_u32 vcc, -1, v{vT0}")
    a("s_cbranch_vccz F_OD")
    if optv("osleep", 2): a(f"s_sleep {optv('osleep', 2)}")
    spin_tail(a, "F_O")
    a.label("F_OD")
    a.stamp(14)
    for n in range(4):
        for t in range(5):
            mf(t, WO(n), HB(order[n]))
            trr(WO(n), SL(30 + n), t)
    def fwr(t, g): a(f"ds_write_b128 v0, {vr(F(t)+4*g, 4)} offset:{128*t + 32*g}")
    for t in range(5):
        for m, n in enumerate(range(4, 10)):
            if t == 0 and n == 6: a("s_waitcnt lgkmcnt(0)")
            mf(t, WO(n) if n < 6 else WO(n - 6), HB(order[n]))
            if t > 0:
                if m < 2: a("s_nop 4")
                else: fwr(t - 1, m - 2)
    final_stage(a, 0, 8, 176, 4, 7, False, 2)
    a("s_nop 3")
    a.stamp(15)
    for g in range(4): fwr(4, g)
    a("s_waitcnt lgkmcnt(0)")
    a("s_barrier")
    a.stamp(16)
    final_stage(a, 0, 8, 176, 4, 7, False, 1)
    final_stage(a, 0, 8, 176, 4, 7, False, 3)
    a.end()
```

```python
import sys, struct, math

NAME = "parallel_sum__grouped_kv_mqa__dense_activation_relu__prompt"
def opt(name): return ("--" + name) in sys.argv
def optv(name, d): return int(sys.argv[sys.argv.index("--" + name) + 1]) if opt(name) else d
G_TSTRIDE = 75 * 2048
WS_G = 0
WS_KV = 64 * G_TSTRIDE
KV_REC = 3072
WS_O = (WS_KV + 66 * KV_REC + 4095) // 4096 * 4096
WS_RP = WS_O + 64 * 40 * 1024
WS_CP = WS_RP + 64 * 5120
WS_F1 = WS_CP + 64 * 5120
WS_F2 = WS_F1 + 256 * 128
WS_XC = WS_F2 + 256 * 128
WS_PROF = WS_XC + 8 * 128
PROFILE = opt("prof")
NSTAMP = 18
WS_END = WS_PROF + (256 * 8 * 256 if PROFILE else 0)
OOB = 0x80000000
QSCALE = math.log2(math.e) / math.sqrt(20.0)
SPIN = 0x40000


def f32bits(x): return struct.unpack("<I", struct.pack("<f", x))[0]

class Asm:
    def __init__(self): self.lines = []; self.n = 0; self.tail = []
    def __call__(self, s): self.lines.append("    " + s)
    def label(self, s): self.lines.append(s + ":")
    def raw(self, s): self.lines.append(s)
    def c(self, s): self.lines.append("    ; " + s)
    def uid(self, p): self.n += 1; return f"{p}_{self.n}"
    def stamp(self, i, cyc=False):
        if PROFILE:
            self(f"s_memtime s[100:101]" if cyc else "s_memrealtime s[100:101]")
            self("s_waitcnt lgkmcnt(0)")
            self(f"s_mov_b32 s{64+i}, s100")
    def lstamp(self, slane, v=14):
        if PROFILE and opt("iter"):
            self("s_memrealtime s[100:101]")
            self("s_waitcnt lgkmcnt(0)")
            self(f"s_mov_b32 m0, {slane}" if isinstance(slane, str) else f"s_mov_b32 m0, s{slane}")
            self(f"v_writelane_b32 v{v}, s100, m0")
    def ldump(self, v=14):
        if PROFILE and opt("iter"):
            self(f"s_lshl_b32 s100, s2, 3")
            self(f"s_add_u32 s100, s100, s{sW}")
            self(f"s_lshl_b32 s100, s100, 8")
            self(f"s_add_u32 s100, s100, {WS_PROF+128}")
            self("v_lshlrev_b32 v15, 2, v1")
            self("s_mov_b64 exec, 0xffff")
            self(f"buffer_store_dword v{v}, v15, s[{SWS}:{SWS+3}], s100 offen")
            self("s_mov_b64 exec, -1")
            self("s_waitcnt vmcnt(0)")
    def end(self):
        if PROFILE:
            self("s_waitcnt vmcnt(0)")
            self.stamp(NSTAMP - 1)
            self(f"s_lshl_b32 s3, s2, 3")
            self(f"s_add_u32 s3, s3, s{sW}")
            self(f"s_lshl_b32 s3, s3, 8")
            self(f"s_add_u32 s3, s3, {WS_PROF}")
            self("s_mov_b64 exec, 1")
            self("v_mov_b32 v1, 0")
            for i in range(NSTAMP + 4):
                self(f"v_mov_b32 v2, s{64+i}")
                self(f"buffer_store_dword v2, v1, s[{SWS}:{SWS+3}], s3 offen offset:{4*i}")
        self("s_endpgm")
    def text(self): return "\n".join(self.lines) + "\n"

def vr(b, n=1): return f"v{b}" if n == 1 else f"v[{b}:{b+n-1}]"
def sr(b, n=4): return f"s{b}" if n == 1 else f"s[{b}:{b+n-1}]"
def srd(a, d, p, size):
    a(f"s_mov_b32 s{d}, s{p}")
    a(f"s_mov_b32 s{d+1}, s{p+1}")
    a(f"s_mov_b32 s{d+2}, {size}")
    a(f"s_mov_b32 s{d+3}, 0x00020000")
def csel(a, d, t, f):
    a(f"s_mov_b32 s{d}, {f}")
    a(f"s_cmov_b32 s{d}, {t}")
def split3(a, src, t0, t1, d0, d1):
    a(f"v_and_b32 v{t0}, 0xffff0000, v{src}")
    a(f"v_sub_f32 v{t1}, v{src}, v{t0}")
    a(f"v_lshrrev_b32 v{d0}, 16, v{src}")
    a(f"v_and_b32 v{t0}, 0xffff0000, v{t1}")
    a(f"v_or_b32 v{d0}, v{d0}, v{t0}")
    a(f"v_sub_f32 v{t1}, v{t1}, v{t0}")
    a(f"v_lshrrev_b32 v{d1}, 16, v{t1}")
def halfop(a, op, r, t):
    a(f"v_mov_b32 v{t}, v{r}")
    a("s_nop 1")
    a(f"v_permlane32_swap_b32 v{t}, v{r}")
    a(f"{op} v{r}, v{r}, v{t}")
def umax(a, dst, regs):
    regs = list(regs)
    a(f"v_max3_u32 v{dst}, v{regs[0]}, v{regs[1]}, v{regs[2]}")
    r = regs[3:]
    while len(r) >= 2:
        a(f"v_max3_u32 v{dst}, v{dst}, v{r[0]}, v{r[1]}"); r = r[2:]
    if r: a(f"v_max_u32 v{dst}, v{dst}, v{r[0]}")

SWS, SA, SB, SX, SDBG = 4, 8, 12, 16, 20
sSI = 3
sW, sNON = 24, 25
sRB, sCG, sTT = 26, 27, 28
sQ = sTT
sT0, sT1, sT2 = 29, 30, 31
pX, pWQ, pWK, pWV, pWO, pW1, pW2, pOUT, pDBG, pWS = 32, 34, 36, 38, 40, 44, 46, 48, 50, 52
sWST, sSO, sSTEP, sM0, sC, sDEL, sCC, sOUT, sFL, sQS = range(54, 64)
sT, sHG, sG, sOB = 86, 87, 92, 93
SW4 = 88
sF2, sPUBI, sT3, sFAST, sST, sSPIN = 94, 95, 96, 97, 98, 99
sXW, sLO = 53, 52
sRLX = 50
sWOR = 38
sPB = 51
sPm, sBAD, sPt = 34, 38, 42
sOm, sOt, sKV, sTGT = 40, 41, 46, 47
sMODE, sCNT, sKOK, sFQ = 8, 9, 10, 11
sCOL, sHO, sFC = 54, 59, 60

def spin_tail(a, L):
    a(f"s_sub_u32 s{sSPIN}, s{sSPIN}, 1")
    a(f"s_cbranch_scc0 {L}")

def poll(a, vaddr, vtmp, soff, sleep=1):
    L, D = a.uid("POLL"), a.uid("POLLED")
    a(f"s_mov_b32 s{sSPIN}, {SPIN}")
    a.label(L)
    a(f"buffer_load_dword v{vtmp}, v{vaddr}, {sr(SWS)}, {soff} offen sc1")
    a("s_waitcnt vmcnt(0)")
    a(f"v_cmp_ne_u32 vcc, s{sNON}, v{vtmp}")
    a(f"s_cbranch_vccz {D}")
    if sleep: a(f"s_sleep {sleep}")
    spin_tail(a, L)
    a.label(D)

def stores(a, lines):
    L, D = a.uid("SLOW"), a.uid("STD")
    a(f"s_cmp_eq_u32 s{sFAST}, 0")
    a(f"s_cbranch_scc1 {L}")
    for l in lines: a(l)
    a.label(D)
    a.tail.append((L, [l + (" sc1" if l.startswith("buffer_store") else "") for l in lines], D))

def check_fast(a, vaddr, vtmp):
    L = a.uid("CF")
    a(f"s_cmp_lg_u32 s{sFAST}, 0")
    a(f"s_cbranch_scc1 {L}")
    a(f"s_and_b32 s{sT0}, s2, 7")
    a(f"s_lshl_b32 s{sT0}, s{sT0}, 7")
    a(f"s_add_u32 s{sT0}, s{sT0}, {WS_XC}")
    a(f"v_and_b32 v{vaddr}, 31, v1")
    a(f"v_lshlrev_b32 v{vaddr}, 2, v{vaddr}")
    a(f"buffer_load_dword v{vtmp}, v{vaddr}, {sr(SWS)}, s{sT0} offen sc1")
    a("s_waitcnt vmcnt(0)")
    a(f"v_cmp_ne_u32 vcc, s{sXW}, v{vtmp}")
    a("s_cmp_eq_u64 vcc, 0")
    a(f"s_cselect_b32 s{sFAST}, {0 if opt('slow') else 1}, 0")
    a.label(L)

K1_SLOT = 36864
K1_XOFF = 20480
K1_CS = 151552
K1_ST = K1_CS + 2560
WO_STAGE = [83968, 110592, 131072]
L_VT = 104448
vWD = 240
RING_ST = 20992
L_OP = 4 * RING_ST
L_MREC = L_OP + 73728
L_CNT = L_MREC + 2048
LDS_BYTES = L_CNT + 64

aS = [16, 32, 48, 64]
aO = lambda i: 80 + 12 * i
aQM = lambda i: 180 + 4 * i
aQT = lambda i: 212 + 2 * i
aKM = [228, 242]; aKT = [232, 246]; aV0 = [234, 248]; aV1 = [238, 252]
avV, avKT = 14, 15
AP = 128

def ldkm(a, b, va): a(f"buffer_load_dwordx4 {vr(aKM[b], 4)}, v{va}, {sr(SWS)}, s{sKV} offen sc1")
def ldkt(a, b): a(f"buffer_load_dwordx2 {vr(aKT[b], 2)}, v{avKT}, {sr(SWS)}, s{sKV} offen sc1")
def ldv(a, u, b): a(f"buffer_load_dwordx4 {vr((aV0, aV1)[u][b], 4)}, v{avV}, {sr(SWS)}, s{sKV} offen" + (" offset:768" if u else "") + " sc1")
def kv_first(a, va):
    a(f"s_mul_i32 s{sKV}, s{sQ}, {16*KV_REC}")
    a(f"s_add_u32 s{sKV}, s{sKV}, {WS_KV}")
    ldkm(a, 0, va); ldkt(a, 0); ldv(a, 0, 0); ldv(a, 1, 0)
    a(f"s_add_u32 s{sKV}, s{sKV}, {KV_REC}")
    ldkm(a, 1, va); ldkt(a, 1)
def att_zero(a):
    for r in range(aO(0), aO(0) + 100): a(f"v_mov_b32 v{r}, 0")
    for r in range(aS[3], aS[3] + 16): a(f"v_mov_b32 v{r}, 0")
    for r in range(aV0[1], aV0[1] + 8): a(f"v_mov_b32 v{r}, 0")

def gen_p1(a):
    vL, vN, vH, vT0, vT1, vT2, vZ = 1, 2, 3, 4, 5, 6, 7
    vX, vD = 8, 16
    vNON, vROW, vFL, vFV = 21, 22, 23, 22
    vSA = 24
    vG16, vC4 = 26, 27
    FB = [28, 32]
    FA = [36, 48]
    PUB = 60
    a(f"s_cmp_ge_u32 s2, 256")
    a("s_cbranch_scc1 L_END")
    a("s_load_dwordx16 s[32:47], s[0:1], 0")
    a("s_load_dwordx4 s[48:51], s[0:1], 64")
    a("s_load_dwordx2 s[52:53], s[0:1], 80")
    a("s_memrealtime s[100:101]")
    a(f"v_lshrrev_b32 v{vT0}, 6, v0")
    a(f"v_and_b32 v{vL}, 63, v0")
    a(f"v_readfirstlane_b32 s{sW}, v{vT0}")
    rbits = optv("rbits", 1)
    cb = rbits - 1
    a(f"s_bfe_u32 s{sRB}, s2, {((3-cb) << 16) | cb:#x}")
    a(f"s_lshl_b32 s{sRB}, s{sRB}, {rbits}")
    a(f"s_bfe_u32 s{sT0}, s2, {(rbits << 16) | 3:#x}")
    a(f"s_add_u32 s{sRB}, s{sRB}, s{sT0}")
    a(f"s_and_b32 s{sCG}, s2, {(1 << cb) - 1}")
    a(f"s_lshl_b32 s{sCG}, s{sCG}, {5-rbits}")
    a(f"s_lshr_b32 s{sT0}, s2, {3+rbits}")
    a(f"s_add_u32 s{sCG}, s{sCG}, s{sT0}")
    a(f"s_and_b32 s{sTT}, s{sW}, 3")
    a(f"s_mul_i32 s{sST}, s{sRB}, 3")
    a(f"s_add_u32 s{sST}, s{sST}, s{sCG}")
    a(f"s_mul_i32 s{sT0}, s{sST}, 26")
    a(f"s_lshr_b32 s{sT0}, s{sT0}, 8")
    a(f"s_mul_i32 s{sT0}, s{sT0}, 10")
    a(f"s_sub_u32 s{sST}, s{sST}, s{sT0}")
    a(f"s_mul_i32 s{sCC}, s{sST}, 86")
    a(f"s_lshr_b32 s{sCC}, s{sCC}, 8")
    a(f"s_min_u32 s{sCC}, s{sCC}, 2")
    a(f"s_mul_i32 s{sCC}, s{sCC}, 3")
    a(f"s_sub_u32 s{sSI}, s{sST}, s{sCC}")
    a(f"s_lshl_b32 s{sT0}, s{sRB}, 2")
    a(f"s_add_u32 s{sT3}, s{sT0}, s{sTT}")
    a(f"s_cmp_lt_u32 s{sW}, 4")
    a("s_cbranch_scc1 P1_A")

    def piece(role, kv, p):
        if role == "A" and kv:
            a(f"s_add_u32 m0, s{sM0}, {4096*p}")
            a("s_nop 0")
            a(f"buffer_load_dwordx4 v{vD}, {sr(SA if p == 0 else SB)}, s{sSO} offen lds")
        else:
            a(f"s_add_u32 m0, s{sM0}, {1024*p}")
            a("s_nop 0")
            a(f"buffer_load_dwordx4 v{vD+p}, {sr(SX if role == 'B' else SA)}, s{sSO} offen lds")
    def first_chunks(role, kv):
        ndma = 4 if role == "B" else (2 if kv else 5)
        if PROFILE: a("s_mov_b32 s64, s100")
        a.stamp(1)
        for c in range(2):
            for p in range(ndma): piece(role, kv, p)
            a(f"s_add_u32 s{sSO}, s{sSO}, s{sSTEP}")
            a(f"s_add_u32 s{sM0}, s{sM0}, {K1_SLOT}")
            a("s_barrier")

    a(f"s_lshl_b32 s{sT0}, s{sT3}, 5")
    a(f"v_lshrrev_b32 v{vT0}, 3, v{vL}")
    a(f"v_add_u32 v{vT0}, s{sT0}, v{vT0}")
    a(f"v_mul_u32_u24 v{vT0}, 1280, v{vT0}")
    a(f"v_lshrrev_b32 v{vT1}, 4, v{vL}")
    a(f"v_and_b32 v{vT2}, 7, v{vL}")
    a(f"v_xor_b32 v{vT1}, v{vT1}, v{vT2}")
    a(f"v_lshl_add_u32 v{vD}, v{vT1}, 4, v{vT0}")
    a(f"v_xor_b32 v{vT1}, 4, v{vT1}")
    a(f"v_lshl_add_u32 v{vD+1}, v{vT1}, 4, v{vT0}")
    a(f"v_add_u32 v{vD+1}, {8*1280}, v{vD+1}")
    a(f"v_add_u32 v{vD+2}, {16*1280}, v{vD}")
    a(f"v_add_u32 v{vD+3}, {16*1280}, v{vD+1}")
    a(f"s_lshl_b32 s{sSO}, s{sCC}, 7")
    a(f"s_mov_b32 s{sSTEP}, 128")
    a(f"s_lshl_b32 s{sM0}, s{sTT}, 12")
    a(f"s_add_u32 s{sM0}, s{sM0}, {K1_XOFF}")
    a("s_waitcnt lgkmcnt(0)")
    srd(a, SX, pX, 2048 * 1280)
    first_chunks("B", False)
    a(f"s_cmp_eq_u32 s{sCG}, 15")
    a("s_cbranch_scc1 P1_KB")
    a("s_branch P1_GB")
    a.label("P1_A")
    a(f"s_cmp_eq_u32 s{sCG}, 15")
    a("s_cbranch_scc1 P1_KA0")
    a(f"s_sub_u32 s{sT0}, s{sCG}, 4")
    a(f"s_cmp_lt_u32 s{sCG}, 4")
    csel(a, sWST, 1280, 3456)
    a(f"s_cselect_b32 s{sT0}, s{sCG}, s{sT0}")
    a(f"s_mul_i32 s{sT0}, s{sT0}, 320")
    a(f"s_lshl_b32 s{sT1}, s{sCC}, 2")
    a(f"s_add_u32 s{sT1}, s{sT1}, s{sW}")
    a(f"s_lshl_b32 s{sT1}, s{sT1}, 4")
    a(f"s_mul_i32 s{sT1}, s{sT1}, s{sWST}")
    a(f"s_add_u32 s{sSO}, s{sT0}, s{sT1}")
    a(f"s_sub_u32 s{sT2}, s{sWST}, 320")
    for p in range(5):
        a(f"v_add_u32 v{vT0}, {64*p}, v{vL}")
        a(f"v_mul_u32_u24 v{vT1}, 3277, v{vT0}")
        a(f"v_lshrrev_b32 v{vT1}, 16, v{vT1}")
        a(f"v_lshlrev_b32 v{vT0}, 4, v{vT0}")
        a(f"v_mad_u32_u24 v{vD+p}, v{vT1}, s{sT2}, v{vT0}")
    a(f"s_lshl_b32 s{sSTEP}, s{sWST}, 6")
    a(f"s_mul_i32 s{sM0}, s{sW}, 5120")
    a(f"s_cmp_lt_u32 s{sCG}, 4")
    a("s_waitcnt lgkmcnt(0)")
    a(f"s_cselect_b32 s{SA}, s{pWQ}, s{pW1}")
    a(f"s_cselect_b32 s{SA+1}, s{pWQ+1}, s{pW1+1}")
    csel(a, SA + 2, 640 * 640 * 2, 640 * 1728 * 2)
    a(f"s_mov_b32 s{SA+3}, 0x00020000")
    first_chunks("A", False)

    def tr_addr(dst, tile):
        a(f"s_cmp_lt_u32 s{sCG}, 4")
        if tile == 4:
            a(f"s_cselect_b32 s{sT0}, 32, 0x100")
            a(f"s_cselect_b32 s{sT1}, 160, 32")
            a(f"s_cselect_b32 s{sT2}, 40, 8")
            a(f"v_mad_u32_u24 v{dst}, v{vC4}, s{sT2}, v{vROW}")
        else:
            a(f"s_cselect_b32 s{sT1}, 40, 32")
            if isinstance(tile, tuple):
                a(f"s_lshl_b32 s{sT0}, s{sT1}, 1")
                a(f"s_mul_i32 s{sT0}, s{sT0}, s{tile[1]}")
            else:
                a(f"s_mul_i32 s{sT0}, s{sT1}, {2*tile}")
            a(f"v_lshl_add_u32 v{dst}, v{vC4}, 3, v{vROW}")
        a(f"v_mad_u32_u24 v{dst}, v{vG16}, s{sT1}, v{dst}")
        a(f"v_add_u32 v{dst}, s{sT0}, v{dst}")

    def body(tag, role, kv):
        A_, B_ = role == "A", role == "B"
        nt = 1 if kv else (3 if A_ else 2)
        tiles = [0] if kv else ([0, 1, 2] if A_ else [3, 4])
        sstr, rstr = (1024, 40) if kv else (5120, 320)
        ndma = 4 if B_ else (2 if kv else 5)
        vTR = 12 if B_ else 112
        ACC, P, GAT = (64, AP, 176) if A_ else (180, 212, 228)
        ST, NM, CSR = (116, 118, 120) if A_ else ((48, 50, 56) if kv else (44, 46, 56))
        if kv: GAT = 160 if A_ else 28
        ONE = 126 if A_ else 24
        D0, D1, D2 = (P, P + 4, P + 8)
        nxt = "P2_FFN" if A_ else "P2_ATT"
        def stats_finish(SU, SQ, S):
            a(f"v_mul_f32 v{SU}, {f32bits(1.0/640):#x}, v{SU}")
            a(f"v_mul_f32 v{SQ}, {f32bits(1.0/640):#x}, v{SQ}")
            a(f"v_fma_f32 v{SQ}, -v{SU}, v{SU}, v{SQ}")
            a(f"v_max_f32 v{SQ}, 0, v{SQ}")
            a(f"v_cvt_pk_bf16_f32 v{S}, -v{SU}, -v{SU}")
            a(f"v_cvt_pk_bf16_f32 v{SQ}, v{SQ}, v{SQ}")
            a(f"v_and_b32 v{SQ}, 0xffff0000, v{SQ}")
            a(f"v_add_f32 v{SQ}, {f32bits(1e-5):#x}, v{SQ}")
            a(f"v_cvt_pk_bf16_f32 v{SQ}, v{SQ}, v{SQ}")
            a(f"v_and_b32 v{SQ}, 0xffff0000, v{SQ}")
            a(f"v_sqrt_f32 v{SQ}, v{SQ}")
            a(f"s_lshl_b32 s{sT0}, s{sTT}, 8")
            a(f"v_cvt_pk_bf16_f32 v{SQ}, v{SQ}, v{SQ}")
            a(f"v_and_b32 v{SQ}, 0xffff0000, v{SQ}")
            a(f"v_rcp_f32 v{SQ}, v{SQ}")
            a(f"s_add_u32 s{sT0}, s{sT0}, {K1_ST}")
            a(f"v_mul_f32 v{S+1}, s{sQS}, v{SQ}")
        def get_nonce():
            L, D = a.uid("NON"), a.uid("NOND")
            a(f"s_mov_b32 s{sSPIN}, {SPIN}")
            a.label(L)
            a(f"v_readfirstlane_b32 s{sNON}, v{vNON}")
            a(f"s_cmp_lg_u32 s{sNON}, 0")
            a(f"s_cbranch_scc1 {D}")
            a(f"buffer_load_dword v{vNON}, v{vZ}, {sr(SDBG)}, 0 offen sc1")
            a("s_waitcnt vmcnt(0)")
            spin_tail(a, L)
            a.label(D)
            a(f"s_getreg_b32 s{sXW}, hwreg(HW_REG_XCC_ID, 0, 4)")
            a(f"s_lshl_b32 s{sXW}, s{sXW}, 1")
            a(f"s_xor_b32 s{sXW}, s{sXW}, s{sNON}")
            if A_:
                L = a.uid("XW")
                a(f"s_cmp_lg_u32 s{sW}, 0")
                a(f"s_cbranch_scc1 {L}")
                a(f"s_and_b32 s{sT0}, s2, 7")
                a(f"s_lshl_b32 s{sT0}, s{sT0}, 5")
                a(f"s_lshr_b32 s{sT1}, s2, 3")
                a(f"s_add_u32 s{sT0}, s{sT0}, s{sT1}")
                a(f"s_lshl_b32 s{sT0}, s{sT0}, 2")
                a(f"s_add_u32 s{sT0}, s{sT0}, {WS_XC}")
                a(f"v_mov_b32 v{vT0}, s{sXW}")
                a("s_mov_b64 exec, 1")
                a(f"buffer_store_dword v{vT0}, v{vZ}, {sr(SWS)}, s{sT0} offen sc1")
                a("s_mov_b64 exec, -1")
                a.label(L)
        def m4(d, x, y):
            a(f"v_mfma_f32_4x4x4_16b_bf16 {vr(d, 4)}, {vr(x, 2)}, {vr(y, 2)}, {vr(d, 4)}")
        def diag(dst, d):
            a(f"v_cmp_eq_u32 vcc, 1, v{vC4}")
            a(f"v_cmp_eq_u32 s[100:101], 3, v{vC4}")
            a("s_nop 0")
            a(f"v_cndmask_b32 v{d}, v{d}, v{d+1}, vcc")
            a(f"v_cmp_lt_u32 vcc, 1, v{vC4}")
            a(f"v_cndmask_b32 v{d+2}, v{d+2}, v{d+3}, s[100:101]")
            a("s_nop 0")
            a(f"v_cndmask_b32 v{dst}, v{d}, v{d+2}, vcc")
        def gather():
            a(f"v_mul_u32_u24 v{vT0}, 2560, v{vH}")
            a(f"v_lshl_add_u32 v{vT0}, v{vN}, 4, v{vT0}")
            for j in range(5): a(f"buffer_load_dwordx4 {vr(GAT+4*j, 4)}, v{vT0}, {sr(SWS)}, s{sPB} offen offset:{512*j} sc1")
        def gather_check(again, ok):
            a(f"v_xor_b32 v{vT1}, s{sNON}, v{GAT+1}")
            for j in range(1, 10):
                a(f"v_bitop3_b32 v{vT1}, v{GAT+2*j+1}, s{sNON}, v{vT1} bitop3:0xbe")
            a(f"v_cmp_ne_u32 vcc, 0, v{vT1}")
            a(f"s_cbranch_vccz {ok}")
            a("s_sleep 2")
            spin_tail(a, again)
            a.label(ok)
        def gather_sum():
            for j in range(1, 5):
                a(f"v_add_f32 v{GAT}, v{GAT}, v{GAT+4*j}")
                a(f"v_add_f32 v{GAT+2}, v{GAT+2}, v{GAT+4*j+2}")
        def advance():
            a(f"s_mul_i32 s{sT0}, s{sSTEP}, -9")
            a(f"s_add_u32 s{sCC}, s{sCC}, 1")
            a(f"s_cmp_eq_u32 s{sCC}, 10")
            a(f"s_cselect_b32 s{sT0}, s{sT0}, s{sSTEP}")
            a(f"s_add_u32 s{sSO}, s{sSO}, s{sT0}")
            a(f"s_and_b32 s{sT0}, s{sC}, 3")
            csel(a, sT1, K1_SLOT, -3*K1_SLOT)
            a(f"s_add_u32 s{sM0}, s{sM0}, s{sT1}")
            a(f"s_cmp_eq_u32 s{sT0}, 3")
            csel(a, sDEL, -3*K1_SLOT, K1_SLOT)
            for s in range(4): a(f"v_add_u32 v{vX+s}, s{sDEL}, v{vX+s}")
            for i in range(nt): a(f"v_add_u32 v{vTR+i}, s{sDEL}, v{vTR+i}")
        def stream_off():
            if B_: a(f"s_mov_b32 s{SX+2}, 0")
            else:
                a(f"s_mov_b32 s{SA+2}, 0")
                if kv: a(f"s_mov_b32 s{SB+2}, 0")
        for p in range(ndma): piece(role, kv, p)
        a(f"s_add_u32 s{sSO}, s{sSO}, s{sSTEP}")
        a(f"s_add_u32 s{sM0}, s{sM0}, {K1_SLOT}")
        a(f"s_add_u32 s{sCC}, s{sCC}, 3")
        srd(a, SWS, pWS, WS_END)
        srd(a, SDBG, pDBG, 256)
        a(f"v_mov_b32 v{vZ}, 0")
        if A_ and not kv:
            L = a.uid("NONCE")
            a(f"s_or_b32 s{sT0}, s2, s{sW}")
            a(f"s_cbranch_scc1 {L}")
            if PROFILE: a("s_or_b32 s100, s65, 1")
            else: a("s_or_b32 s100, s100, 1")
            a(f"v_mov_b32 v{vT0}, s100")
            a(f"buffer_store_dword v{vT0}, v{vZ}, {sr(SDBG)}, 0 offen sc1")
            a.label(L)
        a(f"s_and_b32 s{sT}, s2, 7")
        a(f"s_lshl_b32 s{sT}, s{sT}, 3")
        a(f"s_lshr_b32 s{sT0}, s2, 5")
        a(f"s_add_u32 s{sT}, s{sT}, s{sT0}")
        a(f"s_bfe_u32 s{sHG}, s2, 0x20003")
        a(f"s_mul_i32 s{sG}, s{sT}, {G_TSTRIDE}")
        if kv and A_:
            srd(a, SW4, pWO, 640 * 1280)
            a(f"v_lshlrev_b32 v{vT0}, 7, v{vL}")
            a(f"s_mul_i32 s{sT1}, s{sT3}, {100*128}")
            a(f"buffer_load_dword v230, v{vT0}, {sr(SW4)}, s{sT1} offen")
            a(f"s_add_u32 s{sT1}, s{sT1}, {36*128}")
            a(f"buffer_load_dword v230, v{vT0}, {sr(SW4)}, s{sT1} offen")
        a(f"s_mul_i32 s{sOB}, s{sT}, {32*1280}")
        a(f"s_mul_i32 s{sT0}, s{sHG}, 320")
        a(f"s_add_u32 s{sOB}, s{sOB}, s{sT0}")
        if A_:
            a(f"s_mul_i32 s{sWOR}, s{sW}, {160*1280}")
            a(f"s_add_u32 s{sWOR}, s{sWOR}, s{sT0}")
            a(f"s_add_u32 s{sWOR}, s{sWOR}, {100*1280}")
            for p in range(5):
                a(f"v_add_u32 v{vT0}, {64*p}, v{vL}")
                a(f"v_mul_u32_u24 v{vT1}, 3277, v{vT0}")
                a(f"v_lshrrev_b32 v{vT1}, 16, v{vT1}")
                a(f"v_lshlrev_b32 v{vT0}, 4, v{vT0}")
                a(f"v_mul_u32_u24 v{vWD+p}, 960, v{vT1}")
                a(f"v_add_u32 v{vWD+p}, v{vWD+p}, v{vT0}")
        a(f"s_lshl_b32 s{sF2}, s{sT}, 2")
        a(f"s_add_u32 s{sF2}, s{sF2}, s{sHG}")
        a(f"s_lshl_b32 s{sF2}, s{sF2}, 7")
        a(f"s_add_u32 s{sF2}, s{sF2}, {WS_F2}")
        a(f"v_mov_b32 v{ONE}, 0x3f803f80")
        a(f"v_mov_b32 v{ONE+1}, 0x3f803f80")
        for j in range(16): a(f"v_mov_b32 v{P+j}, 0")
        a(f"s_max_u32 s{sPUBI}, s{sSI}, 1")
        a(f"s_lshl_b32 s{sRLX}, 6, s{sPUBI}")
        a(f"s_or_b32 s{sRLX}, s{sRLX}, 1")
        a(f"v_and_b32 v{vN}, 31, v{vL}")
        a(f"v_lshrrev_b32 v{vH}, 5, v{vL}")
        a(f"v_bfe_u32 v{vT0}, v{vL}, 1, 3")
        a(f"v_xor_b32 v{vT0}, v{vT0}, v{vH}")
        a(f"s_lshl_b32 s{sT0}, s{sTT}, 12")
        a(f"s_add_u32 s{sT0}, s{sT0}, {K1_XOFF}")
        a(f"v_lshl_add_u32 v{vT1}, v{vN}, 7, s{sT0}")
        for s in range(4):
            a(f"v_xor_b32 v{vT2}, {2*s}, v{vT0}")
            a(f"v_lshl_add_u32 v{vX+s}, v{vT2}, 4, v{vT1}")
        a(f"v_bfe_u32 v{vT0}, v{vL}, 2, 2")
        a(f"v_lshl_add_u32 v{vROW}, v{vH}, 3, v{vT0}")
        a(f"v_bfe_u32 v{vG16}, v{vL}, 4, 1")
        a(f"v_and_b32 v{vC4}, 3, v{vL}")
        a(f"s_mul_i32 s{sOUT}, s{sT3}, {G_TSTRIDE}")
        a(f"s_mul_i32 s{sT0}, s{sCG}, 10240")
        a(f"s_add_u32 s{sOUT}, s{sOUT}, s{sT0}")
        a(f"s_cmp_lt_u32 s{sCG}, 4")
        a(f"s_cselect_b32 s{sQS}, {f32bits(QSCALE):#x}, 1.0")
        a(f"s_lshl_b32 s{sFL}, s{sRB}, 4")
        a(f"s_add_u32 s{sFL}, s{sFL}, s{sCG}")
        a(f"s_lshl_b32 s{sFL}, s{sFL}, 7")
        a(f"s_add_u32 s{sFL}, s{sFL}, {WS_F1}")
        if kv:
            a(f"v_lshl_add_u32 v{vT0}, v{vG16}, 2, v{vC4}")
            a(f"v_min_u32 v{vT0}, 4, v{vT0}")
            a(f"v_mul_u32_u24 v{vROW}, 40, v{vROW}")
            a(f"v_lshl_add_u32 v{vTR}, v{vT0}, 3, v{vROW}")
            if B_: a(f"v_add_u32 v{vTR}, 4096, v{vTR}")
        else:
            a(f"v_mul_u32_u24 v{vROW}, 320, v{vROW}")
            for i, t in enumerate(tiles): tr_addr(vTR + i, t)
            if A_:
                tr_addr(vSA, ("s", sW)); tr_addr(vSA + 1, 4)
                a(f"s_mul_i32 s{sT0}, s{sSI}, {K1_SLOT}")
                a(f"v_add_u32 v{vSA}, s{sT0}, v{vSA}")
                a(f"v_add_u32 v{vSA+1}, s{sT0}, v{vSA+1}")
        for i in range(16 * nt): a(f"v_mov_b32 v{ACC+i}, 0")
        for i in range(4): a(f"v_mov_b32 v{PUB+i}, 0")
        if A_ and kv:
            a(f"s_mul_i32 s{sPB}, s{sT3}, 5120")
            a(f"s_add_u32 s{sPB}, s{sPB}, {WS_RP}")
        elif A_:
            a(f"s_lshl_b32 s{sPB}, s{sCG}, 2")
            a(f"s_add_u32 s{sPB}, s{sPB}, s{sW}")
            a(f"s_mul_i32 s{sPB}, s{sPB}, 5120")
            a(f"s_add_u32 s{sPB}, s{sPB}, {WS_CP}")
        else:
            a(f"s_mul_i32 s{sPB}, s{sT3}, 5120")
            a(f"s_add_u32 s{sPB}, s{sPB}, {WS_RP}")
            srd(a, SB, pOUT, 2048 * 1280)
            att_zero(a)
            a(f"v_mul_u32_u24 v{avV}, 384, v{vH}")
            a(f"v_lshl_add_u32 v{avV}, v{vN}, 4, v{avV}")
            a(f"v_add_u32 v{avV}, 1024, v{avV}")
            a(f"v_mov_b32 v{vT2}, {OOB:#x}")
            a(f"v_cmp_gt_u32 vcc, 21, v{vN}")
            a(f"v_min_u32 v{avKT}, 32, v{vL}")
            a(f"v_lshlrev_b32 v{avKT}, 3, v{avKT}")
            a(f"v_cndmask_b32 v{avV}, v{vT2}, v{avV}, vcc")
            a(f"v_add_u32 v{avKT}, 2560, v{avKT}")
            a(f"s_mul_i32 s{sT2}, s{sHG}, 10240")
            a(f"s_add_u32 s{sT2}, s{sT2}, s{sG}")
            for j in range(4):
                a(f"s_add_u32 s{sT0}, s{sQ}, {j}")
                a(f"s_and_b32 s{sT0}, s{sT0}, 3")
                a(f"s_lshl_b32 s{sPm+j}, s{sT0}, 11")
                a(f"s_add_u32 s{sPm+j}, s{sPm+j}, s{sT2}")
                a(f"s_lshr_b32 s{sT1}, s{sT0}, 1")
                a(f"s_lshl_b32 s{sT1}, s{sT1}, 10")
                a(f"s_and_b32 s{sT0}, s{sT0}, 1")
                a(f"s_lshl_b32 s{sT0}, s{sT0}, 3")
                a(f"s_add_u32 s{sT1}, s{sT1}, s{sT0}")
                a(f"s_add_u32 s{sT1}, s{sT1}, s{sT2}")
                a(f"s_add_u32 s{sPt+j}, s{sT1}, 8192")
            a(f"s_mul_i32 s{sT2}, s{sT}, 40960")
            a(f"s_add_u32 s{sT2}, s{sT2}, {WS_O}")
            a(f"s_sub_u32 s{sT2}, s{sT2}, s{sG}")
            a(f"s_add_u32 s{sOm}, s{sPm}, s{sT2}")
            a(f"s_add_u32 s{sOt}, s{sPt}, s{sT2}")
            a(f"s_mov_b32 s{sTGT}, 0")
            a(f"v_mov_b32 v{vT2}, {L_CNT}")
            a(f"ds_write_b128 v{vT2}, {vr(PUB, 4)}")
            a(f"s_lshr_b32 s{sT0}, s{sT}, 2")
            a(f"s_lshl_b32 s{sT0}, s{sT0}, 4")
            a(f"s_add_u32 s{sT0}, s{sT0}, s{sHG}")
            a(f"s_lshl_b32 s{sT0}, s{sT0}, 5")
            a(f"s_and_b32 s{sT1}, s{sT}, 3")
            a(f"s_add_u32 s{sT0}, s{sT0}, s{sT1}")
            a(f"s_lshl_b32 s{sT0}, s{sT0}, 2")
            a(f"s_add_u32 s{sFQ}, s{sT0}, {WS_F1 + 32}")
        a(f"v_and_b32 v{vT0}, 15, v{vL}")
        a(f"v_lshlrev_b32 v{vT0}, 11, v{vT0}")
        a(f"v_add_u32 v{vT0}, {WS_F1 + 15*128}, v{vT0}")
        a(f"s_and_b32 s{sT0}, s2, 7")
        a(f"s_lshl_b32 s{sT0}, s{sT0}, 7")
        a(f"s_add_u32 s{sT0}, s{sT0}, {WS_XC}")
        a(f"v_cmp_gt_u32 vcc, 32, v{vL}")
        a(f"v_lshl_add_u32 v{vT1}, v{vN}, 2, s{sT0}")
        a(f"s_mov_b32 s{sFAST}, 0")
        a(f"s_mov_b32 s{sC}, 0")
        a(f"v_cndmask_b32 v{vFL}, v{vT1}, v{vT0}, vcc")

        if kv:
            XB, WA = [28, ACC + 16], [44, 80 + 16 if A_ else 228]
            def kreads(b):
                for s in range(4):
                    a(f"ds_read_b128 {vr(XB[b]+4*s, 4)}, v{vX+s}")
                    a(f"ds_read_b64_tr_b16 {vr(WA[b]+4*s, 2)}, v{vTR} offset:{s*sstr}")
                    a(f"ds_read_b64_tr_b16 {vr(WA[b]+4*s+2, 2)}, v{vTR} offset:{s*sstr+4*rstr}")
            a(f"s_waitcnt vmcnt({2*ndma + (2 if A_ else 0)})")
            a.stamp(2)
            a("s_barrier")
            a.stamp(3); a.stamp(NSTAMP, True)
            kreads(0)
            a(f"buffer_load_dword v{vNON}, v{vZ}, {sr(SDBG)}, 0 offen sc1")
            for p in range(ndma): piece(role, kv, p)
            a.label(f"P1_L{tag}")
            for b in range(2):
                advance()
                if b == 0:
                    L = a.uid("KS")
                    a(f"s_cmp_lg_u32 s{sC}, 6")
                    a(f"s_cbranch_scc1 {L}")
                    stream_off()
                    a.label(L)
                a(f"s_waitcnt vmcnt({2*ndma}) lgkmcnt(0)")
                a("s_barrier")
                for s in range(4):
                    a(f"v_mfma_f32_32x32x16_bf16 {vr(ACC, 16)}, {vr(WA[b]+4*s, 4)}, {vr(XB[b]+4*s, 4)}, {vr(ACC, 16)}")
                    a(f"ds_read_b128 {vr(XB[b^1]+4*s, 4)}, v{vX+s}")
                    a(f"ds_read_b64_tr_b16 {vr(WA[b^1]+4*s, 2)}, v{vTR} offset:{s*sstr}")
                    a(f"ds_read_b64_tr_b16 {vr(WA[b^1]+4*s+2, 2)}, v{vTR} offset:{s*sstr+4*rstr}")
                    for j in range(2): m4(P + 4*j, ONE, WA[b]+4*s+2*j)
                    if s < ndma: piece(role, kv, s)
                if b == 1:
                    L = a.uid("KN")
                    a(f"s_cmp_lg_u32 s{sC}, 3")
                    a(f"s_cbranch_scc1 {L}")
                    get_nonce()
                    a.label(L)
                if A_: a.lstamp(sC)
                a(f"s_add_u32 s{sC}, s{sC}, 1")
            a(f"s_cmp_lt_u32 s{sC}, 10")
            a(f"s_cbranch_scc1 P1_L{tag}")
            a.stamp(4); a.stamp(NSTAMP + 1, True)
            if A_: a.ldump()
            a(f"s_mov_b32 s{sSPIN}, {SPIN}")
            a("s_waitcnt lgkmcnt(0)")
            a.label(f"P1_GA{tag}")
            gather()
            a("s_waitcnt vmcnt(0)")
            gather_check(f"P1_GA{tag}", f"P1_FOK{tag}")
            gather_sum()
            a(f"v_add_f32 v{P}, v{P}, v{P+4}")
            split3(a, P, vT0, vT1, CSR, CSR + 1)
            halfop(a, "v_add_f32", GAT, vT0); halfop(a, "v_add_f32", GAT + 2, vT0)
            stats_finish(GAT, GAT + 2, ST)
            a(f"v_lshlrev_b32 v{vT2}, 4, v{vL}")
            a(f"v_mov_b32 v{NM}, v{ST}")
            a(f"v_mov_b32 v{NM+1}, v{ST}")
            a(f"v_mov_b32 v{ST}, v{ST+1}")
            a("s_nop 0")
            a(f"v_mfma_f32_32x32x8_bf16 {vr(ACC, 16)}, {vr(CSR, 2)}, {vr(NM, 2)}, {vr(ACC, 16)}")
            a("s_nop 9")
            a(f"s_mul_i32 s{sT0}, s{sT3}, {KV_REC}")
            a(f"s_add_u32 s{sT0}, s{sT0}, {WS_KV}")
            for j in range(6): a(f"v_pk_mul_f32 {vr(ACC+2*j, 2)}, {vr(ACC+2*j, 2)}, {vr(ST, 2)}")
            if A_:
                for j in range(6): a(f"v_cvt_pk_bf16_f32 v{P+j}, v{ACC+2*j}, v{ACC+2*j+1}")
                a(f"v_min_u32 v{vT0}, 32, v{vL}")
                a(f"v_lshlrev_b32 v{vT0}, 3, v{vT0}")
                a("s_mov_b32 exec_lo, 0")
                a(f"v_mov_b32 v{P+4}, 0x3f803f80")
                a(f"v_mov_b32 v{P+5}, 0x3f80")
                a("s_mov_b32 exec_lo, -1")
                a(f"buffer_store_dwordx4 {vr(P, 4)}, v{vT2}, {sr(SWS)}, s{sT0} offen sc1")
                a(f"buffer_store_dwordx2 {vr(P+4, 2)}, v{vT0}, {sr(SWS)}, s{sT0} offen offset:2560 sc1")
            else:
                a("s_mov_b32 exec_lo, 0")
                a(f"v_mov_b32 v{ACC+8}, 1.0")
                a("s_mov_b32 exec_lo, -1")
                for j in range(6): a(f"v_cvt_pk_bf16_f32 v{P+j}, v{ACC+2*j}, v{ACC+2*j+1}")
                a(f"s_mul_i32 s{sT1}, s{sTT}, 1536")
                a(f"s_add_u32 s{sT1}, s{sT1}, {L_VT}")
                a(f"v_lshrrev_b32 v{vT0}, 3, v{vN}")
                a(f"v_mul_u32_u24 v{vT0}, 384, v{vT0}")
                a(f"v_and_b32 v{vT1}, 7, v{vN}")
                a(f"v_lshl_add_u32 v{vT0}, v{vT1}, 1, v{vT0}")
                a(f"v_lshl_add_u32 v{vT0}, v{vH}, 6, v{vT0}")
                a(f"v_add_u32 v{vT0}, s{sT1}, v{vT0}")
                for r in range(12):
                    op = "ds_write_b16" if r % 2 == 0 else "ds_write_b16_d16_hi"
                    a(f"{op} v{vT0}, v{P+r//2} offset:{(r//4)*128 + (r%4)*16}")
                a(f"v_add_u32 v{vT0}, s{sT1}, v{vT2}")
                a("s_waitcnt lgkmcnt(0)")
                a(f"ds_read_b128 {vr(P+8, 4)}, v{vT0}")
                a(f"ds_read_b128 {vr(P+12, 4)}, v{vT0} offset:1024")
                a("s_waitcnt lgkmcnt(0)")
                a(f"buffer_store_dwordx4 {vr(P+8, 4)}, v{vT2}, {sr(SWS)}, s{sT0} offen offset:1024 sc1")
                a("s_mov_b32 exec_hi, 0")
                a(f"buffer_store_dwordx4 {vr(P+12, 4)}, v{vT2}, {sr(SWS)}, s{sT0} offen offset:2048 sc1")
                a("s_mov_b32 exec_hi, -1")
            a.stamp(5)
            a("s_waitcnt vmcnt(0)")
            a("s_barrier")
            if B_:
                a(f"s_mov_b32 s{sKOK}, 0")
                a(f"s_cmp_lg_u32 s{sW}, 4")
                a(f"s_cbranch_scc1 {nxt}")
                a("s_mov_b64 exec, 1")
                a(f"buffer_store_dword v{vNON}, v{vZ}, {sr(SWS)}, s{sFL} offen sc1")
                a("s_mov_b64 exec, -1")
            else:
                a("s_sleep 4")
                a(f"s_mul_i32 s{sT2}, s{sW}, 5120")
                for i in range(3):
                    for p in range(5):
                        a(f"s_add_u32 m0, s{sT2}, {WO_STAGE[i] + p*1024}")
                        a("s_nop 0")
                        a(f"buffer_load_dwordx4 v{vWD+p}, {sr(SW4)}, s{sWOR} offen lds")
                    a(f"s_add_u32 s{sWOR}, s{sWOR}, {20*1280}")
            a(f"s_branch {nxt}")
            return

        a("s_mov_b64 vcc, -1")
        a(f"s_waitcnt vmcnt({2*ndma})")
        a.stamp(2)
        a("s_barrier")
        a(f"ds_read_b128 {vr(FB[0], 4)}, v{vX}")
        for i in range(nt):
            a(f"ds_read_b64_tr_b16 {vr(FA[0]+4*i, 2)}, v{vTR+i}")
            a(f"ds_read_b64_tr_b16 {vr(FA[0]+4*i+2, 2)}, v{vTR+i} offset:{4*rstr}")
        a(f"buffer_load_dword v{vNON}, v{vZ}, {sr(SDBG)}, 0 offen sc1")
        a.stamp(3); a.stamp(NSTAMP, True)
        a.raw(".p2align 3")
        a.label(f"P1_L{tag}")
        a(f"s_cmp_eq_u32 s{sC}, s{sSI}")
        a(f"s_cbranch_scc1 P1_ST{tag}")
        a.label(f"P1_M{tag}")
        slots = [(s, i) for s in range(3) for i in range(nt)]
        where = {}
        for p in range(ndma):
            where.setdefault(slots[(p * len(slots)) // ndma + (1 if B_ else 0)], []).append(p)
        def step(s, pre=None):
            p, q, ns = s & 1, (s + 1) & 1, (s + 1) & 3
            for i in range(nt):
                if pre is None:
                    a(f"s_waitcnt lgkmcnt({2*(nt-1-i) + ((1 + 2*i) if i else 0)})")
                a(f"v_mfma_f32_32x32x16_bf16 {vr(ACC+16*i, 16)}, {vr(FA[p]+4*i, 4)}, {vr(FB[p], 4)}, {vr(ACC+16*i, 16)}")
                if i == 0:
                    if pre is not None: pre()
                    a(f"ds_read_b128 {vr(FB[q], 4)}, v{vX+ns}")
                a(f"ds_read_b64_tr_b16 {vr(FA[q]+4*i, 2)}, v{vTR+i} offset:{ns*sstr}")
                a(f"ds_read_b64_tr_b16 {vr(FA[q]+4*i+2, 2)}, v{vTR+i} offset:{ns*sstr+4*rstr}")
                for pp in where.get((s, i), []):
                    if B_:
                        L = a.uid("SK")
                        a(f"s_cbranch_vccz {L}")
                    piece(role, kv, pp)
                    if B_: a.label(L)
        for s in range(3): step(s)
        advance()
        a(f"s_cmp_ge_u32 s{sC}, 7")
        a("s_waitcnt lgkmcnt(0)")
        def pre():
            a(f"s_cbranch_scc1 P1_WL{tag}")
            a(f"s_bitcmp1_b32 s{sRLX}, s{sC}")
            a(f"s_cbranch_scc1 P1_W0{tag}")
            a(f"s_waitcnt vmcnt({2*ndma})")
            a.label(f"P1_W0{tag}")
            a(f"s_waitcnt vmcnt({2*ndma + 1})")
            a.label(f"P1_W1{tag}")
            a("s_barrier")
        step(3, pre)
        a(f"s_cmp_ge_u32 s{sC}, 6")
        a(f"s_cbranch_scc1 P1_ND{tag}")
        a(f"s_cmp_eq_u32 s{sC}, s{sPUBI}")
        a(f"s_cbranch_scc1 P1_PUB{tag}")
        a.label(f"P1_NX{tag}")
        if A_: a.lstamp(sC)
        a(f"s_add_u32 s{sC}, s{sC}, 1")
        a(f"s_branch P1_L{tag}")
        a.label(f"P1_WL{tag}")
        if A_:
            a(f"s_waitcnt vmcnt({2*ndma + 6})")
        else:
            a(f"s_waitcnt vmcnt({ndma + 5})")
            a(f"s_cmp_eq_u32 s{sC}, 7")
            a(f"s_cbranch_scc1 P1_W1{tag}")
            a("s_waitcnt vmcnt(5)")
        a(f"s_branch P1_W1{tag}")
        a.label(f"P1_ST{tag}")
        if B_:
            for s in range(4): a(f"ds_read_b128 {vr(GAT+4*s, 4)}, v{vX+s}")
        else:
            for s in range(4):
                for e in range(2):
                    a(f"ds_read_b64_tr_b16 {vr(GAT+16*e+4*s, 2)}, v{vSA+e} offset:{s*sstr}")
                    a(f"ds_read_b64_tr_b16 {vr(GAT+16*e+4*s+2, 2)}, v{vSA+e} offset:{s*sstr+4*rstr}")
        for j in range(8):
            if j % 2 == 0: a(f"s_waitcnt lgkmcnt({(3 - j//2) * (1 if B_ else 4)})")
            dd = 8 * (j & 1)
            m4(P + dd, ONE, GAT + 2*j)
            if B_: m4(P + dd + 4, GAT + 2*j, GAT + 2*j)
            else: m4(P + dd + 4, ONE, GAT + 16 + 2*j)
        a(f"s_branch P1_M{tag}")
        a.label(f"P1_PUB{tag}")
        get_nonce()
        a(f"v_lshlrev_b32 v{vT1}, 4, v{vL}")
        a(f"v_add_f32 v{PUB}, v{P}, v{P+8}")
        if B_:
            for j in range(4): a(f"v_add_f32 v{P+4+j}, v{P+4+j}, v{P+12+j}")
            diag(PUB + 2, P + 4)
            a("s_mov_b64 vcc, -1")
        else:
            a(f"v_add_f32 v{PUB+2}, v{P+4}, v{P+12}")
        halfop(a, "v_add_f32", PUB, vT0); halfop(a, "v_add_f32", PUB + 2, vT0)
        a(f"v_mov_b32 v{PUB+1}, v{vNON}")
        a(f"v_mov_b32 v{PUB+3}, v{vNON}")
        a(f"s_lshl_b32 s{sT1}, s{sST}, 9")
        a(f"s_add_u32 s{sT0}, s{sPB}, s{sT1}")
        a("s_mov_b32 exec_hi, 0")
        a(f"buffer_store_dwordx4 {vr(PUB, 4)}, v{vT1}, {sr(SWS)}, s{sT0} offen sc1")
        a("s_mov_b32 exec_hi, -1")
        a(f"s_branch P1_NX{tag}")
        a.label(f"P1_ND{tag}")
        a(f"s_cmp_eq_u32 s{sC}, 9")
        a(f"s_cbranch_scc1 P1_DONE{tag}")
        if A_:
            a(f"s_cmp_eq_u32 s{sC}, 7")
            csel(a, sT0, WO_STAGE[1], WO_STAGE[0])
            a(f"s_cmp_eq_u32 s{sC}, 8")
            a(f"s_cmov_b32 s{sT0}, {WO_STAGE[2]}")
            a(f"s_mul_i32 s{sM0}, s{sW}, 5120")
            a(f"s_add_u32 s{sM0}, s{sM0}, s{sT0}")
        a(f"s_cmp_eq_u32 s{sC}, 7")
        a(f"s_cbranch_scc1 P1_NX{tag}")
        a(f"s_mov_b32 s{sSPIN}, {SPIN}")
        a(f"s_cmp_eq_u32 s{sC}, 8")
        a(f"s_cbranch_scc1 P1_FIN{tag}")
        if A_:
            srd(a, SA, pWO, 640 * 1280)
            a(f"s_mov_b32 s{sSO}, s{sWOR}")
            a(f"s_mov_b32 s{sSTEP}, {20*1280}")
            a(f"s_mov_b32 s{sCC}, 16")
            for p in range(5): a(f"v_mov_b32 v{vD+p}, v{vWD+p}")
        else:
            a("s_mov_b64 vcc, 0")
        a.label(f"P1_GA{tag}")
        gather()
        a(f"s_cmp_lg_u32 s{sC}, 6")
        a(f"s_cbranch_scc1 P1_GW{tag}")
        if A_:
            srd(a, SW4, pW2, 0 if opt("notouch") else 1728 * 1280)
            a(f"s_mul_i32 s{sT0}, s{sRB}, 15")
            a(f"s_add_u32 s{sT0}, s{sT0}, s{sCG}")
            a(f"s_lshl_b32 s{sT0}, s{sT0}, 2")
            a(f"s_add_u32 s{sT0}, s{sT0}, s{sW}")
            a(f"s_mul_i32 s{sT0}, s{sT0}, {18*128}")
            a(f"v_lshlrev_b32 v{vT0}, 7, v{vL}")
            a("s_mov_b64 exec, 0x3ffff")
            a(f"buffer_load_dword v231, v{vT0}, {sr(SW4)}, s{sT0} offen")
            a("s_mov_b64 exec, -1")
        a(f"s_branch P1_NX{tag}")
        a.label(f"P1_GW{tag}")
        a("s_waitcnt vmcnt(0)")
        a.label(f"P1_FIN{tag}")
        a(f"s_waitcnt vmcnt({2*ndma + 1 if A_ else 0})")
        gather_check(f"P1_GA{tag}", f"P1_FOK{tag}")
        if B_: a("s_mov_b64 vcc, 0")
        a(f"buffer_load_dword v{vFV}, v{vFL}, {sr(SWS)}, 0 offen sc1")
        gather_sum()
        if B_:
            halfop(a, "v_add_f32", GAT, vT0); halfop(a, "v_add_f32", GAT + 2, vT0)
            stats_finish(GAT, GAT + 2, PUB)
            a(f"v_lshl_add_u32 v{vT0}, v{vN}, 3, s{sT0}")
            a(f"ds_write_b64 v{vT0}, {vr(PUB, 2)}")
        else:
            for e in range(2):
                split3(a, GAT + 2 * e, vT0, vT1, PUB + 2 * e, PUB + 1 + 2 * e)
                if e == 1:
                    a(f"v_lshlrev_b32 v{vT0}, 3, v{vL}")
                    a(f"v_add_u32 v{vT0}, {K1_CS + 2048}, v{vT0}")
                else:
                    a(f"s_lshl_b32 s{sT0}, s{sW}, 9")
                    a(f"s_add_u32 s{sT0}, s{sT0}, {K1_CS}")
                    a(f"v_lshl_add_u32 v{vT0}, v{vL}, 3, s{sT0}")
                a(f"ds_write_b64 v{vT0}, {vr(PUB+2*e, 2)}")
        a(f"s_branch P1_NX{tag}")
        a.label(f"P1_DONE{tag}")
        a.stamp(4); a.stamp(NSTAMP + 1, True)
        if A_: a.ldump()
        a(f"s_lshl_b32 s{sT0}, s{sTT}, 8")
        a(f"s_add_u32 s{sT0}, s{sT0}, {K1_ST}")
        a(f"v_lshl_add_u32 v{vT0}, v{vN}, 3, s{sT0}")
        a(f"v_lshlrev_b32 v{vT1}, 3, v{vL}")
        a(f"v_add_u32 v{vT1}, {K1_CS}, v{vT1}")
        a(f"ds_read_b64 {vr(ST, 2)}, v{vT0}")
        for i, t in enumerate(tiles): a(f"ds_read_b64 {vr(CSR+2*i, 2)}, v{vT1} offset:{512*t}")
        a(f"v_lshlrev_b32 v{vT2}, 4, v{vL}")
        a(f"s_waitcnt vmcnt({ndma if A_ else 0})")
        a(f"v_cmp_ne_u32 vcc, s{sXW}, v{vFV}")
        a(f"s_cmp_lt_u32 s{sCG}, 4")
        a(f"s_cselect_b32 s{sLO}, 0x80008000, 0")
        a("s_cmp_eq_u32 vcc_hi, 0")
        a(f"s_cselect_b32 s{sFAST}, {0 if opt('slow') else 1}, 0")
        if B_:
            L = a.uid("NOKV")
            a(f"v_cmp_ne_u32 vcc, s{sNON}, v{vFV}")
            a(f"s_mov_b32 s{sKOK}, 0")
            a("s_cmp_lg_u32 vcc_lo, 0")
            a(f"s_cbranch_scc1 {L}")
            kv_first(a, vT2)
            a(f"s_mov_b32 s{sKOK}, 1")
            a.label(L)
        a("s_waitcnt lgkmcnt(0)")
        a(f"v_mov_b32 v{NM}, v{ST}")
        a(f"v_mov_b32 v{NM+1}, v{ST}")
        a(f"v_mov_b32 v{ST}, v{ST+1}")
        a("s_nop 0")
        for i in range(nt):
            a(f"v_mfma_f32_32x32x8_bf16 {vr(ACC+16*i, 16)}, {vr(CSR+2*i, 2)}, {vr(NM, 2)}, {vr(ACC+16*i, 16)}")
        a(f"s_nop {12 - nt}")
        for i, t in enumerate(tiles):
            for j in range(8): a(f"v_pk_mul_f32 {vr(ACC+16*i+2*j, 2)}, {vr(ACC+16*i+2*j, 2)}, {vr(ST, 2)}")
            for j in range(8): a(f"v_cvt_pk_bf16_f32 v{P+8*i+j}, v{ACC+16*i+2*j}, v{ACC+16*i+2*j+1}")
            for j in range(8): a(f"v_pk_max_i16 v{P+8*i+j}, v{P+8*i+j}, s{sLO}")
            a(f"s_add_u32 s{sT0}, s{sOUT}, {2048*t}")
            stores(a, [f"buffer_store_dwordx4 {vr(P+8*i+4*e, 4)}, v{vT2}, {sr(SWS)}, s{sT0} offen offset:{1024*e}" for e in range(2)])
        a.stamp(5)
        a(f"s_lshl_b32 s{sT0}, s{sW}, 2")
        a(f"s_add_u32 s{sT0}, s{sT0}, s{sFL}")
        a("s_mov_b64 exec, 1")
        a("s_waitcnt vmcnt(0)")
        stores(a, [f"buffer_store_dword v{vNON}, v{vZ}, {sr(SWS)}, s{sT0} offen offset:32"])
        a("s_mov_b64 exec, -1")
        a(f"s_branch {nxt}")

    body("GA", "A", False)
    a.label("P1_GB")
    body("GB", "B", False)
    a.label("P1_KA0")
    a(f"v_lshlrev_b32 v{vD}, 4, v{vL}")
    a(f"s_lshl_b32 s{sSO}, s{sCC}, 2")
    a(f"s_add_u32 s{sSO}, s{sSO}, s{sW}")
    a(f"s_mul_i32 s{sSO}, s{sSO}, 640")
    a(f"s_mov_b32 s{sSTEP}, 2560")
    a(f"s_lshl_b32 s{sM0}, s{sW}, 10")
    a("s_waitcnt lgkmcnt(0)")
    srd(a, SA, pWK, 640 * 40)
    srd(a, SB, pWV, 640 * 40)
    first_chunks("A", True)
    body("KA", "A", True)
    a.label("P1_KB")
    body("KB", "B", True)

def kdesc(name, nv, ns=102):
    return f""".amdhsa_kernel {name}
  .amdhsa_next_free_vgpr {nv}
  .amdhsa_next_free_sgpr {ns}
  .amdhsa_accum_offset {(nv+3)//4*4}
  .amdhsa_group_segment_fixed_size 0
  .amdhsa_kernarg_size 88
  .amdhsa_user_sgpr_count 2
  .amdhsa_user_sgpr_kernarg_segment_ptr 1
  .amdhsa_system_sgpr_workgroup_id_x 1
.end_amdhsa_kernel
"""

def build():
    from g6p2 import gen_ffn, gen_att
    hdr = open("cdna_kernels/" + NAME + ".s.ref").read().split("; Override launch")[0]
    out = hdr
    out += f"; @launch grid=(256,1,1) block=(512,1,1) lds={LDS_BYTES}\n"
    out += '.amdgcn_target "amdgcn-amd-amdhsa--gfx950"\n.text\n'
    a = Asm()
    k = NAME + "_kernel"
    a.raw(f".globl {k}\n.p2align 8\n.type {k},@function")
    a.label(k)
    gen_p1(a)
    a.label("P2_ATT")
    gen_att(a)
    a.label("P2_FFN")
    gen_ffn(a)
    for L, lines, D in a.tail:
        a.label(L)
        for l in lines: a(l)
        a(f"s_branch {D}")
    a.label("L_END")
    a("s_endpgm")
    out += a.text()
    out += '.section .rodata,"a"\n.p2align 6\n' + kdesc(k, 256)
    return out

if __name__ == "__main__":
    path = sys.argv[1] if len(sys.argv) > 1 and not sys.argv[1].startswith("--") else "cdna_kernels/" + NAME + ".s"
    open(path, "w").write(build())
```

```python
from g7 import *

def cnt_arrive(a, vaddr, vtmp, inc="1", off=0):
    a(f"v_mov_b32 v{vtmp}, {inc}")
    a("s_mov_b64 exec, 1")
    a(f"ds_add_u32 v{vaddr}, v{vtmp}" + (f" offset:{off}" if off else ""))
    a("s_mov_b64 exec, -1")
def cnt_wait(a, vaddr, vtmp, tgt, sleep=0, off=0):
    L, D = a.uid("CW"), a.uid("CWD")
    a(f"s_mov_b32 s{sSPIN}, {SPIN * 16}")
    a.label(L)
    a(f"ds_read_b32 v{vtmp}, v{vaddr}" + (f" offset:{off}" if off else ""))
    a("s_waitcnt lgkmcnt(0)")
    a(f"v_readfirstlane_b32 s{sT0}, v{vtmp}")
    a(f"s_and_b32 s{sT2}, s{sT0}, 0xffff")
    a(f"s_cmp_ge_u32 s{sT2}, {tgt}")
    a(f"s_cbranch_scc1 {D}")
    if sleep: a(f"s_sleep {sleep}")
    spin_tail(a, L)
    a.label(D)

def final_stage(a, base_item, X, R, vA, vG, load_x, do_rest):
    if load_x and load_x != "load":
        if base_item: a(f"v_add_u32 v{vA}, {base_item}, v0")
        else: a(f"v_mov_b32 v{vA}, v0")
        a(f"v_mul_u32_u24 v{vG}, 3277, v{vA}")
        a(f"v_lshrrev_b32 v{vG}, 16, v{vG}")
        a(f"v_lshlrev_b32 v{vA}, 4, v{vA}")
        a(f"v_lshlrev_b32 v{X}, 4, v{vG}")
        a(f"v_mul_u32_u24 v{vG}, 960, v{vG}")
        a(f"v_add_u32 v{vG}, v{vG}, v{vA}")
        a(f"v_lshl_add_u32 v{vA}, v{vA}, 1, v{X}")
    if load_x and load_x != "addr":
        a(f"buffer_load_dwordx4 {vr(X, 4)}, v{vG}, {sr(SX)}, s{sOB} offen")
    if do_rest == 1:
        for s in range(4):
            a(f"ds_read_b128 {vr(R+8*s, 4)}, v{vA} offset:{s*RING_ST}")
            a(f"ds_read_b128 {vr(R+8*s+4, 4)}, v{vA} offset:{s*RING_ST+16}")
    if do_rest == 2:
        for j in range(4):
            a(f"v_lshlrev_b32 v{R+32+2*j}, 16, v{X+j}")
            a(f"v_and_b32 v{R+33+2*j}, 0xffff0000, v{X+j}")
    if do_rest >= 3:
        for s in range(4):
            a(f"s_waitcnt lgkmcnt({6-2*s + (do_rest-3)})")
            for j in range(4):
                a(f"v_pk_add_f32 {vr(R+32+2*j, 2)}, {vr(R+32+2*j, 2)}, {vr(R+8*s+2*j, 2)}")
        for j in range(4): a(f"v_cvt_pk_bf16_f32 v{X+j}, v{R+32+2*j}, v{R+33+2*j}")
        a(f"buffer_store_dwordx4 {vr(X, 4)}, v{vG}, {sr(SB)}, s{sOB} offen")

def gen_att(a):
    vL, vKM, vQT, vIDX, vT0, vT1, vCNT = 1, 2, 3, 4, 5, 6, 7
    vP = 8
    vT2, vT3 = 12, 13
    vFL = 23
    S, O, QM, QT, KM, KT, V0, V1 = aS, aO, aQM, aQT, aKM, aKT, aV0, aV1
    def qk1(s, kb, q): a(f"v_mfma_f32_32x32x16_bf16 {vr(S[s], 16)}, {vr(KM[kb], 4)}, {vr(QM(q), 4)}, 0")
    def qk2(s, kb, q): a(f"v_mfma_f32_32x32x8_bf16 {vr(S[s], 16)}, {vr(KT[kb], 2)}, {vr(QT(q), 2)}, {vr(S[s], 16)}")
    def pv(u, s, vb, q): a(f"v_smfmac_f32_32x32x32_bf16 {vr(O(q), 16)}, {vr((V0, V1)[u][vb], 4)}, {vr(S[s]+8*u, 8)}, v{vIDX}")
    def ldq(i):
        a(f"buffer_load_dwordx4 {vr(QM(i), 4)}, v{vKM}, {sr(SWS)}, s{sPm+i//2} offen" + (" offset:1024" if i & 1 else "") + " sc1")
        a(f"buffer_load_dwordx2 {vr(QT(i), 2)}, v{vQT}, {sr(SWS)}, s{sPt+i//2} offen" + (" offset:512" if i & 1 else "") + " sc1")
    def qregs(lo, hi): return list(range(QM(lo), QM(hi))) + list(range(QT(lo), QT(hi)))
    def rowmax(s, dst):
        b = S[s]
        a(f"v_max3_f32 v{dst}, v{b}, v{b+1}, v{b+2}")
        for j in range(3, 15, 2): a(f"v_max3_f32 v{dst}, v{dst}, v{b+j}, v{b+j+1}")
        a(f"v_max_f32 v{dst}, v{dst}, v{b+15}")
    def pair_addr(mul, base, vlane, shift):
        for j in range(4):
            a(f"s_add_u32 s{sT0}, s{sQ}, {j}")
            a(f"s_and_b32 s{sT0}, s{sT0}, 3")
            a(f"s_mul_i32 s{sT0}, s{sT0}, {mul}")
            a(f"s_add_u32 s{sT0}, s{sT0}, {base}")
            a(f"v_lshl_add_u32 v{vP+j}, v{vlane}, {shift}, s{sT0}")

    a("s_setprio 3")
    a(f"s_mov_b32 s{sMODE}, 0")
    a(f"v_lshlrev_b32 v{vKM}, 4, v{vL}")
    a(f"v_mov_b32 v{vT0}, {OOB:#x}")
    a(f"v_cmp_gt_u32 vcc, 32, v{vL}")
    a(f"v_mov_b32 v{vIDX}, 0xdddddddd")
    a(f"v_mov_b32 v{vCNT}, {L_CNT}")
    a(f"v_cndmask_b32 v{vQT}, v{vT0}, v{vKM}, vcc")
    a.stamp(6)
    a(f"s_cmp_lg_u32 s{sKOK}, 0")
    a("s_cbranch_scc1 A_HAVEKV")
    a("s_mov_b32 exec_hi, 0")
    poll(a, vFL, vT0, "0")
    a("s_mov_b32 exec_hi, -1")
    a.label("A_RELOAD")
    kv_first(a, vKM)
    a.label("A_HAVEKV")
    a(f"v_and_b32 v{vT1}, 31, v{vL}")
    pair_addr(512, L_MREC, vT1, 3)
    a(f"v_and_b32 v{vT1}, 16, v{vL}")
    a.stamp(7)
    poll(a, vT1, vT0, f"s{sFQ}", optv("qsleep", 1))
    check_fast(a, vT1, vT0)
    a.stamp(8)
    ldq(0); ldq(1)
    a(f"s_cmp_lg_u32 s{sMODE}, 0")
    a("s_cbranch_scc1 A_TRUEMAX")
    a.c("stand-in for the row max: max over this wave's first 32 keys; checked after the loop, exact-max rerun if unsafe")
    ldq(2); ldq(3)
    a("s_waitcnt vmcnt(4)")
    qk1(0, 0, 0); qk2(0, 0, 0); qk1(1, 0, 1); qk2(1, 0, 1)
    for i in range(4, 8): ldq(i)
    a("s_nop 1")
    rowmax(0, S[2]); rowmax(1, S[2] + 1)
    a(f"v_mov_b32 v{vT0}, v{S[2]}")
    a(f"v_mov_b32 v{vT1}, v{S[2]+1}")
    a("s_nop 0")
    a(f"v_permlane32_swap_b32 v{vT0}, v{S[2]}")
    a(f"v_permlane32_swap_b32 v{vT1}, v{S[2]+1}")
    a(f"v_max_f32 v{S[2]}, v{S[2]}, v{vT0}")
    a(f"v_max_f32 v{S[2]+1}, v{S[2]+1}, v{vT1}")
    a("s_mov_b32 exec_lo, 0")
    for e in range(2): a(f"v_cvt_pk_bf16_f32 v{QT(e)}, -v{S[2]+e}, 0")
    a.label("A_HAVEMAX")
    for e in range(2): a(f"ds_write_b64 v{vP}, {vr(QT(e), 2)} offset:{256*e}")
    a("s_mov_b32 exec_lo, -1")
    cnt_arrive(a, vCNT, vT0)
    a(f"s_add_u32 s{sTGT}, s{sTGT}, 4")
    a(f"s_mov_b32 s{sCNT}, 8")
    a.stamp(9)
    a.stamp(10); a.stamp(NSTAMP + 2, True)
    qk1(0, 0, 0); qk2(0, 0, 0)
    a("s_cmp_lg_u32 0, 0")
    a("s_nop 10")
    a.raw(".p2align 6")
    a.label("A_LOOP")
    PAT0 = (3, 3, 4, 3, 3)
    PAT1 = tuple(int(ch) for ch in sys.argv[sys.argv.index("--pat1") + 1]) if opt("pat1") else PAT0
    PMASK = optv("pmask", 0)
    def slot(sc, nxt, prv, holes, PAT=PAT0):
        e = [0]
        def exps(n):
            for _ in range(n):
                a(f"v_exp_f32 v{S[sc]+e[0]}, v{S[sc]+e[0]}"); e[0] += 1
        ms = [lambda: qk1((sc + 1) & 3, *nxt), lambda: pv(0, (sc - 1) & 3, *prv), lambda: qk2((sc + 1) & 3, *nxt), lambda: pv(1, (sc - 1) & 3, *prv)]
        for j in range(4):
            if nxt is not None or j & 1: ms[j]()
            if j in holes: holes[j]()
            exps(PAT[j])
        holes[4]()
        exps(PAT[4])
    for kb in range(2):
        for q in range(8):
            def hole():
                if q == 0:
                    if kb == 0:
                        a("s_cbranch_scc0 A_FIRST")
                        a.label("A_FIRSTD")
                    a("s_waitcnt vmcnt(2)"); ldv(a, 0, kb ^ 1)
                elif q == 1: ldv(a, 1, kb ^ 1)
                elif q == 2: a(f"s_add_u32 s{sKV}, s{sKV}, {KV_REC}")
                elif q == 3 and kb == 0: a(f"s_sub_u32 s{sCNT}, s{sCNT}, 1")
                elif q == 4 and kb == 0: a(f"s_cmp_eq_u32 s{sCNT}, 0")
                elif q == 4: a("s_cmp_eq_u32 0, 0")
                elif q == 5: a("s_waitcnt vmcnt(2)")
                elif q == 6: ldkm(a, kb, vKM)
                elif q == 7: ldkt(a, kb)
                else: a("s_nop 0")
            slot(q & 3, ((kb if q < 7 else kb ^ 1), (q + 1) & 7), ((kb if q > 0 else kb ^ 1), (q - 1) & 7), {4: hole}, PAT1 if (PMASK >> q) & 1 else PAT0)
        if kb == 0:
            a.lstamp(sCNT, 0)
            a("s_cbranch_scc1 A_LAST")
    a("s_branch A_LOOP")
    a.label("A_FIRST")
    cnt_wait(a, vCNT, vT0, f"s{sTGT}")
    a("s_waitcnt vmcnt(0)")
    a("s_mov_b32 exec_lo, 0")
    for i in range(2, 8): a(f"ds_read_b64 {vr(QT(i), 2)}, v{vP+i//2} offset:{256*(i&1)}")
    a("s_mov_b32 exec_lo, -1")
    a(f"v_and_b32 v{vT0}, 31, v{vL}")
    a(f"v_mul_u32_u24 v{vT0}, {8*36}, v{vT0}")
    a(f"v_sub_u32 v{vT0}, v{vKM}, v{vT0}")
    a(f"v_add_u32 v{vT0}, {(L_OP - 36*L_MREC) & 0xffffffff:#x}, v{vT0}")
    for j in range(4): a(f"v_mad_u32_u24 v{vP+j}, v{vP+j}, 36, v{vT0}")
    a("s_waitcnt lgkmcnt(0)")
    a.lstamp("8", 0)
    a("s_branch A_FIRSTD")
    a.label("A_LAST")
    def wr(i, j): a(f"ds_write_b128 v{vP+i//2}, {vr(O(i)+4*j, 4)} offset:{(i&1)*9216 + (i//2-1)*3072 + j*1024}")
    seq = [0, 2, 3, 4, 5, 6, 7, 1]
    for n in range(8):
        nxt = (1, seq[n + 1]) if n < 7 else None
        prv = (1, seq[n - 1]) if n > 0 else (0, 7)
        holes = {4: lambda: a("s_nop 0")}
        if n == 0: holes = {4: lambda: a("s_waitcnt vmcnt(2)")}
        if n >= 3:
            i = seq[n - 2]
            holes = {2: lambda: wr(i, 0), 3: lambda: wr(i, 1), 4: lambda: wr(i, 2)}
        slot(n & 3, nxt, prv, holes)
    a("s_nop 1")
    pv(0, 3, 1, 1); pv(1, 3, 1, 1)
    a.stamp(11); a.stamp(NSTAMP + 3, True)
    a("s_nop 1")
    for j in range(3): wr(7, j)
    cnt_arrive(a, vCNT, vT0)
    a(f"s_add_u32 s{sTGT}, s{sTGT}, 4")
    a(f"s_max_u32 s{sTGT}, s{sTGT}, 12")
    a(f"s_mov_b64 {sr(sBAD, 2)}, 0")
    a(f"s_mov_b32 s{sT1}, {f32bits(2.0**100):#x}")
    cnt_wait(a, vCNT, vT0, f"s{sTGT}")
    a.stamp(12)
    RB = [16, 180]
    for e in range(2):
        for s in range(3):
            for j in range(3):
                a(f"ds_read_b128 {vr(RB[e]+12*s+4*j, 4)}, v{vP} offset:{e*9216 + s*3072 + j*1024}")
    Z = 52
    for e in range(2):
        A = O(e); P = 128 + 8 * e
        for s in range(3):
            a(f"s_waitcnt lgkmcnt({min(15, 18 - 9*e - 3*s - 3)})")
            for j in range(6): a(f"v_pk_add_f32 {vr(A+2*j, 2)}, {vr(A+2*j, 2)}, {vr(RB[e]+12*s+2*j, 2)}")
        a(f"v_mov_b32 v{vT0}, v{A+8}")
        a(f"v_mov_b32 v{vT2}, v{A+8}")
        a(f"v_pk_mul_f32 {vr(Z, 2)}, {vr(A, 2)}, 0 op_sel_hi:[1,0]")
        a(f"v_pk_fma_f32 {vr(Z, 2)}, {vr(A+2, 2)}, 0, {vr(Z, 2)} op_sel_hi:[1,0,1]")
        a(f"v_permlane32_swap_b32 v{vT0}, v{vT2}")
        a(f"v_rcp_f32 v{vT3}, v{vT2}")
        a(f"v_cmp_nlt_f32 vcc, v{vT2}, s{sT1}")
        for j in range(2, 6): a(f"v_pk_fma_f32 {vr(Z, 2)}, {vr(A+2*j, 2)}, 0, {vr(Z, 2)} op_sel_hi:[1,0,1]")
        a(f"s_or_b64 {sr(sBAD, 2)}, {sr(sBAD, 2)}, vcc")
        for j in range(6): a(f"v_pk_mul_f32 {vr(A+2*j, 2)}, {vr(A+2*j, 2)}, {vr(vT2, 2)} op_sel:[0,1] op_sel_hi:[1,1]")
        a(f"v_cmp_u_f32 vcc, v{Z}, v{Z+1}")
        for j in range(6): a(f"v_cvt_pk_bf16_f32 v{P+j}, v{A+2*j}, v{A+2*j+1}")
        a(f"s_or_b64 {sr(sBAD, 2)}, {sr(sBAD, 2)}, vcc")
        a(f"s_cmp_lg_u32 s{sMODE}, 0")
        a(f"s_cselect_b64 {sr(sBAD, 2)}, 0, {sr(sBAD, 2)}")
        for j in range(6): a(f"v_min_u32 v{P+j}, -2, v{P+j}")
        L = a.uid("NOST")
        a(f"s_cmp_lg_u64 {sr(sBAD, 2)}, 0")
        a(f"s_cbranch_scc1 {L}")
        stores(a, [f"buffer_store_dwordx4 {vr(P, 4)}, v{vKM}, {sr(SWS)}, s{sOm} offen offset:{1024*e}",
                   f"buffer_store_dwordx2 {vr(P+4, 2)}, v{vQT}, {sr(SWS)}, s{sOt} offen offset:{512*e}"])
        a.label(L)
    a(f"s_cmp_lg_u64 {sr(sBAD, 2)}, 0")
    a(f"s_cselect_b32 s{sBAD}, 0x10001, 1")
    cnt_arrive(a, vCNT, vT0, f"s{sBAD}")
    a.stamp(13)
    a("s_setprio 0")
    a(f"s_add_u32 s{sTGT}, s{sTGT}, 4")
    srd(a, SX, pX, 2048 * 1280)
    cnt_wait(a, vCNT, vT0, f"s{sTGT}")
    a(f"s_lshr_b32 s{sT0}, s{sT0}, 16")
    a(f"s_cmp_lg_u32 s{sMODE}, 0")
    a(f"s_cselect_b32 s{sT0}, 0, s{sT0}")
    a(f"s_cmp_lg_u32 s{sT0}, 0")
    a("s_cbranch_scc1 A_RESTART")
    a.stamp(14)
    if PROFILE and opt("iter"):
        a.ldump(0)
        a(f"s_lshl_b32 s100, s{sW}, 6")
        a("v_add_u32 v0, s100, v1")
    final_stage(a, 0, 16, 32, 20, 21, True, 0)
    a(f"s_cmp_ge_u32 s{sW}, 6")
    a("s_cbranch_scc1 A_F1")
    final_stage(a, 256, 24, 80, 22, 23, True, 0)
    a("s_waitcnt vmcnt(0)")
    final_stage(a, 0, 16, 32, 20, 21, False, 2)
    final_stage(a, 256, 24, 80, 22, 23, False, 2)
    a.stamp(15)
    a("s_barrier")
    a.stamp(16)
    final_stage(a, 0, 16, 32, 20, 21, False, 1)
    final_stage(a, 256, 24, 80, 22, 23, False, 1)
    final_stage(a, 0, 16, 32, 20, 21, False, 11)
    final_stage(a, 256, 24, 80, 22, 23, False, 3)
    a.end()
    a.label("A_F1")
    a("s_waitcnt vmcnt(0)")
    final_stage(a, 0, 16, 32, 20, 21, False, 2)
    a.stamp(15)
    a("s_barrier")
    a.stamp(16)
    final_stage(a, 0, 16, 32, 20, 21, False, 1)
    final_stage(a, 0, 16, 32, 20, 21, False, 3)
    a.end()
    a.label("A_RESTART")
    a(f"s_mov_b32 s{sMODE}, 1")
    a("s_waitcnt vmcnt(0)")
    att_zero(a)
    a("s_branch A_RELOAD")
    a.label("A_TRUEMAX")
    for i in range(2, 8): ldq(i)
    M = S[2]
    for i in range(8): a(f"v_mov_b32 v{M+i}, 0xff800000")
    a(f"s_sub_u32 s{sT1}, s{sKV}, {KV_REC}")
    a(f"s_mov_b32 s{sCNT}, 16")
    TK, TT = S[1], S[1] + 4
    a.label("A_TM_LOOP")
    a(f"buffer_load_dwordx4 {vr(TK, 4)}, v{vKM}, {sr(SWS)}, s{sT1} offen sc1")
    a(f"buffer_load_dwordx2 {vr(TT, 2)}, v{avKT}, {sr(SWS)}, s{sT1} offen sc1")
    a("s_waitcnt vmcnt(0)")
    for i in range(8):
        a(f"v_mfma_f32_32x32x16_bf16 {vr(S[0], 16)}, {vr(TK, 4)}, {vr(QM(i), 4)}, 0")
        a(f"v_mfma_f32_32x32x8_bf16 {vr(S[0], 16)}, {vr(TT, 2)}, {vr(QT(i), 2)}, {vr(S[0], 16)}")
        a("s_nop 11")
        for j in range(0, 16, 2): a(f"v_max3_f32 v{M+i}, v{M+i}, v{S[0]+j}, v{S[0]+j+1}")
    a(f"s_add_u32 s{sT1}, s{sT1}, {KV_REC}")
    a(f"s_sub_u32 s{sCNT}, s{sCNT}, 1")
    a(f"s_cmp_lg_u32 s{sCNT}, 0")
    a("s_cbranch_scc1 A_TM_LOOP")
    for i in range(8):
        halfop(a, "v_max_f32", M + i, vT0)
        a(f"v_add_u32 v{vT1}, {L_OP - L_MREC}, v{vP+i//2}")
        a(f"ds_write_b32 v{vT1}, v{M+i} offset:{(i//2)*2048 + (i&1)*256}")
    cnt_arrive(a, vCNT, vT0)
    a(f"s_add_u32 s{sTGT}, s{sTGT}, 4")
    cnt_wait(a, vCNT, vT0, f"s{sTGT}")
    a(f"v_add_u32 v{vT1}, {L_OP - L_MREC}, v{vP}")
    for e in range(2):
        for s in range(1, 4): a(f"ds_read_b32 v{S[0]+4*e+s}, v{vT1} offset:{s*2048 + e*256}")
    a("s_waitcnt lgkmcnt(0)")
    for e in range(2):
        a(f"v_max3_f32 v{M+e}, v{M+e}, v{S[0]+4*e+1}, v{S[0]+4*e+2}")
        a(f"v_max_f32 v{M+e}, v{M+e}, v{S[0]+4*e+3}")
    a("s_mov_b32 exec_lo, 0")
    for e in range(2):
        a(f"v_sub_f32 v{M+e}, 0, v{M+e}")
        split3(a, M + e, vT0, vT1, QT(e), QT(e) + 1)
    a("s_branch A_HAVEMAX")

def gen_ffn(a):
    vL, vL16, vTR, vZ = 1, 2, 3, 7
    vD = 8
    vCNT, vT0, vT1 = 13, 14, 15
    F = lambda t: 16 + 16 * t
    WO = lambda k: 96 + 20 * k
    HB = lambda u: 216 + 4 * u
    SL = lambda j: j & 3
    def dma_piece(p, slot, vd):
        a(f"s_add_u32 m0, s{sM0}, {slot*5120 + p*1024}")
        a("s_nop 0")
        a(f"buffer_load_dwordx4 v{vd+p}, {sr(SA)}, s{sSO} offen lds")
    def trr(dst, slot, t):
        a(f"ds_read_b64_tr_b16 {vr(dst+4*t, 2)}, v{vTR} offset:{slot*5120 + 64*t}")
        a(f"ds_read_b64_tr_b16 {vr(dst+4*t+2, 2)}, v{vTR} offset:{slot*5120 + 64*t + 2560}")
    def hload(u):
        a(f"buffer_load_dwordx4 {vr(HB(u), 4)}, v{vL16}, {sr(SWS)}, s{sHO} offen sc1")
        a(f"s_add_u32 s{sHO}, s{sHO}, 1024")
    def wo_rows(row):
        a(f"s_mul_i32 s{sSO}, s{sQ}, {160*1280}")
        a(f"s_add_u32 s{sSO}, s{sSO}, s{sCOL}")
        if row: a(f"s_add_u32 s{sSO}, s{sSO}, {row*1280}")
    def mf(t, w, h): a(f"v_mfma_f32_32x32x16_bf16 {vr(F(t), 16)}, {vr(w+4*t, 4)}, {vr(h, 4)}, {vr(F(t), 16)}")
    a(f"v_lshlrev_b32 v{vL16}, 4, v{vL}")
    a(f"s_mul_i32 s{sM0}, s{sQ}, {RING_ST}")
    for p in range(5): a(f"v_mov_b32 v{vD+p}, v{vWD+p}")
    a(f"v_lshrrev_b32 v{vT0}, 5, v{vL}")
    a(f"v_bfe_u32 v{vT1}, v{vL}, 2, 2")
    a(f"v_lshl_add_u32 v{vT0}, v{vT0}, 2, v{vT1}")
    a(f"v_mul_u32_u24 v{vTR}, 320, v{vT0}")
    a(f"v_bfe_u32 v{vT0}, v{vL}, 4, 1")
    a(f"v_lshl_add_u32 v{vTR}, v{vT0}, 5, v{vTR}")
    a(f"v_and_b32 v{vT0}, 3, v{vL}")
    a(f"v_lshl_add_u32 v{vTR}, v{vT0}, 3, v{vTR}")
    a(f"s_mul_i32 s{sT0}, s{sQ}, 5120")
    a(f"s_add_u32 s{sT0}, s{sT0}, {WO_STAGE[0]}")
    a(f"v_add_u32 v{vT1}, s{sT0}, v{vTR}")
    a("s_waitcnt vmcnt(0)")
    for i in range(3):
        off = WO_STAGE[i] - WO_STAGE[0]
        for t in range(5):
            a(f"ds_read_b64_tr_b16 {vr(WO(3+i)+4*t, 2)}, v{vT1} offset:{off + 64*t}")
            a(f"ds_read_b64_tr_b16 {vr(WO(3+i)+4*t+2, 2)}, v{vT1} offset:{off + 64*t + 2560}")
    a(f"v_add_u32 v{vTR}, s{sM0}, v{vTR}")
    a(f"v_mov_b32 v{vCNT}, {L_CNT}")
    a(f"v_mov_b32 v4, s{sNON}")
    srd(a, SX, pX, 2048 * 1280)
    srd(a, SB, pOUT, 2048 * 1280)
    srd(a, SA, pW2, 1728 * 1280)
    a(f"s_mul_i32 s{sCOL}, s{sHG}, 320")
    a(f"s_mul_i32 s{sSO}, s{sQ}, {27*16*1280}")
    a(f"s_add_u32 s{sSO}, s{sSO}, s{sCOL}")
    a(f"s_mov_b32 s{sSTEP}, {16*1280}")
    a("v_mov_b64 v[228:229], 0")
    a("s_nop 1")
    for t in range(5): zero16(a, F(t), 228)
    for j in range(4): a(f"v_mov_b32 v{224+j}, -1")
    a(f"s_mul_i32 s{sT0}, s{sQ}, {27*26}")
    a(f"s_lshr_b32 s{sT0}, s{sT0}, 8")
    a(f"s_add_u32 s{sT0}, s{sT0}, 4")
    a(f"v_add_u32 v5, s{sT0}, v{vT0}")
    a(f"v_min_u32 v5, 14, v5")
    a(f"s_lshr_b32 s{sT2}, s{sT}, 2")
    a(f"s_lshl_b32 s{sT2}, s{sT2}, 11")
    a(f"s_and_b32 s{sT0}, s{sT}, 3")
    a(f"s_lshl_b32 s{sT0}, s{sT0}, 2")
    a(f"s_add_u32 s{sT2}, s{sT2}, s{sT0}")
    a(f"s_add_u32 s{sT2}, s{sT2}, {WS_F1 + 32}")
    a(f"v_lshl_add_u32 v5, v5, 7, s{sT2}")
    a(f"v_and_b32 v{vT1}, 16, v{vL}")
    a(f"v_add_u32 v5, v5, v{vT1}")
    a(f"s_lshl_b32 s{sFC}, s{sT}, 2")
    a(f"s_add_u32 s{sFC}, s{sFC}, s{sQ}")
    a(f"s_lshl_b32 s{sT2}, s{sFC}, 7")
    a(f"s_add_u32 s{sT2}, s{sT2}, {WS_F2 + 16}")
    a(f"v_lshl_add_u32 v6, v{vT0}, 2, s{sT2}")
    a(f"s_mul_i32 s{sHO}, s{sQ}, {27*1024}")
    a(f"s_add_u32 s{sHO}, s{sHO}, s{sG}")
    a(f"s_add_u32 s{sHO}, s{sHO}, {20*2048}")
    vD2 = 232
    for p in range(5):
        a(f"v_add_u32 v{vT0}, {64*p}, v{vL}")
        a(f"v_mul_u32_u24 v{vT0}, 3277, v{vT0}")
        a(f"v_lshrrev_b32 v{vT0}, 18, v{vT0}")
        a(f"v_mul_u32_u24 v{vT0}, {16*1280}, v{vT0}")
        a(f"v_add_u32 v{vD2+p}, v{vD+p}, v{vT0}")
    final_stage(a, 0, vT0, 0, 238, 239, "addr", 0)
    a(f"v_and_b32 v{vT0}, 31, v{vL}")
    a(f"v_mul_u32_u24 v{vT0}, 656, v{vT0}")
    a(f"v_lshrrev_b32 v0, 5, v{vL}")
    a(f"v_lshl_add_u32 v0, v0, 4, v{vT0}")
    a(f"v_add_u32 v0, s{sM0}, v0")
    a.stamp(6)
    def fill(js):
        for j in js:
            for p in range(5): dma_piece(p, SL(j), vD)
            a(f"s_add_u32 s{sSO}, s{sSO}, s{sSTEP}")
    NPRE = optv("npre", 0)
    fill(range(NPRE))
    cnt_wait(a, vCNT, vT0, 4, 1)
    a.stamp(7)
    fill(range(NPRE, 4))
    check_fast(a, vT1, vT0)
    a.stamp(8)
    a(f"s_lshl_b32 s{sT1}, s{sT}, 2")
    a(f"s_add_u32 s{sT1}, s{sT1}, s{sHG}")
    a(f"s_mul_i32 s{sT1}, s{sT1}, 10240")
    a(f"s_mul_i32 s{sT0}, s{sQ}, 3072")
    a(f"s_min_u32 s{sT0}, s{sT0}, 7168")
    a(f"s_add_u32 s{sT0}, s{sT0}, s{sT1}")
    a(f"s_add_u32 s{sT0}, s{sT0}, {WS_O}")
    stores(a, [f"buffer_store_dwordx4 v[224:227], v{vL16}, {sr(SWS)}, s{sT0} offen offset:{1024*e}" for e in range(3)])
    poll(a, 5, vT1, "0", 4)
    cnt_arrive(a, vCNT, vT0)
    a(f"s_lshl_b32 s{sT0}, s{sQ}, 2")
    a(f"s_add_u32 s{sT0}, s{sT0}, s{sF2}")
    a("s_mov_b64 exec, 1")
    stores(a, [f"buffer_store_dword v4, v{vZ}, {sr(SWS)}, s{sT0} offen offset:16"])
    a("s_mov_b64 exec, -1")
    a.stamp(9)
    a("v_mov_b32 v4, v238")
    a("v_mov_b32 v7, v239")
    for u in range(4): hload(u)
    for t in range(5): trr(WO(0), SL(0), t)
    a(f"s_mov_b32 s{sC}, 0")
    a("s_waitcnt vmcnt(0)")
    a.stamp(10); a.stamp(NSTAMP + 2, True)
    a.raw(".p2align 3")
    a.label("F_LOOP")
    for u in range(4):
        if u == 3:
            a(f"s_cmp_eq_u32 s{sC}, 6")
            a("s_cbranch_scc1 F_DONE")
            a(f"s_cmp_lg_u32 s{sC}, 5")
            a("s_cbranch_scc1 F_NS")
            srd(a, SA, pWO, 640 * 1280)
            wo_rows(0)
            a(f"s_mov_b32 s{sSTEP}, {20*1280}")
            a(f"s_mov_b32 s{sHO}, 0x40000000")
            a(f"buffer_load_dword v5, v6, {sr(SWS)}, 0 offen sc1")
            a.label("F_NS")
        a("s_waitcnt vmcnt(13) lgkmcnt(0)")
        for t in range(5):
            mf(t, WO(0), HB(u))
            trr(WO(0), SL(u + 1), t)
            dma_piece(t, SL(u), vD)
        a(f"s_add_u32 s{sSO}, s{sSO}, s{sSTEP}")
        hload(u)
    if opt("wb"):
        L = a.uid("WB")
        a(f"s_lshr_b32 s{sT0}, s2, 3")
        a(f"s_and_b32 s{sT0}, s{sT0}, {optv('wbmask', 31)}")
        a(f"s_or_b32 s{sT0}, s{sT0}, s{sW}")
        a(f"s_lshl_b32 s{sT0}, s{sT0}, 4")
        a(f"s_or_b32 s{sT0}, s{sT0}, s{sC}")
        a(f"s_cmp_lg_u32 s{sT0}, {optv('wb', 2)}")
        a(f"s_cbranch_scc1 {L}")
        a("buffer_wbl2 sc1")
        a.label(L)
    a(f"s_add_u32 s{sC}, s{sC}, 1")
    a("s_branch F_LOOP")
    a.label("F_DONE")
    a.stamp(11); a.stamp(NSTAMP + 3, True)
    a("s_waitcnt vmcnt(13) lgkmcnt(0)")
    for t in range(5):
        trr(WO(1), SL(28), t)
        dma_piece(t, SL(27), vD)
    wo_rows(16)
    a("s_waitcnt vmcnt(12) lgkmcnt(0)")
    for t in range(5):
        trr(WO(2), SL(29), t)
        dma_piece(t, SL(28), vD2)
    a(f"s_add_u32 s{sSO}, s{sSO}, {80*1280}")
    a("s_waitcnt lgkmcnt(0)")
    for t in range(5): dma_piece(t, SL(29), vD2)
    final_stage(a, 0, 8, 0, 4, 7, "load", 0)
    a(f"v_cmp_ne_u32 vcc, s{sNON}, v5")
    a("s_cbranch_vccz F_BOK")
    poll(a, 6, vT1, "0", 4)
    a.label("F_BOK")
    a(f"s_mul_i32 s{sHO}, s{sFC}, 10240")
    a(f"s_add_u32 s{sHO}, s{sHO}, {WS_O}")
    a(f"s_add_u32 s{sSO}, s{sHO}, 4096")
    a(f"s_add_u32 s{sT1}, s{sHO}, 8192")
    a.stamp(12)
    cnt_wait(a, vCNT, vT0, 16, 2)
    a.stamp(13)
    order = [0, 1, 2, 5, 6, 7, 3, 4, 8, 9]
    a(f"s_mov_b32 s{sSPIN}, {SPIN}")
    a.label("F_O")
    for k in order:
        so = (sHO, sSO, sT1)[k // 4]
        a(f"buffer_load_dwordx4 {vr(HB(k), 4)}, v{vL16}, {sr(SWS)}, s{so} offen offset:{(k%4)*1024} sc1")
    for n, k in enumerate(order):
        a(f"s_waitcnt vmcnt({9-n})")
        if n == 0:
            a(f"v_max3_u32 v{vT0}, v{HB(k)}, v{HB(k)+1}, v{HB(k)+2}")
            a(f"v_max_u32 v{vT0}, v{vT0}, v{HB(k)+3}")
        else:
            a(f"v_max3_u32 v{vT0}, v{vT0}, v{HB(k)}, v{HB(k)+1}")
            a(f"v_max3_u32 v{vT0}, v{vT0}, v{HB(k)+2}, v{HB(k)+3}")
    a(f"v_cmp_eq_u32 vcc, -1, v{vT0}")
    a("s_cbranch_vccz F_OD")
    if optv("osleep", 2): a(f"s_sleep {optv('osleep', 2)}")
    spin_tail(a, "F_O")
    a.label("F_OD")
    a.stamp(14)
    for n in range(4):
        for t in range(5):
            mf(t, WO(n), HB(order[n]))
            trr(WO(n), SL(30 + n), t)
    def fwr(t, g): a(f"ds_write_b128 v0, {vr(F(t)+4*g, 4)} offset:{128*t + 32*g}")
    for t in range(5):
        for m, n in enumerate(range(4, 10)):
            if t == 0 and n == 6: a("s_waitcnt lgkmcnt(0)")
            mf(t, WO(n) if n < 6 else WO(n - 6), HB(order[n]))
            if t > 0:
                if m < 2: a("s_nop 4")
                else: fwr(t - 1, m - 2)
    final_stage(a, 0, 8, 176, 4, 7, False, 2)
    a("s_nop 3")
    a.stamp(15)
    for g in range(4): fwr(4, g)
    a("s_waitcnt lgkmcnt(0)")
    a("s_barrier")
    a.stamp(16)
    final_stage(a, 0, 8, 176, 4, 7, False, 1)
    final_stage(a, 0, 8, 176, 4, 7, False, 3)
    a.end()
```

```python
import sys, struct, math

NAME = "parallel_sum__grouped_kv_mqa__dense_activation_relu__prompt"
def opt(name): return ("--" + name) in sys.argv
def optv(name, d): return int(sys.argv[sys.argv.index("--" + name) + 1]) if opt(name) else d
G_TSTRIDE = 75 * 2048
WS_G = 0
WS_KV = 64 * G_TSTRIDE
KV_REC = 3072
WS_O = (WS_KV + 66 * KV_REC + 4095) // 4096 * 4096
WS_RP = WS_O + 64 * 40 * 1024
WS_CP = WS_RP + 64 * 5120
WS_F1 = WS_CP + 64 * 5120
WS_F2 = WS_F1 + 256 * 128
WS_XC = WS_F2 + 256 * 128
WS_PROF = WS_XC + 8 * 128
PROFILE = opt("prof")
NSTAMP = 18
WS_END = WS_PROF + (256 * 8 * 256 if PROFILE else 0)
OOB = 0x80000000
QSCALE = math.log2(math.e) / math.sqrt(20.0)
SPIN = 0x40000


def f32bits(x): return struct.unpack("<I", struct.pack("<f", x))[0]

class Asm:
    def __init__(self): self.lines = []; self.n = 0; self.tail = []
    def __call__(self, s): self.lines.append("    " + s)
    def label(self, s): self.lines.append(s + ":")
    def raw(self, s): self.lines.append(s)
    def c(self, s): self.lines.append("    ; " + s)
    def uid(self, p): self.n += 1; return f"{p}_{self.n}"
    def stamp(self, i, cyc=False):
        if PROFILE:
            self(f"s_memtime s[100:101]" if cyc else "s_memrealtime s[100:101]")
            self("s_waitcnt lgkmcnt(0)")
            self(f"s_mov_b32 s{64+i}, s100")
    def lstamp(self, slane, v=14):
        if PROFILE and opt("iter"):
            self("s_memrealtime s[100:101]")
            self("s_waitcnt lgkmcnt(0)")
            self(f"s_mov_b32 m0, {slane}" if isinstance(slane, str) else f"s_mov_b32 m0, s{slane}")
            self(f"v_writelane_b32 v{v}, s100, m0")
    def ldump(self, v=14):
        if PROFILE and opt("iter"):
            self(f"s_lshl_b32 s100, s2, 3")
            self(f"s_add_u32 s100, s100, s{sW}")
            self(f"s_lshl_b32 s100, s100, 8")
            self(f"s_add_u32 s100, s100, {WS_PROF+128}")
            self("v_lshlrev_b32 v15, 2, v1")
            self("s_mov_b64 exec, 0xffff")
            self(f"buffer_store_dword v{v}, v15, s[{SWS}:{SWS+3}], s100 offen")
            self("s_mov_b64 exec, -1")
            self("s_waitcnt vmcnt(0)")
    def end(self):
        if PROFILE:
            self("s_waitcnt vmcnt(0)")
            self.stamp(NSTAMP - 1)
            self(f"s_lshl_b32 s3, s2, 3")
            self(f"s_add_u32 s3, s3, s{sW}")
            self(f"s_lshl_b32 s3, s3, 8")
            self(f"s_add_u32 s3, s3, {WS_PROF}")
            self("s_mov_b64 exec, 1")
            self("v_mov_b32 v1, 0")
            for i in range(NSTAMP + 4):
                self(f"v_mov_b32 v2, s{64+i}")
                self(f"buffer_store_dword v2, v1, s[{SWS}:{SWS+3}], s3 offen offset:{4*i}")
        self("s_endpgm")
    def text(self): return "\n".join(self.lines) + "\n"

def vr(b, n=1): return f"v{b}" if n == 1 else f"v[{b}:{b+n-1}]"
def sr(b, n=4): return f"s{b}" if n == 1 else f"s[{b}:{b+n-1}]"
def srd(a, d, p, size):
    a(f"s_mov_b32 s{d}, s{p}")
    a(f"s_mov_b32 s{d+1}, s{p+1}")
    a(f"s_mov_b32 s{d+2}, {size}")
    a(f"s_mov_b32 s{d+3}, 0x00020000")
def csel(a, d, t, f):
    a(f"s_mov_b32 s{d}, {f}")
    a(f"s_cmov_b32 s{d}, {t}")
def split3(a, src, t0, t1, d0, d1):
    a(f"v_and_b32 v{t0}, 0xffff0000, v{src}")
    a(f"v_sub_f32 v{t1}, v{src}, v{t0}")
    a(f"v_lshrrev_b32 v{d0}, 16, v{src}")
    a(f"v_and_b32 v{t0}, 0xffff0000, v{t1}")
    a(f"v_or_b32 v{d0}, v{d0}, v{t0}")
    a(f"v_sub_f32 v{t1}, v{t1}, v{t0}")
    a(f"v_lshrrev_b32 v{d1}, 16, v{t1}")
def halfop(a, op, r, t):
    a(f"v_mov_b32 v{t}, v{r}")
    a("s_nop 1")
    a(f"v_permlane32_swap_b32 v{t}, v{r}")
    a(f"{op} v{r}, v{r}, v{t}")
def umax(a, dst, regs):
    regs = list(regs)
    a(f"v_max3_u32 v{dst}, v{regs[0]}, v{regs[1]}, v{regs[2]}")
    r = regs[3:]
    while len(r) >= 2:
        a(f"v_max3_u32 v{dst}, v{dst}, v{r[0]}, v{r[1]}"); r = r[2:]
    if r: a(f"v_max_u32 v{dst}, v{dst}, v{r[0]}")

SWS, SA, SB, SX, SDBG = 4, 8, 12, 16, 20
sSI = 3
sW, sNON = 24, 25
sRB, sCG, sTT = 26, 27, 28
sQ = sTT
sT0, sT1, sT2 = 29, 30, 31
pX, pWQ, pWK, pWV, pWO, pW1, pW2, pOUT, pDBG, pWS = 32, 34, 36, 38, 40, 44, 46, 48, 50, 52
sWST, sSO, sSTEP, sM0, sC, sDEL, sCC, sOUT, sFL, sQS = range(54, 64)
sT, sHG, sG, sOB = 86, 87, 92, 93
SW4 = 88
sF2, sPUBI, sT3, sFAST, sST, sSPIN = 94, 95, 96, 97, 98, 99
sXW, sLO = 53, 52
sRLX = 50
sWOR = 38
sPB = 51
sPm, sBAD, sPt = 34, 38, 42
sOm, sOt, sKV, sTGT = 40, 41, 46, 47
sMODE, sCNT, sKOK, sFQ = 8, 9, 10, 11
sCOL, sHO, sFC = 54, 59, 60

def spin_tail(a, L):
    a(f"s_sub_u32 s{sSPIN}, s{sSPIN}, 1")
    a(f"s_cbranch_scc0 {L}")

def poll(a, vaddr, vtmp, soff, sleep=1):
    L, D = a.uid("POLL"), a.uid("POLLED")
    a(f"s_mov_b32 s{sSPIN}, {SPIN}")
    a.label(L)
    a(f"buffer_load_dword v{vtmp}, v{vaddr}, {sr(SWS)}, {soff} offen sc1")
    a("s_waitcnt vmcnt(0)")
    a(f"v_cmp_ne_u32 vcc, s{sNON}, v{vtmp}")
    a(f"s_cbranch_vccz {D}")
    if sleep: a(f"s_sleep {sleep}")
    spin_tail(a, L)
    a.label(D)

def stores(a, lines):
    L, D = a.uid("SLOW"), a.uid("STD")
    a(f"s_cmp_eq_u32 s{sFAST}, 0")
    a(f"s_cbranch_scc1 {L}")
    for l in lines: a(l)
    a.label(D)
    a.tail.append((L, [l + (" sc1" if l.startswith("buffer_store") else "") for l in lines], D))

def check_fast(a, vaddr, vtmp):
    L = a.uid("CF")
    a(f"s_cmp_lg_u32 s{sFAST}, 0")
    a(f"s_cbranch_scc1 {L}")
    a(f"s_and_b32 s{sT0}, s2, 7")
    a(f"s_lshl_b32 s{sT0}, s{sT0}, 7")
    a(f"s_add_u32 s{sT0}, s{sT0}, {WS_XC}")
    a(f"v_and_b32 v{vaddr}, 31, v1")
    a(f"v_lshlrev_b32 v{vaddr}, 2, v{vaddr}")
    a(f"buffer_load_dword v{vtmp}, v{vaddr}, {sr(SWS)}, s{sT0} offen sc1")
    a("s_waitcnt vmcnt(0)")
    a(f"v_cmp_ne_u32 vcc, s{sXW}, v{vtmp}")
    a("s_cmp_eq_u64 vcc, 0")
    a(f"s_cselect_b32 s{sFAST}, {0 if opt('slow') else 1}, 0")
    a.label(L)

K1_SLOT = 36864
K1_XOFF = 20480
K1_CS = 151552
K1_ST = K1_CS + 2560
WO_STAGE = [83968, 110592, 131072]
L_VT = 104448
vWD = 240
RING_ST = 20992
L_OP = 4 * RING_ST
L_MREC = L_OP + 73728
L_CNT = L_MREC + 2048
LDS_BYTES = L_CNT + 64

aS = [16, 32, 48, 64]
aO = lambda i: 80 + 12 * i
aQM = lambda i: 180 + 4 * i
aQT = lambda i: 212 + 2 * i
aKM = [228, 242]; aKT = [232, 246]; aV0 = [234, 248]; aV1 = [238, 252]
avV, avKT = 14, 15
AP = 128

def ldkm(a, b, va): a(f"buffer_load_dwordx4 {vr(aKM[b], 4)}, v{va}, {sr(SWS)}, s{sKV} offen sc1")
def ldkt(a, b): a(f"buffer_load_dwordx2 {vr(aKT[b], 2)}, v{avKT}, {sr(SWS)}, s{sKV} offen sc1")
def ldv(a, u, b): a(f"buffer_load_dwordx4 {vr((aV0, aV1)[u][b], 4)}, v{avV}, {sr(SWS)}, s{sKV} offen" + (" offset:768" if u else "") + " sc1")
def kv_first(a, va):
    a(f"s_mul_i32 s{sKV}, s{sQ}, {16*KV_REC}")
    a(f"s_add_u32 s{sKV}, s{sKV}, {WS_KV}")
    ldkm(a, 0, va); ldkt(a, 0); ldv(a, 0, 0); ldv(a, 1, 0)
    a(f"s_add_u32 s{sKV}, s{sKV}, {KV_REC}")
    ldkm(a, 1, va); ldkt(a, 1)
def att_zero(a):
    for r in range(aO(0), aO(0) + 100): a(f"v_mov_b32 v{r}, 0")
    for r in range(aS[3], aS[3] + 16): a(f"v_mov_b32 v{r}, 0")
    for r in range(aV0[1], aV0[1] + 8): a(f"v_mov_b32 v{r}, 0")

def gen_p1(a):
    vL, vN, vH, vT0, vT1, vT2, vZ = 1, 2, 3, 4, 5, 6, 7
    vX, vD = 8, 16
    vNON, vROW, vFL, vFV = 21, 22, 23, 22
    vSA = 24
    vG16, vC4 = 26, 27
    FB = [28, 32]
    FA = [36, 48]
    PUB = 60
    a(f"s_cmp_ge_u32 s2, 256")
    a("s_cbranch_scc1 L_END")
    a("s_load_dwordx16 s[32:47], s[0:1], 0")
    a("s_load_dwordx4 s[48:51], s[0:1], 64")
    a("s_load_dwordx2 s[52:53], s[0:1], 80")
    a("s_memrealtime s[100:101]")
    a(f"v_lshrrev_b32 v{vT0}, 6, v0")
    a(f"v_and_b32 v{vL}, 63, v0")
    a(f"v_readfirstlane_b32 s{sW}, v{vT0}")
    rbits = optv("rbits", 1)
    cb = rbits - 1
    a(f"s_bfe_u32 s{sRB}, s2, {((3-cb) << 16) | cb:#x}")
    a(f"s_lshl_b32 s{sRB}, s{sRB}, {rbits}")
    a(f"s_bfe_u32 s{sT0}, s2, {(rbits << 16) | 3:#x}")
    a(f"s_add_u32 s{sRB}, s{sRB}, s{sT0}")
    a(f"s_and_b32 s{sCG}, s2, {(1 << cb) - 1}")
    a(f"s_lshl_b32 s{sCG}, s{sCG}, {5-rbits}")
    a(f"s_lshr_b32 s{sT0}, s2, {3+rbits}")
    a(f"s_add_u32 s{sCG}, s{sCG}, s{sT0}")
    a(f"s_and_b32 s{sTT}, s{sW}, 3")
    a(f"s_mul_i32 s{sST}, s{sRB}, 3")
    a(f"s_add_u32 s{sST}, s{sST}, s{sCG}")
    a(f"s_mul_i32 s{sT0}, s{sST}, 26")
    a(f"s_lshr_b32 s{sT0}, s{sT0}, 8")
    a(f"s_mul_i32 s{sT0}, s{sT0}, 10")
    a(f"s_sub_u32 s{sST}, s{sST}, s{sT0}")
    a(f"s_mul_i32 s{sCC}, s{sST}, 86")
    a(f"s_lshr_b32 s{sCC}, s{sCC}, 8")
    a(f"s_min_u32 s{sCC}, s{sCC}, 2")
    a(f"s_mul_i32 s{sCC}, s{sCC}, 3")
    a(f"s_sub_u32 s{sSI}, s{sST}, s{sCC}")
    a(f"s_lshl_b32 s{sT0}, s{sRB}, 2")
    a(f"s_add_u32 s{sT3}, s{sT0}, s{sTT}")
    a(f"s_cmp_lt_u32 s{sW}, 4")
    a("s_cbranch_scc1 P1_A")

    def piece(role, kv, p):
        if role == "A" and kv:
            a(f"s_add_u32 m0, s{sM0}, {4096*p}")
            a("s_nop 0")
            a(f"buffer_load_dwordx4 v{vD}, {sr(SA if p == 0 else SB)}, s{sSO} offen lds")
        else:
            a(f"s_add_u32 m0, s{sM0}, {1024*p}")
            a("s_nop 0")
            a(f"buffer_load_dwordx4 v{vD+p}, {sr(SX if role == 'B' else SA)}, s{sSO} offen lds")
    def first_chunks(role, kv):
        ndma = 4 if role == "B" else (2 if kv else 5)
        if PROFILE: a("s_mov_b32 s64, s100")
        a.stamp(1)
        for c in range(2):
            for p in range(ndma): piece(role, kv, p)
            a(f"s_add_u32 s{sSO}, s{sSO}, s{sSTEP}")
            a(f"s_add_u32 s{sM0}, s{sM0}, {K1_SLOT}")
            a("s_barrier")

    a(f"s_lshl_b32 s{sT0}, s{sT3}, 5")
    a(f"v_lshrrev_b32 v{vT0}, 3, v{vL}")
    a(f"v_add_u32 v{vT0}, s{sT0}, v{vT0}")
    a(f"v_mul_u32_u24 v{vT0}, 1280, v{vT0}")
    a(f"v_lshrrev_b32 v{vT1}, 4, v{vL}")
    a(f"v_and_b32 v{vT2}, 7, v{vL}")
    a(f"v_xor_b32 v{vT1}, v{vT1}, v{vT2}")
    a(f"v_lshl_add_u32 v{vD}, v{vT1}, 4, v{vT0}")
    a(f"v_xor_b32 v{vT1}, 4, v{vT1}")
    a(f"v_lshl_add_u32 v{vD+1}, v{vT1}, 4, v{vT0}")
    a(f"v_add_u32 v{vD+1}, {8*1280}, v{vD+1}")
    a(f"v_add_u32 v{vD+2}, {16*1280}, v{vD}")
    a(f"v_add_u32 v{vD+3}, {16*1280}, v{vD+1}")
    a(f"s_lshl_b32 s{sSO}, s{sCC}, 7")
    a(f"s_mov_b32 s{sSTEP}, 128")
    a(f"s_lshl_b32 s{sM0}, s{sTT}, 12")
    a(f"s_add_u32 s{sM0}, s{sM0}, {K1_XOFF}")
    a("s_waitcnt lgkmcnt(0)")
    srd(a, SX, pX, 2048 * 1280)
    first_chunks("B", False)
    a(f"s_cmp_eq_u32 s{sCG}, 15")
    a("s_cbranch_scc1 P1_KB")
    a("s_branch P1_GB")
    a.label("P1_A")
    a(f"s_cmp_eq_u32 s{sCG}, 15")
    a("s_cbranch_scc1 P1_KA0")
    a(f"s_sub_u32 s{sT0}, s{sCG}, 4")
    a(f"s_cmp_lt_u32 s{sCG}, 4")
    csel(a, sWST, 1280, 3456)
    a(f"s_cselect_b32 s{sT0}, s{sCG}, s{sT0}")
    a(f"s_mul_i32 s{sT0}, s{sT0}, 320")
    a(f"s_lshl_b32 s{sT1}, s{sCC}, 2")
    a(f"s_add_u32 s{sT1}, s{sT1}, s{sW}")
    a(f"s_lshl_b32 s{sT1}, s{sT1}, 4")
    a(f"s_mul_i32 s{sT1}, s{sT1}, s{sWST}")
    a(f"s_add_u32 s{sSO}, s{sT0}, s{sT1}")
    a(f"s_sub_u32 s{sT2}, s{sWST}, 320")
    for p in range(5):
        a(f"v_add_u32 v{vT0}, {64*p}, v{vL}")
        a(f"v_mul_u32_u24 v{vT1}, 3277, v{vT0}")
        a(f"v_lshrrev_b32 v{vT1}, 16, v{vT1}")
        a(f"v_lshlrev_b32 v{vT0}, 4, v{vT0}")
        a(f"v_mad_u32_u24 v{vD+p}, v{vT1}, s{sT2}, v{vT0}")
    a(f"s_lshl_b32 s{sSTEP}, s{sWST}, 6")
    a(f"s_mul_i32 s{sM0}, s{sW}, 5120")
    a(f"s_cmp_lt_u32 s{sCG}, 4")
    a("s_waitcnt lgkmcnt(0)")
    a(f"s_cselect_b32 s{SA}, s{pWQ}, s{pW1}")
    a(f"s_cselect_b32 s{SA+1}, s{pWQ+1}, s{pW1+1}")
    csel(a, SA + 2, 640 * 640 * 2, 640 * 1728 * 2)
    a(f"s_mov_b32 s{SA+3}, 0x00020000")
    first_chunks("A", False)

    def tr_addr(dst, tile):
        a(f"s_cmp_lt_u32 s{sCG}, 4")
        if tile == 4:
            a(f"s_cselect_b32 s{sT0}, 32, 0x100")
            a(f"s_cselect_b32 s{sT1}, 160, 32")
            a(f"s_cselect_b32 s{sT2}, 40, 8")
            a(f"v_mad_u32_u24 v{dst}, v{vC4}, s{sT2}, v{vROW}")
        else:
            a(f"s_cselect_b32 s{sT1}, 40, 32")
            if isinstance(tile, tuple):
                a(f"s_lshl_b32 s{sT0}, s{sT1}, 1")
                a(f"s_mul_i32 s{sT0}, s{sT0}, s{tile[1]}")
            else:
                a(f"s_mul_i32 s{sT0}, s{sT1}, {2*tile}")
            a(f"v_lshl_add_u32 v{dst}, v{vC4}, 3, v{vROW}")
        a(f"v_mad_u32_u24 v{dst}, v{vG16}, s{sT1}, v{dst}")
        a(f"v_add_u32 v{dst}, s{sT0}, v{dst}")

    def body(tag, role, kv):
        A_, B_ = role == "A", role == "B"
        nt = 1 if kv else (3 if A_ else 2)
        tiles = [0] if kv else ([0, 1, 2] if A_ else [3, 4])
        sstr, rstr = (1024, 40) if kv else (5120, 320)
        ndma = 4 if B_ else (2 if kv else 5)
        vTR = 12 if B_ else 112
        ACC, P, GAT = (64, AP, 176) if A_ else (180, 212, 228)
        ST, NM, CSR = (116, 118, 120) if A_ else ((48, 50, 56) if kv else (44, 46, 56))
        if kv: GAT = 160 if A_ else 28
        ONE = 126 if A_ else 24
        D0, D1, D2 = (P, P + 4, P + 8)
        nxt = "P2_FFN" if A_ else "P2_ATT"
        def stats_finish(SU, SQ, S):
            a(f"v_mul_f32 v{SU}, {f32bits(1.0/640):#x}, v{SU}")
            a(f"v_mul_f32 v{SQ}, {f32bits(1.0/640):#x}, v{SQ}")
            a(f"v_fma_f32 v{SQ}, -v{SU}, v{SU}, v{SQ}")
            a(f"v_max_f32 v{SQ}, 0, v{SQ}")
            a(f"v_cvt_pk_bf16_f32 v{S}, -v{SU}, -v{SU}")
            a(f"v_cvt_pk_bf16_f32 v{SQ}, v{SQ}, v{SQ}")
            a(f"v_and_b32 v{SQ}, 0xffff0000, v{SQ}")
            a(f"v_add_f32 v{SQ}, {f32bits(1e-5):#x}, v{SQ}")
            a(f"v_cvt_pk_bf16_f32 v{SQ}, v{SQ}, v{SQ}")
            a(f"v_and_b32 v{SQ}, 0xffff0000, v{SQ}")
            a(f"v_sqrt_f32 v{SQ}, v{SQ}")
            a(f"s_lshl_b32 s{sT0}, s{sTT}, 8")
            a(f"v_cvt_pk_bf16_f32 v{SQ}, v{SQ}, v{SQ}")
            a(f"v_and_b32 v{SQ}, 0xffff0000, v{SQ}")
            a(f"v_rcp_f32 v{SQ}, v{SQ}")
            a(f"s_add_u32 s{sT0}, s{sT0}, {K1_ST}")
            a(f"v_mul_f32 v{S+1}, s{sQS}, v{SQ}")
        def get_nonce():
            L, D = a.uid("NON"), a.uid("NOND")
            a(f"s_mov_b32 s{sSPIN}, {SPIN}")
            a.label(L)
            a(f"v_readfirstlane_b32 s{sNON}, v{vNON}")
            a(f"s_cmp_lg_u32 s{sNON}, 0")
            a(f"s_cbranch_scc1 {D}")
            a(f"buffer_load_dword v{vNON}, v{vZ}, {sr(SDBG)}, 0 offen sc1")
            a("s_waitcnt vmcnt(0)")
            spin_tail(a, L)
            a.label(D)
            a(f"s_getreg_b32 s{sXW}, hwreg(HW_REG_XCC_ID, 0, 4)")
            a(f"s_lshl_b32 s{sXW}, s{sXW}, 1")
            a(f"s_xor_b32 s{sXW}, s{sXW}, s{sNON}")
            if A_:
                L = a.uid("XW")
                a(f"s_cmp_lg_u32 s{sW}, 0")
                a(f"s_cbranch_scc1 {L}")
                a(f"s_and_b32 s{sT0}, s2, 7")
                a(f"s_lshl_b32 s{sT0}, s{sT0}, 5")
                a(f"s_lshr_b32 s{sT1}, s2, 3")
                a(f"s_add_u32 s{sT0}, s{sT0}, s{sT1}")
                a(f"s_lshl_b32 s{sT0}, s{sT0}, 2")
                a(f"s_add_u32 s{sT0}, s{sT0}, {WS_XC}")
                a(f"v_mov_b32 v{vT0}, s{sXW}")
                a("s_mov_b64 exec, 1")
                a(f"buffer_store_dword v{vT0}, v{vZ}, {sr(SWS)}, s{sT0} offen sc1")
                a("s_mov_b64 exec, -1")
                a.label(L)
        def m4(d, x, y):
            a(f"v_mfma_f32_4x4x4_16b_bf16 {vr(d, 4)}, {vr(x, 2)}, {vr(y, 2)}, {vr(d, 4)}")
        def diag(dst, d):
            a(f"v_cmp_eq_u32 vcc, 1, v{vC4}")
            a(f"v_cmp_eq_u32 s[100:101], 3, v{vC4}")
            a("s_nop 0")
            a(f"v_cndmask_b32 v{d}, v{d}, v{d+1}, vcc")
            a(f"v_cmp_lt_u32 vcc, 1, v{vC4}")
            a(f"v_cndmask_b32 v{d+2}, v{d+2}, v{d+3}, s[100:101]")
            a("s_nop 0")
            a(f"v_cndmask_b32 v{dst}, v{d}, v{d+2}, vcc")
        def gather():
            a(f"v_mul_u32_u24 v{vT0}, 2560, v{vH}")
            a(f"v_lshl_add_u32 v{vT0}, v{vN}, 4, v{vT0}")
            for j in range(5): a(f"buffer_load_dwordx4 {vr(GAT+4*j, 4)}, v{vT0}, {sr(SWS)}, s{sPB} offen offset:{512*j} sc1")
        def gather_check(again, ok):
            a(f"v_xor_b32 v{vT1}, s{sNON}, v{GAT+1}")
            for j in range(1, 10):
                a(f"v_bitop3_b32 v{vT1}, v{GAT+2*j+1}, s{sNON}, v{vT1} bitop3:0xbe")
            a(f"v_cmp_ne_u32 vcc, 0, v{vT1}")
            a(f"s_cbranch_vccz {ok}")
            a("s_sleep 2")
            spin_tail(a, again)
            a.label(ok)
        def gather_sum():
            for j in range(1, 5):
                a(f"v_add_f32 v{GAT}, v{GAT}, v{GAT+4*j}")
                a(f"v_add_f32 v{GAT+2}, v{GAT+2}, v{GAT+4*j+2}")
        def advance():
            a(f"s_mul_i32 s{sT0}, s{sSTEP}, -9")
            a(f"s_add_u32 s{sCC}, s{sCC}, 1")
            a(f"s_cmp_eq_u32 s{sCC}, 10")
            a(f"s_cselect_b32 s{sT0}, s{sT0}, s{sSTEP}")
            a(f"s_add_u32 s{sSO}, s{sSO}, s{sT0}")
            a(f"s_and_b32 s{sT0}, s{sC}, 3")
            csel(a, sT1, K1_SLOT, -3*K1_SLOT)
            a(f"s_add_u32 s{sM0}, s{sM0}, s{sT1}")
            a(f"s_cmp_eq_u32 s{sT0}, 3")
            csel(a, sDEL, -3*K1_SLOT, K1_SLOT)
            for s in range(4): a(f"v_add_u32 v{vX+s}, s{sDEL}, v{vX+s}")
            for i in range(nt): a(f"v_add_u32 v{vTR+i}, s{sDEL}, v{vTR+i}")
        def stream_off():
            if B_: a(f"s_mov_b32 s{SX+2}, 0")
            else:
                a(f"s_mov_b32 s{SA+2}, 0")
                if kv: a(f"s_mov_b32 s{SB+2}, 0")
        def third():
            for p in range(ndma): piece(role, kv, p)
            a(f"s_add_u32 s{sSO}, s{sSO}, s{sSTEP}")
            a(f"s_add_u32 s{sM0}, s{sM0}, {K1_SLOT}")
            a(f"s_add_u32 s{sCC}, s{sCC}, 3")
        D2 = optv("d2", 2)
        if D2 == 0 or kv: third()
        srd(a, SWS, pWS, WS_END)
        srd(a, SDBG, pDBG, 256)
        a(f"v_mov_b32 v{vZ}, 0")
        if A_ and not kv:
            L = a.uid("NONCE")
            a(f"s_or_b32 s{sT0}, s2, s{sW}")
            a(f"s_cbranch_scc1 {L}")
            if PROFILE: a("s_or_b32 s100, s65, 1")
            else: a("s_or_b32 s100, s100, 1")
            a(f"v_mov_b32 v{vT0}, s100")
            a(f"buffer_store_dword v{vT0}, v{vZ}, {sr(SDBG)}, 0 offen sc1")
            a.label(L)
        TLB = opt("tlb")
        if B_ and TLB and not kv:
            a(f"v_lshlrev_b32 v{vT0}, 21, v{vL}")
            a("s_mov_b64 exec, 0x7f")
            a(f"buffer_load_dword v{vNON}, v{vT0}, {sr(SWS)}, 0 offen")
            a("s_mov_b64 exec, -1")
        a(f"s_and_b32 s{sT}, s2, 7")
        a(f"s_lshl_b32 s{sT}, s{sT}, 3")
        a(f"s_lshr_b32 s{sT0}, s2, 5")
        a(f"s_add_u32 s{sT}, s{sT}, s{sT0}")
        a(f"s_bfe_u32 s{sHG}, s2, 0x20003")
        a(f"s_mul_i32 s{sG}, s{sT}, {G_TSTRIDE}")
        if kv and A_:
            srd(a, SW4, pWO, 640 * 1280)
            a(f"v_lshlrev_b32 v{vT0}, 7, v{vL}")
            a(f"s_mul_i32 s{sT1}, s{sT3}, {100*128}")
            a(f"buffer_load_dword v230, v{vT0}, {sr(SW4)}, s{sT1} offen")
            a(f"s_add_u32 s{sT1}, s{sT1}, {36*128}")
            a(f"buffer_load_dword v230, v{vT0}, {sr(SW4)}, s{sT1} offen")
        a(f"s_mul_i32 s{sOB}, s{sT}, {32*1280}")
        a(f"s_mul_i32 s{sT0}, s{sHG}, 320")
        a(f"s_add_u32 s{sOB}, s{sOB}, s{sT0}")
        if A_:
            a(f"s_mul_i32 s{sWOR}, s{sW}, {160*1280}")
            a(f"s_add_u32 s{sWOR}, s{sWOR}, s{sT0}")
            a(f"s_add_u32 s{sWOR}, s{sWOR}, {100*1280}")
            for p in range(5):
                a(f"v_add_u32 v{vT0}, {64*p}, v{vL}")
                a(f"v_mul_u32_u24 v{vT1}, 3277, v{vT0}")
                a(f"v_lshrrev_b32 v{vT1}, 16, v{vT1}")
                a(f"v_lshlrev_b32 v{vT0}, 4, v{vT0}")
                a(f"v_mul_u32_u24 v{vWD+p}, 960, v{vT1}")
                a(f"v_add_u32 v{vWD+p}, v{vWD+p}, v{vT0}")
        a(f"s_lshl_b32 s{sF2}, s{sT}, 2")
        a(f"s_add_u32 s{sF2}, s{sF2}, s{sHG}")
        a(f"s_lshl_b32 s{sF2}, s{sF2}, 7")
        a(f"s_add_u32 s{sF2}, s{sF2}, {WS_F2}")
        a(f"v_mov_b32 v{ONE}, 0x3f803f80")
        a(f"v_mov_b32 v{ONE+1}, 0x3f803f80")
        for j in range(16): a(f"v_mov_b32 v{P+j}, 0")
        a(f"s_max_u32 s{sPUBI}, s{sSI}, 1")
        a(f"s_lshl_b32 s{sRLX}, 6, s{sPUBI}")
        a(f"s_or_b32 s{sRLX}, s{sRLX}, 1")
        a(f"v_and_b32 v{vN}, 31, v{vL}")
        a(f"v_lshrrev_b32 v{vH}, 5, v{vL}")
        a(f"v_bfe_u32 v{vT0}, v{vL}, 1, 3")
        a(f"v_xor_b32 v{vT0}, v{vT0}, v{vH}")
        a(f"s_lshl_b32 s{sT0}, s{sTT}, 12")
        a(f"s_add_u32 s{sT0}, s{sT0}, {K1_XOFF}")
        a(f"v_lshl_add_u32 v{vT1}, v{vN}, 7, s{sT0}")
        for s in range(4):
            a(f"v_xor_b32 v{vT2}, {2*s}, v{vT0}")
            a(f"v_lshl_add_u32 v{vX+s}, v{vT2}, 4, v{vT1}")
        a(f"v_bfe_u32 v{vT0}, v{vL}, 2, 2")
        a(f"v_lshl_add_u32 v{vROW}, v{vH}, 3, v{vT0}")
        a(f"v_bfe_u32 v{vG16}, v{vL}, 4, 1")
        a(f"v_and_b32 v{vC4}, 3, v{vL}")
        a(f"s_mul_i32 s{sOUT}, s{sT3}, {G_TSTRIDE}")
        a(f"s_mul_i32 s{sT0}, s{sCG}, 10240")
        a(f"s_add_u32 s{sOUT}, s{sOUT}, s{sT0}")
        a(f"s_cmp_lt_u32 s{sCG}, 4")
        a(f"s_cselect_b32 s{sQS}, {f32bits(QSCALE):#x}, 1.0")
        a(f"s_lshl_b32 s{sFL}, s{sRB}, 4")
        a(f"s_add_u32 s{sFL}, s{sFL}, s{sCG}")
        a(f"s_lshl_b32 s{sFL}, s{sFL}, 7")
        a(f"s_add_u32 s{sFL}, s{sFL}, {WS_F1}")
        if kv:
            a(f"v_lshl_add_u32 v{vT0}, v{vG16}, 2, v{vC4}")
            a(f"v_min_u32 v{vT0}, 4, v{vT0}")
            a(f"v_mul_u32_u24 v{vROW}, 40, v{vROW}")
            a(f"v_lshl_add_u32 v{vTR}, v{vT0}, 3, v{vROW}")
            if B_: a(f"v_add_u32 v{vTR}, 4096, v{vTR}")
        else:
            a(f"v_mul_u32_u24 v{vROW}, 320, v{vROW}")
            for i, t in enumerate(tiles): tr_addr(vTR + i, t)
            if A_:
                tr_addr(vSA, ("s", sW)); tr_addr(vSA + 1, 4)
                a(f"s_mul_i32 s{sT0}, s{sSI}, {K1_SLOT}")
                a(f"v_add_u32 v{vSA}, s{sT0}, v{vSA}")
                a(f"v_add_u32 v{vSA+1}, s{sT0}, v{vSA+1}")
        for i in range(16 * nt): a(f"v_mov_b32 v{ACC+i}, 0")
        for i in range(4): a(f"v_mov_b32 v{PUB+i}, 0")
        if A_ and kv:
            a(f"s_mul_i32 s{sPB}, s{sT3}, 5120")
            a(f"s_add_u32 s{sPB}, s{sPB}, {WS_RP}")
        elif A_:
            a(f"s_lshl_b32 s{sPB}, s{sCG}, 2")
            a(f"s_add_u32 s{sPB}, s{sPB}, s{sW}")
            a(f"s_mul_i32 s{sPB}, s{sPB}, 5120")
            a(f"s_add_u32 s{sPB}, s{sPB}, {WS_CP}")
        else:
            a(f"s_mul_i32 s{sPB}, s{sT3}, 5120")
            a(f"s_add_u32 s{sPB}, s{sPB}, {WS_RP}")
            srd(a, SB, pOUT, 2048 * 1280)
            att_zero(a)
            a(f"v_mul_u32_u24 v{avV}, 384, v{vH}")
            a(f"v_lshl_add_u32 v{avV}, v{vN}, 4, v{avV}")
            a(f"v_add_u32 v{avV}, 1024, v{avV}")
            a(f"v_mov_b32 v{vT2}, {OOB:#x}")
            a(f"v_cmp_gt_u32 vcc, 21, v{vN}")
            a(f"v_min_u32 v{avKT}, 32, v{vL}")
            a(f"v_lshlrev_b32 v{avKT}, 3, v{avKT}")
            a(f"v_cndmask_b32 v{avV}, v{vT2}, v{avV}, vcc")
            a(f"v_add_u32 v{avKT}, 2560, v{avKT}")
            a(f"s_mul_i32 s{sT2}, s{sHG}, 10240")
            a(f"s_add_u32 s{sT2}, s{sT2}, s{sG}")
            for j in range(4):
                a(f"s_add_u32 s{sT0}, s{sQ}, {j}")
                a(f"s_and_b32 s{sT0}, s{sT0}, 3")
                a(f"s_lshl_b32 s{sPm+j}, s{sT0}, 11")
                a(f"s_add_u32 s{sPm+j}, s{sPm+j}, s{sT2}")
                a(f"s_lshr_b32 s{sT1}, s{sT0}, 1")
                a(f"s_lshl_b32 s{sT1}, s{sT1}, 10")
                a(f"s_and_b32 s{sT0}, s{sT0}, 1")
                a(f"s_lshl_b32 s{sT0}, s{sT0}, 3")
                a(f"s_add_u32 s{sT1}, s{sT1}, s{sT0}")
                a(f"s_add_u32 s{sT1}, s{sT1}, s{sT2}")
                a(f"s_add_u32 s{sPt+j}, s{sT1}, 8192")
            a(f"s_mul_i32 s{sT2}, s{sT}, 40960")
            a(f"s_add_u32 s{sT2}, s{sT2}, {WS_O}")
            a(f"s_sub_u32 s{sT2}, s{sT2}, s{sG}")
            a(f"s_add_u32 s{sOm}, s{sPm}, s{sT2}")
            a(f"s_add_u32 s{sOt}, s{sPt}, s{sT2}")
            a(f"s_mov_b32 s{sTGT}, 0")
            a(f"v_mov_b32 v{vT2}, {L_CNT}")
            a(f"ds_write_b128 v{vT2}, {vr(PUB, 4)}")
            a(f"s_lshr_b32 s{sT0}, s{sT}, 2")
            a(f"s_lshl_b32 s{sT0}, s{sT0}, 4")
            a(f"s_add_u32 s{sT0}, s{sT0}, s{sHG}")
            a(f"s_lshl_b32 s{sT0}, s{sT0}, 5")
            a(f"s_and_b32 s{sT1}, s{sT}, 3")
            a(f"s_add_u32 s{sT0}, s{sT0}, s{sT1}")
            a(f"s_lshl_b32 s{sT0}, s{sT0}, 2")
            a(f"s_add_u32 s{sFQ}, s{sT0}, {WS_F1 + 32}")
        a(f"v_and_b32 v{vT0}, 15, v{vL}")
        a(f"v_lshlrev_b32 v{vT0}, 11, v{vT0}")
        a(f"v_add_u32 v{vT0}, {WS_F1 + 15*128}, v{vT0}")
        a(f"s_and_b32 s{sT0}, s2, 7")
        a(f"s_lshl_b32 s{sT0}, s{sT0}, 7")
        a(f"s_add_u32 s{sT0}, s{sT0}, {WS_XC}")
        a(f"v_cmp_gt_u32 vcc, 32, v{vL}")
        a(f"v_lshl_add_u32 v{vT1}, v{vN}, 2, s{sT0}")
        a(f"s_mov_b32 s{sFAST}, 0")
        a(f"s_mov_b32 s{sC}, 0")
        a(f"v_cndmask_b32 v{vFL}, v{vT1}, v{vT0}, vcc")

        if kv:
            XB, WA = [28, ACC + 16], [44, 80 + 16 if A_ else 228]
            def kreads(b):
                for s in range(4):
                    a(f"ds_read_b128 {vr(XB[b]+4*s, 4)}, v{vX+s}")
                    a(f"ds_read_b64_tr_b16 {vr(WA[b]+4*s, 2)}, v{vTR} offset:{s*sstr}")
                    a(f"ds_read_b64_tr_b16 {vr(WA[b]+4*s+2, 2)}, v{vTR} offset:{s*sstr+4*rstr}")
            a(f"s_waitcnt vmcnt({2*ndma + (2 if A_ else 0)})")
            a.stamp(2)
            a("s_barrier")
            a.stamp(3); a.stamp(NSTAMP, True)
            kreads(0)
            a(f"buffer_load_dword v{vNON}, v{vZ}, {sr(SDBG)}, 0 offen sc1")
            for p in range(ndma): piece(role, kv, p)
            a.label(f"P1_L{tag}")
            for b in range(2):
                advance()
                if b == 0:
                    L = a.uid("KS")
                    a(f"s_cmp_lg_u32 s{sC}, 6")
                    a(f"s_cbranch_scc1 {L}")
                    stream_off()
                    a.label(L)
                a(f"s_waitcnt vmcnt({2*ndma}) lgkmcnt(0)")
                a("s_barrier")
                for s in range(4):
                    a(f"v_mfma_f32_32x32x16_bf16 {vr(ACC, 16)}, {vr(WA[b]+4*s, 4)}, {vr(XB[b]+4*s, 4)}, {vr(ACC, 16)}")
                    a(f"ds_read_b128 {vr(XB[b^1]+4*s, 4)}, v{vX+s}")
                    a(f"ds_read_b64_tr_b16 {vr(WA[b^1]+4*s, 2)}, v{vTR} offset:{s*sstr}")
                    a(f"ds_read_b64_tr_b16 {vr(WA[b^1]+4*s+2, 2)}, v{vTR} offset:{s*sstr+4*rstr}")
                    for j in range(2): m4(P + 4*j, ONE, WA[b]+4*s+2*j)
                    if s < ndma: piece(role, kv, s)
                if b == 1:
                    L = a.uid("KN")
                    a(f"s_cmp_lg_u32 s{sC}, 3")
                    a(f"s_cbranch_scc1 {L}")
                    get_nonce()
                    a.label(L)
                if A_: a.lstamp(sC)
                a(f"s_add_u32 s{sC}, s{sC}, 1")
            a(f"s_cmp_lt_u32 s{sC}, 10")
            a(f"s_cbranch_scc1 P1_L{tag}")
            a.stamp(4); a.stamp(NSTAMP + 1, True)
            if A_: a.ldump()
            a(f"s_mov_b32 s{sSPIN}, {SPIN}")
            a("s_waitcnt lgkmcnt(0)")
            a.label(f"P1_GA{tag}")
            gather()
            a("s_waitcnt vmcnt(0)")
            gather_check(f"P1_GA{tag}", f"P1_FOK{tag}")
            gather_sum()
            a(f"v_add_f32 v{P}, v{P}, v{P+4}")
            split3(a, P, vT0, vT1, CSR, CSR + 1)
            halfop(a, "v_add_f32", GAT, vT0); halfop(a, "v_add_f32", GAT + 2, vT0)
            stats_finish(GAT, GAT + 2, ST)
            a(f"v_lshlrev_b32 v{vT2}, 4, v{vL}")
            a(f"v_mov_b32 v{NM}, v{ST}")
            a(f"v_mov_b32 v{NM+1}, v{ST}")
            a(f"v_mov_b32 v{ST}, v{ST+1}")
            a("s_nop 0")
            a(f"v_mfma_f32_32x32x8_bf16 {vr(ACC, 16)}, {vr(CSR, 2)}, {vr(NM, 2)}, {vr(ACC, 16)}")
            a("s_nop 9")
            a(f"s_mul_i32 s{sT0}, s{sT3}, {KV_REC}")
            a(f"s_add_u32 s{sT0}, s{sT0}, {WS_KV}")
            for j in range(6): a(f"v_pk_mul_f32 {vr(ACC+2*j, 2)}, {vr(ACC+2*j, 2)}, {vr(ST, 2)}")
            if A_:
                for j in range(6): a(f"v_cvt_pk_bf16_f32 v{P+j}, v{ACC+2*j}, v{ACC+2*j+1}")
                a(f"v_min_u32 v{vT0}, 32, v{vL}")
                a(f"v_lshlrev_b32 v{vT0}, 3, v{vT0}")
                a("s_mov_b32 exec_lo, 0")
                a(f"v_mov_b32 v{P+4}, 0x3f803f80")
                a(f"v_mov_b32 v{P+5}, 0x3f80")
                a("s_mov_b32 exec_lo, -1")
                a(f"buffer_store_dwordx4 {vr(P, 4)}, v{vT2}, {sr(SWS)}, s{sT0} offen sc1")
                a(f"buffer_store_dwordx2 {vr(P+4, 2)}, v{vT0}, {sr(SWS)}, s{sT0} offen offset:2560 sc1")
            else:
                a("s_mov_b32 exec_lo, 0")
                a(f"v_mov_b32 v{ACC+8}, 1.0")
                a("s_mov_b32 exec_lo, -1")
                for j in range(6): a(f"v_cvt_pk_bf16_f32 v{P+j}, v{ACC+2*j}, v{ACC+2*j+1}")
                a(f"s_mul_i32 s{sT1}, s{sTT}, 1536")
                a(f"s_add_u32 s{sT1}, s{sT1}, {L_VT}")
                a(f"v_lshrrev_b32 v{vT0}, 3, v{vN}")
                a(f"v_mul_u32_u24 v{vT0}, 384, v{vT0}")
                a(f"v_and_b32 v{vT1}, 7, v{vN}")
                a(f"v_lshl_add_u32 v{vT0}, v{vT1}, 1, v{vT0}")
                a(f"v_lshl_add_u32 v{vT0}, v{vH}, 6, v{vT0}")
                a(f"v_add_u32 v{vT0}, s{sT1}, v{vT0}")
                for r in range(12):
                    op = "ds_write_b16" if r % 2 == 0 else "ds_write_b16_d16_hi"
                    a(f"{op} v{vT0}, v{P+r//2} offset:{(r//4)*128 + (r%4)*16}")
                a(f"v_add_u32 v{vT0}, s{sT1}, v{vT2}")
                a("s_waitcnt lgkmcnt(0)")
                a(f"ds_read_b128 {vr(P+8, 4)}, v{vT0}")
                a(f"ds_read_b128 {vr(P+12, 4)}, v{vT0} offset:1024")
                a("s_waitcnt lgkmcnt(0)")
                a(f"buffer_store_dwordx4 {vr(P+8, 4)}, v{vT2}, {sr(SWS)}, s{sT0} offen offset:1024 sc1")
                a("s_mov_b32 exec_hi, 0")
                a(f"buffer_store_dwordx4 {vr(P+12, 4)}, v{vT2}, {sr(SWS)}, s{sT0} offen offset:2048 sc1")
                a("s_mov_b32 exec_hi, -1")
            a.stamp(5)
            a("s_waitcnt vmcnt(0)")
            a("s_barrier")
            if B_:
                a(f"s_mov_b32 s{sKOK}, 0")
                a(f"s_cmp_lg_u32 s{sW}, 4")
                a(f"s_cbranch_scc1 {nxt}")
                a("s_mov_b64 exec, 1")
                a(f"buffer_store_dword v{vNON}, v{vZ}, {sr(SWS)}, s{sFL} offen sc1")
                a("s_mov_b64 exec, -1")
            else:
                a("s_sleep 4")
                a(f"s_mul_i32 s{sT2}, s{sW}, 5120")
                for i in range(3):
                    for p in range(5):
                        a(f"s_add_u32 m0, s{sT2}, {WO_STAGE[i] + p*1024}")
                        a("s_nop 0")
                        a(f"buffer_load_dwordx4 v{vWD+p}, {sr(SW4)}, s{sWOR} offen lds")
                    a(f"s_add_u32 s{sWOR}, s{sWOR}, {20*1280}")
            a(f"s_branch {nxt}")
            return

        a("s_mov_b64 vcc, -1")
        if D2 == 1: third()
        a(f"s_waitcnt vmcnt({(2 if D2 < 2 else 1)*ndma + (1 if (B_ and TLB) else 0)})")
        a.stamp(2)
        a("s_barrier")
        a(f"ds_read_b128 {vr(FB[0], 4)}, v{vX}")
        for i in range(nt):
            a(f"ds_read_b64_tr_b16 {vr(FA[0]+4*i, 2)}, v{vTR+i}")
            a(f"ds_read_b64_tr_b16 {vr(FA[0]+4*i+2, 2)}, v{vTR+i} offset:{4*rstr}")
        if D2 == 2: third()
        a(f"buffer_load_dword v{vNON}, v{vZ}, {sr(SDBG)}, 0 offen sc1")
        a.stamp(3); a.stamp(NSTAMP, True)
        a.raw(".p2align 3")
        a.label(f"P1_L{tag}")
        a(f"s_cmp_eq_u32 s{sC}, s{sSI}")
        a(f"s_cbranch_scc1 P1_ST{tag}")
        a.label(f"P1_M{tag}")
        slots = [(s, i) for s in range(3) for i in range(nt)]
        where = {}
        for p in range(ndma):
            where.setdefault(slots[(p * len(slots)) // ndma + (1 if B_ else 0)], []).append(p)
        def step(s, pre=None):
            p, q, ns = s & 1, (s + 1) & 1, (s + 1) & 3
            for i in range(nt):
                if pre is None:
                    a(f"s_waitcnt lgkmcnt({2*(nt-1-i) + ((1 + 2*i) if i else 0)})")
                a(f"v_mfma_f32_32x32x16_bf16 {vr(ACC+16*i, 16)}, {vr(FA[p]+4*i, 4)}, {vr(FB[p], 4)}, {vr(ACC+16*i, 16)}")
                if i == 0:
                    if pre is not None: pre()
                    a(f"ds_read_b128 {vr(FB[q], 4)}, v{vX+ns}")
                a(f"ds_read_b64_tr_b16 {vr(FA[q]+4*i, 2)}, v{vTR+i} offset:{ns*sstr}")
                a(f"ds_read_b64_tr_b16 {vr(FA[q]+4*i+2, 2)}, v{vTR+i} offset:{ns*sstr+4*rstr}")
                for pp in where.get((s, i), []):
                    if B_:
                        L = a.uid("SK")
                        a(f"s_cbranch_vccz {L}")
                    piece(role, kv, pp)
                    if B_: a.label(L)
        for s in range(3): step(s)
        advance()
        a(f"s_cmp_ge_u32 s{sC}, 7")
        a("s_waitcnt lgkmcnt(0)")
        def pre():
            a(f"s_cbranch_scc1 P1_WL{tag}")
            a(f"s_bitcmp1_b32 s{sRLX}, s{sC}")
            a(f"s_cbranch_scc1 P1_W0{tag}")
            a(f"s_waitcnt vmcnt({2*ndma})")
            a.label(f"P1_W0{tag}")
            a(f"s_waitcnt vmcnt({2*ndma + 1})")
            a.label(f"P1_W1{tag}")
            a("s_barrier")
        step(3, pre)
        a(f"s_cmp_ge_u32 s{sC}, 6")
        a(f"s_cbranch_scc1 P1_ND{tag}")
        a(f"s_cmp_eq_u32 s{sC}, s{sPUBI}")
        a(f"s_cbranch_scc1 P1_PUB{tag}")
        a.label(f"P1_NX{tag}")
        if A_: a.lstamp(sC)
        a(f"s_add_u32 s{sC}, s{sC}, 1")
        a(f"s_branch P1_L{tag}")
        a.label(f"P1_WL{tag}")
        if A_:
            a(f"s_waitcnt vmcnt({2*ndma + 6})")
        else:
            a(f"s_waitcnt vmcnt({ndma + 5})")
            a(f"s_cmp_eq_u32 s{sC}, 7")
            a(f"s_cbranch_scc1 P1_W1{tag}")
            a("s_waitcnt vmcnt(5)")
        a(f"s_branch P1_W1{tag}")
        a.label(f"P1_ST{tag}")
        if B_:
            for s in range(4): a(f"ds_read_b128 {vr(GAT+4*s, 4)}, v{vX+s}")
        else:
            for s in range(4):
                for e in range(2):
                    a(f"ds_read_b64_tr_b16 {vr(GAT+16*e+4*s, 2)}, v{vSA+e} offset:{s*sstr}")
                    a(f"ds_read_b64_tr_b16 {vr(GAT+16*e+4*s+2, 2)}, v{vSA+e} offset:{s*sstr+4*rstr}")
        for j in range(8):
            if j % 2 == 0: a(f"s_waitcnt lgkmcnt({(3 - j//2) * (1 if B_ else 4)})")
            dd = 8 * (j & 1)
            m4(P + dd, ONE, GAT + 2*j)
            if B_: m4(P + dd + 4, GAT + 2*j, GAT + 2*j)
            else: m4(P + dd + 4, ONE, GAT + 16 + 2*j)
        a(f"s_branch P1_M{tag}")
        a.label(f"P1_PUB{tag}")
        get_nonce()
        a(f"v_lshlrev_b32 v{vT1}, 4, v{vL}")
        a(f"v_add_f32 v{PUB}, v{P}, v{P+8}")
        if B_:
            for j in range(4): a(f"v_add_f32 v{P+4+j}, v{P+4+j}, v{P+12+j}")
            diag(PUB + 2, P + 4)
            a("s_mov_b64 vcc, -1")
        else:
            a(f"v_add_f32 v{PUB+2}, v{P+4}, v{P+12}")
        halfop(a, "v_add_f32", PUB, vT0); halfop(a, "v_add_f32", PUB + 2, vT0)
        a(f"v_mov_b32 v{PUB+1}, v{vNON}")
        a(f"v_mov_b32 v{PUB+3}, v{vNON}")
        a(f"s_lshl_b32 s{sT1}, s{sST}, 9")
        a(f"s_add_u32 s{sT0}, s{sPB}, s{sT1}")
        a("s_mov_b32 exec_hi, 0")
        a(f"buffer_store_dwordx4 {vr(PUB, 4)}, v{vT1}, {sr(SWS)}, s{sT0} offen sc1")
        a("s_mov_b32 exec_hi, -1")
        a(f"s_branch P1_NX{tag}")
        a.label(f"P1_ND{tag}")
        a(f"s_cmp_eq_u32 s{sC}, 9")
        a(f"s_cbranch_scc1 P1_DONE{tag}")
        if A_:
            a(f"s_cmp_eq_u32 s{sC}, 7")
            csel(a, sT0, WO_STAGE[1], WO_STAGE[0])
            a(f"s_cmp_eq_u32 s{sC}, 8")
            a(f"s_cmov_b32 s{sT0}, {WO_STAGE[2]}")
            a(f"s_mul_i32 s{sM0}, s{sW}, 5120")
            a(f"s_add_u32 s{sM0}, s{sM0}, s{sT0}")
        a(f"s_cmp_eq_u32 s{sC}, 7")
        a(f"s_cbranch_scc1 P1_NX{tag}")
        a(f"s_mov_b32 s{sSPIN}, {SPIN}")
        a(f"s_cmp_eq_u32 s{sC}, 8")
        a(f"s_cbranch_scc1 P1_FIN{tag}")
        if A_:
            srd(a, SA, pWO, 640 * 1280)
            a(f"s_mov_b32 s{sSO}, s{sWOR}")
            a(f"s_mov_b32 s{sSTEP}, {20*1280}")
            a(f"s_mov_b32 s{sCC}, 16")
            for p in range(5): a(f"v_mov_b32 v{vD+p}, v{vWD+p}")
        else:
            a("s_mov_b64 vcc, 0")
        a.label(f"P1_GA{tag}")
        gather()
        a(f"s_cmp_lg_u32 s{sC}, 6")
        a(f"s_cbranch_scc1 P1_GW{tag}")
        if A_:
            srd(a, SW4, pW2, 0 if opt("notouch") else 1728 * 1280)
            a(f"s_mul_i32 s{sT0}, s{sRB}, 15")
            a(f"s_add_u32 s{sT0}, s{sT0}, s{sCG}")
            a(f"s_lshl_b32 s{sT0}, s{sT0}, 2")
            a(f"s_add_u32 s{sT0}, s{sT0}, s{sW}")
            a(f"s_mul_i32 s{sT0}, s{sT0}, {18*128}")
            a(f"v_lshlrev_b32 v{vT0}, 7, v{vL}")
            a("s_mov_b64 exec, 0x3ffff")
            a(f"buffer_load_dword v231, v{vT0}, {sr(SW4)}, s{sT0} offen")
            a("s_mov_b64 exec, -1")
        a(f"s_branch P1_NX{tag}")
        a.label(f"P1_GW{tag}")
        a("s_waitcnt vmcnt(0)")
        a.label(f"P1_FIN{tag}")
        a(f"s_waitcnt vmcnt({2*ndma + 1 if A_ else 0})")
        gather_check(f"P1_GA{tag}", f"P1_FOK{tag}")
        if B_: a("s_mov_b64 vcc, 0")
        a(f"buffer_load_dword v{vFV}, v{vFL}, {sr(SWS)}, 0 offen sc1")
        gather_sum()
        if B_:
            halfop(a, "v_add_f32", GAT, vT0); halfop(a, "v_add_f32", GAT + 2, vT0)
            stats_finish(GAT, GAT + 2, PUB)
            a(f"v_lshl_add_u32 v{vT0}, v{vN}, 3, s{sT0}")
            a(f"ds_write_b64 v{vT0}, {vr(PUB, 2)}")
        else:
            for e in range(2):
                split3(a, GAT + 2 * e, vT0, vT1, PUB + 2 * e, PUB + 1 + 2 * e)
                if e == 1:
                    a(f"v_lshlrev_b32 v{vT0}, 3, v{vL}")
                    a(f"v_add_u32 v{vT0}, {K1_CS + 2048}, v{vT0}")
                else:
                    a(f"s_lshl_b32 s{sT0}, s{sW}, 9")
                    a(f"s_add_u32 s{sT0}, s{sT0}, {K1_CS}")
                    a(f"v_lshl_add_u32 v{vT0}, v{vL}, 3, s{sT0}")
                a(f"ds_write_b64 v{vT0}, {vr(PUB+2*e, 2)}")
        a(f"s_branch P1_NX{tag}")
        a.label(f"P1_DONE{tag}")
        a.stamp(4); a.stamp(NSTAMP + 1, True)
        if A_: a.ldump()
        a(f"s_lshl_b32 s{sT0}, s{sTT}, 8")
        a(f"s_add_u32 s{sT0}, s{sT0}, {K1_ST}")
        a(f"v_lshl_add_u32 v{vT0}, v{vN}, 3, s{sT0}")
        a(f"v_lshlrev_b32 v{vT1}, 3, v{vL}")
        a(f"v_add_u32 v{vT1}, {K1_CS}, v{vT1}")
        a(f"ds_read_b64 {vr(ST, 2)}, v{vT0}")
        for i, t in enumerate(tiles): a(f"ds_read_b64 {vr(CSR+2*i, 2)}, v{vT1} offset:{512*t}")
        a(f"v_lshlrev_b32 v{vT2}, 4, v{vL}")
        a(f"s_waitcnt vmcnt({ndma if A_ else 0})")
        a(f"v_cmp_ne_u32 vcc, s{sXW}, v{vFV}")
        a(f"s_cmp_lt_u32 s{sCG}, 4")
        a(f"s_cselect_b32 s{sLO}, 0x80008000, 0")
        a("s_cmp_eq_u32 vcc_hi, 0")
        a(f"s_cselect_b32 s{sFAST}, {0 if opt('slow') else 1}, 0")
        if B_:
            L = a.uid("NOKV")
            a(f"v_cmp_ne_u32 vcc, s{sNON}, v{vFV}")
            a(f"s_mov_b32 s{sKOK}, 0")
            a("s_cmp_lg_u32 vcc_lo, 0")
            a(f"s_cbranch_scc1 {L}")
            kv_first(a, vT2)
            a(f"s_mov_b32 s{sKOK}, 1")
            a.label(L)
        a("s_waitcnt lgkmcnt(0)")
        a(f"v_mov_b32 v{NM}, v{ST}")
        a(f"v_mov_b32 v{NM+1}, v{ST}")
        a(f"v_mov_b32 v{ST}, v{ST+1}")
        a("s_nop 0")
        for i in range(nt):
            a(f"v_mfma_f32_32x32x8_bf16 {vr(ACC+16*i, 16)}, {vr(CSR+2*i, 2)}, {vr(NM, 2)}, {vr(ACC+16*i, 16)}")
        a(f"s_nop {12 - nt}")
        for i, t in enumerate(tiles):
            for j in range(8): a(f"v_pk_mul_f32 {vr(ACC+16*i+2*j, 2)}, {vr(ACC+16*i+2*j, 2)}, {vr(ST, 2)}")
            for j in range(8): a(f"v_cvt_pk_bf16_f32 v{P+8*i+j}, v{ACC+16*i+2*j}, v{ACC+16*i+2*j+1}")
            for j in range(8): a(f"v_pk_max_i16 v{P+8*i+j}, v{P+8*i+j}, s{sLO}")
            a(f"s_add_u32 s{sT0}, s{sOUT}, {2048*t}")
            stores(a, [f"buffer_store_dwordx4 {vr(P+8*i+4*e, 4)}, v{vT2}, {sr(SWS)}, s{sT0} offen offset:{1024*e}" for e in range(2)])
        a.stamp(5)
        a(f"s_lshl_b32 s{sT0}, s{sW}, 2")
        a(f"s_add_u32 s{sT0}, s{sT0}, s{sFL}")
        a("s_mov_b64 exec, 1")
        a("s_waitcnt vmcnt(0)")
        stores(a, [f"buffer_store_dword v{vNON}, v{vZ}, {sr(SWS)}, s{sT0} offen offset:32"])
        a("s_mov_b64 exec, -1")
        a(f"s_branch {nxt}")

    body("GA", "A", False)
    a.label("P1_GB")
    body("GB", "B", False)
    a.label("P1_KA0")
    a(f"v_lshlrev_b32 v{vD}, 4, v{vL}")
    a(f"s_lshl_b32 s{sSO}, s{sCC}, 2")
    a(f"s_add_u32 s{sSO}, s{sSO}, s{sW}")
    a(f"s_mul_i32 s{sSO}, s{sSO}, 640")
    a(f"s_mov_b32 s{sSTEP}, 2560")
    a(f"s_lshl_b32 s{sM0}, s{sW}, 10")
    a("s_waitcnt lgkmcnt(0)")
    srd(a, SA, pWK, 640 * 40)
    srd(a, SB, pWV, 640 * 40)
    first_chunks("A", True)
    body("KA", "A", True)
    a.label("P1_KB")
    body("KB", "B", True)

def kdesc(name, nv, ns=102):
    return f""".amdhsa_kernel {name}
  .amdhsa_next_free_vgpr {nv}
  .amdhsa_next_free_sgpr {ns}
  .amdhsa_accum_offset {(nv+3)//4*4}
  .amdhsa_group_segment_fixed_size 0
  .amdhsa_kernarg_size 88
  .amdhsa_user_sgpr_count 2
  .amdhsa_user_sgpr_kernarg_segment_ptr 1
  .amdhsa_system_sgpr_workgroup_id_x 1
.end_amdhsa_kernel
"""

def build():
    from g7p2 import gen_ffn, gen_att
    hdr = open("cdna_kernels/" + NAME + ".s.ref").read().split("; Override launch")[0]
    out = hdr
    out += f"; @launch grid=(256,1,1) block=(512,1,1) lds={LDS_BYTES}\n"
    out += '.amdgcn_target "amdgcn-amd-amdhsa--gfx950"\n.text\n'
    a = Asm()
    k = NAME + "_kernel"
    a.raw(f".globl {k}\n.p2align 8\n.type {k},@function")
    a.label(k)
    gen_p1(a)
    a.label("P2_ATT")
    gen_att(a)
    a.label("P2_FFN")
    gen_ffn(a)
    for L, lines, D in a.tail:
        a.label(L)
        for l in lines: a(l)
        a(f"s_branch {D}")
    a.label("L_END")
    a("s_endpgm")
    out += a.text()
    out += '.section .rodata,"a"\n.p2align 6\n' + kdesc(k, 256)
    return out

if __name__ == "__main__":
    path = sys.argv[1] if len(sys.argv) > 1 and not sys.argv[1].startswith("--") else "cdna_kernels/" + NAME + ".s"
    open(path, "w").write(build())
```

```python
import sys, struct, math

NAME = "parallel_sum__grouped_kv_mqa__dense_activation_relu__prompt"
def opt(name): return ("--" + name) in sys.argv
def optv(name, d): return int(sys.argv[sys.argv.index("--" + name) + 1]) if opt(name) else d
G_TSTRIDE = 75 * 2048
WS_G = 0
WS_KV = 64 * G_TSTRIDE
KV_REC = 3072
WS_O = (WS_KV + 66 * KV_REC + 4095) // 4096 * 4096
WS_RP = WS_O + 64 * 40 * 1024
WS_CP = WS_RP + 64 * 5120
WS_F1 = WS_CP + 64 * 5120
WS_F2 = WS_F1 + 256 * 128
WS_XC = WS_F2 + 256 * 128
WS_PROF = WS_XC + 8 * 128
PROFILE = opt("prof")
NSTAMP = 18
WS_END = WS_PROF + (256 * 8 * 256 if PROFILE else 0)
OOB = 0x80000000
QSCALE = math.log2(math.e) / math.sqrt(20.0)
SPIN = 0x40000
NFIRST = optv("nfirst", 2)


def f32bits(x): return struct.unpack("<I", struct.pack("<f", x))[0]

class Asm:
    def __init__(self): self.lines = []; self.n = 0; self.tail = []; self.p2 = False
    def __call__(self, s): self.lines.append("    " + s)
    def label(self, s): self.lines.append(s + ":")
    def raw(self, s): self.lines.append(s)
    def c(self, s): self.lines.append("    ; " + s)
    def uid(self, p): self.n += 1; return f"{p}_{self.n}"
    def stamp(self, i, cyc=False):
        if opt("st") and self.p2 and i in (14, 15, 16): return
        if PROFILE:
            self(f"s_memtime s[100:101]" if cyc else "s_memrealtime s[100:101]")
            self("s_waitcnt lgkmcnt(0)")
            self(f"s_mov_b32 s{64+i}, s100")
    def lstamp(self, slane, v=14):
        if PROFILE and opt("iter"):
            self("s_memrealtime s[100:101]")
            self("s_waitcnt lgkmcnt(0)")
            self(f"s_mov_b32 m0, {slane}" if isinstance(slane, str) else f"s_mov_b32 m0, s{slane}")
            self(f"v_writelane_b32 v{v}, s100, m0")
    def ldump(self, v=14):
        if PROFILE and opt("iter"):
            self(f"s_lshl_b32 s100, s2, 3")
            self(f"s_add_u32 s100, s100, s{sW}")
            self(f"s_lshl_b32 s100, s100, 8")
            self(f"s_add_u32 s100, s100, {WS_PROF+128}")
            self("v_lshlrev_b32 v15, 2, v1")
            self("s_mov_b64 exec, 0xffff")
            self(f"buffer_store_dword v{v}, v15, s[{SWS}:{SWS+3}], s100 offen")
            self("s_mov_b64 exec, -1")
            self("s_waitcnt vmcnt(0)")
    def end(self):
        if PROFILE:
            self("s_waitcnt vmcnt(0)")
            self.stamp(NSTAMP - 1)
            self(f"s_lshl_b32 s3, s2, 3")
            self(f"s_add_u32 s3, s3, s{sW}")
            self(f"s_lshl_b32 s3, s3, 8")
            self(f"s_add_u32 s3, s3, {WS_PROF}")
            self("s_mov_b64 exec, 1")
            self("v_mov_b32 v1, 0")
            for i in range(NSTAMP + 4):
                self(f"v_mov_b32 v2, s{64+i}")
                self(f"buffer_store_dword v2, v1, s[{SWS}:{SWS+3}], s3 offen offset:{4*i}")
        self("s_endpgm")
    def text(self): return "\n".join(self.lines) + "\n"

def vr(b, n=1): return f"v{b}" if n == 1 else f"v[{b}:{b+n-1}]"
def sr(b, n=4): return f"s{b}" if n == 1 else f"s[{b}:{b+n-1}]"
def srd(a, d, p, size):
    a(f"s_mov_b32 s{d}, s{p}")
    a(f"s_mov_b32 s{d+1}, s{p+1}")
    a(f"s_mov_b32 s{d+2}, {size}")
    a(f"s_mov_b32 s{d+3}, 0x00020000")
def csel(a, d, t, f):
    a(f"s_mov_b32 s{d}, {f}")
    a(f"s_cmov_b32 s{d}, {t}")
def split3(a, src, t0, t1, d0, d1):
    a(f"v_and_b32 v{t0}, 0xffff0000, v{src}")
    a(f"v_sub_f32 v{t1}, v{src}, v{t0}")
    a(f"v_lshrrev_b32 v{d0}, 16, v{src}")
    a(f"v_and_b32 v{t0}, 0xffff0000, v{t1}")
    a(f"v_or_b32 v{d0}, v{d0}, v{t0}")
    a(f"v_sub_f32 v{t1}, v{t1}, v{t0}")
    a(f"v_lshrrev_b32 v{d1}, 16, v{t1}")
def halfop(a, op, r, t):
    a(f"v_mov_b32 v{t}, v{r}")
    a("s_nop 1")
    a(f"v_permlane32_swap_b32 v{t}, v{r}")
    a(f"{op} v{r}, v{r}, v{t}")
def umax(a, dst, regs):
    regs = list(regs)
    a(f"v_max3_u32 v{dst}, v{regs[0]}, v{regs[1]}, v{regs[2]}")
    r = regs[3:]
    while len(r) >= 2:
        a(f"v_max3_u32 v{dst}, v{dst}, v{r[0]}, v{r[1]}"); r = r[2:]
    if r: a(f"v_max_u32 v{dst}, v{dst}, v{r[0]}")

SWS, SA, SB, SX, SDBG = 4, 8, 12, 16, 20
sSI = 3
sW, sNON = 24, 25
sRB, sCG, sTT = 26, 27, 28
sQ = sTT
sT0, sT1, sT2 = 29, 30, 31
pX, pWQ, pWK, pWV, pWO, pW1, pW2, pOUT, pDBG, pWS = 32, 34, 36, 38, 40, 44, 46, 48, 50, 52
sWST, sSO, sSTEP, sM0, sC, sDEL, sCC, sOUT, sFL, sQS = range(54, 64)
sT, sHG, sG, sOB = 86, 87, 92, 93
SW4 = 88
sF2, sPUBI, sT3, sFAST, sST, sSPIN = 94, 95, 96, 97, 98, 99
sXW, sLO = 53, 52
sRLX = 50
sWOR = 38
sPB = 51
sPm, sBAD, sPt = 34, 38, 42
sOm, sOt, sKV, sTGT = 40, 41, 46, 47
sMODE, sCNT, sKOK, sFQ = 8, 9, 10, 11
sCOL, sHO, sFC = 54, 59, 60

def spin_tail(a, L):
    a(f"s_sub_u32 s{sSPIN}, s{sSPIN}, 1")
    a(f"s_cbranch_scc0 {L}")

def poll(a, vaddr, vtmp, soff, sleep=1):
    L, D = a.uid("POLL"), a.uid("POLLED")
    a(f"s_mov_b32 s{sSPIN}, {SPIN}")
    a.label(L)
    a(f"buffer_load_dword v{vtmp}, v{vaddr}, {sr(SWS)}, {soff} offen sc1")
    a("s_waitcnt vmcnt(0)")
    a(f"v_cmp_ne_u32 vcc, s{sNON}, v{vtmp}")
    a(f"s_cbranch_vccz {D}")
    if sleep: a(f"s_sleep {sleep}")
    spin_tail(a, L)
    a.label(D)

def stores(a, lines):
    L, D = a.uid("SLOW"), a.uid("STD")
    a(f"s_cmp_eq_u32 s{sFAST}, 0")
    a(f"s_cbranch_scc1 {L}")
    for l in lines: a(l)
    a.label(D)
    a.tail.append((L, [l + (" sc1" if l.startswith("buffer_store") else "") for l in lines], D))

def check_fast(a, vaddr, vtmp):
    L = a.uid("CF")
    a(f"s_cmp_lg_u32 s{sFAST}, 0")
    a(f"s_cbranch_scc1 {L}")
    a(f"s_and_b32 s{sT0}, s2, 7")
    a(f"s_lshl_b32 s{sT0}, s{sT0}, 7")
    a(f"s_add_u32 s{sT0}, s{sT0}, {WS_XC}")
    a(f"v_and_b32 v{vaddr}, 31, v1")
    a(f"v_lshlrev_b32 v{vaddr}, 2, v{vaddr}")
    a(f"buffer_load_dword v{vtmp}, v{vaddr}, {sr(SWS)}, s{sT0} offen sc1")
    a("s_waitcnt vmcnt(0)")
    a(f"v_cmp_ne_u32 vcc, s{sXW}, v{vtmp}")
    a("s_cmp_eq_u64 vcc, 0")
    a(f"s_cselect_b32 s{sFAST}, {0 if opt('slow') else 1}, 0")
    a.label(L)

K1_SLOT = 36864
K1_XOFF = 20480
K1_CS = 151552
K1_ST = K1_CS + 2560
WO_STAGE = [83968, 110592, 131072]
L_VT = 104448
vWD = 240
RING_ST = 20992
L_OP = 4 * RING_ST
L_MREC = L_OP + 73728
L_CNT = L_MREC + 2048
LDS_BYTES = L_CNT + 64

aS = [16, 32, 48, 64]
aO = lambda i: 80 + 12 * i
aQM = lambda i: 180 + 4 * i
aQT = lambda i: 212 + 2 * i
aKM = [228, 242]; aKT = [232, 246]; aV0 = [234, 248]; aV1 = [238, 252]
avV, avKT = 14, 15
AP = 128

def ldkm(a, b, va): a(f"buffer_load_dwordx4 {vr(aKM[b], 4)}, v{va}, {sr(SWS)}, s{sKV} offen sc1")
def ldkt(a, b): a(f"buffer_load_dwordx2 {vr(aKT[b], 2)}, v{avKT}, {sr(SWS)}, s{sKV} offen sc1")
def ldv(a, u, b): a(f"buffer_load_dwordx4 {vr((aV0, aV1)[u][b], 4)}, v{avV}, {sr(SWS)}, s{sKV} offen" + (" offset:768" if u else "") + " sc1")
def kv_first(a, va):
    a(f"s_mul_i32 s{sKV}, s{sQ}, {16*KV_REC}")
    a(f"s_add_u32 s{sKV}, s{sKV}, {WS_KV}")
    ldkm(a, 0, va); ldkt(a, 0); ldv(a, 0, 0); ldv(a, 1, 0)
    a(f"s_add_u32 s{sKV}, s{sKV}, {KV_REC}")
    ldkm(a, 1, va); ldkt(a, 1)
def att_zero(a):
    for r in range(aO(0), aO(0) + 100): a(f"v_mov_b32 v{r}, 0")
    for r in range(aS[3], aS[3] + 16): a(f"v_mov_b32 v{r}, 0")
    for r in range(aV0[1], aV0[1] + 8): a(f"v_mov_b32 v{r}, 0")

def gen_p1(a):
    vL, vN, vH, vT0, vT1, vT2, vZ = 1, 2, 3, 4, 5, 6, 7
    vX, vD = 8, 16
    vNON, vROW, vFL, vFV = 21, 22, 23, 22
    vSA = 24
    vG16, vC4 = 26, 27
    FB = [28, 32]
    FA = [36, 48]
    PUB = 60
    a(f"s_cmp_ge_u32 s2, 256")
    a("s_cbranch_scc1 L_END")
    a("s_load_dwordx16 s[32:47], s[0:1], 0")
    a("s_load_dwordx4 s[48:51], s[0:1], 64")
    a("s_load_dwordx2 s[52:53], s[0:1], 80")
    a("s_memrealtime s[100:101]")
    a(f"v_lshrrev_b32 v{vT0}, 6, v0")
    a(f"v_and_b32 v{vL}, 63, v0")
    a(f"v_readfirstlane_b32 s{sW}, v{vT0}")
    rbits = optv("rbits", 1)
    cb = rbits - 1
    a(f"s_bfe_u32 s{sRB}, s2, {((3-cb) << 16) | cb:#x}")
    a(f"s_lshl_b32 s{sRB}, s{sRB}, {rbits}")
    a(f"s_bfe_u32 s{sT0}, s2, {(rbits << 16) | 3:#x}")
    a(f"s_add_u32 s{sRB}, s{sRB}, s{sT0}")
    a(f"s_and_b32 s{sCG}, s2, {(1 << cb) - 1}")
    a(f"s_lshl_b32 s{sCG}, s{sCG}, {5-rbits}")
    a(f"s_lshr_b32 s{sT0}, s2, {3+rbits}")
    a(f"s_add_u32 s{sCG}, s{sCG}, s{sT0}")
    a(f"s_and_b32 s{sTT}, s{sW}, 3")
    a(f"s_mul_i32 s{sST}, s{sRB}, 3")
    a(f"s_add_u32 s{sST}, s{sST}, s{sCG}")
    a(f"s_mul_i32 s{sT0}, s{sST}, 26")
    a(f"s_lshr_b32 s{sT0}, s{sT0}, 8")
    a(f"s_mul_i32 s{sT0}, s{sT0}, 10")
    a(f"s_sub_u32 s{sST}, s{sST}, s{sT0}")
    a(f"s_mul_i32 s{sCC}, s{sST}, 86")
    a(f"s_lshr_b32 s{sCC}, s{sCC}, 8")
    a(f"s_min_u32 s{sCC}, s{sCC}, 2")
    a(f"s_mul_i32 s{sCC}, s{sCC}, 3")
    a(f"s_sub_u32 s{sSI}, s{sST}, s{sCC}")
    a(f"s_lshl_b32 s{sT0}, s{sRB}, 2")
    a(f"s_add_u32 s{sT3}, s{sT0}, s{sTT}")
    a(f"s_cmp_lt_u32 s{sW}, 4")
    a("s_cbranch_scc1 P1_A")

    def piece(role, kv, p):
        if role == "A" and kv:
            a(f"s_add_u32 m0, s{sM0}, {4096*p}")
            a("s_nop 0")
            a(f"buffer_load_dwordx4 v{vD}, {sr(SA if p == 0 else SB)}, s{sSO} offen lds")
        else:
            a(f"s_add_u32 m0, s{sM0}, {1024*p}")
            a("s_nop 0")
            a(f"buffer_load_dwordx4 v{vD+p}, {sr(SX if role == 'B' else SA)}, s{sSO} offen lds")
    def first_chunks(role, kv):
        ndma = 4 if role == "B" else (2 if kv else 5)
        if PROFILE: a("s_mov_b32 s64, s100")
        a.stamp(1)
        for c in range(NFIRST):
            for p in range(ndma): piece(role, kv, p)
            a(f"s_add_u32 s{sSO}, s{sSO}, s{sSTEP}")
            a(f"s_add_u32 s{sM0}, s{sM0}, {K1_SLOT}")
            if not opt("nofb"): a("s_barrier")

    a(f"s_lshl_b32 s{sT0}, s{sT3}, 5")
    a(f"v_lshrrev_b32 v{vT0}, 3, v{vL}")
    a(f"v_add_u32 v{vT0}, s{sT0}, v{vT0}")
    a(f"v_mul_u32_u24 v{vT0}, 1280, v{vT0}")
    a(f"v_lshrrev_b32 v{vT1}, 4, v{vL}")
    a(f"v_and_b32 v{vT2}, 7, v{vL}")
    a(f"v_xor_b32 v{vT1}, v{vT1}, v{vT2}")
    a(f"v_lshl_add_u32 v{vD}, v{vT1}, 4, v{vT0}")
    a(f"v_xor_b32 v{vT1}, 4, v{vT1}")
    a(f"v_lshl_add_u32 v{vD+1}, v{vT1}, 4, v{vT0}")
    a(f"v_add_u32 v{vD+1}, {8*1280}, v{vD+1}")
    a(f"v_add_u32 v{vD+2}, {16*1280}, v{vD}")
    a(f"v_add_u32 v{vD+3}, {16*1280}, v{vD+1}")
    a(f"s_lshl_b32 s{sSO}, s{sCC}, 7")
    a(f"s_mov_b32 s{sSTEP}, 128")
    a(f"s_lshl_b32 s{sM0}, s{sTT}, 12")
    a(f"s_add_u32 s{sM0}, s{sM0}, {K1_XOFF}")
    a("s_waitcnt lgkmcnt(0)")
    srd(a, SX, pX, 2048 * 1280)
    first_chunks("B", False)
    a(f"s_cmp_eq_u32 s{sCG}, 15")
    a("s_cbranch_scc1 P1_KB")
    a("s_branch P1_GB")
    a.label("P1_A")
    a(f"s_cmp_eq_u32 s{sCG}, 15")
    a("s_cbranch_scc1 P1_KA0")
    a(f"s_sub_u32 s{sT0}, s{sCG}, 4")
    a(f"s_cmp_lt_u32 s{sCG}, 4")
    csel(a, sWST, 1280, 3456)
    a(f"s_cselect_b32 s{sT0}, s{sCG}, s{sT0}")
    a(f"s_mul_i32 s{sT0}, s{sT0}, 320")
    a(f"s_lshl_b32 s{sT1}, s{sCC}, 2")
    a(f"s_add_u32 s{sT1}, s{sT1}, s{sW}")
    a(f"s_lshl_b32 s{sT1}, s{sT1}, 4")
    a(f"s_mul_i32 s{sT1}, s{sT1}, s{sWST}")
    a(f"s_add_u32 s{sSO}, s{sT0}, s{sT1}")
    a(f"s_sub_u32 s{sT2}, s{sWST}, 320")
    for p in range(5):
        a(f"v_add_u32 v{vT0}, {64*p}, v{vL}")
        a(f"v_mul_u32_u24 v{vT1}, 3277, v{vT0}")
        a(f"v_lshrrev_b32 v{vT1}, 16, v{vT1}")
        a(f"v_lshlrev_b32 v{vT0}, 4, v{vT0}")
        a(f"v_mad_u32_u24 v{vD+p}, v{vT1}, s{sT2}, v{vT0}")
    a(f"s_lshl_b32 s{sSTEP}, s{sWST}, 6")
    a(f"s_mul_i32 s{sM0}, s{sW}, 5120")
    a(f"s_cmp_lt_u32 s{sCG}, 4")
    a("s_waitcnt lgkmcnt(0)")
    a(f"s_cselect_b32 s{SA}, s{pWQ}, s{pW1}")
    a(f"s_cselect_b32 s{SA+1}, s{pWQ+1}, s{pW1+1}")
    csel(a, SA + 2, 640 * 640 * 2, 640 * 1728 * 2)
    a(f"s_mov_b32 s{SA+3}, 0x00020000")
    first_chunks("A", False)

    def tr_addr(dst, tile):
        a(f"s_cmp_lt_u32 s{sCG}, 4")
        if tile == 4:
            a(f"s_cselect_b32 s{sT0}, 32, 0x100")
            a(f"s_cselect_b32 s{sT1}, 160, 32")
            a(f"s_cselect_b32 s{sT2}, 40, 8")
            a(f"v_mad_u32_u24 v{dst}, v{vC4}, s{sT2}, v{vROW}")
        else:
            a(f"s_cselect_b32 s{sT1}, 40, 32")
            if isinstance(tile, tuple):
                a(f"s_lshl_b32 s{sT0}, s{sT1}, 1")
                a(f"s_mul_i32 s{sT0}, s{sT0}, s{tile[1]}")
            else:
                a(f"s_mul_i32 s{sT0}, s{sT1}, {2*tile}")
            a(f"v_lshl_add_u32 v{dst}, v{vC4}, 3, v{vROW}")
        a(f"v_mad_u32_u24 v{dst}, v{vG16}, s{sT1}, v{dst}")
        a(f"v_add_u32 v{dst}, s{sT0}, v{dst}")

    def body(tag, role, kv):
        A_, B_ = role == "A", role == "B"
        nt = 1 if kv else (3 if A_ else 2)
        tiles = [0] if kv else ([0, 1, 2] if A_ else [3, 4])
        sstr, rstr = (1024, 40) if kv else (5120, 320)
        ndma = 4 if B_ else (2 if kv else 5)
        vTR = 12 if B_ else 112
        ACC, P, GAT = (64, AP, 176) if A_ else (180, 212, 228)
        ST, NM, CSR = (116, 118, 120) if A_ else ((48, 50, 56) if kv else (44, 46, 56))
        if kv: GAT = 160 if A_ else 28
        ONE = 126 if A_ else 24
        D0, D1, D2 = (P, P + 4, P + 8)
        nxt = "P2_FFN" if A_ else "P2_ATT"
        def stats_finish(SU, SQ, S):
            a(f"v_mul_f32 v{SU}, {f32bits(1.0/640):#x}, v{SU}")
            a(f"v_mul_f32 v{SQ}, {f32bits(1.0/640):#x}, v{SQ}")
            a(f"v_fma_f32 v{SQ}, -v{SU}, v{SU}, v{SQ}")
            a(f"v_max_f32 v{SQ}, 0, v{SQ}")
            a(f"v_cvt_pk_bf16_f32 v{S}, -v{SU}, -v{SU}")
            a(f"v_cvt_pk_bf16_f32 v{SQ}, v{SQ}, v{SQ}")
            a(f"v_and_b32 v{SQ}, 0xffff0000, v{SQ}")
            a(f"v_add_f32 v{SQ}, {f32bits(1e-5):#x}, v{SQ}")
            a(f"v_cvt_pk_bf16_f32 v{SQ}, v{SQ}, v{SQ}")
            a(f"v_and_b32 v{SQ}, 0xffff0000, v{SQ}")
            a(f"v_sqrt_f32 v{SQ}, v{SQ}")
            a(f"s_lshl_b32 s{sT0}, s{sTT}, 8")
            a(f"v_cvt_pk_bf16_f32 v{SQ}, v{SQ}, v{SQ}")
            a(f"v_and_b32 v{SQ}, 0xffff0000, v{SQ}")
            a(f"v_rcp_f32 v{SQ}, v{SQ}")
            a(f"s_add_u32 s{sT0}, s{sT0}, {K1_ST}")
            a(f"v_mul_f32 v{S+1}, s{sQS}, v{SQ}")
        def get_nonce():
            L, D = a.uid("NON"), a.uid("NOND")
            a(f"s_mov_b32 s{sSPIN}, {SPIN}")
            a.label(L)
            a(f"v_readfirstlane_b32 s{sNON}, v{vNON}")
            a(f"s_cmp_lg_u32 s{sNON}, 0")
            a(f"s_cbranch_scc1 {D}")
            a(f"buffer_load_dword v{vNON}, v{vZ}, {sr(SDBG)}, 0 offen sc1")
            a("s_waitcnt vmcnt(0)")
            spin_tail(a, L)
            a.label(D)
            a(f"s_getreg_b32 s{sXW}, hwreg(HW_REG_XCC_ID, 0, 4)")
            a(f"s_lshl_b32 s{sXW}, s{sXW}, 1")
            a(f"s_xor_b32 s{sXW}, s{sXW}, s{sNON}")
            if A_:
                L = a.uid("XW")
                a(f"s_cmp_lg_u32 s{sW}, 0")
                a(f"s_cbranch_scc1 {L}")
                a(f"s_and_b32 s{sT0}, s2, 7")
                a(f"s_lshl_b32 s{sT0}, s{sT0}, 5")
                a(f"s_lshr_b32 s{sT1}, s2, 3")
                a(f"s_add_u32 s{sT0}, s{sT0}, s{sT1}")
                a(f"s_lshl_b32 s{sT0}, s{sT0}, 2")
                a(f"s_add_u32 s{sT0}, s{sT0}, {WS_XC}")
                a(f"v_mov_b32 v{vT0}, s{sXW}")
                a("s_mov_b64 exec, 1")
                a(f"buffer_store_dword v{vT0}, v{vZ}, {sr(SWS)}, s{sT0} offen sc1")
                a("s_mov_b64 exec, -1")
                a.label(L)
        def m4(d, x, y):
            a(f"v_mfma_f32_4x4x4_16b_bf16 {vr(d, 4)}, {vr(x, 2)}, {vr(y, 2)}, {vr(d, 4)}")
        def diag(dst, d):
            a(f"v_cmp_eq_u32 vcc, 1, v{vC4}")
            a(f"v_cmp_eq_u32 s[100:101], 3, v{vC4}")
            a("s_nop 0")
            a(f"v_cndmask_b32 v{d}, v{d}, v{d+1}, vcc")
            a(f"v_cmp_lt_u32 vcc, 1, v{vC4}")
            a(f"v_cndmask_b32 v{d+2}, v{d+2}, v{d+3}, s[100:101]")
            a("s_nop 0")
            a(f"v_cndmask_b32 v{dst}, v{d}, v{d+2}, vcc")
        def gather():
            a(f"v_mul_u32_u24 v{vT0}, 2560, v{vH}")
            a(f"v_lshl_add_u32 v{vT0}, v{vN}, 4, v{vT0}")
            for j in range(5): a(f"buffer_load_dwordx4 {vr(GAT+4*j, 4)}, v{vT0}, {sr(SWS)}, s{sPB} offen offset:{512*j} sc1")
        def gather_check(again, ok):
            a(f"v_xor_b32 v{vT1}, s{sNON}, v{GAT+1}")
            for j in range(1, 10):
                a(f"v_bitop3_b32 v{vT1}, v{GAT+2*j+1}, s{sNON}, v{vT1} bitop3:0xbe")
            a(f"v_cmp_ne_u32 vcc, 0, v{vT1}")
            a(f"s_cbranch_vccz {ok}")
            a("s_sleep 2")
            spin_tail(a, again)
            a.label(ok)
        def gather_sum():
            for j in range(1, 5):
                a(f"v_add_f32 v{GAT}, v{GAT}, v{GAT+4*j}")
                a(f"v_add_f32 v{GAT+2}, v{GAT+2}, v{GAT+4*j+2}")
        def advance():
            a(f"s_mul_i32 s{sT0}, s{sSTEP}, -9")
            a(f"s_add_u32 s{sCC}, s{sCC}, 1")
            a(f"s_cmp_eq_u32 s{sCC}, 10")
            a(f"s_cselect_b32 s{sT0}, s{sT0}, s{sSTEP}")
            a(f"s_add_u32 s{sSO}, s{sSO}, s{sT0}")
            a(f"s_and_b32 s{sT0}, s{sC}, 3")
            csel(a, sT1, K1_SLOT, -3*K1_SLOT)
            a(f"s_add_u32 s{sM0}, s{sM0}, s{sT1}")
            a(f"s_cmp_eq_u32 s{sT0}, 3")
            csel(a, sDEL, -3*K1_SLOT, K1_SLOT)
            for s in range(4): a(f"v_add_u32 v{vX+s}, s{sDEL}, v{vX+s}")
            for i in range(nt): a(f"v_add_u32 v{vTR+i}, s{sDEL}, v{vTR+i}")
        def stream_off():
            if B_: a(f"s_mov_b32 s{SX+2}, 0")
            else:
                a(f"s_mov_b32 s{SA+2}, 0")
                if kv: a(f"s_mov_b32 s{SB+2}, 0")
        def third():
            for c in range(3 - NFIRST):
                for p in range(ndma): piece(role, kv, p)
                a(f"s_add_u32 s{sSO}, s{sSO}, s{sSTEP}")
                a(f"s_add_u32 s{sM0}, s{sM0}, {K1_SLOT}")
            a(f"s_add_u32 s{sCC}, s{sCC}, 3")
        D2 = optv("d2", 1)
        if opt("st"): a.stamp(14)
        if D2 == 0 or kv: third()
        srd(a, SWS, pWS, WS_END)
        srd(a, SDBG, pDBG, 256)
        a(f"v_mov_b32 v{vZ}, 0")
        if A_ and not kv:
            L = a.uid("NONCE")
            a(f"s_or_b32 s{sT0}, s2, s{sW}")
            a(f"s_cbranch_scc1 {L}")
            if PROFILE: a("s_or_b32 s100, s65, 1")
            else: a("s_or_b32 s100, s100, 1")
            a(f"v_mov_b32 v{vT0}, s100")
            a(f"buffer_store_dword v{vT0}, v{vZ}, {sr(SDBG)}, 0 offen sc1")
            a.label(L)
        TLB = opt("tlb")
        if B_ and TLB and not kv:
            a(f"v_lshlrev_b32 v{vT0}, 21, v{vL}")
            a("s_mov_b64 exec, 0x7f")
            a(f"buffer_load_dword v{vNON}, v{vT0}, {sr(SWS)}, 0 offen")
            a("s_mov_b64 exec, -1")
        a(f"s_and_b32 s{sT}, s2, 7")
        a(f"s_lshl_b32 s{sT}, s{sT}, 3")
        a(f"s_lshr_b32 s{sT0}, s2, 5")
        a(f"s_add_u32 s{sT}, s{sT}, s{sT0}")
        a(f"s_bfe_u32 s{sHG}, s2, 0x20003")
        a(f"s_mul_i32 s{sG}, s{sT}, {G_TSTRIDE}")
        if kv and A_:
            srd(a, SW4, pWO, 640 * 1280)
            a(f"v_lshlrev_b32 v{vT0}, 7, v{vL}")
            a(f"s_mul_i32 s{sT1}, s{sT3}, {100*128}")
            a(f"buffer_load_dword v230, v{vT0}, {sr(SW4)}, s{sT1} offen")
            a(f"s_add_u32 s{sT1}, s{sT1}, {36*128}")
            a(f"buffer_load_dword v230, v{vT0}, {sr(SW4)}, s{sT1} offen")
        a(f"s_mul_i32 s{sOB}, s{sT}, {32*1280}")
        a(f"s_mul_i32 s{sT0}, s{sHG}, 320")
        a(f"s_add_u32 s{sOB}, s{sOB}, s{sT0}")
        if A_:
            a(f"s_mul_i32 s{sWOR}, s{sW}, {160*1280}")
            a(f"s_add_u32 s{sWOR}, s{sWOR}, s{sT0}")
            a(f"s_add_u32 s{sWOR}, s{sWOR}, {100*1280}")
            for p in range(5):
                a(f"v_add_u32 v{vT0}, {64*p}, v{vL}")
                a(f"v_mul_u32_u24 v{vT1}, 3277, v{vT0}")
                a(f"v_lshrrev_b32 v{vT1}, 16, v{vT1}")
                a(f"v_lshlrev_b32 v{vT0}, 4, v{vT0}")
                a(f"v_mul_u32_u24 v{vWD+p}, 960, v{vT1}")
                a(f"v_add_u32 v{vWD+p}, v{vWD+p}, v{vT0}")
        a(f"s_lshl_b32 s{sF2}, s{sT}, 2")
        a(f"s_add_u32 s{sF2}, s{sF2}, s{sHG}")
        a(f"s_lshl_b32 s{sF2}, s{sF2}, 7")
        a(f"s_add_u32 s{sF2}, s{sF2}, {WS_F2}")
        a(f"v_mov_b32 v{ONE}, 0x3f803f80")
        a(f"v_mov_b32 v{ONE+1}, 0x3f803f80")
        for j in range(16): a(f"v_mov_b32 v{P+j}, 0")
        a(f"s_max_u32 s{sPUBI}, s{sSI}, 1")
        a(f"s_lshl_b32 s{sRLX}, 6, s{sPUBI}")
        a(f"s_or_b32 s{sRLX}, s{sRLX}, 1")
        a(f"v_and_b32 v{vN}, 31, v{vL}")
        a(f"v_lshrrev_b32 v{vH}, 5, v{vL}")
        a(f"v_bfe_u32 v{vT0}, v{vL}, 1, 3")
        a(f"v_xor_b32 v{vT0}, v{vT0}, v{vH}")
        a(f"s_lshl_b32 s{sT0}, s{sTT}, 12")
        a(f"s_add_u32 s{sT0}, s{sT0}, {K1_XOFF}")
        a(f"v_lshl_add_u32 v{vT1}, v{vN}, 7, s{sT0}")
        for s in range(4):
            a(f"v_xor_b32 v{vT2}, {2*s}, v{vT0}")
            a(f"v_lshl_add_u32 v{vX+s}, v{vT2}, 4, v{vT1}")
        a(f"v_bfe_u32 v{vT0}, v{vL}, 2, 2")
        a(f"v_lshl_add_u32 v{vROW}, v{vH}, 3, v{vT0}")
        a(f"v_bfe_u32 v{vG16}, v{vL}, 4, 1")
        a(f"v_and_b32 v{vC4}, 3, v{vL}")
        a(f"s_mul_i32 s{sOUT}, s{sT3}, {G_TSTRIDE}")
        a(f"s_mul_i32 s{sT0}, s{sCG}, 10240")
        a(f"s_add_u32 s{sOUT}, s{sOUT}, s{sT0}")
        a(f"s_cmp_lt_u32 s{sCG}, 4")
        a(f"s_cselect_b32 s{sQS}, {f32bits(QSCALE):#x}, 1.0")
        a(f"s_lshl_b32 s{sFL}, s{sRB}, 4")
        a(f"s_add_u32 s{sFL}, s{sFL}, s{sCG}")
        a(f"s_lshl_b32 s{sFL}, s{sFL}, 7")
        a(f"s_add_u32 s{sFL}, s{sFL}, {WS_F1}")
        if kv:
            a(f"v_lshl_add_u32 v{vT0}, v{vG16}, 2, v{vC4}")
            a(f"v_min_u32 v{vT0}, 4, v{vT0}")
            a(f"v_mul_u32_u24 v{vROW}, 40, v{vROW}")
            a(f"v_lshl_add_u32 v{vTR}, v{vT0}, 3, v{vROW}")
            if B_: a(f"v_add_u32 v{vTR}, 4096, v{vTR}")
        else:
            a(f"v_mul_u32_u24 v{vROW}, 320, v{vROW}")
            for i, t in enumerate(tiles): tr_addr(vTR + i, t)
            if A_:
                tr_addr(vSA, ("s", sW)); tr_addr(vSA + 1, 4)
                a(f"s_mul_i32 s{sT0}, s{sSI}, {K1_SLOT}")
                a(f"v_add_u32 v{vSA}, s{sT0}, v{vSA}")
                a(f"v_add_u32 v{vSA+1}, s{sT0}, v{vSA+1}")
        for i in range(16 * nt): a(f"v_mov_b32 v{ACC+i}, 0")
        for i in range(4): a(f"v_mov_b32 v{PUB+i}, 0")
        if A_ and kv:
            a(f"s_mul_i32 s{sPB}, s{sT3}, 5120")
            a(f"s_add_u32 s{sPB}, s{sPB}, {WS_RP}")
        elif A_:
            a(f"s_lshl_b32 s{sPB}, s{sCG}, 2")
            a(f"s_add_u32 s{sPB}, s{sPB}, s{sW}")
            a(f"s_mul_i32 s{sPB}, s{sPB}, 5120")
            a(f"s_add_u32 s{sPB}, s{sPB}, {WS_CP}")
        else:
            a(f"s_mul_i32 s{sPB}, s{sT3}, 5120")
            a(f"s_add_u32 s{sPB}, s{sPB}, {WS_RP}")
            srd(a, SB, pOUT, 2048 * 1280)
            att_zero(a)
            a(f"v_mul_u32_u24 v{avV}, 384, v{vH}")
            a(f"v_lshl_add_u32 v{avV}, v{vN}, 4, v{avV}")
            a(f"v_add_u32 v{avV}, 1024, v{avV}")
            a(f"v_mov_b32 v{vT2}, {OOB:#x}")
            a(f"v_cmp_gt_u32 vcc, 21, v{vN}")
            a(f"v_min_u32 v{avKT}, 32, v{vL}")
            a(f"v_lshlrev_b32 v{avKT}, 3, v{avKT}")
            a(f"v_cndmask_b32 v{avV}, v{vT2}, v{avV}, vcc")
            a(f"v_add_u32 v{avKT}, 2560, v{avKT}")
            a(f"s_mul_i32 s{sT2}, s{sHG}, 10240")
            a(f"s_add_u32 s{sT2}, s{sT2}, s{sG}")
            for j in range(4):
                a(f"s_add_u32 s{sT0}, s{sQ}, {j}")
                a(f"s_and_b32 s{sT0}, s{sT0}, 3")
                a(f"s_lshl_b32 s{sPm+j}, s{sT0}, 11")
                a(f"s_add_u32 s{sPm+j}, s{sPm+j}, s{sT2}")
                a(f"s_lshr_b32 s{sT1}, s{sT0}, 1")
                a(f"s_lshl_b32 s{sT1}, s{sT1}, 10")
                a(f"s_and_b32 s{sT0}, s{sT0}, 1")
                a(f"s_lshl_b32 s{sT0}, s{sT0}, 3")
                a(f"s_add_u32 s{sT1}, s{sT1}, s{sT0}")
                a(f"s_add_u32 s{sT1}, s{sT1}, s{sT2}")
                a(f"s_add_u32 s{sPt+j}, s{sT1}, 8192")
            a(f"s_mul_i32 s{sT2}, s{sT}, 40960")
            a(f"s_add_u32 s{sT2}, s{sT2}, {WS_O}")
            a(f"s_sub_u32 s{sT2}, s{sT2}, s{sG}")
            a(f"s_add_u32 s{sOm}, s{sPm}, s{sT2}")
            a(f"s_add_u32 s{sOt}, s{sPt}, s{sT2}")
            a(f"s_mov_b32 s{sTGT}, 0")
            a(f"v_mov_b32 v{vT2}, {L_CNT}")
            a(f"ds_write_b128 v{vT2}, {vr(PUB, 4)}")
            a(f"s_lshr_b32 s{sT0}, s{sT}, 2")
            a(f"s_lshl_b32 s{sT0}, s{sT0}, 4")
            a(f"s_add_u32 s{sT0}, s{sT0}, s{sHG}")
            a(f"s_lshl_b32 s{sT0}, s{sT0}, 5")
            a(f"s_and_b32 s{sT1}, s{sT}, 3")
            a(f"s_add_u32 s{sT0}, s{sT0}, s{sT1}")
            a(f"s_lshl_b32 s{sT0}, s{sT0}, 2")
            a(f"s_add_u32 s{sFQ}, s{sT0}, {WS_F1 + 32}")
        a(f"v_and_b32 v{vT0}, 15, v{vL}")
        a(f"v_lshlrev_b32 v{vT0}, 11, v{vT0}")
        a(f"v_add_u32 v{vT0}, {WS_F1 + 15*128}, v{vT0}")
        a(f"s_and_b32 s{sT0}, s2, 7")
        a(f"s_lshl_b32 s{sT0}, s{sT0}, 7")
        a(f"s_add_u32 s{sT0}, s{sT0}, {WS_XC}")
        a(f"v_cmp_gt_u32 vcc, 32, v{vL}")
        a(f"v_lshl_add_u32 v{vT1}, v{vN}, 2, s{sT0}")
        a(f"s_mov_b32 s{sFAST}, 0")
        a(f"s_mov_b32 s{sC}, 0")
        a(f"v_cndmask_b32 v{vFL}, v{vT1}, v{vT0}, vcc")

        if kv:
            XB, WA = [28, ACC + 16], [44, 80 + 16 if A_ else 228]
            def kreads(b):
                for s in range(4):
                    a(f"ds_read_b128 {vr(XB[b]+4*s, 4)}, v{vX+s}")
                    a(f"ds_read_b64_tr_b16 {vr(WA[b]+4*s, 2)}, v{vTR} offset:{s*sstr}")
                    a(f"ds_read_b64_tr_b16 {vr(WA[b]+4*s+2, 2)}, v{vTR} offset:{s*sstr+4*rstr}")
            a(f"s_waitcnt vmcnt({2*ndma + (2 if A_ else 0)})")
            a.stamp(2)
            a("s_barrier")
            a.stamp(3); a.stamp(NSTAMP, True)
            kreads(0)
            a(f"buffer_load_dword v{vNON}, v{vZ}, {sr(SDBG)}, 0 offen sc1")
            for p in range(ndma): piece(role, kv, p)
            a.label(f"P1_L{tag}")
            for b in range(2):
                advance()
                if b == 0:
                    L = a.uid("KS")
                    a(f"s_cmp_lg_u32 s{sC}, 6")
                    a(f"s_cbranch_scc1 {L}")
                    stream_off()
                    a.label(L)
                a(f"s_waitcnt vmcnt({2*ndma}) lgkmcnt(0)")
                a("s_barrier")
                for s in range(4):
                    a(f"v_mfma_f32_32x32x16_bf16 {vr(ACC, 16)}, {vr(WA[b]+4*s, 4)}, {vr(XB[b]+4*s, 4)}, {vr(ACC, 16)}")
                    a(f"ds_read_b128 {vr(XB[b^1]+4*s, 4)}, v{vX+s}")
                    a(f"ds_read_b64_tr_b16 {vr(WA[b^1]+4*s, 2)}, v{vTR} offset:{s*sstr}")
                    a(f"ds_read_b64_tr_b16 {vr(WA[b^1]+4*s+2, 2)}, v{vTR} offset:{s*sstr+4*rstr}")
                    for j in range(2): m4(P + 4*j, ONE, WA[b]+4*s+2*j)
                    if s < ndma: piece(role, kv, s)
                if b == 1:
                    L = a.uid("KN")
                    a(f"s_cmp_lg_u32 s{sC}, 3")
                    a(f"s_cbranch_scc1 {L}")
                    get_nonce()
                    a.label(L)
                if A_: a.lstamp(sC)
                a(f"s_add_u32 s{sC}, s{sC}, 1")
            a(f"s_cmp_lt_u32 s{sC}, 10")
            a(f"s_cbranch_scc1 P1_L{tag}")
            a.stamp(4); a.stamp(NSTAMP + 1, True)
            if A_: a.ldump()
            a(f"s_mov_b32 s{sSPIN}, {SPIN}")
            a("s_waitcnt lgkmcnt(0)")
            a.label(f"P1_GA{tag}")
            gather()
            a("s_waitcnt vmcnt(0)")
            gather_check(f"P1_GA{tag}", f"P1_FOK{tag}")
            gather_sum()
            a(f"v_add_f32 v{P}, v{P}, v{P+4}")
            split3(a, P, vT0, vT1, CSR, CSR + 1)
            halfop(a, "v_add_f32", GAT, vT0); halfop(a, "v_add_f32", GAT + 2, vT0)
            stats_finish(GAT, GAT + 2, ST)
            a(f"v_lshlrev_b32 v{vT2}, 4, v{vL}")
            a(f"v_mov_b32 v{NM}, v{ST}")
            a(f"v_mov_b32 v{NM+1}, v{ST}")
            a(f"v_mov_b32 v{ST}, v{ST+1}")
            a("s_nop 0")
            a(f"v_mfma_f32_32x32x8_bf16 {vr(ACC, 16)}, {vr(CSR, 2)}, {vr(NM, 2)}, {vr(ACC, 16)}")
            a("s_nop 9")
            a(f"s_mul_i32 s{sT0}, s{sT3}, {KV_REC}")
            a(f"s_add_u32 s{sT0}, s{sT0}, {WS_KV}")
            for j in range(6): a(f"v_pk_mul_f32 {vr(ACC+2*j, 2)}, {vr(ACC+2*j, 2)}, {vr(ST, 2)}")
            if A_:
                for j in range(6): a(f"v_cvt_pk_bf16_f32 v{P+j}, v{ACC+2*j}, v{ACC+2*j+1}")
                a(f"v_min_u32 v{vT0}, 32, v{vL}")
                a(f"v_lshlrev_b32 v{vT0}, 3, v{vT0}")
                a("s_mov_b32 exec_lo, 0")
                a(f"v_mov_b32 v{P+4}, 0x3f803f80")
                a(f"v_mov_b32 v{P+5}, 0x3f80")
                a("s_mov_b32 exec_lo, -1")
                a(f"buffer_store_dwordx4 {vr(P, 4)}, v{vT2}, {sr(SWS)}, s{sT0} offen sc1")
                a(f"buffer_store_dwordx2 {vr(P+4, 2)}, v{vT0}, {sr(SWS)}, s{sT0} offen offset:2560 sc1")
            else:
                a("s_mov_b32 exec_lo, 0")
                a(f"v_mov_b32 v{ACC+8}, 1.0")
                a("s_mov_b32 exec_lo, -1")
                for j in range(6): a(f"v_cvt_pk_bf16_f32 v{P+j}, v{ACC+2*j}, v{ACC+2*j+1}")
                a(f"s_mul_i32 s{sT1}, s{sTT}, 1536")
                a(f"s_add_u32 s{sT1}, s{sT1}, {L_VT}")
                a(f"v_lshrrev_b32 v{vT0}, 3, v{vN}")
                a(f"v_mul_u32_u24 v{vT0}, 384, v{vT0}")
                a(f"v_and_b32 v{vT1}, 7, v{vN}")
                a(f"v_lshl_add_u32 v{vT0}, v{vT1}, 1, v{vT0}")
                a(f"v_lshl_add_u32 v{vT0}, v{vH}, 6, v{vT0}")
                a(f"v_add_u32 v{vT0}, s{sT1}, v{vT0}")
                for r in range(12):
                    op = "ds_write_b16" if r % 2 == 0 else "ds_write_b16_d16_hi"
                    a(f"{op} v{vT0}, v{P+r//2} offset:{(r//4)*128 + (r%4)*16}")
                a(f"v_add_u32 v{vT0}, s{sT1}, v{vT2}")
                a("s_waitcnt lgkmcnt(0)")
                a(f"ds_read_b128 {vr(P+8, 4)}, v{vT0}")
                a(f"ds_read_b128 {vr(P+12, 4)}, v{vT0} offset:1024")
                a("s_waitcnt lgkmcnt(0)")
                a(f"buffer_store_dwordx4 {vr(P+8, 4)}, v{vT2}, {sr(SWS)}, s{sT0} offen offset:1024 sc1")
                a("s_mov_b32 exec_hi, 0")
                a(f"buffer_store_dwordx4 {vr(P+12, 4)}, v{vT2}, {sr(SWS)}, s{sT0} offen offset:2048 sc1")
                a("s_mov_b32 exec_hi, -1")
            a.stamp(5)
            a("s_waitcnt vmcnt(0)")
            a("s_barrier")
            if B_:
                a(f"s_mov_b32 s{sKOK}, 0")
                a(f"s_cmp_lg_u32 s{sW}, 4")
                a(f"s_cbranch_scc1 {nxt}")
                a("s_mov_b64 exec, 1")
                a(f"buffer_store_dword v{vNON}, v{vZ}, {sr(SWS)}, s{sFL} offen sc1")
                a("s_mov_b64 exec, -1")
            else:
                a("s_sleep 4")
                a(f"s_mul_i32 s{sT2}, s{sW}, 5120")
                for i in range(3):
                    for p in range(5):
                        a(f"s_add_u32 m0, s{sT2}, {WO_STAGE[i] + p*1024}")
                        a("s_nop 0")
                        a(f"buffer_load_dwordx4 v{vWD+p}, {sr(SW4)}, s{sWOR} offen lds")
                    a(f"s_add_u32 s{sWOR}, s{sWOR}, {20*1280}")
            a(f"s_branch {nxt}")
            return

        a("s_mov_b64 vcc, -1")
        if opt("st"): a.stamp(15)
        if D2 == 1: third()
        if opt("st"): a.stamp(16)
        a(f"s_waitcnt vmcnt({(2 if D2 < 2 else 1)*ndma + (1 if (B_ and TLB) else 0)})")
        a.stamp(2)
        a("s_barrier")
        a(f"ds_read_b128 {vr(FB[0], 4)}, v{vX}")
        for i in range(nt):
            a(f"ds_read_b64_tr_b16 {vr(FA[0]+4*i, 2)}, v{vTR+i}")
            a(f"ds_read_b64_tr_b16 {vr(FA[0]+4*i+2, 2)}, v{vTR+i} offset:{4*rstr}")
        if D2 == 2: third()
        a(f"buffer_load_dword v{vNON}, v{vZ}, {sr(SDBG)}, 0 offen sc1")
        a.stamp(3); a.stamp(NSTAMP, True)
        a.raw(".p2align 3")
        a.label(f"P1_L{tag}")
        a(f"s_cmp_eq_u32 s{sC}, s{sSI}")
        a(f"s_cbranch_scc1 P1_ST{tag}")
        a.label(f"P1_M{tag}")
        slots = [(s, i) for s in range(3) for i in range(nt)]
        where = {}
        for p in range(ndma):
            where.setdefault(slots[(p * len(slots)) // ndma + (1 if B_ else 0)], []).append(p)
        def step(s, pre=None):
            p, q, ns = s & 1, (s + 1) & 1, (s + 1) & 3
            for i in range(nt):
                if pre is None:
                    a(f"s_waitcnt lgkmcnt({2*(nt-1-i) + ((1 + 2*i) if i else 0)})")
                a(f"v_mfma_f32_32x32x16_bf16 {vr(ACC+16*i, 16)}, {vr(FA[p]+4*i, 4)}, {vr(FB[p], 4)}, {vr(ACC+16*i, 16)}")
                if i == 0:
                    if pre is not None: pre()
                    a(f"ds_read_b128 {vr(FB[q], 4)}, v{vX+ns}")
                a(f"ds_read_b64_tr_b16 {vr(FA[q]+4*i, 2)}, v{vTR+i} offset:{ns*sstr}")
                a(f"ds_read_b64_tr_b16 {vr(FA[q]+4*i+2, 2)}, v{vTR+i} offset:{ns*sstr+4*rstr}")
                for pp in where.get((s, i), []):
                    if B_:
                        L = a.uid("SK")
                        a(f"s_cbranch_vccz {L}")
                    piece(role, kv, pp)
                    if B_: a.label(L)
        for s in range(3): step(s)
        advance()
        a(f"s_cmp_ge_u32 s{sC}, 7")
        a("s_waitcnt lgkmcnt(0)")
        def pre():
            a(f"s_cbranch_scc1 P1_WL{tag}")
            a(f"s_bitcmp1_b32 s{sRLX}, s{sC}")
            a(f"s_cbranch_scc1 P1_W0{tag}")
            a(f"s_waitcnt vmcnt({2*ndma})")
            a.label(f"P1_W0{tag}")
            a(f"s_waitcnt vmcnt({2*ndma + 1})")
            a.label(f"P1_W1{tag}")
            a("s_barrier")
        step(3, pre)
        a(f"s_cmp_ge_u32 s{sC}, 6")
        a(f"s_cbranch_scc1 P1_ND{tag}")
        a(f"s_cmp_eq_u32 s{sC}, s{sPUBI}")
        a(f"s_cbranch_scc1 P1_PUB{tag}")
        a.label(f"P1_NX{tag}")
        if A_: a.lstamp(sC)
        a(f"s_add_u32 s{sC}, s{sC}, 1")
        a(f"s_branch P1_L{tag}")
        a.label(f"P1_WL{tag}")
        if A_:
            a(f"s_waitcnt vmcnt({2*ndma + 6})")
        else:
            a(f"s_waitcnt vmcnt({ndma + 5})")
            a(f"s_cmp_eq_u32 s{sC}, 7")
            a(f"s_cbranch_scc1 P1_W1{tag}")
            a("s_waitcnt vmcnt(5)")
        a(f"s_branch P1_W1{tag}")
        a.label(f"P1_ST{tag}")
        if B_:
            for s in range(4): a(f"ds_read_b128 {vr(GAT+4*s, 4)}, v{vX+s}")
        else:
            for s in range(4):
                for e in range(2):
                    a(f"ds_read_b64_tr_b16 {vr(GAT+16*e+4*s, 2)}, v{vSA+e} offset:{s*sstr}")
                    a(f"ds_read_b64_tr_b16 {vr(GAT+16*e+4*s+2, 2)}, v{vSA+e} offset:{s*sstr+4*rstr}")
        for j in range(8):
            if j % 2 == 0: a(f"s_waitcnt lgkmcnt({(3 - j//2) * (1 if B_ else 4)})")
            dd = 8 * (j & 1)
            m4(P + dd, ONE, GAT + 2*j)
            if B_: m4(P + dd + 4, GAT + 2*j, GAT + 2*j)
            else: m4(P + dd + 4, ONE, GAT + 16 + 2*j)
        a(f"s_branch P1_M{tag}")
        a.label(f"P1_PUB{tag}")
        get_nonce()
        a(f"v_lshlrev_b32 v{vT1}, 4, v{vL}")
        a(f"v_add_f32 v{PUB}, v{P}, v{P+8}")
        if B_:
            for j in range(4): a(f"v_add_f32 v{P+4+j}, v{P+4+j}, v{P+12+j}")
            diag(PUB + 2, P + 4)
            a("s_mov_b64 vcc, -1")
        else:
            a(f"v_add_f32 v{PUB+2}, v{P+4}, v{P+12}")
        halfop(a, "v_add_f32", PUB, vT0); halfop(a, "v_add_f32", PUB + 2, vT0)
        a(f"v_mov_b32 v{PUB+1}, v{vNON}")
        a(f"v_mov_b32 v{PUB+3}, v{vNON}")
        a(f"s_lshl_b32 s{sT1}, s{sST}, 9")
        a(f"s_add_u32 s{sT0}, s{sPB}, s{sT1}")
        a("s_mov_b32 exec_hi, 0")
        a(f"buffer_store_dwordx4 {vr(PUB, 4)}, v{vT1}, {sr(SWS)}, s{sT0} offen sc1")
        a("s_mov_b32 exec_hi, -1")
        a(f"s_branch P1_NX{tag}")
        a.label(f"P1_ND{tag}")
        a(f"s_cmp_eq_u32 s{sC}, 9")
        a(f"s_cbranch_scc1 P1_DONE{tag}")
        if A_:
            a(f"s_cmp_eq_u32 s{sC}, 7")
            csel(a, sT0, WO_STAGE[1], WO_STAGE[0])
            a(f"s_cmp_eq_u32 s{sC}, 8")
            a(f"s_cmov_b32 s{sT0}, {WO_STAGE[2]}")
            a(f"s_mul_i32 s{sM0}, s{sW}, 5120")
            a(f"s_add_u32 s{sM0}, s{sM0}, s{sT0}")
        a(f"s_cmp_eq_u32 s{sC}, 7")
        a(f"s_cbranch_scc1 P1_NX{tag}")
        a(f"s_mov_b32 s{sSPIN}, {SPIN}")
        a(f"s_cmp_eq_u32 s{sC}, 8")
        a(f"s_cbranch_scc1 P1_FIN{tag}")
        if A_:
            srd(a, SA, pWO, 640 * 1280)
            a(f"s_mov_b32 s{sSO}, s{sWOR}")
            a(f"s_mov_b32 s{sSTEP}, {20*1280}")
            a(f"s_mov_b32 s{sCC}, 16")
            for p in range(5): a(f"v_mov_b32 v{vD+p}, v{vWD+p}")
        else:
            a("s_mov_b64 vcc, 0")
        a.label(f"P1_GA{tag}")
        gather()
        a(f"s_cmp_lg_u32 s{sC}, 6")
        a(f"s_cbranch_scc1 P1_GW{tag}")
        if A_:
            srd(a, SW4, pW2, 0 if opt("notouch") else 1728 * 1280)
            a(f"s_mul_i32 s{sT0}, s{sRB}, 15")
            a(f"s_add_u32 s{sT0}, s{sT0}, s{sCG}")
            a(f"s_lshl_b32 s{sT0}, s{sT0}, 2")
            a(f"s_add_u32 s{sT0}, s{sT0}, s{sW}")
            a(f"s_mul_i32 s{sT0}, s{sT0}, {18*128}")
            a(f"v_lshlrev_b32 v{vT0}, 7, v{vL}")
            a("s_mov_b64 exec, 0x3ffff")
            a(f"buffer_load_dword v231, v{vT0}, {sr(SW4)}, s{sT0} offen")
            a("s_mov_b64 exec, -1")
        a(f"s_branch P1_NX{tag}")
        a.label(f"P1_GW{tag}")
        a("s_waitcnt vmcnt(0)")
        a.label(f"P1_FIN{tag}")
        a(f"s_waitcnt vmcnt({2*ndma + 1 if A_ else 0})")
        gather_check(f"P1_GA{tag}", f"P1_FOK{tag}")
        if B_: a("s_mov_b64 vcc, 0")
        a(f"buffer_load_dword v{vFV}, v{vFL}, {sr(SWS)}, 0 offen sc1")
        gather_sum()
        if B_:
            halfop(a, "v_add_f32", GAT, vT0); halfop(a, "v_add_f32", GAT + 2, vT0)
            stats_finish(GAT, GAT + 2, PUB)
            a(f"v_lshl_add_u32 v{vT0}, v{vN}, 3, s{sT0}")
            a(f"ds_write_b64 v{vT0}, {vr(PUB, 2)}")
        else:
            for e in range(2):
                split3(a, GAT + 2 * e, vT0, vT1, PUB + 2 * e, PUB + 1 + 2 * e)
                if e == 1:
                    a(f"v_lshlrev_b32 v{vT0}, 3, v{vL}")
                    a(f"v_add_u32 v{vT0}, {K1_CS + 2048}, v{vT0}")
                else:
                    a(f"s_lshl_b32 s{sT0}, s{sW}, 9")
                    a(f"s_add_u32 s{sT0}, s{sT0}, {K1_CS}")
                    a(f"v_lshl_add_u32 v{vT0}, v{vL}, 3, s{sT0}")
                a(f"ds_write_b64 v{vT0}, {vr(PUB+2*e, 2)}")
        a(f"s_branch P1_NX{tag}")
        a.label(f"P1_DONE{tag}")
        a.stamp(4); a.stamp(NSTAMP + 1, True)
        if A_: a.ldump()
        a(f"s_lshl_b32 s{sT0}, s{sTT}, 8")
        a(f"s_add_u32 s{sT0}, s{sT0}, {K1_ST}")
        a(f"v_lshl_add_u32 v{vT0}, v{vN}, 3, s{sT0}")
        a(f"v_lshlrev_b32 v{vT1}, 3, v{vL}")
        a(f"v_add_u32 v{vT1}, {K1_CS}, v{vT1}")
        a(f"ds_read_b64 {vr(ST, 2)}, v{vT0}")
        for i, t in enumerate(tiles): a(f"ds_read_b64 {vr(CSR+2*i, 2)}, v{vT1} offset:{512*t}")
        a(f"v_lshlrev_b32 v{vT2}, 4, v{vL}")
        a(f"s_waitcnt vmcnt({ndma if A_ else 0})")
        a(f"v_cmp_ne_u32 vcc, s{sXW}, v{vFV}")
        a(f"s_cmp_lt_u32 s{sCG}, 4")
        a(f"s_cselect_b32 s{sLO}, 0x80008000, 0")
        a("s_cmp_eq_u32 vcc_hi, 0")
        a(f"s_cselect_b32 s{sFAST}, {0 if opt('slow') else 1}, 0")
        if B_:
            L = a.uid("NOKV")
            a(f"v_cmp_ne_u32 vcc, s{sNON}, v{vFV}")
            a(f"s_mov_b32 s{sKOK}, 0")
            a("s_cmp_lg_u32 vcc_lo, 0")
            a(f"s_cbranch_scc1 {L}")
            kv_first(a, vT2)
            a(f"s_mov_b32 s{sKOK}, 1")
            a.label(L)
        a("s_waitcnt lgkmcnt(0)")
        a(f"v_mov_b32 v{NM}, v{ST}")
        a(f"v_mov_b32 v{NM+1}, v{ST}")
        a(f"v_mov_b32 v{ST}, v{ST+1}")
        a("s_nop 0")
        for i in range(nt):
            a(f"v_mfma_f32_32x32x8_bf16 {vr(ACC+16*i, 16)}, {vr(CSR+2*i, 2)}, {vr(NM, 2)}, {vr(ACC+16*i, 16)}")
        a(f"s_nop {12 - nt}")
        for i, t in enumerate(tiles):
            for j in range(8): a(f"v_pk_mul_f32 {vr(ACC+16*i+2*j, 2)}, {vr(ACC+16*i+2*j, 2)}, {vr(ST, 2)}")
            for j in range(8): a(f"v_cvt_pk_bf16_f32 v{P+8*i+j}, v{ACC+16*i+2*j}, v{ACC+16*i+2*j+1}")
            for j in range(8): a(f"v_pk_max_i16 v{P+8*i+j}, v{P+8*i+j}, s{sLO}")
            a(f"s_add_u32 s{sT0}, s{sOUT}, {2048*t}")
            stores(a, [f"buffer_store_dwordx4 {vr(P+8*i+4*e, 4)}, v{vT2}, {sr(SWS)}, s{sT0} offen offset:{1024*e}" for e in range(2)])
        a.stamp(5)
        a(f"s_lshl_b32 s{sT0}, s{sW}, 2")
        a(f"s_add_u32 s{sT0}, s{sT0}, s{sFL}")
        a("s_mov_b64 exec, 1")
        a("s_waitcnt vmcnt(0)")
        stores(a, [f"buffer_store_dword v{vNON}, v{vZ}, {sr(SWS)}, s{sT0} offen offset:32"])
        a("s_mov_b64 exec, -1")
        a(f"s_branch {nxt}")

    body("GA", "A", False)
    a.label("P1_GB")
    body("GB", "B", False)
    a.label("P1_KA0")
    a(f"v_lshlrev_b32 v{vD}, 4, v{vL}")
    a(f"s_lshl_b32 s{sSO}, s{sCC}, 2")
    a(f"s_add_u32 s{sSO}, s{sSO}, s{sW}")
    a(f"s_mul_i32 s{sSO}, s{sSO}, 640")
    a(f"s_mov_b32 s{sSTEP}, 2560")
    a(f"s_lshl_b32 s{sM0}, s{sW}, 10")
    a("s_waitcnt lgkmcnt(0)")
    srd(a, SA, pWK, 640 * 40)
    srd(a, SB, pWV, 640 * 40)
    first_chunks("A", True)
    body("KA", "A", True)
    a.label("P1_KB")
    body("KB", "B", True)

def kdesc(name, nv, ns=102):
    return f""".amdhsa_kernel {name}
  .amdhsa_next_free_vgpr {nv}
  .amdhsa_next_free_sgpr {ns}
  .amdhsa_accum_offset {(nv+3)//4*4}
  .amdhsa_group_segment_fixed_size 0
  .amdhsa_kernarg_size 88
  .amdhsa_user_sgpr_count 2
  .amdhsa_user_sgpr_kernarg_segment_ptr 1
  .amdhsa_system_sgpr_workgroup_id_x 1
.end_amdhsa_kernel
"""

def build():
    from g7p2 import gen_ffn, gen_att
    hdr = open("cdna_kernels/" + NAME + ".s.ref").read().split("; Override launch")[0]
    out = hdr
    out += f"; @launch grid=(256,1,1) block=(512,1,1) lds={LDS_BYTES}\n"
    out += '.amdgcn_target "amdgcn-amd-amdhsa--gfx950"\n.text\n'
    a = Asm()
    k = NAME + "_kernel"
    a.raw(f".globl {k}\n.p2align 8\n.type {k},@function")
    a.label(k)
    gen_p1(a)
    a.p2 = True
    a.label("P2_ATT")
    gen_att(a)
    a.label("P2_FFN")
    gen_ffn(a)
    for L, lines, D in a.tail:
        a.label(L)
        for l in lines: a(l)
        a(f"s_branch {D}")
    a.label("L_END")
    a("s_endpgm")
    out += a.text()
    out += '.section .rodata,"a"\n.p2align 6\n' + kdesc(k, 256)
    return out

if __name__ == "__main__":
    path = sys.argv[1] if len(sys.argv) > 1 and not sys.argv[1].startswith("--") else "cdna_kernels/" + NAME + ".s"
    open(path, "w").write(build())
```

```python
import sys, struct, math

NAME = "parallel_sum__grouped_kv_mqa__dense_activation_relu__prompt"
def opt(name): return ("--" + name) in sys.argv
def optv(name, d): return int(sys.argv[sys.argv.index("--" + name) + 1]) if opt(name) else d
G_TSTRIDE = 75 * 2048
WS_G = 0
WS_KV = 64 * G_TSTRIDE
KV_REC = 3072
WS_O = (WS_KV + 66 * KV_REC + 4095) // 4096 * 4096
WS_RP = WS_O + 64 * 40 * 1024
WS_CP = WS_RP + 64 * 5120
WS_F1 = WS_CP + 64 * 5120
WS_F2 = WS_F1 + 256 * 128
WS_XC = WS_F2 + 256 * 128
WS_PROF = WS_XC + 8 * 128
PROFILE = opt("prof")
NSTAMP = 18
WS_END = WS_PROF + (256 * 8 * 256 if PROFILE else 0)
OOB = 0x80000000
QSCALE = math.log2(math.e) / math.sqrt(20.0)
SPIN = 0x40000
NFIRST = optv("nfirst", 1)


def f32bits(x): return struct.unpack("<I", struct.pack("<f", x))[0]

class Asm:
    def __init__(self): self.lines = []; self.n = 0; self.tail = []; self.p2 = False
    def __call__(self, s): self.lines.append("    " + s)
    def label(self, s): self.lines.append(s + ":")
    def raw(self, s): self.lines.append(s)
    def c(self, s): self.lines.append("    ; " + s)
    def uid(self, p): self.n += 1; return f"{p}_{self.n}"
    def stamp(self, i, cyc=False):
        if opt("st") and self.p2 and i in (14, 15, 16): return
        if PROFILE:
            self(f"s_memtime s[100:101]" if cyc else "s_memrealtime s[100:101]")
            self("s_waitcnt lgkmcnt(0)")
            self(f"s_mov_b32 s{64+i}, s100")
    def lstamp(self, slane, v=14):
        if PROFILE and opt("iter"):
            self("s_memrealtime s[100:101]")
            self("s_waitcnt lgkmcnt(0)")
            self(f"s_mov_b32 m0, {slane}" if isinstance(slane, str) else f"s_mov_b32 m0, s{slane}")
            self(f"v_writelane_b32 v{v}, s100, m0")
    def ldump(self, v=14):
        if PROFILE and opt("iter"):
            self(f"s_lshl_b32 s100, s2, 3")
            self(f"s_add_u32 s100, s100, s{sW}")
            self(f"s_lshl_b32 s100, s100, 8")
            self(f"s_add_u32 s100, s100, {WS_PROF+128}")
            self("v_lshlrev_b32 v15, 2, v1")
            self("s_mov_b64 exec, 0xffff")
            self(f"buffer_store_dword v{v}, v15, s[{SWS}:{SWS+3}], s100 offen")
            self("s_mov_b64 exec, -1")
            self("s_waitcnt vmcnt(0)")
    def end(self):
        if PROFILE:
            self("s_waitcnt vmcnt(0)")
            self.stamp(NSTAMP - 1)
            self(f"s_lshl_b32 s3, s2, 3")
            self(f"s_add_u32 s3, s3, s{sW}")
            self(f"s_lshl_b32 s3, s3, 8")
            self(f"s_add_u32 s3, s3, {WS_PROF}")
            self("s_mov_b64 exec, 1")
            self("v_mov_b32 v1, 0")
            for i in range(NSTAMP + 4):
                self(f"v_mov_b32 v2, s{64+i}")
                self(f"buffer_store_dword v2, v1, s[{SWS}:{SWS+3}], s3 offen offset:{4*i}")
        self("s_endpgm")
    def text(self): return "\n".join(self.lines) + "\n"

def vr(b, n=1): return f"v{b}" if n == 1 else f"v[{b}:{b+n-1}]"
def sr(b, n=4): return f"s{b}" if n == 1 else f"s[{b}:{b+n-1}]"
def srd(a, d, p, size):
    a(f"s_mov_b32 s{d}, s{p}")
    a(f"s_mov_b32 s{d+1}, s{p+1}")
    a(f"s_mov_b32 s{d+2}, {size}")
    a(f"s_mov_b32 s{d+3}, 0x00020000")
def csel(a, d, t, f):
    a(f"s_mov_b32 s{d}, {f}")
    a(f"s_cmov_b32 s{d}, {t}")
def split3(a, src, t0, t1, d0, d1):
    a(f"v_and_b32 v{t0}, 0xffff0000, v{src}")
    a(f"v_sub_f32 v{t1}, v{src}, v{t0}")
    a(f"v_lshrrev_b32 v{d0}, 16, v{src}")
    a(f"v_and_b32 v{t0}, 0xffff0000, v{t1}")
    a(f"v_or_b32 v{d0}, v{d0}, v{t0}")
    a(f"v_sub_f32 v{t1}, v{t1}, v{t0}")
    a(f"v_lshrrev_b32 v{d1}, 16, v{t1}")
def halfop(a, op, r, t):
    a(f"v_mov_b32 v{t}, v{r}")
    a("s_nop 1")
    a(f"v_permlane32_swap_b32 v{t}, v{r}")
    a(f"{op} v{r}, v{r}, v{t}")
def umax(a, dst, regs):
    regs = list(regs)
    a(f"v_max3_u32 v{dst}, v{regs[0]}, v{regs[1]}, v{regs[2]}")
    r = regs[3:]
    while len(r) >= 2:
        a(f"v_max3_u32 v{dst}, v{dst}, v{r[0]}, v{r[1]}"); r = r[2:]
    if r: a(f"v_max_u32 v{dst}, v{dst}, v{r[0]}")

SWS, SA, SB, SX, SDBG = 4, 8, 12, 16, 20
sSI = 3
sW, sNON = 24, 25
sRB, sCG, sTT = 26, 27, 28
sQ = sTT
sT0, sT1, sT2 = 29, 30, 31
pX, pWQ, pWK, pWV, pWO, pW1, pW2, pOUT, pDBG, pWS = 32, 34, 36, 38, 40, 44, 46, 48, 50, 52
sWST, sSO, sSTEP, sM0, sC, sDEL, sCC, sOUT, sFL, sQS = range(54, 64)
sT, sHG, sG, sOB = 86, 87, 92, 93
SW4 = 88
sF2, sPUBI, sT3, sFAST, sST, sSPIN = 94, 95, 96, 97, 98, 99
sXW, sLO = 53, 52
sRLX = 50
sWOR = 38
sPB = 51
sPm, sBAD, sPt = 34, 38, 42
sOm, sOt, sKV, sTGT = 40, 41, 46, 47
sMODE, sCNT, sKOK, sFQ = 8, 9, 10, 11
sCOL, sHO, sFC = 54, 59, 60

def spin_tail(a, L):
    a(f"s_sub_u32 s{sSPIN}, s{sSPIN}, 1")
    a(f"s_cbranch_scc0 {L}")

def poll(a, vaddr, vtmp, soff, sleep=1):
    L, D = a.uid("POLL"), a.uid("POLLED")
    a(f"s_mov_b32 s{sSPIN}, {SPIN}")
    a.label(L)
    a(f"buffer_load_dword v{vtmp}, v{vaddr}, {sr(SWS)}, {soff} offen sc1")
    a("s_waitcnt vmcnt(0)")
    a(f"v_cmp_ne_u32 vcc, s{sNON}, v{vtmp}")
    a(f"s_cbranch_vccz {D}")
    if sleep: a(f"s_sleep {sleep}")
    spin_tail(a, L)
    a.label(D)

def stores(a, lines):
    L, D = a.uid("SLOW"), a.uid("STD")
    a(f"s_cmp_eq_u32 s{sFAST}, 0")
    a(f"s_cbranch_scc1 {L}")
    for l in lines: a(l)
    a.label(D)
    a.tail.append((L, [l + (" sc1" if l.startswith("buffer_store") else "") for l in lines], D))

def check_fast(a, vaddr, vtmp):
    L = a.uid("CF")
    a(f"s_cmp_lg_u32 s{sFAST}, 0")
    a(f"s_cbranch_scc1 {L}")
    a(f"s_and_b32 s{sT0}, s2, 7")
    a(f"s_lshl_b32 s{sT0}, s{sT0}, 7")
    a(f"s_add_u32 s{sT0}, s{sT0}, {WS_XC}")
    a(f"v_and_b32 v{vaddr}, 31, v1")
    a(f"v_lshlrev_b32 v{vaddr}, 2, v{vaddr}")
    a(f"buffer_load_dword v{vtmp}, v{vaddr}, {sr(SWS)}, s{sT0} offen sc1")
    a("s_waitcnt vmcnt(0)")
    a(f"v_cmp_ne_u32 vcc, s{sXW}, v{vtmp}")
    a("s_cmp_eq_u64 vcc, 0")
    a(f"s_cselect_b32 s{sFAST}, {0 if opt('slow') else 1}, 0")
    a.label(L)

K1_SLOT = 36864
K1_XOFF = 20480
K1_CS = 151552
K1_ST = K1_CS + 2560
WO_STAGE = [83968, 110592, 131072]
L_VT = 104448
vWD = 240
RING_ST = 20992
L_OP = 4 * RING_ST
L_MREC = L_OP + 73728
L_CNT = L_MREC + 2048
LDS_BYTES = L_CNT + 64

aS = [16, 32, 48, 64]
aO = lambda i: 80 + 12 * i
aQM = lambda i: 180 + 4 * i
aQT = lambda i: 212 + 2 * i
aKM = [228, 242]; aKT = [232, 246]; aV0 = [234, 248]; aV1 = [238, 252]
avV, avKT = 14, 15
AP = 128

def ldkm(a, b, va): a(f"buffer_load_dwordx4 {vr(aKM[b], 4)}, v{va}, {sr(SWS)}, s{sKV} offen sc1")
def ldkt(a, b): a(f"buffer_load_dwordx2 {vr(aKT[b], 2)}, v{avKT}, {sr(SWS)}, s{sKV} offen sc1")
def ldv(a, u, b): a(f"buffer_load_dwordx4 {vr((aV0, aV1)[u][b], 4)}, v{avV}, {sr(SWS)}, s{sKV} offen" + (" offset:768" if u else "") + " sc1")
def kv_first(a, va):
    a(f"s_mul_i32 s{sKV}, s{sQ}, {16*KV_REC}")
    a(f"s_add_u32 s{sKV}, s{sKV}, {WS_KV}")
    ldkm(a, 0, va); ldkt(a, 0); ldv(a, 0, 0); ldv(a, 1, 0)
    a(f"s_add_u32 s{sKV}, s{sKV}, {KV_REC}")
    ldkm(a, 1, va); ldkt(a, 1)
def zero16(a, r, z):
    a(f"v_mfma_f32_32x32x8_bf16 {vr(r, 16)}, {vr(z, 2)}, {vr(z, 2)}, 0")
def att_zero(a):
    z = aV0[1]
    for r in range(z, z + 8, 2): a(f"v_mov_b64 {vr(r, 2)}, 0")
    for r in range(176, 180, 2): a(f"v_mov_b64 {vr(r, 2)}, 0")
    for r in range(aS[3], 176, 16): zero16(a, r, z)

def gen_p1(a):
    vL, vN, vH, vT0, vT1, vT2, vZ = 1, 2, 3, 4, 5, 6, 7
    vX, vD = 8, 16
    vNON, vROW, vFL, vFV = 21, 22, 23, 22
    vSA = 24
    vG16, vC4 = 26, 27
    FB = [28, 32]
    FA = [36, 48]
    PUB = 60
    a(f"s_cmp_ge_u32 s2, 256")
    a("s_cbranch_scc1 L_END")
    a("s_load_dwordx16 s[32:47], s[0:1], 0")
    a("s_load_dwordx4 s[48:51], s[0:1], 64")
    a("s_load_dwordx2 s[52:53], s[0:1], 80")
    a("s_memrealtime s[100:101]")
    a(f"v_lshrrev_b32 v{vT0}, 6, v0")
    a(f"v_and_b32 v{vL}, 63, v0")
    a(f"v_readfirstlane_b32 s{sW}, v{vT0}")
    rbits = optv("rbits", 1)
    cb = rbits - 1
    a(f"s_bfe_u32 s{sRB}, s2, {((3-cb) << 16) | cb:#x}")
    a(f"s_lshl_b32 s{sRB}, s{sRB}, {rbits}")
    a(f"s_bfe_u32 s{sT0}, s2, {(rbits << 16) | 3:#x}")
    a(f"s_add_u32 s{sRB}, s{sRB}, s{sT0}")
    a(f"s_and_b32 s{sCG}, s2, {(1 << cb) - 1}")
    a(f"s_lshl_b32 s{sCG}, s{sCG}, {5-rbits}")
    a(f"s_lshr_b32 s{sT0}, s2, {3+rbits}")
    a(f"s_add_u32 s{sCG}, s{sCG}, s{sT0}")
    a(f"s_and_b32 s{sTT}, s{sW}, 3")
    a(f"s_mul_i32 s{sST}, s{sRB}, 3")
    a(f"s_add_u32 s{sST}, s{sST}, s{sCG}")
    a(f"s_mul_i32 s{sT0}, s{sST}, 26")
    a(f"s_lshr_b32 s{sT0}, s{sT0}, 8")
    a(f"s_mul_i32 s{sT0}, s{sT0}, 10")
    a(f"s_sub_u32 s{sST}, s{sST}, s{sT0}")
    a(f"s_mul_i32 s{sCC}, s{sST}, 86")
    a(f"s_lshr_b32 s{sCC}, s{sCC}, 8")
    a(f"s_min_u32 s{sCC}, s{sCC}, 2")
    a(f"s_mul_i32 s{sCC}, s{sCC}, 3")
    a(f"s_sub_u32 s{sSI}, s{sST}, s{sCC}")
    a(f"s_lshl_b32 s{sT0}, s{sRB}, 2")
    a(f"s_add_u32 s{sT3}, s{sT0}, s{sTT}")
    a(f"s_cmp_lt_u32 s{sW}, 4")
    a("s_cbranch_scc1 P1_A")

    def piece(role, kv, p):
        if role == "A" and kv:
            a(f"s_add_u32 m0, s{sM0}, {4096*p}")
            a("s_nop 0")
            a(f"buffer_load_dwordx4 v{vD}, {sr(SA if p == 0 else SB)}, s{sSO} offen lds")
        else:
            a(f"s_add_u32 m0, s{sM0}, {1024*p}")
            a("s_nop 0")
            a(f"buffer_load_dwordx4 v{vD+p}, {sr(SX if role == 'B' else SA)}, s{sSO} offen lds")
    def first_chunks(role, kv):
        ndma = 4 if role == "B" else (2 if kv else 5)
        if PROFILE: a("s_mov_b32 s64, s100")
        a.stamp(1)
        for c in range(NFIRST):
            for p in range(ndma): piece(role, kv, p)
            a(f"s_add_u32 s{sSO}, s{sSO}, s{sSTEP}")
            a(f"s_add_u32 s{sM0}, s{sM0}, {K1_SLOT}")
            if not opt("nofb"): a("s_barrier")

    a(f"s_lshl_b32 s{sT0}, s{sT3}, 5")
    a(f"v_lshrrev_b32 v{vT0}, 3, v{vL}")
    a(f"v_add_u32 v{vT0}, s{sT0}, v{vT0}")
    a(f"v_mul_u32_u24 v{vT0}, 1280, v{vT0}")
    a(f"v_lshrrev_b32 v{vT1}, 4, v{vL}")
    a(f"v_and_b32 v{vT2}, 7, v{vL}")
    a(f"v_xor_b32 v{vT1}, v{vT1}, v{vT2}")
    a(f"v_lshl_add_u32 v{vD}, v{vT1}, 4, v{vT0}")
    a(f"v_xor_b32 v{vT1}, 4, v{vT1}")
    a(f"v_lshl_add_u32 v{vD+1}, v{vT1}, 4, v{vT0}")
    a(f"v_add_u32 v{vD+1}, {8*1280}, v{vD+1}")
    a(f"v_add_u32 v{vD+2}, {16*1280}, v{vD}")
    a(f"v_add_u32 v{vD+3}, {16*1280}, v{vD+1}")
    a(f"s_lshl_b32 s{sSO}, s{sCC}, 7")
    a(f"s_mov_b32 s{sSTEP}, 128")
    a(f"s_lshl_b32 s{sM0}, s{sTT}, 12")
    a(f"s_add_u32 s{sM0}, s{sM0}, {K1_XOFF}")
    a("s_waitcnt lgkmcnt(0)")
    srd(a, SX, pX, 2048 * 1280)
    first_chunks("B", False)
    a(f"s_cmp_eq_u32 s{sCG}, 15")
    a("s_cbranch_scc1 P1_KB")
    a("s_branch P1_GB")
    a.label("P1_A")
    a(f"s_cmp_eq_u32 s{sCG}, 15")
    a("s_cbranch_scc1 P1_KA0")
    a(f"s_sub_u32 s{sT0}, s{sCG}, 4")
    a(f"s_cmp_lt_u32 s{sCG}, 4")
    csel(a, sWST, 1280, 3456)
    a(f"s_cselect_b32 s{sT0}, s{sCG}, s{sT0}")
    a(f"s_mul_i32 s{sT0}, s{sT0}, 320")
    a(f"s_lshl_b32 s{sT1}, s{sCC}, 2")
    a(f"s_add_u32 s{sT1}, s{sT1}, s{sW}")
    a(f"s_lshl_b32 s{sT1}, s{sT1}, 4")
    a(f"s_mul_i32 s{sT1}, s{sT1}, s{sWST}")
    a(f"s_add_u32 s{sSO}, s{sT0}, s{sT1}")
    a(f"s_sub_u32 s{sT2}, s{sWST}, 320")
    for p in range(5):
        a(f"v_add_u32 v{vT0}, {64*p}, v{vL}")
        a(f"v_mul_u32_u24 v{vT1}, 3277, v{vT0}")
        a(f"v_lshrrev_b32 v{vT1}, 16, v{vT1}")
        a(f"v_lshlrev_b32 v{vT0}, 4, v{vT0}")
        a(f"v_mad_u32_u24 v{vD+p}, v{vT1}, s{sT2}, v{vT0}")
    a(f"s_lshl_b32 s{sSTEP}, s{sWST}, 6")
    a(f"s_mul_i32 s{sM0}, s{sW}, 5120")
    a(f"s_cmp_lt_u32 s{sCG}, 4")
    a("s_waitcnt lgkmcnt(0)")
    a(f"s_cselect_b32 s{SA}, s{pWQ}, s{pW1}")
    a(f"s_cselect_b32 s{SA+1}, s{pWQ+1}, s{pW1+1}")
    csel(a, SA + 2, 640 * 640 * 2, 640 * 1728 * 2)
    a(f"s_mov_b32 s{SA+3}, 0x00020000")
    first_chunks("A", False)

    def tr_addr(dst, tile):
        a(f"s_cmp_lt_u32 s{sCG}, 4")
        if tile == 4:
            a(f"s_cselect_b32 s{sT0}, 32, 0x100")
            a(f"s_cselect_b32 s{sT1}, 160, 32")
            a(f"s_cselect_b32 s{sT2}, 40, 8")
            a(f"v_mad_u32_u24 v{dst}, v{vC4}, s{sT2}, v{vROW}")
        else:
            a(f"s_cselect_b32 s{sT1}, 40, 32")
            if isinstance(tile, tuple):
                a(f"s_lshl_b32 s{sT0}, s{sT1}, 1")
                a(f"s_mul_i32 s{sT0}, s{sT0}, s{tile[1]}")
            else:
                a(f"s_mul_i32 s{sT0}, s{sT1}, {2*tile}")
            a(f"v_lshl_add_u32 v{dst}, v{vC4}, 3, v{vROW}")
        a(f"v_mad_u32_u24 v{dst}, v{vG16}, s{sT1}, v{dst}")
        a(f"v_add_u32 v{dst}, s{sT0}, v{dst}")

    def body(tag, role, kv):
        A_, B_ = role == "A", role == "B"
        nt = 1 if kv else (3 if A_ else 2)
        tiles = [0] if kv else ([0, 1, 2] if A_ else [3, 4])
        sstr, rstr = (1024, 40) if kv else (5120, 320)
        ndma = 4 if B_ else (2 if kv else 5)
        vTR = 12 if B_ else 112
        ACC, P, GAT = (64, AP, 176) if A_ else (180, 212, 228)
        ST, NM, CSR = (116, 118, 120) if A_ else ((48, 50, 56) if kv else (44, 46, 56))
        if kv: GAT = 160 if A_ else 28
        ONE = 126 if A_ else 24
        D0, D1, D2 = (P, P + 4, P + 8)
        nxt = "P2_FFN" if A_ else "P2_ATT"
        def stats_finish(SU, SQ, S):
            a(f"v_mul_f32 v{SU}, {f32bits(1.0/640):#x}, v{SU}")
            a(f"v_mul_f32 v{SQ}, {f32bits(1.0/640):#x}, v{SQ}")
            a(f"v_fma_f32 v{SQ}, -v{SU}, v{SU}, v{SQ}")
            a(f"v_max_f32 v{SQ}, 0, v{SQ}")
            a(f"v_cvt_pk_bf16_f32 v{S}, -v{SU}, -v{SU}")
            a(f"v_cvt_pk_bf16_f32 v{SQ}, v{SQ}, v{SQ}")
            a(f"v_and_b32 v{SQ}, 0xffff0000, v{SQ}")
            a(f"v_add_f32 v{SQ}, {f32bits(1e-5):#x}, v{SQ}")
            a(f"v_cvt_pk_bf16_f32 v{SQ}, v{SQ}, v{SQ}")
            a(f"v_and_b32 v{SQ}, 0xffff0000, v{SQ}")
            a(f"v_sqrt_f32 v{SQ}, v{SQ}")
            a(f"s_lshl_b32 s{sT0}, s{sTT}, 8")
            a(f"v_cvt_pk_bf16_f32 v{SQ}, v{SQ}, v{SQ}")
            a(f"v_and_b32 v{SQ}, 0xffff0000, v{SQ}")
            a(f"v_rcp_f32 v{SQ}, v{SQ}")
            a(f"s_add_u32 s{sT0}, s{sT0}, {K1_ST}")
            a(f"v_mul_f32 v{S+1}, s{sQS}, v{SQ}")
        def get_nonce():
            L, D = a.uid("NON"), a.uid("NOND")
            a(f"s_mov_b32 s{sSPIN}, {SPIN}")
            a.label(L)
            a(f"v_readfirstlane_b32 s{sNON}, v{vNON}")
            a(f"s_cmp_lg_u32 s{sNON}, 0")
            a(f"s_cbranch_scc1 {D}")
            a(f"buffer_load_dword v{vNON}, v{vZ}, {sr(SDBG)}, 0 offen sc1")
            a("s_waitcnt vmcnt(0)")
            spin_tail(a, L)
            a.label(D)
            a(f"s_getreg_b32 s{sXW}, hwreg(HW_REG_XCC_ID, 0, 4)")
            a(f"s_lshl_b32 s{sXW}, s{sXW}, 1")
            a(f"s_xor_b32 s{sXW}, s{sXW}, s{sNON}")
            if A_:
                L = a.uid("XW")
                a(f"s_cmp_lg_u32 s{sW}, 0")
                a(f"s_cbranch_scc1 {L}")
                a(f"s_and_b32 s{sT0}, s2, 7")
                a(f"s_lshl_b32 s{sT0}, s{sT0}, 5")
                a(f"s_lshr_b32 s{sT1}, s2, 3")
                a(f"s_add_u32 s{sT0}, s{sT0}, s{sT1}")
                a(f"s_lshl_b32 s{sT0}, s{sT0}, 2")
                a(f"s_add_u32 s{sT0}, s{sT0}, {WS_XC}")
                a(f"v_mov_b32 v{vT0}, s{sXW}")
                a("s_mov_b64 exec, 1")
                a(f"buffer_store_dword v{vT0}, v{vZ}, {sr(SWS)}, s{sT0} offen sc1")
                a("s_mov_b64 exec, -1")
                a.label(L)
        def m4(d, x, y):
            a(f"v_mfma_f32_4x4x4_16b_bf16 {vr(d, 4)}, {vr(x, 2)}, {vr(y, 2)}, {vr(d, 4)}")
        def diag(dst, d):
            a(f"v_cmp_eq_u32 vcc, 1, v{vC4}")
            a(f"v_cmp_eq_u32 s[100:101], 3, v{vC4}")
            a("s_nop 0")
            a(f"v_cndmask_b32 v{d}, v{d}, v{d+1}, vcc")
            a(f"v_cmp_lt_u32 vcc, 1, v{vC4}")
            a(f"v_cndmask_b32 v{d+2}, v{d+2}, v{d+3}, s[100:101]")
            a("s_nop 0")
            a(f"v_cndmask_b32 v{dst}, v{d}, v{d+2}, vcc")
        def gather():
            a(f"v_mul_u32_u24 v{vT0}, 2560, v{vH}")
            a(f"v_lshl_add_u32 v{vT0}, v{vN}, 4, v{vT0}")
            for j in range(5): a(f"buffer_load_dwordx4 {vr(GAT+4*j, 4)}, v{vT0}, {sr(SWS)}, s{sPB} offen offset:{512*j} sc1")
        def gather_check(again, ok):
            a(f"v_xor_b32 v{vT1}, s{sNON}, v{GAT+1}")
            for j in range(1, 10):
                a(f"v_bitop3_b32 v{vT1}, v{GAT+2*j+1}, s{sNON}, v{vT1} bitop3:0xbe")
            a(f"v_cmp_ne_u32 vcc, 0, v{vT1}")
            a(f"s_cbranch_vccz {ok}")
            a("s_sleep 2")
            spin_tail(a, again)
            a.label(ok)
        def gather_sum():
            for j in range(1, 5):
                a(f"v_add_f32 v{GAT}, v{GAT}, v{GAT+4*j}")
                a(f"v_add_f32 v{GAT+2}, v{GAT+2}, v{GAT+4*j+2}")
        def advance():
            a(f"s_mul_i32 s{sT0}, s{sSTEP}, -9")
            a(f"s_add_u32 s{sCC}, s{sCC}, 1")
            a(f"s_cmp_eq_u32 s{sCC}, 10")
            a(f"s_cselect_b32 s{sT0}, s{sT0}, s{sSTEP}")
            a(f"s_add_u32 s{sSO}, s{sSO}, s{sT0}")
            a(f"s_and_b32 s{sT0}, s{sC}, 3")
            csel(a, sT1, K1_SLOT, -3*K1_SLOT)
            a(f"s_add_u32 s{sM0}, s{sM0}, s{sT1}")
            a(f"s_cmp_eq_u32 s{sT0}, 3")
            csel(a, sDEL, -3*K1_SLOT, K1_SLOT)
            for s in range(4): a(f"v_add_u32 v{vX+s}, s{sDEL}, v{vX+s}")
            for i in range(nt): a(f"v_add_u32 v{vTR+i}, s{sDEL}, v{vTR+i}")
        def stream_off():
            if B_: a(f"s_mov_b32 s{SX+2}, 0")
            else:
                a(f"s_mov_b32 s{SA+2}, 0")
                if kv: a(f"s_mov_b32 s{SB+2}, 0")
        def third(only=None):
            for c in range(NFIRST, 3):
                if only is not None and c != only: continue
                for p in range(ndma): piece(role, kv, p)
                a(f"s_add_u32 s{sSO}, s{sSO}, s{sSTEP}")
                a(f"s_add_u32 s{sM0}, s{sM0}, {K1_SLOT}")
                if c == 1 and opt("b1") and not kv: a("s_barrier")
            if only != 1: a(f"s_add_u32 s{sCC}, s{sCC}, 3")
        D2 = optv("d2", 1)
        if opt("st"): a.stamp(14)
        if D2 == 0 or kv: third()
        srd(a, SWS, pWS, WS_END)
        srd(a, SDBG, pDBG, 256)
        a(f"v_mov_b32 v{vZ}, 0")
        if A_ and not kv:
            L = a.uid("NONCE")
            a(f"s_or_b32 s{sT0}, s2, s{sW}")
            a(f"s_cbranch_scc1 {L}")
            if PROFILE: a("s_or_b32 s100, s65, 1")
            else: a("s_or_b32 s100, s100, 1")
            a(f"v_mov_b32 v{vT0}, s100")
            a(f"buffer_store_dword v{vT0}, v{vZ}, {sr(SDBG)}, 0 offen sc1")
            a.label(L)
        TLB = opt("tlb")
        if B_ and TLB and not kv:
            a(f"v_lshlrev_b32 v{vT0}, 21, v{vL}")
            a("s_mov_b64 exec, 0x7f")
            a(f"buffer_load_dword v{vNON}, v{vT0}, {sr(SWS)}, 0 offen")
            a("s_mov_b64 exec, -1")
        a(f"s_and_b32 s{sT}, s2, 7")
        a(f"s_lshl_b32 s{sT}, s{sT}, 3")
        a(f"s_lshr_b32 s{sT0}, s2, 5")
        a(f"s_add_u32 s{sT}, s{sT}, s{sT0}")
        a(f"s_bfe_u32 s{sHG}, s2, 0x20003")
        a(f"s_mul_i32 s{sG}, s{sT}, {G_TSTRIDE}")
        if kv and A_:
            srd(a, SW4, pWO, 640 * 1280)
            a(f"v_lshlrev_b32 v{vT0}, 7, v{vL}")
            a(f"s_mul_i32 s{sT1}, s{sT3}, {100*128}")
            a(f"buffer_load_dword v230, v{vT0}, {sr(SW4)}, s{sT1} offen")
            a(f"s_add_u32 s{sT1}, s{sT1}, {36*128}")
            a(f"buffer_load_dword v230, v{vT0}, {sr(SW4)}, s{sT1} offen")
        a(f"s_mul_i32 s{sOB}, s{sT}, {32*1280}")
        a(f"s_mul_i32 s{sT0}, s{sHG}, 320")
        a(f"s_add_u32 s{sOB}, s{sOB}, s{sT0}")
        if A_:
            a(f"s_mul_i32 s{sWOR}, s{sW}, {160*1280}")
            a(f"s_add_u32 s{sWOR}, s{sWOR}, s{sT0}")
            a(f"s_add_u32 s{sWOR}, s{sWOR}, {100*1280}")
            for p in range(5):
                a(f"v_add_u32 v{vT0}, {64*p}, v{vL}")
                a(f"v_mul_u32_u24 v{vT1}, 3277, v{vT0}")
                a(f"v_lshrrev_b32 v{vT1}, 16, v{vT1}")
                a(f"v_lshlrev_b32 v{vT0}, 4, v{vT0}")
                a(f"v_mul_u32_u24 v{vWD+p}, 960, v{vT1}")
                a(f"v_add_u32 v{vWD+p}, v{vWD+p}, v{vT0}")
        a(f"s_lshl_b32 s{sF2}, s{sT}, 2")
        a(f"s_add_u32 s{sF2}, s{sF2}, s{sHG}")
        a(f"s_lshl_b32 s{sF2}, s{sF2}, 7")
        a(f"s_add_u32 s{sF2}, s{sF2}, {WS_F2}")
        a(f"v_mov_b32 v{ONE}, 0x3f803f80")
        a(f"v_mov_b32 v{ONE+1}, 0x3f803f80")
        for j in range(0, 4, 2): a(f"v_mov_b64 {vr(PUB+j, 2)}, 0")
        a(f"s_max_u32 s{sPUBI}, s{sSI}, 1")
        a(f"s_lshl_b32 s{sRLX}, 6, s{sPUBI}")
        a(f"s_or_b32 s{sRLX}, s{sRLX}, 1")
        a(f"v_and_b32 v{vN}, 31, v{vL}")
        a(f"v_lshrrev_b32 v{vH}, 5, v{vL}")
        a(f"v_bfe_u32 v{vT0}, v{vL}, 1, 3")
        a(f"v_xor_b32 v{vT0}, v{vT0}, v{vH}")
        a(f"s_lshl_b32 s{sT0}, s{sTT}, 12")
        a(f"s_add_u32 s{sT0}, s{sT0}, {K1_XOFF}")
        a(f"v_lshl_add_u32 v{vT1}, v{vN}, 7, s{sT0}")
        for s in range(4):
            a(f"v_xor_b32 v{vT2}, {2*s}, v{vT0}")
            a(f"v_lshl_add_u32 v{vX+s}, v{vT2}, 4, v{vT1}")
        a(f"v_bfe_u32 v{vT0}, v{vL}, 2, 2")
        a(f"v_lshl_add_u32 v{vROW}, v{vH}, 3, v{vT0}")
        a(f"v_bfe_u32 v{vG16}, v{vL}, 4, 1")
        a(f"v_and_b32 v{vC4}, 3, v{vL}")
        a(f"s_mul_i32 s{sOUT}, s{sT3}, {G_TSTRIDE}")
        a(f"s_mul_i32 s{sT0}, s{sCG}, 10240")
        a(f"s_add_u32 s{sOUT}, s{sOUT}, s{sT0}")
        a(f"s_cmp_lt_u32 s{sCG}, 4")
        a(f"s_cselect_b32 s{sQS}, {f32bits(QSCALE):#x}, 1.0")
        a(f"s_lshl_b32 s{sFL}, s{sRB}, 4")
        a(f"s_add_u32 s{sFL}, s{sFL}, s{sCG}")
        a(f"s_lshl_b32 s{sFL}, s{sFL}, 7")
        a(f"s_add_u32 s{sFL}, s{sFL}, {WS_F1}")
        if kv:
            a(f"v_lshl_add_u32 v{vT0}, v{vG16}, 2, v{vC4}")
            a(f"v_min_u32 v{vT0}, 4, v{vT0}")
            a(f"v_mul_u32_u24 v{vROW}, 40, v{vROW}")
            a(f"v_lshl_add_u32 v{vTR}, v{vT0}, 3, v{vROW}")
            if B_: a(f"v_add_u32 v{vTR}, 4096, v{vTR}")
        else:
            a(f"v_mul_u32_u24 v{vROW}, 320, v{vROW}")
            for i, t in enumerate(tiles): tr_addr(vTR + i, t)
            if A_:
                tr_addr(vSA, ("s", sW)); tr_addr(vSA + 1, 4)
                a(f"s_mul_i32 s{sT0}, s{sSI}, {K1_SLOT}")
                a(f"v_add_u32 v{vSA}, s{sT0}, v{vSA}")
                a(f"v_add_u32 v{vSA+1}, s{sT0}, v{vSA+1}")
        for i in range(nt): zero16(a, ACC + 16 * i, PUB)
        zero16(a, P, PUB)
        if A_ and kv:
            a(f"s_mul_i32 s{sPB}, s{sT3}, 5120")
            a(f"s_add_u32 s{sPB}, s{sPB}, {WS_RP}")
        elif A_:
            a(f"s_lshl_b32 s{sPB}, s{sCG}, 2")
            a(f"s_add_u32 s{sPB}, s{sPB}, s{sW}")
            a(f"s_mul_i32 s{sPB}, s{sPB}, 5120")
            a(f"s_add_u32 s{sPB}, s{sPB}, {WS_CP}")
        else:
            a(f"s_mul_i32 s{sPB}, s{sT3}, 5120")
            a(f"s_add_u32 s{sPB}, s{sPB}, {WS_RP}")
            srd(a, SB, pOUT, 2048 * 1280)
            att_zero(a)
            a(f"v_mul_u32_u24 v{avV}, 384, v{vH}")
            a(f"v_lshl_add_u32 v{avV}, v{vN}, 4, v{avV}")
            a(f"v_add_u32 v{avV}, 1024, v{avV}")
            a(f"v_mov_b32 v{vT2}, {OOB:#x}")
            a(f"v_cmp_gt_u32 vcc, 21, v{vN}")
            a(f"v_min_u32 v{avKT}, 32, v{vL}")
            a(f"v_lshlrev_b32 v{avKT}, 3, v{avKT}")
            a(f"v_cndmask_b32 v{avV}, v{vT2}, v{avV}, vcc")
            a(f"v_add_u32 v{avKT}, 2560, v{avKT}")
            a(f"s_mul_i32 s{sT2}, s{sHG}, 10240")
            a(f"s_add_u32 s{sT2}, s{sT2}, s{sG}")
            for j in range(4):
                a(f"s_add_u32 s{sT0}, s{sQ}, {j}")
                a(f"s_and_b32 s{sT0}, s{sT0}, 3")
                a(f"s_lshl_b32 s{sPm+j}, s{sT0}, 11")
                a(f"s_add_u32 s{sPm+j}, s{sPm+j}, s{sT2}")
                a(f"s_lshr_b32 s{sT1}, s{sT0}, 1")
                a(f"s_lshl_b32 s{sT1}, s{sT1}, 10")
                a(f"s_and_b32 s{sT0}, s{sT0}, 1")
                a(f"s_lshl_b32 s{sT0}, s{sT0}, 3")
                a(f"s_add_u32 s{sT1}, s{sT1}, s{sT0}")
                a(f"s_add_u32 s{sT1}, s{sT1}, s{sT2}")
                a(f"s_add_u32 s{sPt+j}, s{sT1}, 8192")
            a(f"s_mul_i32 s{sT2}, s{sT}, 40960")
            a(f"s_add_u32 s{sT2}, s{sT2}, {WS_O}")
            a(f"s_sub_u32 s{sT2}, s{sT2}, s{sG}")
            a(f"s_add_u32 s{sOm}, s{sPm}, s{sT2}")
            a(f"s_add_u32 s{sOt}, s{sPt}, s{sT2}")
            a(f"s_mov_b32 s{sTGT}, 0")
            a(f"v_mov_b32 v{vT2}, {L_CNT}")
            a(f"ds_write_b128 v{vT2}, {vr(PUB, 4)}")
            a(f"s_lshr_b32 s{sT0}, s{sT}, 2")
            a(f"s_lshl_b32 s{sT0}, s{sT0}, 4")
            a(f"s_add_u32 s{sT0}, s{sT0}, s{sHG}")
            a(f"s_lshl_b32 s{sT0}, s{sT0}, 5")
            a(f"s_and_b32 s{sT1}, s{sT}, 3")
            a(f"s_add_u32 s{sT0}, s{sT0}, s{sT1}")
            a(f"s_lshl_b32 s{sT0}, s{sT0}, 2")
            a(f"s_add_u32 s{sFQ}, s{sT0}, {WS_F1 + 32}")
        a(f"v_and_b32 v{vT0}, 15, v{vL}")
        a(f"v_lshlrev_b32 v{vT0}, 11, v{vT0}")
        a(f"v_add_u32 v{vT0}, {WS_F1 + 15*128}, v{vT0}")
        a(f"s_and_b32 s{sT0}, s2, 7")
        a(f"s_lshl_b32 s{sT0}, s{sT0}, 7")
        a(f"s_add_u32 s{sT0}, s{sT0}, {WS_XC}")
        a(f"v_cmp_gt_u32 vcc, 32, v{vL}")
        a(f"v_lshl_add_u32 v{vT1}, v{vN}, 2, s{sT0}")
        a(f"s_mov_b32 s{sFAST}, 0")
        a(f"s_mov_b32 s{sC}, 0")
        a(f"v_cndmask_b32 v{vFL}, v{vT1}, v{vT0}, vcc")

        if kv:
            XB, WA = [28, ACC + 16], [44, 80 + 16 if A_ else 228]
            def kreads(b):
                for s in range(4):
                    a(f"ds_read_b128 {vr(XB[b]+4*s, 4)}, v{vX+s}")
                    a(f"ds_read_b64_tr_b16 {vr(WA[b]+4*s, 2)}, v{vTR} offset:{s*sstr}")
                    a(f"ds_read_b64_tr_b16 {vr(WA[b]+4*s+2, 2)}, v{vTR} offset:{s*sstr+4*rstr}")
            a(f"s_waitcnt vmcnt({2*ndma + (2 if A_ else 0)})")
            a.stamp(2)
            a("s_barrier")
            a.stamp(3); a.stamp(NSTAMP, True)
            kreads(0)
            a(f"buffer_load_dword v{vNON}, v{vZ}, {sr(SDBG)}, 0 offen sc1")
            for p in range(ndma): piece(role, kv, p)
            a.label(f"P1_L{tag}")
            for b in range(2):
                advance()
                if b == 0:
                    L = a.uid("KS")
                    a(f"s_cmp_lg_u32 s{sC}, 6")
                    a(f"s_cbranch_scc1 {L}")
                    stream_off()
                    a.label(L)
                a(f"s_waitcnt vmcnt({2*ndma}) lgkmcnt(0)")
                a("s_barrier")
                for s in range(4):
                    a(f"v_mfma_f32_32x32x16_bf16 {vr(ACC, 16)}, {vr(WA[b]+4*s, 4)}, {vr(XB[b]+4*s, 4)}, {vr(ACC, 16)}")
                    a(f"ds_read_b128 {vr(XB[b^1]+4*s, 4)}, v{vX+s}")
                    a(f"ds_read_b64_tr_b16 {vr(WA[b^1]+4*s, 2)}, v{vTR} offset:{s*sstr}")
                    a(f"ds_read_b64_tr_b16 {vr(WA[b^1]+4*s+2, 2)}, v{vTR} offset:{s*sstr+4*rstr}")
                    for j in range(2): m4(P + 4*j, ONE, WA[b]+4*s+2*j)
                    if s < ndma: piece(role, kv, s)
                if b == 1:
                    L = a.uid("KN")
                    a(f"s_cmp_lg_u32 s{sC}, 3")
                    a(f"s_cbranch_scc1 {L}")
                    get_nonce()
                    a.label(L)
                if A_: a.lstamp(sC)
                a(f"s_add_u32 s{sC}, s{sC}, 1")
            a(f"s_cmp_lt_u32 s{sC}, 10")
            a(f"s_cbranch_scc1 P1_L{tag}")
            a.stamp(4); a.stamp(NSTAMP + 1, True)
            if A_: a.ldump()
            a(f"s_mov_b32 s{sSPIN}, {SPIN}")
            a("s_waitcnt lgkmcnt(0)")
            a.label(f"P1_GA{tag}")
            gather()
            a("s_waitcnt vmcnt(0)")
            gather_check(f"P1_GA{tag}", f"P1_FOK{tag}")
            gather_sum()
            a(f"v_add_f32 v{P}, v{P}, v{P+4}")
            split3(a, P, vT0, vT1, CSR, CSR + 1)
            halfop(a, "v_add_f32", GAT, vT0); halfop(a, "v_add_f32", GAT + 2, vT0)
            stats_finish(GAT, GAT + 2, ST)
            a(f"v_lshlrev_b32 v{vT2}, 4, v{vL}")
            a(f"v_mov_b32 v{NM}, v{ST}")
            a(f"v_mov_b32 v{NM+1}, v{ST}")
            a(f"v_mov_b32 v{ST}, v{ST+1}")
            a("s_nop 0")
            a(f"v_mfma_f32_32x32x8_bf16 {vr(ACC, 16)}, {vr(CSR, 2)}, {vr(NM, 2)}, {vr(ACC, 16)}")
            a("s_nop 9")
            a(f"s_mul_i32 s{sT0}, s{sT3}, {KV_REC}")
            a(f"s_add_u32 s{sT0}, s{sT0}, {WS_KV}")
            for j in range(6): a(f"v_pk_mul_f32 {vr(ACC+2*j, 2)}, {vr(ACC+2*j, 2)}, {vr(ST, 2)}")
            if A_:
                for j in range(6): a(f"v_cvt_pk_bf16_f32 v{P+j}, v{ACC+2*j}, v{ACC+2*j+1}")
                a(f"v_min_u32 v{vT0}, 32, v{vL}")
                a(f"v_lshlrev_b32 v{vT0}, 3, v{vT0}")
                a("s_mov_b32 exec_lo, 0")
                a(f"v_mov_b32 v{P+4}, 0x3f803f80")
                a(f"v_mov_b32 v{P+5}, 0x3f80")
                a("s_mov_b32 exec_lo, -1")
                a(f"buffer_store_dwordx4 {vr(P, 4)}, v{vT2}, {sr(SWS)}, s{sT0} offen sc1")
                a(f"buffer_store_dwordx2 {vr(P+4, 2)}, v{vT0}, {sr(SWS)}, s{sT0} offen offset:2560 sc1")
            else:
                a("s_mov_b32 exec_lo, 0")
                a(f"v_mov_b32 v{ACC+8}, 1.0")
                a("s_mov_b32 exec_lo, -1")
                for j in range(6): a(f"v_cvt_pk_bf16_f32 v{P+j}, v{ACC+2*j}, v{ACC+2*j+1}")
                a(f"s_mul_i32 s{sT1}, s{sTT}, 1536")
                a(f"s_add_u32 s{sT1}, s{sT1}, {L_VT}")
                a(f"v_lshrrev_b32 v{vT0}, 3, v{vN}")
                a(f"v_mul_u32_u24 v{vT0}, 384, v{vT0}")
                a(f"v_and_b32 v{vT1}, 7, v{vN}")
                a(f"v_lshl_add_u32 v{vT0}, v{vT1}, 1, v{vT0}")
                a(f"v_lshl_add_u32 v{vT0}, v{vH}, 6, v{vT0}")
                a(f"v_add_u32 v{vT0}, s{sT1}, v{vT0}")
                for r in range(12):
                    op = "ds_write_b16" if r % 2 == 0 else "ds_write_b16_d16_hi"
                    a(f"{op} v{vT0}, v{P+r//2} offset:{(r//4)*128 + (r%4)*16}")
                a(f"v_add_u32 v{vT0}, s{sT1}, v{vT2}")
                a("s_waitcnt lgkmcnt(0)")
                a(f"ds_read_b128 {vr(P+8, 4)}, v{vT0}")
                a(f"ds_read_b128 {vr(P+12, 4)}, v{vT0} offset:1024")
                a("s_waitcnt lgkmcnt(0)")
                a(f"buffer_store_dwordx4 {vr(P+8, 4)}, v{vT2}, {sr(SWS)}, s{sT0} offen offset:1024 sc1")
                a("s_mov_b32 exec_hi, 0")
                a(f"buffer_store_dwordx4 {vr(P+12, 4)}, v{vT2}, {sr(SWS)}, s{sT0} offen offset:2048 sc1")
                a("s_mov_b32 exec_hi, -1")
            a.stamp(5)
            a("s_waitcnt vmcnt(0)")
            a("s_barrier")
            if B_:
                a(f"s_mov_b32 s{sKOK}, 0")
                a(f"s_cmp_lg_u32 s{sW}, 4")
                a(f"s_cbranch_scc1 {nxt}")
                a("s_mov_b64 exec, 1")
                a(f"buffer_store_dword v{vNON}, v{vZ}, {sr(SWS)}, s{sFL} offen sc1")
                a("s_mov_b64 exec, -1")
            else:
                a("s_sleep 4")
                a(f"s_mul_i32 s{sT2}, s{sW}, 5120")
                for i in range(3):
                    for p in range(5):
                        a(f"s_add_u32 m0, s{sT2}, {WO_STAGE[i] + p*1024}")
                        a("s_nop 0")
                        a(f"buffer_load_dwordx4 v{vWD+p}, {sr(SW4)}, s{sWOR} offen lds")
                    a(f"s_add_u32 s{sWOR}, s{sWOR}, {20*1280}")
            a(f"s_branch {nxt}")
            return

        a("s_mov_b64 vcc, -1")
        if opt("st"): a.stamp(15)
        if D2 == 1: third()
        if D2 == 3: third(1)
        if opt("st"): a.stamp(16)
        a(f"s_waitcnt vmcnt({(2 if D2 < 2 else 1)*ndma + (1 if (B_ and TLB) else 0)})")
        a.stamp(2)
        a("s_barrier")
        a(f"ds_read_b128 {vr(FB[0], 4)}, v{vX}")
        for i in range(nt):
            a(f"ds_read_b64_tr_b16 {vr(FA[0]+4*i, 2)}, v{vTR+i}")
            a(f"ds_read_b64_tr_b16 {vr(FA[0]+4*i+2, 2)}, v{vTR+i} offset:{4*rstr}")
        if D2 == 2: third()
        if D2 == 3: third(2)
        a(f"buffer_load_dword v{vNON}, v{vZ}, {sr(SDBG)}, 0 offen sc1")
        a.stamp(3); a.stamp(NSTAMP, True)
        a.raw(".p2align 3")
        a.label(f"P1_L{tag}")
        a(f"s_cmp_eq_u32 s{sC}, s{sSI}")
        a(f"s_cbranch_scc1 P1_ST{tag}")
        a.label(f"P1_M{tag}")
        slots = [(s, i) for s in range(3) for i in range(nt)]
        where = {}
        for p in range(ndma):
            where.setdefault(slots[(p * len(slots)) // ndma + (1 if B_ else 0)], []).append(p)
        def step(s, pre=None):
            p, q, ns = s & 1, (s + 1) & 1, (s + 1) & 3
            for i in range(nt):
                if pre is None:
                    a(f"s_waitcnt lgkmcnt({2*(nt-1-i) + ((1 + 2*i) if i else 0)})")
                a(f"v_mfma_f32_32x32x16_bf16 {vr(ACC+16*i, 16)}, {vr(FA[p]+4*i, 4)}, {vr(FB[p], 4)}, {vr(ACC+16*i, 16)}")
                if i == 0:
                    if pre is not None: pre()
                    a(f"ds_read_b128 {vr(FB[q], 4)}, v{vX+ns}")
                a(f"ds_read_b64_tr_b16 {vr(FA[q]+4*i, 2)}, v{vTR+i} offset:{ns*sstr}")
                a(f"ds_read_b64_tr_b16 {vr(FA[q]+4*i+2, 2)}, v{vTR+i} offset:{ns*sstr+4*rstr}")
                for pp in where.get((s, i), []):
                    if B_:
                        L = a.uid("SK")
                        a(f"s_cbranch_vccz {L}")
                    piece(role, kv, pp)
                    if B_: a.label(L)
        for s in range(3): step(s)
        advance()
        a(f"s_cmp_ge_u32 s{sC}, 7")
        a("s_waitcnt lgkmcnt(0)")
        def pre():
            a(f"s_cbranch_scc1 P1_WL{tag}")
            a(f"s_bitcmp1_b32 s{sRLX}, s{sC}")
            a(f"s_cbranch_scc1 P1_W0{tag}")
            a(f"s_waitcnt vmcnt({2*ndma})")
            a.label(f"P1_W0{tag}")
            a(f"s_waitcnt vmcnt({2*ndma + 1})")
            a.label(f"P1_W1{tag}")
            a("s_barrier")
        step(3, pre)
        a(f"s_cmp_ge_u32 s{sC}, 6")
        a(f"s_cbranch_scc1 P1_ND{tag}")
        a(f"s_cmp_eq_u32 s{sC}, s{sPUBI}")
        a(f"s_cbranch_scc1 P1_PUB{tag}")
        a.label(f"P1_NX{tag}")
        if A_: a.lstamp(sC)
        a(f"s_add_u32 s{sC}, s{sC}, 1")
        a(f"s_branch P1_L{tag}")
        a.label(f"P1_WL{tag}")
        if A_:
            a(f"s_waitcnt vmcnt({2*ndma + 6})")
        else:
            a(f"s_waitcnt vmcnt({ndma + 5})")
            a(f"s_cmp_eq_u32 s{sC}, 7")
            a(f"s_cbranch_scc1 P1_W1{tag}")
            a("s_waitcnt vmcnt(5)")
        a(f"s_branch P1_W1{tag}")
        a.label(f"P1_ST{tag}")
        if B_:
            for s in range(4): a(f"ds_read_b128 {vr(GAT+4*s, 4)}, v{vX+s}")
        else:
            for s in range(4):
                for e in range(2):
                    a(f"ds_read_b64_tr_b16 {vr(GAT+16*e+4*s, 2)}, v{vSA+e} offset:{s*sstr}")
                    a(f"ds_read_b64_tr_b16 {vr(GAT+16*e+4*s+2, 2)}, v{vSA+e} offset:{s*sstr+4*rstr}")
        for j in range(8):
            if j % 2 == 0: a(f"s_waitcnt lgkmcnt({(3 - j//2) * (1 if B_ else 4)})")
            dd = 8 * (j & 1)
            m4(P + dd, ONE, GAT + 2*j)
            if B_: m4(P + dd + 4, GAT + 2*j, GAT + 2*j)
            else: m4(P + dd + 4, ONE, GAT + 16 + 2*j)
        a(f"s_branch P1_M{tag}")
        a.label(f"P1_PUB{tag}")
        get_nonce()
        a(f"v_lshlrev_b32 v{vT1}, 4, v{vL}")
        a(f"v_add_f32 v{PUB}, v{P}, v{P+8}")
        if B_:
            for j in range(4): a(f"v_add_f32 v{P+4+j}, v{P+4+j}, v{P+12+j}")
            diag(PUB + 2, P + 4)
            a("s_mov_b64 vcc, -1")
        else:
            a(f"v_add_f32 v{PUB+2}, v{P+4}, v{P+12}")
        halfop(a, "v_add_f32", PUB, vT0); halfop(a, "v_add_f32", PUB + 2, vT0)
        a(f"v_mov_b32 v{PUB+1}, v{vNON}")
        a(f"v_mov_b32 v{PUB+3}, v{vNON}")
        a(f"s_lshl_b32 s{sT1}, s{sST}, 9")
        a(f"s_add_u32 s{sT0}, s{sPB}, s{sT1}")
        a("s_mov_b32 exec_hi, 0")
        a(f"buffer_store_dwordx4 {vr(PUB, 4)}, v{vT1}, {sr(SWS)}, s{sT0} offen sc1")
        a("s_mov_b32 exec_hi, -1")
        a(f"s_branch P1_NX{tag}")
        a.label(f"P1_ND{tag}")
        a(f"s_cmp_eq_u32 s{sC}, 9")
        a(f"s_cbranch_scc1 P1_DONE{tag}")
        if A_:
            a(f"s_cmp_eq_u32 s{sC}, 7")
            csel(a, sT0, WO_STAGE[1], WO_STAGE[0])
            a(f"s_cmp_eq_u32 s{sC}, 8")
            a(f"s_cmov_b32 s{sT0}, {WO_STAGE[2]}")
            a(f"s_mul_i32 s{sM0}, s{sW}, 5120")
            a(f"s_add_u32 s{sM0}, s{sM0}, s{sT0}")
        a(f"s_cmp_eq_u32 s{sC}, 7")
        a(f"s_cbranch_scc1 P1_NX{tag}")
        a(f"s_mov_b32 s{sSPIN}, {SPIN}")
        a(f"s_cmp_eq_u32 s{sC}, 8")
        a(f"s_cbranch_scc1 P1_FIN{tag}")
        if A_:
            srd(a, SA, pWO, 640 * 1280)
            a(f"s_mov_b32 s{sSO}, s{sWOR}")
            a(f"s_mov_b32 s{sSTEP}, {20*1280}")
            a(f"s_mov_b32 s{sCC}, 16")
            for p in range(5): a(f"v_mov_b32 v{vD+p}, v{vWD+p}")
        else:
            a("s_mov_b64 vcc, 0")
        a.label(f"P1_GA{tag}")
        gather()
        a(f"s_cmp_lg_u32 s{sC}, 6")
        a(f"s_cbranch_scc1 P1_GW{tag}")
        if A_:
            srd(a, SW4, pW2, 0 if opt("notouch") else 1728 * 1280)
            a(f"s_mul_i32 s{sT0}, s{sRB}, 15")
            a(f"s_add_u32 s{sT0}, s{sT0}, s{sCG}")
            a(f"s_lshl_b32 s{sT0}, s{sT0}, 2")
            a(f"s_add_u32 s{sT0}, s{sT0}, s{sW}")
            a(f"s_mul_i32 s{sT0}, s{sT0}, {18*128}")
            a(f"v_lshlrev_b32 v{vT0}, 7, v{vL}")
            a("s_mov_b64 exec, 0x3ffff")
            a(f"buffer_load_dword v231, v{vT0}, {sr(SW4)}, s{sT0} offen")
            a("s_mov_b64 exec, -1")
        a(f"s_branch P1_NX{tag}")
        a.label(f"P1_GW{tag}")
        a("s_waitcnt vmcnt(0)")
        a.label(f"P1_FIN{tag}")
        a(f"s_waitcnt vmcnt({2*ndma + 1 if A_ else 0})")
        gather_check(f"P1_GA{tag}", f"P1_FOK{tag}")
        if B_: a("s_mov_b64 vcc, 0")
        a(f"buffer_load_dword v{vFV}, v{vFL}, {sr(SWS)}, 0 offen sc1")
        gather_sum()
        if B_:
            halfop(a, "v_add_f32", GAT, vT0); halfop(a, "v_add_f32", GAT + 2, vT0)
            stats_finish(GAT, GAT + 2, PUB)
            a(f"v_lshl_add_u32 v{vT0}, v{vN}, 3, s{sT0}")
            a(f"ds_write_b64 v{vT0}, {vr(PUB, 2)}")
        else:
            for e in range(2):
                split3(a, GAT + 2 * e, vT0, vT1, PUB + 2 * e, PUB + 1 + 2 * e)
                if e == 1:
                    a(f"v_lshlrev_b32 v{vT0}, 3, v{vL}")
                    a(f"v_add_u32 v{vT0}, {K1_CS + 2048}, v{vT0}")
                else:
                    a(f"s_lshl_b32 s{sT0}, s{sW}, 9")
                    a(f"s_add_u32 s{sT0}, s{sT0}, {K1_CS}")
                    a(f"v_lshl_add_u32 v{vT0}, v{vL}, 3, s{sT0}")
                a(f"ds_write_b64 v{vT0}, {vr(PUB+2*e, 2)}")
        a(f"s_branch P1_NX{tag}")
        a.label(f"P1_DONE{tag}")
        a.stamp(4); a.stamp(NSTAMP + 1, True)
        if A_: a.ldump()
        a(f"s_lshl_b32 s{sT0}, s{sTT}, 8")
        a(f"s_add_u32 s{sT0}, s{sT0}, {K1_ST}")
        a(f"v_lshl_add_u32 v{vT0}, v{vN}, 3, s{sT0}")
        a(f"v_lshlrev_b32 v{vT1}, 3, v{vL}")
        a(f"v_add_u32 v{vT1}, {K1_CS}, v{vT1}")
        a(f"ds_read_b64 {vr(ST, 2)}, v{vT0}")
        for i, t in enumerate(tiles): a(f"ds_read_b64 {vr(CSR+2*i, 2)}, v{vT1} offset:{512*t}")
        a(f"v_lshlrev_b32 v{vT2}, 4, v{vL}")
        a(f"s_waitcnt vmcnt({ndma if A_ else 0})")
        a(f"v_cmp_ne_u32 vcc, s{sXW}, v{vFV}")
        a(f"s_cmp_lt_u32 s{sCG}, 4")
        a(f"s_cselect_b32 s{sLO}, 0x80008000, 0")
        a("s_cmp_eq_u32 vcc_hi, 0")
        a(f"s_cselect_b32 s{sFAST}, {0 if opt('slow') else 1}, 0")
        if B_:
            L = a.uid("NOKV")
            a(f"v_cmp_ne_u32 vcc, s{sNON}, v{vFV}")
            a(f"s_mov_b32 s{sKOK}, 0")
            a("s_cmp_lg_u32 vcc_lo, 0")
            a(f"s_cbranch_scc1 {L}")
            kv_first(a, vT2)
            a(f"s_mov_b32 s{sKOK}, 1")
            a.label(L)
        a("s_waitcnt lgkmcnt(0)")
        a(f"v_mov_b32 v{NM}, v{ST}")
        a(f"v_mov_b32 v{NM+1}, v{ST}")
        a(f"v_mov_b32 v{ST}, v{ST+1}")
        a("s_nop 0")
        for i in range(nt):
            a(f"v_mfma_f32_32x32x8_bf16 {vr(ACC+16*i, 16)}, {vr(CSR+2*i, 2)}, {vr(NM, 2)}, {vr(ACC+16*i, 16)}")
        a(f"s_nop {12 - nt}")
        for i, t in enumerate(tiles):
            for j in range(8): a(f"v_pk_mul_f32 {vr(ACC+16*i+2*j, 2)}, {vr(ACC+16*i+2*j, 2)}, {vr(ST, 2)}")
            for j in range(8): a(f"v_cvt_pk_bf16_f32 v{P+8*i+j}, v{ACC+16*i+2*j}, v{ACC+16*i+2*j+1}")
            for j in range(8): a(f"v_pk_max_i16 v{P+8*i+j}, v{P+8*i+j}, s{sLO}")
            a(f"s_add_u32 s{sT0}, s{sOUT}, {2048*t}")
            stores(a, [f"buffer_store_dwordx4 {vr(P+8*i+4*e, 4)}, v{vT2}, {sr(SWS)}, s{sT0} offen offset:{1024*e}" for e in range(2)])
        a.stamp(5)
        a(f"s_lshl_b32 s{sT0}, s{sW}, 2")
        a(f"s_add_u32 s{sT0}, s{sT0}, s{sFL}")
        a("s_mov_b64 exec, 1")
        a("s_waitcnt vmcnt(0)")
        stores(a, [f"buffer_store_dword v{vNON}, v{vZ}, {sr(SWS)}, s{sT0} offen offset:32"])
        a("s_mov_b64 exec, -1")
        a(f"s_branch {nxt}")

    body("GA", "A", False)
    a.label("P1_GB")
    body("GB", "B", False)
    a.label("P1_KA0")
    a(f"v_lshlrev_b32 v{vD}, 4, v{vL}")
    a(f"s_lshl_b32 s{sSO}, s{sCC}, 2")
    a(f"s_add_u32 s{sSO}, s{sSO}, s{sW}")
    a(f"s_mul_i32 s{sSO}, s{sSO}, 640")
    a(f"s_mov_b32 s{sSTEP}, 2560")
    a(f"s_lshl_b32 s{sM0}, s{sW}, 10")
    a("s_waitcnt lgkmcnt(0)")
    srd(a, SA, pWK, 640 * 40)
    srd(a, SB, pWV, 640 * 40)
    first_chunks("A", True)
    body("KA", "A", True)
    a.label("P1_KB")
    body("KB", "B", True)

def kdesc(name, nv, ns=102):
    return f""".amdhsa_kernel {name}
  .amdhsa_next_free_vgpr {nv}
  .amdhsa_next_free_sgpr {ns}
  .amdhsa_accum_offset {(nv+3)//4*4}
  .amdhsa_group_segment_fixed_size 0
  .amdhsa_kernarg_size 88
  .amdhsa_user_sgpr_count 2
  .amdhsa_user_sgpr_kernarg_segment_ptr 1
  .amdhsa_system_sgpr_workgroup_id_x 1
.end_amdhsa_kernel
"""

def build():
    from g7p2 import gen_ffn, gen_att
    hdr = open("cdna_kernels/" + NAME + ".s.ref").read().split("; Override launch")[0]
    out = hdr
    out += f"; @launch grid=(256,1,1) block=(512,1,1) lds={LDS_BYTES}\n"
    out += '.amdgcn_target "amdgcn-amd-amdhsa--gfx950"\n.text\n'
    a = Asm()
    k = NAME + "_kernel"
    a.raw(f".globl {k}\n.p2align 8\n.type {k},@function")
    a.label(k)
    gen_p1(a)
    a.p2 = True
    a.label("P2_ATT")
    gen_att(a)
    a.label("P2_FFN")
    gen_ffn(a)
    for L, lines, D in a.tail:
        a.label(L)
        for l in lines: a(l)
        a(f"s_branch {D}")
    a.label("L_END")
    a("s_endpgm")
    out += a.text()
    out += '.section .rodata,"a"\n.p2align 6\n' + kdesc(k, 256)
    return out

if __name__ == "__main__":
    path = sys.argv[1] if len(sys.argv) > 1 and not sys.argv[1].startswith("--") else "cdna_kernels/" + NAME + ".s"
    open(path, "w").write(build())
```

```python
from g9 import *

def cnt_arrive(a, vaddr, vtmp, inc="1", off=0):
    a(f"v_mov_b32 v{vtmp}, {inc}")
    a("s_mov_b64 exec, 1")
    a(f"ds_add_u32 v{vaddr}, v{vtmp}" + (f" offset:{off}" if off else ""))
    a("s_mov_b64 exec, -1")
def cnt_wait(a, vaddr, vtmp, tgt, sleep=0, off=0):
    L, D = a.uid("CW"), a.uid("CWD")
    a(f"s_mov_b32 s{sSPIN}, {SPIN * 16}")
    a.label(L)
    a(f"ds_read_b32 v{vtmp}, v{vaddr}" + (f" offset:{off}" if off else ""))
    a("s_waitcnt lgkmcnt(0)")
    a(f"v_readfirstlane_b32 s{sT0}, v{vtmp}")
    a(f"s_and_b32 s{sT2}, s{sT0}, 0xffff")
    a(f"s_cmp_ge_u32 s{sT2}, {tgt}")
    a(f"s_cbranch_scc1 {D}")
    if sleep: a(f"s_sleep {sleep}")
    spin_tail(a, L)
    a.label(D)

def final_stage(a, base_item, X, R, vA, vG, load_x, do_rest):
    if load_x and load_x != "load":
        if base_item: a(f"v_add_u32 v{vA}, {base_item}, v0")
        else: a(f"v_mov_b32 v{vA}, v0")
        a(f"v_mul_u32_u24 v{vG}, 3277, v{vA}")
        a(f"v_lshrrev_b32 v{vG}, 16, v{vG}")
        a(f"v_lshlrev_b32 v{vA}, 4, v{vA}")
        a(f"v_lshlrev_b32 v{X}, 4, v{vG}")
        a(f"v_mul_u32_u24 v{vG}, 960, v{vG}")
        a(f"v_add_u32 v{vG}, v{vG}, v{vA}")
        a(f"v_lshl_add_u32 v{vA}, v{vA}, 1, v{X}")
    if load_x and load_x != "addr":
        a(f"buffer_load_dwordx4 {vr(X, 4)}, v{vG}, {sr(SX)}, s{sOB} offen")
    if do_rest == 1:
        for s in range(4):
            a(f"ds_read_b128 {vr(R+8*s, 4)}, v{vA} offset:{s*RING_ST}")
            a(f"ds_read_b128 {vr(R+8*s+4, 4)}, v{vA} offset:{s*RING_ST+16}")
    if do_rest == 2:
        for j in range(4):
            a(f"v_lshlrev_b32 v{R+32+2*j}, 16, v{X+j}")
            a(f"v_and_b32 v{R+33+2*j}, 0xffff0000, v{X+j}")
    if do_rest >= 3:
        for s in range(4):
            a(f"s_waitcnt lgkmcnt({6-2*s + (do_rest-3)})")
            for j in range(4):
                a(f"v_pk_add_f32 {vr(R+32+2*j, 2)}, {vr(R+32+2*j, 2)}, {vr(R+8*s+2*j, 2)}")
        for j in range(4): a(f"v_cvt_pk_bf16_f32 v{X+j}, v{R+32+2*j}, v{R+33+2*j}")
        a(f"buffer_store_dwordx4 {vr(X, 4)}, v{vG}, {sr(SB)}, s{sOB} offen")

def gen_att(a):
    vL, vKM, vQT, vIDX, vT0, vT1, vCNT = 1, 2, 3, 4, 5, 6, 7
    vP = 8
    vT2, vT3 = 12, 13
    vFL = 23
    S, O, QM, QT, KM, KT, V0, V1 = aS, aO, aQM, aQT, aKM, aKT, aV0, aV1
    def qk1(s, kb, q): a(f"v_mfma_f32_32x32x16_bf16 {vr(S[s], 16)}, {vr(KM[kb], 4)}, {vr(QM(q), 4)}, 0")
    def qk2(s, kb, q): a(f"v_mfma_f32_32x32x8_bf16 {vr(S[s], 16)}, {vr(KT[kb], 2)}, {vr(QT(q), 2)}, {vr(S[s], 16)}")
    def pv(u, s, vb, q): a(f"v_smfmac_f32_32x32x32_bf16 {vr(O(q), 16)}, {vr((V0, V1)[u][vb], 4)}, {vr(S[s]+8*u, 8)}, v{vIDX}")
    def ldq(i):
        a(f"buffer_load_dwordx4 {vr(QM(i), 4)}, v{vKM}, {sr(SWS)}, s{sPm+i//2} offen" + (" offset:1024" if i & 1 else "") + " sc1")
        a(f"buffer_load_dwordx2 {vr(QT(i), 2)}, v{vQT}, {sr(SWS)}, s{sPt+i//2} offen" + (" offset:512" if i & 1 else "") + " sc1")
    def qregs(lo, hi): return list(range(QM(lo), QM(hi))) + list(range(QT(lo), QT(hi)))
    def rowmax(s, dst):
        b = S[s]
        a(f"v_max3_f32 v{dst}, v{b}, v{b+1}, v{b+2}")
        for j in range(3, 15, 2): a(f"v_max3_f32 v{dst}, v{dst}, v{b+j}, v{b+j+1}")
        a(f"v_max_f32 v{dst}, v{dst}, v{b+15}")
    def pair_addr(mul, base, vlane, shift):
        for j in range(4):
            a(f"s_add_u32 s{sT0}, s{sQ}, {j}")
            a(f"s_and_b32 s{sT0}, s{sT0}, 3")
            a(f"s_mul_i32 s{sT0}, s{sT0}, {mul}")
            a(f"s_add_u32 s{sT0}, s{sT0}, {base}")
            a(f"v_lshl_add_u32 v{vP+j}, v{vlane}, {shift}, s{sT0}")

    a("s_setprio 3")
    a(f"s_mov_b32 s{sMODE}, 0")
    a(f"v_lshlrev_b32 v{vKM}, 4, v{vL}")
    a(f"v_mov_b32 v{vT0}, {OOB:#x}")
    a(f"v_cmp_gt_u32 vcc, 32, v{vL}")
    a(f"v_mov_b32 v{vIDX}, 0xdddddddd")
    a(f"v_mov_b32 v{vCNT}, {L_CNT}")
    a(f"v_cndmask_b32 v{vQT}, v{vT0}, v{vKM}, vcc")
    a.stamp(6)
    a(f"s_cmp_lg_u32 s{sKOK}, 0")
    a("s_cbranch_scc1 A_HAVEKV")
    a("s_mov_b32 exec_hi, 0")
    poll(a, vFL, vT0, "0")
    a("s_mov_b32 exec_hi, -1")
    a.label("A_RELOAD")
    kv_first(a, vKM)
    a.label("A_HAVEKV")
    a(f"v_and_b32 v{vT1}, 31, v{vL}")
    pair_addr(512, L_MREC, vT1, 3)
    a(f"v_and_b32 v{vT1}, 16, v{vL}")
    a.stamp(7)
    poll(a, vT1, vT0, f"s{sFQ}", optv("qsleep", 1))
    check_fast(a, vT1, vT0)
    a.stamp(8)
    ldq(0); ldq(1)
    a(f"s_cmp_lg_u32 s{sMODE}, 0")
    a("s_cbranch_scc1 A_TRUEMAX")
    a.c("stand-in for the row max: max over this wave's first 32 keys; checked after the loop, exact-max rerun if unsafe")
    ldq(2); ldq(3)
    a("s_waitcnt vmcnt(4)")
    qk1(0, 0, 0); qk2(0, 0, 0); qk1(1, 0, 1); qk2(1, 0, 1)
    for i in range(4, 8): ldq(i)
    a("s_nop 1")
    rowmax(0, S[2]); rowmax(1, S[2] + 1)
    a(f"v_mov_b32 v{vT0}, v{S[2]}")
    a(f"v_mov_b32 v{vT1}, v{S[2]+1}")
    a("s_nop 0")
    a(f"v_permlane32_swap_b32 v{vT0}, v{S[2]}")
    a(f"v_permlane32_swap_b32 v{vT1}, v{S[2]+1}")
    a(f"v_max_f32 v{S[2]}, v{S[2]}, v{vT0}")
    a(f"v_max_f32 v{S[2]+1}, v{S[2]+1}, v{vT1}")
    a("s_mov_b32 exec_lo, 0")
    for e in range(2): a(f"v_cvt_pk_bf16_f32 v{QT(e)}, -v{S[2]+e}, 0")
    a.label("A_HAVEMAX")
    for e in range(2): a(f"ds_write_b64 v{vP}, {vr(QT(e), 2)} offset:{256*e}")
    a("s_mov_b32 exec_lo, -1")
    cnt_arrive(a, vCNT, vT0)
    a(f"s_add_u32 s{sTGT}, s{sTGT}, 4")
    a(f"s_mov_b32 s{sCNT}, 8")
    a.stamp(9)
    a.stamp(10); a.stamp(NSTAMP + 2, True)
    qk1(0, 0, 0); qk2(0, 0, 0)
    a("s_cmp_lg_u32 0, 0")
    a("s_nop 10")
    a.raw(".p2align 6")
    a.label("A_LOOP")
    PAT0 = (3, 3, 4, 3, 3)
    PAT1 = tuple(int(ch) for ch in sys.argv[sys.argv.index("--pat1") + 1]) if opt("pat1") else PAT0
    PMASK = optv("pmask", 0)
    def slot(sc, nxt, prv, holes, PAT=PAT0):
        e = [0]
        def exps(n):
            for _ in range(n):
                a(f"v_exp_f32 v{S[sc]+e[0]}, v{S[sc]+e[0]}"); e[0] += 1
        ms = [lambda: qk1((sc + 1) & 3, *nxt), lambda: pv(0, (sc - 1) & 3, *prv), lambda: qk2((sc + 1) & 3, *nxt), lambda: pv(1, (sc - 1) & 3, *prv)]
        for j in range(4):
            if nxt is not None or j & 1: ms[j]()
            if j in holes: holes[j]()
            exps(PAT[j])
        holes[4]()
        exps(PAT[4])
    for kb in range(2):
        for q in range(8):
            def hole():
                if q == 0:
                    if kb == 0:
                        a("s_cbranch_scc0 A_FIRST")
                        a.label("A_FIRSTD")
                    a("s_waitcnt vmcnt(2)"); ldv(a, 0, kb ^ 1)
                elif q == 1: ldv(a, 1, kb ^ 1)
                elif q == 2: a(f"s_add_u32 s{sKV}, s{sKV}, {KV_REC}")
                elif q == 3 and kb == 0: a(f"s_sub_u32 s{sCNT}, s{sCNT}, 1")
                elif q == 4 and kb == 0: a(f"s_cmp_eq_u32 s{sCNT}, 0")
                elif q == 4: a("s_cmp_eq_u32 0, 0")
                elif q == 5: a("s_waitcnt vmcnt(2)")
                elif q == 6: ldkm(a, kb, vKM)
                elif q == 7: ldkt(a, kb)
                else: a("s_nop 0")
            slot(q & 3, ((kb if q < 7 else kb ^ 1), (q + 1) & 7), ((kb if q > 0 else kb ^ 1), (q - 1) & 7), {4: hole}, PAT1 if (PMASK >> q) & 1 else PAT0)
        if kb == 0:
            a.lstamp(sCNT, 0)
            a("s_cbranch_scc1 A_LAST")
    a("s_branch A_LOOP")
    a.label("A_FIRST")
    cnt_wait(a, vCNT, vT0, f"s{sTGT}")
    a("s_waitcnt vmcnt(0)")
    a("s_mov_b32 exec_lo, 0")
    for i in range(2, 8): a(f"ds_read_b64 {vr(QT(i), 2)}, v{vP+i//2} offset:{256*(i&1)}")
    a("s_mov_b32 exec_lo, -1")
    a(f"v_and_b32 v{vT0}, 31, v{vL}")
    a(f"v_mul_u32_u24 v{vT0}, {8*36}, v{vT0}")
    a(f"v_sub_u32 v{vT0}, v{vKM}, v{vT0}")
    a(f"v_add_u32 v{vT0}, {(L_OP - 36*L_MREC) & 0xffffffff:#x}, v{vT0}")
    for j in range(4): a(f"v_mad_u32_u24 v{vP+j}, v{vP+j}, 36, v{vT0}")
    a("s_waitcnt lgkmcnt(0)")
    a.lstamp("8", 0)
    a("s_branch A_FIRSTD")
    a.label("A_LAST")
    def wr(i, j): a(f"ds_write_b128 v{vP+i//2}, {vr(O(i)+4*j, 4)} offset:{(i&1)*9216 + (i//2-1)*3072 + j*1024}")
    seq = [0, 2, 3, 4, 5, 6, 7, 1]
    for n in range(8):
        nxt = (1, seq[n + 1]) if n < 7 else None
        prv = (1, seq[n - 1]) if n > 0 else (0, 7)
        holes = {4: lambda: a("s_nop 0")}
        if n == 0: holes = {4: lambda: a("s_waitcnt vmcnt(2)")}
        if n >= 3:
            i = seq[n - 2]
            holes = {2: lambda: wr(i, 0), 3: lambda: wr(i, 1), 4: lambda: wr(i, 2)}
        slot(n & 3, nxt, prv, holes)
    a("s_nop 1")
    pv(0, 3, 1, 1); pv(1, 3, 1, 1)
    a.stamp(11); a.stamp(NSTAMP + 3, True)
    a("s_nop 1")
    for j in range(3): wr(7, j)
    cnt_arrive(a, vCNT, vT0)
    a(f"s_add_u32 s{sTGT}, s{sTGT}, 4")
    a(f"s_max_u32 s{sTGT}, s{sTGT}, 12")
    a(f"s_mov_b64 {sr(sBAD, 2)}, 0")
    a(f"s_mov_b32 s{sT1}, {f32bits(2.0**100):#x}")
    cnt_wait(a, vCNT, vT0, f"s{sTGT}")
    a.stamp(12)
    RB = [16, 180]
    for e in range(2):
        for s in range(3):
            for j in range(3):
                a(f"ds_read_b128 {vr(RB[e]+12*s+4*j, 4)}, v{vP} offset:{e*9216 + s*3072 + j*1024}")
    Z = 52
    for e in range(2):
        A = O(e); P = 128 + 8 * e
        for s in range(3):
            a(f"s_waitcnt lgkmcnt({min(15, 18 - 9*e - 3*s - 3)})")
            for j in range(6): a(f"v_pk_add_f32 {vr(A+2*j, 2)}, {vr(A+2*j, 2)}, {vr(RB[e]+12*s+2*j, 2)}")
        a(f"v_mov_b32 v{vT0}, v{A+8}")
        a(f"v_mov_b32 v{vT2}, v{A+8}")
        a(f"v_pk_mul_f32 {vr(Z, 2)}, {vr(A, 2)}, 0 op_sel_hi:[1,0]")
        a(f"v_pk_fma_f32 {vr(Z, 2)}, {vr(A+2, 2)}, 0, {vr(Z, 2)} op_sel_hi:[1,0,1]")
        a(f"v_permlane32_swap_b32 v{vT0}, v{vT2}")
        a(f"v_rcp_f32 v{vT3}, v{vT2}")
        a(f"v_cmp_nlt_f32 vcc, v{vT2}, s{sT1}")
        for j in range(2, 6): a(f"v_pk_fma_f32 {vr(Z, 2)}, {vr(A+2*j, 2)}, 0, {vr(Z, 2)} op_sel_hi:[1,0,1]")
        a(f"s_or_b64 {sr(sBAD, 2)}, {sr(sBAD, 2)}, vcc")
        for j in range(6): a(f"v_pk_mul_f32 {vr(A+2*j, 2)}, {vr(A+2*j, 2)}, {vr(vT2, 2)} op_sel:[0,1] op_sel_hi:[1,1]")
        a(f"v_cmp_u_f32 vcc, v{Z}, v{Z+1}")
        for j in range(6): a(f"v_cvt_pk_bf16_f32 v{P+j}, v{A+2*j}, v{A+2*j+1}")
        a(f"s_or_b64 {sr(sBAD, 2)}, {sr(sBAD, 2)}, vcc")
        a(f"s_cmp_lg_u32 s{sMODE}, 0")
        a(f"s_cselect_b64 {sr(sBAD, 2)}, 0, {sr(sBAD, 2)}")
        for j in range(6): a(f"v_min_u32 v{P+j}, -2, v{P+j}")
        L = a.uid("NOST")
        a(f"s_cmp_lg_u64 {sr(sBAD, 2)}, 0")
        a(f"s_cbranch_scc1 {L}")
        stores(a, [f"buffer_store_dwordx4 {vr(P, 4)}, v{vKM}, {sr(SWS)}, s{sOm} offen offset:{1024*e}",
                   f"buffer_store_dwordx2 {vr(P+4, 2)}, v{vQT}, {sr(SWS)}, s{sOt} offen offset:{512*e}"])
        a.label(L)
    a(f"s_cmp_lg_u64 {sr(sBAD, 2)}, 0")
    a(f"s_cselect_b32 s{sBAD}, 0x10001, 1")
    cnt_arrive(a, vCNT, vT0, f"s{sBAD}")
    a.stamp(13)
    a("s_setprio 0")
    a(f"s_add_u32 s{sTGT}, s{sTGT}, 4")
    srd(a, SX, pX, 2048 * 1280)
    cnt_wait(a, vCNT, vT0, f"s{sTGT}")
    a(f"s_lshr_b32 s{sT0}, s{sT0}, 16")
    a(f"s_cmp_lg_u32 s{sMODE}, 0")
    a(f"s_cselect_b32 s{sT0}, 0, s{sT0}")
    a(f"s_cmp_lg_u32 s{sT0}, 0")
    a("s_cbranch_scc1 A_RESTART")
    a.stamp(14)
    if PROFILE and opt("iter"):
        a.ldump(0)
        a(f"s_lshl_b32 s100, s{sW}, 6")
        a("v_add_u32 v0, s100, v1")
    final_stage(a, 0, 16, 32, 20, 21, True, 0)
    a(f"s_cmp_ge_u32 s{sW}, 6")
    a("s_cbranch_scc1 A_F1")
    final_stage(a, 256, 24, 80, 22, 23, True, 0)
    a("s_waitcnt vmcnt(0)")
    final_stage(a, 0, 16, 32, 20, 21, False, 2)
    final_stage(a, 256, 24, 80, 22, 23, False, 2)
    a.stamp(15)
    a("s_barrier")
    a.stamp(16)
    final_stage(a, 0, 16, 32, 20, 21, False, 1)
    final_stage(a, 256, 24, 80, 22, 23, False, 1)
    final_stage(a, 0, 16, 32, 20, 21, False, 11)
    final_stage(a, 256, 24, 80, 22, 23, False, 3)
    a.end()
    a.label("A_F1")
    a("s_waitcnt vmcnt(0)")
    final_stage(a, 0, 16, 32, 20, 21, False, 2)
    a.stamp(15)
    a("s_barrier")
    a.stamp(16)
    final_stage(a, 0, 16, 32, 20, 21, False, 1)
    final_stage(a, 0, 16, 32, 20, 21, False, 3)
    a.end()
    a.label("A_RESTART")
    a(f"s_mov_b32 s{sMODE}, 1")
    a("s_waitcnt vmcnt(0)")
    att_zero(a)
    a("s_branch A_RELOAD")
    a.label("A_TRUEMAX")
    for i in range(2, 8): ldq(i)
    M = S[2]
    for i in range(8): a(f"v_mov_b32 v{M+i}, 0xff800000")
    a(f"s_sub_u32 s{sT1}, s{sKV}, {KV_REC}")
    a(f"s_mov_b32 s{sCNT}, 16")
    TK, TT = S[1], S[1] + 4
    a.label("A_TM_LOOP")
    a(f"buffer_load_dwordx4 {vr(TK, 4)}, v{vKM}, {sr(SWS)}, s{sT1} offen sc1")
    a(f"buffer_load_dwordx2 {vr(TT, 2)}, v{avKT}, {sr(SWS)}, s{sT1} offen sc1")
    a("s_waitcnt vmcnt(0)")
    for i in range(8):
        a(f"v_mfma_f32_32x32x16_bf16 {vr(S[0], 16)}, {vr(TK, 4)}, {vr(QM(i), 4)}, 0")
        a(f"v_mfma_f32_32x32x8_bf16 {vr(S[0], 16)}, {vr(TT, 2)}, {vr(QT(i), 2)}, {vr(S[0], 16)}")
        a("s_nop 11")
        for j in range(0, 16, 2): a(f"v_max3_f32 v{M+i}, v{M+i}, v{S[0]+j}, v{S[0]+j+1}")
    a(f"s_add_u32 s{sT1}, s{sT1}, {KV_REC}")
    a(f"s_sub_u32 s{sCNT}, s{sCNT}, 1")
    a(f"s_cmp_lg_u32 s{sCNT}, 0")
    a("s_cbranch_scc1 A_TM_LOOP")
    for i in range(8):
        halfop(a, "v_max_f32", M + i, vT0)
        a(f"v_add_u32 v{vT1}, {L_OP - L_MREC}, v{vP+i//2}")
        a(f"ds_write_b32 v{vT1}, v{M+i} offset:{(i//2)*2048 + (i&1)*256}")
    cnt_arrive(a, vCNT, vT0)
    a(f"s_add_u32 s{sTGT}, s{sTGT}, 4")
    cnt_wait(a, vCNT, vT0, f"s{sTGT}")
    a(f"v_add_u32 v{vT1}, {L_OP - L_MREC}, v{vP}")
    for e in range(2):
        for s in range(1, 4): a(f"ds_read_b32 v{S[0]+4*e+s}, v{vT1} offset:{s*2048 + e*256}")
    a("s_waitcnt lgkmcnt(0)")
    for e in range(2):
        a(f"v_max3_f32 v{M+e}, v{M+e}, v{S[0]+4*e+1}, v{S[0]+4*e+2}")
        a(f"v_max_f32 v{M+e}, v{M+e}, v{S[0]+4*e+3}")
    a("s_mov_b32 exec_lo, 0")
    for e in range(2):
        a(f"v_sub_f32 v{M+e}, 0, v{M+e}")
        split3(a, M + e, vT0, vT1, QT(e), QT(e) + 1)
    a("s_branch A_HAVEMAX")

def gen_ffn(a):
    vL, vL16, vTR, vZ = 1, 2, 3, 7
    vD = 8
    vCNT, vT0, vT1 = 13, 14, 15
    F = lambda t: 16 + 16 * t
    WO = lambda k: 96 + 20 * k
    HB = lambda u: 216 + 4 * u
    SL = lambda j: j & 3
    def dma_piece(p, slot, vd):
        a(f"s_add_u32 m0, s{sM0}, {slot*5120 + p*1024}")
        a("s_nop 0")
        a(f"buffer_load_dwordx4 v{vd+p}, {sr(SA)}, s{sSO} offen lds")
    def trr(dst, slot, t):
        a(f"ds_read_b64_tr_b16 {vr(dst+4*t, 2)}, v{vTR} offset:{slot*5120 + 64*t}")
        a(f"ds_read_b64_tr_b16 {vr(dst+4*t+2, 2)}, v{vTR} offset:{slot*5120 + 64*t + 2560}")
    def hload(u):
        a(f"buffer_load_dwordx4 {vr(HB(u), 4)}, v{vL16}, {sr(SWS)}, s{sHO} offen sc1")
        a(f"s_add_u32 s{sHO}, s{sHO}, 1024")
    def wo_rows(row):
        a(f"s_mul_i32 s{sSO}, s{sQ}, {160*1280}")
        a(f"s_add_u32 s{sSO}, s{sSO}, s{sCOL}")
        if row: a(f"s_add_u32 s{sSO}, s{sSO}, {row*1280}")
    def mf(t, w, h): a(f"v_mfma_f32_32x32x16_bf16 {vr(F(t), 16)}, {vr(w+4*t, 4)}, {vr(h, 4)}, {vr(F(t), 16)}")
    a(f"v_lshlrev_b32 v{vL16}, 4, v{vL}")
    a(f"s_mul_i32 s{sM0}, s{sQ}, {RING_ST}")
    a(f"s_movk_i32 s{sT2}, 960")
    row_offsets(a, vD, vL, vT0, vT1, f"s{sT2}")
    a(f"v_lshrrev_b32 v{vT0}, 5, v{vL}")
    a(f"v_bfe_u32 v{vT1}, v{vL}, 2, 2")
    a(f"v_lshl_add_u32 v{vT0}, v{vT0}, 2, v{vT1}")
    a(f"v_mul_u32_u24 v{vTR}, 320, v{vT0}")
    a(f"v_bfe_u32 v{vT0}, v{vL}, 4, 1")
    a(f"v_lshl_add_u32 v{vTR}, v{vT0}, 5, v{vTR}")
    a(f"v_and_b32 v{vT0}, 3, v{vL}")
    a(f"v_lshl_add_u32 v{vTR}, v{vT0}, 3, v{vTR}")
    a(f"s_mul_i32 s{sT0}, s{sQ}, 5120")
    a(f"s_add_u32 s{sT0}, s{sT0}, {WO_STAGE[0]}")
    a(f"v_add_u32 v237, s{sT0}, v{vTR}")
    a(f"v_add_u32 v{vTR}, s{sM0}, v{vTR}")
    a(f"v_mov_b32 v{vCNT}, {L_CNT}")
    a(f"v_mov_b32 v4, s{sNON}")
    srd(a, SX, pX, 2048 * 1280)
    srd(a, SB, pOUT, 2048 * 1280)
    srd(a, SA, pW2, 1728 * 1280)
    a(f"s_mul_i32 s{sCOL}, s{sHG}, 320")
    a(f"s_mul_i32 s{sSO}, s{sQ}, {27*16*1280}")
    a(f"s_add_u32 s{sSO}, s{sSO}, s{sCOL}")
    a(f"s_mov_b32 s{sSTEP}, {16*1280}")
    a("v_mov_b64 v[228:229], 0")
    a("s_nop 1")
    for t in range(5): zero16(a, F(t), 228)
    for j in range(4): a(f"v_mov_b32 v{224+j}, -1")
    a(f"s_mul_i32 s{sT0}, s{sQ}, {27*26}")
    a(f"s_lshr_b32 s{sT0}, s{sT0}, 8")
    a(f"s_add_u32 s{sT0}, s{sT0}, 4")
    a(f"v_add_u32 v5, s{sT0}, v{vT0}")
    a(f"v_min_u32 v5, 14, v5")
    a(f"s_lshr_b32 s{sT2}, s{sT}, 2")
    a(f"s_lshl_b32 s{sT2}, s{sT2}, 11")
    a(f"s_and_b32 s{sT0}, s{sT}, 3")
    a(f"s_lshl_b32 s{sT0}, s{sT0}, 2")
    a(f"s_add_u32 s{sT2}, s{sT2}, s{sT0}")
    a(f"s_add_u32 s{sT2}, s{sT2}, {WS_F1 + 32}")
    a(f"v_lshl_add_u32 v5, v5, 7, s{sT2}")
    a(f"v_and_b32 v{vT1}, 16, v{vL}")
    a(f"v_add_u32 v5, v5, v{vT1}")
    a(f"s_lshl_b32 s{sFC}, s{sT}, 2")
    a(f"s_add_u32 s{sFC}, s{sFC}, s{sQ}")
    a(f"s_lshl_b32 s{sT2}, s{sFC}, 7")
    a(f"s_add_u32 s{sT2}, s{sT2}, {WS_F2 + 16}")
    a(f"v_lshl_add_u32 v6, v{vT0}, 2, s{sT2}")
    a(f"s_mul_i32 s{sHO}, s{sQ}, {27*1024}")
    a(f"s_add_u32 s{sHO}, s{sHO}, s{sG}")
    a(f"s_add_u32 s{sHO}, s{sHO}, {20*2048}")
    vD2 = 232
    for p in range(5):
        a(f"v_add_u32 v{vT0}, {64*p}, v{vL}")
        a(f"v_mul_u32_u24 v{vT0}, 3277, v{vT0}")
        a(f"v_lshrrev_b32 v{vT0}, 18, v{vT0}")
        a(f"v_mul_u32_u24 v{vT0}, {16*1280}, v{vT0}")
        a(f"v_add_u32 v{vD2+p}, v{vD+p}, v{vT0}")
    final_stage(a, 0, vT0, 0, 238, 239, "addr", 0)
    a(f"v_and_b32 v{vT0}, 31, v{vL}")
    a(f"v_mul_u32_u24 v{vT0}, 656, v{vT0}")
    a(f"v_lshrrev_b32 v0, 5, v{vL}")
    a(f"v_lshl_add_u32 v0, v0, 4, v{vT0}")
    a(f"v_add_u32 v0, s{sM0}, v0")
    a.stamp(6)
    def fill(js):
        for j in js:
            for p in range(5): dma_piece(p, SL(j), vD)
            a(f"s_add_u32 s{sSO}, s{sSO}, s{sSTEP}")
    NPRE = optv("npre", 0)
    fill(range(NPRE))
    cnt_wait(a, vCNT, vT0, 4, 1)
    a.stamp(7)
    a("s_waitcnt vmcnt(0)")
    for i in range(3):
        off = WO_STAGE[i] - WO_STAGE[0]
        for t in range(5):
            a(f"ds_read_b64_tr_b16 {vr(WO(3+i)+4*t, 2)}, v237 offset:{off + 64*t}")
            a(f"ds_read_b64_tr_b16 {vr(WO(3+i)+4*t+2, 2)}, v237 offset:{off + 64*t + 2560}")
    fill(range(NPRE, 4))
    check_fast(a, vT1, vT0)
    a.stamp(8)
    a(f"s_lshl_b32 s{sT1}, s{sT}, 2")
    a(f"s_add_u32 s{sT1}, s{sT1}, s{sHG}")
    a(f"s_mul_i32 s{sT1}, s{sT1}, 10240")
    a(f"s_mul_i32 s{sT0}, s{sQ}, 3072")
    a(f"s_min_u32 s{sT0}, s{sT0}, 7168")
    a(f"s_add_u32 s{sT0}, s{sT0}, s{sT1}")
    a(f"s_add_u32 s{sT0}, s{sT0}, {WS_O}")
    stores(a, [f"buffer_store_dwordx4 v[224:227], v{vL16}, {sr(SWS)}, s{sT0} offen offset:{1024*e}" for e in range(3)])
    poll(a, 5, vT1, "0", 4)
    cnt_arrive(a, vCNT, vT0)
    a(f"s_lshl_b32 s{sT0}, s{sQ}, 2")
    a(f"s_add_u32 s{sT0}, s{sT0}, s{sF2}")
    a("s_mov_b64 exec, 1")
    stores(a, [f"buffer_store_dword v4, v{vZ}, {sr(SWS)}, s{sT0} offen offset:16"])
    a("s_mov_b64 exec, -1")
    a.stamp(9)
    a("v_mov_b32 v4, v238")
    a("v_mov_b32 v7, v239")
    for u in range(4): hload(u)
    for t in range(5): trr(WO(0), SL(0), t)
    a(f"s_mov_b32 s{sC}, 0")
    a("s_waitcnt vmcnt(0)")
    a.stamp(10); a.stamp(NSTAMP + 2, True)
    a.raw(".p2align 3")
    a.label("F_LOOP")
    for u in range(4):
        if u == 3:
            a(f"s_cmp_eq_u32 s{sC}, 6")
            a("s_cbranch_scc1 F_DONE")
            a(f"s_cmp_lg_u32 s{sC}, 5")
            a("s_cbranch_scc1 F_NS")
            srd(a, SA, pWO, 640 * 1280)
            wo_rows(0)
            a(f"s_mov_b32 s{sSTEP}, {20*1280}")
            a(f"s_mov_b32 s{sHO}, 0x40000000")
            a(f"buffer_load_dword v5, v6, {sr(SWS)}, 0 offen sc1")
            a.label("F_NS")
        a("s_waitcnt vmcnt(13) lgkmcnt(0)")
        for t in range(5):
            mf(t, WO(0), HB(u))
            trr(WO(0), SL(u + 1), t)
            dma_piece(t, SL(u), vD)
        a(f"s_add_u32 s{sSO}, s{sSO}, s{sSTEP}")
        hload(u)
    if opt("wb"):
        L = a.uid("WB")
        a(f"s_lshr_b32 s{sT0}, s2, 3")
        a(f"s_and_b32 s{sT0}, s{sT0}, {optv('wbmask', 31)}")
        a(f"s_or_b32 s{sT0}, s{sT0}, s{sW}")
        a(f"s_lshl_b32 s{sT0}, s{sT0}, 4")
        a(f"s_or_b32 s{sT0}, s{sT0}, s{sC}")
        a(f"s_cmp_lg_u32 s{sT0}, {optv('wb', 2)}")
        a(f"s_cbranch_scc1 {L}")
        a("buffer_wbl2 sc1")
        a.label(L)
    a(f"s_add_u32 s{sC}, s{sC}, 1")
    a("s_branch F_LOOP")
    a.label("F_DONE")
    a.stamp(11); a.stamp(NSTAMP + 3, True)
    a("s_waitcnt vmcnt(13) lgkmcnt(0)")
    for t in range(5):
        trr(WO(1), SL(28), t)
        dma_piece(t, SL(27), vD)
    wo_rows(16)
    a("s_waitcnt vmcnt(12) lgkmcnt(0)")
    for t in range(5):
        trr(WO(2), SL(29), t)
        dma_piece(t, SL(28), vD2)
    a(f"s_add_u32 s{sSO}, s{sSO}, {80*1280}")
    a("s_waitcnt lgkmcnt(0)")
    for t in range(5): dma_piece(t, SL(29), vD2)
    final_stage(a, 0, 8, 0, 4, 7, "load", 0)
    a(f"v_cmp_ne_u32 vcc, s{sNON}, v5")
    a("s_cbranch_vccz F_BOK")
    poll(a, 6, vT1, "0", 4)
    a.label("F_BOK")
    a(f"s_mul_i32 s{sHO}, s{sFC}, 10240")
    a(f"s_add_u32 s{sHO}, s{sHO}, {WS_O}")
    a(f"s_add_u32 s{sSO}, s{sHO}, 4096")
    a(f"s_add_u32 s{sT1}, s{sHO}, 8192")
    a.stamp(12)
    cnt_wait(a, vCNT, vT0, 16, 2)
    a.stamp(13)
    order = [0, 1, 2, 5, 6, 7, 3, 4, 8, 9]
    a(f"s_mov_b32 s{sSPIN}, {SPIN}")
    a.label("F_O")
    for k in order:
        so = (sHO, sSO, sT1)[k // 4]
        a(f"buffer_load_dwordx4 {vr(HB(k), 4)}, v{vL16}, {sr(SWS)}, s{so} offen offset:{(k%4)*1024} sc1")
    for n, k in enumerate(order):
        a(f"s_waitcnt vmcnt({9-n})")
        if n == 0:
            a(f"v_max3_u32 v{vT0}, v{HB(k)}, v{HB(k)+1}, v{HB(k)+2}")
            a(f"v_max_u32 v{vT0}, v{vT0}, v{HB(k)+3}")
        else:
            a(f"v_max3_u32 v{vT0}, v{vT0}, v{HB(k)}, v{HB(k)+1}")
            a(f"v_max3_u32 v{vT0}, v{vT0}, v{HB(k)+2}, v{HB(k)+3}")
    a(f"v_cmp_eq_u32 vcc, -1, v{vT0}")
    a("s_cbranch_vccz F_OD")
    if optv("osleep", 2): a(f"s_sleep {optv('osleep', 2)}")
    spin_tail(a, "F_O")
    a.label("F_OD")
    a.stamp(14)
    for n in range(4):
        for t in range(5):
            mf(t, WO(n), HB(order[n]))
            trr(WO(n), SL(30 + n), t)
    def fwr(t, g): a(f"ds_write_b128 v0, {vr(F(t)+4*g, 4)} offset:{128*t + 32*g}")
    for t in range(5):
        for m, n in enumerate(range(4, 10)):
            if t == 0 and n == 6: a("s_waitcnt lgkmcnt(0)")
            mf(t, WO(n) if n < 6 else WO(n - 6), HB(order[n]))
            if t > 0:
                if m < 2: a("s_nop 4")
                else: fwr(t - 1, m - 2)
    final_stage(a, 0, 8, 176, 4, 7, False, 2)
    a("s_nop 3")
    a.stamp(15)
    for g in range(4): fwr(4, g)
    a("s_waitcnt lgkmcnt(0)")
    a("s_barrier")
    a.stamp(16)
    final_stage(a, 0, 8, 176, 4, 7, False, 1)
    final_stage(a, 0, 8, 176, 4, 7, False, 3)
    a.end()
```

```python
import sys, struct, math

NAME = "parallel_sum__grouped_kv_mqa__dense_activation_relu__prompt"
def opt(name): return ("--" + name) in sys.argv
def optv(name, d): return int(sys.argv[sys.argv.index("--" + name) + 1]) if opt(name) else d
G_TSTRIDE = 75 * 2048
WS_G = 0
WS_KV = 64 * G_TSTRIDE
KV_REC = 3072
WS_O = (WS_KV + 66 * KV_REC + 4095) // 4096 * 4096
WS_RS = WS_O + 64 * 40 * 1024
WS_CP = WS_RS + 2048 * 16
WS_F1 = WS_CP + 64 * 5120
WS_F2 = WS_F1 + 256 * 128
WS_XC = WS_F2 + 256 * 128
WS_PROF = WS_XC + 8 * 128
PROFILE = opt("prof")
NSTAMP = 18
WS_END = WS_PROF + (256 * 8 * 256 if PROFILE else 0)
OOB = 0x80000000
QSCALE = math.log2(math.e) / math.sqrt(20.0)
SPIN = 0x40000
NFIRST = optv("nfirst", 1)


def f32bits(x): return struct.unpack("<I", struct.pack("<f", x))[0]

class Asm:
    def __init__(self): self.lines = []; self.n = 0; self.tail = []; self.p2 = False
    def __call__(self, s): self.lines.append("    " + s)
    def label(self, s): self.lines.append(s + ":")
    def raw(self, s): self.lines.append(s)
    def c(self, s): self.lines.append("    ; " + s)
    def uid(self, p): self.n += 1; return f"{p}_{self.n}"
    def stamp(self, i, cyc=False):
        if opt("st") and self.p2 and i in (14, 15, 16): return
        if PROFILE:
            self(f"s_memtime s[100:101]" if cyc else "s_memrealtime s[100:101]")
            self("s_waitcnt lgkmcnt(0)")
            self(f"s_mov_b32 s{64+i}, s100")
    def lstamp(self, slane, v=14):
        if PROFILE and opt("iter"):
            self("s_memrealtime s[100:101]")
            self("s_waitcnt lgkmcnt(0)")
            self(f"s_mov_b32 m0, {slane}" if isinstance(slane, str) else f"s_mov_b32 m0, s{slane}")
            self(f"v_writelane_b32 v{v}, s100, m0")
    def ldump(self, v=14):
        if PROFILE and opt("iter"):
            self(f"s_lshl_b32 s100, s2, 3")
            self(f"s_add_u32 s100, s100, s{sW}")
            self(f"s_lshl_b32 s100, s100, 8")
            self(f"s_add_u32 s100, s100, {WS_PROF+128}")
            self("v_lshlrev_b32 v15, 2, v1")
            self("s_mov_b64 exec, 0xffff")
            self(f"buffer_store_dword v{v}, v15, s[{SWS}:{SWS+3}], s100 offen")
            self("s_mov_b64 exec, -1")
            self("s_waitcnt vmcnt(0)")
    def end(self):
        if PROFILE:
            self("s_waitcnt vmcnt(0)")
            self.stamp(NSTAMP - 1)
            self(f"s_lshl_b32 s3, s2, 3")
            self(f"s_add_u32 s3, s3, s{sW}")
            self(f"s_lshl_b32 s3, s3, 8")
            self(f"s_add_u32 s3, s3, {WS_PROF}")
            self("s_mov_b64 exec, 1")
            self("v_mov_b32 v1, 0")
            for i in range(NSTAMP + 4):
                self(f"v_mov_b32 v2, s{64+i}")
                self(f"buffer_store_dword v2, v1, s[{SWS}:{SWS+3}], s3 offen offset:{4*i}")
        self("s_endpgm")
    def text(self): return "\n".join(self.lines) + "\n"

def vr(b, n=1): return f"v{b}" if n == 1 else f"v[{b}:{b+n-1}]"
def sr(b, n=4): return f"s{b}" if n == 1 else f"s[{b}:{b+n-1}]"
def srd(a, d, p, size):
    a(f"s_mov_b32 s{d}, s{p}")
    a(f"s_mov_b32 s{d+1}, s{p+1}")
    a(f"s_mov_b32 s{d+2}, {size}")
    a(f"s_mov_b32 s{d+3}, 0x00020000")
def csel(a, d, t, f):
    a(f"s_mov_b32 s{d}, {f}")
    a(f"s_cmov_b32 s{d}, {t}")
def split3(a, src, t0, t1, d0, d1):
    a(f"v_and_b32 v{t0}, 0xffff0000, v{src}")
    a(f"v_sub_f32 v{t1}, v{src}, v{t0}")
    a(f"v_lshrrev_b32 v{d0}, 16, v{src}")
    a(f"v_and_b32 v{t0}, 0xffff0000, v{t1}")
    a(f"v_or_b32 v{d0}, v{d0}, v{t0}")
    a(f"v_sub_f32 v{t1}, v{t1}, v{t0}")
    a(f"v_lshrrev_b32 v{d1}, 16, v{t1}")
def halfop(a, op, r, t):
    a(f"v_mov_b32 v{t}, v{r}")
    a("s_nop 1")
    a(f"v_permlane32_swap_b32 v{t}, v{r}")
    a(f"{op} v{r}, v{r}, v{t}")
def umax(a, dst, regs):
    regs = list(regs)
    a(f"v_max3_u32 v{dst}, v{regs[0]}, v{regs[1]}, v{regs[2]}")
    r = regs[3:]
    while len(r) >= 2:
        a(f"v_max3_u32 v{dst}, v{dst}, v{r[0]}, v{r[1]}"); r = r[2:]
    if r: a(f"v_max_u32 v{dst}, v{dst}, v{r[0]}")

SWS, SA, SB, SX, SDBG = 4, 8, 12, 16, 20
sSI = 3
sW, sNON = 24, 25
sRB, sCG, sTT = 26, 27, 28
sQ = sTT
sT0, sT1, sT2 = 29, 30, 31
pX, pWQ, pWK, pWV, pWO, pW1, pW2, pOUT, pDBG, pWS = 32, 34, 36, 38, 40, 44, 46, 48, 50, 52
sWSTEP, sSO, sSTEP, sM0, sC, sDEL, sCC, sOUT, sFL, sQS = range(54, 64)
sT, sHG, sG, sOB = 86, 87, 92, 93
sF2, sWBASE, sT3, sFAST, sST, sSPIN = 94, 95, 96, 97, 98, 99
sXW, sLO = 53, 52
sPB = 51
sSOW, sM0W = 90, 91
sPm, sBAD, sPt = 34, 38, 42
sOm, sOt, sKV, sTGT = 48, 49, 0, 1
sMODE, sCNT, sFQ, sKOK = 8, 9, 88, 89
sCOL, sHO, sFC = 54, 59, 60

def spin_tail(a, L):
    a(f"s_sub_u32 s{sSPIN}, s{sSPIN}, 1")
    a(f"s_cbranch_scc0 {L}")

def poll(a, vaddr, vtmp, soff, sleep=1):
    L, D = a.uid("POLL"), a.uid("POLLED")
    a(f"s_mov_b32 s{sSPIN}, {SPIN}")
    a.label(L)
    a(f"buffer_load_dword v{vtmp}, v{vaddr}, {sr(SWS)}, {soff} offen sc1")
    a("s_waitcnt vmcnt(0)")
    a(f"v_cmp_ne_u32 vcc, s{sNON}, v{vtmp}")
    a(f"s_cbranch_vccz {D}")
    if sleep: a(f"s_sleep {sleep}")
    spin_tail(a, L)
    a.label(D)

def stores(a, lines):
    L, D = a.uid("SLOW"), a.uid("STD")
    a(f"s_cmp_eq_u32 s{sFAST}, 0")
    a(f"s_cbranch_scc1 {L}")
    for l in lines: a(l)
    a.label(D)
    a.tail.append((L, [l + (" sc1" if l.startswith("buffer_store") else "") for l in lines], D))

def xcc_word(a):
    a(f"s_getreg_b32 s{sXW}, hwreg(HW_REG_XCC_ID, 0, 4)")
    a(f"s_lshl_b32 s{sXW}, s{sXW}, 1")
    a(f"s_xor_b32 s{sXW}, s{sXW}, s{sNON}")

def check_fast(a, vaddr, vtmp):
    L = a.uid("CF")
    a(f"s_cmp_lg_u32 s{sFAST}, 0")
    a(f"s_cbranch_scc1 {L}")
    a(f"s_and_b32 s{sT0}, s2, 7")
    a(f"s_lshl_b32 s{sT0}, s{sT0}, 7")
    a(f"s_add_u32 s{sT0}, s{sT0}, {WS_XC}")
    a(f"v_and_b32 v{vaddr}, 31, v1")
    a(f"v_lshlrev_b32 v{vaddr}, 2, v{vaddr}")
    a(f"buffer_load_dword v{vtmp}, v{vaddr}, {sr(SWS)}, s{sT0} offen sc1")
    a("s_waitcnt vmcnt(0)")
    a(f"v_cmp_ne_u32 vcc, s{sXW}, v{vtmp}")
    a("s_cmp_eq_u64 vcc, 0")
    a(f"s_cselect_b32 s{sFAST}, {0 if opt('slow') else 1}, 0")
    a.label(L)

K1_SLOT = 36864
K1_XOFF = 20480
K1_CS = 151552
K1_ST = K1_CS + 2048
WO_STAGE = [83968, 110592, 131072]
L_VT = 104448
RING_ST = 20992
L_OP = 4 * RING_ST
L_MREC = L_OP + 73728
L_CNT = L_MREC + 2048
LDS_BYTES = L_CNT + 64

aS = [16, 32, 48, 64]
aO = lambda i: 80 + 12 * i
aQM = lambda i: 180 + 4 * i
aQT = lambda i: 212 + 2 * i
aKM = [228, 242]; aKT = [232, 246]; aV0 = [234, 248]; aV1 = [238, 252]
avV, avKT = 14, 15

def ldkm(a, b, va): a(f"buffer_load_dwordx4 {vr(aKM[b], 4)}, v{va}, {sr(SWS)}, s{sKV} offen sc1")
def ldkt(a, b): a(f"buffer_load_dwordx2 {vr(aKT[b], 2)}, v{avKT}, {sr(SWS)}, s{sKV} offen sc1")
def ldv(a, u, b): a(f"buffer_load_dwordx4 {vr((aV0, aV1)[u][b], 4)}, v{avV}, {sr(SWS)}, s{sKV} offen" + (" offset:768" if u else "") + " sc1")
def kv_first(a, va):
    a(f"s_mul_i32 s{sKV}, s{sQ}, {16*KV_REC}")
    a(f"s_add_u32 s{sKV}, s{sKV}, {WS_KV}")
    ldkm(a, 0, va); ldkt(a, 0); ldv(a, 0, 0); ldv(a, 1, 0)
    a(f"s_add_u32 s{sKV}, s{sKV}, {KV_REC}")
    ldkm(a, 1, va); ldkt(a, 1)
def zero16(a, r, z):
    a(f"v_mfma_f32_32x32x8_bf16 {vr(r, 16)}, {vr(z, 2)}, {vr(z, 2)}, 0")
def att_zero(a):
    z = aV0[1]
    for r in range(z, z + 8, 2): a(f"v_mov_b64 {vr(r, 2)}, 0")
    for r in range(176, 180, 2): a(f"v_mov_b64 {vr(r, 2)}, 0")
    for r in range(aS[3], 176, 16): zero16(a, r, z)

def row_offsets(a, dst, vL, t0, t1, extra):
    for p in range(5):
        a(f"v_add_u32 v{t0}, {64*p}, v{vL}")
        a(f"v_mul_u32_u24 v{t1}, 3277, v{t0}")
        a(f"v_lshrrev_b32 v{t1}, 16, v{t1}")
        a(f"v_lshlrev_b32 v{t0}, 4, v{t0}")
        a(f"v_mad_u32_u24 v{dst+p}, v{t1}, {extra}, v{t0}")

def gen_p1(a):
    vL, vN, vH, vT0, vT1, vT2, vZ = 1, 2, 3, 4, 5, 6, 7
    vX, vD = 8, 16
    vNON, vROW, vFL, vFV = 21, 22, 23, 22
    vG16, vC4 = 26, 27
    vDW = 56
    FB = [28, 32]
    a(f"s_cmp_ge_u32 s2, 256")
    a("s_cbranch_scc1 L_END")
    a("s_load_dwordx16 s[32:47], s[0:1], 0")
    a("s_load_dwordx4 s[48:51], s[0:1], 64")
    a("s_load_dwordx2 s[52:53], s[0:1], 80")
    a("s_memrealtime s[100:101]")
    a(f"v_lshrrev_b32 v{vT0}, 6, v0")
    a(f"v_and_b32 v{vL}, 63, v0")
    a(f"v_readfirstlane_b32 s{sW}, v{vT0}")
    a(f"s_and_b32 s{sT1}, s2, 7")
    a(f"s_bfe_u32 s{sSI}, s2, 0x10003")
    a(f"s_lshl_b32 s{sCC}, s{sT1}, 1")
    a(f"s_add_u32 s{sRB}, s{sCC}, s{sSI}")
    a(f"s_lshr_b32 s{sCG}, s2, 4")
    a(f"s_sub_u32 s{sT0}, s{sRB}, 9")
    a(f"s_cmp_ge_u32 s{sRB}, 10")
    a(f"s_cselect_b32 s{sCC}, s{sT0}, s{sRB}")
    a(f"s_mov_b32 s{sST}, s{sCC}")
    a(f"s_and_b32 s{sTT}, s{sW}, 3")
    a(f"s_lshl_b32 s{sT0}, s{sRB}, 2")
    a(f"s_add_u32 s{sT3}, s{sT0}, s{sTT}")
    a(f"s_cmp_lt_u32 s{sW}, 4")
    a("s_cbranch_scc1 P1_A")

    def xpiece(p):
        a(f"s_add_u32 m0, s{sM0}, {1024*p}")
        a("s_nop 0")
        a(f"buffer_load_dwordx4 v{vD+p}, {sr(SX)}, s{sSO} offen lds")
    def wpiece(p, kv=False):
        a(f"s_add_u32 m0, s{sM0W}, {(4096 if kv else 1024)*p}")
        a("s_nop 0")
        if kv: a(f"buffer_load_dwordx4 v{vDW}, {sr(SA if p == 0 else SB)}, s{sSOW} offen lds")
        else: a(f"buffer_load_dwordx4 v{vDW+p}, {sr(SA)}, s{sSOW} offen lds")
    def next_chunk(x, w, dm0):
        a(f"s_add_u32 s{sCC}, s{sCC}, 1")
        a(f"s_cmp_eq_u32 s{sCC}, 10")
        a(f"s_cselect_b32 s{sCC}, 0, s{sCC}")
        if x:
            a(f"s_lshl_b32 s{sSO}, s{sCC}, 7")
            a(f"s_add_u32 s{sM0}, s{sM0}, {dm0}")
        if w:
            a(f"s_mul_i32 s{sSOW}, s{sCC}, s{sWSTEP}")
            a(f"s_add_u32 s{sSOW}, s{sSOW}, s{sWBASE}")
            a(f"s_add_u32 s{sM0W}, s{sM0W}, {dm0}")
    def w_setup(wait):
        a(f"s_sub_u32 s{sT0}, s{sCG}, 4")
        a(f"s_cmp_lt_u32 s{sCG}, 4")
        csel(a, sT2, 1280, 3456)
        a(f"s_cselect_b32 s{sT0}, s{sCG}, s{sT0}")
        a(f"s_mul_i32 s{sT0}, s{sT0}, 320")
        a(f"s_lshl_b32 s{sWBASE}, s{sTT}, 4")
        a(f"s_mul_i32 s{sWBASE}, s{sWBASE}, s{sT2}")
        a(f"s_add_u32 s{sWBASE}, s{sWBASE}, s{sT0}")
        a(f"s_lshl_b32 s{sWSTEP}, s{sT2}, 6")
        a(f"s_sub_u32 s{sT2}, s{sT2}, 320")
        row_offsets(a, vDW, vL, vT0, vT1, f"s{sT2}")
        a(f"s_mul_i32 s{sSOW}, s{sCC}, s{sWSTEP}")
        a(f"s_add_u32 s{sSOW}, s{sSOW}, s{sWBASE}")
        a(f"s_mul_i32 s{sM0W}, s{sTT}, 5120")
        a(f"s_cmp_lt_u32 s{sCG}, 4")
        if wait: a("s_waitcnt lgkmcnt(0)")
        a(f"s_cselect_b32 s{SA}, s{pWQ}, s{pW1}")
        a(f"s_cselect_b32 s{SA+1}, s{pWQ+1}, s{pW1+1}")
        csel(a, SA + 2, 640 * 640 * 2, 640 * 1728 * 2)
        a(f"s_mov_b32 s{SA+3}, 0x00020000")
    def st01():
        if PROFILE: a("s_mov_b32 s64, s100")
        a.stamp(1)

    RW = 228
    a(f"s_lshl_b32 s{sT0}, s{sT3}, 5")
    a(f"v_lshrrev_b32 v{vT0}, 3, v{vL}")
    a(f"v_add_u32 v{vT0}, s{sT0}, v{vT0}")
    a(f"v_mul_u32_u24 v{vT0}, 1280, v{vT0}")
    a(f"v_lshrrev_b32 v{vT1}, 4, v{vL}")
    a(f"v_and_b32 v{vT2}, 7, v{vL}")
    a(f"v_xor_b32 v{vT1}, v{vT1}, v{vT2}")
    a(f"v_lshl_add_u32 v{vD}, v{vT1}, 4, v{vT0}")
    a(f"v_xor_b32 v{vT1}, 4, v{vT1}")
    a(f"v_lshl_add_u32 v{vD+1}, v{vT1}, 4, v{vT0}")
    a(f"v_add_u32 v{vD+1}, {8*1280}, v{vD+1}")
    a(f"v_add_u32 v{vD+2}, {16*1280}, v{vD}")
    a(f"v_add_u32 v{vD+3}, {16*1280}, v{vD+1}")
    a(f"s_lshl_b32 s{sSO}, s{sCC}, 7")
    a(f"s_lshl_b32 s{sM0}, s{sTT}, 12")
    a(f"s_add_u32 s{sM0}, s{sM0}, {K1_XOFF}")
    a(f"s_lshl_b32 s{sT0}, s{sRB}, 4")
    a(f"s_add_u32 s{sT0}, s{sT0}, s{sCG}")
    a(f"s_lshl_b32 s{sT0}, s{sT0}, 2")
    a(f"s_add_u32 s{sSTEP}, s{sT0}, s{sTT}")
    a(f"s_mul_i32 s{sT0}, s{sSTEP}, 2560")
    a(f"v_mul_u32_u24 v{vT0}, 40, v{vL}")
    a("s_waitcnt lgkmcnt(0)")
    srd(a, SX, pX, 2048 * 1280)
    st01()
    for p in range(4): xpiece(p)
    a("s_barrier")
    a(f"buffer_load_dwordx4 {vr(RW, 4)}, v{vT0}, {sr(SX)}, s{sT0} offen")
    a(f"buffer_load_dwordx4 {vr(RW+4, 4)}, v{vT0}, {sr(SX)}, s{sT0} offen offset:16")
    a(f"buffer_load_dwordx2 {vr(RW+8, 2)}, v{vT0}, {sr(SX)}, s{sT0} offen offset:32")
    a(f"s_cmp_eq_u32 s{sCG}, 15")
    a("s_cbranch_scc1 P1_KB")
    a("s_branch P1_GB")
    a.label("P1_A")
    a(f"s_cmp_eq_u32 s{sCG}, 15")
    a("s_cbranch_scc1 P1_KA0")
    w_setup(True)
    st01()
    for p in range(5): wpiece(p)
    a("s_barrier")

    def tr_addr(dst, tile):
        a(f"s_cmp_lt_u32 s{sCG}, 4")
        if tile == 4:
            a(f"s_cselect_b32 s{sT0}, 32, 0x100")
            a(f"s_cselect_b32 s{sT1}, 160, 32")
            a(f"s_cselect_b32 s{sT2}, 40, 8")
            a(f"v_mad_u32_u24 v{dst}, v{vC4}, s{sT2}, v{vROW}")
        else:
            a(f"s_cselect_b32 s{sT1}, 40, 32")
            if isinstance(tile, tuple):
                a(f"s_lshl_b32 s{sT0}, s{sT1}, 1")
                a(f"s_mul_i32 s{sT0}, s{sT0}, s{tile[1]}")
            else:
                a(f"s_mul_i32 s{sT0}, s{sT1}, {2*tile}")
            a(f"v_lshl_add_u32 v{dst}, v{vC4}, 3, v{vROW}")
        a(f"v_mad_u32_u24 v{dst}, v{vG16}, s{sT1}, v{dst}")
        a(f"v_add_u32 v{dst}, s{sT0}, v{dst}")

    def body(tag, role, kv):
        A_, B_ = role == "A", role == "B"
        nt = 1 if (kv or B_) else 4
        tiles = [0] if kv else ([0, 1, 2, 3] if A_ else [4])
        sstr, rstr = (1024, 40) if kv else (5120, 320)
        vTR = 16 if A_ else 12
        vSA = 13
        FA = [128, 144] if A_ else [36, 40]
        ACC, P = (64, 160) if A_ else (180, 212)
        GAT = 228
        ST, NM, CSR = (36, 40, 44) if A_ else (44, 48, 50)
        ONE, PUB = 24, 52
        nxt = "P2_FFN" if A_ else "P2_ATT"
        def m4(d, x, y):
            a(f"v_mfma_f32_4x4x4_16b_bf16 {vr(d, 4)}, {vr(x, 2)}, {vr(y, 2)}, {vr(d, 4)}")
        def get_nonce(publish):
            L, D = a.uid("NON"), a.uid("NOND")
            a(f"s_mov_b32 s{sSPIN}, {SPIN}")
            a.label(L)
            a(f"v_readfirstlane_b32 s{sNON}, v{vNON}")
            a(f"s_cmp_lg_u32 s{sNON}, 0")
            a(f"s_cbranch_scc1 {D}")
            a(f"buffer_load_dword v{vNON}, v{vZ}, {sr(SDBG)}, 0 offen sc1")
            a("s_waitcnt vmcnt(0)")
            spin_tail(a, L)
            a.label(D)
            xcc_word(a)
            if publish:
                L = a.uid("XW")
                a(f"s_cmp_lg_u32 s{sW}, 4")
                a(f"s_cbranch_scc1 {L}")
                a(f"s_and_b32 s{sT0}, s2, 7")
                a(f"s_lshl_b32 s{sT0}, s{sT0}, 5")
                a(f"s_lshr_b32 s{sT1}, s2, 3")
                a(f"s_add_u32 s{sT0}, s{sT0}, s{sT1}")
                a(f"s_lshl_b32 s{sT0}, s{sT0}, 2")
                a(f"s_add_u32 s{sT0}, s{sT0}, {WS_XC}")
                a(f"v_mov_b32 v{vT0}, s{sXW}")
                a("s_mov_b64 exec, 1")
                a(f"buffer_store_dword v{vT0}, v{vZ}, {sr(SWS)}, s{sT0} offen sc1")
                a("s_mov_b64 exec, -1")
                a.label(L)
        def row_stats(part=None):
            for p, f in enumerate((rs0, rs1, rs2, rs3)):
                if part is None or part == p: f()
        SU, SQ, R = RW + 10, RW + 11, RW + 12
        def rs0():
            a(f"v_mov_b64 {vr(SU, 2)}, 0")
            for j in range(10):
                a(f"v_dot2c_f32_bf16 v{SU}, v{ONE}, v{RW+j}")
                a(f"v_dot2c_f32_bf16 v{SQ}, v{RW+j}, v{RW+j}")
            a("s_nop 2")
        def rs1():
            for m in ("row_shr:1", "row_shr:2", "row_shr:4", "row_shr:8"):
                a(f"v_add_f32_dpp v{SU}, v{SU}, v{SU} {m} row_mask:0xf bank_mask:0xf bound_ctrl:0")
                a(f"v_add_f32_dpp v{SQ}, v{SQ}, v{SQ} {m} row_mask:0xf bank_mask:0xf bound_ctrl:0")
                a("s_nop 0")
            a(f"v_add_f32_dpp v{SU}, v{SU}, v{SU} row_bcast:15 row_mask:0xa bank_mask:0xf")
            a(f"v_add_f32_dpp v{SQ}, v{SQ}, v{SQ} row_bcast:15 row_mask:0xa bank_mask:0xf")
        def rs2():
            a(f"v_mul_f32 v{SU}, {f32bits(1.0/640):#x}, v{SU}")
            a(f"v_mul_f32 v{SQ}, {f32bits(1.0/640):#x}, v{SQ}")
            a(f"v_fma_f32 v{SQ}, -v{SU}, v{SU}, v{SQ}")
            a(f"v_max_f32 v{SQ}, 0, v{SQ}")
            a(f"v_cvt_pk_bf16_f32 v{R}, -v{SU}, -v{SU}")
            a(f"v_cvt_pk_bf16_f32 v{SQ}, v{SQ}, v{SQ}")
            a(f"v_and_b32 v{SQ}, 0xffff0000, v{SQ}")
            a(f"v_add_f32 v{SQ}, {f32bits(1e-5):#x}, v{SQ}")
            a(f"v_cvt_pk_bf16_f32 v{SQ}, v{SQ}, v{SQ}")
            a(f"v_and_b32 v{SQ}, 0xffff0000, v{SQ}")
            a(f"v_sqrt_f32 v{SQ}, v{SQ}")
            a("s_nop 0")
            a(f"v_cvt_pk_bf16_f32 v{SQ}, v{SQ}, v{SQ}")
            a(f"v_and_b32 v{SQ}, 0xffff0000, v{SQ}")
            a(f"v_rcp_f32 v{R+2}, v{SQ}")
        def rs3():
            a(f"v_mov_b32 v{R+1}, v{vNON}")
            a(f"v_mov_b32 v{R+3}, v{vNON}")
            a(f"v_lshlrev_b32 v{vT0}, 4, v{vH}")
            a(f"s_lshl_b32 s{sT0}, s{sSTEP}, 5")
            a(f"s_add_u32 s{sT0}, s{sT0}, {WS_RS}")
            a("s_mov_b32 exec_lo, 0x80000000")
            a("s_mov_b32 exec_hi, 0x80000000")
            a(f"buffer_store_dwordx4 {vr(R, 4)}, v{vT0}, {sr(SWS)}, s{sT0} offen sc1")
            a("s_mov_b64 exec, -1")
        def row_load(dst):
            a(f"s_lshl_b32 s{sT0}, s{sT3}, 9")
            a(f"s_add_u32 s{sT0}, s{sT0}, {WS_RS}")
            a(f"v_lshlrev_b32 v{vT0}, 4, v{vN}")
            a(f"buffer_load_dwordx4 {vr(dst, 4)}, v{vT0}, {sr(SWS)}, s{sT0} offen sc1")
        def tag_check(regs, again, ok):
            a(f"v_xor_b32 v{vT1}, s{sNON}, v{regs[0]}")
            for r in regs[1:]: a(f"v_bitop3_b32 v{vT1}, v{r}, s{sNON}, v{vT1} bitop3:0xbe")
            a(f"v_cmp_ne_u32 vcc, 0, v{vT1}")
            a(f"s_cbranch_vccz {ok}")
            a("s_sleep 2")
            spin_tail(a, again)
            a.label(ok)
        def next_slot():
            a(f"s_and_b32 s{sT0}, s{sC}, 3")
            csel(a, sT1, K1_SLOT, -3*K1_SLOT)
            a(f"s_cmp_eq_u32 s{sT0}, 3")
            csel(a, sDEL, -3*K1_SLOT, K1_SLOT)
            for s in range(4): a(f"v_add_u32 v{vX+s}, s{sDEL}, v{vX+s}")
            for i in range(nt): a(f"v_add_u32 v{vTR+i}, s{sDEL}, v{vTR+i}")
        srd(a, SWS, pWS, WS_END)
        srd(a, SDBG, pDBG, 256)
        a(f"v_mov_b32 v{vZ}, 0")
        if A_ and not kv:
            L = a.uid("NONCE")
            a(f"s_or_b32 s{sT0}, s2, s{sW}")
            a(f"s_cbranch_scc1 {L}")
            if PROFILE: a("s_or_b32 s100, s65, 1")
            else: a("s_or_b32 s100, s100, 1")
            a(f"v_mov_b32 v{vT0}, s100")
            a(f"buffer_store_dword v{vT0}, v{vZ}, {sr(SDBG)}, 0 offen sc1")
            a.label(L)
        a(f"v_mov_b64 {vr(PUB, 2)}, 0")
        a(f"v_mov_b64 {vr(PUB+2, 2)}, 0")
        a(f"v_and_b32 v{vN}, 31, v{vL}")
        a(f"v_lshrrev_b32 v{vH}, 5, v{vL}")
        for i in range(nt): zero16(a, ACC + 16 * i, PUB)
        if B_ or kv:
            zero16(a, P, PUB)
            a(f"v_mov_b32 v{ONE}, 0x3f803f80")
            a(f"v_mov_b32 v{ONE+1}, 0x3f803f80")
        a(f"v_bfe_u32 v{vT0}, v{vL}, 1, 3")
        a(f"v_xor_b32 v{vT0}, v{vT0}, v{vH}")
        a(f"s_lshl_b32 s{sT0}, s{sTT}, 12")
        a(f"s_add_u32 s{sT0}, s{sT0}, {K1_XOFF}")
        a(f"v_lshl_add_u32 v{vT1}, v{vN}, 7, s{sT0}")
        for s in range(4):
            a(f"v_xor_b32 v{vT2}, {2*s}, v{vT0}")
            a(f"v_lshl_add_u32 v{vX+s}, v{vT2}, 4, v{vT1}")
        a(f"v_bfe_u32 v{vT0}, v{vL}, 2, 2")
        a(f"v_lshl_add_u32 v{vROW}, v{vH}, 3, v{vT0}")
        a(f"v_bfe_u32 v{vG16}, v{vL}, 4, 1")
        a(f"v_and_b32 v{vC4}, 3, v{vL}")
        if kv:
            a(f"v_lshl_add_u32 v{vT0}, v{vG16}, 2, v{vC4}")
            a(f"v_min_u32 v{vT0}, 4, v{vT0}")
            a(f"v_mul_u32_u24 v{vROW}, 40, v{vROW}")
            a(f"v_lshl_add_u32 v{vTR}, v{vT0}, 3, v{vROW}")
            if B_: a(f"v_add_u32 v{vTR}, 4096, v{vTR}")
        else:
            a(f"v_mul_u32_u24 v{vROW}, 320, v{vROW}")
            for i, t in enumerate(tiles): tr_addr(vTR + i, t)
            if B_:
                tr_addr(vSA, ("s", sTT))
                w_setup(False)
        next_chunk(B_, A_ or not kv, K1_SLOT)
        if B_:
            for p in range(4): xpiece(p)
        else:
            for p in range(2 if kv else 5): wpiece(p, kv)
        next_chunk(B_, kv != B_, K1_SLOT)
        a(f"s_and_b32 s{sT}, s2, 7")
        a(f"s_lshl_b32 s{sT}, s{sT}, 3")
        a(f"s_lshr_b32 s{sT0}, s2, 5")
        a(f"s_add_u32 s{sT}, s{sT}, s{sT0}")
        a(f"s_bfe_u32 s{sHG}, s2, 0x20003")
        a(f"s_mul_i32 s{sG}, s{sT}, {G_TSTRIDE}")
        a(f"s_mul_i32 s{sOB}, s{sT}, {32*1280}")
        a(f"s_mul_i32 s{sT0}, s{sHG}, 320")
        a(f"s_add_u32 s{sOB}, s{sOB}, s{sT0}")
        a(f"s_lshl_b32 s{sF2}, s{sT}, 2")
        a(f"s_add_u32 s{sF2}, s{sF2}, s{sHG}")
        a(f"s_lshl_b32 s{sF2}, s{sF2}, 7")
        a(f"s_add_u32 s{sF2}, s{sF2}, {WS_F2}")
        a(f"s_mul_i32 s{sOUT}, s{sT3}, {G_TSTRIDE}")
        a(f"s_mul_i32 s{sT0}, s{sCG}, 10240")
        a(f"s_add_u32 s{sOUT}, s{sOUT}, s{sT0}")
        a(f"s_cmp_lt_u32 s{sCG}, 4")
        a(f"s_cselect_b32 s{sQS}, {f32bits(QSCALE):#x}, 1.0")
        a(f"s_cselect_b32 s{sLO}, 0x80008000, 0")
        a(f"s_lshl_b32 s{sFL}, s{sRB}, 4")
        a(f"s_add_u32 s{sFL}, s{sFL}, s{sCG}")
        a(f"s_lshl_b32 s{sFL}, s{sFL}, 7")
        a(f"s_add_u32 s{sFL}, s{sFL}, {WS_F1}")
        a(f"s_mov_b32 s{sFAST}, 0")
        a(f"s_mov_b32 s{sC}, 0")
        if B_:
            srd(a, SB, pOUT, 2048 * 1280)
        def att_setup(part=None):
            for p, f in enumerate((as0, as1, as2, as3)):
                if part is None or part == p: f()
        def as0():
            att_zero(a)
            a(f"v_mul_u32_u24 v{avV}, 384, v{vH}")
            a(f"v_lshl_add_u32 v{avV}, v{vN}, 4, v{avV}")
            a(f"v_add_u32 v{avV}, 1024, v{avV}")
            a(f"v_mov_b32 v{vT0}, {OOB:#x}")
            a(f"v_cmp_gt_u32 vcc, 21, v{vN}")
            a(f"v_min_u32 v{avKT}, 32, v{vL}")
            a(f"v_lshlrev_b32 v{avKT}, 3, v{avKT}")
            a(f"v_cndmask_b32 v{avV}, v{vT0}, v{avV}, vcc")
            a(f"v_add_u32 v{avKT}, 2560, v{avKT}")
        def as1(): pairs((0, 1))
        def pairs(js):
            a(f"s_mul_i32 s{sT2}, s{sHG}, 10240")
            a(f"s_add_u32 s{sT2}, s{sT2}, s{sG}")
            for j in js:
                a(f"s_add_u32 s{sT0}, s{sQ}, {j}")
                a(f"s_and_b32 s{sT0}, s{sT0}, 3")
                a(f"s_lshl_b32 s{sPm+j}, s{sT0}, 11")
                a(f"s_add_u32 s{sPm+j}, s{sPm+j}, s{sT2}")
                a(f"s_lshr_b32 s{sT1}, s{sT0}, 1")
                a(f"s_lshl_b32 s{sT1}, s{sT1}, 10")
                a(f"s_and_b32 s{sT0}, s{sT0}, 1")
                a(f"s_lshl_b32 s{sT0}, s{sT0}, 3")
                a(f"s_add_u32 s{sT1}, s{sT1}, s{sT0}")
                a(f"s_add_u32 s{sT1}, s{sT1}, s{sT2}")
                a(f"s_add_u32 s{sPt+j}, s{sT1}, 8192")
        def as2(): pairs((2, 3))
        def as3():
            a(f"s_mul_i32 s{sT2}, s{sT}, 40960")
            a(f"s_add_u32 s{sT2}, s{sT2}, {WS_O}")
            a(f"s_sub_u32 s{sT2}, s{sT2}, s{sG}")
            a(f"s_add_u32 s{sOm}, s{sPm}, s{sT2}")
            a(f"s_add_u32 s{sOt}, s{sPt}, s{sT2}")
            a(f"s_mov_b32 s{sTGT}, 0")
            a(f"v_mov_b32 v{vT0}, {L_CNT}")
            a(f"ds_write_b128 v{vT0}, {vr(aV0[1], 4)}")
            a(f"s_lshr_b32 s{sT0}, s{sT}, 2")
            a(f"s_lshl_b32 s{sT0}, s{sT0}, 4")
            a(f"s_add_u32 s{sT0}, s{sT0}, s{sHG}")
            a(f"s_lshl_b32 s{sT0}, s{sT0}, 5")
            a(f"s_and_b32 s{sT1}, s{sT}, 3")
            a(f"s_add_u32 s{sT0}, s{sT0}, s{sT1}")
            a(f"s_lshl_b32 s{sT0}, s{sT0}, 2")
            a(f"s_add_u32 s{sFQ}, s{sT0}, {WS_F1 + 32}")
            a(f"v_and_b32 v{vT0}, 15, v{vL}")
            a(f"v_lshlrev_b32 v{vT0}, 11, v{vT0}")
            a(f"v_add_u32 v{vT0}, {WS_F1 + 15*128}, v{vT0}")
            a(f"s_and_b32 s{sT0}, s2, 7")
            a(f"s_lshl_b32 s{sT0}, s{sT0}, 7")
            a(f"s_add_u32 s{sT0}, s{sT0}, {WS_XC}")
            a(f"v_cmp_gt_u32 vcc, 32, v{vL}")
            a(f"v_lshl_add_u32 v{vT1}, v{vN}, 2, s{sT0}")
            a("s_nop 0")
            a(f"v_cndmask_b32 v{vFL}, v{vT1}, v{vT0}, vcc")

        if kv:
            nd = 4 if B_ else 2
            XB, WA = [28, ACC + 16], [128, 144] if A_ else [96, 112]
            def pieces(rng):
                for p in rng:
                    if p < nd: xpiece(p) if B_ else wpiece(p, True)
            pieces(range(4))
            next_chunk(B_, A_, K1_SLOT)
            a(f"s_waitcnt vmcnt({2*nd + (0 if A_ else 3)})")
            a.stamp(2)
            a("s_barrier")
            a.stamp(3); a.stamp(NSTAMP, True)
            for s in range(4):
                a(f"ds_read_b128 {vr(XB[0]+4*s, 4)}, v{vX+s}")
                a(f"ds_read_b64_tr_b16 {vr(WA[0]+4*s, 2)}, v{vTR} offset:{s*sstr}")
                a(f"ds_read_b64_tr_b16 {vr(WA[0]+4*s+2, 2)}, v{vTR} offset:{s*sstr+4*rstr}")
            a(f"buffer_load_dword v{vNON}, v{vZ}, {sr(SDBG)}, 0 offen sc1")
            pieces(range(4))
            a.label(f"P1_L{tag}")
            for b in range(2):
                next_slot()
                next_chunk(B_, A_, f"s{sT1}")
                if b == 0:
                    L = a.uid("KS")
                    a(f"s_cmp_lg_u32 s{sC}, 6")
                    a(f"s_cbranch_scc1 {L}")
                    if B_: a(f"s_mov_b32 s{SX+2}, 0")
                    else:
                        a(f"s_mov_b32 s{SA+2}, 0")
                        a(f"s_mov_b32 s{SB+2}, 0")
                    a.label(L)
                a(f"s_waitcnt vmcnt({2*nd}) lgkmcnt(0)")
                a("s_barrier")
                for s in range(4):
                    a(f"v_mfma_f32_32x32x16_bf16 {vr(ACC, 16)}, {vr(WA[b]+4*s, 4)}, {vr(XB[b]+4*s, 4)}, {vr(ACC, 16)}")
                    a(f"ds_read_b128 {vr(XB[b^1]+4*s, 4)}, v{vX+s}")
                    a(f"ds_read_b64_tr_b16 {vr(WA[b^1]+4*s, 2)}, v{vTR} offset:{s*sstr}")
                    a(f"ds_read_b64_tr_b16 {vr(WA[b^1]+4*s+2, 2)}, v{vTR} offset:{s*sstr+4*rstr}")
                    for j in range(2): m4(P + 4*j, ONE, WA[b]+4*s+2*j)
                    pieces([s])
                if b == 1:
                    L, L2 = a.uid("KN"), a.uid("KR")
                    a(f"s_cmp_lg_u32 s{sC}, 1")
                    a(f"s_cbranch_scc1 {L}")
                    get_nonce(B_)
                    if B_: row_stats()
                    a.label(L)
                    a(f"s_cmp_lg_u32 s{sC}, 7")
                    a(f"s_cbranch_scc1 {L2}")
                    row_load(ST + 16)
                    a.label(L2)
                if A_: a.lstamp(sC)
                a(f"s_add_u32 s{sC}, s{sC}, 1")
            a(f"s_cmp_lt_u32 s{sC}, 10")
            a(f"s_cbranch_scc1 P1_L{tag}")
            a.stamp(4); a.stamp(NSTAMP + 1, True)
            if A_: a.ldump()
            R = ST + 16
            a(f"s_mov_b32 s{sSPIN}, {SPIN}")
            a(f"s_branch P1_GW{tag}")
            a.label(f"P1_GA{tag}")
            row_load(R)
            a.label(f"P1_GW{tag}")
            a("s_waitcnt vmcnt(0) lgkmcnt(0)")
            tag_check([R + 1, R + 3], f"P1_GA{tag}", f"P1_FOK{tag}")
            a(f"v_add_f32 v{P}, v{P}, v{P+4}")
            split3(a, P, vT0, vT1, CSR, CSR + 1)
            a(f"v_mov_b32 v{R+1}, v{R}")
            a(f"v_mov_b32 v{R+3}, v{R+2}")
            a(f"v_lshlrev_b32 v{vT2}, 4, v{vL}")
            a(f"v_mfma_f32_32x32x8_bf16 {vr(ACC, 16)}, {vr(CSR, 2)}, {vr(R, 2)}, {vr(ACC, 16)}")
            a("s_nop 9")
            a(f"s_mul_i32 s{sT0}, s{sT3}, {KV_REC}")
            a(f"s_add_u32 s{sT0}, s{sT0}, {WS_KV}")
            for j in range(6): a(f"v_pk_mul_f32 {vr(ACC+2*j, 2)}, {vr(ACC+2*j, 2)}, {vr(R+2, 2)}")
            if A_:
                for j in range(6): a(f"v_cvt_pk_bf16_f32 v{P+j}, v{ACC+2*j}, v{ACC+2*j+1}")
                a(f"v_min_u32 v{vT0}, 32, v{vL}")
                a(f"v_lshlrev_b32 v{vT0}, 3, v{vT0}")
                a("s_mov_b32 exec_lo, 0")
                a(f"v_mov_b32 v{P+4}, 0x3f803f80")
                a(f"v_mov_b32 v{P+5}, 0x3f80")
                a("s_mov_b32 exec_lo, -1")
                a(f"buffer_store_dwordx4 {vr(P, 4)}, v{vT2}, {sr(SWS)}, s{sT0} offen sc1")
                a(f"buffer_store_dwordx2 {vr(P+4, 2)}, v{vT0}, {sr(SWS)}, s{sT0} offen offset:2560 sc1")
            else:
                a("s_mov_b32 exec_lo, 0")
                a(f"v_mov_b32 v{ACC+8}, 1.0")
                a("s_mov_b32 exec_lo, -1")
                for j in range(6): a(f"v_cvt_pk_bf16_f32 v{P+j}, v{ACC+2*j}, v{ACC+2*j+1}")
                a(f"s_mul_i32 s{sT1}, s{sTT}, 1536")
                a(f"s_add_u32 s{sT1}, s{sT1}, {L_VT}")
                a(f"v_lshrrev_b32 v{vT0}, 3, v{vN}")
                a(f"v_mul_u32_u24 v{vT0}, 384, v{vT0}")
                a(f"v_and_b32 v{vT1}, 7, v{vN}")
                a(f"v_lshl_add_u32 v{vT0}, v{vT1}, 1, v{vT0}")
                a(f"v_lshl_add_u32 v{vT0}, v{vH}, 6, v{vT0}")
                a(f"v_add_u32 v{vT0}, s{sT1}, v{vT0}")
                for r in range(12):
                    op = "ds_write_b16" if r % 2 == 0 else "ds_write_b16_d16_hi"
                    a(f"{op} v{vT0}, v{P+r//2} offset:{(r//4)*128 + (r%4)*16}")
                a(f"v_add_u32 v{vT0}, s{sT1}, v{vT2}")
                a("s_waitcnt lgkmcnt(0)")
                a(f"ds_read_b128 {vr(P+8, 4)}, v{vT0}")
                a(f"ds_read_b128 {vr(P+12, 4)}, v{vT0} offset:1024")
                a("s_waitcnt lgkmcnt(0)")
                a(f"buffer_store_dwordx4 {vr(P+8, 4)}, v{vT2}, {sr(SWS)}, s{sT0} offen offset:1024 sc1")
                a("s_mov_b32 exec_hi, 0")
                a(f"buffer_store_dwordx4 {vr(P+12, 4)}, v{vT2}, {sr(SWS)}, s{sT0} offen offset:2048 sc1")
                a("s_mov_b32 exec_hi, -1")
            a.stamp(5)
            a("s_waitcnt vmcnt(0) lgkmcnt(0)")
            a("s_barrier")
            if B_:
                a(f"s_mov_b32 s{sKOK}, 0")
                a(f"s_cmp_lg_u32 s{sW}, 4")
                a(f"s_cbranch_scc1 P1_KNP")
                a("s_mov_b64 exec, 1")
                a(f"buffer_store_dword v{vNON}, v{vZ}, {sr(SWS)}, s{sFL} offen sc1")
                a("s_mov_b64 exec, -1")
                a.label("P1_KNP")
                att_setup()
                a("s_waitcnt lgkmcnt(0)")
                a("s_barrier")
            else:
                a("s_barrier")
                srd(a, SX, pWO, 640 * 1280)
                a("s_movk_i32 s100, 960")
                row_offsets(a, vDW, vL, vT0, vT1, "s100")
                a(f"s_mul_i32 s{sT2}, s{sW}, 5120")
                a(f"s_mul_i32 s{sT0}, s{sW}, {160*1280}")
                a(f"s_mul_i32 s{sT1}, s{sHG}, 320")
                a(f"s_add_u32 s{sT0}, s{sT0}, s{sT1}")
                a(f"s_add_u32 s{sT0}, s{sT0}, {100*1280}")
                for i in range(3):
                    for p in range(5):
                        a(f"s_add_u32 m0, s{sT2}, {WO_STAGE[i] + p*1024}")
                        a("s_nop 0")
                        a(f"buffer_load_dwordx4 v{vDW+p}, {sr(SX)}, s{sT0} offen lds")
                    a(f"s_add_u32 s{sT0}, s{sT0}, {20*1280}")
            a(f"s_branch {nxt}")
            return

        def mfma(i, p): a(f"v_mfma_f32_32x32x16_bf16 {vr(ACC+16*i, 16)}, {vr(FA[p]+4*i, 4)}, {vr(FB[p], 4)}, {vr(ACC+16*i, 16)}")
        def rdb(q, ns): a(f"ds_read_b128 {vr(FB[q], 4)}, v{vX+ns}")
        def rda(q, i, ns):
            a(f"ds_read_b64_tr_b16 {vr(FA[q]+4*i, 2)}, v{vTR+i} offset:{ns*sstr}")
            a(f"ds_read_b64_tr_b16 {vr(FA[q]+4*i+2, 2)}, v{vTR+i} offset:{ns*sstr+4*rstr}")
        def rank1(i): a(f"v_mfma_f32_32x32x8_bf16 {vr(ACC+16*i, 16)}, {vr(CSR+2*i, 2)}, {vr(NM, 2)}, {vr(ACC+16*i, 16)}")
        def pack_store(i, t):
            for j in range(8): a(f"v_pk_mul_f32 {vr(ACC+16*i+2*j, 2)}, {vr(ACC+16*i+2*j, 2)}, {vr(ST, 2)}")
            for j in range(8): a(f"v_cvt_pk_bf16_f32 v{P+8*i+j}, v{ACC+16*i+2*j}, v{ACC+16*i+2*j+1}")
            for j in range(8): a(f"v_pk_max_i16 v{P+8*i+j}, v{P+8*i+j}, s{sLO}")
            a(f"s_add_u32 s{sT0}, s{sOUT}, {2048*t}")
            stores(a, [f"buffer_store_dwordx4 {vr(P+8*i+4*e, 4)}, v{vT2}, {sr(SWS)}, s{sT0} offen offset:{1024*e}" for e in range(2)])
        def signal(vn):
            a.stamp(5)
            a(f"s_lshl_b32 s{sT0}, s{sW}, 2")
            a(f"s_add_u32 s{sT0}, s{sT0}, s{sFL}")
            a("s_mov_b64 exec, 1")
            a("s_waitcnt vmcnt(0)")
            stores(a, [f"buffer_store_dword v{vn}, v{vZ}, {sr(SWS)}, s{sT0} offen offset:32"])
            a("s_mov_b64 exec, -1")
            a(f"s_branch {nxt}")
        if A_:
            NM, ST = 36, 38
            vRS, vRC = 20, 21
            a(f"s_lshl_b32 s{sT0}, s{sTT}, 10")
            a(f"s_add_u32 s{sT0}, s{sT0}, {K1_ST}")
            a(f"v_lshl_add_u32 v{vRS}, v{vN}, 5, s{sT0}")
            a(f"v_lshlrev_b32 v{vRC}, 3, v{vL}")
            a(f"v_add_u32 v{vRC}, {K1_CS}, v{vRC}")
            a(f"v_lshlrev_b32 v{vT2}, 4, v{vL}")
            srd(a, SX, pW2, 1728 * 1280)
            a(f"s_mul_i32 s{sPB}, s{sRB}, 15")
            a(f"s_add_u32 s{sPB}, s{sPB}, s{sCG}")
            a(f"s_lshl_b32 s{sPB}, s{sPB}, 2")
            a(f"s_add_u32 s{sPB}, s{sPB}, s{sTT}")
            a(f"s_mul_i32 s{sSO}, s{sPB}, {7*128}")
            a(f"s_mul_i32 s{sPB}, s{sPB}, {18*128}")
            srd(a, SB, pWO, 640 * 1280)
            a(f"v_lshlrev_b32 v{vT0}, 7, v{vL}")
            a("s_waitcnt vmcnt(5)")
            a.stamp(2)
            a("s_barrier")
            rdb(0, 0)
            for i in range(4): rda(0, i, 0)
            a.stamp(3); a.stamp(NSTAMP, True)
            def step(s, pre=None, extra=0):
                p, q, ns = s & 1, (s + 1) & 1, (s + 1) & 3
                for i in range(4):
                    if pre is None: a(f"s_waitcnt lgkmcnt({min(15, 2*(3-i) + ((1 + 2*i) if i else 0) + extra)})")
                    mfma(i, p)
                    if i == 0:
                        if pre is not None: pre()
                        rdb(q, ns)
                    rda(q, i, ns)
            a.raw(".p2align 3")
            a.label(f"P1_L{tag}")
            for s in range(3): step(s)
            a(f"s_and_b32 s{sT0}, s{sC}, 3")
            a(f"s_cmp_eq_u32 s{sT0}, 3")
            csel(a, sDEL, -3*K1_SLOT, K1_SLOT)
            for s in range(4): a(f"v_add_u32 v{vX+s}, s{sDEL}, v{vX+s}")
            for i in range(4): a(f"v_add_u32 v{vTR+i}, s{sDEL}, v{vTR+i}")
            TC = optv("tc", 3)
            a(f"s_bitcmp1_b32 {1 | (1 << TC):#x}, s{sC}")
            a("s_waitcnt lgkmcnt(0)")
            def pre():
                a(f"s_cbranch_scc1 P1_X{tag}")
                a.label(f"P1_W1{tag}")
                a("s_barrier")
            step(3, pre)
            a.lstamp(sC)
            a(f"s_add_u32 s{sC}, s{sC}, 1")
            a(f"s_cmp_lt_u32 s{sC}, 9")
            a(f"s_cbranch_scc1 P1_L{tag}")
            a(f"ds_read_b128 {vr(NM, 4)}, v{vRS}")
            a(f"ds_read_b64 {vr(40, 2)}, v{vRS} offset:16")
            for i in range(4): a(f"ds_read_b64 {vr(CSR+2*i, 2)}, v{vRC} offset:{512*i}")
            step(0, None, 6)
            step(1)
            for i in range(4):
                rank1(i)
                if i == 0: rdb(1, 3)
                rda(1, i, 3)
            a(f"v_readfirstlane_b32 s{sNON}, v40")
            a(f"v_readfirstlane_b32 s{sFAST}, v41")
            a("s_waitcnt lgkmcnt(6)")
            mfma(0, 0); mfma(0, 1)
            a("s_waitcnt lgkmcnt(0)")
            a("s_barrier")
            a.stamp(4); a.stamp(NSTAMP + 1, True)
            mfma(1, 0); mfma(1, 1)
            xcc_word(a)
            a("s_nop 4")
            for i in range(4):
                if i < 2: mfma(i + 2, 0); mfma(i + 2, 1)
                pack_store(i, i)
            a.ldump()
            signal(40)
            a.label(f"P1_X{tag}")
            a("s_waitcnt vmcnt(0)")
            a(f"s_cmp_lg_u32 s{sC}, {TC}")
            a(f"s_cbranch_scc1 P1_W1{tag}")
            a("s_mov_b64 exec, 0x7f")
            a(f"buffer_load_dword v230, v{vT0}, {sr(SB)}, s{sSO} offen")
            a("s_mov_b64 exec, 0x3ffff")
            a(f"buffer_load_dword v231, v{vT0}, {sr(SX)}, s{sPB} offen")
            a("s_mov_b64 exec, -1")
            a(f"s_branch P1_W1{tag}")
            return
        NM, ST = 44, 46
        vWO, CG, RR = 200, 204 - 8, 206
        CG = 196
        a(f"s_lshl_b32 s{sPB}, s{sCG}, 2")
        a(f"s_add_u32 s{sPB}, s{sPB}, s{sTT}")
        a(f"s_mul_i32 s{sPB}, s{sPB}, 5120")
        a(f"s_add_u32 s{sPB}, s{sPB}, {WS_CP}")
        if opt("zearly"): att_setup(0)
        a(f"s_sub_u32 s{sM0}, s{sM0}, {2*K1_SLOT}")
        a(f"s_sub_u32 s{sM0W}, s{sM0W}, {2*K1_SLOT}")
        a("s_setprio 1")
        ops = ["X0"] * 4 + ["R"] * 3 + ["D1"] * 4
        def vm(tag_, n=1): ops.extend([tag_] * n)
        def wait(*tags):
            last = max(i for i, t in enumerate(ops) if t in tags)
            return len(ops) - 1 - last
        def xp(c, p):
            a(f"s_add_u32 m0, s{sM0}, {(c & 3)*K1_SLOT + 1024*p}")
            a("s_nop 0")
            a(f"buffer_load_dwordx4 v{vD+p}, {sr(SX)}, s{sSO} offen lds"); vm(f"D{c}")
        def wp(c, p):
            base = (c & 3) * K1_SLOT if c < 10 else WO_STAGE[c - 10]
            a(f"s_add_u32 m0, s{sM0W}, {base + 1024*p}")
            a("s_nop 0")
            a(f"buffer_load_dwordx4 v{(vDW if c < 10 else vWO)+p}, {sr(SA)}, s{sSOW} offen lds"); vm(f"D{c}")
        def adv(c):
            if c < 10:
                a(f"s_add_u32 s{sCC}, s{sCC}, 1")
                a(f"s_cmp_eq_u32 s{sCC}, 10")
                a(f"s_cselect_b32 s{sCC}, 0, s{sCC}")
                a(f"s_lshl_b32 s{sSO}, s{sCC}, 7")
                a(f"s_mul_i32 s{sSOW}, s{sCC}, s{sWSTEP}")
                a(f"s_add_u32 s{sSOW}, s{sSOW}, s{sWBASE}")
            elif c == 10:
                srd(a, SA, pWO, 640 * 1280)
                a(f"s_mul_i32 s{sSOW}, s{sTT}, {160*1280}")
                a(f"s_mul_i32 s{sT0}, s{sHG}, 320")
                a(f"s_add_u32 s{sSOW}, s{sSOW}, s{sT0}")
                a(f"s_add_u32 s{sSOW}, s{sSOW}, {100*1280}")
            elif c < 13:
                a(f"s_add_u32 s{sSOW}, s{sSOW}, {20*1280}")
        def f_nonce(): get_nonce(True)
        def f_cspub():
            a(f"v_add_f32 v{PUB}, v{P}, v{P+8}")
            a(f"v_add_f32 v{PUB+2}, v{P+4}, v{P+12}")
            halfop(a, "v_add_f32", PUB, vT0); halfop(a, "v_add_f32", PUB + 2, vT0)
            a(f"v_mov_b32 v{PUB+1}, v{vNON}")
            a(f"v_mov_b32 v{PUB+3}, v{vNON}")
            a(f"v_lshlrev_b32 v{vT2}, 4, v{vL}")
            a(f"s_lshl_b32 s{sT1}, s{sST}, 9")
            a(f"s_add_u32 s{sT0}, s{sPB}, s{sT1}")
            a("s_mov_b32 exec_hi, 0")
            a(f"buffer_store_dwordx4 {vr(PUB, 4)}, v{vT2}, {sr(SWS)}, s{sT0} offen sc1"); vm("S")
            a("s_mov_b32 exec_hi, -1")
        def f_rowpub(): row_stats(3); vm("S")
        def f_wo():
            a(f"s_movk_i32 s{sT2}, 960")
            row_offsets(a, vWO, vL, vT0, vT1, f"s{sT2}")
        def gather(js, count=True):
            for j in js:
                if j == 0:
                    row_load(RR)
                    a(f"v_mul_u32_u24 v{vT1}, 2560, v{vH}")
                    a(f"v_add_u32 v{vSA}, v{vT0}, v{vT1}")
                else:
                    a(f"buffer_load_dwordx4 {vr(GAT+4*(j-1), 4)}, v{vSA}, {sr(SWS)}, s{sPB} offen offset:{512*(j-1)} sc1")
                if count: vm("G")
        def f_words(t):
            a(f"buffer_load_dword v{vFV}, v{vFL}, {sr(SWS)}, 0 offen sc1"); vm(t)
        def f_fin0():
            a(f"s_mov_b32 s{sSPIN}, {SPIN}")
            a(f"s_waitcnt vmcnt({wait('G', 'XW')})")
            a(f"v_cmp_ne_u32 vcc, s{sXW}, v{vFV}")
            a("s_cmp_eq_u32 vcc_hi, 0")
            a(f"s_cselect_b32 s{sFAST}, {0 if opt('slow') else 1}, 0")
            a.label(f"P1_FC{tag}")
            tag_check([RR + 1, RR + 3] + [GAT + 2*j + 1 for j in range(10)], f"P1_GA{tag}", f"P1_FOK{tag}")
        def f_fin1():
            a(f"v_mov_b32 v{NM}, v{RR}")
            a(f"v_mov_b32 v{NM+1}, v{RR}")
            a(f"v_mul_f32 v{ST}, s{sQS}, v{RR+2}")
            a(f"v_mul_f32 v{ST+1}, s{sQS}, v{RR+2}")
            a(f"v_mov_b32 v{RR}, s{sNON}")
            a(f"v_mov_b32 v{RR+1}, s{sFAST}")
            a(f"s_lshl_b32 s{sT0}, s{sTT}, 10")
            a(f"s_add_u32 s{sT0}, s{sT0}, {K1_ST}")
            a(f"v_lshl_add_u32 v{vT0}, v{vN}, 5, s{sT0}")
            a(f"ds_write_b128 v{vT0}, {vr(NM, 4)}")
            a(f"ds_write_b64 v{vT0}, {vr(RR, 2)} offset:16")
            for j in range(1, 5):
                a(f"v_add_f32 v{GAT}, v{GAT}, v{GAT+4*j}")
                a(f"v_add_f32 v{GAT+2}, v{GAT+2}, v{GAT+4*j+2}")
        def f_fin2():
            split3(a, GAT, vT0, vT1, PUB, PUB + 1)
            a(f"s_lshl_b32 s{sT0}, s{sTT}, 9")
            a(f"s_add_u32 s{sT0}, s{sT0}, {K1_CS}")
            a(f"v_lshl_add_u32 v{vT0}, v{vL}, 3, s{sT0}")
            a(f"ds_write_b64 v{vT0}, {vr(PUB, 2)}")
            split3(a, GAT + 2, vT0, vT1, CSR, CSR + 1)
            f_words("KF")
        def f_kv():
            L = a.uid("NOKV")
            a(f"s_waitcnt vmcnt({wait('KF')})")
            a(f"v_cmp_ne_u32 vcc, s{sNON}, v{vFV}")
            a(f"s_mov_b32 s{sKOK}, 0")
            a("s_cmp_lg_u32 vcc_lo, 0")
            a(f"s_cbranch_scc1 {L}")
            kv_first(a, vT2)
            a(f"s_mov_b32 s{sKOK}, 1")
            a.label(L)
        GI = optv("gi", 6)
        fill = {(1, 0): lambda: row_stats(0), (1, 1): lambda: row_stats(1), (1, 2): lambda: row_stats(2),
                (2, 0): f_nonce, (2, 1): f_cspub, (2, 2): f_rowpub, (4, 0): f_wo,
                (3, 0): lambda: att_setup(1), (3, 1): lambda: att_setup(2), (4, 1): lambda: att_setup(3),
                (3, 2): (lambda: None) if opt("zearly") else (lambda: att_setup(0)),
                (GI, 0): lambda: gather((0, 1)), (GI, 1): lambda: gather((2, 3)), (GI, 2): lambda: (gather((4, 5)), f_words("XW")),
                (8, 0): f_fin0, (8, 1): f_fin1, (8, 2): f_fin2, (9, 0): lambda: rank1(0), (9, 2): f_kv}
        a(f"s_waitcnt vmcnt({wait('X0')})")
        a.stamp(2)
        a("s_barrier")
        rdb(0, 0); rda(0, 0, 0)
        for p in range(5): wp(2, p)
        for p in range(4): xp(2, p)
        a(f"buffer_load_dword v{vNON}, v{vZ}, {sr(SDBG)}, 0 offen sc1"); vm("N")
        a.stamp(3); a.stamp(NSTAMP, True)
        for c in range(10):
            adv(c + 3)
            for s in range(4):
                p, q, ns = s & 1, (s + 1) & 1, (s + 1) & 3
                if c == 0:
                    a(f"ds_read_b64_tr_b16 {vr(CG, 2)}, v{vSA} offset:{s*sstr}")
                    a(f"ds_read_b64_tr_b16 {vr(CG+2, 2)}, v{vSA} offset:{s*sstr+4*rstr}")
                if s == 3 and c < 9:
                    d = -3 * K1_SLOT if (c & 3) == 3 else K1_SLOT
                    for r in list(range(vX, vX + 4)) + [vTR]: a(f"v_add_u32 v{r}, {d}, v{r}")
                a("s_waitcnt lgkmcnt(0)")
                mfma(0, p)
                if c == 0:
                    for j in range(2):
                        m4(P + 8*j, ONE, CG + 2*j); m4(P + 8*j + 4, ONE, FA[p] + 2*j)
                if s == 3:
                    if c < 9: a(f"s_waitcnt vmcnt({wait(f'D{c+1}', 'N') if c == 1 else wait(f'D{c+1}')})")
                    a("s_barrier")
                if c < 9 or s < 3:
                    rdb(q, ns); rda(q, 0, ns)
                if s < 3:
                    for pp in ((0, 1), (2, 3), (4,))[s]: wp(c + 3, pp)
                    if c + 3 < 10:
                        for pp in ((0,), (1,), (2, 3))[s]: xp(c + 3, pp)
                    if (c, s) in fill: fill[(c, s)]()
        a.stamp(4); a.stamp(NSTAMP + 1, True)
        a("s_setprio 0")
        a("s_nop 9")
        pack_store(0, 4)
        signal(vNON)
        a.label(f"P1_GA{tag}")
        gather(range(6), False)
        a("s_waitcnt vmcnt(0)")
        a(f"s_branch P1_FC{tag}")

    body("GA", "A", False)
    a.label("P1_GB")
    body("GB", "B", False)
    a.label("P1_KA0")
    a(f"v_lshlrev_b32 v{vDW}, 4, v{vL}")
    a(f"s_mul_i32 s{sWBASE}, s{sW}, 640")
    a(f"s_mov_b32 s{sWSTEP}, 2560")
    a(f"s_mul_i32 s{sSOW}, s{sCC}, 2560")
    a(f"s_add_u32 s{sSOW}, s{sSOW}, s{sWBASE}")
    a(f"s_lshl_b32 s{sM0W}, s{sW}, 10")
    a("s_waitcnt lgkmcnt(0)")
    srd(a, SA, pWK, 640 * 40)
    srd(a, SB, pWV, 640 * 40)
    st01()
    for p in range(2): wpiece(p, True)
    a("s_barrier")
    body("KA", "A", True)
    a.label("P1_KB")
    body("KB", "B", True)

def kdesc(name, nv, ns=102):
    return f""".amdhsa_kernel {name}
  .amdhsa_next_free_vgpr {nv}
  .amdhsa_next_free_sgpr {ns}
  .amdhsa_accum_offset {(nv+3)//4*4}
  .amdhsa_group_segment_fixed_size 0
  .amdhsa_kernarg_size 88
  .amdhsa_user_sgpr_count 2
  .amdhsa_user_sgpr_kernarg_segment_ptr 1
  .amdhsa_system_sgpr_workgroup_id_x 1
.end_amdhsa_kernel
"""

def build():
    from g9p2 import gen_ffn, gen_att
    hdr = open("cdna_kernels/" + NAME + ".s.ref").read().split("; Override launch")[0]
    out = hdr
    out += f"; @launch grid=(256,1,1) block=(512,1,1) lds={LDS_BYTES}\n"
    out += '.amdgcn_target "amdgcn-amd-amdhsa--gfx950"\n.text\n'
    a = Asm()
    k = NAME + "_kernel"
    a.raw(f".globl {k}\n.p2align 8\n.type {k},@function")
    a.label(k)
    gen_p1(a)
    a.p2 = True
    a.label("P2_ATT")
    gen_att(a)
    a.label("P2_FFN")
    gen_ffn(a)
    for L, lines, D in a.tail:
        a.label(L)
        for l in lines: a(l)
        a(f"s_branch {D}")
    a.label("L_END")
    a("s_endpgm")
    out += a.text()
    out += '.section .rodata,"a"\n.p2align 6\n' + kdesc(k, 256)
    return out

if __name__ == "__main__":
    path = sys.argv[1] if len(sys.argv) > 1 and not sys.argv[1].startswith("--") else "cdna_kernels/" + NAME + ".s"
    open(path, "w").write(build())
```

```python
from g10 import *

LD = {"plain": "", "nt": " nt", "sc0": " sc0"}.get(sys.argv[sys.argv.index("--ld") + 1] if opt("ld") else "", " sc1")
LDO = " nt" if opt("ldo") else " sc1"
def cnt_arrive(a, vaddr, vtmp, inc="1", off=0):
    a(f"v_mov_b32 v{vtmp}, {inc}")
    a("s_mov_b64 exec, 1")
    a(f"ds_add_u32 v{vaddr}, v{vtmp}" + (f" offset:{off}" if off else ""))
    a("s_mov_b64 exec, -1")
def cnt_wait(a, vaddr, vtmp, tgt, sleep=0, off=0):
    L, D = a.uid("CW"), a.uid("CWD")
    a(f"s_mov_b32 s{sSPIN}, {SPIN * 16}")
    a.label(L)
    a(f"ds_read_b32 v{vtmp}, v{vaddr}" + (f" offset:{off}" if off else ""))
    a("s_waitcnt lgkmcnt(0)")
    a(f"v_readfirstlane_b32 s{sT0}, v{vtmp}")
    a(f"s_and_b32 s{sT2}, s{sT0}, 0xffff")
    a(f"s_cmp_ge_u32 s{sT2}, {tgt}")
    a(f"s_cbranch_scc1 {D}")
    if sleep: a(f"s_sleep {sleep}")
    spin_tail(a, L)
    a.label(D)

def final_stage(a, base_item, X, R, vA, vG, load_x, do_rest):
    if load_x and load_x != "load":
        a(f"s_mov_b32 s100, {L_FP}")
        item_addr(a, base_item, vA, vG, X)
    if load_x and load_x != "addr":
        a(f"buffer_load_dwordx4 {vr(X, 4)}, v{vG}, {sr(SX)}, s{sOB} offen")
    if do_rest == 1:
        for s in range(4):
            a(f"ds_read_b128 {vr(R+8*s, 4)}, v{vA} offset:{s*5120}")
            a(f"ds_read_b128 {vr(R+8*s+4, 4)}, v{vA} offset:{s*5120+16}")
    if do_rest == 2:
        for j in range(4):
            a(f"v_lshlrev_b32 v{R+32+2*j}, 16, v{X+j}")
            a(f"v_and_b32 v{R+33+2*j}, 0xffff0000, v{X+j}")
    if do_rest >= 3:
        for s in range(4):
            a(f"s_waitcnt lgkmcnt({6-2*s + (do_rest-3)})")
            for j in range(4):
                a(f"v_pk_add_f32 {vr(R+32+2*j, 2)}, {vr(R+32+2*j, 2)}, {vr(R+8*s+2*j, 2)}")
        for j in range(4): a(f"v_cvt_pk_bf16_f32 v{X+j}, v{R+32+2*j}, v{R+33+2*j}")
        a(f"buffer_store_dwordx4 {vr(X, 4)}, v{vG}, {sr(SB)}, s{sOB} offen")

def gen_att(a):
    vL, vKM, vQT, vIDX, vT0, vT1, vCNT = 1, 2, 3, 4, 5, 6, 7
    vP = 8
    vT2, vT3 = 12, 13
    vFL = 23
    S, O, QM, QT, KM, KT, V0, V1 = aS, aO, aQM, aQT, aKM, aKT, aV0, aV1
    def qk1(s, kb, q): a(f"v_mfma_f32_32x32x16_bf16 {vr(S[s], 16)}, {vr(KM[kb], 4)}, {vr(QM(q), 4)}, 0")
    def qk2(s, kb, q): a(f"v_mfma_f32_32x32x8_bf16 {vr(S[s], 16)}, {vr(KT[kb], 2)}, {vr(QT(q), 2)}, {vr(S[s], 16)}")
    def pv(u, s, vb, q): a(f"v_smfmac_f32_32x32x32_bf16 {vr(O(q), 16)}, {vr((V0, V1)[u][vb], 4)}, {vr(S[s]+8*u, 8)}, v{vIDX}")
    def ldq(i):
        a(f"buffer_load_dwordx4 {vr(QM(i), 4)}, v{vKM}, {sr(SWS)}, s{sPm+i//2} offen" + (" offset:1024" if i & 1 else "") + LD)
        a(f"buffer_load_dwordx2 {vr(QT(i), 2)}, v{vQT}, {sr(SWS)}, s{sPt+i//2} offen" + (" offset:512" if i & 1 else "") + LD)
    def qregs(lo, hi): return list(range(QM(lo), QM(hi))) + list(range(QT(lo), QT(hi)))
    def rowmax(s, dst):
        b = S[s]
        a(f"v_max3_f32 v{dst}, v{b}, v{b+1}, v{b+2}")
        for j in range(3, 15, 2): a(f"v_max3_f32 v{dst}, v{dst}, v{b+j}, v{b+j+1}")
        a(f"v_max_f32 v{dst}, v{dst}, v{b+15}")
    def pair_addr(mul, base, vlane, shift):
        for j in range(4):
            a(f"s_add_u32 s{sT0}, s{sQ}, {j}")
            a(f"s_and_b32 s{sT0}, s{sT0}, 3")
            a(f"s_mul_i32 s{sT0}, s{sT0}, {mul}")
            a(f"s_add_u32 s{sT0}, s{sT0}, {base}")
            a(f"v_lshl_add_u32 v{vP+j}, v{vlane}, {shift}, s{sT0}")

    a("s_setprio 3")
    a(f"s_mov_b32 s{sMODE}, 0")
    a(f"v_lshlrev_b32 v{vKM}, 4, v{vL}")
    a(f"v_mov_b32 v{vT0}, {OOB:#x}")
    a(f"v_cmp_gt_u32 vcc, 32, v{vL}")
    a(f"v_mov_b32 v{vIDX}, 0xdddddddd")
    a(f"v_mov_b32 v{vCNT}, {L_CNT}")
    a(f"v_cndmask_b32 v{vQT}, v{vT0}, v{vKM}, vcc")
    cnt_arrive(a, vCNT, vT0, off=8)
    a.stamp(6)
    a(f"s_cmp_lg_u32 s{sKOK}, 0")
    a("s_cbranch_scc1 A_HAVEKV")
    a("s_mov_b32 exec_hi, 0")
    poll(a, vFL, vT0, "0")
    a("s_mov_b32 exec_hi, -1")
    a.label("A_RELOAD")
    kv_first(a, vKM)
    a.label("A_HAVEKV")
    a(f"v_and_b32 v{vT1}, 31, v{vL}")
    pair_addr(512, L_MREC, vT1, 3)
    a(f"v_and_b32 v{vT1}, 16, v{vL}")
    a.stamp(7)
    poll(a, vT1, vT0, f"s{sFQ}", optv("qsleep", 1))
    check_fast(a, vT1, vT0)
    a.stamp(8)
    ldq(0); ldq(1)
    a(f"s_cmp_lg_u32 s{sMODE}, 0")
    a("s_cbranch_scc1 A_TRUEMAX")
    a.c("stand-in for the row max: max over this wave's first 32 keys; checked after the loop, exact-max rerun if unsafe")
    ldq(2); ldq(3)
    a("s_waitcnt vmcnt(4)")
    qk1(0, 0, 0); qk2(0, 0, 0); qk1(1, 0, 1); qk2(1, 0, 1)
    for i in range(4, 8): ldq(i)
    a("s_nop 1")
    rowmax(0, S[2]); rowmax(1, S[2] + 1)
    a(f"v_mov_b32 v{vT0}, v{S[2]}")
    a(f"v_mov_b32 v{vT1}, v{S[2]+1}")
    a("s_nop 0")
    a(f"v_permlane32_swap_b32 v{vT0}, v{S[2]}")
    a(f"v_permlane32_swap_b32 v{vT1}, v{S[2]+1}")
    a(f"v_max_f32 v{S[2]}, v{S[2]}, v{vT0}")
    a(f"v_max_f32 v{S[2]+1}, v{S[2]+1}, v{vT1}")
    a("s_mov_b32 exec_lo, 0")
    for e in range(2): a(f"v_cvt_pk_bf16_f32 v{QT(e)}, -v{S[2]+e}, 0")
    a.label("A_HAVEMAX")
    for e in range(2): a(f"ds_write_b64 v{vP}, {vr(QT(e), 2)} offset:{256*e}")
    a("s_mov_b32 exec_lo, -1")
    cnt_arrive(a, vCNT, vT0)
    a(f"s_add_u32 s{sTGT}, s{sTGT}, 4")
    a(f"s_mov_b32 s{sCNT}, 8")
    a.stamp(9)
    a.stamp(10); a.stamp(NSTAMP + 2, True)
    qk1(0, 0, 0); qk2(0, 0, 0)
    a("s_cmp_lg_u32 0, 0")
    a("s_nop 10")
    a.raw(".p2align 6")
    a.label("A_LOOP")
    PAT0 = (3, 3, 4, 3, 3)
    PAT1 = tuple(int(ch) for ch in sys.argv[sys.argv.index("--pat1") + 1]) if opt("pat1") else PAT0
    PMASK = optv("pmask", 0)
    def slot(sc, nxt, prv, holes, PAT=PAT0):
        e = [0]
        def exps(n):
            for _ in range(n):
                a(f"v_exp_f32 v{S[sc]+e[0]}, v{S[sc]+e[0]}"); e[0] += 1
        ms = [lambda: qk1((sc + 1) & 3, *nxt), lambda: pv(0, (sc - 1) & 3, *prv), lambda: qk2((sc + 1) & 3, *nxt), lambda: pv(1, (sc - 1) & 3, *prv)]
        for j in range(4):
            if nxt is not None or j & 1: ms[j]()
            if j in holes: holes[j]()
            exps(PAT[j])
        holes[4]()
        exps(PAT[4])
    for kb in range(2):
        for q in range(8):
            def hole():
                if q == 0:
                    if kb == 0:
                        a("s_cbranch_scc0 A_FIRST")
                        a.label("A_FIRSTD")
                    a("s_waitcnt vmcnt(2)"); ldv(a, 0, kb ^ 1)
                elif q == 1: ldv(a, 1, kb ^ 1)
                elif q == 2: a(f"s_add_u32 s{sKV}, s{sKV}, {KV_REC}")
                elif q == 3 and kb == 0: a(f"s_sub_u32 s{sCNT}, s{sCNT}, 1")
                elif q == 4 and kb == 0: a(f"s_cmp_eq_u32 s{sCNT}, 0")
                elif q == 4: a("s_cmp_eq_u32 0, 0")
                elif q == 5: a("s_waitcnt vmcnt(2)")
                elif q == 6: ldkm(a, kb, vKM)
                elif q == 7: ldkt(a, kb)
                elif not opt("nonop"): a("s_nop 0")
            slot(q & 3, ((kb if q < 7 else kb ^ 1), (q + 1) & 7), ((kb if q > 0 else kb ^ 1), (q - 1) & 7), {4: hole}, PAT1 if (PMASK >> q) & 1 else PAT0)
        if kb == 0:
            a.lstamp(sCNT, 0)
            a("s_cbranch_scc1 A_LAST")
    a("s_branch A_LOOP")
    a.label("A_FIRST")
    cnt_wait(a, vCNT, vT0, f"s{sTGT}")
    a("s_waitcnt vmcnt(0)")
    a("s_mov_b32 exec_lo, 0")
    for i in range(2, 8): a(f"ds_read_b64 {vr(QT(i), 2)}, v{vP+i//2} offset:{256*(i&1)}")
    a("s_mov_b32 exec_lo, -1")
    a(f"v_and_b32 v{vT0}, 31, v{vL}")
    a(f"v_mul_u32_u24 v{vT0}, {8*36}, v{vT0}")
    a(f"v_sub_u32 v{vT0}, v{vKM}, v{vT0}")
    a(f"v_add_u32 v{vT0}, {(L_OP - 36*L_MREC) & 0xffffffff:#x}, v{vT0}")
    for j in range(4): a(f"v_mad_u32_u24 v{vP+j}, v{vP+j}, 36, v{vT0}")
    a("s_waitcnt lgkmcnt(0)")
    a.lstamp("8", 0)
    a("s_branch A_FIRSTD")
    a.label("A_LAST")
    def wr(i, j): a(f"ds_write_b128 v{vP+i//2}, {vr(O(i)+4*j, 4)} offset:{(i&1)*9216 + (i//2-1)*3072 + j*1024}")
    seq = [0, 2, 3, 4, 5, 6, 7, 1]
    for n in range(8):
        nxt = (1, seq[n + 1]) if n < 7 else None
        prv = (1, seq[n - 1]) if n > 0 else (0, 7)
        holes = {4: lambda: a("s_nop 0")}
        if n == 0: holes = {4: lambda: (a("s_waitcnt vmcnt(2)"), a(f"ds_read_b32 v{vT0}, v{vCNT}"))}
        if n == 1: holes = {4: lambda: (a("s_waitcnt lgkmcnt(0)"), a(f"v_readfirstlane_b32 s{sT0}, v{vT0}"))}
        if n == 2: holes = {4: lambda: (a(f"s_cmp_lt_u32 s{sT0}, 8"), a("s_cbranch_scc1 A_OWAIT"), a.label("A_OFREE"))}
        if n >= 3:
            i = seq[n - 2]
            holes = {2: lambda: wr(i, 0), 3: lambda: wr(i, 1), 4: lambda: wr(i, 2)}
        slot(n & 3, nxt, prv, holes)
    a("s_nop 1")
    pv(0, 3, 1, 1); pv(1, 3, 1, 1)
    a.stamp(11); a.stamp(NSTAMP + 3, True)
    a("s_nop 1")
    for j in range(3): wr(7, j)
    cnt_arrive(a, vCNT, vT0)
    a(f"s_add_u32 s{sTGT}, s{sTGT}, 4")
    a(f"s_max_u32 s{sTGT}, s{sTGT}, 12")
    a(f"s_mov_b64 {sr(sBAD, 2)}, 0")
    a(f"s_mov_b32 s{sT1}, {f32bits(2.0**100):#x}")
    cnt_wait(a, vCNT, vT0, f"s{sTGT}")
    a.stamp(12)
    RB = [16, 180]
    for e in range(2):
        for s in range(3):
            for j in range(3):
                a(f"ds_read_b128 {vr(RB[e]+12*s+4*j, 4)}, v{vP} offset:{e*9216 + s*3072 + j*1024}")
    Z = 52
    for e in range(2):
        A = O(e); P = 128 + 8 * e
        for s in range(3):
            a(f"s_waitcnt lgkmcnt({min(15, 18 - 9*e - 3*s - 3)})")
            for j in range(6): a(f"v_pk_add_f32 {vr(A+2*j, 2)}, {vr(A+2*j, 2)}, {vr(RB[e]+12*s+2*j, 2)}")
        a(f"v_mov_b32 v{vT0}, v{A+8}")
        a(f"v_mov_b32 v{vT2}, v{A+8}")
        a(f"v_pk_mul_f32 {vr(Z, 2)}, {vr(A, 2)}, 0 op_sel_hi:[1,0]")
        a(f"v_pk_fma_f32 {vr(Z, 2)}, {vr(A+2, 2)}, 0, {vr(Z, 2)} op_sel_hi:[1,0,1]")
        a(f"v_permlane32_swap_b32 v{vT0}, v{vT2}")
        a(f"v_rcp_f32 v{vT3}, v{vT2}")
        a(f"v_cmp_nlt_f32 vcc, v{vT2}, s{sT1}")
        for j in range(2, 6): a(f"v_pk_fma_f32 {vr(Z, 2)}, {vr(A+2*j, 2)}, 0, {vr(Z, 2)} op_sel_hi:[1,0,1]")
        a(f"s_or_b64 {sr(sBAD, 2)}, {sr(sBAD, 2)}, vcc")
        for j in range(6): a(f"v_pk_mul_f32 {vr(A+2*j, 2)}, {vr(A+2*j, 2)}, {vr(vT2, 2)} op_sel:[0,1] op_sel_hi:[1,1]")
        a(f"v_cmp_u_f32 vcc, v{Z}, v{Z+1}")
        for j in range(6): a(f"v_cvt_pk_bf16_f32 v{P+j}, v{A+2*j}, v{A+2*j+1}")
        a(f"s_or_b64 {sr(sBAD, 2)}, {sr(sBAD, 2)}, vcc")
        a(f"s_cmp_lg_u32 s{sMODE}, 0")
        a(f"s_cselect_b64 {sr(sBAD, 2)}, 0, {sr(sBAD, 2)}")
        for j in range(6): a(f"v_min_u32 v{P+j}, -2, v{P+j}")
        L = a.uid("NOST")
        a(f"s_cmp_lg_u64 {sr(sBAD, 2)}, 0")
        a(f"s_cbranch_scc1 {L}")
        stores(a, [f"buffer_store_dwordx4 {vr(P, 4)}, v{vKM}, {sr(SWS)}, s{sOm} offen offset:{1024*e}",
                   f"buffer_store_dwordx2 {vr(P+4, 2)}, v{vQT}, {sr(SWS)}, s{sOt} offen offset:{512*e}"])
        a.label(L)
    a(f"s_cmp_lg_u64 {sr(sBAD, 2)}, 0")
    a(f"s_cselect_b32 s{sBAD}, 0x10001, 1")
    cnt_arrive(a, vCNT, vT0, f"s{sBAD}")
    a.stamp(13)
    a("s_setprio 0")
    a(f"s_add_u32 s{sTGT}, s{sTGT}, 4")
    srd(a, SX, pX, 2048 * 1280)
    cnt_wait(a, vCNT, vT0, f"s{sTGT}")
    a(f"s_lshr_b32 s{sT0}, s{sT0}, 16")
    a(f"s_cmp_lg_u32 s{sMODE}, 0")
    a(f"s_cselect_b32 s{sT0}, 0, s{sT0}")
    a(f"s_cmp_lg_u32 s{sT0}, 0")
    a("s_cbranch_scc1 A_RESTART")
    a.stamp(14)
    if PROFILE and opt("iter"):
        a.ldump(0)
        a(f"s_lshl_b32 s100, s{sW}, 6")
        a("v_add_u32 v0, s100, v1")
    final_stage(a, 0, 16, 32, 20, 21, True, 0)
    a(f"s_cmp_ge_u32 s{sW}, 6")
    a("s_cbranch_scc1 A_F1")
    final_stage(a, 256, 24, 80, 22, 23, True, 0)
    a("s_waitcnt vmcnt(0)")
    final_stage(a, 0, 16, 32, 20, 21, False, 2)
    final_stage(a, 256, 24, 80, 22, 23, False, 2)
    a.stamp(15)
    a("s_barrier")
    a.stamp(16)
    final_stage(a, 0, 16, 32, 20, 21, False, 1)
    final_stage(a, 256, 24, 80, 22, 23, False, 1)
    final_stage(a, 0, 16, 32, 20, 21, False, 11)
    final_stage(a, 256, 24, 80, 22, 23, False, 3)
    a.end()
    a.label("A_F1")
    a("s_waitcnt vmcnt(0)")
    final_stage(a, 0, 16, 32, 20, 21, False, 2)
    a.stamp(15)
    a("s_barrier")
    a.stamp(16)
    final_stage(a, 0, 16, 32, 20, 21, False, 1)
    final_stage(a, 0, 16, 32, 20, 21, False, 3)
    a.end()
    a.label("A_OWAIT")
    cnt_wait(a, vCNT, vT0, 8, 1)
    a("s_branch A_OFREE")
    a.label("A_RESTART")
    a(f"s_mov_b32 s{sMODE}, 1")
    a("s_waitcnt vmcnt(0)")
    att_zero(a)
    a("s_branch A_RELOAD")
    a.label("A_TRUEMAX")
    for i in range(2, 8): ldq(i)
    M = S[2]
    for i in range(8): a(f"v_mov_b32 v{M+i}, 0xff800000")
    a(f"s_sub_u32 s{sT1}, s{sKV}, {KV_REC}")
    a(f"s_mov_b32 s{sCNT}, 16")
    TK, TT = S[1], S[1] + 4
    a.label("A_TM_LOOP")
    a(f"buffer_load_dwordx4 {vr(TK, 4)}, v{vKM}, {sr(SWS)}, s{sT1} offen sc1")
    a(f"buffer_load_dwordx2 {vr(TT, 2)}, v{avKT}, {sr(SWS)}, s{sT1} offen sc1")
    a("s_waitcnt vmcnt(0)")
    for i in range(8):
        a(f"v_mfma_f32_32x32x16_bf16 {vr(S[0], 16)}, {vr(TK, 4)}, {vr(QM(i), 4)}, 0")
        a(f"v_mfma_f32_32x32x8_bf16 {vr(S[0], 16)}, {vr(TT, 2)}, {vr(QT(i), 2)}, {vr(S[0], 16)}")
        a("s_nop 11")
        for j in range(0, 16, 2): a(f"v_max3_f32 v{M+i}, v{M+i}, v{S[0]+j}, v{S[0]+j+1}")
    a(f"s_add_u32 s{sT1}, s{sT1}, {KV_REC}")
    a(f"s_sub_u32 s{sCNT}, s{sCNT}, 1")
    a(f"s_cmp_lg_u32 s{sCNT}, 0")
    a("s_cbranch_scc1 A_TM_LOOP")
    for i in range(8):
        halfop(a, "v_max_f32", M + i, vT0)
        a(f"v_add_u32 v{vT1}, {L_OP - L_MREC}, v{vP+i//2}")
        a(f"ds_write_b32 v{vT1}, v{M+i} offset:{(i//2)*2048 + (i&1)*256}")
    cnt_arrive(a, vCNT, vT0)
    a(f"s_add_u32 s{sTGT}, s{sTGT}, 4")
    cnt_wait(a, vCNT, vT0, f"s{sTGT}")
    a(f"v_add_u32 v{vT1}, {L_OP - L_MREC}, v{vP}")
    for e in range(2):
        for s in range(1, 4): a(f"ds_read_b32 v{S[0]+4*e+s}, v{vT1} offset:{s*2048 + e*256}")
    a("s_waitcnt lgkmcnt(0)")
    for e in range(2):
        a(f"v_max3_f32 v{M+e}, v{M+e}, v{S[0]+4*e+1}, v{S[0]+4*e+2}")
        a(f"v_max_f32 v{M+e}, v{M+e}, v{S[0]+4*e+3}")
    a("s_mov_b32 exec_lo, 0")
    for e in range(2):
        a(f"v_sub_f32 v{M+e}, 0, v{M+e}")
        split3(a, M + e, vT0, vT1, QT(e), QT(e) + 1)
    a("s_branch A_HAVEMAX")

def gen_ffn(a):
    vL, vL16, vTR, vZ = 1, 2, 3, 7
    vA, vG, vPW, vPW2, X = 4, 5, 0, 6, 8
    vNV, vCNT, vT0, vT1 = 12, 13, 14, 15
    F = lambda t: 16 + 16 * t
    WO = lambda k: 96 + 20 * k
    HB = lambda u: 216 + 4 * u
    SL = lambda j: j & 3
    SWO = SDBG
    def dma_piece(p, slot, vd=fD):
        a(f"s_add_u32 m0, s{sM0}, {L_RING + slot*20480 + p*1024}")
        a("s_nop 0")
        a(f"buffer_load_dwordx4 v{vd+p}, {sr(SA)}, s{sSO} offen lds")
    def trr(dst, slot, t, va=vTR):
        a(f"ds_read_b64_tr_b16 {vr(dst+4*t, 2)}, v{va} offset:{slot*20480 + 64*t}")
        a(f"ds_read_b64_tr_b16 {vr(dst+4*t+2, 2)}, v{va} offset:{slot*20480 + 64*t + 2560}")
    def hload(u):
        a(f"buffer_load_dwordx4 {vr(HB(u), 4)}, v{vL16}, {sr(SWS)}, s{sHO} offen sc1")
        a(f"s_add_u32 s{sHO}, s{sHO}, 1024")
    def stage(i, ks):
        row = 16 + 80 * (ks - 8) if ks >= 8 else 20 * ks
        a(f"s_add_u32 s{sT1}, s{sWOB}, {row*1280}")
        for p in range(5):
            a(f"s_add_u32 m0, s{sM0}, {i*20480 + p*1024}")
            a("s_nop 0")
            a(f"buffer_load_dwordx4 v{(fD2 if ks >= 8 else fD)+p}, {sr(SWO)}, s{sT1} offen lds")
    def mf(t, w, h): a(f"v_mfma_f32_32x32x16_bf16 {vr(F(t), 16)}, {vr(w+4*t, 4)}, {vr(h, 4)}, {vr(F(t), 16)}")
    sWOB = sWBASE
    srd(a, SA, pW2, 1728 * 1280)
    a(f"s_mul_i32 s{sM0}, s{sQ}, 5120")
    a(f"s_mul_i32 s{sCOL}, s{sHG}, 320")
    a(f"s_mul_i32 s{sSO}, s{sQ}, {27*16*1280}")
    a(f"s_add_u32 s{sSO}, s{sSO}, s{sCOL}")
    a(f"s_add_u32 s{sSO}, s{sSO}, {3*16*1280}")
    a(f"s_mov_b32 s{sSTEP}, {16*1280}")
    for p in range(5): dma_piece(p, 3)
    a(f"s_add_u32 s{sSO}, s{sSO}, s{sSTEP}")
    a("v_mov_b64 v[246:247], 0")
    a(f"v_lshlrev_b32 v{vL16}, 4, v{vL}")
    a(f"v_mov_b32 v{vCNT}, {L_CNT}")
    for t in range(5): zero16(a, F(t), 246)
    a(f"v_mov_b32 v{vTR}, v{fTR}")
    a(f"v_mov_b32 v{vA}, v{fA}")
    a(f"v_mov_b32 v{vG}, v{fG}")
    a(f"v_mov_b32 v{vPW}, v{fPW}")
    a(f"v_add_u32 v{vPW2}, 40960, v{fPW}")
    a(f"v_mov_b32 v{vNV}, s{sNON}")
    a(f"v_mov_b32 v245, 1")
    srd(a, SX, pX, 2048 * 1280)
    srd(a, SB, pOUT, 2048 * 1280)
    srd(a, SWO, pWO, 640 * 1280)
    a(f"s_mul_i32 s{sWOB}, s{sQ}, {160*1280}")
    a(f"s_add_u32 s{sWOB}, s{sWOB}, s{sCOL}")
    a(f"s_lshl_b32 s{sFC}, s{sT}, 2")
    a(f"s_add_u32 s{sFC}, s{sFC}, s{sQ}")
    a(f"s_mul_i32 s{sHO}, s{sQ}, {27*1024}")
    a(f"s_add_u32 s{sHO}, s{sHO}, s{sG}")
    a(f"s_add_u32 s{sHO}, s{sHO}, {20*2048}")
    a.stamp(6)
    cnt_wait(a, vCNT, vT0, 4, 1, off=(8 if opt("nogatem") else 0))
    for _ in range(optv("fd", 0)): a("s_sleep 16")
    a.stamp(7)
    poll(a, fH, vT1, "0", 2)
    check_fast(a, vT1, vT0)
    a.stamp(9)
    for u in range(4): hload(u)
    for t in range(5): trr(WO(0), SL(0), t)
    a(f"s_mov_b32 s{sC}, 0")
    a("s_waitcnt vmcnt(0)")
    a.stamp(10); a.stamp(NSTAMP + 2, True)
    B0 = optv("b0", 1)
    a.raw(".p2align 3")
    a.label("F_LOOP")
    for u in range(4):
        if u == 3:
            a(f"s_cmp_eq_u32 s{sC}, 6")
            a("s_cbranch_scc1 F_DONE")
            a(f"s_cmp_lg_u32 s{sC}, 5")
            a("s_cbranch_scc1 F_NS")
            srd(a, SA, pWO, 640 * 1280)
            a(f"s_mov_b32 s{sSO}, s{sWOB}")
            a(f"s_mov_b32 s{sSTEP}, {20*1280}")
            a(f"s_mov_b32 s{sHO}, 0x40000000")
            a(f"buffer_load_dword v{fH}, v{fO}, {sr(SWS)}, 0 offen sc1")
            a.label("F_NS")
        a("s_waitcnt vmcnt(13) lgkmcnt(0)")
        for t in range(5):
            mf(t, WO(0), HB(u))
            trr(WO(0), SL(u + 1), t)
            dma_piece(t, SL(u))
        a(f"s_add_u32 s{sSO}, s{sSO}, s{sSTEP}")
        hload(u)
    a(f"s_add_u32 s{sC}, s{sC}, 1")
    a(f"s_sub_u32 s{sT0}, s{sC}, {B0 + 1}")
    a(f"s_cmp_ge_u32 s{sT0}, 3")
    a("s_cbranch_scc1 F_LOOP")
    a(f"s_cmp_eq_u32 s{sT0}, 1")
    a("s_cbranch_scc1 F_X1")
    a(f"s_cmp_eq_u32 s{sT0}, 2")
    a("s_cbranch_scc1 F_X2")
    a(f"s_lshl_b32 s{sT1}, s{sT}, 2")
    a(f"s_add_u32 s{sT1}, s{sT1}, s{sHG}")
    a(f"s_mul_i32 s{sT1}, s{sT1}, 10240")
    a(f"s_mul_i32 s{sT0}, s{sQ}, 3072")
    a(f"s_min_u32 s{sT0}, s{sT0}, 7168")
    a(f"s_add_u32 s{sT0}, s{sT0}, s{sT1}")
    a(f"s_add_u32 s{sT0}, s{sT0}, {WS_O}")
    stores(a, [f"buffer_store_dwordx4 {vr(fBL, 4)}, v{vL16}, {sr(SWS)}, s{sT0} offen offset:{1024*e}" for e in range(3)])
    for i in range(3): stage(i, 5 + i)
    a("s_branch F_LOOP")
    a.label("F_X1")
    for i in range(3):
        for t in range(5): trr(WO(3 + i), i, t, fSTG)
    a(f"s_lshl_b32 s{sT0}, s{sQ}, 2")
    a(f"s_add_u32 s{sT0}, s{sT0}, s{sF2}")
    a("s_mov_b64 exec, 1")
    stores(a, [f"buffer_store_dword v{vNV}, v{vZ}, {sr(SWS)}, s{sT0} offen offset:16"])
    a("s_mov_b64 exec, -1")
    a("s_waitcnt lgkmcnt(0)")
    for i in range(2): stage(i, 8 + i)
    a("s_branch F_LOOP")
    a.label("F_X2")
    for i in range(2):
        for t in range(5): trr(WO(1 + i), i, t, fSTG)
    cnt_wait(a, vCNT, vT0, 4, 1)
    a("s_mov_b64 exec, 1")
    a(f"ds_add_u32 v{vCNT}, v245")
    a("s_mov_b64 exec, -1")
    a("s_branch F_LOOP")
    a.label("F_DONE")
    a.stamp(11); a.stamp(NSTAMP + 3, True)
    a("s_waitcnt lgkmcnt(0)")
    for t in range(5): dma_piece(t, SL(27))
    final_stage(a, 0, X, 0, vA, vG, "load", 0)
    a(f"v_cmp_ne_u32 vcc, s{sNON}, v{fH}")
    a("s_cbranch_vccz F_BOK")
    poll(a, fO, vT1, "0", 4)
    a.label("F_BOK")
    a(f"s_mul_i32 s{sHO}, s{sFC}, 10240")
    a(f"s_add_u32 s{sHO}, s{sHO}, {WS_O}")
    a(f"s_add_u32 s{sSO}, s{sHO}, 4096")
    a(f"s_add_u32 s{sT1}, s{sHO}, 8192")
    a.stamp(12)
    cnt_wait(a, vCNT, vT0, 16, 2)
    a(f"s_cmp_lt_u32 s{sT0}, 0x10000")
    a("s_cbranch_scc1 F_NORE")
    cnt_wait(a, vCNT, vT0, 32, 8)
    a.label("F_NORE")
    a.stamp(13)
    order = [0, 8, 9, 5, 6, 7, 1, 2, 3, 4]
    a(f"s_mov_b32 s{sSPIN}, {SPIN}")
    a.label("F_O")
    for k in order:
        so = (sHO, sSO, sT1)[k // 4]
        a(f"buffer_load_dwordx4 {vr(HB(k), 4)}, v{vL16}, {sr(SWS)}, s{so} offen offset:{(k%4)*1024} sc1")
    for n, k in enumerate(order):
        a(f"s_waitcnt vmcnt({9-n})")
        if n == 0:
            a(f"v_max3_u32 v{vT0}, v{HB(k)}, v{HB(k)+1}, v{HB(k)+2}")
            a(f"v_max_u32 v{vT0}, v{vT0}, v{HB(k)+3}")
        else:
            a(f"v_max3_u32 v{vT0}, v{vT0}, v{HB(k)}, v{HB(k)+1}")
            a(f"v_max3_u32 v{vT0}, v{vT0}, v{HB(k)+2}, v{HB(k)+3}")
    a(f"v_cmp_eq_u32 vcc, -1, v{vT0}")
    a("s_cbranch_vccz F_OD")
    if optv("osleep", 2): a(f"s_sleep {optv('osleep', 2)}")
    spin_tail(a, "F_O")
    a.label("F_OD")
    a.stamp(14)
    for n in range(4):
        for t in range(5):
            mf(t, WO(n), HB(order[n]))
            trr(WO(n), SL(28 + n), t)
    def fwr(t, g):
        va, off = (vPW, t * 20480) if t < 2 else (vPW2, (t - 2) * 20480)
        a(f"ds_write_b128 v{va}, {vr(F(t)+4*g, 4)} offset:{off + 32*g}")
    for t in range(5):
        for m, n in enumerate(range(4, 10)):
            if t == 0 and n == 6: a("s_waitcnt lgkmcnt(0)")
            mf(t, WO(n) if n < 6 else WO(n - 6), HB(order[n]))
            if t > 0:
                if m < 2: a("s_nop 4")
                else: fwr(t - 1, m - 2)
    final_stage(a, 0, X, 176, vA, vG, False, 2)
    a("s_nop 3")
    a.stamp(15)
    for g in range(4): fwr(4, g)
    a("s_waitcnt lgkmcnt(0)")
    a("s_barrier")
    a.stamp(16)
    final_stage(a, 0, X, 176, vA, vG, False, 1)
    final_stage(a, 0, X, 176, vA, vG, False, 3)
    a.end()
```

```python
import sys, struct, math

NAME = "parallel_sum__grouped_kv_mqa__dense_activation_relu__prompt"
def opt(name): return ("--" + name) in sys.argv
def optv(name, d): return int(sys.argv[sys.argv.index("--" + name) + 1]) if opt(name) else d
G_TSTRIDE = 75 * 2048
WS_G = 0
WS_KV = 64 * G_TSTRIDE
KV_REC = 3072
WS_O = (WS_KV + 66 * KV_REC + 4095) // 4096 * 4096
WS_RS = WS_O + 64 * 40 * 1024
WS_CP = WS_RS + 2048 * 16
WS_F1 = WS_CP + 64 * 5120
WS_F2 = WS_F1 + 256 * 128
WS_XC = WS_F2 + 256 * 128
WS_PROF = WS_XC + 8 * 128
PROFILE = opt("prof")
NSTAMP = 18
WS_END = WS_PROF + (256 * 8 * 256 if PROFILE else 0)
OOB = 0x80000000
QSCALE = math.log2(math.e) / math.sqrt(20.0)
SPIN = 0x40000
NFIRST = optv("nfirst", 1)


def f32bits(x): return struct.unpack("<I", struct.pack("<f", x))[0]

class Asm:
    def __init__(self): self.lines = []; self.n = 0; self.tail = []; self.p2 = False
    def __call__(self, s): self.lines.append("    " + s)
    def label(self, s): self.lines.append(s + ":")
    def raw(self, s): self.lines.append(s)
    def c(self, s): self.lines.append("    ; " + s)
    def uid(self, p): self.n += 1; return f"{p}_{self.n}"
    def stamp(self, i, cyc=False):
        if opt("st") and self.p2 and i in (14, 15, 16): return
        if PROFILE:
            self(f"s_memtime s[100:101]" if cyc else "s_memrealtime s[100:101]")
            self("s_waitcnt lgkmcnt(0)")
            self(f"s_mov_b32 s{64+i}, s100")
    def lstamp(self, slane, v=14):
        if PROFILE and opt("iter"):
            self("s_memrealtime s[100:101]")
            self("s_waitcnt lgkmcnt(0)")
            self(f"s_mov_b32 m0, {slane}" if isinstance(slane, str) else f"s_mov_b32 m0, s{slane}")
            self(f"v_writelane_b32 v{v}, s100, m0")
    def ldump(self, v=14):
        if PROFILE and opt("iter"):
            self(f"s_lshl_b32 s100, s2, 3")
            self(f"s_add_u32 s100, s100, s{sW}")
            self(f"s_lshl_b32 s100, s100, 8")
            self(f"s_add_u32 s100, s100, {WS_PROF+128}")
            self("v_lshlrev_b32 v15, 2, v1")
            self("s_mov_b64 exec, 0xffff")
            self(f"buffer_store_dword v{v}, v15, s[{SWS}:{SWS+3}], s100 offen")
            self("s_mov_b64 exec, -1")
            self("s_waitcnt vmcnt(0)")
    def end(self):
        if PROFILE:
            self("s_waitcnt vmcnt(0)")
            self.stamp(NSTAMP - 1)
            self(f"s_lshl_b32 s3, s2, 3")
            self(f"s_add_u32 s3, s3, s{sW}")
            self(f"s_lshl_b32 s3, s3, 8")
            self(f"s_add_u32 s3, s3, {WS_PROF}")
            self("s_mov_b64 exec, 1")
            self("v_mov_b32 v1, 0")
            for i in range(NSTAMP + 4):
                self(f"v_mov_b32 v2, s{64+i}")
                self(f"buffer_store_dword v2, v1, s[{SWS}:{SWS+3}], s3 offen offset:{4*i}")
        self("s_endpgm")
    def text(self): return "\n".join(self.lines) + "\n"

def vr(b, n=1): return f"v{b}" if n == 1 else f"v[{b}:{b+n-1}]"
def sr(b, n=4): return f"s{b}" if n == 1 else f"s[{b}:{b+n-1}]"
def srd(a, d, p, size):
    a(f"s_mov_b32 s{d}, s{p}")
    a(f"s_mov_b32 s{d+1}, s{p+1}")
    a(f"s_mov_b32 s{d+2}, {size}")
    a(f"s_mov_b32 s{d+3}, 0x00020000")
def csel(a, d, t, f):
    a(f"s_mov_b32 s{d}, {f}")
    a(f"s_cmov_b32 s{d}, {t}")
def split3(a, src, t0, t1, d0, d1):
    a(f"v_and_b32 v{t0}, 0xffff0000, v{src}")
    a(f"v_sub_f32 v{t1}, v{src}, v{t0}")
    a(f"v_lshrrev_b32 v{d0}, 16, v{src}")
    a(f"v_and_b32 v{t0}, 0xffff0000, v{t1}")
    a(f"v_or_b32 v{d0}, v{d0}, v{t0}")
    a(f"v_sub_f32 v{t1}, v{t1}, v{t0}")
    a(f"v_lshrrev_b32 v{d1}, 16, v{t1}")
def halfop(a, op, r, t):
    a(f"v_mov_b32 v{t}, v{r}")
    a("s_nop 1")
    a(f"v_permlane32_swap_b32 v{t}, v{r}")
    a(f"{op} v{r}, v{r}, v{t}")
def umax(a, dst, regs):
    regs = list(regs)
    a(f"v_max3_u32 v{dst}, v{regs[0]}, v{regs[1]}, v{regs[2]}")
    r = regs[3:]
    while len(r) >= 2:
        a(f"v_max3_u32 v{dst}, v{dst}, v{r[0]}, v{r[1]}"); r = r[2:]
    if r: a(f"v_max_u32 v{dst}, v{dst}, v{r[0]}")

SWS, SA, SB, SX, SDBG = 4, 8, 12, 16, 20
sSI = 3
sW, sNON = 24, 25
sRB, sCG, sTT = 26, 27, 28
sQ = sTT
sT0, sT1, sT2 = 29, 30, 31
pX, pWQ, pWK, pWV, pWO, pW1, pW2, pOUT, pDBG, pWS = 32, 34, 36, 38, 40, 44, 46, 48, 50, 52
sWSTEP, sSO, sSTEP, sM0, sC, sDEL, sCC, sOUT, sFL, sQS = range(54, 64)
sT, sHG, sG, sOB = 86, 87, 92, 93
sF2, sWBASE, sT3, sFAST, sST, sSPIN = 94, 95, 96, 97, 98, 99
sXW, sLO = 53, 52
sPB = 51
sSOW, sM0W = 90, 91
sPm, sBAD, sPt = 34, 38, 42
sOm, sOt, sKV, sTGT = 48, 49, 0, 1
sMODE, sCNT, sFQ, sKOK = 8, 9, 88, 89
sCOL, sHO, sFC = 54, 59, 60

def spin_tail(a, L):
    a(f"s_sub_u32 s{sSPIN}, s{sSPIN}, 1")
    a(f"s_cbranch_scc0 {L}")

def poll(a, vaddr, vtmp, soff, sleep=1):
    L, D = a.uid("POLL"), a.uid("POLLED")
    a(f"s_mov_b32 s{sSPIN}, {SPIN}")
    a.label(L)
    a(f"buffer_load_dword v{vtmp}, v{vaddr}, {sr(SWS)}, {soff} offen sc1")
    a("s_waitcnt vmcnt(0)")
    a(f"v_cmp_ne_u32 vcc, s{sNON}, v{vtmp}")
    a(f"s_cbranch_vccz {D}")
    if sleep: a(f"s_sleep {sleep}")
    spin_tail(a, L)
    a.label(D)

def stores(a, lines):
    L, D = a.uid("SLOW"), a.uid("STD")
    a(f"s_cmp_eq_u32 s{sFAST}, 0")
    a(f"s_cbranch_scc1 {L}")
    for l in lines: a(l)
    a.label(D)
    a.tail.append((L, [l + (" sc1" if l.startswith("buffer_store") else "") for l in lines], D))

def xcc_word(a):
    a(f"s_getreg_b32 s{sXW}, hwreg(HW_REG_XCC_ID, 0, 4)")
    a(f"s_lshl_b32 s{sXW}, s{sXW}, 1")
    a(f"s_xor_b32 s{sXW}, s{sXW}, s{sNON}")

def check_fast(a, vaddr, vtmp):
    L = a.uid("CF")
    a(f"s_cmp_lg_u32 s{sFAST}, 0")
    a(f"s_cbranch_scc1 {L}")
    a(f"s_and_b32 s{sT0}, s2, 7")
    a(f"s_lshl_b32 s{sT0}, s{sT0}, 7")
    a(f"s_add_u32 s{sT0}, s{sT0}, {WS_XC}")
    a(f"v_and_b32 v{vaddr}, 31, v1")
    a(f"v_lshlrev_b32 v{vaddr}, 2, v{vaddr}")
    a(f"buffer_load_dword v{vtmp}, v{vaddr}, {sr(SWS)}, s{sT0} offen sc1")
    a("s_waitcnt vmcnt(0)")
    a(f"v_cmp_ne_u32 vcc, s{sXW}, v{vtmp}")
    a("s_cmp_eq_u64 vcc, 0")
    a(f"s_cselect_b32 s{sFAST}, {0 if opt('slow') else 1}, 0")
    a.label(L)

K1_SLOT = 36864
K1_XOFF = 20480
K1_CS = 147456
K1_ST = K1_CS + 2048
L_VT = 147456
L_OP = 0
L_RING = 73728
L_FP = L_RING - 20480
L_MREC = L_RING + 81920
L_CNT = L_MREC + 2048
LDS_BYTES = L_CNT + 64
fD, fD2, fH, fO, fSTG, fBL, fTR, fA, fG, fPW = 232, 237, 242, 243, 244, 248, 252, 253, 254, 255

aS = [16, 32, 48, 64]
aO = lambda i: 80 + 12 * i
aQM = lambda i: 180 + 4 * i
aQT = lambda i: 212 + 2 * i
aKM = [228, 242]; aKT = [232, 246]; aV0 = [234, 248]; aV1 = [238, 252]
avV, avKT = 14, 15

def ldkm(a, b, va): a(f"buffer_load_dwordx4 {vr(aKM[b], 4)}, v{va}, {sr(SWS)}, s{sKV} offen sc1")
def ldkt(a, b): a(f"buffer_load_dwordx2 {vr(aKT[b], 2)}, v{avKT}, {sr(SWS)}, s{sKV} offen sc1")
def ldv(a, u, b): a(f"buffer_load_dwordx4 {vr((aV0, aV1)[u][b], 4)}, v{avV}, {sr(SWS)}, s{sKV} offen" + (" offset:768" if u else "") + " sc1")
def kv_first(a, va):
    a(f"s_mul_i32 s{sKV}, s{sQ}, {16*KV_REC}")
    a(f"s_add_u32 s{sKV}, s{sKV}, {WS_KV}")
    ldkm(a, 0, va); ldkt(a, 0); ldv(a, 0, 0); ldv(a, 1, 0)
    a(f"s_add_u32 s{sKV}, s{sKV}, {KV_REC}")
    ldkm(a, 1, va); ldkt(a, 1)
def zero16(a, r, z):
    a(f"v_mfma_f32_32x32x8_bf16 {vr(r, 16)}, {vr(z, 2)}, {vr(z, 2)}, 0")
def att_zero(a):
    z = aV0[1]
    for r in range(z, z + 8, 2): a(f"v_mov_b64 {vr(r, 2)}, 0")
    for r in range(176, 180, 2): a(f"v_mov_b64 {vr(r, 2)}, 0")
    for r in range(aS[3], 176, 16): zero16(a, r, z)

def row_offsets(a, dst, vL, t0, t1, extra):
    for p in range(5):
        a(f"v_add_u32 v{t0}, {64*p}, v{vL}")
        a(f"v_mul_u32_u24 v{t1}, 3277, v{t0}")
        a(f"v_lshrrev_b32 v{t1}, 16, v{t1}")
        a(f"v_lshlrev_b32 v{t0}, 4, v{t0}")
        a(f"v_mad_u32_u24 v{dst+p}, v{t1}, {extra}, v{t0}")

def item_addr(a, base_item, vA, vG, t):
    if base_item: a(f"v_add_u32 v{vA}, {base_item}, v0")
    else: a(f"v_mov_b32 v{vA}, v0")
    a(f"v_lshrrev_b32 v{t}, 7, v{vA}")
    a(f"v_mul_u32_u24 v{t+1}, 20480, v{t}")
    a(f"v_lshlrev_b32 v{vG}, 6, v{t}")
    a(f"v_and_b32 v{t}, 3, v{vA}")
    a(f"v_lshl_add_u32 v{t+1}, v{t}, 5, v{t+1}")
    a(f"v_lshl_add_u32 v{vG}, v{t}, 4, v{vG}")
    a(f"v_bfe_u32 v{t}, v{vA}, 2, 5")
    a(f"v_mul_u32_u24 v{vA}, 144, v{t}")
    a(f"v_mul_u32_u24 v{t}, 1280, v{t}")
    a(f"v_add_u32 v{vG}, v{vG}, v{t}")
    a(f"v_add3_u32 v{vA}, v{vA}, v{t+1}, s100")

def ffn_pre(a, vL, t0, t1):
    a("s_movk_i32 s100, 960")
    row_offsets(a, fD, vL, t0, t1, "s100")
    for p in range(5):
        a(f"v_add_u32 v{t0}, {64*p}, v{vL}")
        a(f"v_mul_u32_u24 v{t0}, 3277, v{t0}")
        a(f"v_lshrrev_b32 v{t0}, 18, v{t0}")
        a(f"v_mul_u32_u24 v{t0}, {16*1280}, v{t0}")
        a(f"v_add_u32 v{fD2+p}, v{fD+p}, v{t0}")
    a(f"v_lshrrev_b32 v{t0}, 5, v{vL}")
    a(f"v_bfe_u32 v{t1}, v{vL}, 2, 2")
    a(f"v_lshl_add_u32 v{t0}, v{t0}, 2, v{t1}")
    a(f"v_mul_u32_u24 v{fSTG}, 320, v{t0}")
    a(f"v_bfe_u32 v{t0}, v{vL}, 4, 1")
    a(f"v_lshl_add_u32 v{fSTG}, v{t0}, 5, v{fSTG}")
    a(f"v_and_b32 v{t0}, 3, v{vL}")
    a(f"v_lshl_add_u32 v{fSTG}, v{t0}, 3, v{fSTG}")
    a(f"s_mul_i32 s{sT1}, s{sQ}, 5120")
    a(f"v_add_u32 v{fSTG}, s{sT1}, v{fSTG}")
    a(f"v_add_u32 v{fTR}, {L_RING}, v{fSTG}")
    a(f"v_mov_b64 {vr(fBL, 2)}, -1")
    a(f"v_mov_b64 {vr(fBL+2, 2)}, -1")
    a(f"s_mul_i32 s{sT0}, s{sQ}, {27*26}")
    a(f"s_lshr_b32 s{sT0}, s{sT0}, 8")
    a(f"s_add_u32 s{sT0}, s{sT0}, 4")
    a(f"v_add_u32 v{fH}, s{sT0}, v{t0}")
    a(f"v_min_u32 v{fH}, 14, v{fH}")
    a(f"s_lshr_b32 s{sT2}, s{sT}, 2")
    a(f"s_lshl_b32 s{sT2}, s{sT2}, 11")
    a(f"s_and_b32 s{sT0}, s{sT}, 3")
    a(f"s_lshl_b32 s{sT0}, s{sT0}, 2")
    a(f"s_add_u32 s{sT2}, s{sT2}, s{sT0}")
    a(f"s_add_u32 s{sT2}, s{sT2}, {WS_F1 + 32}")
    a(f"v_lshl_add_u32 v{fH}, v{fH}, 7, s{sT2}")
    a(f"v_and_b32 v{t1}, 16, v{vL}")
    a(f"v_add_u32 v{fH}, v{fH}, v{t1}")
    a(f"s_lshl_b32 s{sT2}, s{sT}, 2")
    a(f"s_add_u32 s{sT2}, s{sT2}, s{sQ}")
    a(f"s_lshl_b32 s{sT2}, s{sT2}, 7")
    a(f"s_add_u32 s{sT2}, s{sT2}, {WS_F2 + 16}")
    a(f"v_lshl_add_u32 v{fO}, v{t0}, 2, s{sT2}")
    a(f"s_mov_b32 s100, {L_FP}")
    item_addr(a, 0, fA, fG, t0)
    a(f"v_and_b32 v{t0}, 31, v{vL}")
    a(f"v_mul_u32_u24 v{t0}, 144, v{t0}")
    a(f"v_lshrrev_b32 v{t1}, 5, v{vL}")
    a(f"v_lshl_add_u32 v{t0}, v{t1}, 4, v{t0}")
    a(f"s_add_u32 s{sT1}, s{sT1}, {L_FP}")
    a(f"v_add_u32 v{fPW}, s{sT1}, v{t0}")

def gen_p1(a):
    vL, vN, vH, vT0, vT1, vT2, vZ = 1, 2, 3, 4, 5, 6, 7
    vX, vD = 8, 16
    vNON, vROW, vFL, vFV = 21, 22, 23, 22
    vG16, vC4 = 26, 27
    vDW = 56
    FB = [28, 32]
    a(f"s_cmp_ge_u32 s2, 256")
    a("s_cbranch_scc1 L_END")
    a("s_load_dwordx16 s[32:47], s[0:1], 0")
    a("s_load_dwordx4 s[48:51], s[0:1], 64")
    a("s_load_dwordx2 s[52:53], s[0:1], 80")
    a("s_memrealtime s[100:101]")
    a(f"v_lshrrev_b32 v{vT0}, 6, v0")
    a(f"v_and_b32 v{vL}, 63, v0")
    a(f"v_readfirstlane_b32 s{sW}, v{vT0}")
    a(f"s_and_b32 s{sT1}, s2, 7")
    a(f"s_bfe_u32 s{sSI}, s2, 0x10003")
    a(f"s_lshl_b32 s{sCC}, s{sT1}, 1")
    a(f"s_add_u32 s{sRB}, s{sCC}, s{sSI}")
    a(f"s_lshr_b32 s{sCG}, s2, 4")
    a(f"s_sub_u32 s{sT0}, s{sRB}, 9")
    a(f"s_cmp_ge_u32 s{sRB}, 10")
    a(f"s_cselect_b32 s{sCC}, s{sT0}, s{sRB}")
    a(f"s_mov_b32 s{sST}, s{sCC}")
    a(f"s_and_b32 s{sTT}, s{sW}, 3")
    a(f"s_lshl_b32 s{sT0}, s{sRB}, 2")
    a(f"s_add_u32 s{sT3}, s{sT0}, s{sTT}")
    a(f"s_cmp_lt_u32 s{sW}, 4")
    a("s_cbranch_scc1 P1_A")

    def xpiece(p):
        a(f"s_add_u32 m0, s{sM0}, {1024*p}")
        a("s_nop 0")
        a(f"buffer_load_dwordx4 v{vD+p}, {sr(SX)}, s{sSO} offen lds")
    def wpiece(p, kv=False):
        a(f"s_add_u32 m0, s{sM0W}, {(4096 if kv else 1024)*p}")
        a("s_nop 0")
        if kv: a(f"buffer_load_dwordx4 v{vDW}, {sr(SA if p == 0 else SB)}, s{sSOW} offen lds")
        else: a(f"buffer_load_dwordx4 v{vDW+p}, {sr(SA)}, s{sSOW} offen lds")
    def next_chunk(x, w, dm0):
        a(f"s_add_u32 s{sCC}, s{sCC}, 1")
        a(f"s_cmp_eq_u32 s{sCC}, 10")
        a(f"s_cselect_b32 s{sCC}, 0, s{sCC}")
        if x:
            a(f"s_lshl_b32 s{sSO}, s{sCC}, 7")
            a(f"s_add_u32 s{sM0}, s{sM0}, {dm0}")
        if w:
            a(f"s_mul_i32 s{sSOW}, s{sCC}, s{sWSTEP}")
            a(f"s_add_u32 s{sSOW}, s{sSOW}, s{sWBASE}")
            a(f"s_add_u32 s{sM0W}, s{sM0W}, {dm0}")
    def w_setup(wait):
        a(f"s_sub_u32 s{sT0}, s{sCG}, 4")
        a(f"s_cmp_lt_u32 s{sCG}, 4")
        csel(a, sT2, 1280, 3456)
        a(f"s_cselect_b32 s{sT0}, s{sCG}, s{sT0}")
        a(f"s_mul_i32 s{sT0}, s{sT0}, 320")
        a(f"s_lshl_b32 s{sWBASE}, s{sTT}, 4")
        a(f"s_mul_i32 s{sWBASE}, s{sWBASE}, s{sT2}")
        a(f"s_add_u32 s{sWBASE}, s{sWBASE}, s{sT0}")
        a(f"s_lshl_b32 s{sWSTEP}, s{sT2}, 6")
        a(f"s_sub_u32 s{sT2}, s{sT2}, 320")
        row_offsets(a, vDW, vL, vT0, vT1, f"s{sT2}")
        a(f"s_mul_i32 s{sSOW}, s{sCC}, s{sWSTEP}")
        a(f"s_add_u32 s{sSOW}, s{sSOW}, s{sWBASE}")
        a(f"s_mul_i32 s{sM0W}, s{sTT}, 5120")
        a(f"s_cmp_lt_u32 s{sCG}, 4")
        if wait: a("s_waitcnt lgkmcnt(0)")
        a(f"s_cselect_b32 s{SA}, s{pWQ}, s{pW1}")
        a(f"s_cselect_b32 s{SA+1}, s{pWQ+1}, s{pW1+1}")
        csel(a, SA + 2, 640 * 640 * 2, 640 * 1728 * 2)
        a(f"s_mov_b32 s{SA+3}, 0x00020000")
    def st01():
        if PROFILE: a("s_mov_b32 s64, s100")
        a.stamp(1)

    RW = 228
    a(f"s_lshl_b32 s{sT0}, s{sT3}, 5")
    a(f"v_lshrrev_b32 v{vT0}, 3, v{vL}")
    a(f"v_add_u32 v{vT0}, s{sT0}, v{vT0}")
    a(f"v_mul_u32_u24 v{vT0}, 1280, v{vT0}")
    a(f"v_lshrrev_b32 v{vT1}, 4, v{vL}")
    a(f"v_and_b32 v{vT2}, 7, v{vL}")
    a(f"v_xor_b32 v{vT1}, v{vT1}, v{vT2}")
    a(f"v_lshl_add_u32 v{vD}, v{vT1}, 4, v{vT0}")
    a(f"v_xor_b32 v{vT1}, 4, v{vT1}")
    a(f"v_lshl_add_u32 v{vD+1}, v{vT1}, 4, v{vT0}")
    a(f"v_add_u32 v{vD+1}, {8*1280}, v{vD+1}")
    a(f"v_add_u32 v{vD+2}, {16*1280}, v{vD}")
    a(f"v_add_u32 v{vD+3}, {16*1280}, v{vD+1}")
    a(f"s_lshl_b32 s{sSO}, s{sCC}, 7")
    a(f"s_lshl_b32 s{sM0}, s{sTT}, 12")
    a(f"s_add_u32 s{sM0}, s{sM0}, {K1_XOFF}")
    a(f"s_lshl_b32 s{sT0}, s{sRB}, 4")
    a(f"s_add_u32 s{sT0}, s{sT0}, s{sCG}")
    a(f"s_lshl_b32 s{sT0}, s{sT0}, 2")
    a(f"s_add_u32 s{sSTEP}, s{sT0}, s{sTT}")
    a(f"s_mul_i32 s{sT0}, s{sSTEP}, 2560")
    a(f"v_mul_u32_u24 v{vT0}, 40, v{vL}")
    a("s_waitcnt lgkmcnt(0)")
    srd(a, SX, pX, 2048 * 1280)
    st01()
    for p in range(4): xpiece(p)
    a("s_barrier")
    a(f"buffer_load_dwordx4 {vr(RW, 4)}, v{vT0}, {sr(SX)}, s{sT0} offen")
    a(f"buffer_load_dwordx4 {vr(RW+4, 4)}, v{vT0}, {sr(SX)}, s{sT0} offen offset:16")
    a(f"buffer_load_dwordx2 {vr(RW+8, 2)}, v{vT0}, {sr(SX)}, s{sT0} offen offset:32")
    a(f"s_cmp_eq_u32 s{sCG}, 15")
    a("s_cbranch_scc1 P1_KB")
    a("s_branch P1_GB")
    a.label("P1_A")
    a(f"s_cmp_eq_u32 s{sCG}, 15")
    a("s_cbranch_scc1 P1_KA0")
    w_setup(True)
    st01()
    for p in range(5): wpiece(p)
    a("s_barrier")

    def tr_addr(dst, tile):
        a(f"s_cmp_lt_u32 s{sCG}, 4")
        if tile == 4:
            a(f"s_cselect_b32 s{sT0}, 32, 0x100")
            a(f"s_cselect_b32 s{sT1}, 160, 32")
            a(f"s_cselect_b32 s{sT2}, 40, 8")
            a(f"v_mad_u32_u24 v{dst}, v{vC4}, s{sT2}, v{vROW}")
        else:
            a(f"s_cselect_b32 s{sT1}, 40, 32")
            if isinstance(tile, tuple):
                a(f"s_lshl_b32 s{sT0}, s{sT1}, 1")
                a(f"s_mul_i32 s{sT0}, s{sT0}, s{tile[1]}")
            else:
                a(f"s_mul_i32 s{sT0}, s{sT1}, {2*tile}")
            a(f"v_lshl_add_u32 v{dst}, v{vC4}, 3, v{vROW}")
        a(f"v_mad_u32_u24 v{dst}, v{vG16}, s{sT1}, v{dst}")
        a(f"v_add_u32 v{dst}, s{sT0}, v{dst}")

    def body(tag, role, kv):
        A_, B_ = role == "A", role == "B"
        nt = 1 if (kv or B_) else 4
        tiles = [0] if kv else ([0, 1, 2, 3] if A_ else [4])
        sstr, rstr = (1024, 40) if kv else (5120, 320)
        vTR = 16 if A_ else 12
        vSA = 13
        FA = [128, 144] if A_ else [36, 40]
        ACC, P = (64, 160) if A_ else (180, 212)
        GAT = 228
        ST, NM, CSR = (36, 40, 44) if A_ else (44, 48, 50)
        ONE, PUB = 24, 52
        nxt = "P2_FFN" if A_ else "P2_ATT"
        def m4(d, x, y):
            a(f"v_mfma_f32_4x4x4_16b_bf16 {vr(d, 4)}, {vr(x, 2)}, {vr(y, 2)}, {vr(d, 4)}")
        def get_nonce(publish):
            L, D = a.uid("NON"), a.uid("NOND")
            a(f"s_mov_b32 s{sSPIN}, {SPIN}")
            a.label(L)
            a(f"v_readfirstlane_b32 s{sNON}, v{vNON}")
            a(f"s_cmp_lg_u32 s{sNON}, 0")
            a(f"s_cbranch_scc1 {D}")
            a(f"buffer_load_dword v{vNON}, v{vZ}, {sr(SDBG)}, 0 offen sc1")
            a("s_waitcnt vmcnt(0)")
            spin_tail(a, L)
            a.label(D)
            xcc_word(a)
            if publish:
                L = a.uid("XW")
                a(f"s_cmp_lg_u32 s{sW}, 4")
                a(f"s_cbranch_scc1 {L}")
                a(f"s_and_b32 s{sT0}, s2, 7")
                a(f"s_lshl_b32 s{sT0}, s{sT0}, 5")
                a(f"s_lshr_b32 s{sT1}, s2, 3")
                a(f"s_add_u32 s{sT0}, s{sT0}, s{sT1}")
                a(f"s_lshl_b32 s{sT0}, s{sT0}, 2")
                a(f"s_add_u32 s{sT0}, s{sT0}, {WS_XC}")
                a(f"v_mov_b32 v{vT0}, s{sXW}")
                a("s_mov_b64 exec, 1")
                a(f"buffer_store_dword v{vT0}, v{vZ}, {sr(SWS)}, s{sT0} offen sc1")
                a("s_mov_b64 exec, -1")
                a.label(L)
        def row_stats(part=None):
            for p, f in enumerate((rs0, rs1, rs2, rs3)):
                if part is None or part == p: f()
        SU, SQ, R = RW + 10, RW + 11, RW + 12
        def rs0():
            a(f"v_mov_b64 {vr(SU, 2)}, 0")
            for j in range(10):
                a(f"v_dot2c_f32_bf16 v{SU}, v{ONE}, v{RW+j}")
                a(f"v_dot2c_f32_bf16 v{SQ}, v{RW+j}, v{RW+j}")
            a("s_nop 2")
        def rs1():
            for m in ("row_shr:1", "row_shr:2", "row_shr:4", "row_shr:8"):
                a(f"v_add_f32_dpp v{SU}, v{SU}, v{SU} {m} row_mask:0xf bank_mask:0xf bound_ctrl:0")
                a(f"v_add_f32_dpp v{SQ}, v{SQ}, v{SQ} {m} row_mask:0xf bank_mask:0xf bound_ctrl:0")
                a("s_nop 0")
            a(f"v_add_f32_dpp v{SU}, v{SU}, v{SU} row_bcast:15 row_mask:0xa bank_mask:0xf")
            a(f"v_add_f32_dpp v{SQ}, v{SQ}, v{SQ} row_bcast:15 row_mask:0xa bank_mask:0xf")
        def rs2():
            a(f"v_mul_f32 v{SU}, {f32bits(1.0/640):#x}, v{SU}")
            a(f"v_mul_f32 v{SQ}, {f32bits(1.0/640):#x}, v{SQ}")
            a(f"v_fma_f32 v{SQ}, -v{SU}, v{SU}, v{SQ}")
            a(f"v_max_f32 v{SQ}, 0, v{SQ}")
            a(f"v_cvt_pk_bf16_f32 v{R}, -v{SU}, -v{SU}")
            a(f"v_cvt_pk_bf16_f32 v{SQ}, v{SQ}, v{SQ}")
            a(f"v_and_b32 v{SQ}, 0xffff0000, v{SQ}")
            a(f"v_add_f32 v{SQ}, {f32bits(1e-5):#x}, v{SQ}")
            a(f"v_cvt_pk_bf16_f32 v{SQ}, v{SQ}, v{SQ}")
            a(f"v_and_b32 v{SQ}, 0xffff0000, v{SQ}")
            a(f"v_sqrt_f32 v{SQ}, v{SQ}")
            a("s_nop 0")
            a(f"v_cvt_pk_bf16_f32 v{SQ}, v{SQ}, v{SQ}")
            a(f"v_and_b32 v{SQ}, 0xffff0000, v{SQ}")
            a(f"v_rcp_f32 v{R+2}, v{SQ}")
        def rs3():
            a(f"v_mov_b32 v{R+1}, v{vNON}")
            a(f"v_mov_b32 v{R+3}, v{vNON}")
            a(f"v_lshlrev_b32 v{vT0}, 4, v{vH}")
            a(f"s_lshl_b32 s{sT0}, s{sSTEP}, 5")
            a(f"s_add_u32 s{sT0}, s{sT0}, {WS_RS}")
            a("s_mov_b32 exec_lo, 0x80000000")
            a("s_mov_b32 exec_hi, 0x80000000")
            a(f"buffer_store_dwordx4 {vr(R, 4)}, v{vT0}, {sr(SWS)}, s{sT0} offen sc1")
            a("s_mov_b64 exec, -1")
        def row_load(dst):
            a(f"s_lshl_b32 s{sT0}, s{sT3}, 9")
            a(f"s_add_u32 s{sT0}, s{sT0}, {WS_RS}")
            a(f"v_lshlrev_b32 v{vT0}, 4, v{vN}")
            a(f"buffer_load_dwordx4 {vr(dst, 4)}, v{vT0}, {sr(SWS)}, s{sT0} offen sc1")
        def tag_check(regs, again, ok):
            a(f"v_xor_b32 v{vT1}, s{sNON}, v{regs[0]}")
            for r in regs[1:]: a(f"v_bitop3_b32 v{vT1}, v{r}, s{sNON}, v{vT1} bitop3:0xbe")
            a(f"v_cmp_ne_u32 vcc, 0, v{vT1}")
            a(f"s_cbranch_vccz {ok}")
            a("s_sleep 2")
            spin_tail(a, again)
            a.label(ok)
        def next_slot():
            a(f"s_and_b32 s{sT0}, s{sC}, 3")
            csel(a, sT1, K1_SLOT, -3*K1_SLOT)
            a(f"s_cmp_eq_u32 s{sT0}, 3")
            csel(a, sDEL, -3*K1_SLOT, K1_SLOT)
            for s in range(4): a(f"v_add_u32 v{vX+s}, s{sDEL}, v{vX+s}")
            for i in range(nt): a(f"v_add_u32 v{vTR+i}, s{sDEL}, v{vTR+i}")
        srd(a, SWS, pWS, WS_END)
        srd(a, SDBG, pDBG, 256)
        a(f"v_mov_b32 v{vZ}, 0")
        if A_ and not kv:
            L = a.uid("NONCE")
            a(f"s_or_b32 s{sT0}, s2, s{sW}")
            a(f"s_cbranch_scc1 {L}")
            if PROFILE: a("s_or_b32 s100, s65, 1")
            else: a("s_or_b32 s100, s100, 1")
            a(f"v_mov_b32 v{vT0}, s100")
            a(f"buffer_store_dword v{vT0}, v{vZ}, {sr(SDBG)}, 0 offen sc1")
            a.label(L)
        a(f"v_mov_b64 {vr(PUB, 2)}, 0")
        a(f"v_mov_b64 {vr(PUB+2, 2)}, 0")
        a(f"v_and_b32 v{vN}, 31, v{vL}")
        a(f"v_lshrrev_b32 v{vH}, 5, v{vL}")
        for i in range(nt): zero16(a, ACC + 16 * i, PUB)
        if B_ or kv:
            zero16(a, P, PUB)
            a(f"v_mov_b32 v{ONE}, 0x3f803f80")
            a(f"v_mov_b32 v{ONE+1}, 0x3f803f80")
        a(f"v_bfe_u32 v{vT0}, v{vL}, 1, 3")
        a(f"v_xor_b32 v{vT0}, v{vT0}, v{vH}")
        a(f"s_lshl_b32 s{sT0}, s{sTT}, 12")
        a(f"s_add_u32 s{sT0}, s{sT0}, {K1_XOFF}")
        a(f"v_lshl_add_u32 v{vT1}, v{vN}, 7, s{sT0}")
        for s in range(4):
            a(f"v_xor_b32 v{vT2}, {2*s}, v{vT0}")
            a(f"v_lshl_add_u32 v{vX+s}, v{vT2}, 4, v{vT1}")
        a(f"v_bfe_u32 v{vT0}, v{vL}, 2, 2")
        a(f"v_lshl_add_u32 v{vROW}, v{vH}, 3, v{vT0}")
        a(f"v_bfe_u32 v{vG16}, v{vL}, 4, 1")
        a(f"v_and_b32 v{vC4}, 3, v{vL}")
        if kv:
            a(f"v_lshl_add_u32 v{vT0}, v{vG16}, 2, v{vC4}")
            a(f"v_min_u32 v{vT0}, 4, v{vT0}")
            a(f"v_mul_u32_u24 v{vROW}, 40, v{vROW}")
            a(f"v_lshl_add_u32 v{vTR}, v{vT0}, 3, v{vROW}")
            if B_: a(f"v_add_u32 v{vTR}, 4096, v{vTR}")
        else:
            a(f"v_mul_u32_u24 v{vROW}, 320, v{vROW}")
            for i, t in enumerate(tiles): tr_addr(vTR + i, t)
            if B_:
                tr_addr(vSA, ("s", sTT))
                w_setup(False)
        next_chunk(B_, A_ or not kv, K1_SLOT)
        if B_:
            for p in range(4): xpiece(p)
        else:
            for p in range(2 if kv else 5): wpiece(p, kv)
        next_chunk(B_, kv != B_, K1_SLOT)
        a(f"s_and_b32 s{sT}, s2, 7")
        a(f"s_lshl_b32 s{sT}, s{sT}, 3")
        a(f"s_lshr_b32 s{sT0}, s2, 5")
        a(f"s_add_u32 s{sT}, s{sT}, s{sT0}")
        a(f"s_bfe_u32 s{sHG}, s2, 0x20003")
        a(f"s_mul_i32 s{sG}, s{sT}, {G_TSTRIDE}")
        a(f"s_mul_i32 s{sOB}, s{sT}, {32*1280}")
        a(f"s_mul_i32 s{sT0}, s{sHG}, 320")
        a(f"s_add_u32 s{sOB}, s{sOB}, s{sT0}")
        a(f"s_lshl_b32 s{sF2}, s{sT}, 2")
        a(f"s_add_u32 s{sF2}, s{sF2}, s{sHG}")
        a(f"s_lshl_b32 s{sF2}, s{sF2}, 7")
        a(f"s_add_u32 s{sF2}, s{sF2}, {WS_F2}")
        a(f"s_mul_i32 s{sOUT}, s{sT3}, {G_TSTRIDE}")
        a(f"s_mul_i32 s{sT0}, s{sCG}, 10240")
        a(f"s_add_u32 s{sOUT}, s{sOUT}, s{sT0}")
        a(f"s_cmp_lt_u32 s{sCG}, 4")
        a(f"s_cselect_b32 s{sQS}, {f32bits(QSCALE):#x}, 1.0")
        a(f"s_cselect_b32 s{sLO}, 0x80008000, 0")
        a(f"s_lshl_b32 s{sFL}, s{sRB}, 4")
        a(f"s_add_u32 s{sFL}, s{sFL}, s{sCG}")
        a(f"s_lshl_b32 s{sFL}, s{sFL}, 7")
        a(f"s_add_u32 s{sFL}, s{sFL}, {WS_F1}")
        a(f"s_mov_b32 s{sFAST}, 0")
        a(f"s_mov_b32 s{sC}, 0")
        if B_:
            srd(a, SB, pOUT, 2048 * 1280)
        elif not kv:
            ffn_pre(a, vL, vT0, vT1)
        def att_setup(part=None):
            for p, f in enumerate((as0, as1, as2, as3)):
                if part is None or part == p: f()
        def as0():
            att_zero(a)
            a(f"v_mul_u32_u24 v{avV}, 384, v{vH}")
            a(f"v_lshl_add_u32 v{avV}, v{vN}, 4, v{avV}")
            a(f"v_add_u32 v{avV}, 1024, v{avV}")
            a(f"v_mov_b32 v{vT0}, {OOB:#x}")
            a(f"v_cmp_gt_u32 vcc, 21, v{vN}")
            a(f"v_min_u32 v{avKT}, 32, v{vL}")
            a(f"v_lshlrev_b32 v{avKT}, 3, v{avKT}")
            a(f"v_cndmask_b32 v{avV}, v{vT0}, v{avV}, vcc")
            a(f"v_add_u32 v{avKT}, 2560, v{avKT}")
        def as1(): pairs((0, 1))
        def pairs(js):
            a(f"s_mul_i32 s{sT2}, s{sHG}, 10240")
            a(f"s_add_u32 s{sT2}, s{sT2}, s{sG}")
            for j in js:
                a(f"s_add_u32 s{sT0}, s{sQ}, {j}")
                a(f"s_and_b32 s{sT0}, s{sT0}, 3")
                a(f"s_lshl_b32 s{sPm+j}, s{sT0}, 11")
                a(f"s_add_u32 s{sPm+j}, s{sPm+j}, s{sT2}")
                a(f"s_lshr_b32 s{sT1}, s{sT0}, 1")
                a(f"s_lshl_b32 s{sT1}, s{sT1}, 10")
                a(f"s_and_b32 s{sT0}, s{sT0}, 1")
                a(f"s_lshl_b32 s{sT0}, s{sT0}, 3")
                a(f"s_add_u32 s{sT1}, s{sT1}, s{sT0}")
                a(f"s_add_u32 s{sT1}, s{sT1}, s{sT2}")
                a(f"s_add_u32 s{sPt+j}, s{sT1}, 8192")
        def as2(): pairs((2, 3))
        def as3():
            a(f"s_mul_i32 s{sT2}, s{sT}, 40960")
            a(f"s_add_u32 s{sT2}, s{sT2}, {WS_O}")
            a(f"s_sub_u32 s{sT2}, s{sT2}, s{sG}")
            a(f"s_add_u32 s{sOm}, s{sPm}, s{sT2}")
            a(f"s_add_u32 s{sOt}, s{sPt}, s{sT2}")
            a(f"s_mov_b32 s{sTGT}, 0")
            a(f"v_mov_b32 v{vT0}, {L_CNT}")
            a(f"ds_write_b128 v{vT0}, {vr(aV0[1], 4)}")
            a(f"s_lshr_b32 s{sT0}, s{sT}, 2")
            a(f"s_lshl_b32 s{sT0}, s{sT0}, 4")
            a(f"s_add_u32 s{sT0}, s{sT0}, s{sHG}")
            a(f"s_lshl_b32 s{sT0}, s{sT0}, 5")
            a(f"s_and_b32 s{sT1}, s{sT}, 3")
            a(f"s_add_u32 s{sT0}, s{sT0}, s{sT1}")
            a(f"s_lshl_b32 s{sT0}, s{sT0}, 2")
            a(f"s_add_u32 s{sFQ}, s{sT0}, {WS_F1 + 32}")
            a(f"v_and_b32 v{vT0}, 15, v{vL}")
            a(f"v_lshlrev_b32 v{vT0}, 11, v{vT0}")
            a(f"v_add_u32 v{vT0}, {WS_F1 + 15*128}, v{vT0}")
            a(f"s_and_b32 s{sT0}, s2, 7")
            a(f"s_lshl_b32 s{sT0}, s{sT0}, 7")
            a(f"s_add_u32 s{sT0}, s{sT0}, {WS_XC}")
            a(f"v_cmp_gt_u32 vcc, 32, v{vL}")
            a(f"v_lshl_add_u32 v{vT1}, v{vN}, 2, s{sT0}")
            a("s_nop 0")
            a(f"v_cndmask_b32 v{vFL}, v{vT1}, v{vT0}, vcc")

        if kv:
            nd = 4 if B_ else 2
            XB, WA = [28, ACC + 16], [128, 144] if A_ else [96, 112]
            def pieces(rng):
                for p in rng:
                    if p < nd: xpiece(p) if B_ else wpiece(p, True)
            pieces(range(4))
            next_chunk(B_, A_, K1_SLOT)
            a(f"s_waitcnt vmcnt({2*nd + (0 if A_ else 3)})")
            a.stamp(2)
            a("s_barrier")
            a.stamp(3); a.stamp(NSTAMP, True)
            for s in range(4):
                a(f"ds_read_b128 {vr(XB[0]+4*s, 4)}, v{vX+s}")
                a(f"ds_read_b64_tr_b16 {vr(WA[0]+4*s, 2)}, v{vTR} offset:{s*sstr}")
                a(f"ds_read_b64_tr_b16 {vr(WA[0]+4*s+2, 2)}, v{vTR} offset:{s*sstr+4*rstr}")
            a(f"buffer_load_dword v{vNON}, v{vZ}, {sr(SDBG)}, 0 offen sc1")
            pieces(range(4))
            a.label(f"P1_L{tag}")
            for b in range(2):
                next_slot()
                next_chunk(B_, A_, f"s{sT1}")
                if b == 0:
                    L = a.uid("KS")
                    a(f"s_cmp_lg_u32 s{sC}, 6")
                    a(f"s_cbranch_scc1 {L}")
                    if B_: a(f"s_mov_b32 s{SX+2}, 0")
                    else:
                        a(f"s_mov_b32 s{SA+2}, 0")
                        a(f"s_mov_b32 s{SB+2}, 0")
                    a.label(L)
                a(f"s_waitcnt vmcnt({2*nd}) lgkmcnt(0)")
                a("s_barrier")
                for s in range(4):
                    a(f"v_mfma_f32_32x32x16_bf16 {vr(ACC, 16)}, {vr(WA[b]+4*s, 4)}, {vr(XB[b]+4*s, 4)}, {vr(ACC, 16)}")
                    a(f"ds_read_b128 {vr(XB[b^1]+4*s, 4)}, v{vX+s}")
                    a(f"ds_read_b64_tr_b16 {vr(WA[b^1]+4*s, 2)}, v{vTR} offset:{s*sstr}")
                    a(f"ds_read_b64_tr_b16 {vr(WA[b^1]+4*s+2, 2)}, v{vTR} offset:{s*sstr+4*rstr}")
                    for j in range(2): m4(P + 4*j, ONE, WA[b]+4*s+2*j)
                    pieces([s])
                if b == 1:
                    L, L2 = a.uid("KN"), a.uid("KR")
                    a(f"s_cmp_lg_u32 s{sC}, 1")
                    a(f"s_cbranch_scc1 {L}")
                    get_nonce(B_)
                    if B_: row_stats()
                    a.label(L)
                    a(f"s_cmp_lg_u32 s{sC}, 7")
                    a(f"s_cbranch_scc1 {L2}")
                    row_load(ST + 16)
                    a.label(L2)
                if A_: a.lstamp(sC)
                a(f"s_add_u32 s{sC}, s{sC}, 1")
            a(f"s_cmp_lt_u32 s{sC}, 10")
            a(f"s_cbranch_scc1 P1_L{tag}")
            a.stamp(4); a.stamp(NSTAMP + 1, True)
            if A_: a.ldump()
            R = ST + 16
            a(f"s_mov_b32 s{sSPIN}, {SPIN}")
            a(f"s_branch P1_GW{tag}")
            a.label(f"P1_GA{tag}")
            row_load(R)
            a.label(f"P1_GW{tag}")
            a("s_waitcnt vmcnt(0) lgkmcnt(0)")
            tag_check([R + 1, R + 3], f"P1_GA{tag}", f"P1_FOK{tag}")
            a(f"v_add_f32 v{P}, v{P}, v{P+4}")
            split3(a, P, vT0, vT1, CSR, CSR + 1)
            a(f"v_mov_b32 v{R+1}, v{R}")
            a(f"v_mov_b32 v{R+3}, v{R+2}")
            a(f"v_lshlrev_b32 v{vT2}, 4, v{vL}")
            a(f"v_mfma_f32_32x32x8_bf16 {vr(ACC, 16)}, {vr(CSR, 2)}, {vr(R, 2)}, {vr(ACC, 16)}")
            a("s_nop 9")
            a(f"s_mul_i32 s{sT0}, s{sT3}, {KV_REC}")
            a(f"s_add_u32 s{sT0}, s{sT0}, {WS_KV}")
            for j in range(6): a(f"v_pk_mul_f32 {vr(ACC+2*j, 2)}, {vr(ACC+2*j, 2)}, {vr(R+2, 2)}")
            if A_:
                for j in range(6): a(f"v_cvt_pk_bf16_f32 v{P+j}, v{ACC+2*j}, v{ACC+2*j+1}")
                a(f"v_min_u32 v{vT0}, 32, v{vL}")
                a(f"v_lshlrev_b32 v{vT0}, 3, v{vT0}")
                a("s_mov_b32 exec_lo, 0")
                a(f"v_mov_b32 v{P+4}, 0x3f803f80")
                a(f"v_mov_b32 v{P+5}, 0x3f80")
                a("s_mov_b32 exec_lo, -1")
                a(f"buffer_store_dwordx4 {vr(P, 4)}, v{vT2}, {sr(SWS)}, s{sT0} offen sc1")
                a(f"buffer_store_dwordx2 {vr(P+4, 2)}, v{vT0}, {sr(SWS)}, s{sT0} offen offset:2560 sc1")
            else:
                a("s_mov_b32 exec_lo, 0")
                a(f"v_mov_b32 v{ACC+8}, 1.0")
                a("s_mov_b32 exec_lo, -1")
                for j in range(6): a(f"v_cvt_pk_bf16_f32 v{P+j}, v{ACC+2*j}, v{ACC+2*j+1}")
                a(f"s_mul_i32 s{sT1}, s{sTT}, 1536")
                a(f"s_add_u32 s{sT1}, s{sT1}, {L_VT}")
                a(f"v_lshrrev_b32 v{vT0}, 3, v{vN}")
                a(f"v_mul_u32_u24 v{vT0}, 384, v{vT0}")
                a(f"v_and_b32 v{vT1}, 7, v{vN}")
                a(f"v_lshl_add_u32 v{vT0}, v{vT1}, 1, v{vT0}")
                a(f"v_lshl_add_u32 v{vT0}, v{vH}, 6, v{vT0}")
                a(f"v_add_u32 v{vT0}, s{sT1}, v{vT0}")
                for r in range(12):
                    op = "ds_write_b16" if r % 2 == 0 else "ds_write_b16_d16_hi"
                    a(f"{op} v{vT0}, v{P+r//2} offset:{(r//4)*128 + (r%4)*16}")
                a(f"v_add_u32 v{vT0}, s{sT1}, v{vT2}")
                a("s_waitcnt lgkmcnt(0)")
                a(f"ds_read_b128 {vr(P+8, 4)}, v{vT0}")
                a(f"ds_read_b128 {vr(P+12, 4)}, v{vT0} offset:1024")
                a("s_waitcnt lgkmcnt(0)")
                a(f"buffer_store_dwordx4 {vr(P+8, 4)}, v{vT2}, {sr(SWS)}, s{sT0} offen offset:1024 sc1")
                a("s_mov_b32 exec_hi, 0")
                a(f"buffer_store_dwordx4 {vr(P+12, 4)}, v{vT2}, {sr(SWS)}, s{sT0} offen offset:2048 sc1")
                a("s_mov_b32 exec_hi, -1")
            a.stamp(5)
            a("s_waitcnt vmcnt(0) lgkmcnt(0)")
            a("s_barrier")
            if B_:
                a(f"s_mov_b32 s{sKOK}, 0")
                a(f"s_cmp_lg_u32 s{sW}, 4")
                a(f"s_cbranch_scc1 P1_KNP")
                a("s_mov_b64 exec, 1")
                a(f"buffer_store_dword v{vNON}, v{vZ}, {sr(SWS)}, s{sFL} offen sc1")
                a("s_mov_b64 exec, -1")
                a.label("P1_KNP")
                att_setup()
                a("s_waitcnt lgkmcnt(0)")
                a("s_barrier")
            else:
                ffn_pre(a, vL, vT0, vT1)
                a("s_barrier")
                srd(a, SX, pW2, 1728 * 1280)
                a(f"s_mul_i32 s{sT2}, s{sW}, 5120")
                a(f"s_mul_i32 s{sT0}, s{sW}, {27*16*1280}")
                a(f"s_mul_i32 s{sT1}, s{sHG}, 320")
                a(f"s_add_u32 s{sT0}, s{sT0}, s{sT1}")
                for i in range(3):
                    for p in range(5):
                        a(f"s_add_u32 m0, s{sT2}, {L_RING + i*20480 + p*1024}")
                        a("s_nop 0")
                        a(f"buffer_load_dwordx4 v{fD+p}, {sr(SX)}, s{sT0} offen lds")
                    a(f"s_add_u32 s{sT0}, s{sT0}, {16*1280}")
            a(f"s_branch {nxt}")
            return

        def mfma(i, p): a(f"v_mfma_f32_32x32x16_bf16 {vr(ACC+16*i, 16)}, {vr(FA[p]+4*i, 4)}, {vr(FB[p], 4)}, {vr(ACC+16*i, 16)}")
        def rdb(q, ns): a(f"ds_read_b128 {vr(FB[q], 4)}, v{vX+ns}")
        def rda(q, i, ns):
            a(f"ds_read_b64_tr_b16 {vr(FA[q]+4*i, 2)}, v{vTR+i} offset:{ns*sstr}")
            a(f"ds_read_b64_tr_b16 {vr(FA[q]+4*i+2, 2)}, v{vTR+i} offset:{ns*sstr+4*rstr}")
        def rank1(i): a(f"v_mfma_f32_32x32x8_bf16 {vr(ACC+16*i, 16)}, {vr(CSR+2*i, 2)}, {vr(NM, 2)}, {vr(ACC+16*i, 16)}")
        def pack_store(i, t):
            for j in range(8): a(f"v_pk_mul_f32 {vr(ACC+16*i+2*j, 2)}, {vr(ACC+16*i+2*j, 2)}, {vr(ST, 2)}")
            for j in range(8): a(f"v_cvt_pk_bf16_f32 v{P+8*i+j}, v{ACC+16*i+2*j}, v{ACC+16*i+2*j+1}")
            for j in range(8): a(f"v_pk_max_i16 v{P+8*i+j}, v{P+8*i+j}, s{sLO}")
            a(f"s_add_u32 s{sT0}, s{sOUT}, {2048*t}")
            stores(a, [f"buffer_store_dwordx4 {vr(P+8*i+4*e, 4)}, v{vT2}, {sr(SWS)}, s{sT0} offen offset:{1024*e}" for e in range(2)])
        def signal(vn):
            a.stamp(5)
            a(f"s_lshl_b32 s{sT0}, s{sW}, 2")
            a(f"s_add_u32 s{sT0}, s{sT0}, s{sFL}")
            a("s_mov_b64 exec, 1")
            a("s_waitcnt vmcnt(0)")
            stores(a, [f"buffer_store_dword v{vn}, v{vZ}, {sr(SWS)}, s{sT0} offen offset:32"])
            a("s_mov_b64 exec, -1")
            a(f"s_branch {nxt}")
        if A_:
            NM, ST = 36, 38
            vRS, vRC = 20, 21
            a(f"s_lshl_b32 s{sT0}, s{sTT}, 10")
            a(f"s_add_u32 s{sT0}, s{sT0}, {K1_ST}")
            a(f"v_lshl_add_u32 v{vRS}, v{vN}, 5, s{sT0}")
            a(f"v_lshlrev_b32 v{vRC}, 3, v{vL}")
            a(f"v_add_u32 v{vRC}, {K1_CS}, v{vRC}")
            a(f"v_lshlrev_b32 v{vT2}, 4, v{vL}")
            srd(a, SX, pW2, 1728 * 1280)
            a(f"s_mul_i32 s{sPB}, s{sRB}, 15")
            a(f"s_add_u32 s{sPB}, s{sPB}, s{sCG}")
            a(f"s_lshl_b32 s{sPB}, s{sPB}, 2")
            a(f"s_add_u32 s{sPB}, s{sPB}, s{sTT}")
            a(f"s_mul_i32 s{sSO}, s{sPB}, {7*128}")
            a(f"s_mul_i32 s{sPB}, s{sPB}, {18*128}")
            srd(a, SB, pWO, 640 * 1280)
            a(f"v_lshlrev_b32 v{vT0}, 7, v{vL}")
            a("s_waitcnt vmcnt(5)")
            a.stamp(2)
            a("s_barrier")
            rdb(0, 0)
            for i in range(4): rda(0, i, 0)
            a.stamp(3); a.stamp(NSTAMP, True)
            def step(s, pre=None, extra=0):
                p, q, ns = s & 1, (s + 1) & 1, (s + 1) & 3
                for i in range(4):
                    if pre is None: a(f"s_waitcnt lgkmcnt({min(15, 2*(3-i) + ((1 + 2*i) if i else 0) + extra)})")
                    mfma(i, p)
                    if i == 0:
                        if pre is not None: pre()
                        rdb(q, ns)
                    rda(q, i, ns)
            a.raw(".p2align 3")
            a.label(f"P1_L{tag}")
            for s in range(3): step(s)
            a(f"s_and_b32 s{sT0}, s{sC}, 3")
            a(f"s_cmp_eq_u32 s{sT0}, 3")
            csel(a, sDEL, -3*K1_SLOT, K1_SLOT)
            for s in range(4): a(f"v_add_u32 v{vX+s}, s{sDEL}, v{vX+s}")
            for i in range(4): a(f"v_add_u32 v{vTR+i}, s{sDEL}, v{vTR+i}")
            TC = optv("tc", 3)
            TO = optv("to", 9)
            a(f"s_bitcmp1_b32 {1 | (1 << TC) | (1 << TO):#x}, s{sC}")
            a("s_waitcnt lgkmcnt(0)")
            def pre():
                a(f"s_cbranch_scc1 P1_X{tag}")
                a.label(f"P1_W1{tag}")
                a("s_barrier")
            step(3, pre)
            a.lstamp(sC)
            a(f"s_add_u32 s{sC}, s{sC}, 1")
            a(f"s_cmp_lt_u32 s{sC}, 9")
            a(f"s_cbranch_scc1 P1_L{tag}")
            a(f"ds_read_b128 {vr(NM, 4)}, v{vRS}")
            a(f"ds_read_b64 {vr(40, 2)}, v{vRS} offset:16")
            for i in range(4): a(f"ds_read_b64 {vr(CSR+2*i, 2)}, v{vRC} offset:{512*i}")
            step(0, None, 6)
            step(1)
            for i in range(4):
                rank1(i)
                if i == 0: rdb(1, 3)
                rda(1, i, 3)
            a(f"v_readfirstlane_b32 s{sNON}, v40")
            a(f"v_readfirstlane_b32 s{sFAST}, v41")
            a("s_waitcnt lgkmcnt(6)")
            mfma(0, 0); mfma(0, 1)
            a("s_waitcnt lgkmcnt(0)")
            a("s_barrier")
            a.stamp(4); a.stamp(NSTAMP + 1, True)
            mfma(1, 0); mfma(1, 1)
            xcc_word(a)
            a("s_nop 4")
            for i in range(4):
                if i < 2: mfma(i + 2, 0); mfma(i + 2, 1)
                pack_store(i, i)
            a.ldump()
            signal(40)
            a.label(f"P1_X{tag}")
            if TO < 9:
                L = a.uid("TO")
                a(f"s_cmp_lg_u32 s{sC}, {TO}")
                a(f"s_cbranch_scc1 {L}")
                if opt("toq"):
                    a(f"s_cmp_ge_u32 s{sCG}, 4")
                    a(f"s_cbranch_scc1 P1_W1{tag}")
                a(f"buffer_load_dword v229, v{vT0}, {sr(SWS)}, s{sOUT} offen")
                a(f"s_add_u32 s{sT0}, s{sOUT}, 8192")
                a("s_mov_b64 exec, 0xffff")
                a(f"buffer_load_dword v229, v{vT0}, {sr(SWS)}, s{sT0} offen")
                a("s_mov_b64 exec, -1")
                a(f"s_branch P1_W1{tag}")
                a.label(L)
            a("s_waitcnt vmcnt(0)")
            a(f"s_cmp_lg_u32 s{sC}, {TC}")
            a(f"s_cbranch_scc1 P1_W1{tag}")
            if opt("tq"):
                a(f"s_mul_i32 s{sT0}, s{sHG}, 10240")
                a(f"s_add_u32 s{sT0}, s{sT0}, s{sG}")
                a(f"s_mul_i32 s{sT1}, s{sTT}, 2560")
                a(f"s_add_u32 s{sT0}, s{sT0}, s{sT1}")
                a("s_mov_b64 exec, 0xfffff")
                a(f"buffer_load_dword v229, v{vT0}, {sr(SWS)}, s{sT0} offen")
            a("s_mov_b64 exec, 0x7f")
            a(f"buffer_load_dword v230, v{vT0}, {sr(SB)}, s{sSO} offen")
            a("s_mov_b64 exec, 0x3ffff")
            a(f"buffer_load_dword v231, v{vT0}, {sr(SX)}, s{sPB} offen")
            a("s_mov_b64 exec, -1")
            a(f"s_branch P1_W1{tag}")
            return
        NM, ST = 44, 46
        vWO, CG, RR = 200, 204 - 8, 206
        CG = 196
        a(f"s_lshl_b32 s{sPB}, s{sCG}, 2")
        a(f"s_add_u32 s{sPB}, s{sPB}, s{sTT}")
        a(f"s_mul_i32 s{sPB}, s{sPB}, 5120")
        a(f"s_add_u32 s{sPB}, s{sPB}, {WS_CP}")
        if opt("zearly"): att_setup(0)
        a(f"s_sub_u32 s{sM0}, s{sM0}, {2*K1_SLOT}")
        a(f"s_sub_u32 s{sM0W}, s{sM0W}, {2*K1_SLOT}")
        a("s_setprio 1")
        ops = ["X0"] * 4 + ["R"] * 3 + ["D1"] * 4
        def vm(tag_, n=1): ops.extend([tag_] * n)
        def wait(*tags):
            last = max(i for i, t in enumerate(ops) if t in tags)
            return len(ops) - 1 - last
        def xp(c, p):
            a(f"s_add_u32 m0, s{sM0}, {(c & 3)*K1_SLOT + 1024*p}")
            a("s_nop 0")
            a(f"buffer_load_dwordx4 v{vD+p}, {sr(SX)}, s{sSO} offen lds"); vm(f"D{c}")
        def wp(c, p):
            base = (c & 3) * K1_SLOT if c < 10 else L_RING + (c - 10) * 20480
            a(f"s_add_u32 m0, s{sM0W}, {base + 1024*p}")
            a("s_nop 0")
            a(f"buffer_load_dwordx4 v{(vDW if c < 10 else vWO)+p}, {sr(SA)}, s{sSOW} offen lds"); vm(f"D{c}")
        def adv(c):
            if c < 10:
                a(f"s_add_u32 s{sCC}, s{sCC}, 1")
                a(f"s_cmp_eq_u32 s{sCC}, 10")
                a(f"s_cselect_b32 s{sCC}, 0, s{sCC}")
                a(f"s_lshl_b32 s{sSO}, s{sCC}, 7")
                a(f"s_mul_i32 s{sSOW}, s{sCC}, s{sWSTEP}")
                a(f"s_add_u32 s{sSOW}, s{sSOW}, s{sWBASE}")
            elif c == 10:
                srd(a, SA, pW2, 1728 * 1280)
                a(f"s_mul_i32 s{sSOW}, s{sTT}, {27*16*1280}")
                a(f"s_mul_i32 s{sT0}, s{sHG}, 320")
                a(f"s_add_u32 s{sSOW}, s{sSOW}, s{sT0}")
            elif c < 13:
                a(f"s_add_u32 s{sSOW}, s{sSOW}, {16*1280}")
        def f_nonce(): get_nonce(True)
        def f_cspub():
            a(f"v_add_f32 v{PUB}, v{P}, v{P+8}")
            a(f"v_add_f32 v{PUB+2}, v{P+4}, v{P+12}")
            halfop(a, "v_add_f32", PUB, vT0); halfop(a, "v_add_f32", PUB + 2, vT0)
            a(f"v_mov_b32 v{PUB+1}, v{vNON}")
            a(f"v_mov_b32 v{PUB+3}, v{vNON}")
            a(f"v_lshlrev_b32 v{vT2}, 4, v{vL}")
            a(f"s_lshl_b32 s{sT1}, s{sST}, 9")
            a(f"s_add_u32 s{sT0}, s{sPB}, s{sT1}")
            a("s_mov_b32 exec_hi, 0")
            a(f"buffer_store_dwordx4 {vr(PUB, 4)}, v{vT2}, {sr(SWS)}, s{sT0} offen sc1"); vm("S")
            a("s_mov_b32 exec_hi, -1")
        def f_rowpub(): row_stats(3); vm("S")
        def f_wo():
            a(f"s_movk_i32 s{sT2}, 960")
            row_offsets(a, vWO, vL, vT0, vT1, f"s{sT2}")
        def gather(js, count=True):
            for j in js:
                if j == 0:
                    row_load(RR)
                    a(f"v_mul_u32_u24 v{vT1}, 2560, v{vH}")
                    a(f"v_add_u32 v{vSA}, v{vT0}, v{vT1}")
                else:
                    a(f"buffer_load_dwordx4 {vr(GAT+4*(j-1), 4)}, v{vSA}, {sr(SWS)}, s{sPB} offen offset:{512*(j-1)} sc1")
                if count: vm("G")
        def f_words(t):
            a(f"buffer_load_dword v{vFV}, v{vFL}, {sr(SWS)}, 0 offen sc1"); vm(t)
        def f_fin0():
            a(f"s_mov_b32 s{sSPIN}, {SPIN}")
            a(f"s_waitcnt vmcnt({wait('G', 'XW')})")
            a(f"v_cmp_ne_u32 vcc, s{sXW}, v{vFV}")
            a("s_cmp_eq_u32 vcc_hi, 0")
            a(f"s_cselect_b32 s{sFAST}, {0 if opt('slow') else 1}, 0")
            a.label(f"P1_FC{tag}")
            tag_check([RR + 1, RR + 3] + [GAT + 2*j + 1 for j in range(10)], f"P1_GA{tag}", f"P1_FOK{tag}")
        def f_fin1():
            a(f"v_mov_b32 v{NM}, v{RR}")
            a(f"v_mov_b32 v{NM+1}, v{RR}")
            a(f"v_mul_f32 v{ST}, s{sQS}, v{RR+2}")
            a(f"v_mul_f32 v{ST+1}, s{sQS}, v{RR+2}")
            a(f"v_mov_b32 v{RR}, s{sNON}")
            a(f"v_mov_b32 v{RR+1}, s{sFAST}")
            a(f"s_lshl_b32 s{sT0}, s{sTT}, 10")
            a(f"s_add_u32 s{sT0}, s{sT0}, {K1_ST}")
            a(f"v_lshl_add_u32 v{vT0}, v{vN}, 5, s{sT0}")
            a(f"ds_write_b128 v{vT0}, {vr(NM, 4)}")
            a(f"ds_write_b64 v{vT0}, {vr(RR, 2)} offset:16")
            for j in range(1, 5):
                a(f"v_add_f32 v{GAT}, v{GAT}, v{GAT+4*j}")
                a(f"v_add_f32 v{GAT+2}, v{GAT+2}, v{GAT+4*j+2}")
        def f_fin2():
            split3(a, GAT, vT0, vT1, PUB, PUB + 1)
            a(f"s_lshl_b32 s{sT0}, s{sTT}, 9")
            a(f"s_add_u32 s{sT0}, s{sT0}, {K1_CS}")
            a(f"v_lshl_add_u32 v{vT0}, v{vL}, 3, s{sT0}")
            a(f"ds_write_b64 v{vT0}, {vr(PUB, 2)}")
            split3(a, GAT + 2, vT0, vT1, CSR, CSR + 1)
            f_words("KF")
        def f_kv():
            L = a.uid("NOKV")
            a(f"s_waitcnt vmcnt({wait('KF')})")
            a(f"v_cmp_ne_u32 vcc, s{sNON}, v{vFV}")
            a(f"s_mov_b32 s{sKOK}, 0")
            a("s_cmp_lg_u32 vcc_lo, 0")
            a(f"s_cbranch_scc1 {L}")
            kv_first(a, vT2)
            a(f"s_mov_b32 s{sKOK}, 1")
            a.label(L)
        def f_tlb():
            if not opt("tlb"): return
            a(f"v_lshlrev_b32 v{vT0}, 21, v{vL}")
            a("s_mov_b64 exec, 0x7f")
            a(f"buffer_load_dword v20, v{vT0}, {sr(SWS)}, 0 offen"); vm("T")
            a("s_mov_b64 exec, 1")
            a(f"buffer_load_dword v20, v{vZ}, {sr(SB)}, s{sOB} offen"); vm("T")
            a("s_mov_b64 exec, -1")
        def f_code():
            if not opt("code"): return
            a("s_getpc_b64 s[100:101]")
            a.label("PCREF")
            a(f"s_lshr_b32 s{sT0}, s2, 3")
            a(f"s_lshl_b32 s{sT0}, s{sT0}, 2")
            a(f"s_add_u32 s{sT0}, s{sT0}, s{sTT}")
            a(f"s_lshl_b32 s{sT0}, s{sT0}, 7")
            a(f"s_add_u32 s{sT0}, s{sT0}, P2_ATT-PCREF")
            a(f"s_add_u32 s100, s100, s{sT0}")
            a("s_addc_u32 s101, s101, 0")
            a(f"v_mov_b32 v{vT0}, s100")
            a(f"v_mov_b32 v{vT1}, s101")
            a("s_mov_b64 exec, 1")
            a(f"global_load_dword v20, {vr(vT0, 2)}, off"); vm("T")
            a("s_mov_b64 exec, -1")
        GI = optv("gi", 6)
        fill = {(1, 0): lambda: row_stats(0), (1, 1): lambda: row_stats(1), (1, 2): lambda: row_stats(2),
                (2, 0): f_nonce, (2, 1): f_cspub, (2, 2): f_rowpub, (4, 0): f_wo, (5, 0): f_tlb, (5, 1): f_code,
                (3, 0): lambda: att_setup(1), (3, 1): lambda: att_setup(2), (4, 1): lambda: att_setup(3),
                (3, 2): (lambda: None) if opt("zearly") else (lambda: att_setup(0)),
                (GI, 0): lambda: gather((0, 1)), (GI, 1): lambda: gather((2, 3)), (GI, 2): lambda: (gather((4, 5)), f_words("XW")),
                (8, 0): f_fin0, (8, 1): f_fin1, (8, 2): f_fin2, (9, 0): lambda: rank1(0), (9, 2): f_kv}
        a(f"s_waitcnt vmcnt({wait('X0')})")
        a.stamp(2)
        a("s_barrier")
        rdb(0, 0); rda(0, 0, 0)
        for p in range(5): wp(2, p)
        for p in range(4): xp(2, p)
        a(f"buffer_load_dword v{vNON}, v{vZ}, {sr(SDBG)}, 0 offen sc1"); vm("N")
        a.stamp(3); a.stamp(NSTAMP, True)
        for c in range(10):
            adv(c + 3)
            for s in range(4):
                p, q, ns = s & 1, (s + 1) & 1, (s + 1) & 3
                if c == 0:
                    a(f"ds_read_b64_tr_b16 {vr(CG, 2)}, v{vSA} offset:{s*sstr}")
                    a(f"ds_read_b64_tr_b16 {vr(CG+2, 2)}, v{vSA} offset:{s*sstr+4*rstr}")
                if s == 3 and c < 9:
                    d = -3 * K1_SLOT if (c & 3) == 3 else K1_SLOT
                    for r in list(range(vX, vX + 4)) + [vTR]: a(f"v_add_u32 v{r}, {d}, v{r}")
                a("s_waitcnt lgkmcnt(0)")
                mfma(0, p)
                if c == 0:
                    for j in range(2):
                        m4(P + 8*j, ONE, CG + 2*j); m4(P + 8*j + 4, ONE, FA[p] + 2*j)
                if s == 3:
                    if c < 9: a(f"s_waitcnt vmcnt({wait(f'D{c+1}', 'N') if c == 1 else wait(f'D{c+1}')})")
                    a("s_barrier")
                if c < 9 or s < 3:
                    rdb(q, ns); rda(q, 0, ns)
                if s < 3:
                    for pp in ((0, 1), (2, 3), (4,))[s]: wp(c + 3, pp)
                    if c + 3 < 10:
                        for pp in ((0,), (1,), (2, 3))[s]: xp(c + 3, pp)
                    if (c, s) in fill: fill[(c, s)]()
        a.stamp(4); a.stamp(NSTAMP + 1, True)
        a("s_setprio 0")
        a("s_nop 9")
        pack_store(0, 4)
        signal(vNON)
        a.label(f"P1_GA{tag}")
        gather(range(6), False)
        a("s_waitcnt vmcnt(0)")
        a(f"s_branch P1_FC{tag}")

    body("GA", "A", False)
    a.label("P1_GB")
    body("GB", "B", False)
    a.label("P1_KA0")
    a(f"v_lshlrev_b32 v{vDW}, 4, v{vL}")
    a(f"s_mul_i32 s{sWBASE}, s{sW}, 640")
    a(f"s_mov_b32 s{sWSTEP}, 2560")
    a(f"s_mul_i32 s{sSOW}, s{sCC}, 2560")
    a(f"s_add_u32 s{sSOW}, s{sSOW}, s{sWBASE}")
    a(f"s_lshl_b32 s{sM0W}, s{sW}, 10")
    a("s_waitcnt lgkmcnt(0)")
    srd(a, SA, pWK, 640 * 40)
    srd(a, SB, pWV, 640 * 40)
    st01()
    for p in range(2): wpiece(p, True)
    a("s_barrier")
    body("KA", "A", True)
    a.label("P1_KB")
    body("KB", "B", True)

def kdesc(name, nv, ns=102):
    return f""".amdhsa_kernel {name}
  .amdhsa_next_free_vgpr {nv}
  .amdhsa_next_free_sgpr {ns}
  .amdhsa_accum_offset {(nv+3)//4*4}
  .amdhsa_group_segment_fixed_size 0
  .amdhsa_kernarg_size 88
  .amdhsa_user_sgpr_count 2
  .amdhsa_user_sgpr_kernarg_segment_ptr 1
  .amdhsa_system_sgpr_workgroup_id_x 1
.end_amdhsa_kernel
"""

def build():
    from g10p2 import gen_ffn, gen_att
    hdr = open("cdna_kernels/" + NAME + ".s.ref").read().split("; Override launch")[0]
    out = hdr
    out += f"; @launch grid=(256,1,1) block=(512,1,1) lds={LDS_BYTES}\n"
    out += '.amdgcn_target "amdgcn-amd-amdhsa--gfx950"\n.text\n'
    a = Asm()
    k = NAME + "_kernel"
    a.raw(f".globl {k}\n.p2align 8\n.type {k},@function")
    a.label(k)
    gen_p1(a)
    a.p2 = True
    a.label("P2_ATT")
    gen_att(a)
    a.label("P2_FFN")
    gen_ffn(a)
    for L, lines, D in a.tail:
        a.label(L)
        for l in lines: a(l)
        a(f"s_branch {D}")
    a.label("L_END")
    a("s_endpgm")
    if opt("code"): a.raw(".fill 1024, 4, 0xbf810000")
    out += a.text()
    out += '.section .rodata,"a"\n.p2align 6\n' + kdesc(k, 256)
    return out

if __name__ == "__main__":
    path = sys.argv[1] if len(sys.argv) > 1 and not sys.argv[1].startswith("--") else "cdna_kernels/" + NAME + ".s"
    open(path, "w").write(build())
```

```python
from g10 import *

LD = {"plain": "", "nt": " nt", "sc0": " sc0"}.get(sys.argv[sys.argv.index("--ld") + 1] if opt("ld") else "", " sc1")
LDO = " nt" if opt("ldo") else " sc1"
def cnt_arrive(a, vaddr, vtmp, inc="1", off=0):
    a(f"v_mov_b32 v{vtmp}, {inc}")
    a("s_mov_b64 exec, 1")
    a(f"ds_add_u32 v{vaddr}, v{vtmp}" + (f" offset:{off}" if off else ""))
    a("s_mov_b64 exec, -1")
def cnt_wait(a, vaddr, vtmp, tgt, sleep=0, off=0):
    L, D = a.uid("CW"), a.uid("CWD")
    a(f"s_mov_b32 s{sSPIN}, {SPIN * 16}")
    a.label(L)
    a(f"ds_read_b32 v{vtmp}, v{vaddr}" + (f" offset:{off}" if off else ""))
    a("s_waitcnt lgkmcnt(0)")
    a(f"v_readfirstlane_b32 s{sT0}, v{vtmp}")
    a(f"s_and_b32 s{sT2}, s{sT0}, 0xffff")
    a(f"s_cmp_ge_u32 s{sT2}, {tgt}")
    a(f"s_cbranch_scc1 {D}")
    if sleep: a(f"s_sleep {sleep}")
    spin_tail(a, L)
    a.label(D)

def final_stage(a, base_item, X, R, vA, vG, load_x, do_rest):
    if load_x and load_x != "load":
        a(f"s_mov_b32 s100, {L_FP}")
        item_addr(a, base_item, vA, vG, X)
    if load_x and load_x != "addr":
        a(f"buffer_load_dwordx4 {vr(X, 4)}, v{vG}, {sr(SX)}, s{sOB} offen")
    if do_rest == 1:
        for s in range(4):
            a(f"ds_read_b128 {vr(R+8*s, 4)}, v{vA} offset:{s*5120}")
            a(f"ds_read_b128 {vr(R+8*s+4, 4)}, v{vA} offset:{s*5120+16}")
    if do_rest == 2:
        for j in range(4):
            a(f"v_lshlrev_b32 v{R+32+2*j}, 16, v{X+j}")
            a(f"v_and_b32 v{R+33+2*j}, 0xffff0000, v{X+j}")
    if do_rest >= 3:
        for s in range(4):
            a(f"s_waitcnt lgkmcnt({6-2*s + (do_rest-3)})")
            for j in range(4):
                a(f"v_pk_add_f32 {vr(R+32+2*j, 2)}, {vr(R+32+2*j, 2)}, {vr(R+8*s+2*j, 2)}")
        for j in range(4): a(f"v_cvt_pk_bf16_f32 v{X+j}, v{R+32+2*j}, v{R+33+2*j}")
        a(f"buffer_store_dwordx4 {vr(X, 4)}, v{vG}, {sr(SB)}, s{sOB} offen")

def gen_att(a):
    vL, vKM, vQT, vIDX, vT0, vT1, vCNT = 1, 2, 3, 4, 5, 6, 7
    vP = 8
    vT2, vT3 = 12, 13
    vFL = 23
    S, O, QM, QT, KM, KT, V0, V1 = aS, aO, aQM, aQT, aKM, aKT, aV0, aV1
    def qk1(s, kb, q): a(f"v_mfma_f32_32x32x16_bf16 {vr(S[s], 16)}, {vr(KM[kb], 4)}, {vr(QM(q), 4)}, 0")
    def qk2(s, kb, q): a(f"v_mfma_f32_32x32x8_bf16 {vr(S[s], 16)}, {vr(KT[kb], 2)}, {vr(QT(q), 2)}, {vr(S[s], 16)}")
    def pv(u, s, vb, q): a(f"v_smfmac_f32_32x32x32_bf16 {vr(O(q), 16)}, {vr((V0, V1)[u][vb], 4)}, {vr(S[s]+8*u, 8)}, v{vIDX}")
    def ldq(i):
        a(f"buffer_load_dwordx4 {vr(QM(i), 4)}, v{vKM}, {sr(SWS)}, s{sPm+i//2} offen" + (" offset:1024" if i & 1 else "") + LD)
        a(f"buffer_load_dwordx2 {vr(QT(i), 2)}, v{vQT}, {sr(SWS)}, s{sPt+i//2} offen" + (" offset:512" if i & 1 else "") + LD)
    def qregs(lo, hi): return list(range(QM(lo), QM(hi))) + list(range(QT(lo), QT(hi)))
    def rowmax(s, dst):
        b = S[s]
        a(f"v_max3_f32 v{dst}, v{b}, v{b+1}, v{b+2}")
        for j in range(3, 15, 2): a(f"v_max3_f32 v{dst}, v{dst}, v{b+j}, v{b+j+1}")
        a(f"v_max_f32 v{dst}, v{dst}, v{b+15}")
    def pair_addr(mul, base, vlane, shift):
        for j in range(4):
            a(f"s_add_u32 s{sT0}, s{sQ}, {j}")
            a(f"s_and_b32 s{sT0}, s{sT0}, 3")
            a(f"s_mul_i32 s{sT0}, s{sT0}, {mul}")
            a(f"s_add_u32 s{sT0}, s{sT0}, {base}")
            a(f"v_lshl_add_u32 v{vP+j}, v{vlane}, {shift}, s{sT0}")

    a("s_setprio 3")
    a(f"s_mov_b32 s{sMODE}, 0")
    a(f"v_lshlrev_b32 v{vKM}, 4, v{vL}")
    a(f"v_mov_b32 v{vT0}, {OOB:#x}")
    a(f"v_cmp_gt_u32 vcc, 32, v{vL}")
    a(f"v_mov_b32 v{vIDX}, 0xdddddddd")
    a(f"v_mov_b32 v{vCNT}, {L_CNT}")
    a(f"v_cndmask_b32 v{vQT}, v{vT0}, v{vKM}, vcc")
    cnt_arrive(a, vCNT, vT0, off=8)
    a.stamp(6)
    a(f"s_cmp_lg_u32 s{sKOK}, 0")
    a("s_cbranch_scc1 A_HAVEKV")
    a("s_mov_b32 exec_hi, 0")
    poll(a, vFL, vT0, "0")
    a("s_mov_b32 exec_hi, -1")
    a.label("A_RELOAD")
    kv_first(a, vKM)
    a.label("A_HAVEKV")
    a(f"v_and_b32 v{vT1}, 31, v{vL}")
    pair_addr(512, L_MREC, vT1, 3)
    a(f"v_and_b32 v{vT1}, 16, v{vL}")
    a.stamp(7)
    poll(a, vT1, vT0, f"s{sFQ}", optv("qsleep", 1))
    check_fast(a, vT1, vT0)
    a.stamp(8)
    ldq(0); ldq(1)
    a(f"s_cmp_lg_u32 s{sMODE}, 0")
    a("s_cbranch_scc1 A_TRUEMAX")
    a.c("stand-in for the row max: max over this wave's first 32 keys; checked after the loop, exact-max rerun if unsafe")
    ldq(2); ldq(3)
    a("s_waitcnt vmcnt(4)")
    qk1(0, 0, 0); qk2(0, 0, 0); qk1(1, 0, 1); qk2(1, 0, 1)
    for i in range(4, 8): ldq(i)
    a("s_nop 1")
    rowmax(0, S[2]); rowmax(1, S[2] + 1)
    a(f"v_mov_b32 v{vT0}, v{S[2]}")
    a(f"v_mov_b32 v{vT1}, v{S[2]+1}")
    a("s_nop 0")
    a(f"v_permlane32_swap_b32 v{vT0}, v{S[2]}")
    a(f"v_permlane32_swap_b32 v{vT1}, v{S[2]+1}")
    a(f"v_max_f32 v{S[2]}, v{S[2]}, v{vT0}")
    a(f"v_max_f32 v{S[2]+1}, v{S[2]+1}, v{vT1}")
    a("s_mov_b32 exec_lo, 0")
    for e in range(2): a(f"v_cvt_pk_bf16_f32 v{QT(e)}, -v{S[2]+e}, 0")
    a.label("A_HAVEMAX")
    for e in range(2): a(f"ds_write_b64 v{vP}, {vr(QT(e), 2)} offset:{256*e}")
    a("s_mov_b32 exec_lo, -1")
    cnt_arrive(a, vCNT, vT0)
    a(f"s_add_u32 s{sTGT}, s{sTGT}, 4")
    a(f"s_mov_b32 s{sCNT}, 8")
    a.stamp(9)
    a.stamp(10); a.stamp(NSTAMP + 2, True)
    qk1(0, 0, 0); qk2(0, 0, 0)
    a("s_cmp_lg_u32 0, 0")
    a("s_nop 10")
    a.raw(".p2align 6")
    a.label("A_LOOP")
    PAT0 = (3, 3, 4, 3, 3)
    PAT1 = tuple(int(ch) for ch in sys.argv[sys.argv.index("--pat1") + 1]) if opt("pat1") else PAT0
    PMASK = optv("pmask", 0)
    def slot(sc, nxt, prv, holes, PAT=PAT0):
        e = [0]
        def exps(n):
            for _ in range(n):
                a(f"v_exp_f32 v{S[sc]+e[0]}, v{S[sc]+e[0]}"); e[0] += 1
        ms = [lambda: qk1((sc + 1) & 3, *nxt), lambda: pv(0, (sc - 1) & 3, *prv), lambda: qk2((sc + 1) & 3, *nxt), lambda: pv(1, (sc - 1) & 3, *prv)]
        for j in range(4):
            if nxt is not None or j & 1: ms[j]()
            if j in holes: holes[j]()
            exps(PAT[j])
        holes[4]()
        exps(PAT[4])
    for kb in range(2):
        for q in range(8):
            def hole():
                if q == 0:
                    if kb == 0:
                        a("s_cbranch_scc0 A_FIRST")
                        a.label("A_FIRSTD")
                    a("s_waitcnt vmcnt(2)"); ldv(a, 0, kb ^ 1)
                elif q == 1: ldv(a, 1, kb ^ 1)
                elif q == 2: a(f"s_add_u32 s{sKV}, s{sKV}, {KV_REC}")
                elif q == 3 and kb == 0: a(f"s_sub_u32 s{sCNT}, s{sCNT}, 1")
                elif q == 4 and kb == 0: a(f"s_cmp_eq_u32 s{sCNT}, 0")
                elif q == 4: a("s_cmp_eq_u32 0, 0")
                elif q == 5: a("s_waitcnt vmcnt(2)")
                elif q == 6: ldkm(a, kb, vKM)
                elif q == 7: ldkt(a, kb)
                elif opt("nop"): a("s_nop 0")
            slot(q & 3, ((kb if q < 7 else kb ^ 1), (q + 1) & 7), ((kb if q > 0 else kb ^ 1), (q - 1) & 7), {4: hole}, PAT1 if (PMASK >> q) & 1 else PAT0)
        if kb == 0:
            a.lstamp(sCNT, 0)
            a("s_cbranch_scc1 A_LAST")
    a("s_branch A_LOOP")
    a.label("A_FIRST")
    cnt_wait(a, vCNT, vT0, f"s{sTGT}")
    a("s_waitcnt vmcnt(0)")
    a("s_mov_b32 exec_lo, 0")
    for i in range(2, 8): a(f"ds_read_b64 {vr(QT(i), 2)}, v{vP+i//2} offset:{256*(i&1)}")
    a("s_mov_b32 exec_lo, -1")
    a(f"v_and_b32 v{vT0}, 31, v{vL}")
    a(f"v_mul_u32_u24 v{vT0}, {8*36}, v{vT0}")
    a(f"v_sub_u32 v{vT0}, v{vKM}, v{vT0}")
    a(f"v_add_u32 v{vT0}, {(L_OP - 36*L_MREC) & 0xffffffff:#x}, v{vT0}")
    for j in range(4): a(f"v_mad_u32_u24 v{vP+j}, v{vP+j}, 36, v{vT0}")
    a("s_waitcnt lgkmcnt(0)")
    a.lstamp("8", 0)
    a("s_branch A_FIRSTD")
    a.label("A_LAST")
    def wr(i, j): a(f"ds_write_b128 v{vP+i//2}, {vr(O(i)+4*j, 4)} offset:{(i&1)*9216 + (i//2-1)*3072 + j*1024}")
    seq = [0, 2, 3, 4, 5, 6, 7, 1]
    for n in range(8):
        nxt = (1, seq[n + 1]) if n < 7 else None
        prv = (1, seq[n - 1]) if n > 0 else (0, 7)
        holes = {4: lambda: a("s_nop 0")}
        if n == 0: holes = {4: lambda: (a("s_waitcnt vmcnt(2)"), a(f"ds_read_b32 v{vT0}, v{vCNT}"))}
        if n == 1: holes = {4: lambda: (a("s_waitcnt lgkmcnt(0)"), a(f"v_readfirstlane_b32 s{sT0}, v{vT0}"))}
        if n == 2: holes = {4: lambda: (a(f"s_cmp_lt_u32 s{sT0}, 8"), a("s_cbranch_scc1 A_OWAIT"), a.label("A_OFREE"))}
        if n >= 3:
            i = seq[n - 2]
            holes = {2: lambda: wr(i, 0), 3: lambda: wr(i, 1), 4: lambda: wr(i, 2)}
        slot(n & 3, nxt, prv, holes)
    a("s_nop 1")
    pv(0, 3, 1, 1); pv(1, 3, 1, 1)
    a.stamp(11); a.stamp(NSTAMP + 3, True)
    a("s_nop 1")
    for j in range(3): wr(7, j)
    cnt_arrive(a, vCNT, vT0)
    a(f"s_add_u32 s{sTGT}, s{sTGT}, 4")
    a(f"s_max_u32 s{sTGT}, s{sTGT}, 12")
    a(f"s_mov_b64 {sr(sBAD, 2)}, 0")
    a(f"s_mov_b32 s{sT1}, {f32bits(2.0**100):#x}")
    cnt_wait(a, vCNT, vT0, f"s{sTGT}")
    a.stamp(12)
    RB = [16, 180]
    for e in range(2):
        for s in range(3):
            for j in range(3):
                a(f"ds_read_b128 {vr(RB[e]+12*s+4*j, 4)}, v{vP} offset:{e*9216 + s*3072 + j*1024}")
    Z = 52
    for e in range(2):
        A = O(e); P = 128 + 8 * e
        for s in range(3):
            a(f"s_waitcnt lgkmcnt({min(15, 18 - 9*e - 3*s - 3)})")
            for j in range(6): a(f"v_pk_add_f32 {vr(A+2*j, 2)}, {vr(A+2*j, 2)}, {vr(RB[e]+12*s+2*j, 2)}")
        a(f"v_mov_b32 v{vT0}, v{A+8}")
        a(f"v_mov_b32 v{vT2}, v{A+8}")
        a(f"v_pk_mul_f32 {vr(Z, 2)}, {vr(A, 2)}, 0 op_sel_hi:[1,0]")
        a(f"v_pk_fma_f32 {vr(Z, 2)}, {vr(A+2, 2)}, 0, {vr(Z, 2)} op_sel_hi:[1,0,1]")
        a(f"v_permlane32_swap_b32 v{vT0}, v{vT2}")
        a(f"v_rcp_f32 v{vT3}, v{vT2}")
        a(f"v_cmp_nlt_f32 vcc, v{vT2}, s{sT1}")
        for j in range(2, 6): a(f"v_pk_fma_f32 {vr(Z, 2)}, {vr(A+2*j, 2)}, 0, {vr(Z, 2)} op_sel_hi:[1,0,1]")
        a(f"s_or_b64 {sr(sBAD, 2)}, {sr(sBAD, 2)}, vcc")
        for j in range(6): a(f"v_pk_mul_f32 {vr(A+2*j, 2)}, {vr(A+2*j, 2)}, {vr(vT2, 2)} op_sel:[0,1] op_sel_hi:[1,1]")
        a(f"v_cmp_u_f32 vcc, v{Z}, v{Z+1}")
        for j in range(6): a(f"v_cvt_pk_bf16_f32 v{P+j}, v{A+2*j}, v{A+2*j+1}")
        a(f"s_or_b64 {sr(sBAD, 2)}, {sr(sBAD, 2)}, vcc")
        a(f"s_cmp_lg_u32 s{sMODE}, 0")
        a(f"s_cselect_b64 {sr(sBAD, 2)}, 0, {sr(sBAD, 2)}")
        for j in range(6): a(f"v_min_u32 v{P+j}, -2, v{P+j}")
        L = a.uid("NOST")
        a(f"s_cmp_lg_u64 {sr(sBAD, 2)}, 0")
        a(f"s_cbranch_scc1 {L}")
        stores(a, [f"buffer_store_dwordx4 {vr(P, 4)}, v{vKM}, {sr(SWS)}, s{sOm} offen offset:{1024*e}",
                   f"buffer_store_dwordx2 {vr(P+4, 2)}, v{vQT}, {sr(SWS)}, s{sOt} offen offset:{512*e}"])
        a.label(L)
    a(f"s_cmp_lg_u64 {sr(sBAD, 2)}, 0")
    a(f"s_cselect_b32 s{sBAD}, 0x10001, 1")
    cnt_arrive(a, vCNT, vT0, f"s{sBAD}")
    a.stamp(13)
    a("s_setprio 0")
    a(f"s_add_u32 s{sTGT}, s{sTGT}, 4")
    srd(a, SX, pX, 2048 * 1280)
    cnt_wait(a, vCNT, vT0, f"s{sTGT}")
    a(f"s_lshr_b32 s{sT0}, s{sT0}, 16")
    a(f"s_cmp_lg_u32 s{sMODE}, 0")
    a(f"s_cselect_b32 s{sT0}, 0, s{sT0}")
    a(f"s_cmp_lg_u32 s{sT0}, 0")
    a("s_cbranch_scc1 A_RESTART")
    a.stamp(14)
    if PROFILE and opt("iter"):
        a.ldump(0)
        a(f"s_lshl_b32 s100, s{sW}, 6")
        a("v_add_u32 v0, s100, v1")
    final_stage(a, 0, 16, 32, 20, 21, True, 0)
    a(f"s_cmp_ge_u32 s{sW}, 6")
    a("s_cbranch_scc1 A_F1")
    final_stage(a, 256, 24, 80, 22, 23, True, 0)
    a("s_waitcnt vmcnt(0)")
    final_stage(a, 0, 16, 32, 20, 21, False, 2)
    final_stage(a, 256, 24, 80, 22, 23, False, 2)
    a.stamp(15)
    a("s_barrier")
    a.stamp(16)
    final_stage(a, 0, 16, 32, 20, 21, False, 1)
    final_stage(a, 256, 24, 80, 22, 23, False, 1)
    final_stage(a, 0, 16, 32, 20, 21, False, 11)
    final_stage(a, 256, 24, 80, 22, 23, False, 3)
    a.end()
    a.label("A_F1")
    a("s_waitcnt vmcnt(0)")
    final_stage(a, 0, 16, 32, 20, 21, False, 2)
    a.stamp(15)
    a("s_barrier")
    a.stamp(16)
    final_stage(a, 0, 16, 32, 20, 21, False, 1)
    final_stage(a, 0, 16, 32, 20, 21, False, 3)
    a.end()
    a.label("A_OWAIT")
    cnt_wait(a, vCNT, vT0, 8, 1)
    a("s_branch A_OFREE")
    a.label("A_RESTART")
    a(f"s_mov_b32 s{sMODE}, 1")
    a("s_waitcnt vmcnt(0)")
    att_zero(a)
    a("s_branch A_RELOAD")
    a.label("A_TRUEMAX")
    for i in range(2, 8): ldq(i)
    M = S[2]
    for i in range(8): a(f"v_mov_b32 v{M+i}, 0xff800000")
    a(f"s_sub_u32 s{sT1}, s{sKV}, {KV_REC}")
    a(f"s_mov_b32 s{sCNT}, 16")
    TK, TT = S[1], S[1] + 4
    a.label("A_TM_LOOP")
    a(f"buffer_load_dwordx4 {vr(TK, 4)}, v{vKM}, {sr(SWS)}, s{sT1} offen sc1")
    a(f"buffer_load_dwordx2 {vr(TT, 2)}, v{avKT}, {sr(SWS)}, s{sT1} offen sc1")
    a("s_waitcnt vmcnt(0)")
    for i in range(8):
        a(f"v_mfma_f32_32x32x16_bf16 {vr(S[0], 16)}, {vr(TK, 4)}, {vr(QM(i), 4)}, 0")
        a(f"v_mfma_f32_32x32x8_bf16 {vr(S[0], 16)}, {vr(TT, 2)}, {vr(QT(i), 2)}, {vr(S[0], 16)}")
        a("s_nop 11")
        for j in range(0, 16, 2): a(f"v_max3_f32 v{M+i}, v{M+i}, v{S[0]+j}, v{S[0]+j+1}")
    a(f"s_add_u32 s{sT1}, s{sT1}, {KV_REC}")
    a(f"s_sub_u32 s{sCNT}, s{sCNT}, 1")
    a(f"s_cmp_lg_u32 s{sCNT}, 0")
    a("s_cbranch_scc1 A_TM_LOOP")
    for i in range(8):
        halfop(a, "v_max_f32", M + i, vT0)
        a(f"v_add_u32 v{vT1}, {L_OP - L_MREC}, v{vP+i//2}")
        a(f"ds_write_b32 v{vT1}, v{M+i} offset:{(i//2)*2048 + (i&1)*256}")
    cnt_arrive(a, vCNT, vT0)
    a(f"s_add_u32 s{sTGT}, s{sTGT}, 4")
    cnt_wait(a, vCNT, vT0, f"s{sTGT}")
    a(f"v_add_u32 v{vT1}, {L_OP - L_MREC}, v{vP}")
    for e in range(2):
        for s in range(1, 4): a(f"ds_read_b32 v{S[0]+4*e+s}, v{vT1} offset:{s*2048 + e*256}")
    a("s_waitcnt lgkmcnt(0)")
    for e in range(2):
        a(f"v_max3_f32 v{M+e}, v{M+e}, v{S[0]+4*e+1}, v{S[0]+4*e+2}")
        a(f"v_max_f32 v{M+e}, v{M+e}, v{S[0]+4*e+3}")
    a("s_mov_b32 exec_lo, 0")
    for e in range(2):
        a(f"v_sub_f32 v{M+e}, 0, v{M+e}")
        split3(a, M + e, vT0, vT1, QT(e), QT(e) + 1)
    a("s_branch A_HAVEMAX")

def gen_ffn(a):
    vL, vL16, vTR, vZ = 1, 2, 3, 7
    vA, vG, vPW, vPW2, X = 4, 5, 0, 6, 8
    vNV, vCNT, vT0, vT1 = 12, 13, 14, 15
    F = lambda t: 16 + 16 * t
    WO = lambda k: 96 + 20 * k
    HB = lambda u: 216 + 4 * u
    SL = lambda j: j & 3
    SWO = SDBG
    def dma_piece(p, slot, vd=fD):
        a(f"s_add_u32 m0, s{sM0}, {L_RING + slot*20480 + p*1024}")
        a("s_nop 0")
        a(f"buffer_load_dwordx4 v{vd+p}, {sr(SA)}, s{sSO} offen lds")
    def trr(dst, slot, t, va=vTR):
        a(f"ds_read_b64_tr_b16 {vr(dst+4*t, 2)}, v{va} offset:{slot*20480 + 64*t}")
        a(f"ds_read_b64_tr_b16 {vr(dst+4*t+2, 2)}, v{va} offset:{slot*20480 + 64*t + 2560}")
    def hload(u):
        a(f"buffer_load_dwordx4 {vr(HB(u), 4)}, v{vL16}, {sr(SWS)}, s{sHO} offen sc1")
        a(f"s_add_u32 s{sHO}, s{sHO}, 1024")
    def stage(i, ks):
        row = 16 + 80 * (ks - 8) if ks >= 8 else 20 * ks
        a(f"s_add_u32 s{sT1}, s{sWOB}, {row*1280}")
        for p in range(5):
            a(f"s_add_u32 m0, s{sM0}, {i*20480 + p*1024}")
            a("s_nop 0")
            a(f"buffer_load_dwordx4 v{(fD2 if ks >= 8 else fD)+p}, {sr(SWO)}, s{sT1} offen lds")
    def mf(t, w, h): a(f"v_mfma_f32_32x32x16_bf16 {vr(F(t), 16)}, {vr(w+4*t, 4)}, {vr(h, 4)}, {vr(F(t), 16)}")
    sWOB = sWBASE
    srd(a, SA, pW2, 1728 * 1280)
    a(f"s_mul_i32 s{sM0}, s{sQ}, 5120")
    a(f"s_mul_i32 s{sCOL}, s{sHG}, 320")
    a(f"s_mul_i32 s{sSO}, s{sQ}, {27*16*1280}")
    a(f"s_add_u32 s{sSO}, s{sSO}, s{sCOL}")
    a(f"s_add_u32 s{sSO}, s{sSO}, {3*16*1280}")
    a(f"s_mov_b32 s{sSTEP}, {16*1280}")
    if opt("xpar"):
        a(f"s_and_b32 s{sT0}, s{sT}, 1")
        a(f"s_mul_i32 s{sT0}, s{sT0}, {16*1280}")
        a(f"s_add_u32 s{sSO}, s{sSO}, s{sT0}")
    for p in range(5): dma_piece(p, 3)
    a(f"s_add_u32 s{sSO}, s{sSO}, s{sSTEP}")
    a("v_mov_b64 v[246:247], 0")
    a(f"v_lshlrev_b32 v{vL16}, 4, v{vL}")
    a(f"v_mov_b32 v{vCNT}, {L_CNT}")
    for t in range(5): zero16(a, F(t), 246)
    a(f"v_mov_b32 v{vTR}, v{fTR}")
    a(f"v_mov_b32 v{vA}, v{fA}")
    a(f"v_mov_b32 v{vG}, v{fG}")
    a(f"v_mov_b32 v{vPW}, v{fPW}")
    a(f"v_add_u32 v{vPW2}, 40960, v{fPW}")
    a(f"v_mov_b32 v{vNV}, s{sNON}")
    a(f"v_mov_b32 v245, 1")
    srd(a, SX, pX, 2048 * 1280)
    srd(a, SB, pOUT, 2048 * 1280)
    srd(a, SWO, pWO, 640 * 1280)
    a(f"s_mul_i32 s{sWOB}, s{sQ}, {160*1280}")
    a(f"s_add_u32 s{sWOB}, s{sWOB}, s{sCOL}")
    a(f"s_lshl_b32 s{sFC}, s{sT}, 2")
    a(f"s_add_u32 s{sFC}, s{sFC}, s{sQ}")
    a(f"s_mul_i32 s{sHO}, s{sQ}, {27*1024}")
    a(f"s_add_u32 s{sHO}, s{sHO}, s{sG}")
    a(f"s_add_u32 s{sHO}, s{sHO}, {20*2048}")
    a.stamp(6)
    cnt_wait(a, vCNT, vT0, 4, 1, off=(8 if opt("nogatem") else 0))
    for _ in range(optv("fd", 0)): a("s_sleep 16")
    a.stamp(7)
    poll(a, fH, vT1, "0", 2)
    check_fast(a, vT1, vT0)
    a.stamp(9)
    if opt("th"):
        a(f"s_mul_i32 s{sT0}, s{sHG}, {54*128}")
        a(f"s_add_u32 s{sT0}, s{sT0}, s{sHO}")
        a(f"v_lshlrev_b32 v{vT0}, 7, v{vL}")
    for u in range(4): hload(u)
    if opt("th"):
        a("s_mov_b32 exec_hi, 0x3fffff")
        a(f"buffer_load_dword v{vT1}, v{vT0}, {sr(SWS)}, s{sT0} offen sc1")
        a("s_mov_b32 exec_hi, -1")
    for t in range(5): trr(WO(0), SL(0), t)
    a(f"s_mov_b32 s{sC}, 0")
    a("s_waitcnt vmcnt(0)")
    a.stamp(10); a.stamp(NSTAMP + 2, True)
    B0 = optv("b0", 1)
    a.raw(".p2align 3")
    a.label("F_LOOP")
    for u in range(4):
        if u == 3:
            a(f"s_cmp_eq_u32 s{sC}, 6")
            a("s_cbranch_scc1 F_DONE")
            a(f"s_cmp_lg_u32 s{sC}, 5")
            a("s_cbranch_scc1 F_NS")
            srd(a, SA, pWO, 640 * 1280)
            a(f"s_mov_b32 s{sSO}, s{sWOB}")
            a(f"s_mov_b32 s{sSTEP}, {20*1280}")
            a(f"s_mov_b32 s{sHO}, 0x40000000")
            a(f"buffer_load_dword v{fH}, v{fO}, {sr(SWS)}, 0 offen sc1")
            a.label("F_NS")
        a("s_waitcnt vmcnt(13) lgkmcnt(0)" if not opt("xhalf") else "s_waitcnt vmcnt(8) lgkmcnt(0)")
        for t in range(5):
            if opt("xdirect"):
                mf(t, WO(u), HB(u))
                a(f"buffer_load_dwordx4 {vr(WO(u)+4*t, 4)}, v{fD+t}, {sr(SA)}, s{sSO} offen")
                a("s_nop 7")
                a("s_nop 1")
                continue
            mf(t, WO(0), HB(u))
            if opt("xnotr"):
                dma_piece(t, SL(u))
                a("s_nop 5")
                continue
            if opt("xhalf") and (u & 1):
                a("s_sleep 1")
                continue
            trr(WO(0), SL(u + 1), t)
            dma_piece(t, SL(u))
        a(f"s_add_u32 s{sSO}, s{sSO}, s{sSTEP}")
        hload(u)
    a(f"s_add_u32 s{sC}, s{sC}, 1")
    a(f"s_sub_u32 s{sT0}, s{sC}, {B0 + 1}")
    a(f"s_cmp_ge_u32 s{sT0}, 3")
    a("s_cbranch_scc1 F_LOOP")
    a(f"s_cmp_eq_u32 s{sT0}, 1")
    a("s_cbranch_scc1 F_X1")
    a(f"s_cmp_eq_u32 s{sT0}, 2")
    a("s_cbranch_scc1 F_X2")
    a(f"s_lshl_b32 s{sT1}, s{sT}, 2")
    a(f"s_add_u32 s{sT1}, s{sT1}, s{sHG}")
    a(f"s_mul_i32 s{sT1}, s{sT1}, 10240")
    a(f"s_mul_i32 s{sT0}, s{sQ}, 3072")
    a(f"s_min_u32 s{sT0}, s{sT0}, 7168")
    a(f"s_add_u32 s{sT0}, s{sT0}, s{sT1}")
    a(f"s_add_u32 s{sT0}, s{sT0}, {WS_O}")
    stores(a, [f"buffer_store_dwordx4 {vr(fBL, 4)}, v{vL16}, {sr(SWS)}, s{sT0} offen offset:{1024*e}" for e in range(3)])
    for i in range(3): stage(i, 5 + i)
    a("s_branch F_LOOP")
    a.label("F_X1")
    for i in range(3):
        for t in range(5): trr(WO(3 + i), i, t, fSTG)
    a(f"s_lshl_b32 s{sT0}, s{sQ}, 2")
    a(f"s_add_u32 s{sT0}, s{sT0}, s{sF2}")
    a("s_mov_b64 exec, 1")
    stores(a, [f"buffer_store_dword v{vNV}, v{vZ}, {sr(SWS)}, s{sT0} offen offset:16"])
    a("s_mov_b64 exec, -1")
    a("s_waitcnt lgkmcnt(0)")
    for i in range(2): stage(i, 8 + i)
    a("s_branch F_LOOP")
    a.label("F_X2")
    for i in range(2):
        for t in range(5): trr(WO(1 + i), i, t, fSTG)
    cnt_wait(a, vCNT, vT0, 4, 1)
    a("s_mov_b64 exec, 1")
    a(f"ds_add_u32 v{vCNT}, v245")
    a("s_mov_b64 exec, -1")
    a("s_branch F_LOOP")
    a.label("F_DONE")
    a.stamp(11); a.stamp(NSTAMP + 3, True)
    a("s_waitcnt lgkmcnt(0)")
    for t in range(5): dma_piece(t, SL(27))
    final_stage(a, 0, X, 0, vA, vG, "load", 0)
    a(f"v_cmp_ne_u32 vcc, s{sNON}, v{fH}")
    a("s_cbranch_vccz F_BOK")
    poll(a, fO, vT1, "0", 4)
    a.label("F_BOK")
    a(f"s_mul_i32 s{sHO}, s{sFC}, 10240")
    a(f"s_add_u32 s{sHO}, s{sHO}, {WS_O}")
    a(f"s_add_u32 s{sSO}, s{sHO}, 4096")
    a(f"s_add_u32 s{sT1}, s{sHO}, 8192")
    a.stamp(12)
    cnt_wait(a, vCNT, vT0, 16, optv("gsleep", 2))
    a(f"s_cmp_lt_u32 s{sT0}, 0x10000")
    a("s_cbranch_scc1 F_NORE")
    cnt_wait(a, vCNT, vT0, 32, 8)
    a.label("F_NORE")
    a.stamp(13)
    order = [0, 8, 9, 5, 6, 7, 1, 2, 3, 4]
    a(f"s_mov_b32 s{sSPIN}, {SPIN}")
    a.label("F_O")
    for k in order:
        so = (sHO, sSO, sT1)[k // 4]
        a(f"buffer_load_dwordx4 {vr(HB(k), 4)}, v{vL16}, {sr(SWS)}, s{so} offen offset:{(k%4)*1024} sc1")
    for n, k in enumerate(order):
        a(f"s_waitcnt vmcnt({9-n})")
        if n == 0:
            a(f"v_max3_u32 v{vT0}, v{HB(k)}, v{HB(k)+1}, v{HB(k)+2}")
            a(f"v_max_u32 v{vT0}, v{vT0}, v{HB(k)+3}")
        else:
            a(f"v_max3_u32 v{vT0}, v{vT0}, v{HB(k)}, v{HB(k)+1}")
            a(f"v_max3_u32 v{vT0}, v{vT0}, v{HB(k)+2}, v{HB(k)+3}")
    a(f"v_cmp_eq_u32 vcc, -1, v{vT0}")
    a("s_cbranch_vccz F_OD")
    if optv("osleep", 2): a(f"s_sleep {optv('osleep', 2)}")
    spin_tail(a, "F_O")
    a.label("F_OD")
    a.stamp(14)
    for n in range(4):
        for t in range(5):
            mf(t, WO(n), HB(order[n]))
            trr(WO(n), SL(28 + n), t)
    def fwr(t, g):
        va, off = (vPW, t * 20480) if t < 2 else (vPW2, (t - 2) * 20480)
        a(f"ds_write_b128 v{va}, {vr(F(t)+4*g, 4)} offset:{off + 32*g}")
    for t in range(5):
        for m, n in enumerate(range(4, 10)):
            if t == 0 and n == 6: a("s_waitcnt lgkmcnt(0)")
            mf(t, WO(n) if n < 6 else WO(n - 6), HB(order[n]))
            if t > 0:
                if m < 2: a("s_nop 4")
                else: fwr(t - 1, m - 2)
    final_stage(a, 0, X, 176, vA, vG, False, 2)
    a("s_nop 3")
    a.stamp(15)
    for g in range(4): fwr(4, g)
    a("s_waitcnt lgkmcnt(0)")
    a("s_barrier")
    a.stamp(16)
    final_stage(a, 0, X, 176, vA, vG, False, 1)
    final_stage(a, 0, X, 176, vA, vG, False, 3)
    a.end()
```

```python
import sys, struct, math

NAME = "parallel_sum__grouped_kv_mqa__dense_activation_relu__prompt"
def opt(name): return ("--" + name) in sys.argv
def optv(name, d): return int(sys.argv[sys.argv.index("--" + name) + 1]) if opt(name) else d
G_TSTRIDE = 75 * 2048
WS_G = 0
WS_KV = 64 * G_TSTRIDE
KV_REC = 3072
WS_O = (WS_KV + 66 * KV_REC + 4095) // 4096 * 4096
WS_RS = WS_O + 64 * 40 * 1024
WS_CP = WS_RS + 2048 * 16
WS_F1 = WS_CP + 64 * 5120
WS_F2 = WS_F1 + 256 * 128
WS_XC = WS_F2 + 256 * 128
WS_PROF = WS_XC + 8 * 128
PROFILE = opt("prof")
NSTAMP = 18
WS_END = WS_PROF + (256 * 8 * 256 if PROFILE else 0)
OOB = 0x80000000
QSCALE = math.log2(math.e) / math.sqrt(20.0)
SPIN = 0x40000
NFIRST = optv("nfirst", 1)


def f32bits(x): return struct.unpack("<I", struct.pack("<f", x))[0]

class Asm:
    def __init__(self): self.lines = []; self.n = 0; self.tail = []; self.p2 = False
    def __call__(self, s): self.lines.append("    " + s)
    def label(self, s): self.lines.append(s + ":")
    def raw(self, s): self.lines.append(s)
    def c(self, s): self.lines.append("    ; " + s)
    def uid(self, p): self.n += 1; return f"{p}_{self.n}"
    def stamp(self, i, cyc=False):
        if opt("st") and self.p2 and i in (14, 15, 16): return
        if PROFILE:
            self(f"s_memtime s[100:101]" if cyc else "s_memrealtime s[100:101]")
            self("s_waitcnt lgkmcnt(0)")
            self(f"s_mov_b32 s{64+i}, s100")
    def lstamp(self, slane, v=14):
        if PROFILE and opt("iter"):
            self("s_memrealtime s[100:101]")
            self("s_waitcnt lgkmcnt(0)")
            self(f"s_mov_b32 m0, {slane}" if isinstance(slane, str) else f"s_mov_b32 m0, s{slane}")
            self(f"v_writelane_b32 v{v}, s100, m0")
    def ldump(self, v=14):
        if PROFILE and opt("iter"):
            self(f"s_lshl_b32 s100, s2, 3")
            self(f"s_add_u32 s100, s100, s{sW}")
            self(f"s_lshl_b32 s100, s100, 8")
            self(f"s_add_u32 s100, s100, {WS_PROF+128}")
            self("v_lshlrev_b32 v15, 2, v1")
            self("s_mov_b64 exec, 0xffff")
            self(f"buffer_store_dword v{v}, v15, s[{SWS}:{SWS+3}], s100 offen")
            self("s_mov_b64 exec, -1")
            self("s_waitcnt vmcnt(0)")
    def end(self):
        if PROFILE:
            self("s_waitcnt vmcnt(0)")
            self.stamp(NSTAMP - 1)
            self(f"s_lshl_b32 s3, s2, 3")
            self(f"s_add_u32 s3, s3, s{sW}")
            self(f"s_lshl_b32 s3, s3, 8")
            self(f"s_add_u32 s3, s3, {WS_PROF}")
            self("s_mov_b64 exec, 1")
            self("v_mov_b32 v1, 0")
            for i in range(NSTAMP + 4):
                self(f"v_mov_b32 v2, s{64+i}")
                self(f"buffer_store_dword v2, v1, s[{SWS}:{SWS+3}], s3 offen offset:{4*i}")
        self("s_endpgm")
    def text(self): return "\n".join(self.lines) + "\n"

def vr(b, n=1): return f"v{b}" if n == 1 else f"v[{b}:{b+n-1}]"
def sr(b, n=4): return f"s{b}" if n == 1 else f"s[{b}:{b+n-1}]"
def srd(a, d, p, size):
    a(f"s_mov_b32 s{d}, s{p}")
    a(f"s_mov_b32 s{d+1}, s{p+1}")
    a(f"s_mov_b32 s{d+2}, {size}")
    a(f"s_mov_b32 s{d+3}, 0x00020000")
def csel(a, d, t, f):
    a(f"s_mov_b32 s{d}, {f}")
    a(f"s_cmov_b32 s{d}, {t}")
def split3(a, src, t0, t1, d0, d1):
    a(f"v_and_b32 v{t0}, 0xffff0000, v{src}")
    a(f"v_sub_f32 v{t1}, v{src}, v{t0}")
    a(f"v_lshrrev_b32 v{d0}, 16, v{src}")
    a(f"v_and_b32 v{t0}, 0xffff0000, v{t1}")
    a(f"v_or_b32 v{d0}, v{d0}, v{t0}")
    a(f"v_sub_f32 v{t1}, v{t1}, v{t0}")
    a(f"v_lshrrev_b32 v{d1}, 16, v{t1}")
def halfop(a, op, r, t):
    a(f"v_mov_b32 v{t}, v{r}")
    a("s_nop 1")
    a(f"v_permlane32_swap_b32 v{t}, v{r}")
    a(f"{op} v{r}, v{r}, v{t}")
def umax(a, dst, regs):
    regs = list(regs)
    a(f"v_max3_u32 v{dst}, v{regs[0]}, v{regs[1]}, v{regs[2]}")
    r = regs[3:]
    while len(r) >= 2:
        a(f"v_max3_u32 v{dst}, v{dst}, v{r[0]}, v{r[1]}"); r = r[2:]
    if r: a(f"v_max_u32 v{dst}, v{dst}, v{r[0]}")

SWS, SA, SB, SX, SDBG = 4, 8, 12, 16, 20
sSI = 3
sW, sNON = 24, 25
sRB, sCG, sTT = 26, 27, 28
sQ = sTT
sT0, sT1, sT2 = 29, 30, 31
pX, pWQ, pWK, pWV, pWO, pW1, pW2, pOUT, pDBG, pWS = 32, 34, 36, 38, 40, 44, 46, 48, 50, 52
sWSTEP, sSO, sSTEP, sM0, sC, sDEL, sCC, sOUT, sFL, sQS = range(54, 64)
sT, sHG, sG, sOB = 86, 87, 92, 93
sF2, sWBASE, sT3, sFAST, sST, sSPIN = 94, 95, 96, 97, 98, 99
sXW, sLO = 53, 52
sPB = 51
sSOW, sM0W = 90, 91
sPm, sBAD, sPt = 34, 38, 42
sOm, sOt, sKV, sTGT = 48, 49, 0, 1
sMODE, sCNT, sFQ, sKOK = 8, 9, 88, 89
sCOL, sHO, sFC = 54, 59, 60

def spin_tail(a, L):
    a(f"s_sub_u32 s{sSPIN}, s{sSPIN}, 1")
    a(f"s_cbranch_scc0 {L}")

def poll(a, vaddr, vtmp, soff, sleep=1):
    L, D = a.uid("POLL"), a.uid("POLLED")
    a(f"s_mov_b32 s{sSPIN}, {SPIN}")
    a.label(L)
    a(f"buffer_load_dword v{vtmp}, v{vaddr}, {sr(SWS)}, {soff} offen sc1")
    a("s_waitcnt vmcnt(0)")
    a(f"v_cmp_ne_u32 vcc, s{sNON}, v{vtmp}")
    a(f"s_cbranch_vccz {D}")
    if sleep: a(f"s_sleep {sleep}")
    spin_tail(a, L)
    a.label(D)

def stores(a, lines):
    L, D = a.uid("SLOW"), a.uid("STD")
    a(f"s_cmp_eq_u32 s{sFAST}, 0")
    a(f"s_cbranch_scc1 {L}")
    fl = {"nt": " nt", "sc0": " sc0", "sc0nt": " sc0 nt"}.get(sys.argv[sys.argv.index("--sf") + 1] if opt("sf") else "", "")
    for l in lines: a(l + (fl if l.startswith("buffer_store_dwordx4") else ""))
    a.label(D)
    a.tail.append((L, [l + (" sc1" if l.startswith("buffer_store") else "") for l in lines], D))

def xcc_word(a):
    a(f"s_getreg_b32 s{sXW}, hwreg(HW_REG_XCC_ID, 0, 4)")
    a(f"s_lshl_b32 s{sXW}, s{sXW}, 1")
    a(f"s_xor_b32 s{sXW}, s{sXW}, s{sNON}")

def check_fast(a, vaddr, vtmp):
    L = a.uid("CF")
    a(f"s_cmp_lg_u32 s{sFAST}, 0")
    a(f"s_cbranch_scc1 {L}")
    a(f"s_and_b32 s{sT0}, s2, 7")
    a(f"s_lshl_b32 s{sT0}, s{sT0}, 7")
    a(f"s_add_u32 s{sT0}, s{sT0}, {WS_XC}")
    a(f"v_and_b32 v{vaddr}, 31, v1")
    a(f"v_lshlrev_b32 v{vaddr}, 2, v{vaddr}")
    a(f"buffer_load_dword v{vtmp}, v{vaddr}, {sr(SWS)}, s{sT0} offen sc1")
    a("s_waitcnt vmcnt(0)")
    a(f"v_cmp_ne_u32 vcc, s{sXW}, v{vtmp}")
    a("s_cmp_eq_u64 vcc, 0")
    a(f"s_cselect_b32 s{sFAST}, {0 if opt('slow') else 1}, 0")
    a.label(L)

K1_SLOT = 36864
K1_XOFF = 20480
K1_CS = 147456
K1_ST = K1_CS + 2048
L_VT = 147456
L_OP = 0
L_RING = 73728
L_FP = L_RING - 20480
L_MREC = L_RING + 81920
L_CNT = L_MREC + 2048
LDS_BYTES = L_CNT + 64
fD, fD2, fH, fO, fSTG, fBL, fTR, fA, fG, fPW = 232, 237, 242, 243, 244, 248, 252, 253, 254, 255

aS = [16, 32, 48, 64]
aO = lambda i: 80 + 12 * i
aQM = lambda i: 180 + 4 * i
aQT = lambda i: 212 + 2 * i
aKM = [228, 242]; aKT = [232, 246]; aV0 = [234, 248]; aV1 = [238, 252]
avV, avKT = 14, 15

def ldkm(a, b, va): a(f"buffer_load_dwordx4 {vr(aKM[b], 4)}, v{va}, {sr(SWS)}, s{sKV} offen sc1")
def ldkt(a, b): a(f"buffer_load_dwordx2 {vr(aKT[b], 2)}, v{avKT}, {sr(SWS)}, s{sKV} offen sc1")
def ldv(a, u, b): a(f"buffer_load_dwordx4 {vr((aV0, aV1)[u][b], 4)}, v{avV}, {sr(SWS)}, s{sKV} offen" + (" offset:768" if u else "") + " sc1")
def kv_first(a, va):
    a(f"s_mul_i32 s{sKV}, s{sQ}, {16*KV_REC}")
    a(f"s_add_u32 s{sKV}, s{sKV}, {WS_KV}")
    ldkm(a, 0, va); ldkt(a, 0); ldv(a, 0, 0); ldv(a, 1, 0)
    a(f"s_add_u32 s{sKV}, s{sKV}, {KV_REC}")
    ldkm(a, 1, va); ldkt(a, 1)
def zero16(a, r, z):
    a(f"v_mfma_f32_32x32x8_bf16 {vr(r, 16)}, {vr(z, 2)}, {vr(z, 2)}, 0")
def att_zero(a):
    z = aV0[1]
    for r in range(z, z + 8, 2): a(f"v_mov_b64 {vr(r, 2)}, 0")
    for r in range(176, 180, 2): a(f"v_mov_b64 {vr(r, 2)}, 0")
    for r in range(aS[3], 176, 16): zero16(a, r, z)

def row_offsets(a, dst, vL, t0, t1, extra):
    for p in range(5):
        a(f"v_add_u32 v{t0}, {64*p}, v{vL}")
        a(f"v_mul_u32_u24 v{t1}, 3277, v{t0}")
        a(f"v_lshrrev_b32 v{t1}, 16, v{t1}")
        a(f"v_lshlrev_b32 v{t0}, 4, v{t0}")
        a(f"v_mad_u32_u24 v{dst+p}, v{t1}, {extra}, v{t0}")

def item_addr(a, base_item, vA, vG, t):
    if base_item: a(f"v_add_u32 v{vA}, {base_item}, v0")
    else: a(f"v_mov_b32 v{vA}, v0")
    a(f"v_lshrrev_b32 v{t}, 7, v{vA}")
    a(f"v_mul_u32_u24 v{t+1}, 20480, v{t}")
    a(f"v_lshlrev_b32 v{vG}, 6, v{t}")
    a(f"v_and_b32 v{t}, 3, v{vA}")
    a(f"v_lshl_add_u32 v{t+1}, v{t}, 5, v{t+1}")
    a(f"v_lshl_add_u32 v{vG}, v{t}, 4, v{vG}")
    a(f"v_bfe_u32 v{t}, v{vA}, 2, 5")
    a(f"v_mul_u32_u24 v{vA}, 144, v{t}")
    a(f"v_mul_u32_u24 v{t}, 1280, v{t}")
    a(f"v_add_u32 v{vG}, v{vG}, v{t}")
    a(f"v_add3_u32 v{vA}, v{vA}, v{t+1}, s100")

def ffn_pre(a, vL, t0, t1):
    a("s_movk_i32 s100, 960")
    row_offsets(a, fD, vL, t0, t1, "s100")
    for p in range(5):
        a(f"v_add_u32 v{t0}, {64*p}, v{vL}")
        a(f"v_mul_u32_u24 v{t0}, 3277, v{t0}")
        a(f"v_lshrrev_b32 v{t0}, 18, v{t0}")
        a(f"v_mul_u32_u24 v{t0}, {16*1280}, v{t0}")
        a(f"v_add_u32 v{fD2+p}, v{fD+p}, v{t0}")
    a(f"v_lshrrev_b32 v{t0}, 5, v{vL}")
    a(f"v_bfe_u32 v{t1}, v{vL}, 2, 2")
    a(f"v_lshl_add_u32 v{t0}, v{t0}, 2, v{t1}")
    a(f"v_mul_u32_u24 v{fSTG}, 320, v{t0}")
    a(f"v_bfe_u32 v{t0}, v{vL}, 4, 1")
    a(f"v_lshl_add_u32 v{fSTG}, v{t0}, 5, v{fSTG}")
    a(f"v_and_b32 v{t0}, 3, v{vL}")
    a(f"v_lshl_add_u32 v{fSTG}, v{t0}, 3, v{fSTG}")
    a(f"s_mul_i32 s{sT1}, s{sQ}, 5120")
    a(f"v_add_u32 v{fSTG}, s{sT1}, v{fSTG}")
    a(f"v_add_u32 v{fTR}, {L_RING}, v{fSTG}")
    a(f"v_mov_b64 {vr(fBL, 2)}, -1")
    a(f"v_mov_b64 {vr(fBL+2, 2)}, -1")
    a(f"s_mul_i32 s{sT0}, s{sQ}, {27*26}")
    a(f"s_lshr_b32 s{sT0}, s{sT0}, 8")
    a(f"s_add_u32 s{sT0}, s{sT0}, 4")
    a(f"v_add_u32 v{fH}, s{sT0}, v{t0}")
    a(f"v_min_u32 v{fH}, 14, v{fH}")
    a(f"s_lshr_b32 s{sT2}, s{sT}, 2")
    a(f"s_lshl_b32 s{sT2}, s{sT2}, 11")
    a(f"s_and_b32 s{sT0}, s{sT}, 3")
    a(f"s_lshl_b32 s{sT0}, s{sT0}, 2")
    a(f"s_add_u32 s{sT2}, s{sT2}, s{sT0}")
    a(f"s_add_u32 s{sT2}, s{sT2}, {WS_F1 + 32}")
    a(f"v_lshl_add_u32 v{fH}, v{fH}, 7, s{sT2}")
    a(f"v_and_b32 v{t1}, 16, v{vL}")
    a(f"v_add_u32 v{fH}, v{fH}, v{t1}")
    a(f"s_lshl_b32 s{sT2}, s{sT}, 2")
    a(f"s_add_u32 s{sT2}, s{sT2}, s{sQ}")
    a(f"s_lshl_b32 s{sT2}, s{sT2}, 7")
    a(f"s_add_u32 s{sT2}, s{sT2}, {WS_F2 + 16}")
    a(f"v_lshl_add_u32 v{fO}, v{t0}, 2, s{sT2}")
    a(f"s_mov_b32 s100, {L_FP}")
    item_addr(a, 0, fA, fG, t0)
    a(f"v_and_b32 v{t0}, 31, v{vL}")
    a(f"v_mul_u32_u24 v{t0}, 144, v{t0}")
    a(f"v_lshrrev_b32 v{t1}, 5, v{vL}")
    a(f"v_lshl_add_u32 v{t0}, v{t1}, 4, v{t0}")
    a(f"s_add_u32 s{sT1}, s{sT1}, {L_FP}")
    a(f"v_add_u32 v{fPW}, s{sT1}, v{t0}")

def gen_p1(a):
    vL, vN, vH, vT0, vT1, vT2, vZ = 1, 2, 3, 4, 5, 6, 7
    vX, vD = 8, 16
    vNON, vROW, vFL, vFV = 21, 22, 23, 22
    vG16, vC4 = 26, 27
    vDW = 56
    FB = [28, 32]
    a(f"s_cmp_ge_u32 s2, 256")
    a("s_cbranch_scc1 L_END")
    a("s_load_dwordx16 s[32:47], s[0:1], 0")
    a("s_load_dwordx4 s[48:51], s[0:1], 64")
    a("s_load_dwordx2 s[52:53], s[0:1], 80")
    a("s_memrealtime s[100:101]")
    a(f"v_lshrrev_b32 v{vT0}, 6, v0")
    a(f"v_and_b32 v{vL}, 63, v0")
    a(f"v_readfirstlane_b32 s{sW}, v{vT0}")
    a(f"s_and_b32 s{sT1}, s2, 7")
    a(f"s_bfe_u32 s{sSI}, s2, 0x10003")
    a(f"s_lshl_b32 s{sCC}, s{sT1}, 1")
    a(f"s_add_u32 s{sRB}, s{sCC}, s{sSI}")
    a(f"s_lshr_b32 s{sCG}, s2, 4")
    a(f"s_sub_u32 s{sT0}, s{sRB}, 9")
    a(f"s_cmp_ge_u32 s{sRB}, 10")
    a(f"s_cselect_b32 s{sCC}, s{sT0}, s{sRB}")
    a(f"s_mov_b32 s{sST}, s{sCC}")
    a(f"s_and_b32 s{sTT}, s{sW}, 3")
    a(f"s_lshl_b32 s{sT0}, s{sRB}, 2")
    a(f"s_add_u32 s{sT3}, s{sT0}, s{sTT}")
    a(f"s_cmp_lt_u32 s{sW}, 4")
    a("s_cbranch_scc1 P1_A")

    def xpiece(p):
        a(f"s_add_u32 m0, s{sM0}, {1024*p}")
        a("s_nop 0")
        a(f"buffer_load_dwordx4 v{vD+p}, {sr(SX)}, s{sSO} offen lds")
    def wpiece(p, kv=False):
        a(f"s_add_u32 m0, s{sM0W}, {(4096 if kv else 1024)*p}")
        a("s_nop 0")
        if kv: a(f"buffer_load_dwordx4 v{vDW}, {sr(SA if p == 0 else SB)}, s{sSOW} offen lds")
        else: a(f"buffer_load_dwordx4 v{vDW+p}, {sr(SA)}, s{sSOW} offen lds")
    def next_chunk(x, w, dm0):
        a(f"s_add_u32 s{sCC}, s{sCC}, 1")
        a(f"s_cmp_eq_u32 s{sCC}, 10")
        a(f"s_cselect_b32 s{sCC}, 0, s{sCC}")
        if x:
            a(f"s_lshl_b32 s{sSO}, s{sCC}, 7")
            a(f"s_add_u32 s{sM0}, s{sM0}, {dm0}")
        if w:
            a(f"s_mul_i32 s{sSOW}, s{sCC}, s{sWSTEP}")
            a(f"s_add_u32 s{sSOW}, s{sSOW}, s{sWBASE}")
            a(f"s_add_u32 s{sM0W}, s{sM0W}, {dm0}")
    def w_setup(wait):
        a(f"s_sub_u32 s{sT0}, s{sCG}, 4")
        a(f"s_cmp_lt_u32 s{sCG}, 4")
        csel(a, sT2, 1280, 3456)
        a(f"s_cselect_b32 s{sT0}, s{sCG}, s{sT0}")
        a(f"s_mul_i32 s{sT0}, s{sT0}, 320")
        a(f"s_lshl_b32 s{sWBASE}, s{sTT}, 4")
        a(f"s_mul_i32 s{sWBASE}, s{sWBASE}, s{sT2}")
        a(f"s_add_u32 s{sWBASE}, s{sWBASE}, s{sT0}")
        a(f"s_lshl_b32 s{sWSTEP}, s{sT2}, 6")
        a(f"s_sub_u32 s{sT2}, s{sT2}, 320")
        row_offsets(a, vDW, vL, vT0, vT1, f"s{sT2}")
        a(f"s_mul_i32 s{sSOW}, s{sCC}, s{sWSTEP}")
        a(f"s_add_u32 s{sSOW}, s{sSOW}, s{sWBASE}")
        a(f"s_mul_i32 s{sM0W}, s{sTT}, 5120")
        a(f"s_cmp_lt_u32 s{sCG}, 4")
        if wait: a("s_waitcnt lgkmcnt(0)")
        a(f"s_cselect_b32 s{SA}, s{pWQ}, s{pW1}")
        a(f"s_cselect_b32 s{SA+1}, s{pWQ+1}, s{pW1+1}")
        csel(a, SA + 2, 640 * 640 * 2, 640 * 1728 * 2)
        a(f"s_mov_b32 s{SA+3}, 0x00020000")
    def st01():
        if PROFILE: a("s_mov_b32 s64, s100")
        a.stamp(1)

    RW = 228
    a(f"s_lshl_b32 s{sT0}, s{sT3}, 5")
    a(f"v_lshrrev_b32 v{vT0}, 3, v{vL}")
    a(f"v_add_u32 v{vT0}, s{sT0}, v{vT0}")
    a(f"v_mul_u32_u24 v{vT0}, 1280, v{vT0}")
    a(f"v_lshrrev_b32 v{vT1}, 4, v{vL}")
    a(f"v_and_b32 v{vT2}, 7, v{vL}")
    a(f"v_xor_b32 v{vT1}, v{vT1}, v{vT2}")
    a(f"v_lshl_add_u32 v{vD}, v{vT1}, 4, v{vT0}")
    a(f"v_xor_b32 v{vT1}, 4, v{vT1}")
    a(f"v_lshl_add_u32 v{vD+1}, v{vT1}, 4, v{vT0}")
    a(f"v_add_u32 v{vD+1}, {8*1280}, v{vD+1}")
    a(f"v_add_u32 v{vD+2}, {16*1280}, v{vD}")
    a(f"v_add_u32 v{vD+3}, {16*1280}, v{vD+1}")
    a(f"s_lshl_b32 s{sSO}, s{sCC}, 7")
    a(f"s_lshl_b32 s{sM0}, s{sTT}, 12")
    a(f"s_add_u32 s{sM0}, s{sM0}, {K1_XOFF}")
    a(f"s_lshl_b32 s{sT0}, s{sRB}, 4")
    a(f"s_add_u32 s{sT0}, s{sT0}, s{sCG}")
    a(f"s_lshl_b32 s{sT0}, s{sT0}, 2")
    a(f"s_add_u32 s{sSTEP}, s{sT0}, s{sTT}")
    a(f"s_mul_i32 s{sT0}, s{sSTEP}, 2560")
    a(f"v_mul_u32_u24 v{vT0}, 40, v{vL}")
    a("s_waitcnt lgkmcnt(0)")
    srd(a, SX, pX, 2048 * 1280)
    st01()
    for p in range(4): xpiece(p)
    a("s_barrier")
    a(f"buffer_load_dwordx4 {vr(RW, 4)}, v{vT0}, {sr(SX)}, s{sT0} offen")
    a(f"buffer_load_dwordx4 {vr(RW+4, 4)}, v{vT0}, {sr(SX)}, s{sT0} offen offset:16")
    a(f"buffer_load_dwordx2 {vr(RW+8, 2)}, v{vT0}, {sr(SX)}, s{sT0} offen offset:32")
    a(f"s_cmp_eq_u32 s{sCG}, 15")
    a("s_cbranch_scc1 P1_KB")
    a("s_branch P1_GB")
    a.label("P1_A")
    a(f"s_cmp_eq_u32 s{sCG}, 15")
    a("s_cbranch_scc1 P1_KA0")
    w_setup(True)
    st01()
    for p in range(5): wpiece(p)
    a("s_barrier")

    def tr_addr(dst, tile):
        a(f"s_cmp_lt_u32 s{sCG}, 4")
        if tile == 4:
            a(f"s_cselect_b32 s{sT0}, 32, 0x100")
            a(f"s_cselect_b32 s{sT1}, 160, 32")
            a(f"s_cselect_b32 s{sT2}, 40, 8")
            a(f"v_mad_u32_u24 v{dst}, v{vC4}, s{sT2}, v{vROW}")
        else:
            a(f"s_cselect_b32 s{sT1}, 40, 32")
            if isinstance(tile, tuple):
                a(f"s_lshl_b32 s{sT0}, s{sT1}, 1")
                a(f"s_mul_i32 s{sT0}, s{sT0}, s{tile[1]}")
            else:
                a(f"s_mul_i32 s{sT0}, s{sT1}, {2*tile}")
            a(f"v_lshl_add_u32 v{dst}, v{vC4}, 3, v{vROW}")
        a(f"v_mad_u32_u24 v{dst}, v{vG16}, s{sT1}, v{dst}")
        a(f"v_add_u32 v{dst}, s{sT0}, v{dst}")

    def body(tag, role, kv):
        A_, B_ = role == "A", role == "B"
        nt = 1 if (kv or B_) else 4
        tiles = [0] if kv else ([0, 1, 2, 3] if A_ else [4])
        sstr, rstr = (1024, 40) if kv else (5120, 320)
        vTR = 16 if A_ else 12
        vSA = 13
        FA = [128, 144] if A_ else [36, 40]
        ACC, P = (64, 160) if A_ else (180, 212)
        GAT = 228
        ST, NM, CSR = (36, 40, 44) if A_ else (44, 48, 50)
        ONE, PUB = 24, 52
        nxt = "P2_FFN" if A_ else "P2_ATT"
        def m4(d, x, y):
            a(f"v_mfma_f32_4x4x4_16b_bf16 {vr(d, 4)}, {vr(x, 2)}, {vr(y, 2)}, {vr(d, 4)}")
        def get_nonce(publish):
            L, D = a.uid("NON"), a.uid("NOND")
            a(f"s_mov_b32 s{sSPIN}, {SPIN}")
            a.label(L)
            a(f"v_readfirstlane_b32 s{sNON}, v{vNON}")
            a(f"s_cmp_lg_u32 s{sNON}, 0")
            a(f"s_cbranch_scc1 {D}")
            a(f"buffer_load_dword v{vNON}, v{vZ}, {sr(SDBG)}, 0 offen sc1")
            a("s_waitcnt vmcnt(0)")
            spin_tail(a, L)
            a.label(D)
            xcc_word(a)
            if publish:
                L = a.uid("XW")
                a(f"s_cmp_lg_u32 s{sW}, 4")
                a(f"s_cbranch_scc1 {L}")
                a(f"s_and_b32 s{sT0}, s2, 7")
                a(f"s_lshl_b32 s{sT0}, s{sT0}, 5")
                a(f"s_lshr_b32 s{sT1}, s2, 3")
                a(f"s_add_u32 s{sT0}, s{sT0}, s{sT1}")
                a(f"s_lshl_b32 s{sT0}, s{sT0}, 2")
                a(f"s_add_u32 s{sT0}, s{sT0}, {WS_XC}")
                a(f"v_mov_b32 v{vT0}, s{sXW}")
                a("s_mov_b64 exec, 1")
                a(f"buffer_store_dword v{vT0}, v{vZ}, {sr(SWS)}, s{sT0} offen sc1")
                a("s_mov_b64 exec, -1")
                a.label(L)
        def row_stats(part=None):
            for p, f in enumerate((rs0, rs1, rs2, rs3)):
                if part is None or part == p: f()
        SU, SQ, R = RW + 10, RW + 11, RW + 12
        def rs0():
            a(f"v_mov_b64 {vr(SU, 2)}, 0")
            for j in range(10):
                a(f"v_dot2c_f32_bf16 v{SU}, v{ONE}, v{RW+j}")
                a(f"v_dot2c_f32_bf16 v{SQ}, v{RW+j}, v{RW+j}")
            a("s_nop 2")
        def rs1():
            for m in ("row_shr:1", "row_shr:2", "row_shr:4", "row_shr:8"):
                a(f"v_add_f32_dpp v{SU}, v{SU}, v{SU} {m} row_mask:0xf bank_mask:0xf bound_ctrl:0")
                a(f"v_add_f32_dpp v{SQ}, v{SQ}, v{SQ} {m} row_mask:0xf bank_mask:0xf bound_ctrl:0")
                a("s_nop 0")
            a(f"v_add_f32_dpp v{SU}, v{SU}, v{SU} row_bcast:15 row_mask:0xa bank_mask:0xf")
            a(f"v_add_f32_dpp v{SQ}, v{SQ}, v{SQ} row_bcast:15 row_mask:0xa bank_mask:0xf")
        def rs2():
            a(f"v_mul_f32 v{SU}, {f32bits(1.0/640):#x}, v{SU}")
            a(f"v_mul_f32 v{SQ}, {f32bits(1.0/640):#x}, v{SQ}")
            a(f"v_fma_f32 v{SQ}, -v{SU}, v{SU}, v{SQ}")
            a(f"v_max_f32 v{SQ}, 0, v{SQ}")
            a(f"v_cvt_pk_bf16_f32 v{R}, -v{SU}, -v{SU}")
            a(f"v_cvt_pk_bf16_f32 v{SQ}, v{SQ}, v{SQ}")
            a(f"v_and_b32 v{SQ}, 0xffff0000, v{SQ}")
            a(f"v_add_f32 v{SQ}, {f32bits(1e-5):#x}, v{SQ}")
            a(f"v_cvt_pk_bf16_f32 v{SQ}, v{SQ}, v{SQ}")
            a(f"v_and_b32 v{SQ}, 0xffff0000, v{SQ}")
            a(f"v_sqrt_f32 v{SQ}, v{SQ}")
            a("s_nop 0")
            a(f"v_cvt_pk_bf16_f32 v{SQ}, v{SQ}, v{SQ}")
            a(f"v_and_b32 v{SQ}, 0xffff0000, v{SQ}")
            a(f"v_rcp_f32 v{R+2}, v{SQ}")
        def rs3():
            a(f"v_mov_b32 v{R+1}, v{vNON}")
            a(f"v_mov_b32 v{R+3}, v{vNON}")
            a(f"v_lshlrev_b32 v{vT0}, 4, v{vH}")
            a(f"s_lshl_b32 s{sT0}, s{sSTEP}, 5")
            a(f"s_add_u32 s{sT0}, s{sT0}, {WS_RS}")
            a("s_mov_b32 exec_lo, 0x80000000")
            a("s_mov_b32 exec_hi, 0x80000000")
            a(f"buffer_store_dwordx4 {vr(R, 4)}, v{vT0}, {sr(SWS)}, s{sT0} offen sc1")
            a("s_mov_b64 exec, -1")
        def row_load(dst):
            a(f"s_lshl_b32 s{sT0}, s{sT3}, 9")
            a(f"s_add_u32 s{sT0}, s{sT0}, {WS_RS}")
            a(f"v_lshlrev_b32 v{vT0}, 4, v{vN}")
            a(f"buffer_load_dwordx4 {vr(dst, 4)}, v{vT0}, {sr(SWS)}, s{sT0} offen sc1")
        def tag_check(regs, again, ok):
            a(f"v_xor_b32 v{vT1}, s{sNON}, v{regs[0]}")
            for r in regs[1:]: a(f"v_bitop3_b32 v{vT1}, v{r}, s{sNON}, v{vT1} bitop3:0xbe")
            a(f"v_cmp_ne_u32 vcc, 0, v{vT1}")
            a(f"s_cbranch_vccz {ok}")
            a("s_sleep 2")
            spin_tail(a, again)
            a.label(ok)
        def next_slot():
            a(f"s_and_b32 s{sT0}, s{sC}, 3")
            csel(a, sT1, K1_SLOT, -3*K1_SLOT)
            a(f"s_cmp_eq_u32 s{sT0}, 3")
            csel(a, sDEL, -3*K1_SLOT, K1_SLOT)
            for s in range(4): a(f"v_add_u32 v{vX+s}, s{sDEL}, v{vX+s}")
            for i in range(nt): a(f"v_add_u32 v{vTR+i}, s{sDEL}, v{vTR+i}")
        if opt("wsoff"):
            a(f"s_add_u32 s{pWS}, s{pWS}, {optv('wsoff', 0) << 20}")
            a(f"s_addc_u32 s{pWS+1}, s{pWS+1}, 0")
        srd(a, SWS, pWS, WS_END)
        srd(a, SDBG, pDBG, 256)
        a(f"v_mov_b32 v{vZ}, 0")
        if A_ and not kv:
            L = a.uid("NONCE")
            a(f"s_or_b32 s{sT0}, s2, s{sW}")
            a(f"s_cbranch_scc1 {L}")
            if PROFILE: a("s_or_b32 s100, s65, 1")
            else: a("s_or_b32 s100, s100, 1")
            a(f"v_mov_b32 v{vT0}, s100")
            a(f"buffer_store_dword v{vT0}, v{vZ}, {sr(SDBG)}, 0 offen sc1")
            a.label(L)
        a(f"v_mov_b64 {vr(PUB, 2)}, 0")
        a(f"v_mov_b64 {vr(PUB+2, 2)}, 0")
        a(f"v_and_b32 v{vN}, 31, v{vL}")
        a(f"v_lshrrev_b32 v{vH}, 5, v{vL}")
        for i in range(nt): zero16(a, ACC + 16 * i, PUB)
        if B_ or kv:
            zero16(a, P, PUB)
            a(f"v_mov_b32 v{ONE}, 0x3f803f80")
            a(f"v_mov_b32 v{ONE+1}, 0x3f803f80")
        a(f"v_bfe_u32 v{vT0}, v{vL}, 1, 3")
        a(f"v_xor_b32 v{vT0}, v{vT0}, v{vH}")
        a(f"s_lshl_b32 s{sT0}, s{sTT}, 12")
        a(f"s_add_u32 s{sT0}, s{sT0}, {K1_XOFF}")
        a(f"v_lshl_add_u32 v{vT1}, v{vN}, 7, s{sT0}")
        for s in range(4):
            a(f"v_xor_b32 v{vT2}, {2*s}, v{vT0}")
            a(f"v_lshl_add_u32 v{vX+s}, v{vT2}, 4, v{vT1}")
        a(f"v_bfe_u32 v{vT0}, v{vL}, 2, 2")
        a(f"v_lshl_add_u32 v{vROW}, v{vH}, 3, v{vT0}")
        a(f"v_bfe_u32 v{vG16}, v{vL}, 4, 1")
        a(f"v_and_b32 v{vC4}, 3, v{vL}")
        if kv:
            a(f"v_lshl_add_u32 v{vT0}, v{vG16}, 2, v{vC4}")
            a(f"v_min_u32 v{vT0}, 4, v{vT0}")
            a(f"v_mul_u32_u24 v{vROW}, 40, v{vROW}")
            a(f"v_lshl_add_u32 v{vTR}, v{vT0}, 3, v{vROW}")
            if B_: a(f"v_add_u32 v{vTR}, 4096, v{vTR}")
        else:
            a(f"v_mul_u32_u24 v{vROW}, 320, v{vROW}")
            for i, t in enumerate(tiles): tr_addr(vTR + i, t)
            if B_:
                tr_addr(vSA, ("s", sTT))
                w_setup(False)
        next_chunk(B_, A_ or not kv, K1_SLOT)
        if B_:
            for p in range(4): xpiece(p)
        else:
            for p in range(2 if kv else 5): wpiece(p, kv)
        next_chunk(B_, kv != B_, K1_SLOT)
        a(f"s_and_b32 s{sT}, s2, 7")
        a(f"s_lshl_b32 s{sT}, s{sT}, 3")
        a(f"s_lshr_b32 s{sT0}, s2, 5")
        a(f"s_add_u32 s{sT}, s{sT}, s{sT0}")
        a(f"s_bfe_u32 s{sHG}, s2, 0x20003")
        a(f"s_mul_i32 s{sG}, s{sT}, {G_TSTRIDE}")
        a(f"s_mul_i32 s{sOB}, s{sT}, {32*1280}")
        a(f"s_mul_i32 s{sT0}, s{sHG}, 320")
        a(f"s_add_u32 s{sOB}, s{sOB}, s{sT0}")
        a(f"s_lshl_b32 s{sF2}, s{sT}, 2")
        a(f"s_add_u32 s{sF2}, s{sF2}, s{sHG}")
        a(f"s_lshl_b32 s{sF2}, s{sF2}, 7")
        a(f"s_add_u32 s{sF2}, s{sF2}, {WS_F2}")
        a(f"s_mul_i32 s{sOUT}, s{sT3}, {G_TSTRIDE}")
        a(f"s_mul_i32 s{sT0}, s{sCG}, 10240")
        a(f"s_add_u32 s{sOUT}, s{sOUT}, s{sT0}")
        a(f"s_cmp_lt_u32 s{sCG}, 4")
        a(f"s_cselect_b32 s{sQS}, {f32bits(QSCALE):#x}, 1.0")
        a(f"s_lshl_b32 s{sFL}, s{sRB}, 4")
        a(f"s_add_u32 s{sFL}, s{sFL}, s{sCG}")
        a(f"s_lshl_b32 s{sFL}, s{sFL}, 7")
        a(f"s_add_u32 s{sFL}, s{sFL}, {WS_F1}")
        a(f"s_mov_b32 s{sFAST}, 0")
        a(f"s_mov_b32 s{sC}, 0")
        if B_:
            srd(a, SB, pOUT, 2048 * 1280)
        elif not kv:
            ffn_pre(a, vL, vT0, vT1)
        def att_setup(part=None):
            for p, f in enumerate((as0, as1, as2, as3)):
                if part is None or part == p: f()
        def as0():
            att_zero(a)
            a(f"v_mul_u32_u24 v{avV}, 384, v{vH}")
            a(f"v_lshl_add_u32 v{avV}, v{vN}, 4, v{avV}")
            a(f"v_add_u32 v{avV}, 1024, v{avV}")
            a(f"v_mov_b32 v{vT0}, {OOB:#x}")
            a(f"v_cmp_gt_u32 vcc, 21, v{vN}")
            a(f"v_min_u32 v{avKT}, 32, v{vL}")
            a(f"v_lshlrev_b32 v{avKT}, 3, v{avKT}")
            a(f"v_cndmask_b32 v{avV}, v{vT0}, v{avV}, vcc")
            a(f"v_add_u32 v{avKT}, 2560, v{avKT}")
        def as1(): pairs((0, 1))
        def pairs(js):
            a(f"s_mul_i32 s{sT2}, s{sHG}, 10240")
            a(f"s_add_u32 s{sT2}, s{sT2}, s{sG}")
            for j in js:
                a(f"s_add_u32 s{sT0}, s{sQ}, {j}")
                a(f"s_and_b32 s{sT0}, s{sT0}, 3")
                a(f"s_lshl_b32 s{sPm+j}, s{sT0}, 11")
                a(f"s_add_u32 s{sPm+j}, s{sPm+j}, s{sT2}")
                a(f"s_lshr_b32 s{sT1}, s{sT0}, 1")
                a(f"s_lshl_b32 s{sT1}, s{sT1}, 10")
                a(f"s_and_b32 s{sT0}, s{sT0}, 1")
                a(f"s_lshl_b32 s{sT0}, s{sT0}, 3")
                a(f"s_add_u32 s{sT1}, s{sT1}, s{sT0}")
                a(f"s_add_u32 s{sT1}, s{sT1}, s{sT2}")
                a(f"s_add_u32 s{sPt+j}, s{sT1}, 8192")
        def as2(): pairs((2, 3))
        def as3():
            a(f"s_mul_i32 s{sT2}, s{sT}, 40960")
            a(f"s_add_u32 s{sT2}, s{sT2}, {WS_O}")
            a(f"s_sub_u32 s{sT2}, s{sT2}, s{sG}")
            a(f"s_add_u32 s{sOm}, s{sPm}, s{sT2}")
            a(f"s_add_u32 s{sOt}, s{sPt}, s{sT2}")
            a(f"s_mov_b32 s{sTGT}, 0")
            a(f"v_mov_b32 v{vT0}, {L_CNT}")
            a(f"ds_write_b128 v{vT0}, {vr(aV0[1], 4)}")
            a(f"s_lshr_b32 s{sT0}, s{sT}, 2")
            a(f"s_lshl_b32 s{sT0}, s{sT0}, 4")
            a(f"s_add_u32 s{sT0}, s{sT0}, s{sHG}")
            a(f"s_lshl_b32 s{sT0}, s{sT0}, 5")
            a(f"s_and_b32 s{sT1}, s{sT}, 3")
            a(f"s_add_u32 s{sT0}, s{sT0}, s{sT1}")
            a(f"s_lshl_b32 s{sT0}, s{sT0}, 2")
            a(f"s_add_u32 s{sFQ}, s{sT0}, {WS_F1 + 32}")
            a(f"v_and_b32 v{vT0}, 15, v{vL}")
            a(f"v_lshlrev_b32 v{vT0}, 11, v{vT0}")
            a(f"v_add_u32 v{vT0}, {WS_F1 + 15*128}, v{vT0}")
            a(f"s_and_b32 s{sT0}, s2, 7")
            a(f"s_lshl_b32 s{sT0}, s{sT0}, 7")
            a(f"s_add_u32 s{sT0}, s{sT0}, {WS_XC}")
            a(f"v_cmp_gt_u32 vcc, 32, v{vL}")
            a(f"v_lshl_add_u32 v{vT1}, v{vN}, 2, s{sT0}")
            a("s_nop 0")
            a(f"v_cndmask_b32 v{vFL}, v{vT1}, v{vT0}, vcc")

        if kv:
            nd = 4 if B_ else 2
            XB, WA = [28, ACC + 16], [128, 144] if A_ else [96, 112]
            def pieces(rng):
                for p in rng:
                    if p < nd: xpiece(p) if B_ else wpiece(p, True)
            pieces(range(4))
            next_chunk(B_, A_, K1_SLOT)
            a(f"s_waitcnt vmcnt({2*nd + (0 if A_ else 3)})")
            a.stamp(2)
            a("s_barrier")
            a.stamp(3); a.stamp(NSTAMP, True)
            for s in range(4):
                a(f"ds_read_b128 {vr(XB[0]+4*s, 4)}, v{vX+s}")
                a(f"ds_read_b64_tr_b16 {vr(WA[0]+4*s, 2)}, v{vTR} offset:{s*sstr}")
                a(f"ds_read_b64_tr_b16 {vr(WA[0]+4*s+2, 2)}, v{vTR} offset:{s*sstr+4*rstr}")
            a(f"buffer_load_dword v{vNON}, v{vZ}, {sr(SDBG)}, 0 offen sc1")
            pieces(range(4))
            a.label(f"P1_L{tag}")
            for b in range(2):
                next_slot()
                next_chunk(B_, A_, f"s{sT1}")
                if b == 0:
                    L = a.uid("KS")
                    a(f"s_cmp_lg_u32 s{sC}, 6")
                    a(f"s_cbranch_scc1 {L}")
                    if B_: a(f"s_mov_b32 s{SX+2}, 0")
                    else:
                        a(f"s_mov_b32 s{SA+2}, 0")
                        a(f"s_mov_b32 s{SB+2}, 0")
                    a.label(L)
                a(f"s_waitcnt vmcnt({2*nd}) lgkmcnt(0)")
                a("s_barrier")
                for s in range(4):
                    a(f"v_mfma_f32_32x32x16_bf16 {vr(ACC, 16)}, {vr(WA[b]+4*s, 4)}, {vr(XB[b]+4*s, 4)}, {vr(ACC, 16)}")
                    a(f"ds_read_b128 {vr(XB[b^1]+4*s, 4)}, v{vX+s}")
                    a(f"ds_read_b64_tr_b16 {vr(WA[b^1]+4*s, 2)}, v{vTR} offset:{s*sstr}")
                    a(f"ds_read_b64_tr_b16 {vr(WA[b^1]+4*s+2, 2)}, v{vTR} offset:{s*sstr+4*rstr}")
                    for j in range(2): m4(P + 4*j, ONE, WA[b]+4*s+2*j)
                    pieces([s])
                if b == 1:
                    L, L2 = a.uid("KN"), a.uid("KR")
                    a(f"s_cmp_lg_u32 s{sC}, 1")
                    a(f"s_cbranch_scc1 {L}")
                    get_nonce(B_)
                    if B_: row_stats()
                    a.label(L)
                    a(f"s_cmp_lg_u32 s{sC}, 7")
                    a(f"s_cbranch_scc1 {L2}")
                    row_load(ST + 16)
                    a.label(L2)
                if A_: a.lstamp(sC)
                a(f"s_add_u32 s{sC}, s{sC}, 1")
            a(f"s_cmp_lt_u32 s{sC}, 10")
            a(f"s_cbranch_scc1 P1_L{tag}")
            a.stamp(4); a.stamp(NSTAMP + 1, True)
            if A_: a.ldump()
            R = ST + 16
            a(f"s_mov_b32 s{sSPIN}, {SPIN}")
            a(f"s_branch P1_GW{tag}")
            a.label(f"P1_GA{tag}")
            row_load(R)
            a.label(f"P1_GW{tag}")
            a("s_waitcnt vmcnt(0) lgkmcnt(0)")
            tag_check([R + 1, R + 3], f"P1_GA{tag}", f"P1_FOK{tag}")
            a(f"v_add_f32 v{P}, v{P}, v{P+4}")
            split3(a, P, vT0, vT1, CSR, CSR + 1)
            a(f"v_mov_b32 v{R+1}, v{R}")
            a(f"v_mov_b32 v{R+3}, v{R+2}")
            a(f"v_lshlrev_b32 v{vT2}, 4, v{vL}")
            a(f"v_mfma_f32_32x32x8_bf16 {vr(ACC, 16)}, {vr(CSR, 2)}, {vr(R, 2)}, {vr(ACC, 16)}")
            a("s_nop 9")
            a(f"s_mul_i32 s{sT0}, s{sT3}, {KV_REC}")
            a(f"s_add_u32 s{sT0}, s{sT0}, {WS_KV}")
            for j in range(6): a(f"v_pk_mul_f32 {vr(ACC+2*j, 2)}, {vr(ACC+2*j, 2)}, {vr(R+2, 2)}")
            if A_:
                for j in range(6): a(f"v_cvt_pk_bf16_f32 v{P+j}, v{ACC+2*j}, v{ACC+2*j+1}")
                a(f"v_min_u32 v{vT0}, 32, v{vL}")
                a(f"v_lshlrev_b32 v{vT0}, 3, v{vT0}")
                a("s_mov_b32 exec_lo, 0")
                a(f"v_mov_b32 v{P+4}, 0x3f803f80")
                a(f"v_mov_b32 v{P+5}, 0x3f80")
                a("s_mov_b32 exec_lo, -1")
                a(f"buffer_store_dwordx4 {vr(P, 4)}, v{vT2}, {sr(SWS)}, s{sT0} offen sc1")
                a(f"buffer_store_dwordx2 {vr(P+4, 2)}, v{vT0}, {sr(SWS)}, s{sT0} offen offset:2560 sc1")
            else:
                a("s_mov_b32 exec_lo, 0")
                a(f"v_mov_b32 v{ACC+8}, 1.0")
                a("s_mov_b32 exec_lo, -1")
                for j in range(6): a(f"v_cvt_pk_bf16_f32 v{P+j}, v{ACC+2*j}, v{ACC+2*j+1}")
                a(f"s_mul_i32 s{sT1}, s{sTT}, 1536")
                a(f"s_add_u32 s{sT1}, s{sT1}, {L_VT}")
                a(f"v_lshrrev_b32 v{vT0}, 3, v{vN}")
                a(f"v_mul_u32_u24 v{vT0}, 384, v{vT0}")
                a(f"v_and_b32 v{vT1}, 7, v{vN}")
                a(f"v_lshl_add_u32 v{vT0}, v{vT1}, 1, v{vT0}")
                a(f"v_lshl_add_u32 v{vT0}, v{vH}, 6, v{vT0}")
                a(f"v_add_u32 v{vT0}, s{sT1}, v{vT0}")
                for r in range(12):
                    op = "ds_write_b16" if r % 2 == 0 else "ds_write_b16_d16_hi"
                    a(f"{op} v{vT0}, v{P+r//2} offset:{(r//4)*128 + (r%4)*16}")
                a(f"v_add_u32 v{vT0}, s{sT1}, v{vT2}")
                a("s_waitcnt lgkmcnt(0)")
                a(f"ds_read_b128 {vr(P+8, 4)}, v{vT0}")
                a(f"ds_read_b128 {vr(P+12, 4)}, v{vT0} offset:1024")
                a("s_waitcnt lgkmcnt(0)")
                a(f"buffer_store_dwordx4 {vr(P+8, 4)}, v{vT2}, {sr(SWS)}, s{sT0} offen offset:1024 sc1")
                a("s_mov_b32 exec_hi, 0")
                a(f"buffer_store_dwordx4 {vr(P+12, 4)}, v{vT2}, {sr(SWS)}, s{sT0} offen offset:2048 sc1")
                a("s_mov_b32 exec_hi, -1")
            a.stamp(5)
            a("s_waitcnt vmcnt(0) lgkmcnt(0)")
            a("s_barrier")
            if B_:
                a(f"s_mov_b32 s{sKOK}, 0")
                a(f"s_cmp_lg_u32 s{sW}, 4")
                a(f"s_cbranch_scc1 P1_KNP")
                a("s_mov_b64 exec, 1")
                a(f"buffer_store_dword v{vNON}, v{vZ}, {sr(SWS)}, s{sFL} offen sc1")
                a("s_mov_b64 exec, -1")
                a.label("P1_KNP")
                att_setup()
                a("s_waitcnt lgkmcnt(0)")
                a("s_barrier")
            else:
                ffn_pre(a, vL, vT0, vT1)
                a("s_barrier")
                srd(a, SX, pW2, 1728 * 1280)
                a(f"s_mul_i32 s{sT2}, s{sW}, 5120")
                a(f"s_mul_i32 s{sT0}, s{sW}, {27*16*1280}")
                a(f"s_mul_i32 s{sT1}, s{sHG}, 320")
                a(f"s_add_u32 s{sT0}, s{sT0}, s{sT1}")
                for i in range(3):
                    for p in range(5):
                        a(f"s_add_u32 m0, s{sT2}, {L_RING + i*20480 + p*1024}")
                        a("s_nop 0")
                        a(f"buffer_load_dwordx4 v{fD+p}, {sr(SX)}, s{sT0} offen lds")
                    a(f"s_add_u32 s{sT0}, s{sT0}, {16*1280}")
            a(f"s_branch {nxt}")
            return

        def mfma(i, p): a(f"v_mfma_f32_32x32x16_bf16 {vr(ACC+16*i, 16)}, {vr(FA[p]+4*i, 4)}, {vr(FB[p], 4)}, {vr(ACC+16*i, 16)}")
        def rdb(q, ns): a(f"ds_read_b128 {vr(FB[q], 4)}, v{vX+ns}")
        def rda(q, i, ns):
            a(f"ds_read_b64_tr_b16 {vr(FA[q]+4*i, 2)}, v{vTR+i} offset:{ns*sstr}")
            a(f"ds_read_b64_tr_b16 {vr(FA[q]+4*i+2, 2)}, v{vTR+i} offset:{ns*sstr+4*rstr}")
        def rank1(i): a(f"v_mfma_f32_32x32x8_bf16 {vr(ACC+16*i, 16)}, {vr(CSR+2*i, 2)}, {vr(NM, 2)}, {vr(ACC+16*i, 16)}")
        def pack_store(i, t):
            for j in range(8): a(f"v_pk_mul_f32 {vr(ACC+16*i+2*j, 2)}, {vr(ACC+16*i+2*j, 2)}, {vr(ST, 2)}")
            for j in range(8): a(f"v_cvt_pk_bf16_f32 v{P+8*i+j}, v{ACC+16*i+2*j}, v{ACC+16*i+2*j+1}")
            L = a.uid("NR")
            a(f"s_cmp_lt_u32 s{sCG}, 4")
            a(f"s_cbranch_scc1 {L}")
            for j in range(8): a(f"v_pk_max_i16 v{P+8*i+j}, v{P+8*i+j}, 0")
            a.label(L)
            a(f"s_add_u32 s{sT0}, s{sOUT}, {2048*t}")
            stores(a, [f"buffer_store_dwordx4 {vr(P+8*i+4*e, 4)}, v{vT2}, {sr(SWS)}, s{sT0} offen offset:{1024*e}" for e in range(2)])
        def signal(vn):
            a.stamp(5)
            a(f"s_lshl_b32 s{sT0}, s{sW}, 2")
            a(f"s_add_u32 s{sT0}, s{sT0}, s{sFL}")
            a("s_mov_b64 exec, 1")
            a("s_waitcnt vmcnt(0)")
            stores(a, [f"buffer_store_dword v{vn}, v{vZ}, {sr(SWS)}, s{sT0} offen offset:32"])
            a("s_mov_b64 exec, -1")
            if opt("tp") and A_:
                a(f"buffer_load_dword v229, v{vT0}, {sr(SWS)}, s{sOUT} offen sc1")
                a(f"s_add_u32 s{sT0}, s{sOUT}, 8192")
                a("s_mov_b64 exec, 0xffff")
                a(f"buffer_load_dword v229, v{vT0}, {sr(SWS)}, s{sT0} offen sc1")
                a("s_mov_b64 exec, -1")
            a(f"s_branch {nxt}")
        if A_:
            NM, ST = 36, 38
            vRS, vRC = 20, 21
            a(f"s_lshl_b32 s{sT0}, s{sTT}, 10")
            a(f"s_add_u32 s{sT0}, s{sT0}, {K1_ST}")
            a(f"v_lshl_add_u32 v{vRS}, v{vN}, 5, s{sT0}")
            a(f"v_lshlrev_b32 v{vRC}, 3, v{vL}")
            a(f"v_add_u32 v{vRC}, {K1_CS}, v{vRC}")
            a(f"v_lshlrev_b32 v{vT2}, 4, v{vL}")
            srd(a, SX, pW2, 1728 * 1280)
            a(f"s_mul_i32 s{sPB}, s{sRB}, 15")
            a(f"s_add_u32 s{sPB}, s{sPB}, s{sCG}")
            a(f"s_lshl_b32 s{sPB}, s{sPB}, 2")
            a(f"s_add_u32 s{sPB}, s{sPB}, s{sTT}")
            a(f"s_mul_i32 s{sSO}, s{sPB}, {7*128}")
            a(f"s_mul_i32 s{sPB}, s{sPB}, {18*128}")
            srd(a, SB, pWO, 640 * 1280)
            a(f"v_lshlrev_b32 v{vT0}, 7, v{vL}")
            a("s_waitcnt vmcnt(5)")
            a.stamp(2)
            a("s_barrier")
            rdb(0, 0)
            for i in range(4): rda(0, i, 0)
            a.stamp(3); a.stamp(NSTAMP, True)
            def step(s, pre=None, extra=0):
                p, q, ns = s & 1, (s + 1) & 1, (s + 1) & 3
                for i in range(4):
                    if pre is None: a(f"s_waitcnt lgkmcnt({min(15, 2*(3-i) + ((1 + 2*i) if i else 0) + extra)})")
                    mfma(i, p)
                    if i == 0:
                        if pre is not None: pre()
                        rdb(q, ns)
                    rda(q, i, ns)
            a.raw(".p2align 3")
            a.label(f"P1_L{tag}")
            for s in range(3): step(s)
            a(f"s_and_b32 s{sT0}, s{sC}, 3")
            a(f"s_cmp_eq_u32 s{sT0}, 3")
            csel(a, sDEL, -3*K1_SLOT, K1_SLOT)
            for s in range(4): a(f"v_add_u32 v{vX+s}, s{sDEL}, v{vX+s}")
            for i in range(4): a(f"v_add_u32 v{vTR+i}, s{sDEL}, v{vTR+i}")
            TC = optv("tc", 3)
            TO = optv("to", 9)
            a(f"s_bitcmp1_b32 {1 | (1 << TC) | (1 << TO):#x}, s{sC}")
            a("s_waitcnt lgkmcnt(0)")
            def pre():
                a(f"s_cbranch_scc1 P1_X{tag}")
                a.label(f"P1_W1{tag}")
                a("s_barrier")
            step(3, pre)
            a.lstamp(sC)
            a(f"s_add_u32 s{sC}, s{sC}, 1")
            a(f"s_cmp_lt_u32 s{sC}, 9")
            a(f"s_cbranch_scc1 P1_L{tag}")
            a(f"ds_read_b128 {vr(NM, 4)}, v{vRS}")
            a(f"ds_read_b64 {vr(40, 2)}, v{vRS} offset:16")
            for i in range(4): a(f"ds_read_b64 {vr(CSR+2*i, 2)}, v{vRC} offset:{512*i}")
            step(0, None, 6)
            step(1)
            for i in range(4):
                rank1(i)
                if i == 0: rdb(1, 3)
                rda(1, i, 3)
            a(f"v_readfirstlane_b32 s{sNON}, v40")
            a(f"v_readfirstlane_b32 s{sFAST}, v41")
            a("s_waitcnt lgkmcnt(6)")
            mfma(0, 0); mfma(0, 1)
            a("s_waitcnt lgkmcnt(0)")
            a("s_barrier")
            a.stamp(4); a.stamp(NSTAMP + 1, True)
            mfma(1, 0); mfma(1, 1)
            xcc_word(a)
            a("s_nop 4")
            for i in range(4):
                if i < 2: mfma(i + 2, 0); mfma(i + 2, 1)
                pack_store(i, i)
            a.ldump()
            signal(40)
            a.label(f"P1_X{tag}")
            if TO < 9:
                L = a.uid("TO")
                a(f"s_cmp_lg_u32 s{sC}, {TO}")
                a(f"s_cbranch_scc1 {L}")
                if opt("toq"):
                    a(f"s_cmp_ge_u32 s{sCG}, 4")
                    a(f"s_cbranch_scc1 P1_W1{tag}")
                a(f"buffer_load_dword v229, v{vT0}, {sr(SWS)}, s{sOUT} offen")
                a(f"s_add_u32 s{sT0}, s{sOUT}, 8192")
                a("s_mov_b64 exec, 0xffff")
                a(f"buffer_load_dword v229, v{vT0}, {sr(SWS)}, s{sT0} offen")
                a("s_mov_b64 exec, -1")
                a(f"s_branch P1_W1{tag}")
                a.label(L)
            a("s_waitcnt vmcnt(0)")
            a(f"s_cmp_lg_u32 s{sC}, {TC}")
            a(f"s_cbranch_scc1 P1_W1{tag}")
            if opt("tq"):
                a(f"s_mul_i32 s{sT0}, s{sHG}, 10240")
                a(f"s_add_u32 s{sT0}, s{sT0}, s{sG}")
                a(f"s_mul_i32 s{sT1}, s{sTT}, 2560")
                a(f"s_add_u32 s{sT0}, s{sT0}, s{sT1}")
                a("s_mov_b64 exec, 0xfffff")
                a(f"buffer_load_dword v229, v{vT0}, {sr(SWS)}, s{sT0} offen")
            a("s_mov_b64 exec, 0x7f")
            a(f"buffer_load_dword v230, v{vT0}, {sr(SB)}, s{sSO} offen")
            a("s_mov_b64 exec, 0x3ffff")
            a(f"buffer_load_dword v231, v{vT0}, {sr(SX)}, s{sPB} offen")
            a("s_mov_b64 exec, -1")
            a(f"s_branch P1_W1{tag}")
            return
        NM, ST = 44, 46
        vWO, CG, RR = 200, 204 - 8, 206
        CG = 196
        a(f"s_lshl_b32 s{sPB}, s{sCG}, 2")
        a(f"s_add_u32 s{sPB}, s{sPB}, s{sTT}")
        a(f"s_mul_i32 s{sPB}, s{sPB}, 5120")
        a(f"s_add_u32 s{sPB}, s{sPB}, {WS_CP}")
        if opt("zearly"): att_setup(0)
        a(f"s_sub_u32 s{sM0}, s{sM0}, {2*K1_SLOT}")
        a(f"s_sub_u32 s{sM0W}, s{sM0W}, {2*K1_SLOT}")
        a("s_setprio 1")
        ops = ["X0"] * 4 + ["R"] * 3 + ["D1"] * 4
        def vm(tag_, n=1): ops.extend([tag_] * n)
        def wait(*tags):
            last = max(i for i, t in enumerate(ops) if t in tags)
            return len(ops) - 1 - last
        def xp(c, p):
            a(f"s_add_u32 m0, s{sM0}, {(c & 3)*K1_SLOT + 1024*p}")
            a("s_nop 0")
            a(f"buffer_load_dwordx4 v{vD+p}, {sr(SX)}, s{sSO} offen lds"); vm(f"D{c}")
        def wp(c, p):
            base = (c & 3) * K1_SLOT if c < 10 else L_RING + (c - 10) * 20480
            a(f"s_add_u32 m0, s{sM0W}, {base + 1024*p}")
            a("s_nop 0")
            a(f"buffer_load_dwordx4 v{(vDW if c < 10 else vWO)+p}, {sr(SA)}, s{sSOW} offen lds"); vm(f"D{c}")
        def adv(c):
            if c < 10:
                a(f"s_add_u32 s{sCC}, s{sCC}, 1")
                a(f"s_cmp_eq_u32 s{sCC}, 10")
                a(f"s_cselect_b32 s{sCC}, 0, s{sCC}")
                a(f"s_lshl_b32 s{sSO}, s{sCC}, 7")
                a(f"s_mul_i32 s{sSOW}, s{sCC}, s{sWSTEP}")
                a(f"s_add_u32 s{sSOW}, s{sSOW}, s{sWBASE}")
            elif c == 10:
                srd(a, SA, pW2, 1728 * 1280)
                a(f"s_mul_i32 s{sSOW}, s{sTT}, {27*16*1280}")
                a(f"s_mul_i32 s{sT0}, s{sHG}, 320")
                a(f"s_add_u32 s{sSOW}, s{sSOW}, s{sT0}")
            elif c < 13:
                a(f"s_add_u32 s{sSOW}, s{sSOW}, {16*1280}")
        def f_nonce(): get_nonce(True)
        def f_cspub():
            a(f"v_add_f32 v{PUB}, v{P}, v{P+8}")
            a(f"v_add_f32 v{PUB+2}, v{P+4}, v{P+12}")
            halfop(a, "v_add_f32", PUB, vT0); halfop(a, "v_add_f32", PUB + 2, vT0)
            a(f"v_mov_b32 v{PUB+1}, v{vNON}")
            a(f"v_mov_b32 v{PUB+3}, v{vNON}")
            a(f"v_lshlrev_b32 v{vT2}, 4, v{vL}")
            a(f"s_lshl_b32 s{sT1}, s{sST}, 9")
            a(f"s_add_u32 s{sT0}, s{sPB}, s{sT1}")
            a("s_mov_b32 exec_hi, 0")
            a(f"buffer_store_dwordx4 {vr(PUB, 4)}, v{vT2}, {sr(SWS)}, s{sT0} offen sc1"); vm("S")
            a("s_mov_b32 exec_hi, -1")
        def f_rowpub(): row_stats(3); vm("S")
        def f_wo():
            a(f"s_movk_i32 s{sT2}, 960")
            row_offsets(a, vWO, vL, vT0, vT1, f"s{sT2}")
        def gather(js, count=True):
            for j in js:
                if j == 0:
                    row_load(RR)
                    a(f"v_mul_u32_u24 v{vT1}, 2560, v{vH}")
                    a(f"v_add_u32 v{vSA}, v{vT0}, v{vT1}")
                else:
                    a(f"buffer_load_dwordx4 {vr(GAT+4*(j-1), 4)}, v{vSA}, {sr(SWS)}, s{sPB} offen offset:{512*(j-1)} sc1")
                if count: vm("G")
        def f_words(t):
            a(f"buffer_load_dword v{vFV}, v{vFL}, {sr(SWS)}, 0 offen sc1"); vm(t)
        def f_fin0():
            a(f"s_mov_b32 s{sSPIN}, {SPIN}")
            a(f"s_waitcnt vmcnt({wait('G', 'XW')})")
            a(f"v_cmp_ne_u32 vcc, s{sXW}, v{vFV}")
            a("s_cmp_eq_u32 vcc_hi, 0")
            a(f"s_cselect_b32 s{sFAST}, {0 if opt('slow') else 1}, 0")
            a.label(f"P1_FC{tag}")
            tag_check([RR + 1, RR + 3] + [GAT + 2*j + 1 for j in range(10)], f"P1_GA{tag}", f"P1_FOK{tag}")
        def f_fin1():
            a(f"v_mov_b32 v{NM}, v{RR}")
            a(f"v_mov_b32 v{NM+1}, v{RR}")
            a(f"v_mul_f32 v{ST}, s{sQS}, v{RR+2}")
            a(f"v_mul_f32 v{ST+1}, s{sQS}, v{RR+2}")
            a(f"v_mov_b32 v{RR}, s{sNON}")
            a(f"v_mov_b32 v{RR+1}, s{sFAST}")
            a(f"s_lshl_b32 s{sT0}, s{sTT}, 10")
            a(f"s_add_u32 s{sT0}, s{sT0}, {K1_ST}")
            a(f"v_lshl_add_u32 v{vT0}, v{vN}, 5, s{sT0}")
            a(f"ds_write_b128 v{vT0}, {vr(NM, 4)}")
            a(f"ds_write_b64 v{vT0}, {vr(RR, 2)} offset:16")
            for j in range(1, 5):
                a(f"v_add_f32 v{GAT}, v{GAT}, v{GAT+4*j}")
                a(f"v_add_f32 v{GAT+2}, v{GAT+2}, v{GAT+4*j+2}")
        def f_fin2():
            split3(a, GAT, vT0, vT1, PUB, PUB + 1)
            a(f"s_lshl_b32 s{sT0}, s{sTT}, 9")
            a(f"s_add_u32 s{sT0}, s{sT0}, {K1_CS}")
            a(f"v_lshl_add_u32 v{vT0}, v{vL}, 3, s{sT0}")
            a(f"ds_write_b64 v{vT0}, {vr(PUB, 2)}")
            split3(a, GAT + 2, vT0, vT1, CSR, CSR + 1)
            f_words("KF")
        def f_kv():
            L = a.uid("NOKV")
            a(f"s_waitcnt vmcnt({wait('KF')})")
            a(f"v_cmp_ne_u32 vcc, s{sNON}, v{vFV}")
            a(f"s_mov_b32 s{sKOK}, 0")
            a("s_cmp_lg_u32 vcc_lo, 0")
            a(f"s_cbranch_scc1 {L}")
            kv_first(a, vT2)
            a(f"s_mov_b32 s{sKOK}, 1")
            a.label(L)
        def f_tlb():
            if not opt("tlb"): return
            a(f"v_lshlrev_b32 v{vT0}, 21, v{vL}")
            a("s_mov_b64 exec, 0x7f")
            a(f"buffer_load_dword v20, v{vT0}, {sr(SWS)}, 0 offen"); vm("T")
            a("s_mov_b64 exec, 1")
            a(f"buffer_load_dword v20, v{vZ}, {sr(SB)}, s{sOB} offen"); vm("T")
            a("s_mov_b64 exec, -1")
        def f_code():
            if not opt("code"): return
            a("s_getpc_b64 s[100:101]")
            a.label("PCREF")
            a(f"s_lshr_b32 s{sT0}, s2, 3")
            a(f"s_lshl_b32 s{sT0}, s{sT0}, 2")
            a(f"s_add_u32 s{sT0}, s{sT0}, s{sTT}")
            a(f"s_lshl_b32 s{sT0}, s{sT0}, 7")
            a(f"s_add_u32 s{sT0}, s{sT0}, P2_ATT-PCREF")
            a(f"s_add_u32 s100, s100, s{sT0}")
            a("s_addc_u32 s101, s101, 0")
            a(f"v_mov_b32 v{vT0}, s100")
            a(f"v_mov_b32 v{vT1}, s101")
            a("s_mov_b64 exec, 1")
            a(f"global_load_dword v20, {vr(vT0, 2)}, off"); vm("T")
            a("s_mov_b64 exec, -1")
        GI = optv("gi", 6)
        fill = {(1, 0): lambda: row_stats(0), (1, 1): lambda: row_stats(1), (1, 2): lambda: row_stats(2),
                (2, 0): f_nonce, (2, 1): f_cspub, (2, 2): f_rowpub, (4, 0): f_wo, (5, 0): f_tlb, (5, 1): f_code,
                (3, 0): lambda: att_setup(1), (3, 1): lambda: att_setup(2), (4, 1): lambda: att_setup(3),
                (3, 2): (lambda: None) if opt("zearly") else (lambda: att_setup(0)),
                (GI, 0): lambda: gather((0, 1)), (GI, 1): lambda: gather((2, 3)), (GI, 2): lambda: (gather((4, 5)), f_words("XW")),
                (8, 0): f_fin0, (8, 1): f_fin1, (8, 2): f_fin2, (9, 0): lambda: rank1(0), (9, 2): f_kv}
        a(f"s_waitcnt vmcnt({wait('X0')})")
        a.stamp(2)
        a("s_barrier")
        rdb(0, 0); rda(0, 0, 0)
        for p in range(5): wp(2, p)
        for p in range(4): xp(2, p)
        a(f"buffer_load_dword v{vNON}, v{vZ}, {sr(SDBG)}, 0 offen sc1"); vm("N")
        a.stamp(3); a.stamp(NSTAMP, True)
        for c in range(10):
            adv(c + 3)
            for s in range(4):
                p, q, ns = s & 1, (s + 1) & 1, (s + 1) & 3
                if c == 0:
                    a(f"ds_read_b64_tr_b16 {vr(CG, 2)}, v{vSA} offset:{s*sstr}")
                    a(f"ds_read_b64_tr_b16 {vr(CG+2, 2)}, v{vSA} offset:{s*sstr+4*rstr}")
                if s == 3 and c < 9:
                    d = -3 * K1_SLOT if (c & 3) == 3 else K1_SLOT
                    for r in list(range(vX, vX + 4)) + [vTR]: a(f"v_add_u32 v{r}, {d}, v{r}")
                a("s_waitcnt lgkmcnt(0)")
                mfma(0, p)
                if c == 0:
                    for j in range(2):
                        m4(P + 8*j, ONE, CG + 2*j); m4(P + 8*j + 4, ONE, FA[p] + 2*j)
                if s == 3:
                    if c < 9: a(f"s_waitcnt vmcnt({wait(f'D{c+1}', 'N') if c == 1 else wait(f'D{c+1}')})")
                    a("s_barrier")
                if c < 9 or s < 3:
                    rdb(q, ns); rda(q, 0, ns)
                if s < 3:
                    for pp in ((0, 1), (2, 3), (4,))[s]: wp(c + 3, pp)
                    if c + 3 < 10:
                        for pp in ((0,), (1,), (2, 3))[s]: xp(c + 3, pp)
                    if (c, s) in fill: fill[(c, s)]()
        a.stamp(4); a.stamp(NSTAMP + 1, True)
        a("s_setprio 0")
        a("s_nop 9")
        pack_store(0, 4)
        signal(vNON)
        a.label(f"P1_GA{tag}")
        gather(range(6), False)
        a("s_waitcnt vmcnt(0)")
        a(f"s_branch P1_FC{tag}")

    body("GA", "A", False)
    a.label("P1_GB")
    body("GB", "B", False)
    a.label("P1_KA0")
    a(f"v_lshlrev_b32 v{vDW}, 4, v{vL}")
    a(f"s_mul_i32 s{sWBASE}, s{sW}, 640")
    a(f"s_mov_b32 s{sWSTEP}, 2560")
    a(f"s_mul_i32 s{sSOW}, s{sCC}, 2560")
    a(f"s_add_u32 s{sSOW}, s{sSOW}, s{sWBASE}")
    a(f"s_lshl_b32 s{sM0W}, s{sW}, 10")
    a("s_waitcnt lgkmcnt(0)")
    srd(a, SA, pWK, 640 * 40)
    srd(a, SB, pWV, 640 * 40)
    st01()
    for p in range(2): wpiece(p, True)
    a("s_barrier")
    body("KA", "A", True)
    a.label("P1_KB")
    body("KB", "B", True)

def kdesc(name, nv, ns=102):
    return f""".amdhsa_kernel {name}
  .amdhsa_next_free_vgpr {nv}
  .amdhsa_next_free_sgpr {ns}
  .amdhsa_accum_offset {(nv+3)//4*4}
  .amdhsa_group_segment_fixed_size 0
  .amdhsa_kernarg_size 88
  .amdhsa_user_sgpr_count 2
  .amdhsa_user_sgpr_kernarg_segment_ptr 1
  .amdhsa_system_sgpr_workgroup_id_x 1
.end_amdhsa_kernel
"""

def build():
    from g10p2 import gen_ffn, gen_att
    hdr = open("cdna_kernels/" + NAME + ".s.ref").read().split("; Override launch")[0]
    out = hdr
    out += f"; @launch grid=(256,1,1) block=(512,1,1) lds={LDS_BYTES}\n"
    out += '.amdgcn_target "amdgcn-amd-amdhsa--gfx950"\n.text\n'
    a = Asm()
    k = NAME + "_kernel"
    a.raw(f".globl {k}\n.p2align 8\n.type {k},@function")
    a.label(k)
    gen_p1(a)
    a.p2 = True
    a.label("P2_ATT")
    gen_att(a)
    a.label("P2_FFN")
    gen_ffn(a)
    for L, lines, D in a.tail:
        a.label(L)
        for l in lines: a(l)
        a(f"s_branch {D}")
    a.label("L_END")
    a("s_endpgm")
    if opt("code"): a.raw(".fill 1024, 4, 0xbf810000")
    out += a.text()
    out += '.section .rodata,"a"\n.p2align 6\n' + kdesc(k, 256)
    return out

if __name__ == "__main__":
    path = sys.argv[1] if len(sys.argv) > 1 and not sys.argv[1].startswith("--") else "cdna_kernels/" + NAME + ".s"
    open(path, "w").write(build())
```

```python
from g12 import *

LD = {"plain": "", "nt": " nt", "sc0": " sc0"}.get(sys.argv[sys.argv.index("--ld") + 1] if opt("ld") else "", " sc1")
LDO = " nt" if opt("ldo") else " sc1"
def cnt_arrive(a, vaddr, vtmp, inc="1", off=0):
    a(f"v_mov_b32 v{vtmp}, {inc}")
    a("s_mov_b64 exec, 1")
    a(f"ds_add_u32 v{vaddr}, v{vtmp}" + (f" offset:{off}" if off else ""))
    a("s_mov_b64 exec, -1")
def cnt_wait(a, vaddr, vtmp, tgt, sleep=0, off=0):
    L, D = a.uid("CW"), a.uid("CWD")
    a(f"s_mov_b32 s{sSPIN}, {SPIN * 16}")
    a.label(L)
    a(f"ds_read_b32 v{vtmp}, v{vaddr}" + (f" offset:{off}" if off else ""))
    a("s_waitcnt lgkmcnt(0)")
    a(f"v_readfirstlane_b32 s{sT0}, v{vtmp}")
    a(f"s_and_b32 s{sT2}, s{sT0}, 0xffff")
    a(f"s_cmp_ge_u32 s{sT2}, {tgt}")
    a(f"s_cbranch_scc1 {D}")
    if sleep: a(f"s_sleep {sleep}")
    spin_tail(a, L)
    a.label(D)

def final_stage(a, base_item, X, R, vA, vG, load_x, do_rest):
    if load_x and load_x != "load":
        a(f"s_mov_b32 s100, {L_FP}")
        item_addr(a, base_item, vA, vG, X)
    if load_x and load_x != "addr":
        a(f"buffer_load_dwordx4 {vr(X, 4)}, v{vG}, {sr(SX)}, s{sOB} offen")
    if do_rest == 1:
        for s in range(4):
            a(f"ds_read_b128 {vr(R+8*s, 4)}, v{vA} offset:{s*5120}")
            a(f"ds_read_b128 {vr(R+8*s+4, 4)}, v{vA} offset:{s*5120+16}")
    if do_rest == 2:
        for j in range(4):
            a(f"v_lshlrev_b32 v{R+32+2*j}, 16, v{X+j}")
            a(f"v_and_b32 v{R+33+2*j}, 0xffff0000, v{X+j}")
    if do_rest >= 3:
        for s in range(4):
            a(f"s_waitcnt lgkmcnt({6-2*s + (do_rest-3)})")
            for j in range(4):
                a(f"v_pk_add_f32 {vr(R+32+2*j, 2)}, {vr(R+32+2*j, 2)}, {vr(R+8*s+2*j, 2)}")
        for j in range(4): a(f"v_cvt_pk_bf16_f32 v{X+j}, v{R+32+2*j}, v{R+33+2*j}")
        a(f"buffer_store_dwordx4 {vr(X, 4)}, v{vG}, {sr(SB)}, s{sOB} offen")

def gen_att(a):
    vL, vKM, vQT, vIDX, vT0, vT1, vCNT = 1, 2, 3, 4, 5, 6, 7
    vP = 8
    vT2, vT3 = 12, 13
    vFL = 23
    S, O, QM, QT, KM, KT, V0, V1 = aS, aO, aQM, aQT, aKM, aKT, aV0, aV1
    def qk1(s, kb, q): a(f"v_mfma_f32_32x32x16_bf16 {vr(S[s], 16)}, {vr(KM[kb], 4)}, {vr(QM(q), 4)}, 0")
    def qk2(s, kb, q): a(f"v_mfma_f32_32x32x8_bf16 {vr(S[s], 16)}, {vr(KT[kb], 2)}, {vr(QT(q), 2)}, {vr(S[s], 16)}")
    def pv(u, s, vb, q): a(f"v_smfmac_f32_32x32x32_bf16 {vr(O(q), 16)}, {vr((V0, V1)[u][vb], 4)}, {vr(S[s]+8*u, 8)}, v{vIDX}")
    def ldq(i):
        a(f"buffer_load_dwordx4 {vr(QM(i), 4)}, v{vKM}, {sr(SWS)}, s{sPm+i//2} offen" + (" offset:1024" if i & 1 else "") + LD)
        a(f"buffer_load_dwordx2 {vr(QT(i), 2)}, v{vQT}, {sr(SWS)}, s{sPt+i//2} offen" + (" offset:512" if i & 1 else "") + LD)
    def qregs(lo, hi): return list(range(QM(lo), QM(hi))) + list(range(QT(lo), QT(hi)))
    def rowmax(s, dst):
        b = S[s]
        a(f"v_max3_f32 v{dst}, v{b}, v{b+1}, v{b+2}")
        for j in range(3, 15, 2): a(f"v_max3_f32 v{dst}, v{dst}, v{b+j}, v{b+j+1}")
        a(f"v_max_f32 v{dst}, v{dst}, v{b+15}")
    def pair_addr(mul, base, vlane, shift):
        for j in range(4):
            a(f"s_add_u32 s{sT0}, s{sQ}, {j}")
            a(f"s_and_b32 s{sT0}, s{sT0}, 3")
            a(f"s_mul_i32 s{sT0}, s{sT0}, {mul}")
            a(f"s_add_u32 s{sT0}, s{sT0}, {base}")
            a(f"v_lshl_add_u32 v{vP+j}, v{vlane}, {shift}, s{sT0}")

    a("s_setprio 3")
    a(f"s_mov_b32 s{sMODE}, 0")
    a(f"v_lshlrev_b32 v{vKM}, 4, v{vL}")
    a(f"v_mov_b32 v{vT0}, {OOB:#x}")
    a(f"v_cmp_gt_u32 vcc, 32, v{vL}")
    a(f"v_mov_b32 v{vIDX}, 0xdddddddd")
    a(f"v_mov_b32 v{vCNT}, {L_CNT}")
    a(f"v_cndmask_b32 v{vQT}, v{vT0}, v{vKM}, vcc")
    cnt_arrive(a, vCNT, vT0, off=8)
    a.stamp(6)
    a(f"v_and_b32 v{vT1}, 31, v{vL}")
    pair_addr(512, L_MREC, vT1, 3)
    flag_words(a, vT1, vL)
    a.stamp(7)
    a(f"s_mov_b32 s{sSPIN}, {SPIN}")
    a.label("A_POLL")
    a(f"buffer_load_dword v{vT0}, v{vT1}, {sr(SWS)}, s{sFQ} offen sc1")
    a(f"buffer_load_dword v{vT2}, v{vFL}, {sr(SWS)}, 0 offen sc1")
    a("s_waitcnt vmcnt(0)")
    a(f"v_cmp_ne_u32 s[100:101], s{sNON}, v{vT2}")
    a(f"v_cmp_ne_u32 vcc, s{sNON}, v{vT0}")
    a("s_or_b32 vcc_lo, vcc_lo, s100")
    a("s_cmp_eq_u64 vcc, 0")
    a("s_cbranch_scc1 A_POLLED")
    a("s_sleep 1")
    spin_tail(a, "A_POLL")
    a.label("A_POLLED")
    check_fast(a, vT1, vT0)
    if opt("xdelay"):
        a("s_memrealtime s[100:101]")
        a("s_waitcnt lgkmcnt(0)")
        a(f"s_add_u32 s{sT1}, s100, {optv('xdelay', 0) * 100}")
        a.label("XD")
        a("s_sleep 2")
        a("s_memrealtime s[100:101]")
        a("s_waitcnt lgkmcnt(0)")
        a(f"s_sub_u32 s100, s100, s{sT1}")
        a("s_cmp_lt_i32 s100, 0")
        a("s_cbranch_scc1 XD")
    a.stamp(8)
    a(f"s_cmp_lg_u32 s{sKOK}, 0")
    a("s_cbranch_scc1 A_HAVEKV")
    a.label("A_RELOAD")
    kv_first(a, vKM)
    a.label("A_HAVEKV")
    ldq(0); ldq(1)
    a(f"s_cmp_lg_u32 s{sMODE}, 0")
    a("s_cbranch_scc1 A_TRUEMAX")
    a.c("stand-in for the row max: max over this wave's first 32 keys; checked after the loop, exact-max rerun if unsafe")
    ldq(2); ldq(3)
    a("s_waitcnt vmcnt(4)")
    qk1(0, 0, 0); qk2(0, 0, 0); qk1(1, 0, 1); qk2(1, 0, 1)
    for i in range(4, 8): ldq(i)
    a("s_nop 1")
    rowmax(0, S[2]); rowmax(1, S[2] + 1)
    a(f"v_mov_b32 v{vT0}, v{S[2]}")
    a(f"v_mov_b32 v{vT1}, v{S[2]+1}")
    a("s_nop 0")
    a(f"v_permlane32_swap_b32 v{vT0}, v{S[2]}")
    a(f"v_permlane32_swap_b32 v{vT1}, v{S[2]+1}")
    a(f"v_max_f32 v{S[2]}, v{S[2]}, v{vT0}")
    a(f"v_max_f32 v{S[2]+1}, v{S[2]+1}, v{vT1}")
    a("s_mov_b32 exec_lo, 0")
    for e in range(2): a(f"v_cvt_pk_bf16_f32 v{QT(e)}, -v{S[2]+e}, 0")
    a.label("A_HAVEMAX")
    for e in range(2): a(f"ds_write_b64 v{vP}, {vr(QT(e), 2)} offset:{256*e}")
    a("s_mov_b32 exec_lo, -1")
    cnt_arrive(a, vCNT, vT0)
    a(f"s_add_u32 s{sTGT}, s{sTGT}, 4")
    a(f"s_mov_b32 s{sCNT}, 8")
    a.stamp(9)
    a.stamp(10); a.stamp(NSTAMP + 2, True)
    qk1(0, 0, 0); qk2(0, 0, 0)
    a("s_cmp_lg_u32 0, 0")
    a("s_nop 10")
    a.raw(".p2align 6")
    a.label("A_LOOP")
    PAT0 = (3, 3, 4, 3, 3)
    PAT1 = tuple(int(ch) for ch in sys.argv[sys.argv.index("--pat1") + 1]) if opt("pat1") else PAT0
    PMASK = optv("pmask", 0)
    def slot(sc, nxt, prv, holes, PAT=PAT0):
        e = [0]
        def exps(n):
            for _ in range(n):
                a(f"v_exp_f32 v{S[sc]+e[0]}, v{S[sc]+e[0]}"); e[0] += 1
        ms = [lambda: qk1((sc + 1) & 3, *nxt), lambda: pv(0, (sc - 1) & 3, *prv), lambda: qk2((sc + 1) & 3, *nxt), lambda: pv(1, (sc - 1) & 3, *prv)]
        for j in range(4):
            if nxt is not None or j & 1: ms[j]()
            if j in holes: holes[j]()
            exps(PAT[j])
        holes[4]()
        exps(PAT[4])
    for kb in range(2):
        for q in range(8):
            def hole():
                if q == 0:
                    if kb == 0:
                        a("s_cbranch_scc0 A_FIRST")
                        a.label("A_FIRSTD")
                    a("s_waitcnt vmcnt(2)"); ldv(a, 0, kb ^ 1)
                elif q == 1: ldv(a, 1, kb ^ 1)
                elif q == 2: a(f"s_add_u32 s{sKV}, s{sKV}, {KV_REC}")
                elif q == 3 and kb == 0: a(f"s_sub_u32 s{sCNT}, s{sCNT}, 1")
                elif q == 4 and kb == 0: a(f"s_cmp_eq_u32 s{sCNT}, 0")
                elif q == 4: a("s_cmp_eq_u32 0, 0")
                elif q == 5: a("s_waitcnt vmcnt(2)")
                elif q == 6: ldkm(a, kb, vKM)
                elif q == 7: ldkt(a, kb)
                elif opt("nop"): a("s_nop 0")
            slot(q & 3, ((kb if q < 7 else kb ^ 1), (q + 1) & 7), ((kb if q > 0 else kb ^ 1), (q - 1) & 7), {4: hole}, PAT1 if (PMASK >> q) & 1 else PAT0)
        if kb == 0:
            a.lstamp(sCNT, 0)
            a("s_cbranch_scc1 A_LAST")
    a("s_branch A_LOOP")
    a.label("A_FIRST")
    cnt_wait(a, vCNT, vT0, f"s{sTGT}")
    a("s_waitcnt vmcnt(0)")
    a("s_mov_b32 exec_lo, 0")
    for i in range(2, 8): a(f"ds_read_b64 {vr(QT(i), 2)}, v{vP+i//2} offset:{256*(i&1)}")
    a("s_mov_b32 exec_lo, -1")
    a(f"v_and_b32 v{vT0}, 31, v{vL}")
    a(f"v_mul_u32_u24 v{vT0}, {8*36}, v{vT0}")
    a(f"v_sub_u32 v{vT0}, v{vKM}, v{vT0}")
    a(f"v_add_u32 v{vT0}, {(L_OP - 36*L_MREC) & 0xffffffff:#x}, v{vT0}")
    for j in range(4): a(f"v_mad_u32_u24 v{vP+j}, v{vP+j}, 36, v{vT0}")
    a("s_waitcnt lgkmcnt(0)")
    a.lstamp("8", 0)
    a("s_branch A_FIRSTD")
    a.label("A_LAST")
    def wr(i, j): a(f"ds_write_b128 v{vP+i//2}, {vr(O(i)+4*j, 4)} offset:{(i&1)*9216 + (i//2-1)*3072 + j*1024}")
    seq = [0, 2, 3, 4, 5, 6, 7, 1]
    for n in range(8):
        nxt = (1, seq[n + 1]) if n < 7 else None
        prv = (1, seq[n - 1]) if n > 0 else (0, 7)
        holes = {4: lambda: a("s_nop 0")}
        if n == 0: holes = {4: lambda: (a("s_waitcnt vmcnt(2)"), a(f"ds_read_b32 v{vT0}, v{vCNT}"))}
        if n == 1: holes = {4: lambda: (a("s_waitcnt lgkmcnt(0)"), a(f"v_readfirstlane_b32 s{sT0}, v{vT0}"))}
        if n == 2: holes = {4: lambda: (a(f"s_cmp_lt_u32 s{sT0}, 8"), a("s_cbranch_scc1 A_OWAIT"), a.label("A_OFREE"))}
        if n >= 3:
            i = seq[n - 2]
            holes = {2: lambda: wr(i, 0), 3: lambda: wr(i, 1), 4: lambda: wr(i, 2)}
        slot(n & 3, nxt, prv, holes)
    a("s_nop 1")
    pv(0, 3, 1, 1); pv(1, 3, 1, 1)
    a.stamp(11); a.stamp(NSTAMP + 3, True)
    a("s_nop 1")
    for j in range(3): wr(7, j)
    cnt_arrive(a, vCNT, vT0)
    a(f"s_add_u32 s{sTGT}, s{sTGT}, 4")
    a(f"s_max_u32 s{sTGT}, s{sTGT}, 12")
    a(f"s_mov_b64 {sr(sBAD, 2)}, 0")
    a(f"s_mov_b32 s{sT1}, {f32bits(2.0**100):#x}")
    cnt_wait(a, vCNT, vT0, f"s{sTGT}")
    a.stamp(12)
    RB = [16, 180]
    for e in range(2):
        for s in range(3):
            for j in range(3):
                a(f"ds_read_b128 {vr(RB[e]+12*s+4*j, 4)}, v{vP} offset:{e*9216 + s*3072 + j*1024}")
    Z = 52
    for e in range(2):
        A = O(e); P = 128 + 8 * e
        for s in range(3):
            a(f"s_waitcnt lgkmcnt({min(15, 18 - 9*e - 3*s - 3)})")
            for j in range(6): a(f"v_pk_add_f32 {vr(A+2*j, 2)}, {vr(A+2*j, 2)}, {vr(RB[e]+12*s+2*j, 2)}")
        a(f"v_mov_b32 v{vT0}, v{A+8}")
        a(f"v_mov_b32 v{vT2}, v{A+8}")
        a(f"v_pk_mul_f32 {vr(Z, 2)}, {vr(A, 2)}, 0 op_sel_hi:[1,0]")
        a(f"v_pk_fma_f32 {vr(Z, 2)}, {vr(A+2, 2)}, 0, {vr(Z, 2)} op_sel_hi:[1,0,1]")
        a(f"v_permlane32_swap_b32 v{vT0}, v{vT2}")
        a(f"v_rcp_f32 v{vT3}, v{vT2}")
        a(f"v_cmp_nlt_f32 vcc, v{vT2}, s{sT1}")
        for j in range(2, 6): a(f"v_pk_fma_f32 {vr(Z, 2)}, {vr(A+2*j, 2)}, 0, {vr(Z, 2)} op_sel_hi:[1,0,1]")
        a(f"s_or_b64 {sr(sBAD, 2)}, {sr(sBAD, 2)}, vcc")
        for j in range(6): a(f"v_pk_mul_f32 {vr(A+2*j, 2)}, {vr(A+2*j, 2)}, {vr(vT2, 2)} op_sel:[0,1] op_sel_hi:[1,1]")
        a(f"v_cmp_u_f32 vcc, v{Z}, v{Z+1}")
        for j in range(6): a(f"v_cvt_pk_bf16_f32 v{P+j}, v{A+2*j}, v{A+2*j+1}")
        a(f"s_or_b64 {sr(sBAD, 2)}, {sr(sBAD, 2)}, vcc")
        a(f"s_cmp_lg_u32 s{sMODE}, 0")
        a(f"s_cselect_b64 {sr(sBAD, 2)}, 0, {sr(sBAD, 2)}")
        for j in range(6): a(f"v_min_u32 v{P+j}, -2, v{P+j}")
        L = a.uid("NOST")
        a(f"s_cmp_lg_u64 {sr(sBAD, 2)}, 0")
        a(f"s_cbranch_scc1 {L}")
        stores(a, [f"buffer_store_dwordx4 {vr(P, 4)}, v{vKM}, {sr(SWS)}, s{sOm} offen offset:{1024*e}",
                   f"buffer_store_dwordx2 {vr(P+4, 2)}, v{vQT}, {sr(SWS)}, s{sOt} offen offset:{512*e}"])
        a.label(L)
    a(f"s_cmp_lg_u64 {sr(sBAD, 2)}, 0")
    a(f"s_cselect_b32 s{sBAD}, 0x10001, 1")
    cnt_arrive(a, vCNT, vT0, f"s{sBAD}")
    a.stamp(13)
    a("s_setprio 0")
    a(f"s_add_u32 s{sTGT}, s{sTGT}, 4")
    srd(a, SX, pX, 2048 * 1280)
    cnt_wait(a, vCNT, vT0, f"s{sTGT}")
    a(f"s_lshr_b32 s{sT0}, s{sT0}, 16")
    a(f"s_cmp_lg_u32 s{sMODE}, 0")
    a(f"s_cselect_b32 s{sT0}, 0, s{sT0}")
    a(f"s_cmp_lg_u32 s{sT0}, 0")
    a("s_cbranch_scc1 A_RESTART")
    a.stamp(14)
    if PROFILE and opt("iter"):
        a.ldump(0)
        a(f"s_lshl_b32 s100, s{sW}, 6")
        a("v_add_u32 v0, s100, v1")
    final_stage(a, 0, 16, 32, 20, 21, True, 0)
    a(f"s_cmp_ge_u32 s{sW}, 6")
    a("s_cbranch_scc1 A_F1")
    final_stage(a, 256, 24, 80, 22, 23, True, 0)
    a("s_waitcnt vmcnt(0)")
    final_stage(a, 0, 16, 32, 20, 21, False, 2)
    final_stage(a, 256, 24, 80, 22, 23, False, 2)
    a.stamp(15)
    a("s_barrier")
    a.stamp(16)
    final_stage(a, 0, 16, 32, 20, 21, False, 1)
    final_stage(a, 256, 24, 80, 22, 23, False, 1)
    final_stage(a, 0, 16, 32, 20, 21, False, 11)
    final_stage(a, 256, 24, 80, 22, 23, False, 3)
    a.end()
    a.label("A_F1")
    a("s_waitcnt vmcnt(0)")
    final_stage(a, 0, 16, 32, 20, 21, False, 2)
    a.stamp(15)
    a("s_barrier")
    a.stamp(16)
    final_stage(a, 0, 16, 32, 20, 21, False, 1)
    final_stage(a, 0, 16, 32, 20, 21, False, 3)
    a.end()
    a.label("A_OWAIT")
    cnt_wait(a, vCNT, vT0, 8, 1)
    a("s_branch A_OFREE")
    a.label("A_RESTART")
    a(f"s_mov_b32 s{sMODE}, 1")
    a("s_waitcnt vmcnt(0)")
    att_zero(a)
    a(f"v_and_b32 v{vT1}, 31, v{vL}")
    pair_addr(512, L_MREC, vT1, 3)
    a("s_branch A_RELOAD")
    a.label("A_TRUEMAX")
    for i in range(2, 8): ldq(i)
    M = S[2]
    for i in range(8): a(f"v_mov_b32 v{M+i}, 0xff800000")
    a(f"s_sub_u32 s{sT1}, s{sKV}, {KV_REC}")
    a(f"s_mov_b32 s{sCNT}, 16")
    TK, TT = S[1], S[1] + 4
    a.label("A_TM_LOOP")
    a(f"buffer_load_dwordx4 {vr(TK, 4)}, v{vKM}, {sr(SWS)}, s{sT1} offen sc1")
    a(f"buffer_load_dwordx2 {vr(TT, 2)}, v{avKT}, {sr(SWS)}, s{sT1} offen sc1")
    a("s_waitcnt vmcnt(0)")
    for i in range(8):
        a(f"v_mfma_f32_32x32x16_bf16 {vr(S[0], 16)}, {vr(TK, 4)}, {vr(QM(i), 4)}, 0")
        a(f"v_mfma_f32_32x32x8_bf16 {vr(S[0], 16)}, {vr(TT, 2)}, {vr(QT(i), 2)}, {vr(S[0], 16)}")
        a("s_nop 11")
        for j in range(0, 16, 2): a(f"v_max3_f32 v{M+i}, v{M+i}, v{S[0]+j}, v{S[0]+j+1}")
    a(f"s_add_u32 s{sT1}, s{sT1}, {KV_REC}")
    a(f"s_sub_u32 s{sCNT}, s{sCNT}, 1")
    a(f"s_cmp_lg_u32 s{sCNT}, 0")
    a("s_cbranch_scc1 A_TM_LOOP")
    for i in range(8):
        halfop(a, "v_max_f32", M + i, vT0)
        a(f"v_add_u32 v{vT1}, {L_OP - L_MREC}, v{vP+i//2}")
        a(f"ds_write_b32 v{vT1}, v{M+i} offset:{(i//2)*2048 + (i&1)*256}")
    cnt_arrive(a, vCNT, vT0)
    a(f"s_add_u32 s{sTGT}, s{sTGT}, 4")
    cnt_wait(a, vCNT, vT0, f"s{sTGT}")
    a(f"v_add_u32 v{vT1}, {L_OP - L_MREC}, v{vP}")
    for e in range(2):
        for s in range(1, 4): a(f"ds_read_b32 v{S[0]+4*e+s}, v{vT1} offset:{s*2048 + e*256}")
    a("s_waitcnt lgkmcnt(0)")
    for e in range(2):
        a(f"v_max3_f32 v{M+e}, v{M+e}, v{S[0]+4*e+1}, v{S[0]+4*e+2}")
        a(f"v_max_f32 v{M+e}, v{M+e}, v{S[0]+4*e+3}")
    a("s_mov_b32 exec_lo, 0")
    for e in range(2):
        a(f"v_sub_f32 v{M+e}, 0, v{M+e}")
        split3(a, M + e, vT0, vT1, QT(e), QT(e) + 1)
    a("s_branch A_HAVEMAX")

def gen_ffn(a):
    vL, vL16, vTR, vZ = 1, 2, 3, 7
    vA, vG, vPW, vPW2, X = 4, 5, 0, 6, 8
    vNV, vCNT, vT0, vT1 = 12, 13, 14, 15
    F = lambda t: 16 + 16 * t
    WO = lambda k: 96 + 20 * k
    HB = lambda u: 216 + 4 * u
    SL = lambda j: j & 3
    SWO = SDBG
    def dma_piece(p, slot, vd=fD):
        a(f"s_add_u32 m0, s{sM0}, {L_RING + slot*20480 + p*1024}")
        a("s_nop 0")
        a(f"buffer_load_dwordx4 v{vd+p}, {sr(SA)}, s{sSO} offen lds")
    def trr(dst, slot, t, va=vTR):
        a(f"ds_read_b64_tr_b16 {vr(dst+4*t, 2)}, v{va} offset:{slot*20480 + 64*t}")
        a(f"ds_read_b64_tr_b16 {vr(dst+4*t+2, 2)}, v{va} offset:{slot*20480 + 64*t + 2560}")
    def hload(u):
        a(f"buffer_load_dwordx4 {vr(HB(u), 4)}, v{vL16}, {sr(SWS)}, s{sHO} offen sc1")
        a(f"s_add_u32 s{sHO}, s{sHO}, 1024")
    def stage(i, ks):
        row = 16 + 80 * (ks - 8) if ks >= 8 else 20 * ks
        a(f"s_add_u32 s{sT1}, s{sWOB}, {row*1280}")
        for p in range(5):
            a(f"s_add_u32 m0, s{sM0}, {i*20480 + p*1024}")
            a("s_nop 0")
            a(f"buffer_load_dwordx4 v{(fD2 if ks >= 8 else fD)+p}, {sr(SWO)}, s{sT1} offen lds")
    def mf(t, w, h): a(f"v_mfma_f32_32x32x16_bf16 {vr(F(t), 16)}, {vr(w+4*t, 4)}, {vr(h, 4)}, {vr(F(t), 16)}")
    sWOB = sWBASE
    srd(a, SA, pW2, 1728 * 1280)
    a(f"s_mul_i32 s{sM0}, s{sQ}, 5120")
    a(f"s_mul_i32 s{sCOL}, s{sHG}, 320")
    a(f"s_mul_i32 s{sSO}, s{sQ}, {27*16*1280}")
    a(f"s_add_u32 s{sSO}, s{sSO}, s{sCOL}")
    a(f"s_add_u32 s{sSO}, s{sSO}, {3*16*1280}")
    a(f"s_mov_b32 s{sSTEP}, {16*1280}")
    if opt("xpar"):
        a(f"s_and_b32 s{sT0}, s{sT}, 1")
        a(f"s_mul_i32 s{sT0}, s{sT0}, {16*1280}")
        a(f"s_add_u32 s{sSO}, s{sSO}, s{sT0}")
    for p in range(5): dma_piece(p, 3)
    a(f"s_add_u32 s{sSO}, s{sSO}, s{sSTEP}")
    a("v_mov_b64 v[246:247], 0")
    a(f"v_lshlrev_b32 v{vL16}, 4, v{vL}")
    a(f"v_mov_b32 v{vCNT}, {L_CNT}")
    for t in range(5): zero16(a, F(t), 246)
    a(f"v_mov_b32 v{vTR}, v{fTR}")
    a(f"v_mov_b32 v{vA}, v{fA}")
    a(f"v_mov_b32 v{vG}, v{fG}")
    a(f"v_mov_b32 v{vPW}, v{fPW}")
    a(f"v_add_u32 v{vPW2}, 40960, v{fPW}")
    a(f"v_mov_b32 v{vNV}, s{sNON}")
    a(f"v_mov_b32 v245, 1")
    srd(a, SX, pX, 2048 * 1280)
    srd(a, SB, pOUT, 2048 * 1280)
    srd(a, SWO, pWO, 640 * 1280)
    a(f"s_mul_i32 s{sWOB}, s{sQ}, {160*1280}")
    a(f"s_add_u32 s{sWOB}, s{sWOB}, s{sCOL}")
    a(f"s_lshl_b32 s{sFC}, s{sT}, 2")
    a(f"s_add_u32 s{sFC}, s{sFC}, s{sQ}")
    a(f"s_mul_i32 s{sHO}, s{sQ}, {27*1024}")
    a(f"s_add_u32 s{sHO}, s{sHO}, s{sG}")
    a(f"s_add_u32 s{sHO}, s{sHO}, {20*2048}")
    a.stamp(6)
    cnt_wait(a, vCNT, vT0, 4, 1, off=(8 if opt("nogatem") else 0))
    for _ in range(optv("fd", 0)): a("s_sleep 16")
    a.stamp(7)
    poll(a, fH, vT1, "0", 2)
    check_fast(a, vT1, vT0)
    a.stamp(9)
    if opt("th"):
        a(f"s_mul_i32 s{sT0}, s{sHG}, {54*128}")
        a(f"s_add_u32 s{sT0}, s{sT0}, s{sHO}")
        a(f"v_lshlrev_b32 v{vT0}, 7, v{vL}")
    for u in range(4): hload(u)
    if opt("th"):
        a("s_mov_b32 exec_hi, 0x3fffff")
        a(f"buffer_load_dword v{vT1}, v{vT0}, {sr(SWS)}, s{sT0} offen sc1")
        a("s_mov_b32 exec_hi, -1")
    for t in range(5): trr(WO(0), SL(0), t)
    a(f"s_mov_b32 s{sC}, 0")
    a("s_waitcnt vmcnt(0)")
    a.stamp(10); a.stamp(NSTAMP + 2, True)
    B0 = optv("b0", 1)
    a.raw(".p2align 3")
    a.label("F_LOOP")
    for u in range(4):
        if u == 3:
            a(f"s_cmp_eq_u32 s{sC}, 6")
            a("s_cbranch_scc1 F_DONE")
            a(f"s_cmp_lg_u32 s{sC}, 5")
            a("s_cbranch_scc1 F_NS")
            srd(a, SA, pWO, 640 * 1280)
            a(f"s_mov_b32 s{sSO}, s{sWOB}")
            a(f"s_mov_b32 s{sSTEP}, {20*1280}")
            a(f"s_mov_b32 s{sHO}, 0x40000000")
            a(f"buffer_load_dword v{fH}, v{fO}, {sr(SWS)}, 0 offen sc1")
            a.label("F_NS")
        a("s_waitcnt vmcnt(13) lgkmcnt(0)" if not opt("xhalf") else "s_waitcnt vmcnt(8) lgkmcnt(0)")
        for t in range(5):
            if opt("xdirect"):
                mf(t, WO(u), HB(u))
                a(f"buffer_load_dwordx4 {vr(WO(u)+4*t, 4)}, v{fD+t}, {sr(SA)}, s{sSO} offen")
                a("s_nop 7")
                a("s_nop 1")
                continue
            mf(t, WO(0), HB(u))
            if opt("xnotr"):
                dma_piece(t, SL(u))
                a("s_nop 5")
                continue
            if opt("xhalf") and (u & 1):
                a("s_sleep 1")
                continue
            trr(WO(0), SL(u + 1), t)
            dma_piece(t, SL(u))
        a(f"s_add_u32 s{sSO}, s{sSO}, s{sSTEP}")
        hload(u)
    a(f"s_add_u32 s{sC}, s{sC}, 1")
    a(f"s_sub_u32 s{sT0}, s{sC}, {B0 + 1}")
    a(f"s_cmp_ge_u32 s{sT0}, 3")
    a("s_cbranch_scc1 F_LOOP")
    a(f"s_cmp_eq_u32 s{sT0}, 1")
    a("s_cbranch_scc1 F_X1")
    a(f"s_cmp_eq_u32 s{sT0}, 2")
    a("s_cbranch_scc1 F_X2")
    a(f"s_lshl_b32 s{sT1}, s{sT}, 2")
    a(f"s_add_u32 s{sT1}, s{sT1}, s{sHG}")
    a(f"s_mul_i32 s{sT1}, s{sT1}, 10240")
    a(f"s_mul_i32 s{sT0}, s{sQ}, 3072")
    a(f"s_min_u32 s{sT0}, s{sT0}, 7168")
    a(f"s_add_u32 s{sT0}, s{sT0}, s{sT1}")
    a(f"s_add_u32 s{sT0}, s{sT0}, {WS_O}")
    stores(a, [f"buffer_store_dwordx4 {vr(fBL, 4)}, v{vL16}, {sr(SWS)}, s{sT0} offen offset:{1024*e}" for e in range(3)])
    for i in range(3): stage(i, 5 + i)
    a("s_branch F_LOOP")
    a.label("F_X1")
    for i in range(3):
        for t in range(5): trr(WO(3 + i), i, t, fSTG)
    a(f"s_lshl_b32 s{sT0}, s{sQ}, 2")
    a(f"s_add_u32 s{sT0}, s{sT0}, s{sF2}")
    a("s_mov_b64 exec, 1")
    stores(a, [f"buffer_store_dword v{vNV}, v{vZ}, {sr(SWS)}, s{sT0} offen offset:16"])
    a("s_mov_b64 exec, -1")
    a("s_waitcnt lgkmcnt(0)")
    for i in range(2): stage(i, 8 + i)
    a("s_branch F_LOOP")
    a.label("F_X2")
    for i in range(2):
        for t in range(5): trr(WO(1 + i), i, t, fSTG)
    cnt_wait(a, vCNT, vT0, 4, 1)
    a("s_mov_b64 exec, 1")
    a(f"ds_add_u32 v{vCNT}, v245")
    a("s_mov_b64 exec, -1")
    a("s_branch F_LOOP")
    a.label("F_DONE")
    a.stamp(11); a.stamp(NSTAMP + 3, True)
    a("s_waitcnt lgkmcnt(0)")
    for t in range(5): dma_piece(t, SL(27))
    final_stage(a, 0, X, 0, vA, vG, "load", 0)
    a(f"v_cmp_ne_u32 vcc, s{sNON}, v{fH}")
    a("s_cbranch_vccz F_BOK")
    poll(a, fO, vT1, "0", 4)
    a.label("F_BOK")
    a(f"s_mul_i32 s{sHO}, s{sFC}, 10240")
    a(f"s_add_u32 s{sHO}, s{sHO}, {WS_O}")
    a(f"s_add_u32 s{sSO}, s{sHO}, 4096")
    a(f"s_add_u32 s{sT1}, s{sHO}, 8192")
    a.stamp(12)
    cnt_wait(a, vCNT, vT0, 16, optv("gsleep", 2))
    a(f"s_cmp_lt_u32 s{sT0}, 0x10000")
    a("s_cbranch_scc1 F_NORE")
    cnt_wait(a, vCNT, vT0, 32, 8)
    a.label("F_NORE")
    a.stamp(13)
    order = [0, 8, 9, 5, 6, 7, 1, 2, 3, 4]
    a(f"s_mov_b32 s{sSPIN}, {SPIN}")
    a.label("F_O")
    for k in order:
        so = (sHO, sSO, sT1)[k // 4]
        a(f"buffer_load_dwordx4 {vr(HB(k), 4)}, v{vL16}, {sr(SWS)}, s{so} offen offset:{(k%4)*1024} sc1")
    for n, k in enumerate(order):
        a(f"s_waitcnt vmcnt({9-n})")
        if n == 0:
            a(f"v_max3_u32 v{vT0}, v{HB(k)}, v{HB(k)+1}, v{HB(k)+2}")
            a(f"v_max_u32 v{vT0}, v{vT0}, v{HB(k)+3}")
        else:
            a(f"v_max3_u32 v{vT0}, v{vT0}, v{HB(k)}, v{HB(k)+1}")
            a(f"v_max3_u32 v{vT0}, v{vT0}, v{HB(k)+2}, v{HB(k)+3}")
    a(f"v_cmp_eq_u32 vcc, -1, v{vT0}")
    a("s_cbranch_vccz F_OD")
    if optv("osleep", 2): a(f"s_sleep {optv('osleep', 2)}")
    spin_tail(a, "F_O")
    a.label("F_OD")
    a.stamp(14)
    for n in range(4):
        for t in range(5):
            mf(t, WO(n), HB(order[n]))
            trr(WO(n), SL(28 + n), t)
    def fwr(t, g):
        va, off = (vPW, t * 20480) if t < 2 else (vPW2, (t - 2) * 20480)
        a(f"ds_write_b128 v{va}, {vr(F(t)+4*g, 4)} offset:{off + 32*g}")
    for t in range(5):
        for m, n in enumerate(range(4, 10)):
            if t == 0 and n == 6: a("s_waitcnt lgkmcnt(0)")
            mf(t, WO(n) if n < 6 else WO(n - 6), HB(order[n]))
            if t > 0:
                if m < 2: a("s_nop 4")
                else: fwr(t - 1, m - 2)
    final_stage(a, 0, X, 176, vA, vG, False, 2)
    a("s_nop 3")
    a.stamp(15)
    for g in range(4): fwr(4, g)
    a("s_waitcnt lgkmcnt(0)")
    a("s_barrier")
    a.stamp(16)
    final_stage(a, 0, X, 176, vA, vG, False, 1)
    final_stage(a, 0, X, 176, vA, vG, False, 3)
    a.end()
```

```python
import sys, struct, math

NAME = "parallel_sum__grouped_kv_mqa__dense_activation_relu__prompt"
def opt(name): return ("--" + name) in sys.argv
def optv(name, d): return int(sys.argv[sys.argv.index("--" + name) + 1]) if opt(name) else d
G_TSTRIDE = 75 * 2048
WS_G = 0
WS_KV = 64 * G_TSTRIDE
KV_REC = 3072
WS_O = (WS_KV + 66 * KV_REC + 4095) // 4096 * 4096
WS_RS = WS_O + 64 * 40 * 1024
WS_CP = WS_RS + 2048 * 16
WS_F1 = WS_CP + 64 * 5120
WS_F2 = WS_F1 + 256 * 128
WS_XC = WS_F2 + 256 * 128
WS_PROF = WS_XC + 8 * 128
PROFILE = opt("prof")
NSTAMP = 18
WS_END = WS_PROF + (256 * 8 * 256 if PROFILE else 0)
OOB = 0x80000000
QSCALE = math.log2(math.e) / math.sqrt(20.0)
SPIN = 0x40000
NA = optv("na", 0)
NFIRST = optv("nfirst", 1)


def f32bits(x): return struct.unpack("<I", struct.pack("<f", x))[0]

class Asm:
    def __init__(self): self.lines = []; self.n = 0; self.tail = []; self.p2 = False
    def __call__(self, s): self.lines.append("    " + s)
    def label(self, s): self.lines.append(s + ":")
    def raw(self, s): self.lines.append(s)
    def c(self, s): self.lines.append("    ; " + s)
    def uid(self, p): self.n += 1; return f"{p}_{self.n}"
    def stamp(self, i, cyc=False):
        if opt("st") and self.p2 and i in (14, 15, 16): return
        if PROFILE:
            self(f"s_memtime s[100:101]" if cyc else "s_memrealtime s[100:101]")
            self("s_waitcnt lgkmcnt(0)")
            self(f"s_mov_b32 s{64+i}, s100")
    def lstamp(self, slane, v=14):
        if PROFILE and opt("iter"):
            self("s_memrealtime s[100:101]")
            self("s_waitcnt lgkmcnt(0)")
            self(f"s_mov_b32 m0, {slane}" if isinstance(slane, str) else f"s_mov_b32 m0, s{slane}")
            self(f"v_writelane_b32 v{v}, s100, m0")
    def ldump(self, v=14):
        if PROFILE and opt("iter"):
            self(f"s_lshl_b32 s100, s2, 3")
            self(f"s_add_u32 s100, s100, s{sW}")
            self(f"s_lshl_b32 s100, s100, 8")
            self(f"s_add_u32 s100, s100, {WS_PROF+128}")
            self("v_lshlrev_b32 v15, 2, v1")
            self("s_mov_b64 exec, 0xffff")
            self(f"buffer_store_dword v{v}, v15, s[{SWS}:{SWS+3}], s100 offen")
            self("s_mov_b64 exec, -1")
            self("s_waitcnt vmcnt(0)")
    def end(self):
        if PROFILE:
            self("s_waitcnt vmcnt(0)")
            self.stamp(NSTAMP - 1)
            self(f"s_lshl_b32 s3, s2, 3")
            self(f"s_add_u32 s3, s3, s{sW}")
            self(f"s_lshl_b32 s3, s3, 8")
            self(f"s_add_u32 s3, s3, {WS_PROF}")
            self("s_mov_b64 exec, 1")
            self("v_mov_b32 v1, 0")
            for i in range(NSTAMP + 4):
                self(f"v_mov_b32 v2, s{64+i}")
                self(f"buffer_store_dword v2, v1, s[{SWS}:{SWS+3}], s3 offen offset:{4*i}")
        self("s_endpgm")
    def text(self): return "\n".join(self.lines) + "\n"

def vr(b, n=1): return f"v{b}" if n == 1 else f"v[{b}:{b+n-1}]"
def sr(b, n=4): return f"s{b}" if n == 1 else f"s[{b}:{b+n-1}]"
def srd(a, d, p, size):
    a(f"s_mov_b32 s{d}, s{p}")
    a(f"s_mov_b32 s{d+1}, s{p+1}")
    a(f"s_mov_b32 s{d+2}, {size}")
    a(f"s_mov_b32 s{d+3}, 0x00020000")
def csel(a, d, t, f):
    a(f"s_mov_b32 s{d}, {f}")
    a(f"s_cmov_b32 s{d}, {t}")
def split3(a, src, t0, t1, d0, d1):
    a(f"v_and_b32 v{t0}, 0xffff0000, v{src}")
    a(f"v_sub_f32 v{t1}, v{src}, v{t0}")
    a(f"v_lshrrev_b32 v{d0}, 16, v{src}")
    a(f"v_and_b32 v{t0}, 0xffff0000, v{t1}")
    a(f"v_or_b32 v{d0}, v{d0}, v{t0}")
    a(f"v_sub_f32 v{t1}, v{t1}, v{t0}")
    a(f"v_lshrrev_b32 v{d1}, 16, v{t1}")
def halfop(a, op, r, t):
    a(f"v_mov_b32 v{t}, v{r}")
    a("s_nop 1")
    a(f"v_permlane32_swap_b32 v{t}, v{r}")
    a(f"{op} v{r}, v{r}, v{t}")
def umax(a, dst, regs):
    regs = list(regs)
    a(f"v_max3_u32 v{dst}, v{regs[0]}, v{regs[1]}, v{regs[2]}")
    r = regs[3:]
    while len(r) >= 2:
        a(f"v_max3_u32 v{dst}, v{dst}, v{r[0]}, v{r[1]}"); r = r[2:]
    if r: a(f"v_max_u32 v{dst}, v{dst}, v{r[0]}")

SWS, SA, SB, SX, SDBG = 4, 8, 12, 16, 20
sSI = 3
sW, sNON = 24, 25
sRB, sCG, sTT = 26, 27, 28
sQ = sTT
sT0, sT1, sT2 = 29, 30, 31
pX, pWQ, pWK, pWV, pWO, pW1, pW2, pOUT, pDBG, pWS = 32, 34, 36, 38, 40, 44, 46, 48, 50, 52
sWSTEP, sSO, sSTEP, sM0, sC, sDEL, sCC, sOUT, sFL, sQS = range(54, 64)
sT, sHG, sG, sOB = 86, 87, 92, 93
sF2, sWBASE, sT3, sFAST, sST, sSPIN = 94, 95, 96, 97, 98, 99
sXW, sLO = 53, 52
sPB = 51
sSOW, sM0W = 90, 91
sPm, sBAD, sPt = 34, 38, 42
sOm, sOt, sKV, sTGT = 48, 49, 0, 1
sMODE, sCNT, sFQ, sKOK = 8, 9, 88, 89
sCOL, sHO, sFC = 54, 59, 60

def spin_tail(a, L):
    a(f"s_sub_u32 s{sSPIN}, s{sSPIN}, 1")
    a(f"s_cbranch_scc0 {L}")

def poll(a, vaddr, vtmp, soff, sleep=1):
    L, D = a.uid("POLL"), a.uid("POLLED")
    a(f"s_mov_b32 s{sSPIN}, {SPIN}")
    a.label(L)
    a(f"buffer_load_dword v{vtmp}, v{vaddr}, {sr(SWS)}, {soff} offen sc1")
    a("s_waitcnt vmcnt(0)")
    a(f"v_cmp_ne_u32 vcc, s{sNON}, v{vtmp}")
    a(f"s_cbranch_vccz {D}")
    if sleep: a(f"s_sleep {sleep}")
    spin_tail(a, L)
    a.label(D)

def stores(a, lines):
    L, D = a.uid("SLOW"), a.uid("STD")
    a(f"s_cmp_eq_u32 s{sFAST}, 0")
    a(f"s_cbranch_scc1 {L}")
    fl = {"nt": " nt", "sc0": " sc0", "sc0nt": " sc0 nt"}.get(sys.argv[sys.argv.index("--sf") + 1] if opt("sf") else "", "")
    for l in lines: a(l + (fl if l.startswith("buffer_store_dwordx4") else ""))
    a.label(D)
    a.tail.append((L, [l + (" sc1" if l.startswith("buffer_store") else "") for l in lines], D))

def xcc_word(a):
    a(f"s_getreg_b32 s{sXW}, hwreg(HW_REG_XCC_ID, 0, 4)")
    a(f"s_lshl_b32 s{sXW}, s{sXW}, 1")
    a(f"s_xor_b32 s{sXW}, s{sXW}, s{sNON}")

def check_fast(a, vaddr, vtmp):
    L = a.uid("CF")
    a(f"s_cmp_lg_u32 s{sFAST}, 0")
    a(f"s_cbranch_scc1 {L}")
    a(f"s_and_b32 s{sT0}, s2, 7")
    a(f"s_lshl_b32 s{sT0}, s{sT0}, 7")
    a(f"s_add_u32 s{sT0}, s{sT0}, {WS_XC}")
    a(f"v_and_b32 v{vaddr}, 31, v1")
    a(f"v_lshlrev_b32 v{vaddr}, 2, v{vaddr}")
    a(f"buffer_load_dword v{vtmp}, v{vaddr}, {sr(SWS)}, s{sT0} offen sc1")
    a("s_waitcnt vmcnt(0)")
    a(f"v_cmp_ne_u32 vcc, s{sXW}, v{vtmp}")
    a("s_cmp_eq_u64 vcc, 0")
    a(f"s_cselect_b32 s{sFAST}, {0 if opt('slow') else 1}, 0")
    a.label(L)

K1_SLOT = 36864
K1_XOFF = 20480
K1_CS = 147456
K1_ST = K1_CS + 2048
L_VT = 147456
L_OP = 0
L_RING = 73728
L_FP = L_RING - 20480
L_MREC = L_RING + 81920
L_CNT = L_MREC + 2048
LDS_BYTES = L_CNT + 64
fD, fD2, fH, fO, fSTG, fBL, fTR, fA, fG, fPW = 232, 237, 242, 243, 244, 248, 252, 253, 254, 255

aS = [16, 32, 48, 64]
aO = lambda i: 80 + 12 * i
aQM = lambda i: 180 + 4 * i
aQT = lambda i: 212 + 2 * i
aKM = [228, 242]; aKT = [232, 246]; aV0 = [234, 248]; aV1 = [238, 252]
avV, avKT = 14, 15

def ldkm(a, b, va): a(f"buffer_load_dwordx4 {vr(aKM[b], 4)}, v{va}, {sr(SWS)}, s{sKV} offen sc1")
def ldkt(a, b): a(f"buffer_load_dwordx2 {vr(aKT[b], 2)}, v{avKT}, {sr(SWS)}, s{sKV} offen sc1")
def ldv(a, u, b): a(f"buffer_load_dwordx4 {vr((aV0, aV1)[u][b], 4)}, v{avV}, {sr(SWS)}, s{sKV} offen" + (" offset:768" if u else "") + " sc1")
def kv_first(a, va):
    a(f"s_mul_i32 s{sKV}, s{sQ}, {16*KV_REC}")
    a(f"s_add_u32 s{sKV}, s{sKV}, {WS_KV}")
    ldkm(a, 0, va); ldkt(a, 0); ldv(a, 0, 0); ldv(a, 1, 0)
    a(f"s_add_u32 s{sKV}, s{sKV}, {KV_REC}")
    ldkm(a, 1, va); ldkt(a, 1)
def zero16(a, r, z):
    a(f"v_mfma_f32_32x32x8_bf16 {vr(r, 16)}, {vr(z, 2)}, {vr(z, 2)}, 0")
def att_zero(a):
    z = aV0[1]
    for r in range(z, z + 8, 2): a(f"v_mov_b64 {vr(r, 2)}, 0")
    for r in range(176, 180, 2): a(f"v_mov_b64 {vr(r, 2)}, 0")
    for r in range(aS[3], 176, 16): zero16(a, r, z)

def row_offsets(a, dst, vL, t0, t1, extra, ps=range(5)):
    for p in ps:
        a(f"v_add_u32 v{t0}, {64*p}, v{vL}")
        a(f"v_mul_u32_u24 v{t1}, 3277, v{t0}")
        a(f"v_lshrrev_b32 v{t1}, 16, v{t1}")
        a(f"v_lshlrev_b32 v{t0}, 4, v{t0}")
        a(f"v_mad_u32_u24 v{dst+p}, v{t1}, {extra}, v{t0}")

def item_addr(a, base_item, vA, vG, t):
    if base_item: a(f"v_add_u32 v{vA}, {base_item}, v0")
    else: a(f"v_mov_b32 v{vA}, v0")
    a(f"v_lshrrev_b32 v{t}, 7, v{vA}")
    a(f"v_mul_u32_u24 v{t+1}, 20480, v{t}")
    a(f"v_lshlrev_b32 v{vG}, 6, v{t}")
    a(f"v_and_b32 v{t}, 3, v{vA}")
    a(f"v_lshl_add_u32 v{t+1}, v{t}, 5, v{t+1}")
    a(f"v_lshl_add_u32 v{vG}, v{t}, 4, v{vG}")
    a(f"v_bfe_u32 v{t}, v{vA}, 2, 5")
    a(f"v_mul_u32_u24 v{vA}, 144, v{t}")
    a(f"v_mul_u32_u24 v{t}, 1280, v{t}")
    a(f"v_add_u32 v{vG}, v{vG}, v{t}")
    a(f"v_add3_u32 v{vA}, v{vA}, v{t+1}, s100")

def flag_words(a, dst, vL):
    a(f"s_and_b32 s{sT0}, s{sT}, 2")
    a(f"s_and_b32 s{sT1}, s{sT}, 3")
    a(f"s_add_u32 s{sT1}, s{sT1}, 4")
    a(f"v_bfe_u32 v{dst}, v{vL}, 4, 1")
    a(f"v_add_u32 v{dst}, s{sT0}, v{dst}")
    a("s_mov_b32 exec_lo, 0")
    a(f"v_mov_b32 v{dst}, s{sT1}")
    a("s_mov_b32 exec_lo, -1")
    a(f"v_lshlrev_b32 v{dst}, 2, v{dst}")

def ffn_pre(a, vL, t0, t1):
    a("s_movk_i32 s100, 960")
    row_offsets(a, fD, vL, t0, t1, "s100")
    for p in range(5):
        a(f"v_add_u32 v{t0}, {64*p}, v{vL}")
        a(f"v_mul_u32_u24 v{t0}, 3277, v{t0}")
        a(f"v_lshrrev_b32 v{t0}, 18, v{t0}")
        a(f"v_mul_u32_u24 v{t0}, {16*1280}, v{t0}")
        a(f"v_add_u32 v{fD2+p}, v{fD+p}, v{t0}")
    a(f"v_lshrrev_b32 v{t0}, 5, v{vL}")
    a(f"v_bfe_u32 v{t1}, v{vL}, 2, 2")
    a(f"v_lshl_add_u32 v{t0}, v{t0}, 2, v{t1}")
    a(f"v_mul_u32_u24 v{fSTG}, 320, v{t0}")
    a(f"v_bfe_u32 v{t0}, v{vL}, 4, 1")
    a(f"v_lshl_add_u32 v{fSTG}, v{t0}, 5, v{fSTG}")
    a(f"v_and_b32 v{t0}, 3, v{vL}")
    a(f"v_lshl_add_u32 v{fSTG}, v{t0}, 3, v{fSTG}")
    a(f"s_mul_i32 s{sT1}, s{sQ}, 5120")
    a(f"v_add_u32 v{fSTG}, s{sT1}, v{fSTG}")
    a(f"v_add_u32 v{fTR}, {L_RING}, v{fSTG}")
    a(f"v_mov_b64 {vr(fBL, 2)}, -1")
    a(f"v_mov_b64 {vr(fBL+2, 2)}, -1")
    a(f"s_mul_i32 s{sT0}, s{sQ}, {27*26}")
    a(f"s_lshr_b32 s{sT0}, s{sT0}, 8")
    a(f"s_add_u32 s{sT0}, s{sT0}, 4")
    a(f"v_add_u32 v{fH}, s{sT0}, v{t0}")
    a(f"v_min_u32 v{fH}, 14, v{fH}")
    a(f"s_lshr_b32 s{sT2}, s{sT}, 2")
    a(f"s_lshl_b32 s{sT2}, s{sT2}, 11")
    a(f"s_add_u32 s{sT2}, s{sT2}, {WS_F1 + 32}")
    a(f"v_lshl_add_u32 v{fH}, v{fH}, 7, s{sT2}")
    flag_words(a, t1, vL)
    a(f"v_add_u32 v{fH}, v{fH}, v{t1}")
    a(f"s_lshl_b32 s{sT2}, s{sT}, 2")
    a(f"s_add_u32 s{sT2}, s{sT2}, s{sQ}")
    a(f"s_lshl_b32 s{sT2}, s{sT2}, 7")
    a(f"s_add_u32 s{sT2}, s{sT2}, {WS_F2 + 16}")
    a(f"v_lshl_add_u32 v{fO}, v{t0}, 2, s{sT2}")
    a(f"s_mov_b32 s100, {L_FP}")
    item_addr(a, 0, fA, fG, t0)
    a(f"v_and_b32 v{t0}, 31, v{vL}")
    a(f"v_mul_u32_u24 v{t0}, 144, v{t0}")
    a(f"v_lshrrev_b32 v{t1}, 5, v{vL}")
    a(f"v_lshl_add_u32 v{t0}, v{t1}, 4, v{t0}")
    a(f"s_mul_i32 s{sT1}, s{sQ}, 5120")
    a(f"s_add_u32 s{sT1}, s{sT1}, {L_FP}")
    a(f"v_add_u32 v{fPW}, s{sT1}, v{t0}")

def lines_of(a, fn):
    keep = a.lines; a.lines = []
    fn()
    got = a.lines; a.lines = keep
    assert not any(("exec" in l or "scc" in l or "s_cselect" in l or "s_cmov" in l or l.endswith(":")) for l in got), got
    return [(lambda l=l: a.lines.append(l)) for l in got]

class Stream:
    def __init__(self): self.q = []
    def add(self, items): self.q += items
    def emit(self, n):
        for _ in range(min(n, len(self.q))): self.q.pop(0)()
    def flush(self): self.emit(len(self.q))

def gen_p1(a):
    vL, vN, vH, vT0, vT1, vT2, vZ = 1, 2, 3, 4, 5, 6, 7
    vX, vD = 8, 16
    vNON, vROW, vFL, vFV = 21, 22, 23, 22
    vG16, vC4 = 26, 27
    vDW = 56
    FB = [28, 32]
    a(f"s_cmp_ge_u32 s2, 256")
    a("s_cbranch_scc1 L_END")
    a("s_load_dwordx16 s[32:47], s[0:1], 0")
    a("s_load_dwordx4 s[48:51], s[0:1], 64")
    a("s_load_dwordx2 s[52:53], s[0:1], 80")
    a("s_memrealtime s[100:101]")
    a(f"v_lshrrev_b32 v{vT0}, 6, v0")
    a(f"v_and_b32 v{vL}, 63, v0")
    a(f"v_readfirstlane_b32 s{sW}, v{vT0}")
    a(f"s_and_b32 s{sT1}, s2, 7")
    a(f"s_bfe_u32 s{sSI}, s2, 0x10003")
    a(f"s_lshl_b32 s{sCC}, s{sT1}, 1")
    a(f"s_add_u32 s{sRB}, s{sCC}, s{sSI}")
    a(f"s_lshr_b32 s{sCG}, s2, 4")
    a(f"s_sub_u32 s{sT0}, s{sRB}, 9")
    a(f"s_cmp_ge_u32 s{sRB}, 10")
    a(f"s_cselect_b32 s{sCC}, s{sT0}, s{sRB}")
    a(f"s_mov_b32 s{sST}, s{sCC}")
    a(f"s_and_b32 s{sTT}, s{sW}, 3")
    a(f"s_lshl_b32 s{sT0}, s{sRB}, 2")
    a(f"s_add_u32 s{sT3}, s{sT0}, s{sTT}")
    a(f"s_cmp_lt_u32 s{sW}, 4")
    a("s_cbranch_scc1 P1_A")

    def xpiece(p):
        a(f"s_add_u32 m0, s{sM0}, {1024*p}")
        a("s_nop 0")
        a(f"buffer_load_dwordx4 v{vD+p}, {sr(SX)}, s{sSO} offen lds")
    def wpiece(p, kv=False):
        a(f"s_add_u32 m0, s{sM0W}, {(4096 if kv else 1024)*p}")
        a("s_nop 0")
        if kv: a(f"buffer_load_dwordx4 v{vDW}, {sr(SA if p == 0 else SB)}, s{sSOW} offen lds")
        else: a(f"buffer_load_dwordx4 v{vDW+p}, {sr(SA)}, s{sSOW} offen lds")
    def next_chunk(x, w, dm0):
        a(f"s_add_u32 s{sCC}, s{sCC}, 1")
        a(f"s_cmp_eq_u32 s{sCC}, 10")
        a(f"s_cselect_b32 s{sCC}, 0, s{sCC}")
        if x:
            a(f"s_lshl_b32 s{sSO}, s{sCC}, 7")
            a(f"s_add_u32 s{sM0}, s{sM0}, {dm0}")
        if w:
            a(f"s_mul_i32 s{sSOW}, s{sCC}, s{sWSTEP}")
            a(f"s_add_u32 s{sSOW}, s{sSOW}, s{sWBASE}")
            a(f"s_add_u32 s{sM0W}, s{sM0W}, {dm0}")
    def w_setup(wait):
        a(f"s_sub_u32 s{sT0}, s{sCG}, 4")
        a(f"s_cmp_lt_u32 s{sCG}, 4")
        csel(a, sT2, 1280, 3456)
        a(f"s_cselect_b32 s{sT0}, s{sCG}, s{sT0}")
        a(f"s_mul_i32 s{sT0}, s{sT0}, 320")
        a(f"s_lshl_b32 s{sWBASE}, s{sTT}, 4")
        a(f"s_mul_i32 s{sWBASE}, s{sWBASE}, s{sT2}")
        a(f"s_add_u32 s{sWBASE}, s{sWBASE}, s{sT0}")
        a(f"s_lshl_b32 s{sWSTEP}, s{sT2}, 6")
        a(f"s_sub_u32 s{sT2}, s{sT2}, 320")
        row_offsets(a, vDW, vL, vT0, vT1, f"s{sT2}")
        a(f"s_mul_i32 s{sSOW}, s{sCC}, s{sWSTEP}")
        a(f"s_add_u32 s{sSOW}, s{sSOW}, s{sWBASE}")
        a(f"s_mul_i32 s{sM0W}, s{sTT}, 5120")
        a(f"s_cmp_lt_u32 s{sCG}, 4")
        if wait: a("s_waitcnt lgkmcnt(0)")
        a(f"s_cselect_b32 s{SA}, s{pWQ}, s{pW1}")
        a(f"s_cselect_b32 s{SA+1}, s{pWQ+1}, s{pW1+1}")
        csel(a, SA + 2, 640 * 640 * 2, 640 * 1728 * 2)
        a(f"s_mov_b32 s{SA+3}, 0x00020000")
    def st01():
        if PROFILE: a("s_mov_b32 s64, s100")
        a.stamp(1)

    RW = 192
    a(f"s_lshl_b32 s{sT0}, s{sT3}, 5")
    a(f"v_lshrrev_b32 v{vT0}, 3, v{vL}")
    a(f"v_add_u32 v{vT0}, s{sT0}, v{vT0}")
    a(f"v_mul_u32_u24 v{vT0}, 1280, v{vT0}")
    a(f"v_lshrrev_b32 v{vT1}, 4, v{vL}")
    a(f"v_and_b32 v{vT2}, 7, v{vL}")
    a(f"v_xor_b32 v{vT1}, v{vT1}, v{vT2}")
    a(f"v_lshl_add_u32 v{vD}, v{vT1}, 4, v{vT0}")
    a(f"v_xor_b32 v{vT1}, 4, v{vT1}")
    a(f"v_lshl_add_u32 v{vD+1}, v{vT1}, 4, v{vT0}")
    a(f"v_add_u32 v{vD+1}, {8*1280}, v{vD+1}")
    a(f"v_add_u32 v{vD+2}, {16*1280}, v{vD}")
    a(f"v_add_u32 v{vD+3}, {16*1280}, v{vD+1}")
    a(f"s_lshl_b32 s{sSO}, s{sCC}, 7")
    a(f"s_lshl_b32 s{sM0}, s{sTT}, 12")
    a(f"s_add_u32 s{sM0}, s{sM0}, {K1_XOFF}")
    a("s_waitcnt lgkmcnt(0)")
    srd(a, SX, pX, 2048 * 1280)
    st01()
    for p in range(4): xpiece(p)
    a("s_barrier")
    a(f"s_cmp_eq_u32 s{sCG}, 15")
    a("s_cbranch_scc1 P1_KB")
    a("s_branch P1_GB")
    a.label("P1_A")
    a(f"s_cmp_eq_u32 s{sCG}, 15")
    a("s_cbranch_scc1 P1_KA0")
    w_setup(True)
    st01()
    for p in range(5): wpiece(p)
    a("s_barrier")

    def tr_addr(dst, tile):
        a(f"s_cmp_lt_u32 s{sCG}, 4")
        if tile == 4:
            a(f"s_cselect_b32 s{sT0}, 32, 0x100")
            a(f"s_cselect_b32 s{sT1}, 160, 32")
            a(f"s_cselect_b32 s{sT2}, 40, 8")
            a(f"v_mad_u32_u24 v{dst}, v{vC4}, s{sT2}, v{vROW}")
        else:
            a(f"s_cselect_b32 s{sT1}, 40, 32")
            if isinstance(tile, tuple):
                a(f"s_lshl_b32 s{sT0}, s{sT1}, 1")
                a(f"s_mul_i32 s{sT0}, s{sT0}, s{tile[1]}")
            else:
                a(f"s_mul_i32 s{sT0}, s{sT1}, {2*tile}")
            a(f"v_lshl_add_u32 v{dst}, v{vC4}, 3, v{vROW}")
        a(f"v_mad_u32_u24 v{dst}, v{vG16}, s{sT1}, v{dst}")
        a(f"v_add_u32 v{dst}, s{sT0}, v{dst}")

    def body(tag, role, kv):
        A_, B_ = role == "A", role == "B"
        nt = 1 if (kv or B_) else 4
        tiles = [0] if kv else ([0, 1, 2, 3] if A_ else [4])
        sstr, rstr = (1024, 40) if kv else (5120, 320)
        vTR = 16 if A_ else 12
        vSA = 13
        FA = [128, 144] if A_ else [36, 40]
        ACC, P = (64, 160) if A_ else (180, 212)
        GAT = 228
        ST, NM, CSR = (36, 40, 44) if A_ else (44, 48, 50)
        ONE, PUB = 24, 52
        nxt = "P2_FFN" if A_ else "P2_ATT"
        def m4(d, x, y):
            a(f"v_mfma_f32_4x4x4_16b_bf16 {vr(d, 4)}, {vr(x, 2)}, {vr(y, 2)}, {vr(d, 4)}")
        def get_nonce(publish):
            L, D = a.uid("NON"), a.uid("NOND")
            a(f"s_mov_b32 s{sSPIN}, {SPIN}")
            a.label(L)
            a(f"v_readfirstlane_b32 s{sNON}, v{vNON}")
            a(f"s_cmp_lg_u32 s{sNON}, 0")
            a(f"s_cbranch_scc1 {D}")
            a(f"buffer_load_dword v{vNON}, v{vZ}, {sr(SDBG)}, 0 offen sc1")
            a("s_waitcnt vmcnt(0)")
            spin_tail(a, L)
            a.label(D)
            xcc_word(a)
            if publish:
                L = a.uid("XW")
                a(f"s_cmp_lg_u32 s{sW}, 0")
                a(f"s_cbranch_scc1 {L}")
                a(f"s_and_b32 s{sT0}, s2, 7")
                a(f"s_lshl_b32 s{sT0}, s{sT0}, 5")
                a(f"s_lshr_b32 s{sT1}, s2, 3")
                a(f"s_add_u32 s{sT0}, s{sT0}, s{sT1}")
                a(f"s_lshl_b32 s{sT0}, s{sT0}, 2")
                a(f"s_add_u32 s{sT0}, s{sT0}, {WS_XC}")
                a(f"v_mov_b32 v{vT1}, s{sXW}")
                a("s_mov_b64 exec, 1")
                a(f"buffer_store_dword v{vT1}, v{vZ}, {sr(SWS)}, s{sT0} offen sc1")
                a("s_mov_b64 exec, -1")
                a.label(L)
        def row_stats(part=None):
            for p, f in enumerate((rs0, rs1, rs2, rs3)):
                if part is None or part == p: f()
        SU, SQ, R = RW + 10, RW + 11, RW + 12
        def rs0():
            a(f"v_mov_b64 {vr(SU, 2)}, 0")
            for j in range(10):
                a(f"v_dot2c_f32_bf16 v{SU}, v{ONE}, v{RW+j}")
                a(f"v_dot2c_f32_bf16 v{SQ}, v{RW+j}, v{RW+j}")
            a("s_nop 2")
        def rs1():
            for m in ("row_shr:1", "row_shr:2", "row_shr:4", "row_shr:8"):
                a(f"v_add_f32_dpp v{SU}, v{SU}, v{SU} {m} row_mask:0xf bank_mask:0xf bound_ctrl:0")
                a(f"v_add_f32_dpp v{SQ}, v{SQ}, v{SQ} {m} row_mask:0xf bank_mask:0xf bound_ctrl:0")
                a("s_nop 0")
            a(f"v_add_f32_dpp v{SU}, v{SU}, v{SU} row_bcast:15 row_mask:0xa bank_mask:0xf")
            a(f"v_add_f32_dpp v{SQ}, v{SQ}, v{SQ} row_bcast:15 row_mask:0xa bank_mask:0xf")
        def rs2():
            a(f"v_mul_f32 v{SU}, {f32bits(1.0/640):#x}, v{SU}")
            a(f"v_mul_f32 v{SQ}, {f32bits(1.0/640):#x}, v{SQ}")
            a(f"v_fma_f32 v{SQ}, -v{SU}, v{SU}, v{SQ}")
            a(f"v_max_f32 v{SQ}, 0, v{SQ}")
            a(f"v_cvt_pk_bf16_f32 v{R}, -v{SU}, -v{SU}")
            a(f"v_cvt_pk_bf16_f32 v{SQ}, v{SQ}, v{SQ}")
            a(f"v_and_b32 v{SQ}, 0xffff0000, v{SQ}")
            a(f"v_add_f32 v{SQ}, {f32bits(1e-5):#x}, v{SQ}")
            a(f"v_cvt_pk_bf16_f32 v{SQ}, v{SQ}, v{SQ}")
            a(f"v_and_b32 v{SQ}, 0xffff0000, v{SQ}")
            a(f"v_sqrt_f32 v{SQ}, v{SQ}")
            a("s_nop 0")
            a(f"v_cvt_pk_bf16_f32 v{SQ}, v{SQ}, v{SQ}")
            a(f"v_and_b32 v{SQ}, 0xffff0000, v{SQ}")
            a(f"v_rcp_f32 v{R+2}, v{SQ}")
        def rs3():
            a(f"v_mov_b32 v{R+1}, v{vNON}")
            a(f"v_mov_b32 v{R+3}, v{vNON}")
            a(f"v_lshlrev_b32 v{vT1}, 4, v{vH}")
            a(f"s_lshl_b32 s{sT0}, s{sSTEP}, 5")
            a(f"s_add_u32 s{sT0}, s{sT0}, {WS_RS}")
            a("s_mov_b32 exec_lo, 0x80000000")
            a("s_mov_b32 exec_hi, 0x80000000")
            a(f"buffer_store_dwordx4 {vr(R, 4)}, v{vT1}, {sr(SWS)}, s{sT0} offen sc1")
            a("s_mov_b64 exec, -1")
        def row_load(dst):
            a(f"s_lshl_b32 s{sT0}, s{sT3}, 9")
            a(f"s_add_u32 s{sT0}, s{sT0}, {WS_RS}")
            a(f"v_lshlrev_b32 v{vT0}, 4, v{vN}")
            a(f"buffer_load_dwordx4 {vr(dst, 4)}, v{vT0}, {sr(SWS)}, s{sT0} offen sc1")
        def tag_check(regs, again, ok):
            a(f"v_xor_b32 v{vT1}, s{sNON}, v{regs[0]}")
            for r in regs[1:]: a(f"v_bitop3_b32 v{vT1}, v{r}, s{sNON}, v{vT1} bitop3:0xbe")
            a(f"v_cmp_ne_u32 vcc, 0, v{vT1}")
            a(f"s_cbranch_vccz {ok}")
            a("s_sleep 2")
            spin_tail(a, again)
            a.label(ok)
        def next_slot():
            a(f"s_and_b32 s{sT0}, s{sC}, 3")
            csel(a, sT1, K1_SLOT, -3*K1_SLOT)
            a(f"s_cmp_eq_u32 s{sT0}, 3")
            csel(a, sDEL, -3*K1_SLOT, K1_SLOT)
            for s in range(4): a(f"v_add_u32 v{vX+s}, s{sDEL}, v{vX+s}")
            for i in range(nt): a(f"v_add_u32 v{vTR+i}, s{sDEL}, v{vTR+i}")
        if A_:
            srd(a, SX, pX, 2048 * 1280)
            a(f"s_lshl_b32 s{sT0}, s{sRB}, 4")
            a(f"s_add_u32 s{sT0}, s{sT0}, s{sCG}")
            a(f"s_lshl_b32 s{sT0}, s{sT0}, 2")
            a(f"s_add_u32 s{sSTEP}, s{sT0}, s{sTT}")
            a(f"s_mul_i32 s{sT0}, s{sSTEP}, 2560")
            a(f"v_mul_u32_u24 v{vT0}, 40, v{vL}")
            a(f"buffer_load_dwordx4 {vr(RW, 4)}, v{vT0}, {sr(SX)}, s{sT0} offen")
            a(f"buffer_load_dwordx4 {vr(RW+4, 4)}, v{vT0}, {sr(SX)}, s{sT0} offen offset:16")
            a(f"buffer_load_dwordx2 {vr(RW+8, 2)}, v{vT0}, {sr(SX)}, s{sT0} offen offset:32")
        if opt("wsoff"):
            a(f"s_add_u32 s{pWS}, s{pWS}, {optv('wsoff', 0) << 20}")
            a(f"s_addc_u32 s{pWS+1}, s{pWS+1}, 0")
        srd(a, SWS, pWS, WS_END)
        srd(a, SDBG, pDBG, 256)
        a(f"v_mov_b32 v{vZ}, 0")
        if A_ and not kv:
            L = a.uid("NONCE")
            a(f"s_or_b32 s{sT0}, s2, s{sW}")
            a(f"s_cbranch_scc1 {L}")
            if PROFILE: a("s_or_b32 s100, s65, 1")
            else: a("s_or_b32 s100, s100, 1")
            a(f"v_mov_b32 v{vT0}, s100")
            a(f"buffer_store_dword v{vT0}, v{vZ}, {sr(SDBG)}, 0 offen sc1")
            a.label(L)
        a(f"v_mov_b64 {vr(PUB, 2)}, 0")
        a(f"v_mov_b64 {vr(PUB+2, 2)}, 0")
        a(f"v_and_b32 v{vN}, 31, v{vL}")
        a(f"v_lshrrev_b32 v{vH}, 5, v{vL}")
        for i in range(nt): zero16(a, ACC + 16 * i, PUB)
        if B_ or kv: zero16(a, P, PUB)
        a(f"v_mov_b32 v{ONE}, 0x3f803f80")
        a(f"v_mov_b32 v{ONE+1}, 0x3f803f80")
        a(f"v_bfe_u32 v{vT0}, v{vL}, 1, 3")
        a(f"v_xor_b32 v{vT0}, v{vT0}, v{vH}")
        if A_ and not kv:
            a(f"s_and_b32 s{sT0}, s{sTT}, 2")
            a(f"s_lshl_b32 s{sT0}, s{sT0}, 12")
        else:
            a(f"s_lshl_b32 s{sT0}, s{sTT}, 12")
        a(f"s_add_u32 s{sT0}, s{sT0}, {K1_XOFF}")
        a(f"v_lshl_add_u32 v{vT1}, v{vN}, 7, s{sT0}")
        for s in range(4):
            a(f"v_xor_b32 v{vT2}, {2*s}, v{vT0}")
            a(f"v_lshl_add_u32 v{vX+s}, v{vT2}, 4, v{vT1}")
        a(f"v_bfe_u32 v{vT0}, v{vL}, 2, 2")
        a(f"v_lshl_add_u32 v{vROW}, v{vH}, 3, v{vT0}")
        a(f"v_bfe_u32 v{vG16}, v{vL}, 4, 1")
        a(f"v_and_b32 v{vC4}, 3, v{vL}")
        if kv:
            a(f"v_lshl_add_u32 v{vT0}, v{vG16}, 2, v{vC4}")
            a(f"v_min_u32 v{vT0}, 4, v{vT0}")
            a(f"v_mul_u32_u24 v{vROW}, 40, v{vROW}")
            a(f"v_lshl_add_u32 v{vTR}, v{vT0}, 3, v{vROW}")
            if B_: a(f"v_add_u32 v{vTR}, 4096, v{vTR}")
        else:
            a(f"v_mul_u32_u24 v{vROW}, 320, v{vROW}")
            if A_:
                a(f"s_and_b32 s{sDEL}, s{sTT}, 1")
                a(f"s_lshl_b32 s{sDEL}, s{sDEL}, 1")
                tr_addr(vTR, ("s", sDEL))
                a(f"s_lshl_b32 s{sT1}, s{sT1}, 1")
                a(f"v_add_u32 v{vTR+1}, s{sT1}, v{vTR}")
            else:
                tr_addr(vTR, 4)
            if B_:
                tr_addr(vSA, ("s", sTT))
                w_setup(False)
        next_chunk(B_, A_ or not kv, K1_SLOT)
        if B_:
            for p in range(4): xpiece(p)
        else:
            for p in range(2 if kv else 5): wpiece(p, kv)
        next_chunk(B_, A_ or not kv, K1_SLOT)
        a(f"s_and_b32 s{sT}, s2, 7")
        a(f"s_lshl_b32 s{sT}, s{sT}, 3")
        a(f"s_lshr_b32 s{sT0}, s2, 5")
        a(f"s_add_u32 s{sT}, s{sT}, s{sT0}")
        a(f"s_bfe_u32 s{sHG}, s2, 0x20003")
        a(f"s_mul_i32 s{sG}, s{sT}, {G_TSTRIDE}")
        a(f"s_mul_i32 s{sOB}, s{sT}, {32*1280}")
        a(f"s_mul_i32 s{sT0}, s{sHG}, 320")
        a(f"s_add_u32 s{sOB}, s{sOB}, s{sT0}")
        a(f"s_lshl_b32 s{sF2}, s{sT}, 2")
        a(f"s_add_u32 s{sF2}, s{sF2}, s{sHG}")
        a(f"s_lshl_b32 s{sF2}, s{sF2}, 7")
        a(f"s_add_u32 s{sF2}, s{sF2}, {WS_F2}")
        a(f"s_mul_i32 s{sOUT}, s{sT3}, {G_TSTRIDE}")
        a(f"s_mul_i32 s{sT0}, s{sCG}, 10240")
        a(f"s_add_u32 s{sOUT}, s{sOUT}, s{sT0}")
        a(f"s_cmp_lt_u32 s{sCG}, 4")
        a(f"s_cselect_b32 s{sQS}, {f32bits(QSCALE):#x}, 1.0")
        a(f"s_lshl_b32 s{sFL}, s{sRB}, 4")
        a(f"s_add_u32 s{sFL}, s{sFL}, s{sCG}")
        a(f"s_lshl_b32 s{sFL}, s{sFL}, 7")
        a(f"s_add_u32 s{sFL}, s{sFL}, {WS_F1}")
        a(f"s_mov_b32 s{sFAST}, 0")
        a(f"s_mov_b32 s{sC}, 0")
        if B_:
            srd(a, SB, pOUT, 2048 * 1280)
        elif not kv:
            ffn_pre(a, vL, vT0, vT1)
        def att_setup(part=None):
            for p, f in enumerate((as0, as1, as2, as3, as4)):
                if part is None or part == p: f()
        def as0():
            att_zero(a)
            a(f"v_mul_u32_u24 v{avV}, 384, v{vH}")
            a(f"v_lshl_add_u32 v{avV}, v{vN}, 4, v{avV}")
            a(f"v_add_u32 v{avV}, 1024, v{avV}")
            a(f"v_mov_b32 v{vT0}, {OOB:#x}")
            a(f"v_cmp_gt_u32 vcc, 21, v{vN}")
            a(f"v_min_u32 v{avKT}, 32, v{vL}")
            a(f"v_lshlrev_b32 v{avKT}, 3, v{avKT}")
            a(f"v_cndmask_b32 v{avV}, v{vT0}, v{avV}, vcc")
            a(f"v_add_u32 v{avKT}, 2560, v{avKT}")
        def as1(): pairs((0, 1))
        def pairs(js):
            a(f"s_mul_i32 s{sT2}, s{sHG}, 10240")
            a(f"s_add_u32 s{sT2}, s{sT2}, s{sG}")
            for j in js:
                a(f"s_add_u32 s{sT0}, s{sQ}, {j}")
                a(f"s_and_b32 s{sT0}, s{sT0}, 3")
                a(f"s_lshl_b32 s{sPm+j}, s{sT0}, 11")
                a(f"s_add_u32 s{sPm+j}, s{sPm+j}, s{sT2}")
                a(f"s_lshr_b32 s{sT1}, s{sT0}, 1")
                a(f"s_lshl_b32 s{sT1}, s{sT1}, 10")
                a(f"s_and_b32 s{sT0}, s{sT0}, 1")
                a(f"s_lshl_b32 s{sT0}, s{sT0}, 3")
                a(f"s_add_u32 s{sT1}, s{sT1}, s{sT0}")
                a(f"s_add_u32 s{sT1}, s{sT1}, s{sT2}")
                a(f"s_add_u32 s{sPt+j}, s{sT1}, 8192")
        def as2(): pairs((2, 3))
        def as3():
            a(f"s_mul_i32 s{sT2}, s{sT}, 40960")
            a(f"s_add_u32 s{sT2}, s{sT2}, {WS_O}")
            a(f"s_sub_u32 s{sT2}, s{sT2}, s{sG}")
            a(f"s_add_u32 s{sOm}, s{sPm}, s{sT2}")
            a(f"s_add_u32 s{sOt}, s{sPt}, s{sT2}")
            a(f"s_mov_b32 s{sTGT}, 0")
            a(f"v_mov_b32 v{vT0}, {L_CNT}")
            a(f"ds_write_b128 v{vT0}, {vr(aV0[1], 4)}")
            a(f"s_lshr_b32 s{sT0}, s{sT}, 2")
            a(f"s_lshl_b32 s{sT0}, s{sT0}, 4")
            a(f"s_add_u32 s{sT0}, s{sT0}, s{sHG}")
            a(f"s_lshl_b32 s{sT0}, s{sT0}, 7")
            a(f"s_add_u32 s{sFQ}, s{sT0}, {WS_F1 + 32}")
        def as4():
            a(f"v_and_b32 v{vT0}, 15, v{vL}")
            a(f"v_lshlrev_b32 v{vT0}, 11, v{vT0}")
            a(f"v_add_u32 v{vT0}, {WS_F1 + 15*128}, v{vT0}")
            a(f"s_and_b32 s{sT0}, s2, 7")
            a(f"s_lshl_b32 s{sT0}, s{sT0}, 7")
            a(f"s_add_u32 s{sT0}, s{sT0}, {WS_XC}")
            a(f"v_cmp_gt_u32 vcc, 32, v{vL}")
            a(f"v_lshl_add_u32 v{vT1}, v{vN}, 2, s{sT0}")
            a("s_nop 0")
            a(f"v_cndmask_b32 v{vFL}, v{vT1}, v{vT0}, vcc")

        if kv:
            nd = 4 if B_ else 2
            XB, WA = [28, ACC + 16], [128, 144] if A_ else [96, 112]
            def pieces(rng):
                for p in rng:
                    if p < nd: xpiece(p) if B_ else wpiece(p, True)
            pieces(range(4))
            next_chunk(B_, A_, K1_SLOT)
            a(f"s_waitcnt vmcnt({2*nd + (3 if A_ else 0)})")
            a.stamp(2)
            a("s_barrier")
            a.stamp(3); a.stamp(NSTAMP, True)
            for s in range(4):
                a(f"ds_read_b128 {vr(XB[0]+4*s, 4)}, v{vX+s}")
                a(f"ds_read_b64_tr_b16 {vr(WA[0]+4*s, 2)}, v{vTR} offset:{s*sstr}")
                a(f"ds_read_b64_tr_b16 {vr(WA[0]+4*s+2, 2)}, v{vTR} offset:{s*sstr+4*rstr}")
            a(f"buffer_load_dword v{vNON}, v{vZ}, {sr(SDBG)}, 0 offen sc1")
            pieces(range(4))
            a.label(f"P1_L{tag}")
            for b in range(2):
                next_slot()
                next_chunk(B_, A_, f"s{sT1}")
                L = a.uid("KS")
                a(f"s_cmp_lt_u32 s{sC}, 6")
                a("s_cselect_b64 vcc, -1, 0")
                a(f"s_cmp_lt_u32 s{sC}, 7")
                a(f"s_cbranch_scc1 {L}")
                a(f"s_waitcnt vmcnt({nd if b else 1})")
                a.label(L)
                a(f"s_waitcnt vmcnt({2*nd}) lgkmcnt(0)")
                a("s_barrier")
                for s in range(4):
                    a(f"v_mfma_f32_32x32x16_bf16 {vr(ACC, 16)}, {vr(WA[b]+4*s, 4)}, {vr(XB[b]+4*s, 4)}, {vr(ACC, 16)}")
                    a(f"ds_read_b128 {vr(XB[b^1]+4*s, 4)}, v{vX+s}")
                    a(f"ds_read_b64_tr_b16 {vr(WA[b^1]+4*s, 2)}, v{vTR} offset:{s*sstr}")
                    a(f"ds_read_b64_tr_b16 {vr(WA[b^1]+4*s+2, 2)}, v{vTR} offset:{s*sstr+4*rstr}")
                L = a.uid("KP")
                a(f"s_cbranch_vccz {L}")
                pieces(range(4))
                a.label(L)
                for j in range(8): m4(P + 4*(j & 3), ONE, WA[b]+2*j)
                if b == 1:
                    L, L2 = a.uid("KN"), a.uid("KR")
                    a(f"s_cmp_lg_u32 s{sC}, 1")
                    a(f"s_cbranch_scc1 {L}")
                    get_nonce(A_)
                    if A_: row_stats()
                    a.label(L)
                    a(f"s_cmp_lg_u32 s{sC}, 7")
                    a(f"s_cbranch_scc1 {L2}")
                    row_load(ST + 16)
                    a.label(L2)
                if A_: a.lstamp(sC)
                a(f"s_add_u32 s{sC}, s{sC}, 1")
            a(f"s_cmp_lt_u32 s{sC}, 10")
            a(f"s_cbranch_scc1 P1_L{tag}")
            a.stamp(4); a.stamp(NSTAMP + 1, True)
            if A_: a.ldump()
            R = ST + 16
            a(f"s_mov_b32 s{sSPIN}, {SPIN}")
            a(f"s_branch P1_GW{tag}")
            a.label(f"P1_GA{tag}")
            row_load(R)
            a.label(f"P1_GW{tag}")
            a("s_waitcnt vmcnt(0) lgkmcnt(0)")
            tag_check([R + 1, R + 3], f"P1_GA{tag}", f"P1_FOK{tag}")
            a(f"v_add_f32 v{P}, v{P}, v{P+4}")
            a(f"v_add_f32 v{P+8}, v{P+8}, v{P+12}")
            a(f"v_add_f32 v{P}, v{P}, v{P+8}")
            split3(a, P, vT0, vT1, CSR, CSR + 1)
            a(f"v_mov_b32 v{R+1}, v{R}")
            a(f"v_mov_b32 v{R+3}, v{R+2}")
            a(f"v_lshlrev_b32 v{vT2}, 4, v{vL}")
            a(f"v_mfma_f32_32x32x8_bf16 {vr(ACC, 16)}, {vr(CSR, 2)}, {vr(R, 2)}, {vr(ACC, 16)}")
            a("s_nop 9")
            a(f"s_mul_i32 s{sT0}, s{sT3}, {KV_REC}")
            a(f"s_add_u32 s{sT0}, s{sT0}, {WS_KV}")
            for j in range(6): a(f"v_pk_mul_f32 {vr(ACC+2*j, 2)}, {vr(ACC+2*j, 2)}, {vr(R+2, 2)}")
            if A_:
                for j in range(6): a(f"v_cvt_pk_bf16_f32 v{P+j}, v{ACC+2*j}, v{ACC+2*j+1}")
                a(f"v_min_u32 v{vT0}, 32, v{vL}")
                a(f"v_lshlrev_b32 v{vT0}, 3, v{vT0}")
                a("s_mov_b32 exec_lo, 0")
                a(f"v_mov_b32 v{P+4}, 0x3f803f80")
                a(f"v_mov_b32 v{P+5}, 0x3f80")
                a("s_mov_b32 exec_lo, -1")
                a(f"buffer_store_dwordx4 {vr(P, 4)}, v{vT2}, {sr(SWS)}, s{sT0} offen sc1")
                a(f"buffer_store_dwordx2 {vr(P+4, 2)}, v{vT0}, {sr(SWS)}, s{sT0} offen offset:2560 sc1")
            else:
                a("s_mov_b32 exec_lo, 0")
                a(f"v_mov_b32 v{ACC+8}, 1.0")
                a("s_mov_b32 exec_lo, -1")
                for j in range(6): a(f"v_cvt_pk_bf16_f32 v{P+j}, v{ACC+2*j}, v{ACC+2*j+1}")
                a(f"s_mul_i32 s{sT1}, s{sTT}, 1536")
                a(f"s_add_u32 s{sT1}, s{sT1}, {L_VT}")
                a(f"v_lshrrev_b32 v{vT0}, 3, v{vN}")
                a(f"v_mul_u32_u24 v{vT0}, 384, v{vT0}")
                a(f"v_and_b32 v{vT1}, 7, v{vN}")
                a(f"v_lshl_add_u32 v{vT0}, v{vT1}, 1, v{vT0}")
                a(f"v_lshl_add_u32 v{vT0}, v{vH}, 6, v{vT0}")
                a(f"v_add_u32 v{vT0}, s{sT1}, v{vT0}")
                for r in range(12):
                    op = "ds_write_b16" if r % 2 == 0 else "ds_write_b16_d16_hi"
                    a(f"{op} v{vT0}, v{P+r//2} offset:{(r//4)*128 + (r%4)*16}")
                a(f"v_add_u32 v{vT0}, s{sT1}, v{vT2}")
                a("s_waitcnt lgkmcnt(0)")
                a(f"ds_read_b128 {vr(P+8, 4)}, v{vT0}")
                a(f"ds_read_b128 {vr(P+12, 4)}, v{vT0} offset:1024")
                a("s_waitcnt lgkmcnt(0)")
                a(f"buffer_store_dwordx4 {vr(P+8, 4)}, v{vT2}, {sr(SWS)}, s{sT0} offen offset:1024 sc1")
                a("s_mov_b32 exec_hi, 0")
                a(f"buffer_store_dwordx4 {vr(P+12, 4)}, v{vT2}, {sr(SWS)}, s{sT0} offen offset:2048 sc1")
                a("s_mov_b32 exec_hi, -1")
            a.stamp(5)
            a("s_waitcnt vmcnt(0) lgkmcnt(0)")
            a("s_barrier")
            if B_:
                a(f"s_mov_b32 s{sKOK}, 0")
                a(f"s_cmp_lg_u32 s{sW}, 4")
                a(f"s_cbranch_scc1 P1_KNP")
                a("s_mov_b64 exec, 1")
                a(f"buffer_store_dword v{vNON}, v{vZ}, {sr(SWS)}, s{sFL} offen sc1")
                a("s_mov_b64 exec, -1")
                a.label("P1_KNP")
                att_setup()
                a("s_waitcnt lgkmcnt(0)")
                a("s_barrier")
            else:
                ffn_pre(a, vL, vT0, vT1)
                a("s_barrier")
                srd(a, SX, pW2, 1728 * 1280)
                a(f"s_mul_i32 s{sT2}, s{sW}, 5120")
                a(f"s_mul_i32 s{sT0}, s{sW}, {27*16*1280}")
                a(f"s_mul_i32 s{sT1}, s{sHG}, 320")
                a(f"s_add_u32 s{sT0}, s{sT0}, s{sT1}")
                for i in range(3):
                    for p in range(5):
                        a(f"s_add_u32 m0, s{sT2}, {L_RING + i*20480 + p*1024}")
                        a("s_nop 0")
                        a(f"buffer_load_dwordx4 v{fD+p}, {sr(SX)}, s{sT0} offen lds")
                    a(f"s_add_u32 s{sT0}, s{sT0}, {16*1280}")
            a(f"s_branch {nxt}")
            return

        def mfma(i, p): a(f"v_mfma_f32_32x32x16_bf16 {vr(ACC+16*i, 16)}, {vr(FA[p]+4*i, 4)}, {vr(FB[p], 4)}, {vr(ACC+16*i, 16)}")
        def rdb(q, ns): a(f"ds_read_b128 {vr(FB[q], 4)}, v{vX+ns}")
        def rda(q, i, ns):
            a(f"ds_read_b64_tr_b16 {vr(FA[q]+4*i, 2)}, v{vTR+i} offset:{ns*sstr}")
            a(f"ds_read_b64_tr_b16 {vr(FA[q]+4*i+2, 2)}, v{vTR+i} offset:{ns*sstr+4*rstr}")
        def rank1(i): a(f"v_mfma_f32_32x32x8_bf16 {vr(ACC+16*i, 16)}, {vr(CSR+2*i, 2)}, {vr(NM, 2)}, {vr(ACC+16*i, 16)}")
        def pack_store(i, t):
            for j in range(8): a(f"v_pk_mul_f32 {vr(ACC+16*i+2*j, 2)}, {vr(ACC+16*i+2*j, 2)}, {vr(ST, 2)}")
            for j in range(8): a(f"v_cvt_pk_bf16_f32 v{P+8*i+j}, v{ACC+16*i+2*j}, v{ACC+16*i+2*j+1}")
            L = a.uid("NR")
            a(f"s_cmp_lt_u32 s{sCG}, 4")
            a(f"s_cbranch_scc1 {L}")
            for j in range(8): a(f"v_pk_max_i16 v{P+8*i+j}, v{P+8*i+j}, 0")
            a.label(L)
            a(f"s_add_u32 s{sT0}, s{sOUT}, {t}")
            stores(a, [f"buffer_store_dwordx4 {vr(P+8*i+4*e, 4)}, v{vT2}, {sr(SWS)}, s{sT0} offen offset:{1024*e}" for e in range(2)])
        def signal(vn):
            a.stamp(5)
            a(f"s_lshl_b32 s{sT0}, s{sW}, 2")
            a(f"s_add_u32 s{sT0}, s{sT0}, s{sFL}")
            a("s_mov_b64 exec, 1")
            a("s_waitcnt vmcnt(0)")
            stores(a, [f"buffer_store_dword v{vn}, v{vZ}, {sr(SWS)}, s{sT0} offen offset:32"])
            a("s_mov_b64 exec, -1")
            if opt("tp") and A_:
                a(f"buffer_load_dword v229, v{vT0}, {sr(SWS)}, s{sOUT} offen sc1")
                a(f"s_add_u32 s{sT0}, s{sOUT}, 8192")
                a("s_mov_b64 exec, 0xffff")
                a(f"buffer_load_dword v229, v{vT0}, {sr(SWS)}, s{sT0} offen sc1")
                a("s_mov_b64 exec, -1")
            a(f"s_branch {nxt}")
        if A_:
            XB, WF = [128, 136], [144, 152]
            REC = [28, 36]
            vRS, vRC = 20, 23
            a(f"s_and_b32 s{sT0}, s{sTT}, 2")
            a(f"s_lshl_b32 s{sT1}, s{sT0}, 10")
            a(f"s_add_u32 s{sT1}, s{sT1}, {K1_ST}")
            a(f"v_lshl_add_u32 v{vRS}, v{vN}, 5, s{sT1}")
            a(f"s_and_b32 s{sT2}, s{sTT}, 1")
            a(f"s_lshl_b32 s{sT1}, s{sT2}, 10")
            a(f"s_add_u32 s{sT1}, s{sT1}, {K1_CS}")
            a(f"v_lshl_add_u32 v{vRC}, v{vL}, 3, s{sT1}")
            sAL = sM0
            a(f"s_mov_b32 s{sAL}, s{sOUT}")
            a(f"s_mul_i32 s{sT1}, s{sT2}, {4096 - G_TSTRIDE}")
            a(f"s_add_u32 s{sOUT}, s{sOUT}, s{sT1}")
            a(f"v_lshlrev_b32 v{vT2}, 4, v{vL}")
            srd(a, SX, pW2, 1728 * 1280)
            a(f"s_mul_i32 s{sPB}, s{sRB}, 15")
            a(f"s_add_u32 s{sPB}, s{sPB}, s{sCG}")
            a(f"s_lshl_b32 s{sPB}, s{sPB}, 2")
            a(f"s_add_u32 s{sPB}, s{sPB}, s{sTT}")
            a(f"s_mul_i32 s{sSO}, s{sPB}, {7*128}")
            a(f"s_mul_i32 s{sPB}, s{sPB}, {18*128}")
            srd(a, SB, pWO, 640 * 1280)
            a(f"v_lshlrev_b32 v{vT0}, 7, v{vL}")
            def mf(j, i, p): a(f"v_mfma_f32_32x32x16_bf16 {vr(ACC+32*j+16*i, 16)}, {vr(WF[p]+4*i, 4)}, {vr(XB[p]+4*j, 4)}, {vr(ACC+32*j+16*i, 16)}")
            def rx(q, j, ns): a(f"ds_read_b128 {vr(XB[q]+4*j, 4)}, v{vX+ns}" + (" offset:4096" if j else ""))
            def rw(q, i, ns):
                a(f"ds_read_b64_tr_b16 {vr(WF[q]+4*i, 2)}, v{vTR+i} offset:{ns*sstr}")
                a(f"ds_read_b64_tr_b16 {vr(WF[q]+4*i+2, 2)}, v{vTR+i} offset:{ns*sstr+4*rstr}")
            for p in range(NA): wpiece(p)
            a(f"s_sub_u32 s{sM0W}, s{sM0W}, {2*K1_SLOT}")
            a(f"s_waitcnt vmcnt({8 + NA})")
            a.stamp(2)
            a("s_barrier")
            rx(0, 0, 0); rw(0, 0, 0); rw(0, 1, 0); rx(0, 1, 0)
            a.stamp(3); a.stamp(NSTAMP, True)
            side = Stream()
            NF = optv("nfa", 4)
            def step(s, pre=None, extra=0):
                p, q, ns = s & 1, (s + 1) & 1, (s + 1) & 3
                if pre is None: a(f"s_waitcnt lgkmcnt({3 + extra})")
                mf(0, 0, p)
                if pre is not None: pre()
                rx(q, 0, ns)
                side.emit(NF)
                if pre is None: a(f"s_waitcnt lgkmcnt({1 + extra})")
                mf(0, 1, p)
                rw(q, 0, ns)
                side.emit(NF - 2)
                mf(1, 1, p)
                rw(q, 1, ns)
                side.emit(NF - 2)
                mf(1, 0, p)
                rx(q, 1, ns)
                side.emit(NF)
            def touch():
                a(f"s_mul_i32 s{sT0}, s{sHG}, 10240")
                a(f"s_add_u32 s{sT0}, s{sT0}, s{sG}")
                a(f"s_mul_i32 s{sT1}, s{sTT}, 2560")
                a(f"s_add_u32 s{sT0}, s{sT0}, s{sT1}")
            def tl(mask, dst, srd_, so):
                def f():
                    a(f"s_mov_b64 exec, {mask:#x}")
                    a(f"buffer_load_dword v{dst}, v{vT0}, {sr(srd_)}, s{so} offen")
                    a("s_mov_b64 exec, -1")
                return f
            TC = optv("tc", 2)
            ops = ["D0"] * 5 + ["R"] * 3 + ["D1"] * 5 + ["D2"] * NA
            def wait(*tags): return len(ops) - 1 - max(i for i, t in enumerate(ops) if t in tags)
            def V(tag_, fn): return lambda: (fn(), ops.append(tag_))
            def wp(g, p):
                a(f"s_add_u32 m0, s{sM0W}, {(g & 3)*K1_SLOT + 1024*p}")
                a("s_nop 0")
                a(f"buffer_load_dwordx4 v{vDW+p}, {sr(SA)}, s{sSOW} offen lds"); ops.append(f"D{g}")
            def adv():
                a(f"s_add_u32 s{sCC}, s{sCC}, 1")
                a(f"s_cmp_eq_u32 s{sCC}, 10")
                a(f"s_cselect_b32 s{sCC}, 0, s{sCC}")
                a(f"s_mul_i32 s{sSOW}, s{sCC}, s{sWSTEP}")
                a(f"s_add_u32 s{sSOW}, s{sSOW}, s{sWBASE}")
            for c in range(9):
                if c == 0: side.add([lambda: a(f"s_waitcnt vmcnt({wait('R')})")] + lines_of(a, rs0))
                if c == 1: side.add([V("N", lambda: a(f"buffer_load_dword v{vNON}, v{vZ}, {sr(SDBG)}, 0 offen sc1"))] + lines_of(a, rs1) + lines_of(a, rs2))
                if c == 2: side.add([lambda: None] * 24 + [lambda: (a(f"s_waitcnt vmcnt({wait('N')})"), get_nonce(True))] + [lambda: None] * 8 + [V("S", rs3)])
                gap = [lambda: None] * 8
                if opt("thin"):
                    T0, TN = optv("t0", 1), optv("tn", 7)
                    per = (80 + TN - 1) // TN
                    if T0 <= c < T0 + TN:
                        side.q = [V("T", tl((1 << per) - 1, 229, SWS, sAL)), lambda: a(f"s_add_u32 s{sAL}, s{sAL}, {per*128}")] + side.q
                elif c == TC + 1:
                    side.add(lines_of(a, touch) + [V("T", tl(0xfffff, 229, SWS, sT0))] + gap)
                if c == TC + 1:
                    side.add(gap + [V("T", tl(0x7f, 230, SB, sSO))] + gap + [V("T", tl(0x3ffff, 231, SX, sPB))])
                if c == 5: side.add(gap + [V("T", lambda: a(f"buffer_load_dword v228, v{fH}, {sr(SWS)}, 0 offen sc1"))])
                d = -3 * K1_SLOT if (c & 3) == 3 else K1_SLOT
                for st in range(3):
                    if c + 3 < 10 and st < NA:
                        side.q = ([adv] if st == 0 else []) + [lambda: None] * (NF - (1 if st == 0 else 0)) + [lambda c=c, st=st: wp(c + 3, st)] + [lambda: None] * (NF - 3) + side.q
                    if st == 2:
                        side.q = [lambda: [a(f"v_add_u32 v{r}, {d}, v{r}") for r in range(vX, vX + 3)]] + side.q[(1 if (c + 3 < 10 and NA > 2) else 0):]
                    step(st)
                for r in (vX + 3, vTR, vTR + 1): a(f"v_add_u32 v{r}, {d}, v{r}")
                a("s_waitcnt lgkmcnt(0)")
                def pre():
                    if NA or c == 0: a(f"s_waitcnt vmcnt({wait(f'D{c+1}')})")
                    a("s_barrier")
                step(3, pre)
                side.flush()
                a.lstamp(str(c))
            a(f"ds_read_b128 {vr(REC[0], 4)}, v{vRS}")
            a(f"ds_read_b64 {vr(REC[0]+4, 2)}, v{vRS} offset:16")
            a(f"ds_read_b128 {vr(REC[1], 4)}, v{vRS} offset:1024")
            for i in range(2): a(f"ds_read_b64 {vr(CSR+2*i, 2)}, v{vRC} offset:{512*i}")
            step(0, None, 5)
            step(1)
            rds = [lambda: rx(1, 0, 3), lambda: rw(1, 0, 3), lambda: rw(1, 1, 3), lambda: rx(1, 1, 3)]
            for n in range(4):
                j, i = n >> 1, n & 1
                a(f"v_mfma_f32_32x32x8_bf16 {vr(ACC+16*n, 16)}, {vr(CSR+2*i, 2)}, {vr(REC[j], 2)}, {vr(ACC+16*n, 16)}")
                rds[n]()
            a(f"v_readfirstlane_b32 s{sFAST}, v{REC[0]+5}")
            a("s_waitcnt lgkmcnt(3)")
            mf(0, 0, 0); mf(0, 0, 1)
            a("s_waitcnt lgkmcnt(0)")
            a("s_barrier")
            a.stamp(4); a.stamp(NSTAMP + 1, True)
            mf(0, 1, 0); mf(0, 1, 1)
            a("s_nop 7")
            for n in range(4):
                if n < 2: mf(1, n, 0); mf(1, n, 1)
                ST = REC[n >> 1] + 2
                pack_store(n, (n >> 1) * G_TSTRIDE + (n & 1) * 2048)
            a.ldump()
            signal(REC[0] + 4)
            return
        NM, ST = 44, 46
        vWO, CG, RR = 200, 204 - 8, 206
        CG = 196
        a(f"s_lshl_b32 s{sPB}, s{sCG}, 2")
        a(f"s_add_u32 s{sPB}, s{sPB}, s{sTT}")
        a(f"s_mul_i32 s{sPB}, s{sPB}, 5120")
        a(f"s_add_u32 s{sPB}, s{sPB}, {WS_CP}")
        a(f"s_sub_u32 s{sM0}, s{sM0}, {2*K1_SLOT}")
        a(f"s_sub_u32 s{sM0W}, s{sM0W}, {2*K1_SLOT}")
        a("s_setprio 1")
        ops = ["X0"] * 4 + ["D1"] * 4
        def vm(tag_, n=1): ops.extend([tag_] * n)
        def wait(*tags):
            last = max(i for i, t in enumerate(ops) if t in tags)
            return len(ops) - 1 - last
        def xp(c, p):
            a(f"s_add_u32 m0, s{sM0}, {(c & 3)*K1_SLOT + 1024*p}")
            a("s_nop 0")
            a(f"buffer_load_dwordx4 v{vD+p}, {sr(SX)}, s{sSO} offen lds"); vm(f"D{c}")
        def wp(c, p):
            base = (c & 3) * K1_SLOT if c < 10 else L_RING + (c - 10) * 20480
            a(f"s_add_u32 m0, s{sM0W}, {base + 1024*p}")
            a("s_nop 0")
            a(f"buffer_load_dwordx4 v{(vDW if c < 10 else vWO)+p}, {sr(SA)}, s{sSOW} offen lds"); vm(f"D{c}")
        def adv(c):
            if c < 10:
                a(f"s_add_u32 s{sCC}, s{sCC}, 1")
                a(f"s_cmp_eq_u32 s{sCC}, 10")
                a(f"s_cselect_b32 s{sCC}, 0, s{sCC}")
                a(f"s_lshl_b32 s{sSO}, s{sCC}, 7")
                a(f"s_mul_i32 s{sSOW}, s{sCC}, s{sWSTEP}")
                a(f"s_add_u32 s{sSOW}, s{sSOW}, s{sWBASE}")
            elif c == 10:
                srd(a, SA, pW2, 1728 * 1280)
                a(f"s_mul_i32 s{sSOW}, s{sTT}, {27*16*1280}")
                a(f"s_mul_i32 s{sWSTEP}, s{sHG}, 320")
                a(f"s_add_u32 s{sSOW}, s{sSOW}, s{sWSTEP}")
            elif c < 13:
                a(f"s_add_u32 s{sSOW}, s{sSOW}, {16*1280}")
        def f_nonce(): get_nonce(False)
        def f_cspub():
            a(f"v_add_f32 v{PUB}, v{P}, v{P+8}")
            a(f"v_add_f32 v{PUB+2}, v{P+4}, v{P+12}")
            halfop(a, "v_add_f32", PUB, vT0); halfop(a, "v_add_f32", PUB + 2, vT0)
            a(f"v_mov_b32 v{PUB+1}, v{vNON}")
            a(f"v_mov_b32 v{PUB+3}, v{vNON}")
            a(f"v_lshlrev_b32 v{vT2}, 4, v{vL}")
            a(f"s_lshl_b32 s{sT1}, s{sST}, 9")
            a(f"s_add_u32 s{sT0}, s{sPB}, s{sT1}")
            a("s_mov_b32 exec_hi, 0")
            a(f"buffer_store_dwordx4 {vr(PUB, 4)}, v{vT2}, {sr(SWS)}, s{sT0} offen sc1"); vm("S")
            a("s_mov_b32 exec_hi, -1")
        def f_rowpub(): row_stats(3); vm("S")
        def f_wo(ps):
            a(f"s_movk_i32 s{sT2}, 960")
            row_offsets(a, vWO, vL, vT0, vT1, f"s{sT2}", ps)
        def gather(js, count=True):
            for j in js:
                if j == 0:
                    row_load(RR)
                    a(f"v_mul_u32_u24 v{vT1}, 2560, v{vH}")
                    a(f"v_add_u32 v{vSA}, v{vT0}, v{vT1}")
                else:
                    a(f"buffer_load_dwordx4 {vr(GAT+4*(j-1), 4)}, v{vSA}, {sr(SWS)}, s{sPB} offen offset:{512*(j-1)} sc1")
                if count: vm("G")
        def f_words(t):
            a(f"buffer_load_dword v{vFV}, v{vFL}, {sr(SWS)}, 0 offen sc1"); vm(t)
        def f_fin0():
            a(f"s_mov_b32 s{sSPIN}, {SPIN}")
            a(f"s_waitcnt vmcnt({wait('G', 'XW')})")
            a(f"v_cmp_ne_u32 vcc, s{sXW}, v{vFV}")
            a("s_cmp_eq_u32 vcc_hi, 0")
            a(f"s_cselect_b32 s{sFAST}, {0 if opt('slow') else 1}, 0")
            a.label(f"P1_FC{tag}")
            tag_check([RR + 1, RR + 3] + [GAT + 2*j + 1 for j in range(10)], f"P1_GA{tag}", f"P1_FOK{tag}")
        def f_fin1():
            a(f"v_mov_b32 v{NM}, v{RR}")
            a(f"v_mov_b32 v{NM+1}, v{RR}")
            a(f"v_mul_f32 v{ST}, s{sQS}, v{RR+2}")
            a(f"v_mul_f32 v{ST+1}, s{sQS}, v{RR+2}")
            a(f"v_mov_b32 v{RR}, s{sNON}")
            a(f"v_mov_b32 v{RR+1}, s{sFAST}")
            a(f"s_lshl_b32 s{sT0}, s{sTT}, 10")
            a(f"s_add_u32 s{sT0}, s{sT0}, {K1_ST}")
            a(f"v_lshl_add_u32 v{vT0}, v{vN}, 5, s{sT0}")
            a(f"ds_write_b128 v{vT0}, {vr(NM, 4)}")
            a(f"ds_write_b64 v{vT0}, {vr(RR, 2)} offset:16")
            for j in range(1, 5):
                a(f"v_add_f32 v{GAT}, v{GAT}, v{GAT+4*j}")
                a(f"v_add_f32 v{GAT+2}, v{GAT+2}, v{GAT+4*j+2}")
        def f_fin2():
            split3(a, GAT, vT0, vT1, PUB, PUB + 1)
            a(f"s_lshl_b32 s{sT0}, s{sTT}, 9")
            a(f"s_add_u32 s{sT0}, s{sT0}, {K1_CS}")
            a(f"v_lshl_add_u32 v{vT0}, v{vL}, 3, s{sT0}")
            a(f"ds_write_b64 v{vT0}, {vr(PUB, 2)}")
            split3(a, GAT + 2, vT0, vT1, CSR, CSR + 1)
            f_words("KF")
        def f_kv():
            L = a.uid("NOKV")
            a(f"s_waitcnt vmcnt({wait('KF')})")
            a(f"v_cmp_ne_u32 vcc, s{sNON}, v{vFV}")
            a(f"s_mov_b32 s{sKOK}, 0")
            a("s_cmp_lg_u32 vcc_lo, 0")
            a(f"s_cbranch_scc1 {L}")
            kv_first(a, vT2)
            a(f"s_mov_b32 s{sKOK}, 1")
            a.label(L)
        def f_tlb():
            if not opt("tlb"): return
            a(f"v_lshlrev_b32 v{vT0}, 21, v{vL}")
            a("s_mov_b64 exec, 0x7f")
            a(f"buffer_load_dword v20, v{vT0}, {sr(SWS)}, 0 offen"); vm("T")
            a("s_mov_b64 exec, 1")
            a(f"buffer_load_dword v20, v{vZ}, {sr(SB)}, s{sOB} offen"); vm("T")
            a("s_mov_b64 exec, -1")
        def f_code():
            if not opt("code"): return
            a("s_getpc_b64 s[100:101]")
            a.label("PCREF")
            a(f"s_lshr_b32 s{sT0}, s2, 3")
            a(f"s_lshl_b32 s{sT0}, s{sT0}, 2")
            a(f"s_add_u32 s{sT0}, s{sT0}, s{sTT}")
            a(f"s_lshl_b32 s{sT0}, s{sT0}, 7")
            a(f"s_add_u32 s{sT0}, s{sT0}, P2_ATT-PCREF")
            a(f"s_add_u32 s100, s100, s{sT0}")
            a("s_addc_u32 s101, s101, 0")
            a(f"v_mov_b32 v{vT0}, s100")
            a(f"v_mov_b32 v{vT1}, s101")
            a("s_mov_b64 exec, 1")
            a(f"global_load_dword v20, {vr(vT0, 2)}, off"); vm("T")
            a("s_mov_b64 exec, -1")
        side = Stream()
        NB = optv("nfb", 5)
        N_ = [lambda: None]
        G = lambda j: (lambda: gather((j,)))
        plan = {1: lambda: lines_of(a, lambda: f_wo(range(5))) + lines_of(a, as4),
                2: lambda: [f_nonce] + N_ * 9 + [f_cspub],
                3: lambda: lines_of(a, as1) + lines_of(a, as2)[:16],
                4: lambda: lines_of(a, as2)[16:] + lines_of(a, as0),
                5: lambda: [G(0)] + lines_of(a, as3)[:12] + [G(1)] + lines_of(a, as3)[12:] + N_ * 8 + [G(2)],
                6: lambda: [G(3)] + N_ * 14 + [G(4)] + N_ * 14 + [G(5), lambda: f_words("XW")],
                8: lambda: [f_fin0] + lines_of(a, f_fin1) + [f_fin2],
                7: lambda: [lambda: (a(f"buffer_load_dword v20, v{vZ}, {sr(SWS)}, s{sFQ} offen sc1"), vm("T"))],
                9: lambda: [lambda: rank1(0)]}
        a(f"s_waitcnt vmcnt({wait('X0')})")
        a.stamp(2)
        a("s_barrier")
        rdb(0, 0); rda(0, 0, 0)
        for p in range(NA, 5): wp(2, p)
        for p in range(4): xp(2, p)
        a(f"buffer_load_dword v{vNON}, v{vZ}, {sr(SDBG)}, 0 offen sc1"); vm("N")
        a.stamp(3); a.stamp(NSTAMP, True)
        order9 = [("w", 0), ("x", 0), ("w", 1), ("x", 1), ("w", 2), ("x", 2), ("w", 3), ("x", 3), ("w", 4)]
        def pieces(g, part):
            lst = [t for t in order9 if t[0] == "x" or t[1] >= NA] if g < 10 else [t for t in order9 if t[0] == "w"]
            n = len(lst)
            cut = [0] + [(n * k + 3) // 4 for k in range(1, 5)]
            if part == 0: adv(g)
            for kind, p in lst[cut[part]:cut[part + 1]]:
                (wp if kind == "w" else xp)(g, p)
                side.emit((NB * 9 + n - 1) // n)
        pieces(3, 0)
        for c in range(10):
            if c in plan: side.add(plan[c]())
            for s in range(4):
                p, q, ns = s & 1, (s + 1) & 1, (s + 1) & 3
                if c == 0:
                    a(f"ds_read_b64_tr_b16 {vr(CG, 2)}, v{vSA} offset:{s*sstr}")
                    a(f"ds_read_b64_tr_b16 {vr(CG+2, 2)}, v{vSA} offset:{s*sstr+4*rstr}")
                if s == 3:
                    if c >= 8: side.flush()
                    if c < 9:
                        d = -3 * K1_SLOT if (c & 3) == 3 else K1_SLOT
                        for r in list(range(vX, vX + 4)) + [vTR]: a(f"v_add_u32 v{r}, {d}, v{r}")
                a("s_waitcnt lgkmcnt(0)")
                mfma(0, p)
                if c == 0:
                    for j in range(2):
                        m4(P + 8*j, ONE, CG + 2*j); m4(P + 8*j + 4, ONE, FA[p] + 2*j)
                if s == 3:
                    if c < 9: a(f"s_waitcnt vmcnt({wait(f'D{c+1}', 'N') if c == 1 else wait(f'D{c+1}')})")
                    a("s_barrier")
                if c < 9 or s < 3:
                    rdb(q, ns); rda(q, 0, ns)
                if s < 3: pieces(c + 3, s + 1)
                elif c < 9: pieces(c + 4, 0)
        a.stamp(4); a.stamp(NSTAMP + 1, True)
        a("s_setprio 0")
        f_kv()
        a("s_nop 5")
        pack_store(0, 8192)
        signal(vNON)
        a.label(f"P1_GA{tag}")
        gather(range(6), False)
        a("s_waitcnt vmcnt(0)")
        a(f"s_branch P1_FC{tag}")

    body("GA", "A", False)
    a.label("P1_GB")
    body("GB", "B", False)
    a.label("P1_KA0")
    a(f"v_lshlrev_b32 v{vDW}, 4, v{vL}")
    a(f"s_mul_i32 s{sWBASE}, s{sW}, 640")
    a(f"s_mov_b32 s{sWSTEP}, 2560")
    a(f"s_mul_i32 s{sSOW}, s{sCC}, 2560")
    a(f"s_add_u32 s{sSOW}, s{sSOW}, s{sWBASE}")
    a(f"s_lshl_b32 s{sM0W}, s{sW}, 10")
    a("s_waitcnt lgkmcnt(0)")
    srd(a, SA, pWK, 640 * 40)
    srd(a, SB, pWV, 640 * 40)
    st01()
    for p in range(2): wpiece(p, True)
    a("s_barrier")
    body("KA", "A", True)
    a.label("P1_KB")
    body("KB", "B", True)

def kdesc(name, nv, ns=102):
    return f""".amdhsa_kernel {name}
  .amdhsa_next_free_vgpr {nv}
  .amdhsa_next_free_sgpr {ns}
  .amdhsa_accum_offset {(nv+3)//4*4}
  .amdhsa_group_segment_fixed_size 0
  .amdhsa_kernarg_size 88
  .amdhsa_user_sgpr_count 2
  .amdhsa_user_sgpr_kernarg_segment_ptr 1
  .amdhsa_system_sgpr_workgroup_id_x 1
.end_amdhsa_kernel
"""

def build():
    from g12p2 import gen_ffn, gen_att
    hdr = open("cdna_kernels/" + NAME + ".s.ref").read().split("; Override launch")[0]
    out = hdr
    out += f"; @launch grid=(256,1,1) block=(512,1,1) lds={LDS_BYTES}\n"
    out += '.amdgcn_target "amdgcn-amd-amdhsa--gfx950"\n.text\n'
    a = Asm()
    k = NAME + "_kernel"
    a.raw(f".globl {k}\n.p2align 8\n.type {k},@function")
    a.label(k)
    gen_p1(a)
    a.p2 = True
    a.label("P2_ATT")
    gen_att(a)
    a.label("P2_FFN")
    gen_ffn(a)
    for L, lines, D in a.tail:
        a.label(L)
        for l in lines: a(l)
        a(f"s_branch {D}")
    a.label("L_END")
    a("s_endpgm")
    if opt("code"): a.raw(".fill 1024, 4, 0xbf810000")
    out += a.text()
    out += '.section .rodata,"a"\n.p2align 6\n' + kdesc(k, 256)
    return out

if __name__ == "__main__":
    path = sys.argv[1] if len(sys.argv) > 1 and not sys.argv[1].startswith("--") else "cdna_kernels/" + NAME + ".s"
    open(path, "w").write(build())
```

```python
from g14 import *

LD = {"plain": "", "nt": " nt", "sc0": " sc0"}.get(sys.argv[sys.argv.index("--ld") + 1] if opt("ld") else "", " sc1")
LDO = " nt" if opt("ldo") else " sc1"
def cnt_arrive(a, vaddr, vtmp, inc="1", off=0):
    a(f"v_mov_b32 v{vtmp}, {inc}")
    a("s_mov_b64 exec, 1")
    a(f"ds_add_u32 v{vaddr}, v{vtmp}" + (f" offset:{off}" if off else ""))
    a("s_mov_b64 exec, -1")
def cnt_wait(a, vaddr, vtmp, tgt, sleep=0, off=0):
    L, D = a.uid("CW"), a.uid("CWD")
    a(f"s_mov_b32 s{sSPIN}, {SPIN * 16}")
    a.label(L)
    a(f"ds_read_b32 v{vtmp}, v{vaddr}" + (f" offset:{off}" if off else ""))
    a("s_waitcnt lgkmcnt(0)")
    a(f"v_readfirstlane_b32 s{sT0}, v{vtmp}")
    a(f"s_and_b32 s{sT2}, s{sT0}, 0xffff")
    a(f"s_cmp_ge_u32 s{sT2}, {tgt}")
    a(f"s_cbranch_scc1 {D}")
    if sleep: a(f"s_sleep {sleep}")
    spin_tail(a, L)
    a.label(D)

def final_stage(a, base_item, X, R, vA, vG, load_x, do_rest):
    if load_x and load_x != "load":
        a(f"s_mov_b32 s100, {L_FP}")
        item_addr(a, base_item, vA, vG, X)
    if load_x and load_x != "addr":
        a(f"buffer_load_dwordx4 {vr(X, 4)}, v{vG}, {sr(SX)}, s{sOB} offen")
    if do_rest == 1:
        for s in range(4):
            a(f"ds_read_b128 {vr(R+8*s, 4)}, v{vA} offset:{s*5120}")
            a(f"ds_read_b128 {vr(R+8*s+4, 4)}, v{vA} offset:{s*5120+16}")
    if do_rest == 2:
        for j in range(4):
            a(f"v_lshlrev_b32 v{R+32+2*j}, 16, v{X+j}")
            a(f"v_and_b32 v{R+33+2*j}, 0xffff0000, v{X+j}")
    if do_rest >= 3:
        for s in range(4):
            a(f"s_waitcnt lgkmcnt({6-2*s + (do_rest-3)})")
            for j in range(4):
                a(f"v_pk_add_f32 {vr(R+32+2*j, 2)}, {vr(R+32+2*j, 2)}, {vr(R+8*s+2*j, 2)}")
        for j in range(4): a(f"v_cvt_pk_bf16_f32 v{X+j}, v{R+32+2*j}, v{R+33+2*j}")
        a(f"buffer_store_dwordx4 {vr(X, 4)}, v{vG}, {sr(SB)}, s{sOB} offen")

def gen_att(a):
    vL, vKM, vQT, vIDX, vT0, vT1, vCNT = 1, 2, 3, 4, 5, 6, 7
    vP = 8
    vT2, vT3 = 12, 13
    vFL = 23
    S, O, QM, QT, KM, KT, V0, V1 = aS, aO, aQM, aQT, aKM, aKT, aV0, aV1
    def qk1(s, kb, q): a(f"v_mfma_f32_32x32x16_bf16 {vr(S[s], 16)}, {vr(KM[kb], 4)}, {vr(QM(q), 4)}, 0")
    def qk2(s, kb, q): a(f"v_mfma_f32_32x32x8_bf16 {vr(S[s], 16)}, {vr(KT[kb], 2)}, {vr(QT(q), 2)}, {vr(S[s], 16)}")
    def pv(u, s, vb, q): a(f"v_smfmac_f32_32x32x32_bf16 {vr(O(q), 16)}, {vr((V0, V1)[u][vb], 4)}, {vr(S[s]+8*u, 8)}, v{vIDX}")
    def ldq(i):
        a(f"buffer_load_dwordx4 {vr(QM(i), 4)}, v{vKM}, {sr(SWS)}, s{sPm+i//2} offen" + (" offset:1024" if i & 1 else "") + LD)
        a(f"buffer_load_dwordx2 {vr(QT(i), 2)}, v{vQT}, {sr(SWS)}, s{sPt+i//2} offen" + (" offset:512" if i & 1 else "") + LD)
    def qregs(lo, hi): return list(range(QM(lo), QM(hi))) + list(range(QT(lo), QT(hi)))
    def rowmax(s, dst):
        b = S[s]
        a(f"v_max3_f32 v{dst}, v{b}, v{b+1}, v{b+2}")
        for j in range(3, 15, 2): a(f"v_max3_f32 v{dst}, v{dst}, v{b+j}, v{b+j+1}")
        a(f"v_max_f32 v{dst}, v{dst}, v{b+15}")
    def pair_addr(mul, base, vlane, shift):
        for j in range(4):
            a(f"s_add_u32 s{sT0}, s{sQ}, {j}")
            a(f"s_and_b32 s{sT0}, s{sT0}, 3")
            a(f"s_mul_i32 s{sT0}, s{sT0}, {mul}")
            a(f"s_add_u32 s{sT0}, s{sT0}, {base}")
            a(f"v_lshl_add_u32 v{vP+j}, v{vlane}, {shift}, s{sT0}")

    a("s_setprio 3")
    a(f"s_mov_b32 s{sMODE}, 0")
    a(f"v_lshlrev_b32 v{vKM}, 4, v{vL}")
    a(f"v_mov_b32 v{vT0}, {OOB:#x}")
    a(f"v_cmp_gt_u32 vcc, 32, v{vL}")
    a(f"v_mov_b32 v{vIDX}, 0xdddddddd")
    a(f"v_mov_b32 v{vCNT}, {L_CNT}")
    a(f"v_cndmask_b32 v{vQT}, v{vT0}, v{vKM}, vcc")
    cnt_arrive(a, vCNT, vT0, off=8)
    a.stamp(6)
    a(f"s_cmp_lg_u32 s{sKOK}, 0")
    a("s_cbranch_scc1 A_HAVEKV")
    a("s_mov_b32 exec_hi, 0")
    poll(a, vFL, vT0, "0")
    a("s_mov_b32 exec_hi, -1")
    a.label("A_RELOAD")
    kv_first(a, vKM)
    a.label("A_HAVEKV")
    a(f"v_and_b32 v{vT1}, 31, v{vL}")
    pair_addr(512, L_MREC, vT1, 3)
    flag_words(a, vT1, vL)
    a.stamp(7)
    poll(a, vT1, vT0, f"s{sFQ}", optv("qsleep", 1))
    check_fast(a, vT1, vT0)
    a.stamp(8)
    ldq(0); ldq(1)
    a(f"s_cmp_lg_u32 s{sMODE}, 0")
    a("s_cbranch_scc1 A_TRUEMAX")
    a.c("stand-in for the row max: max over this wave's first 32 keys; checked after the loop, exact-max rerun if unsafe")
    ldq(2); ldq(3)
    a("s_waitcnt vmcnt(4)")
    qk1(0, 0, 0); qk2(0, 0, 0); qk1(1, 0, 1); qk2(1, 0, 1)
    for i in range(4, 8): ldq(i)
    a("s_nop 1")
    rowmax(0, S[2]); rowmax(1, S[2] + 1)
    a(f"v_mov_b32 v{vT0}, v{S[2]}")
    a(f"v_mov_b32 v{vT1}, v{S[2]+1}")
    a("s_nop 0")
    a(f"v_permlane32_swap_b32 v{vT0}, v{S[2]}")
    a(f"v_permlane32_swap_b32 v{vT1}, v{S[2]+1}")
    a(f"v_max_f32 v{S[2]}, v{S[2]}, v{vT0}")
    a(f"v_max_f32 v{S[2]+1}, v{S[2]+1}, v{vT1}")
    a("s_mov_b32 exec_lo, 0")
    for e in range(2): a(f"v_cvt_pk_bf16_f32 v{QT(e)}, -v{S[2]+e}, 0")
    a.label("A_HAVEMAX")
    for e in range(2): a(f"ds_write_b64 v{vP}, {vr(QT(e), 2)} offset:{256*e}")
    a("s_mov_b32 exec_lo, -1")
    cnt_arrive(a, vCNT, vT0)
    a(f"s_add_u32 s{sTGT}, s{sTGT}, 4")
    a(f"s_mov_b32 s{sCNT}, 8")
    a.stamp(9)
    a.stamp(10); a.stamp(NSTAMP + 2, True)
    qk1(0, 0, 0); qk2(0, 0, 0)
    a("s_cmp_lg_u32 0, 0")
    a("s_nop 10")
    a.raw(".p2align 6")
    a.label("A_LOOP")
    PAT0 = (3, 3, 4, 3, 3)
    PAT1 = tuple(int(ch) for ch in sys.argv[sys.argv.index("--pat1") + 1]) if opt("pat1") else PAT0
    PMASK = optv("pmask", 0)
    def slot(sc, nxt, prv, holes, PAT=PAT0):
        e = [0]
        def exps(n):
            for _ in range(n):
                a(f"v_exp_f32 v{S[sc]+e[0]}, v{S[sc]+e[0]}"); e[0] += 1
        ms = [lambda: qk1((sc + 1) & 3, *nxt), lambda: pv(0, (sc - 1) & 3, *prv), lambda: qk2((sc + 1) & 3, *nxt), lambda: pv(1, (sc - 1) & 3, *prv)]
        for j in range(4):
            if nxt is not None or j & 1: ms[j]()
            if j in holes: holes[j]()
            exps(PAT[j])
        holes[4]()
        exps(PAT[4])
    for kb in range(2):
        for q in range(8):
            def hole():
                if q == 0:
                    if kb == 0:
                        a("s_cbranch_scc0 A_FIRST")
                        a.label("A_FIRSTD")
                    a("s_waitcnt vmcnt(2)"); ldv(a, 0, kb ^ 1)
                elif q == 1: ldv(a, 1, kb ^ 1)
                elif q == 2: a(f"s_add_u32 s{sKV}, s{sKV}, {KV_REC}")
                elif q == 3 and kb == 0: a(f"s_sub_u32 s{sCNT}, s{sCNT}, 1")
                elif q == 4 and kb == 0: a(f"s_cmp_eq_u32 s{sCNT}, 0")
                elif q == 4: a("s_cmp_eq_u32 0, 0")
                elif q == 5: a("s_waitcnt vmcnt(2)")
                elif q == 6: ldkm(a, kb, vKM)
                elif q == 7: ldkt(a, kb)
                elif opt("nop"): a("s_nop 0")
            slot(q & 3, ((kb if q < 7 else kb ^ 1), (q + 1) & 7), ((kb if q > 0 else kb ^ 1), (q - 1) & 7), {4: hole}, PAT1 if (PMASK >> q) & 1 else PAT0)
        if kb == 0:
            a.lstamp(sCNT, 0)
            a("s_cbranch_scc1 A_LAST")
    a("s_branch A_LOOP")
    a.label("A_FIRST")
    cnt_wait(a, vCNT, vT0, f"s{sTGT}")
    a("s_waitcnt vmcnt(0)")
    a("s_mov_b32 exec_lo, 0")
    for i in range(2, 8): a(f"ds_read_b64 {vr(QT(i), 2)}, v{vP+i//2} offset:{256*(i&1)}")
    a("s_mov_b32 exec_lo, -1")
    a(f"v_and_b32 v{vT0}, 31, v{vL}")
    a(f"v_mul_u32_u24 v{vT0}, {8*36}, v{vT0}")
    a(f"v_sub_u32 v{vT0}, v{vKM}, v{vT0}")
    a(f"v_add_u32 v{vT0}, {(L_OP - 36*L_MREC) & 0xffffffff:#x}, v{vT0}")
    for j in range(4): a(f"v_mad_u32_u24 v{vP+j}, v{vP+j}, 36, v{vT0}")
    a("s_waitcnt lgkmcnt(0)")
    a.lstamp("8", 0)
    a("s_branch A_FIRSTD")
    a.label("A_LAST")
    def wr(i, j): a(f"ds_write_b128 v{vP+i//2}, {vr(O(i)+4*j, 4)} offset:{(i&1)*9216 + (i//2-1)*3072 + j*1024}")
    seq = [0, 2, 4, 6, 3, 5, 7, 1]
    RB = [[188, 200, 216], [16, 28, 40]]
    def rd(e, k):
        s_, j = divmod(k, 3)
        a(f"ds_read_b128 {vr(RB[e][s_]+4*j, 4)}, v{vP} offset:{e*9216 + s_*3072 + j*1024}")
    def echeck(n=2):
        a(f"s_waitcnt lgkmcnt({n})")
        a(f"v_readfirstlane_b32 s{sT0}, v{vT0}")
        a(f"s_cmp_lt_u32 s{sT0}, s{sKOK}")
        a("s_cbranch_scc1 A_EWAIT")
        a.label("A_EOK")
    for n in range(8):
        nxt = (1, seq[n + 1]) if n < 7 else None
        prv = (1, seq[n - 1]) if n > 0 else (0, 7)
        if n == 0: holes = {4: lambda: (a("s_waitcnt vmcnt(2)"), a(f"ds_read_b32 v{vT0}, v{vCNT}"))}
        if n == 1: holes = {4: lambda: (a("s_waitcnt lgkmcnt(0)"), a(f"v_readfirstlane_b32 s{sT0}, v{vT0}"))}
        if n == 2: holes = {4: lambda: (a(f"s_cmp_lt_u32 s{sT0}, 8"), a("s_cbranch_scc1 A_OWAIT"), a.label("A_OFREE"))}
        if n >= 3:
            i = seq[n - 2]
            holes = {2: lambda: wr(i, 0), 3: lambda: wr(i, 1), 4: lambda: wr(i, 2)}
        if n == 4: holes[1] = lambda: (a(f"s_lshl_b32 s{sKOK}, s{sMODE}, 3"), a(f"s_add_u32 s{sKOK}, s{sKOK}, 4"))
        if n == 5: holes[4] = lambda: (wr(i, 2), cnt_arrive(a, vCNT, vT0, off=12))
        if n == (6 if opt("ein") else 7): holes[3] = lambda: (a(f"ds_read_b32 v{vT0}, v{vCNT} offset:12"), wr(i, 1))
        if n == 7 and opt("ein"):
            holes = {0: lambda: (echeck(), rd(0, 0), rd(0, 1)), 1: lambda: (rd(0, 2), rd(0, 3)), 2: lambda: (wr(i, 0), rd(0, 4), rd(0, 5)),
                     3: lambda: (wr(i, 1), rd(0, 6), rd(0, 7)), 4: lambda: (wr(i, 2), rd(0, 8))}
        slot(n & 3, nxt, prv, holes)
    a("s_nop 1")
    pv(0, 3, 1, 1); pv(1, 3, 1, 1)
    a.stamp(11); a.stamp(NSTAMP + 3, True)
    a(f"s_mov_b64 {sr(sBAD, 2)}, 0")
    a(f"s_mov_b32 s{sT1}, {f32bits(2.0**100):#x}")
    for j in range(3): wr(7, j)
    if not opt("ein"):
        a(f"v_mov_b32 v{vT3}, 1")
        a("s_mov_b64 exec, 1")
        a(f"ds_add_u32 v{vCNT}, v{vT3}")
        a("s_mov_b64 exec, -1")
        echeck(6)
        for k in range(9): rd(0, k)
    else: cnt_arrive(a, vCNT, vT0)
    a(f"s_add_u32 s{sTGT}, s{sTGT}, 4")
    a(f"s_max_u32 s{sTGT}, s{sTGT}, 12")
    Z = 52
    for e in range(2):
        A = O(e); P = 128 + 8 * e
        if e == 1:
            cnt_arrive(a, vCNT, vT0, off=12)
            cnt_wait(a, vCNT, vT0, f"s{sTGT}")
            a.stamp(12)
            for k in range(9): rd(1, k)
        for s in range(3):
            if e == 1 or not opt("ein"): a(f"s_waitcnt lgkmcnt({6 - 3*s})")
            elif s == 0: a("s_waitcnt lgkmcnt(4)")
            for j in range(6): a(f"v_pk_add_f32 {vr(A+2*j, 2)}, {vr(A+2*j, 2)}, {vr(RB[e][s]+2*j, 2)}")
        a(f"v_mov_b32 v{vT0}, v{A+8}")
        a(f"v_mov_b32 v{vT2}, v{A+8}")
        a(f"v_pk_mul_f32 {vr(Z, 2)}, {vr(A, 2)}, 0 op_sel_hi:[1,0]")
        a(f"v_pk_fma_f32 {vr(Z, 2)}, {vr(A+2, 2)}, 0, {vr(Z, 2)} op_sel_hi:[1,0,1]")
        a(f"v_permlane32_swap_b32 v{vT0}, v{vT2}")
        a(f"v_rcp_f32 v{vT3}, v{vT2}")
        a(f"v_cmp_nlt_f32 vcc, v{vT2}, s{sT1}")
        for j in range(2, 6): a(f"v_pk_fma_f32 {vr(Z, 2)}, {vr(A+2*j, 2)}, 0, {vr(Z, 2)} op_sel_hi:[1,0,1]")
        a(f"s_or_b64 {sr(sBAD, 2)}, {sr(sBAD, 2)}, vcc")
        for j in range(6): a(f"v_pk_mul_f32 {vr(A+2*j, 2)}, {vr(A+2*j, 2)}, {vr(vT2, 2)} op_sel:[0,1] op_sel_hi:[1,1]")
        a(f"v_cmp_u_f32 vcc, v{Z}, v{Z+1}")
        for j in range(6): a(f"v_cvt_pk_bf16_f32 v{P+j}, v{A+2*j}, v{A+2*j+1}")
        a(f"s_or_b64 {sr(sBAD, 2)}, {sr(sBAD, 2)}, vcc")
        a(f"s_cmp_lg_u32 s{sMODE}, 0")
        a(f"s_cselect_b64 {sr(sBAD, 2)}, 0, {sr(sBAD, 2)}")
        for j in range(6): a(f"v_min_u32 v{P+j}, -2, v{P+j}")
        L = a.uid("NOST")
        a(f"s_cmp_lg_u64 {sr(sBAD, 2)}, 0")
        a(f"s_cbranch_scc1 {L}")
        stores(a, [f"buffer_store_dwordx4 {vr(P, 4)}, v{vKM}, {sr(SWS)}, s{sOm} offen offset:{1024*e}",
                   f"buffer_store_dwordx2 {vr(P+4, 2)}, v{vQT}, {sr(SWS)}, s{sOt} offen offset:{512*e}"])
        a.label(L)
    a(f"s_cmp_lg_u64 {sr(sBAD, 2)}, 0")
    a(f"s_cselect_b32 s{sBAD}, 0x10001, 1")
    cnt_arrive(a, vCNT, vT0, f"s{sBAD}")
    a.stamp(13)
    a("s_setprio 0")
    a(f"s_add_u32 s{sTGT}, s{sTGT}, 4")
    srd(a, SX, pX, 2048 * 1280)
    cnt_wait(a, vCNT, vT0, f"s{sTGT}")
    a(f"s_lshr_b32 s{sT0}, s{sT0}, 16")
    a(f"s_cmp_lg_u32 s{sMODE}, 0")
    a(f"s_cselect_b32 s{sT0}, 0, s{sT0}")
    a(f"s_cmp_lg_u32 s{sT0}, 0")
    a("s_cbranch_scc1 A_RESTART")
    a.stamp(14)
    if PROFILE and opt("iter"):
        a.ldump(0)
        a(f"s_lshl_b32 s100, s{sW}, 6")
        a("v_add_u32 v0, s100, v1")
    final_stage(a, 0, 16, 32, 20, 21, True, 0)
    a(f"s_cmp_ge_u32 s{sW}, 6")
    a("s_cbranch_scc1 A_F1")
    final_stage(a, 256, 24, 80, 22, 23, True, 0)
    a("s_waitcnt vmcnt(0)")
    final_stage(a, 0, 16, 32, 20, 21, False, 2)
    final_stage(a, 256, 24, 80, 22, 23, False, 2)
    a.stamp(15)
    a("s_barrier")
    a.stamp(16)
    final_stage(a, 0, 16, 32, 20, 21, False, 1)
    final_stage(a, 256, 24, 80, 22, 23, False, 1)
    final_stage(a, 0, 16, 32, 20, 21, False, 11)
    final_stage(a, 256, 24, 80, 22, 23, False, 3)
    a.end()
    a.label("A_F1")
    a("s_waitcnt vmcnt(0)")
    final_stage(a, 0, 16, 32, 20, 21, False, 2)
    a.stamp(15)
    a("s_barrier")
    a.stamp(16)
    final_stage(a, 0, 16, 32, 20, 21, False, 1)
    final_stage(a, 0, 16, 32, 20, 21, False, 3)
    a.end()
    a.label("A_EWAIT")
    cnt_wait(a, vCNT, vT0, f"s{sKOK}", 0, off=12)
    a("s_branch A_EOK")
    a.label("A_OWAIT")
    cnt_wait(a, vCNT, vT0, 8, 1)
    a("s_branch A_OFREE")
    a.label("A_RESTART")
    a(f"s_mov_b32 s{sMODE}, 1")
    a("s_waitcnt vmcnt(0)")
    att_zero(a)
    a("s_branch A_RELOAD")
    a.label("A_TRUEMAX")
    for i in range(2, 8): ldq(i)
    M = S[2]
    for i in range(8): a(f"v_mov_b32 v{M+i}, 0xff800000")
    a(f"s_sub_u32 s{sT1}, s{sKV}, {KV_REC}")
    a(f"s_mov_b32 s{sCNT}, 16")
    TK, TT = S[1], S[1] + 4
    a.label("A_TM_LOOP")
    a(f"buffer_load_dwordx4 {vr(TK, 4)}, v{vKM}, {sr(SWS)}, s{sT1} offen sc1")
    a(f"buffer_load_dwordx2 {vr(TT, 2)}, v{avKT}, {sr(SWS)}, s{sT1} offen sc1")
    a("s_waitcnt vmcnt(0)")
    for i in range(8):
        a(f"v_mfma_f32_32x32x16_bf16 {vr(S[0], 16)}, {vr(TK, 4)}, {vr(QM(i), 4)}, 0")
        a(f"v_mfma_f32_32x32x8_bf16 {vr(S[0], 16)}, {vr(TT, 2)}, {vr(QT(i), 2)}, {vr(S[0], 16)}")
        a("s_nop 11")
        for j in range(0, 16, 2): a(f"v_max3_f32 v{M+i}, v{M+i}, v{S[0]+j}, v{S[0]+j+1}")
    a(f"s_add_u32 s{sT1}, s{sT1}, {KV_REC}")
    a(f"s_sub_u32 s{sCNT}, s{sCNT}, 1")
    a(f"s_cmp_lg_u32 s{sCNT}, 0")
    a("s_cbranch_scc1 A_TM_LOOP")
    for i in range(8):
        halfop(a, "v_max_f32", M + i, vT0)
        a(f"v_add_u32 v{vT1}, {L_OP - L_MREC}, v{vP+i//2}")
        a(f"ds_write_b32 v{vT1}, v{M+i} offset:{(i//2)*2048 + (i&1)*256}")
    cnt_arrive(a, vCNT, vT0)
    a(f"s_add_u32 s{sTGT}, s{sTGT}, 4")
    cnt_wait(a, vCNT, vT0, f"s{sTGT}")
    a(f"v_add_u32 v{vT1}, {L_OP - L_MREC}, v{vP}")
    for e in range(2):
        for s in range(1, 4): a(f"ds_read_b32 v{S[0]+4*e+s}, v{vT1} offset:{s*2048 + e*256}")
    a("s_waitcnt lgkmcnt(0)")
    for e in range(2):
        a(f"v_max3_f32 v{M+e}, v{M+e}, v{S[0]+4*e+1}, v{S[0]+4*e+2}")
        a(f"v_max_f32 v{M+e}, v{M+e}, v{S[0]+4*e+3}")
    a("s_mov_b32 exec_lo, 0")
    for e in range(2):
        a(f"v_sub_f32 v{M+e}, 0, v{M+e}")
        split3(a, M + e, vT0, vT1, QT(e), QT(e) + 1)
    a("s_branch A_HAVEMAX")

def gen_ffn(a):
    vL, vL16, vTR, vZ = 1, 2, 3, 7
    vA, vG, vPW, vPW2, X = 4, 5, 0, 6, 8
    vNV, vCNT, vT0, vT1 = 12, 13, 14, 15
    F = lambda t: 16 + 16 * t
    WO = lambda k: 96 + 20 * k
    HB = lambda u: 216 + 4 * u
    SL = lambda j: j & 3
    SWO = SDBG
    def dma_piece(p, slot, vd=fD):
        a(f"s_add_u32 m0, s{sM0}, {L_RING + slot*20480 + p*1024}")
        a("s_nop 0")
        a(f"buffer_load_dwordx4 v{vd+p}, {sr(SA)}, s{sSO} offen lds")
    def trr(dst, slot, t, va=vTR):
        a(f"ds_read_b64_tr_b16 {vr(dst+4*t, 2)}, v{va} offset:{slot*20480 + 64*t}")
        a(f"ds_read_b64_tr_b16 {vr(dst+4*t+2, 2)}, v{va} offset:{slot*20480 + 64*t + 2560}")
    def hload(u):
        a(f"buffer_load_dwordx4 {vr(HB(u), 4)}, v{vL16}, {sr(SWS)}, s{sHO} offen sc1")
        a(f"s_add_u32 s{sHO}, s{sHO}, 1024")
    def stage(i, ks):
        row = 16 + 80 * (ks - 8) if ks >= 8 else 20 * ks
        a(f"s_add_u32 s{sT1}, s{sWOB}, {row*1280}")
        for p in range(5):
            a(f"s_add_u32 m0, s{sM0}, {i*20480 + p*1024}")
            a("s_nop 0")
            a(f"buffer_load_dwordx4 v{(fD2 if ks >= 8 else fD)+p}, {sr(SWO)}, s{sT1} offen lds")
    def mf(t, w, h): a(f"v_mfma_f32_32x32x16_bf16 {vr(F(t), 16)}, {vr(w+4*t, 4)}, {vr(h, 4)}, {vr(F(t), 16)}")
    sWOB = sWBASE
    srd(a, SA, pW2, 1728 * 1280)
    a(f"s_mul_i32 s{sM0}, s{sQ}, 5120")
    a(f"s_mul_i32 s{sCOL}, s{sHG}, 320")
    a(f"s_mul_i32 s{sSO}, s{sQ}, {27*16*1280}")
    a(f"s_add_u32 s{sSO}, s{sSO}, s{sCOL}")
    a(f"s_add_u32 s{sSO}, s{sSO}, {3*16*1280}")
    a(f"s_mov_b32 s{sSTEP}, {16*1280}")
    if opt("xpar"):
        a(f"s_and_b32 s{sT0}, s{sT}, 1")
        a(f"s_mul_i32 s{sT0}, s{sT0}, {16*1280}")
        a(f"s_add_u32 s{sSO}, s{sSO}, s{sT0}")
    for p in range(5): dma_piece(p, 3)
    a(f"s_add_u32 s{sSO}, s{sSO}, s{sSTEP}")
    a("v_mov_b64 v[246:247], 0")
    a(f"v_lshlrev_b32 v{vL16}, 4, v{vL}")
    a(f"v_mov_b32 v{vCNT}, {L_CNT}")
    for t in range(5): zero16(a, F(t), 246)
    a(f"v_mov_b32 v{vTR}, v{fTR}")
    a(f"v_mov_b32 v{vA}, v{fA}")
    a(f"v_mov_b32 v{vG}, v{fG}")
    a(f"v_mov_b32 v{vPW}, v{fPW}")
    a(f"v_add_u32 v{vPW2}, 40960, v{fPW}")
    a(f"v_mov_b32 v{vNV}, s{sNON}")
    a(f"v_mov_b32 v245, 1")
    srd(a, SX, pX, 2048 * 1280)
    srd(a, SB, pOUT, 2048 * 1280)
    srd(a, SWO, pWO, 640 * 1280)
    a(f"s_mul_i32 s{sWOB}, s{sQ}, {160*1280}")
    a(f"s_add_u32 s{sWOB}, s{sWOB}, s{sCOL}")
    a(f"s_lshl_b32 s{sFC}, s{sT}, 2")
    a(f"s_add_u32 s{sFC}, s{sFC}, s{sQ}")
    a(f"s_mul_i32 s{sHO}, s{sQ}, {27*1024}")
    a(f"s_add_u32 s{sHO}, s{sHO}, s{sG}")
    a(f"s_add_u32 s{sHO}, s{sHO}, {20*2048}")
    a.stamp(6)
    cnt_wait(a, vCNT, vT0, 4, 1, off=(8 if opt("nogatem") else 0))
    for _ in range(optv("fd", 0)): a("s_sleep 16")
    a.stamp(7)
    poll(a, fH, vT1, "0", 2)
    check_fast(a, vT1, vT0)
    a.stamp(9)
    if opt("th"):
        a(f"s_mul_i32 s{sT0}, s{sHG}, {54*128}")
        a(f"s_add_u32 s{sT0}, s{sT0}, s{sHO}")
        a(f"v_lshlrev_b32 v{vT0}, 7, v{vL}")
    for u in range(4): hload(u)
    if opt("th"):
        a("s_mov_b32 exec_hi, 0x3fffff")
        a(f"buffer_load_dword v{vT1}, v{vT0}, {sr(SWS)}, s{sT0} offen sc1")
        a("s_mov_b32 exec_hi, -1")
    for t in range(5): trr(WO(0), SL(0), t)
    a(f"s_mov_b32 s{sC}, 0")
    a("s_waitcnt vmcnt(0)")
    a.stamp(10); a.stamp(NSTAMP + 2, True)
    B0 = optv("b0", 1)
    a.raw(".p2align 3")
    a.label("F_LOOP")
    for u in range(4):
        if u == 3:
            a(f"s_cmp_eq_u32 s{sC}, 6")
            a("s_cbranch_scc1 F_DONE")
            a(f"s_cmp_lg_u32 s{sC}, 5")
            a("s_cbranch_scc1 F_NS")
            srd(a, SA, pWO, 640 * 1280)
            a(f"s_add_u32 s{sSO}, s{sWOB}, {20*1280}")
            a(f"s_mov_b32 s{sSTEP}, {40*1280}")
            a(f"s_mov_b32 s{sHO}, 0x40000000")
            a(f"buffer_load_dword v{fH}, v{fO}, {sr(SWS)}, 0 offen sc1")
            a.label("F_NS")
        a("s_waitcnt vmcnt(13) lgkmcnt(0)" if not opt("xhalf") else "s_waitcnt vmcnt(8) lgkmcnt(0)")
        for t in range(5):
            if opt("xdirect"):
                mf(t, WO(u), HB(u))
                a(f"buffer_load_dwordx4 {vr(WO(u)+4*t, 4)}, v{fD+t}, {sr(SA)}, s{sSO} offen")
                a("s_nop 7")
                a("s_nop 1")
                continue
            mf(t, WO(0), HB(u))
            if opt("xnotr"):
                dma_piece(t, SL(u))
                a("s_nop 5")
                continue
            if opt("xhalf") and (u & 1):
                a("s_sleep 1")
                continue
            trr(WO(0), SL(u + 1), t)
            dma_piece(t, SL(u))
        a(f"s_add_u32 s{sSO}, s{sSO}, s{sSTEP}")
        hload(u)
    a(f"s_add_u32 s{sC}, s{sC}, 1")
    a(f"s_sub_u32 s{sT0}, s{sC}, {B0 + 1}")
    a(f"s_cmp_ge_u32 s{sT0}, 3")
    a("s_cbranch_scc1 F_LOOP")
    a(f"s_cmp_eq_u32 s{sT0}, 1")
    a("s_cbranch_scc1 F_X1")
    a(f"s_cmp_eq_u32 s{sT0}, 2")
    a("s_cbranch_scc1 F_X2")
    a(f"s_lshl_b32 s{sT1}, s{sT}, 2")
    a(f"s_add_u32 s{sT1}, s{sT1}, s{sHG}")
    a(f"s_mul_i32 s{sT1}, s{sT1}, 10240")
    a(f"s_mul_i32 s{sT0}, s{sQ}, 3072")
    a(f"s_min_u32 s{sT0}, s{sT0}, 7168")
    a(f"s_add_u32 s{sT0}, s{sT0}, s{sT1}")
    a(f"s_add_u32 s{sT0}, s{sT0}, {WS_O}")
    stores(a, [f"buffer_store_dwordx4 {vr(fBL, 4)}, v{vL16}, {sr(SWS)}, s{sT0} offen offset:{1024*e}" for e in range(3)])
    for i in range(3): stage(i, 2 * i)
    a("s_branch F_LOOP")
    a.label("F_X1")
    for i in range(3):
        for t in range(5): trr(WO(1 + i), i, t, fSTG)
    a(f"s_lshl_b32 s{sT0}, s{sQ}, 2")
    a(f"s_add_u32 s{sT0}, s{sT0}, s{sF2}")
    a("s_mov_b64 exec, 1")
    stores(a, [f"buffer_store_dword v{vNV}, v{vZ}, {sr(SWS)}, s{sT0} offen offset:16"])
    a("s_mov_b64 exec, -1")
    a("s_waitcnt lgkmcnt(0)")
    stage(0, 6); stage(1, 9)
    a("s_branch F_LOOP")
    a.label("F_X2")
    for i in range(2):
        for t in range(5): trr(WO(4 + i), i, t, fSTG)
    cnt_wait(a, vCNT, vT0, 4, 1)
    a("s_mov_b64 exec, 1")
    a(f"ds_add_u32 v{vCNT}, v245")
    a("s_mov_b64 exec, -1")
    a("s_branch F_LOOP")
    a.label("F_DONE")
    a.stamp(11); a.stamp(NSTAMP + 3, True)
    a(f"s_add_u32 s{sSO}, s{sWOB}, {16*1280}")
    a("s_waitcnt lgkmcnt(0)")
    for t in range(5): dma_piece(t, SL(27), fD2)
    final_stage(a, 0, X, 0, vA, vG, "load", 0)
    a(f"v_cmp_ne_u32 vcc, s{sNON}, v{fH}")
    a("s_cbranch_vccz F_BOK")
    poll(a, fO, vT1, "0", 4)
    a.label("F_BOK")
    a(f"s_mul_i32 s{sHO}, s{sFC}, 10240")
    a(f"s_add_u32 s{sHO}, s{sHO}, {WS_O}")
    a(f"s_add_u32 s{sSO}, s{sHO}, 4096")
    a(f"s_add_u32 s{sT1}, s{sHO}, 8192")
    a.stamp(12)
    def oloads(ks):
        for k in ks:
            so = (sHO, sSO, sT1)[k // 4]
            a(f"buffer_load_dwordx4 {vr(HB(k), 4)}, v{vL16}, {sr(SWS)}, s{so} offen offset:{(k%4)*1024} sc1")
    def ocheck(ks):
        for n, k in enumerate(ks):
            a(f"s_waitcnt vmcnt({len(ks)-1-n})")
            if n == 0:
                a(f"v_max3_u32 v{vT0}, v{HB(k)}, v{HB(k)+1}, v{HB(k)+2}")
                a(f"v_max_u32 v{vT0}, v{vT0}, v{HB(k)+3}")
            else:
                a(f"v_max3_u32 v{vT0}, v{vT0}, v{HB(k)}, v{HB(k)+1}")
                a(f"v_max3_u32 v{vT0}, v{vT0}, v{HB(k)+2}, v{HB(k)+3}")
        a(f"v_cmp_eq_u32 vcc, -1, v{vT0}")
    even, rest = [0, 2, 4, 6], [1, 9, 3, 5, 7, 8]
    WR = [WO(0), WO(5), WO(1), WO(2), WO(3), WO(4)]
    cnt_wait(a, vCNT, vT0, 8, 1, off=12)
    a.stamp(13)
    a(f"s_mov_b32 s{sSPIN}, {SPIN}")
    a.label("F_O")
    oloads(even); ocheck(even)
    a("s_cbranch_vccz F_OD")
    a("s_sleep 1")
    spin_tail(a, "F_O")
    a.label("F_OD")
    a.stamp(8)
    for n in range(4):
        if n == optv("on", 1): oloads(rest)
        for t in range(5):
            mf(t, WO(1 + n), HB(even[n]))
            trr(WO(1 + n), SL(28 + n), t)
    cnt_wait(a, vCNT, vT0, 16, 1)
    a(f"s_cmp_lt_u32 s{sT0}, 0x10000")
    a("s_cbranch_scc1 F_NORE")
    cnt_wait(a, vCNT, vT0, 32, 8)
    a.label("F_NORE")
    a(f"s_mov_b32 s{sSPIN}, {SPIN}")
    a.label("F_O2")
    ocheck(rest)
    a("s_cbranch_vccz F_OD2")
    oloads(rest)
    spin_tail(a, "F_O2")
    a("s_waitcnt vmcnt(0)")
    a.label("F_OD2")
    a.stamp(14)
    def fwr(t, g):
        va, off = (vPW, t * 20480) if t < 2 else (vPW2, (t - 2) * 20480)
        a(f"ds_write_b128 v{va}, {vr(F(t)+4*g, 4)} offset:{off + 32*g}")
    for t in range(5):
        for m in range(6):
            mf(t, WR[m], HB(rest[m]))
            if t > 0:
                if m < 2: a("s_nop 4")
                else: fwr(t - 1, m - 2)
    final_stage(a, 0, X, 176, vA, vG, False, 2)
    a("s_nop 3")
    a.stamp(15)
    for g in range(4): fwr(4, g)
    a("s_waitcnt lgkmcnt(0)")
    a("s_barrier")
    a.stamp(16)
    final_stage(a, 0, X, 176, vA, vG, False, 1)
    final_stage(a, 0, X, 176, vA, vG, False, 3)
    a.end()
```

```python
import sys, struct, math

NAME = "parallel_sum__grouped_kv_mqa__dense_activation_relu__prompt"
def opt(name): return ("--" + name) in sys.argv
def optv(name, d): return int(sys.argv[sys.argv.index("--" + name) + 1]) if opt(name) else d
G_TSTRIDE = 75 * 2048
WS_G = 0
WS_KV = 64 * G_TSTRIDE
KV_REC = 3072
WS_O = (WS_KV + 66 * KV_REC + 4095) // 4096 * 4096
WS_RS = WS_O + 64 * 40 * 1024
WS_CP = WS_RS + 2048 * 16
WS_F1 = WS_CP + 64 * 5120
WS_F2 = WS_F1 + 256 * 128
WS_XC = WS_F2 + 256 * 128
WS_PROF = WS_XC + 8 * 128
PROFILE = opt("prof")
NSTAMP = 18
WS_END = WS_PROF + (256 * 8 * 256 if PROFILE else 0)
OOB = 0x80000000
QSCALE = math.log2(math.e) / math.sqrt(20.0)
SPIN = 0x40000
NFIRST = optv("nfirst", 1)


def f32bits(x): return struct.unpack("<I", struct.pack("<f", x))[0]

class Asm:
    def __init__(self): self.lines = []; self.n = 0; self.tail = []; self.p2 = False
    def __call__(self, s): self.lines.append("    " + s)
    def label(self, s): self.lines.append(s + ":")
    def raw(self, s): self.lines.append(s)
    def c(self, s): self.lines.append("    ; " + s)
    def uid(self, p): self.n += 1; return f"{p}_{self.n}"
    def stamp(self, i, cyc=False):
        if opt("st") and self.p2 and i in (14, 15, 16): return
        if PROFILE:
            self(f"s_memtime s[100:101]" if cyc else "s_memrealtime s[100:101]")
            self("s_waitcnt lgkmcnt(0)")
            self(f"s_mov_b32 s{64+i}, s100")
    def lstamp(self, slane, v=14):
        if PROFILE and opt("iter"):
            self("s_memrealtime s[100:101]")
            self("s_waitcnt lgkmcnt(0)")
            self(f"s_mov_b32 m0, {slane}" if isinstance(slane, str) else f"s_mov_b32 m0, s{slane}")
            self(f"v_writelane_b32 v{v}, s100, m0")
    def ldump(self, v=14):
        if PROFILE and opt("iter"):
            self(f"s_lshl_b32 s100, s2, 3")
            self(f"s_add_u32 s100, s100, s{sW}")
            self(f"s_lshl_b32 s100, s100, 8")
            self(f"s_add_u32 s100, s100, {WS_PROF+128}")
            self("v_lshlrev_b32 v15, 2, v1")
            self("s_mov_b64 exec, 0xffff")
            self(f"buffer_store_dword v{v}, v15, s[{SWS}:{SWS+3}], s100 offen")
            self("s_mov_b64 exec, -1")
            self("s_waitcnt vmcnt(0)")
    def end(self):
        if PROFILE:
            self("s_waitcnt vmcnt(0)")
            self.stamp(NSTAMP - 1)
            self(f"s_lshl_b32 s3, s2, 3")
            self(f"s_add_u32 s3, s3, s{sW}")
            self(f"s_lshl_b32 s3, s3, 8")
            self(f"s_add_u32 s3, s3, {WS_PROF}")
            self("s_mov_b64 exec, 1")
            self("v_mov_b32 v1, 0")
            for i in range(NSTAMP + 4):
                self(f"v_mov_b32 v2, s{64+i}")
                self(f"buffer_store_dword v2, v1, s[{SWS}:{SWS+3}], s3 offen offset:{4*i}")
        self("s_endpgm")
    def text(self): return "\n".join(self.lines) + "\n"

def vr(b, n=1): return f"v{b}" if n == 1 else f"v[{b}:{b+n-1}]"
def sr(b, n=4): return f"s{b}" if n == 1 else f"s[{b}:{b+n-1}]"
def srd(a, d, p, size):
    a(f"s_mov_b32 s{d}, s{p}")
    a(f"s_mov_b32 s{d+1}, s{p+1}")
    a(f"s_mov_b32 s{d+2}, {size}")
    a(f"s_mov_b32 s{d+3}, 0x00020000")
def csel(a, d, t, f):
    a(f"s_mov_b32 s{d}, {f}")
    a(f"s_cmov_b32 s{d}, {t}")
def split3(a, src, t0, t1, d0, d1):
    a(f"v_and_b32 v{t0}, 0xffff0000, v{src}")
    a(f"v_sub_f32 v{t1}, v{src}, v{t0}")
    a(f"v_lshrrev_b32 v{d0}, 16, v{src}")
    a(f"v_and_b32 v{t0}, 0xffff0000, v{t1}")
    a(f"v_or_b32 v{d0}, v{d0}, v{t0}")
    a(f"v_sub_f32 v{t1}, v{t1}, v{t0}")
    a(f"v_lshrrev_b32 v{d1}, 16, v{t1}")
def halfop(a, op, r, t):
    a(f"v_mov_b32 v{t}, v{r}")
    a("s_nop 1")
    a(f"v_permlane32_swap_b32 v{t}, v{r}")
    a(f"{op} v{r}, v{r}, v{t}")
def umax(a, dst, regs):
    regs = list(regs)
    a(f"v_max3_u32 v{dst}, v{regs[0]}, v{regs[1]}, v{regs[2]}")
    r = regs[3:]
    while len(r) >= 2:
        a(f"v_max3_u32 v{dst}, v{dst}, v{r[0]}, v{r[1]}"); r = r[2:]
    if r: a(f"v_max_u32 v{dst}, v{dst}, v{r[0]}")

SWS, SA, SB, SX, SDBG = 4, 8, 12, 16, 20
sSI = 3
sW, sNON = 24, 25
sRB, sCG, sTT = 26, 27, 28
sQ = sTT
sT0, sT1, sT2 = 29, 30, 31
pX, pWQ, pWK, pWV, pWO, pW1, pW2, pOUT, pDBG, pWS = 32, 34, 36, 38, 40, 44, 46, 48, 50, 52
sWSTEP, sSO, sSTEP, sM0, sC, sDEL, sCC, sOUT, sFL, sQS = range(54, 64)
sT, sHG, sG, sOB = 86, 87, 92, 93
sF2, sWBASE, sT3, sFAST, sST, sSPIN = 94, 95, 96, 97, 98, 99
sXW, sLO = 53, 52
sPB = 51
sSOW, sM0W = 90, 91
sPm, sBAD, sPt = 34, 38, 42
sOm, sOt, sKV, sTGT = 48, 49, 0, 1
sMODE, sCNT, sFQ, sKOK = 8, 9, 88, 89
sCOL, sHO, sFC = 54, 59, 60

def spin_tail(a, L):
    a(f"s_sub_u32 s{sSPIN}, s{sSPIN}, 1")
    a(f"s_cbranch_scc0 {L}")

def poll(a, vaddr, vtmp, soff, sleep=1):
    L, D = a.uid("POLL"), a.uid("POLLED")
    a(f"s_mov_b32 s{sSPIN}, {SPIN}")
    a.label(L)
    a(f"buffer_load_dword v{vtmp}, v{vaddr}, {sr(SWS)}, {soff} offen sc1")
    a("s_waitcnt vmcnt(0)")
    a(f"v_cmp_ne_u32 vcc, s{sNON}, v{vtmp}")
    a(f"s_cbranch_vccz {D}")
    if sleep: a(f"s_sleep {sleep}")
    spin_tail(a, L)
    a.label(D)

def stores(a, lines):
    L, D = a.uid("SLOW"), a.uid("STD")
    a(f"s_cmp_eq_u32 s{sFAST}, 0")
    a(f"s_cbranch_scc1 {L}")
    fl = {"nt": " nt", "sc0": " sc0", "sc0nt": " sc0 nt"}.get(sys.argv[sys.argv.index("--sf") + 1] if opt("sf") else "", "")
    for l in lines: a(l + (fl if l.startswith("buffer_store_dwordx4") else ""))
    a.label(D)
    a.tail.append((L, [l + (" sc1" if l.startswith("buffer_store") else "") for l in lines], D))

def xcc_word(a):
    a(f"s_getreg_b32 s{sXW}, hwreg(HW_REG_XCC_ID, 0, 4)")
    a(f"s_lshl_b32 s{sXW}, s{sXW}, 1")
    a(f"s_xor_b32 s{sXW}, s{sXW}, s{sNON}")

def check_fast(a, vaddr, vtmp):
    L = a.uid("CF")
    a(f"s_cmp_lg_u32 s{sFAST}, 0")
    a(f"s_cbranch_scc1 {L}")
    a(f"s_and_b32 s{sT0}, s2, 7")
    a(f"s_lshl_b32 s{sT0}, s{sT0}, 7")
    a(f"s_add_u32 s{sT0}, s{sT0}, {WS_XC}")
    a(f"v_and_b32 v{vaddr}, 31, v1")
    a(f"v_lshlrev_b32 v{vaddr}, 2, v{vaddr}")
    a(f"buffer_load_dword v{vtmp}, v{vaddr}, {sr(SWS)}, s{sT0} offen sc1")
    a("s_waitcnt vmcnt(0)")
    a(f"v_cmp_ne_u32 vcc, s{sXW}, v{vtmp}")
    a("s_cmp_eq_u64 vcc, 0")
    a(f"s_cselect_b32 s{sFAST}, {0 if opt('slow') else 1}, 0")
    a.label(L)

K1_SLOT = 36864
K1_XOFF = 20480
K1_CS = 147456
K1_ST = K1_CS + 2048
L_VT = 147456
L_OP = 0
L_RING = 73728
L_FP = L_RING - 20480
L_MREC = L_RING + 81920
L_CNT = L_MREC + 2048
LDS_BYTES = L_CNT + 64
fD, fD2, fH, fO, fSTG, fBL, fTR, fA, fG, fPW = 232, 237, 242, 243, 244, 248, 252, 253, 254, 255

aS = [16, 32, 48, 64]
aO = lambda i: 80 + 12 * i
aQM = lambda i: 180 + 4 * i
aQT = lambda i: 212 + 2 * i
aKM = [228, 242]; aKT = [232, 246]; aV0 = [234, 248]; aV1 = [238, 252]
avV, avKT = 14, 15

def ldkm(a, b, va): a(f"buffer_load_dwordx4 {vr(aKM[b], 4)}, v{va}, {sr(SWS)}, s{sKV} offen sc1")
def ldkt(a, b): a(f"buffer_load_dwordx2 {vr(aKT[b], 2)}, v{avKT}, {sr(SWS)}, s{sKV} offen sc1")
def ldv(a, u, b): a(f"buffer_load_dwordx4 {vr((aV0, aV1)[u][b], 4)}, v{avV}, {sr(SWS)}, s{sKV} offen" + (" offset:768" if u else "") + " sc1")
def kv_first(a, va):
    a(f"s_mul_i32 s{sKV}, s{sQ}, {16*KV_REC}")
    a(f"s_add_u32 s{sKV}, s{sKV}, {WS_KV}")
    ldkm(a, 0, va); ldkt(a, 0); ldv(a, 0, 0); ldv(a, 1, 0)
    a(f"s_add_u32 s{sKV}, s{sKV}, {KV_REC}")
    ldkm(a, 1, va); ldkt(a, 1)
def zero16(a, r, z):
    a(f"v_mfma_f32_32x32x8_bf16 {vr(r, 16)}, {vr(z, 2)}, {vr(z, 2)}, 0")
def att_zero(a):
    z = aV0[1]
    for r in range(z, z + 8, 2): a(f"v_mov_b64 {vr(r, 2)}, 0")
    for r in range(176, 180, 2): a(f"v_mov_b64 {vr(r, 2)}, 0")
    for r in range(aS[3], 176, 16): zero16(a, r, z)

def row_offsets(a, dst, vL, t0, t1, extra, ps=range(5)):
    for p in ps:
        a(f"v_add_u32 v{t0}, {64*p}, v{vL}")
        a(f"v_mul_u32_u24 v{t1}, 3277, v{t0}")
        a(f"v_lshrrev_b32 v{t1}, 16, v{t1}")
        a(f"v_lshlrev_b32 v{t0}, 4, v{t0}")
        a(f"v_mad_u32_u24 v{dst+p}, v{t1}, {extra}, v{t0}")

def item_addr(a, base_item, vA, vG, t):
    if base_item: a(f"v_add_u32 v{vA}, {base_item}, v0")
    else: a(f"v_mov_b32 v{vA}, v0")
    a(f"v_lshrrev_b32 v{t}, 7, v{vA}")
    a(f"v_mul_u32_u24 v{t+1}, 20480, v{t}")
    a(f"v_lshlrev_b32 v{vG}, 6, v{t}")
    a(f"v_and_b32 v{t}, 3, v{vA}")
    a(f"v_lshl_add_u32 v{t+1}, v{t}, 5, v{t+1}")
    a(f"v_lshl_add_u32 v{vG}, v{t}, 4, v{vG}")
    a(f"v_bfe_u32 v{t}, v{vA}, 2, 5")
    a(f"v_mul_u32_u24 v{vA}, 144, v{t}")
    a(f"v_mul_u32_u24 v{t}, 1280, v{t}")
    a(f"v_add_u32 v{vG}, v{vG}, v{t}")
    a(f"v_add3_u32 v{vA}, v{vA}, v{t+1}, s100")

def flag_words(a, dst, vL):
    a(f"s_and_b32 s{sT0}, s{sT}, 2")
    a(f"s_and_b32 s{sT1}, s{sT}, 3")
    a(f"s_add_u32 s{sT1}, s{sT1}, 4")
    a(f"v_bfe_u32 v{dst}, v{vL}, 4, 1")
    a(f"v_add_u32 v{dst}, s{sT0}, v{dst}")
    a("s_mov_b32 exec_lo, 0")
    a(f"v_mov_b32 v{dst}, s{sT1}")
    a("s_mov_b32 exec_lo, -1")
    a(f"v_lshlrev_b32 v{dst}, 2, v{dst}")

def ffn_pre(a, vL, t0, t1):
    a("s_movk_i32 s100, 960")
    row_offsets(a, fD, vL, t0, t1, "s100")
    for p in range(5):
        a(f"v_add_u32 v{t0}, {64*p}, v{vL}")
        a(f"v_mul_u32_u24 v{t0}, 3277, v{t0}")
        a(f"v_lshrrev_b32 v{t0}, 18, v{t0}")
        a(f"v_mul_u32_u24 v{t0}, {16*1280}, v{t0}")
        a(f"v_add_u32 v{fD2+p}, v{fD+p}, v{t0}")
    a(f"v_lshrrev_b32 v{t0}, 5, v{vL}")
    a(f"v_bfe_u32 v{t1}, v{vL}, 2, 2")
    a(f"v_lshl_add_u32 v{t0}, v{t0}, 2, v{t1}")
    a(f"v_mul_u32_u24 v{fSTG}, 320, v{t0}")
    a(f"v_bfe_u32 v{t0}, v{vL}, 4, 1")
    a(f"v_lshl_add_u32 v{fSTG}, v{t0}, 5, v{fSTG}")
    a(f"v_and_b32 v{t0}, 3, v{vL}")
    a(f"v_lshl_add_u32 v{fSTG}, v{t0}, 3, v{fSTG}")
    a(f"s_mul_i32 s{sT1}, s{sQ}, 5120")
    a(f"v_add_u32 v{fSTG}, s{sT1}, v{fSTG}")
    a(f"v_add_u32 v{fTR}, {L_RING}, v{fSTG}")
    a(f"v_mov_b64 {vr(fBL, 2)}, -1")
    a(f"v_mov_b64 {vr(fBL+2, 2)}, -1")
    a(f"s_mul_i32 s{sT0}, s{sQ}, {27*26}")
    a(f"s_lshr_b32 s{sT0}, s{sT0}, 8")
    a(f"s_add_u32 s{sT0}, s{sT0}, 4")
    a(f"v_add_u32 v{fH}, s{sT0}, v{t0}")
    a(f"v_min_u32 v{fH}, 14, v{fH}")
    a(f"s_lshr_b32 s{sT2}, s{sT}, 2")
    a(f"s_lshl_b32 s{sT2}, s{sT2}, 11")
    a(f"s_add_u32 s{sT2}, s{sT2}, {WS_F1 + 32}")
    a(f"v_lshl_add_u32 v{fH}, v{fH}, 7, s{sT2}")
    flag_words(a, t1, vL)
    a(f"v_add_u32 v{fH}, v{fH}, v{t1}")
    a(f"s_lshl_b32 s{sT2}, s{sT}, 2")
    a(f"s_add_u32 s{sT2}, s{sT2}, s{sQ}")
    a(f"s_lshl_b32 s{sT2}, s{sT2}, 7")
    a(f"s_add_u32 s{sT2}, s{sT2}, {WS_F2 + 16}")
    a(f"v_lshl_add_u32 v{fO}, v{t0}, 2, s{sT2}")
    a(f"s_mov_b32 s100, {L_FP}")
    item_addr(a, 0, fA, fG, t0)
    a(f"v_and_b32 v{t0}, 31, v{vL}")
    a(f"v_mul_u32_u24 v{t0}, 144, v{t0}")
    a(f"v_lshrrev_b32 v{t1}, 5, v{vL}")
    a(f"v_lshl_add_u32 v{t0}, v{t1}, 4, v{t0}")
    a(f"s_mul_i32 s{sT1}, s{sQ}, 5120")
    a(f"s_add_u32 s{sT1}, s{sT1}, {L_FP}")
    a(f"v_add_u32 v{fPW}, s{sT1}, v{t0}")

def gen_p1(a):
    vL, vN, vH, vT0, vT1, vT2, vZ = 1, 2, 3, 4, 5, 6, 7
    vX, vD = 8, 16
    vNON, vROW, vFL, vFV = 21, 22, 23, 22
    vG16, vC4 = 26, 27
    vDW = 56
    FB = [28, 32]
    a(f"s_cmp_ge_u32 s2, 256")
    a("s_cbranch_scc1 L_END")
    a("s_load_dwordx16 s[32:47], s[0:1], 0")
    a("s_load_dwordx4 s[48:51], s[0:1], 64")
    a("s_load_dwordx2 s[52:53], s[0:1], 80")
    a("s_memrealtime s[100:101]")
    if opt("cp"):
        NL = optv("cp", 1)
        a("s_getpc_b64 s[4:5]")
        a("s_lshr_b32 s6, s2, 3")
        a(f"s_and_b32 s6, s6, {32 // NL - 1}")
        a(f"s_lshl_b32 s6, s6, {10 + NL.bit_length() - 1}")
        a("s_add_u32 s4, s4, s6")
        a("s_addc_u32 s5, s5, 0")
        a(f"v_lshlrev_b32 v60, {NL.bit_length()}, v0")
        a(f"v_and_b32 v60, {(1024 * NL - 128):#x}, v60")
        a("v_mov_b32 v63, s5")
        a("v_add_co_u32 v62, vcc, s4, v60")
        a("s_nop 1")
        a("v_addc_co_u32 v63, vcc, 0, v63, vcc")
        a("global_load_dword v61, v[62:63], off")
    a(f"v_lshrrev_b32 v{vT0}, 6, v0")
    a(f"v_and_b32 v{vL}, 63, v0")
    a(f"v_readfirstlane_b32 s{sW}, v{vT0}")
    a(f"s_and_b32 s{sT1}, s2, 7")
    a(f"s_bfe_u32 s{sSI}, s2, 0x10003")
    a(f"s_lshl_b32 s{sCC}, s{sT1}, 1")
    a(f"s_add_u32 s{sRB}, s{sCC}, s{sSI}")
    a(f"s_lshr_b32 s{sCG}, s2, 4")
    a(f"s_sub_u32 s{sT0}, s{sRB}, 9")
    a(f"s_cmp_ge_u32 s{sRB}, 10")
    a(f"s_cselect_b32 s{sCC}, s{sT0}, s{sRB}")
    a(f"s_mov_b32 s{sST}, s{sCC}")
    a(f"s_and_b32 s{sTT}, s{sW}, 3")
    a(f"s_lshl_b32 s{sT0}, s{sRB}, 2")
    a(f"s_add_u32 s{sT3}, s{sT0}, s{sTT}")
    a(f"s_cmp_lt_u32 s{sW}, 4")
    a("s_cbranch_scc1 P1_A")

    def xpiece(p):
        a(f"s_add_u32 m0, s{sM0}, {1024*p}")
        a("s_nop 0")
        a(f"buffer_load_dwordx4 v{vD+p}, {sr(SX)}, s{sSO} offen lds")
    def wpiece(p, kv=False):
        a(f"s_add_u32 m0, s{sM0W}, {(4096 if kv else 1024)*p}")
        a("s_nop 0")
        if kv: a(f"buffer_load_dwordx4 v{vDW}, {sr(SA if p == 0 else SB)}, s{sSOW} offen lds")
        else: a(f"buffer_load_dwordx4 v{vDW+p}, {sr(SA)}, s{sSOW} offen lds")
    def next_chunk(x, w, dm0):
        a(f"s_add_u32 s{sCC}, s{sCC}, 1")
        a(f"s_cmp_eq_u32 s{sCC}, 10")
        a(f"s_cselect_b32 s{sCC}, 0, s{sCC}")
        if x:
            a(f"s_lshl_b32 s{sSO}, s{sCC}, 7")
            a(f"s_add_u32 s{sM0}, s{sM0}, {dm0}")
        if w:
            a(f"s_mul_i32 s{sSOW}, s{sCC}, s{sWSTEP}")
            a(f"s_add_u32 s{sSOW}, s{sSOW}, s{sWBASE}")
            a(f"s_add_u32 s{sM0W}, s{sM0W}, {dm0}")
    def w_setup(wait):
        a(f"s_sub_u32 s{sT0}, s{sCG}, 4")
        a(f"s_cmp_lt_u32 s{sCG}, 4")
        csel(a, sT2, 1280, 3456)
        a(f"s_cselect_b32 s{sT0}, s{sCG}, s{sT0}")
        a(f"s_mul_i32 s{sT0}, s{sT0}, 320")
        a(f"s_lshl_b32 s{sWBASE}, s{sTT}, 4")
        a(f"s_mul_i32 s{sWBASE}, s{sWBASE}, s{sT2}")
        a(f"s_add_u32 s{sWBASE}, s{sWBASE}, s{sT0}")
        a(f"s_lshl_b32 s{sWSTEP}, s{sT2}, 6")
        a(f"s_sub_u32 s{sT2}, s{sT2}, 320")
        row_offsets(a, vDW, vL, vT0, vT1, f"s{sT2}")
        a(f"s_mul_i32 s{sSOW}, s{sCC}, s{sWSTEP}")
        a(f"s_add_u32 s{sSOW}, s{sSOW}, s{sWBASE}")
        a(f"s_mul_i32 s{sM0W}, s{sTT}, 5120")
        a(f"s_cmp_lt_u32 s{sCG}, 4")
        if wait: a("s_waitcnt lgkmcnt(0)")
        a(f"s_cselect_b32 s{SA}, s{pWQ}, s{pW1}")
        a(f"s_cselect_b32 s{SA+1}, s{pWQ+1}, s{pW1+1}")
        csel(a, SA + 2, 640 * 640 * 2, 640 * 1728 * 2)
        a(f"s_mov_b32 s{SA+3}, 0x00020000")
    def st01():
        if PROFILE: a("s_mov_b32 s64, s100")
        a.stamp(1)

    RW = 192
    a(f"s_lshl_b32 s{sT0}, s{sT3}, 5")
    a(f"v_lshrrev_b32 v{vT0}, 3, v{vL}")
    a(f"v_add_u32 v{vT0}, s{sT0}, v{vT0}")
    a(f"v_mul_u32_u24 v{vT0}, 1280, v{vT0}")
    a(f"v_lshrrev_b32 v{vT1}, 4, v{vL}")
    a(f"v_and_b32 v{vT2}, 7, v{vL}")
    a(f"v_xor_b32 v{vT1}, v{vT1}, v{vT2}")
    a(f"v_lshl_add_u32 v{vD}, v{vT1}, 4, v{vT0}")
    a(f"v_xor_b32 v{vT1}, 4, v{vT1}")
    a(f"v_lshl_add_u32 v{vD+1}, v{vT1}, 4, v{vT0}")
    a(f"v_add_u32 v{vD+1}, {8*1280}, v{vD+1}")
    a(f"v_add_u32 v{vD+2}, {16*1280}, v{vD}")
    a(f"v_add_u32 v{vD+3}, {16*1280}, v{vD+1}")
    a(f"s_lshl_b32 s{sSO}, s{sCC}, 7")
    a(f"s_lshl_b32 s{sM0}, s{sTT}, 12")
    a(f"s_add_u32 s{sM0}, s{sM0}, {K1_XOFF}")
    a("s_waitcnt lgkmcnt(0)")
    srd(a, SX, pX, 2048 * 1280)
    st01()
    for p in range(4): xpiece(p)
    a("s_barrier")
    a(f"s_cmp_eq_u32 s{sCG}, 15")
    a("s_cbranch_scc1 P1_KB")
    a("s_branch P1_GB")
    a.label("P1_A")
    a(f"s_cmp_eq_u32 s{sCG}, 15")
    a("s_cbranch_scc1 P1_KA0")
    w_setup(True)
    st01()
    for p in range(5): wpiece(p)
    a("s_barrier")

    def tr_addr(dst, tile):
        a(f"s_cmp_lt_u32 s{sCG}, 4")
        if tile == 4:
            a(f"s_cselect_b32 s{sT0}, 32, 0x100")
            a(f"s_cselect_b32 s{sT1}, 160, 32")
            a(f"s_cselect_b32 s{sT2}, 40, 8")
            a(f"v_mad_u32_u24 v{dst}, v{vC4}, s{sT2}, v{vROW}")
        else:
            a(f"s_cselect_b32 s{sT1}, 40, 32")
            if isinstance(tile, tuple):
                a(f"s_lshl_b32 s{sT0}, s{sT1}, 1")
                a(f"s_mul_i32 s{sT0}, s{sT0}, s{tile[1]}")
            else:
                a(f"s_mul_i32 s{sT0}, s{sT1}, {2*tile}")
            a(f"v_lshl_add_u32 v{dst}, v{vC4}, 3, v{vROW}")
        a(f"v_mad_u32_u24 v{dst}, v{vG16}, s{sT1}, v{dst}")
        a(f"v_add_u32 v{dst}, s{sT0}, v{dst}")

    def body(tag, role, kv):
        A_, B_ = role == "A", role == "B"
        nt = 1 if (kv or B_) else 4
        tiles = [0] if kv else ([0, 1, 2, 3] if A_ else [4])
        sstr, rstr = (1024, 40) if kv else (5120, 320)
        vTR = 16 if A_ else 12
        vSA = 13
        FA = [128, 144] if A_ else [36, 40]
        ACC, P = (64, 160) if A_ else (180, 212)
        GAT = 228
        ST, NM, CSR = (36, 40, 44) if A_ else (44, 48, 50)
        ONE, PUB = 24, 52
        nxt = "P2_FFN" if A_ else "P2_ATT"
        def m4(d, x, y):
            a(f"v_mfma_f32_4x4x4_16b_bf16 {vr(d, 4)}, {vr(x, 2)}, {vr(y, 2)}, {vr(d, 4)}")
        def get_nonce(publish):
            L, D = a.uid("NON"), a.uid("NOND")
            a(f"s_mov_b32 s{sSPIN}, {SPIN}")
            a.label(L)
            a(f"v_readfirstlane_b32 s{sNON}, v{vNON}")
            a(f"s_cmp_lg_u32 s{sNON}, 0")
            a(f"s_cbranch_scc1 {D}")
            a(f"buffer_load_dword v{vNON}, v{vZ}, {sr(SDBG)}, 0 offen sc1")
            a("s_waitcnt vmcnt(0)")
            spin_tail(a, L)
            a.label(D)
            xcc_word(a)
            if publish:
                L = a.uid("XW")
                a(f"s_cmp_lg_u32 s{sW}, 0")
                a(f"s_cbranch_scc1 {L}")
                a(f"s_and_b32 s{sT0}, s2, 7")
                a(f"s_lshl_b32 s{sT0}, s{sT0}, 5")
                a(f"s_lshr_b32 s{sT1}, s2, 3")
                a(f"s_add_u32 s{sT0}, s{sT0}, s{sT1}")
                a(f"s_lshl_b32 s{sT0}, s{sT0}, 2")
                a(f"s_add_u32 s{sT0}, s{sT0}, {WS_XC}")
                a(f"v_mov_b32 v{vT1}, s{sXW}")
                a("s_mov_b64 exec, 1")
                a(f"buffer_store_dword v{vT1}, v{vZ}, {sr(SWS)}, s{sT0} offen sc1")
                a("s_mov_b64 exec, -1")
                a.label(L)
        def row_stats(part=None):
            for p, f in enumerate((rs0, rs1, rs2, rs3)):
                if part is None or part == p: f()
        SU, SQ, R = RW + 10, RW + 11, RW + 12
        def rs0():
            a(f"v_mov_b64 {vr(SU, 2)}, 0")
            for j in range(10):
                a(f"v_dot2c_f32_bf16 v{SU}, v{ONE}, v{RW+j}")
                a(f"v_dot2c_f32_bf16 v{SQ}, v{RW+j}, v{RW+j}")
            a("s_nop 2")
        def rs1():
            for m in ("row_shr:1", "row_shr:2", "row_shr:4", "row_shr:8"):
                a(f"v_add_f32_dpp v{SU}, v{SU}, v{SU} {m} row_mask:0xf bank_mask:0xf bound_ctrl:0")
                a(f"v_add_f32_dpp v{SQ}, v{SQ}, v{SQ} {m} row_mask:0xf bank_mask:0xf bound_ctrl:0")
                a("s_nop 0")
            a(f"v_add_f32_dpp v{SU}, v{SU}, v{SU} row_bcast:15 row_mask:0xa bank_mask:0xf")
            a(f"v_add_f32_dpp v{SQ}, v{SQ}, v{SQ} row_bcast:15 row_mask:0xa bank_mask:0xf")
        def rs2():
            a(f"v_mul_f32 v{SU}, {f32bits(1.0/640):#x}, v{SU}")
            a(f"v_mul_f32 v{SQ}, {f32bits(1.0/640):#x}, v{SQ}")
            a(f"v_fma_f32 v{SQ}, -v{SU}, v{SU}, v{SQ}")
            a(f"v_max_f32 v{SQ}, 0, v{SQ}")
            a(f"v_cvt_pk_bf16_f32 v{R}, -v{SU}, -v{SU}")
            a(f"v_cvt_pk_bf16_f32 v{SQ}, v{SQ}, v{SQ}")
            a(f"v_and_b32 v{SQ}, 0xffff0000, v{SQ}")
            a(f"v_add_f32 v{SQ}, {f32bits(1e-5):#x}, v{SQ}")
            a(f"v_cvt_pk_bf16_f32 v{SQ}, v{SQ}, v{SQ}")
            a(f"v_and_b32 v{SQ}, 0xffff0000, v{SQ}")
            a(f"v_sqrt_f32 v{SQ}, v{SQ}")
            a("s_nop 0")
            a(f"v_cvt_pk_bf16_f32 v{SQ}, v{SQ}, v{SQ}")
            a(f"v_and_b32 v{SQ}, 0xffff0000, v{SQ}")
            a(f"v_rcp_f32 v{R+2}, v{SQ}")
        def rs3():
            a(f"v_mov_b32 v{R+1}, v{vNON}")
            a(f"v_mov_b32 v{R+3}, v{vNON}")
            a(f"v_lshlrev_b32 v{vT1}, 4, v{vH}")
            a(f"s_lshl_b32 s{sT0}, s{sSTEP}, 5")
            a(f"s_add_u32 s{sT0}, s{sT0}, {WS_RS}")
            a("s_mov_b32 exec_lo, 0x80000000")
            a("s_mov_b32 exec_hi, 0x80000000")
            a(f"buffer_store_dwordx4 {vr(R, 4)}, v{vT1}, {sr(SWS)}, s{sT0} offen sc1")
            a("s_mov_b64 exec, -1")
        def row_load(dst):
            a(f"s_lshl_b32 s{sT0}, s{sT3}, 9")
            a(f"s_add_u32 s{sT0}, s{sT0}, {WS_RS}")
            a(f"v_lshlrev_b32 v{vT0}, 4, v{vN}")
            a(f"buffer_load_dwordx4 {vr(dst, 4)}, v{vT0}, {sr(SWS)}, s{sT0} offen sc1")
        def tag_check(regs, again, ok):
            a(f"v_xor_b32 v{vT1}, s{sNON}, v{regs[0]}")
            for r in regs[1:]: a(f"v_bitop3_b32 v{vT1}, v{r}, s{sNON}, v{vT1} bitop3:0xbe")
            a(f"v_cmp_ne_u32 vcc, 0, v{vT1}")
            a(f"s_cbranch_vccz {ok}")
            a("s_sleep 2")
            spin_tail(a, again)
            a.label(ok)
        def next_slot():
            a(f"s_and_b32 s{sT0}, s{sC}, 3")
            csel(a, sT1, K1_SLOT, -3*K1_SLOT)
            a(f"s_cmp_eq_u32 s{sT0}, 3")
            csel(a, sDEL, -3*K1_SLOT, K1_SLOT)
            for s in range(4): a(f"v_add_u32 v{vX+s}, s{sDEL}, v{vX+s}")
            for i in range(nt): a(f"v_add_u32 v{vTR+i}, s{sDEL}, v{vTR+i}")
        if A_:
            srd(a, SX, pX, 2048 * 1280)
            a(f"s_lshl_b32 s{sT0}, s{sRB}, 4")
            a(f"s_add_u32 s{sT0}, s{sT0}, s{sCG}")
            a(f"s_lshl_b32 s{sT0}, s{sT0}, 2")
            a(f"s_add_u32 s{sSTEP}, s{sT0}, s{sTT}")
            a(f"s_mul_i32 s{sT0}, s{sSTEP}, 2560")
            a(f"v_mul_u32_u24 v{vT0}, 40, v{vL}")
            a(f"buffer_load_dwordx4 {vr(RW, 4)}, v{vT0}, {sr(SX)}, s{sT0} offen")
            a(f"buffer_load_dwordx4 {vr(RW+4, 4)}, v{vT0}, {sr(SX)}, s{sT0} offen offset:16")
            a(f"buffer_load_dwordx2 {vr(RW+8, 2)}, v{vT0}, {sr(SX)}, s{sT0} offen offset:32")
        if opt("wsoff"):
            a(f"s_add_u32 s{pWS}, s{pWS}, {optv('wsoff', 0) << 20}")
            a(f"s_addc_u32 s{pWS+1}, s{pWS+1}, 0")
        srd(a, SWS, pWS, WS_END)
        srd(a, SDBG, pDBG, 256)
        a(f"v_mov_b32 v{vZ}, 0")
        if A_ and not kv:
            L = a.uid("NONCE")
            a(f"s_or_b32 s{sT0}, s2, s{sW}")
            a(f"s_cbranch_scc1 {L}")
            if PROFILE: a("s_or_b32 s100, s65, 1")
            else: a("s_or_b32 s100, s100, 1")
            a(f"v_mov_b32 v{vT0}, s100")
            a(f"buffer_store_dword v{vT0}, v{vZ}, {sr(SDBG)}, 0 offen sc1")
            a.label(L)
        a(f"v_mov_b64 {vr(PUB, 2)}, 0")
        a(f"v_mov_b64 {vr(PUB+2, 2)}, 0")
        a(f"v_and_b32 v{vN}, 31, v{vL}")
        a(f"v_lshrrev_b32 v{vH}, 5, v{vL}")
        for i in range(nt): zero16(a, ACC + 16 * i, PUB)
        if B_ or kv: zero16(a, P, PUB)
        a(f"v_mov_b32 v{ONE}, 0x3f803f80")
        a(f"v_mov_b32 v{ONE+1}, 0x3f803f80")
        a(f"v_bfe_u32 v{vT0}, v{vL}, 1, 3")
        a(f"v_xor_b32 v{vT0}, v{vT0}, v{vH}")
        if A_ and not kv:
            a(f"s_and_b32 s{sT0}, s{sTT}, 2")
            a(f"s_lshl_b32 s{sT0}, s{sT0}, 12")
        else:
            a(f"s_lshl_b32 s{sT0}, s{sTT}, 12")
        a(f"s_add_u32 s{sT0}, s{sT0}, {K1_XOFF}")
        a(f"v_lshl_add_u32 v{vT1}, v{vN}, 7, s{sT0}")
        for s in range(4):
            a(f"v_xor_b32 v{vT2}, {2*s}, v{vT0}")
            a(f"v_lshl_add_u32 v{vX+s}, v{vT2}, 4, v{vT1}")
        a(f"v_bfe_u32 v{vT0}, v{vL}, 2, 2")
        a(f"v_lshl_add_u32 v{vROW}, v{vH}, 3, v{vT0}")
        a(f"v_bfe_u32 v{vG16}, v{vL}, 4, 1")
        a(f"v_and_b32 v{vC4}, 3, v{vL}")
        if kv:
            a(f"v_lshl_add_u32 v{vT0}, v{vG16}, 2, v{vC4}")
            a(f"v_min_u32 v{vT0}, 4, v{vT0}")
            a(f"v_mul_u32_u24 v{vROW}, 40, v{vROW}")
            a(f"v_lshl_add_u32 v{vTR}, v{vT0}, 3, v{vROW}")
            if B_: a(f"v_add_u32 v{vTR}, 4096, v{vTR}")
        else:
            a(f"v_mul_u32_u24 v{vROW}, 320, v{vROW}")
            if A_:
                a(f"s_and_b32 s{sDEL}, s{sTT}, 1")
                a(f"s_lshl_b32 s{sDEL}, s{sDEL}, 1")
                tr_addr(vTR, ("s", sDEL))
                a(f"s_lshl_b32 s{sT1}, s{sT1}, 1")
                a(f"v_add_u32 v{vTR+1}, s{sT1}, v{vTR}")
            else:
                tr_addr(vTR, 4)
            if B_:
                tr_addr(vSA, ("s", sTT))
                w_setup(False)
        next_chunk(B_, A_ or not kv, K1_SLOT)
        if B_:
            for p in range(4): xpiece(p)
        else:
            for p in range(2 if kv else 5): wpiece(p, kv)
        next_chunk(B_, kv != B_, K1_SLOT)
        a(f"s_and_b32 s{sT}, s2, 7")
        a(f"s_lshl_b32 s{sT}, s{sT}, 3")
        a(f"s_lshr_b32 s{sT0}, s2, 5")
        a(f"s_add_u32 s{sT}, s{sT}, s{sT0}")
        a(f"s_bfe_u32 s{sHG}, s2, 0x20003")
        a(f"s_mul_i32 s{sG}, s{sT}, {G_TSTRIDE}")
        a(f"s_mul_i32 s{sOB}, s{sT}, {32*1280}")
        a(f"s_mul_i32 s{sT0}, s{sHG}, 320")
        a(f"s_add_u32 s{sOB}, s{sOB}, s{sT0}")
        a(f"s_lshl_b32 s{sF2}, s{sT}, 2")
        a(f"s_add_u32 s{sF2}, s{sF2}, s{sHG}")
        a(f"s_lshl_b32 s{sF2}, s{sF2}, 7")
        a(f"s_add_u32 s{sF2}, s{sF2}, {WS_F2}")
        a(f"s_mul_i32 s{sOUT}, s{sT3}, {G_TSTRIDE}")
        a(f"s_mul_i32 s{sT0}, s{sCG}, 10240")
        a(f"s_add_u32 s{sOUT}, s{sOUT}, s{sT0}")
        a(f"s_cmp_lt_u32 s{sCG}, 4")
        a(f"s_cselect_b32 s{sQS}, {f32bits(QSCALE):#x}, 1.0")
        a(f"s_lshl_b32 s{sFL}, s{sRB}, 4")
        a(f"s_add_u32 s{sFL}, s{sFL}, s{sCG}")
        a(f"s_lshl_b32 s{sFL}, s{sFL}, 7")
        a(f"s_add_u32 s{sFL}, s{sFL}, {WS_F1}")
        a(f"s_mov_b32 s{sFAST}, 0")
        a(f"s_mov_b32 s{sC}, 0")
        if B_:
            srd(a, SB, pOUT, 2048 * 1280)
        elif not kv:
            ffn_pre(a, vL, vT0, vT1)
        def att_setup(part=None):
            for p, f in enumerate((as0, as1, as2, as3, as4)):
                if part is None or part == p: f()
        def as0():
            att_zero(a)
            a(f"v_mul_u32_u24 v{avV}, 384, v{vH}")
            a(f"v_lshl_add_u32 v{avV}, v{vN}, 4, v{avV}")
            a(f"v_add_u32 v{avV}, 1024, v{avV}")
            a(f"v_mov_b32 v{vT0}, {OOB:#x}")
            a(f"v_cmp_gt_u32 vcc, 21, v{vN}")
            a(f"v_min_u32 v{avKT}, 32, v{vL}")
            a(f"v_lshlrev_b32 v{avKT}, 3, v{avKT}")
            a(f"v_cndmask_b32 v{avV}, v{vT0}, v{avV}, vcc")
            a(f"v_add_u32 v{avKT}, 2560, v{avKT}")
        def as1(): pairs((0, 1))
        def pairs(js):
            a(f"s_mul_i32 s{sT2}, s{sHG}, 10240")
            a(f"s_add_u32 s{sT2}, s{sT2}, s{sG}")
            for j in js:
                a(f"s_add_u32 s{sT0}, s{sQ}, {j}")
                a(f"s_and_b32 s{sT0}, s{sT0}, 3")
                a(f"s_lshl_b32 s{sPm+j}, s{sT0}, 11")
                a(f"s_add_u32 s{sPm+j}, s{sPm+j}, s{sT2}")
                a(f"s_lshr_b32 s{sT1}, s{sT0}, 1")
                a(f"s_lshl_b32 s{sT1}, s{sT1}, 10")
                a(f"s_and_b32 s{sT0}, s{sT0}, 1")
                a(f"s_lshl_b32 s{sT0}, s{sT0}, 3")
                a(f"s_add_u32 s{sT1}, s{sT1}, s{sT0}")
                a(f"s_add_u32 s{sT1}, s{sT1}, s{sT2}")
                a(f"s_add_u32 s{sPt+j}, s{sT1}, 8192")
        def as2(): pairs((2, 3))
        def as3():
            a(f"s_mul_i32 s{sT2}, s{sT}, 40960")
            a(f"s_add_u32 s{sT2}, s{sT2}, {WS_O}")
            a(f"s_sub_u32 s{sT2}, s{sT2}, s{sG}")
            a(f"s_add_u32 s{sOm}, s{sPm}, s{sT2}")
            a(f"s_add_u32 s{sOt}, s{sPt}, s{sT2}")
            a(f"s_mov_b32 s{sTGT}, 0")
            a(f"v_mov_b32 v{vT0}, {L_CNT}")
            a(f"ds_write_b128 v{vT0}, {vr(aV0[1], 4)}")
            a(f"s_lshr_b32 s{sT0}, s{sT}, 2")
            a(f"s_lshl_b32 s{sT0}, s{sT0}, 4")
            a(f"s_add_u32 s{sT0}, s{sT0}, s{sHG}")
            a(f"s_lshl_b32 s{sT0}, s{sT0}, 7")
            a(f"s_add_u32 s{sFQ}, s{sT0}, {WS_F1 + 32}")
        def as4():
            a(f"v_and_b32 v{vT0}, 15, v{vL}")
            a(f"v_lshlrev_b32 v{vT0}, 11, v{vT0}")
            a(f"v_add_u32 v{vT0}, {WS_F1 + 15*128}, v{vT0}")
            a(f"s_and_b32 s{sT0}, s2, 7")
            a(f"s_lshl_b32 s{sT0}, s{sT0}, 7")
            a(f"s_add_u32 s{sT0}, s{sT0}, {WS_XC}")
            a(f"v_cmp_gt_u32 vcc, 32, v{vL}")
            a(f"v_lshl_add_u32 v{vT1}, v{vN}, 2, s{sT0}")
            a("s_nop 0")
            a(f"v_cndmask_b32 v{vFL}, v{vT1}, v{vT0}, vcc")

        if kv:
            nd = 4 if B_ else 2
            XB, WA = [28, ACC + 16], [128, 144] if A_ else [96, 112]
            def pieces(rng):
                for p in rng:
                    if p < nd: xpiece(p) if B_ else wpiece(p, True)
            pieces(range(4))
            next_chunk(B_, A_, K1_SLOT)
            a(f"s_waitcnt vmcnt({2*nd + (3 if A_ else 0)})")
            a.stamp(2)
            a("s_barrier")
            a.stamp(3); a.stamp(NSTAMP, True)
            for s in range(4):
                a(f"ds_read_b128 {vr(XB[0]+4*s, 4)}, v{vX+s}")
                a(f"ds_read_b64_tr_b16 {vr(WA[0]+4*s, 2)}, v{vTR} offset:{s*sstr}")
                a(f"ds_read_b64_tr_b16 {vr(WA[0]+4*s+2, 2)}, v{vTR} offset:{s*sstr+4*rstr}")
            a(f"buffer_load_dword v{vNON}, v{vZ}, {sr(SDBG)}, 0 offen sc1")
            pieces(range(4))
            a.label(f"P1_L{tag}")
            for b in range(2):
                next_slot()
                next_chunk(B_, A_, f"s{sT1}")
                if b == 0:
                    L = a.uid("KS")
                    a(f"s_cmp_lg_u32 s{sC}, 6")
                    a(f"s_cbranch_scc1 {L}")
                    if B_: a(f"s_mov_b32 s{SX+2}, 0")
                    else:
                        a(f"s_mov_b32 s{SA+2}, 0")
                        a(f"s_mov_b32 s{SB+2}, 0")
                    a.label(L)
                a(f"s_waitcnt vmcnt({2*nd}) lgkmcnt(0)")
                a("s_barrier")
                for s in range(4):
                    a(f"v_mfma_f32_32x32x16_bf16 {vr(ACC, 16)}, {vr(WA[b]+4*s, 4)}, {vr(XB[b]+4*s, 4)}, {vr(ACC, 16)}")
                    a(f"ds_read_b128 {vr(XB[b^1]+4*s, 4)}, v{vX+s}")
                    a(f"ds_read_b64_tr_b16 {vr(WA[b^1]+4*s, 2)}, v{vTR} offset:{s*sstr}")
                    a(f"ds_read_b64_tr_b16 {vr(WA[b^1]+4*s+2, 2)}, v{vTR} offset:{s*sstr+4*rstr}")
                    for j in range(2): m4(P + 4*j, ONE, WA[b]+4*s+2*j)
                    pieces([s])
                if b == 1:
                    L, L2 = a.uid("KN"), a.uid("KR")
                    a(f"s_cmp_lg_u32 s{sC}, 1")
                    a(f"s_cbranch_scc1 {L}")
                    get_nonce(A_)
                    if A_: row_stats()
                    a.label(L)
                    a(f"s_cmp_lg_u32 s{sC}, 7")
                    a(f"s_cbranch_scc1 {L2}")
                    row_load(ST + 16)
                    a.label(L2)
                if A_: a.lstamp(sC)
                a(f"s_add_u32 s{sC}, s{sC}, 1")
            a(f"s_cmp_lt_u32 s{sC}, 10")
            a(f"s_cbranch_scc1 P1_L{tag}")
            a.stamp(4); a.stamp(NSTAMP + 1, True)
            if A_: a.ldump()
            R = ST + 16
            a(f"s_mov_b32 s{sSPIN}, {SPIN}")
            a(f"s_branch P1_GW{tag}")
            a.label(f"P1_GA{tag}")
            row_load(R)
            a.label(f"P1_GW{tag}")
            a("s_waitcnt vmcnt(0) lgkmcnt(0)")
            tag_check([R + 1, R + 3], f"P1_GA{tag}", f"P1_FOK{tag}")
            a(f"v_add_f32 v{P}, v{P}, v{P+4}")
            split3(a, P, vT0, vT1, CSR, CSR + 1)
            a(f"v_mov_b32 v{R+1}, v{R}")
            a(f"v_mov_b32 v{R+3}, v{R+2}")
            a(f"v_lshlrev_b32 v{vT2}, 4, v{vL}")
            a(f"v_mfma_f32_32x32x8_bf16 {vr(ACC, 16)}, {vr(CSR, 2)}, {vr(R, 2)}, {vr(ACC, 16)}")
            a("s_nop 9")
            a(f"s_mul_i32 s{sT0}, s{sT3}, {KV_REC}")
            a(f"s_add_u32 s{sT0}, s{sT0}, {WS_KV}")
            for j in range(6): a(f"v_pk_mul_f32 {vr(ACC+2*j, 2)}, {vr(ACC+2*j, 2)}, {vr(R+2, 2)}")
            if A_:
                for j in range(6): a(f"v_cvt_pk_bf16_f32 v{P+j}, v{ACC+2*j}, v{ACC+2*j+1}")
                a(f"v_min_u32 v{vT0}, 32, v{vL}")
                a(f"v_lshlrev_b32 v{vT0}, 3, v{vT0}")
                a("s_mov_b32 exec_lo, 0")
                a(f"v_mov_b32 v{P+4}, 0x3f803f80")
                a(f"v_mov_b32 v{P+5}, 0x3f80")
                a("s_mov_b32 exec_lo, -1")
                a(f"buffer_store_dwordx4 {vr(P, 4)}, v{vT2}, {sr(SWS)}, s{sT0} offen sc1")
                a(f"buffer_store_dwordx2 {vr(P+4, 2)}, v{vT0}, {sr(SWS)}, s{sT0} offen offset:2560 sc1")
            else:
                a("s_mov_b32 exec_lo, 0")
                a(f"v_mov_b32 v{ACC+8}, 1.0")
                a("s_mov_b32 exec_lo, -1")
                for j in range(6): a(f"v_cvt_pk_bf16_f32 v{P+j}, v{ACC+2*j}, v{ACC+2*j+1}")
                a(f"s_mul_i32 s{sT1}, s{sTT}, 1536")
                a(f"s_add_u32 s{sT1}, s{sT1}, {L_VT}")
                a(f"v_lshrrev_b32 v{vT0}, 3, v{vN}")
                a(f"v_mul_u32_u24 v{vT0}, 384, v{vT0}")
                a(f"v_and_b32 v{vT1}, 7, v{vN}")
                a(f"v_lshl_add_u32 v{vT0}, v{vT1}, 1, v{vT0}")
                a(f"v_lshl_add_u32 v{vT0}, v{vH}, 6, v{vT0}")
                a(f"v_add_u32 v{vT0}, s{sT1}, v{vT0}")
                for r in range(12):
                    op = "ds_write_b16" if r % 2 == 0 else "ds_write_b16_d16_hi"
                    a(f"{op} v{vT0}, v{P+r//2} offset:{(r//4)*128 + (r%4)*16}")
                a(f"v_add_u32 v{vT0}, s{sT1}, v{vT2}")
                a("s_waitcnt lgkmcnt(0)")
                a(f"ds_read_b128 {vr(P+8, 4)}, v{vT0}")
                a(f"ds_read_b128 {vr(P+12, 4)}, v{vT0} offset:1024")
                a("s_waitcnt lgkmcnt(0)")
                a(f"buffer_store_dwordx4 {vr(P+8, 4)}, v{vT2}, {sr(SWS)}, s{sT0} offen offset:1024 sc1")
                a("s_mov_b32 exec_hi, 0")
                a(f"buffer_store_dwordx4 {vr(P+12, 4)}, v{vT2}, {sr(SWS)}, s{sT0} offen offset:2048 sc1")
                a("s_mov_b32 exec_hi, -1")
            a.stamp(5)
            a("s_waitcnt vmcnt(0) lgkmcnt(0)")
            a("s_barrier")
            if B_:
                a(f"s_mov_b32 s{sKOK}, 0")
                a(f"s_cmp_lg_u32 s{sW}, 4")
                a(f"s_cbranch_scc1 P1_KNP")
                a("s_mov_b64 exec, 1")
                a(f"buffer_store_dword v{vNON}, v{vZ}, {sr(SWS)}, s{sFL} offen sc1")
                a("s_mov_b64 exec, -1")
                a.label("P1_KNP")
                att_setup()
                a("s_waitcnt lgkmcnt(0)")
                a("s_barrier")
            else:
                ffn_pre(a, vL, vT0, vT1)
                a("s_barrier")
                srd(a, SX, pW2, 1728 * 1280)
                a(f"s_mul_i32 s{sT2}, s{sW}, 5120")
                a(f"s_mul_i32 s{sT0}, s{sW}, {27*16*1280}")
                a(f"s_mul_i32 s{sT1}, s{sHG}, 320")
                a(f"s_add_u32 s{sT0}, s{sT0}, s{sT1}")
                for i in range(3):
                    for p in range(5):
                        a(f"s_add_u32 m0, s{sT2}, {L_RING + i*20480 + p*1024}")
                        a("s_nop 0")
                        a(f"buffer_load_dwordx4 v{fD+p}, {sr(SX)}, s{sT0} offen lds")
                    a(f"s_add_u32 s{sT0}, s{sT0}, {16*1280}")
            a(f"s_branch {nxt}")
            return

        def mfma(i, p): a(f"v_mfma_f32_32x32x16_bf16 {vr(ACC+16*i, 16)}, {vr(FA[p]+4*i, 4)}, {vr(FB[p], 4)}, {vr(ACC+16*i, 16)}")
        def rdb(q, ns): a(f"ds_read_b128 {vr(FB[q], 4)}, v{vX+ns}")
        def rda(q, i, ns):
            a(f"ds_read_b64_tr_b16 {vr(FA[q]+4*i, 2)}, v{vTR+i} offset:{ns*sstr}")
            a(f"ds_read_b64_tr_b16 {vr(FA[q]+4*i+2, 2)}, v{vTR+i} offset:{ns*sstr+4*rstr}")
        def rank1(i): a(f"v_mfma_f32_32x32x8_bf16 {vr(ACC+16*i, 16)}, {vr(CSR+2*i, 2)}, {vr(NM, 2)}, {vr(ACC+16*i, 16)}")
        def pack_store(i, t):
            for j in range(8): a(f"v_pk_mul_f32 {vr(ACC+16*i+2*j, 2)}, {vr(ACC+16*i+2*j, 2)}, {vr(ST, 2)}")
            for j in range(8): a(f"v_cvt_pk_bf16_f32 v{P+8*i+j}, v{ACC+16*i+2*j}, v{ACC+16*i+2*j+1}")
            L = a.uid("NR")
            a(f"s_cmp_lt_u32 s{sCG}, 4")
            a(f"s_cbranch_scc1 {L}")
            for j in range(8): a(f"v_pk_max_i16 v{P+8*i+j}, v{P+8*i+j}, 0")
            a.label(L)
            a(f"s_add_u32 s{sT0}, s{sOUT}, {t}")
            stores(a, [f"buffer_store_dwordx4 {vr(P+8*i+4*e, 4)}, v{vT2}, {sr(SWS)}, s{sT0} offen offset:{1024*e}" for e in range(2)])
        def signal(vn):
            a.stamp(5)
            a(f"s_lshl_b32 s{sT0}, s{sW}, 2")
            a(f"s_add_u32 s{sT0}, s{sT0}, s{sFL}")
            a("s_mov_b64 exec, 1")
            a("s_waitcnt vmcnt(0)")
            stores(a, [f"buffer_store_dword v{vn}, v{vZ}, {sr(SWS)}, s{sT0} offen offset:32"])
            a("s_mov_b64 exec, -1")
            if opt("tp") and A_:
                a(f"buffer_load_dword v229, v{vT0}, {sr(SWS)}, s{sOUT} offen sc1")
                a(f"s_add_u32 s{sT0}, s{sOUT}, 8192")
                a("s_mov_b64 exec, 0xffff")
                a(f"buffer_load_dword v229, v{vT0}, {sr(SWS)}, s{sT0} offen sc1")
                a("s_mov_b64 exec, -1")
            a(f"s_branch {nxt}")
        if A_:
            XB, WF = [128, 136], [144, 152]
            REC = [28, 36]
            vRS, vRC = 20, 23
            a(f"s_and_b32 s{sT0}, s{sTT}, 2")
            a(f"s_lshl_b32 s{sT1}, s{sT0}, 10")
            a(f"s_add_u32 s{sT1}, s{sT1}, {K1_ST}")
            a(f"v_lshl_add_u32 v{vRS}, v{vN}, 5, s{sT1}")
            a(f"s_and_b32 s{sT2}, s{sTT}, 1")
            a(f"s_lshl_b32 s{sT1}, s{sT2}, 10")
            a(f"s_add_u32 s{sT1}, s{sT1}, {K1_CS}")
            a(f"v_lshl_add_u32 v{vRC}, v{vL}, 3, s{sT1}")
            a(f"s_mul_i32 s{sT1}, s{sT2}, {4096 - G_TSTRIDE}")
            a(f"s_add_u32 s{sOUT}, s{sOUT}, s{sT1}")
            a(f"v_lshlrev_b32 v{vT2}, 4, v{vL}")
            srd(a, SX, pW2, 1728 * 1280)
            a(f"s_mul_i32 s{sPB}, s{sRB}, 15")
            a(f"s_add_u32 s{sPB}, s{sPB}, s{sCG}")
            a(f"s_lshl_b32 s{sPB}, s{sPB}, 2")
            a(f"s_add_u32 s{sPB}, s{sPB}, s{sTT}")
            a(f"s_mul_i32 s{sSO}, s{sPB}, {7*128}")
            a(f"s_mul_i32 s{sPB}, s{sPB}, {18*128}")
            srd(a, SB, pWO, 640 * 1280)
            a(f"v_lshlrev_b32 v{vT0}, 7, v{vL}")
            def mf(j, i, p): a(f"v_mfma_f32_32x32x16_bf16 {vr(ACC+32*j+16*i, 16)}, {vr(WF[p]+4*i, 4)}, {vr(XB[p]+4*j, 4)}, {vr(ACC+32*j+16*i, 16)}")
            def rx(q, j, ns): a(f"ds_read_b128 {vr(XB[q]+4*j, 4)}, v{vX+ns}" + (" offset:4096" if j else ""))
            def rw(q, i, ns):
                a(f"ds_read_b64_tr_b16 {vr(WF[q]+4*i, 2)}, v{vTR+i} offset:{ns*sstr}")
                a(f"ds_read_b64_tr_b16 {vr(WF[q]+4*i+2, 2)}, v{vTR+i} offset:{ns*sstr+4*rstr}")
            a("s_waitcnt vmcnt(8)")
            a.stamp(2)
            a("s_barrier")
            rx(0, 0, 0); rw(0, 0, 0); rw(0, 1, 0); rx(0, 1, 0)
            a.stamp(3); a.stamp(NSTAMP, True)
            def step(s, pre=None, extra=0):
                p, q, ns = s & 1, (s + 1) & 1, (s + 1) & 3
                if pre is None: a(f"s_waitcnt lgkmcnt({3 + extra})")
                mf(0, 0, p)
                if pre is not None: pre()
                rx(q, 0, ns)
                if pre is None: a(f"s_waitcnt lgkmcnt({1 + extra})")
                mf(0, 1, p)
                rw(q, 0, ns)
                mf(1, 1, p)
                rw(q, 1, ns)
                mf(1, 0, p)
                rx(q, 1, ns)
            a.raw(".p2align 3")
            a.label(f"P1_L{tag}")
            for s in range(3): step(s)
            a(f"s_and_b32 s{sT0}, s{sC}, 3")
            a(f"s_cmp_eq_u32 s{sT0}, 3")
            csel(a, sDEL, -3*K1_SLOT, K1_SLOT)
            for s in range(4): a(f"v_add_u32 v{vX+s}, s{sDEL}, v{vX+s}")
            for i in range(2): a(f"v_add_u32 v{vTR+i}, s{sDEL}, v{vTR+i}")
            TC = optv("tc", 3)
            TO = 9
            a(f"s_bitcmp1_b32 {7 | (1 << TC):#x}, s{sC}")
            a("s_waitcnt lgkmcnt(0)")
            def pre():
                a(f"s_cbranch_scc1 P1_X{tag}")
                a.label(f"P1_W1{tag}")
                a("s_barrier")
            step(3, pre)
            a.lstamp(sC)
            a(f"s_add_u32 s{sC}, s{sC}, 1")
            a(f"s_cmp_lt_u32 s{sC}, 9")
            a(f"s_cbranch_scc1 P1_L{tag}")
            a(f"ds_read_b128 {vr(REC[0], 4)}, v{vRS}")
            a(f"ds_read_b64 {vr(REC[0]+4, 2)}, v{vRS} offset:16")
            a(f"ds_read_b128 {vr(REC[1], 4)}, v{vRS} offset:1024")
            for i in range(2): a(f"ds_read_b64 {vr(CSR+2*i, 2)}, v{vRC} offset:{512*i}")
            step(0, None, 5)
            step(1)
            rds = [lambda: rx(1, 0, 3), lambda: rw(1, 0, 3), lambda: rw(1, 1, 3), lambda: rx(1, 1, 3)]
            for n in range(4):
                j, i = n >> 1, n & 1
                a(f"v_mfma_f32_32x32x8_bf16 {vr(ACC+16*n, 16)}, {vr(CSR+2*i, 2)}, {vr(REC[j], 2)}, {vr(ACC+16*n, 16)}")
                rds[n]()
            a(f"v_readfirstlane_b32 s{sFAST}, v{REC[0]+5}")
            a("s_waitcnt lgkmcnt(3)")
            mf(0, 0, 0); mf(0, 0, 1)
            a("s_waitcnt lgkmcnt(0)")
            a("s_barrier")
            a.stamp(4); a.stamp(NSTAMP + 1, True)
            mf(0, 1, 0); mf(0, 1, 1)
            a("s_nop 7")
            for n in range(4):
                if n < 2: mf(1, n, 0); mf(1, n, 1)
                ST = REC[n >> 1] + 2
                pack_store(n, (n >> 1) * G_TSTRIDE + (n & 1) * 2048)
            a.ldump()
            signal(REC[0] + 4)
            a.label(f"P1_X{tag}")
            for c in range(3):
                L = a.uid("XH")
                a(f"s_cmp_lg_u32 s{sC}, {c}")
                a(f"s_cbranch_scc1 {L}")
                if c == 0:
                    a("s_waitcnt vmcnt(5)")
                    row_stats(0); row_stats(1)
                    a("s_waitcnt vmcnt(0)")
                    a(f"buffer_load_dword v{vNON}, v{vZ}, {sr(SDBG)}, 0 offen sc1")
                elif c == 1:
                    row_stats(2)
                else:
                    a("s_waitcnt vmcnt(0)")
                    get_nonce(True)
                    row_stats(3)
                a(f"s_branch P1_W1{tag}")
                a.label(L)
            if not opt("notq"):
                a(f"s_mul_i32 s{sT0}, s{sHG}, 10240")
                a(f"s_add_u32 s{sT0}, s{sT0}, s{sG}")
                a(f"s_mul_i32 s{sT1}, s{sTT}, 2560")
                a(f"s_add_u32 s{sT0}, s{sT0}, s{sT1}")
                a("s_mov_b64 exec, 0xfffff")
                a(f"buffer_load_dword v229, v{vT0}, {sr(SWS)}, s{sT0} offen")
            a("s_mov_b64 exec, 0x7f")
            a(f"buffer_load_dword v230, v{vT0}, {sr(SB)}, s{sSO} offen")
            a("s_mov_b64 exec, 0x3ffff")
            a(f"buffer_load_dword v231, v{vT0}, {sr(SX)}, s{sPB} offen")
            a("s_mov_b64 exec, -1")
            a(f"s_branch P1_W1{tag}")
            return
        NM, ST = 44, 46
        vWO, CG, RR = 200, 204 - 8, 206
        CG = 196
        a(f"s_lshl_b32 s{sPB}, s{sCG}, 2")
        a(f"s_add_u32 s{sPB}, s{sPB}, s{sTT}")
        a(f"s_mul_i32 s{sPB}, s{sPB}, 5120")
        a(f"s_add_u32 s{sPB}, s{sPB}, {WS_CP}")
        a(f"s_sub_u32 s{sM0}, s{sM0}, {2*K1_SLOT}")
        a(f"s_sub_u32 s{sM0W}, s{sM0W}, {2*K1_SLOT}")
        a("s_setprio 1")
        ops = ["X0"] * 4 + ["D1"] * 4
        def vm(tag_, n=1): ops.extend([tag_] * n)
        def wait(*tags):
            last = max(i for i, t in enumerate(ops) if t in tags)
            return len(ops) - 1 - last
        def xp(c, p):
            a(f"s_add_u32 m0, s{sM0}, {(c & 3)*K1_SLOT + 1024*p}")
            a("s_nop 0")
            a(f"buffer_load_dwordx4 v{vD+p}, {sr(SX)}, s{sSO} offen lds"); vm(f"D{c}")
        def wp(c, p):
            base = (c & 3) * K1_SLOT if c < 10 else L_RING + (c - 10) * 20480
            a(f"s_add_u32 m0, s{sM0W}, {base + 1024*p}")
            a("s_nop 0")
            a(f"buffer_load_dwordx4 v{(vDW if c < 10 else vWO)+p}, {sr(SA)}, s{sSOW} offen lds"); vm(f"D{c}")
        def adv(c):
            if c < 10:
                a(f"s_add_u32 s{sCC}, s{sCC}, 1")
                a(f"s_cmp_eq_u32 s{sCC}, 10")
                a(f"s_cselect_b32 s{sCC}, 0, s{sCC}")
                a(f"s_lshl_b32 s{sSO}, s{sCC}, 7")
                a(f"s_mul_i32 s{sSOW}, s{sCC}, s{sWSTEP}")
                a(f"s_add_u32 s{sSOW}, s{sSOW}, s{sWBASE}")
            elif c == 10:
                srd(a, SA, pW2, 1728 * 1280)
                a(f"s_mul_i32 s{sSOW}, s{sTT}, {27*16*1280}")
                a(f"s_mul_i32 s{sT0}, s{sHG}, 320")
                a(f"s_add_u32 s{sSOW}, s{sSOW}, s{sT0}")
            elif c < 13:
                a(f"s_add_u32 s{sSOW}, s{sSOW}, {16*1280}")
        def f_nonce(): get_nonce(False)
        def f_cspub():
            a(f"v_add_f32 v{PUB}, v{P}, v{P+8}")
            a(f"v_add_f32 v{PUB+2}, v{P+4}, v{P+12}")
            halfop(a, "v_add_f32", PUB, vT0); halfop(a, "v_add_f32", PUB + 2, vT0)
            a(f"v_mov_b32 v{PUB+1}, v{vNON}")
            a(f"v_mov_b32 v{PUB+3}, v{vNON}")
            a(f"v_lshlrev_b32 v{vT2}, 4, v{vL}")
            a(f"s_lshl_b32 s{sT1}, s{sST}, 9")
            a(f"s_add_u32 s{sT0}, s{sPB}, s{sT1}")
            a("s_mov_b32 exec_hi, 0")
            a(f"buffer_store_dwordx4 {vr(PUB, 4)}, v{vT2}, {sr(SWS)}, s{sT0} offen sc1"); vm("S")
            a("s_mov_b32 exec_hi, -1")
        def f_rowpub(): row_stats(3); vm("S")
        def f_wo(ps):
            a(f"s_movk_i32 s{sT2}, 960")
            row_offsets(a, vWO, vL, vT0, vT1, f"s{sT2}", ps)
        def gather(js, count=True):
            for j in js:
                if j == 0:
                    row_load(RR)
                    a(f"v_mul_u32_u24 v{vT1}, 2560, v{vH}")
                    a(f"v_add_u32 v{vSA}, v{vT0}, v{vT1}")
                else:
                    a(f"buffer_load_dwordx4 {vr(GAT+4*(j-1), 4)}, v{vSA}, {sr(SWS)}, s{sPB} offen offset:{512*(j-1)} sc1")
                if count: vm("G")
        def f_words(t):
            a(f"buffer_load_dword v{vFV}, v{vFL}, {sr(SWS)}, 0 offen sc1"); vm(t)
        def f_fin0():
            a(f"s_mov_b32 s{sSPIN}, {SPIN}")
            a(f"s_waitcnt vmcnt({wait('G', 'XW')})")
            a(f"v_cmp_ne_u32 vcc, s{sXW}, v{vFV}")
            a("s_cmp_eq_u32 vcc_hi, 0")
            a(f"s_cselect_b32 s{sFAST}, {0 if opt('slow') else 1}, 0")
            a.label(f"P1_FC{tag}")
            tag_check([RR + 1, RR + 3] + [GAT + 2*j + 1 for j in range(10)], f"P1_GA{tag}", f"P1_FOK{tag}")
        def f_fin1():
            a(f"v_mov_b32 v{NM}, v{RR}")
            a(f"v_mov_b32 v{NM+1}, v{RR}")
            a(f"v_mul_f32 v{ST}, s{sQS}, v{RR+2}")
            a(f"v_mul_f32 v{ST+1}, s{sQS}, v{RR+2}")
            a(f"v_mov_b32 v{RR}, s{sNON}")
            a(f"v_mov_b32 v{RR+1}, s{sFAST}")
            a(f"s_lshl_b32 s{sT0}, s{sTT}, 10")
            a(f"s_add_u32 s{sT0}, s{sT0}, {K1_ST}")
            a(f"v_lshl_add_u32 v{vT0}, v{vN}, 5, s{sT0}")
            a(f"ds_write_b128 v{vT0}, {vr(NM, 4)}")
            a(f"ds_write_b64 v{vT0}, {vr(RR, 2)} offset:16")
            for j in range(1, 5):
                a(f"v_add_f32 v{GAT}, v{GAT}, v{GAT+4*j}")
                a(f"v_add_f32 v{GAT+2}, v{GAT+2}, v{GAT+4*j+2}")
        def f_fin2():
            split3(a, GAT, vT0, vT1, PUB, PUB + 1)
            a(f"s_lshl_b32 s{sT0}, s{sTT}, 9")
            a(f"s_add_u32 s{sT0}, s{sT0}, {K1_CS}")
            a(f"v_lshl_add_u32 v{vT0}, v{vL}, 3, s{sT0}")
            a(f"ds_write_b64 v{vT0}, {vr(PUB, 2)}")
            split3(a, GAT + 2, vT0, vT1, CSR, CSR + 1)
            f_words("KF")
        def f_kv():
            L = a.uid("NOKV")
            a(f"s_waitcnt vmcnt({wait('KF')})")
            a(f"v_cmp_ne_u32 vcc, s{sNON}, v{vFV}")
            a(f"s_mov_b32 s{sKOK}, 0")
            a("s_cmp_lg_u32 vcc_lo, 0")
            a(f"s_cbranch_scc1 {L}")
            kv_first(a, vT2)
            a(f"s_mov_b32 s{sKOK}, 1")
            a.label(L)
        def f_tlb():
            if not opt("tlb"): return
            a(f"v_lshlrev_b32 v{vT0}, 21, v{vL}")
            a("s_mov_b64 exec, 0x7f")
            a(f"buffer_load_dword v20, v{vT0}, {sr(SWS)}, 0 offen"); vm("T")
            a("s_mov_b64 exec, 1")
            a(f"buffer_load_dword v20, v{vZ}, {sr(SB)}, s{sOB} offen"); vm("T")
            a("s_mov_b64 exec, -1")
        def f_code():
            if not opt("code"): return
            a("s_getpc_b64 s[100:101]")
            a.label("PCREF")
            a(f"s_lshr_b32 s{sT0}, s2, 3")
            a(f"s_lshl_b32 s{sT0}, s{sT0}, 2")
            a(f"s_add_u32 s{sT0}, s{sT0}, s{sTT}")
            a(f"s_lshl_b32 s{sT0}, s{sT0}, 7")
            a(f"s_add_u32 s{sT0}, s{sT0}, P2_ATT-PCREF")
            a(f"s_add_u32 s100, s100, s{sT0}")
            a("s_addc_u32 s101, s101, 0")
            a(f"v_mov_b32 v{vT0}, s100")
            a(f"v_mov_b32 v{vT1}, s101")
            a("s_mov_b64 exec, 1")
            a(f"global_load_dword v20, {vr(vT0, 2)}, off"); vm("T")
            a("s_mov_b64 exec, -1")
        fill = {(2, 0): f_nonce, (2, 1): f_cspub, (3, 1): lambda: f_wo((0, 1)), (4, 1): lambda: f_wo((2, 3)), (1, 1): lambda: (f_wo((4,)), att_setup(4)),
                (5, 0): lambda: gather((0,)), (5, 1): lambda: gather((1,)), (5, 2): lambda: gather((2,)),
                (6, 0): lambda: gather((3,)), (6, 1): lambda: gather((4,)), (6, 2): lambda: gather((5,)),
                (7, 0): lambda: (f_words("XW"), att_setup(0)), (7, 1): lambda: att_setup(1), (7, 2): lambda: att_setup(3),
                (8, 0): f_fin0, (8, 1): f_fin1, (8, 2): f_fin2, (9, 0): lambda: (rank1(0), att_setup(2)), (9, 2): f_kv}
        a(f"s_waitcnt vmcnt({wait('X0')})")
        a.stamp(2)
        a("s_barrier")
        rdb(0, 0); rda(0, 0, 0)
        for p in range(5): wp(2, p)
        for p in range(4): xp(2, p)
        a(f"buffer_load_dword v{vNON}, v{vZ}, {sr(SDBG)}, 0 offen sc1"); vm("N")
        a.stamp(3); a.stamp(NSTAMP, True)
        for c in range(10):
            adv(c + 3)
            for s in range(4):
                p, q, ns = s & 1, (s + 1) & 1, (s + 1) & 3
                if c == 0:
                    a(f"ds_read_b64_tr_b16 {vr(CG, 2)}, v{vSA} offset:{s*sstr}")
                    a(f"ds_read_b64_tr_b16 {vr(CG+2, 2)}, v{vSA} offset:{s*sstr+4*rstr}")
                if s == 3 and c < 9:
                    d = -3 * K1_SLOT if (c & 3) == 3 else K1_SLOT
                    for r in list(range(vX, vX + 4)) + [vTR]: a(f"v_add_u32 v{r}, {d}, v{r}")
                a("s_waitcnt lgkmcnt(0)")
                mfma(0, p)
                if c == 0:
                    for j in range(2):
                        m4(P + 8*j, ONE, CG + 2*j); m4(P + 8*j + 4, ONE, FA[p] + 2*j)
                if s == 3:
                    if c < 9: a(f"s_waitcnt vmcnt({wait(f'D{c+1}', 'N') if c == 1 else wait(f'D{c+1}')})")
                    a("s_barrier")
                if c < 9 or s < 3:
                    rdb(q, ns); rda(q, 0, ns)
                if s < 3:
                    for pp in ((0, 1), (2, 3), (4,))[s]: wp(c + 3, pp)
                    if c + 3 < 10:
                        for pp in ((0,), (1,), (2, 3))[s]: xp(c + 3, pp)
                    if (c, s) in fill: fill[(c, s)]()
        a.stamp(4); a.stamp(NSTAMP + 1, True)
        a("s_setprio 0")
        a("s_nop 9")
        pack_store(0, 8192)
        signal(vNON)
        a.label(f"P1_GA{tag}")
        gather(range(6), False)
        a("s_waitcnt vmcnt(0)")
        a(f"s_branch P1_FC{tag}")

    body("GA", "A", False)
    a.label("P1_GB")
    body("GB", "B", False)
    a.label("P1_KA0")
    a(f"v_lshlrev_b32 v{vDW}, 4, v{vL}")
    a(f"s_mul_i32 s{sWBASE}, s{sW}, 640")
    a(f"s_mov_b32 s{sWSTEP}, 2560")
    a(f"s_mul_i32 s{sSOW}, s{sCC}, 2560")
    a(f"s_add_u32 s{sSOW}, s{sSOW}, s{sWBASE}")
    a(f"s_lshl_b32 s{sM0W}, s{sW}, 10")
    a("s_waitcnt lgkmcnt(0)")
    srd(a, SA, pWK, 640 * 40)
    srd(a, SB, pWV, 640 * 40)
    st01()
    for p in range(2): wpiece(p, True)
    a("s_barrier")
    body("KA", "A", True)
    a.label("P1_KB")
    body("KB", "B", True)

def kdesc(name, nv, ns=102):
    return f""".amdhsa_kernel {name}
  .amdhsa_next_free_vgpr {nv}
  .amdhsa_next_free_sgpr {ns}
  .amdhsa_accum_offset {(nv+3)//4*4}
  .amdhsa_group_segment_fixed_size 0
  .amdhsa_kernarg_size 88
  .amdhsa_user_sgpr_count 2
  .amdhsa_user_sgpr_kernarg_segment_ptr 1
  .amdhsa_system_sgpr_workgroup_id_x 1
.end_amdhsa_kernel
"""

def build():
    from g14p2 import gen_ffn, gen_att
    hdr = open("cdna_kernels/" + NAME + ".s.ref").read().split("; Override launch")[0]
    out = hdr
    out += f"; @launch grid=(256,1,1) block=(512,1,1) lds={LDS_BYTES}\n"
    out += '.amdgcn_target "amdgcn-amd-amdhsa--gfx950"\n.text\n'
    a = Asm()
    k = NAME + "_kernel"
    a.raw(f".globl {k}\n.p2align 8\n.type {k},@function")
    a.label(k)
    gen_p1(a)
    a.p2 = True
    a.label("P2_ATT")
    gen_att(a)
    a.label("P2_FFN")
    gen_ffn(a)
    for L, lines, D in a.tail:
        a.label(L)
        for l in lines: a(l)
        a(f"s_branch {D}")
    a.label("L_END")
    a("s_endpgm")
    if opt("cp"): a.raw(".fill 1280, 4, 0xbf810000")
    out += a.text()
    out += '.section .rodata,"a"\n.p2align 6\n' + kdesc(k, 256)
    return out

if __name__ == "__main__":
    path = sys.argv[1] if len(sys.argv) > 1 and not sys.argv[1].startswith("--") else "cdna_kernels/" + NAME + ".s"
    open(path, "w").write(build())
```

```python
from g16 import *

LD = {"plain": "", "nt": " nt", "sc0": " sc0"}.get(sys.argv[sys.argv.index("--ld") + 1] if opt("ld") else "", " sc1")
LDO = " nt" if opt("ldo") else " sc1"
def cnt_arrive(a, vaddr, vtmp, inc="1", off=0):
    a(f"v_mov_b32 v{vtmp}, {inc}")
    a("s_mov_b64 exec, 1")
    a(f"ds_add_u32 v{vaddr}, v{vtmp}" + (f" offset:{off}" if off else ""))
    a("s_mov_b64 exec, -1")
def cnt_wait(a, vaddr, vtmp, tgt, sleep=0, off=0):
    L, D = a.uid("CW"), a.uid("CWD")
    a(f"s_mov_b32 s{sSPIN}, {SPIN * 16}")
    a.label(L)
    a(f"ds_read_b32 v{vtmp}, v{vaddr}" + (f" offset:{off}" if off else ""))
    a("s_waitcnt lgkmcnt(0)")
    a(f"v_readfirstlane_b32 s{sT0}, v{vtmp}")
    a(f"s_and_b32 s{sT2}, s{sT0}, 0xffff")
    a(f"s_cmp_ge_u32 s{sT2}, {tgt}")
    a(f"s_cbranch_scc1 {D}")
    if sleep: a(f"s_sleep {sleep}")
    spin_tail(a, L)
    a.label(D)

def final_stage(a, base_item, X, R, vA, vG, load_x, do_rest):
    if load_x and load_x != "load":
        a(f"s_mov_b32 s100, {L_FP}")
        item_addr(a, base_item, vA, vG, X)
    if load_x and load_x != "addr":
        a(f"buffer_load_dwordx4 {vr(X, 4)}, v{vG}, {sr(SX)}, s{sOB} offen")
    if do_rest == 1:
        for s in range(4):
            a(f"ds_read_b128 {vr(R+8*s, 4)}, v{vA} offset:{s*5120}")
            a(f"ds_read_b128 {vr(R+8*s+4, 4)}, v{vA} offset:{s*5120+16}")
    if do_rest == 2:
        for j in range(4):
            a(f"v_lshlrev_b32 v{R+32+2*j}, 16, v{X+j}")
            a(f"v_and_b32 v{R+33+2*j}, 0xffff0000, v{X+j}")
    if do_rest >= 3:
        for s in range(4):
            a(f"s_waitcnt lgkmcnt({6-2*s + (do_rest-3)})")
            for j in range(4):
                a(f"v_pk_add_f32 {vr(R+32+2*j, 2)}, {vr(R+32+2*j, 2)}, {vr(R+8*s+2*j, 2)}")
        for j in range(4): a(f"v_cvt_pk_bf16_f32 v{X+j}, v{R+32+2*j}, v{R+33+2*j}")
        a(f"buffer_store_dwordx4 {vr(X, 4)}, v{vG}, {sr(SB)}, s{sOB} offen")

def gen_att(a):
    vL, vKM, vQT, vIDX, vT0, vT1, vCNT = 1, 2, 3, 4, 5, 6, 7
    vP = 8
    vT2, vT3 = 12, 13
    vFL = 23
    S, O, QM, QT, KM, KT, V0, V1 = aS, aO, aQM, aQT, aKM, aKT, aV0, aV1
    def qk1(s, kb, q): a(f"v_mfma_f32_32x32x16_bf16 {vr(S[s], 16)}, {vr(KM[kb], 4)}, {vr(QM(q), 4)}, 0")
    def qk2(s, kb, q): a(f"v_mfma_f32_32x32x8_bf16 {vr(S[s], 16)}, {vr(KT[kb], 2)}, {vr(QT(q), 2)}, {vr(S[s], 16)}")
    def pv(u, s, vb, q): a(f"v_smfmac_f32_32x32x32_bf16 {vr(O(q), 16)}, {vr((V0, V1)[u][vb], 4)}, {vr(S[s]+8*u, 8)}, v{vIDX}")
    def ldq(i):
        a(f"buffer_load_dwordx4 {vr(QM(i), 4)}, v{vKM}, {sr(SWS)}, s{sPm+i//2} offen" + (" offset:1024" if i & 1 else "") + LD)
        a(f"buffer_load_dwordx2 {vr(QT(i), 2)}, v{vQT}, {sr(SWS)}, s{sPt+i//2} offen" + (" offset:512" if i & 1 else "") + LD)
    def qregs(lo, hi): return list(range(QM(lo), QM(hi))) + list(range(QT(lo), QT(hi)))
    def rowmax(s, dst):
        b = S[s]
        a(f"v_max3_f32 v{dst}, v{b}, v{b+1}, v{b+2}")
        for j in range(3, 15, 2): a(f"v_max3_f32 v{dst}, v{dst}, v{b+j}, v{b+j+1}")
        a(f"v_max_f32 v{dst}, v{dst}, v{b+15}")
    def pair_addr(mul, base, vlane, shift):
        for j in range(4):
            a(f"s_add_u32 s{sT0}, s{sQ}, {j}")
            a(f"s_and_b32 s{sT0}, s{sT0}, 3")
            a(f"s_mul_i32 s{sT0}, s{sT0}, {mul}")
            a(f"s_add_u32 s{sT0}, s{sT0}, {base}")
            a(f"v_lshl_add_u32 v{vP+j}, v{vlane}, {shift}, s{sT0}")

    a("s_setprio 3")
    a(f"s_mov_b32 s{sMODE}, 0")
    a(f"v_lshlrev_b32 v{vKM}, 4, v{vL}")
    a(f"v_mov_b32 v{vT0}, {OOB:#x}")
    a(f"v_cmp_gt_u32 vcc, 32, v{vL}")
    a(f"v_mov_b32 v{vIDX}, 0xdddddddd")
    a(f"v_mov_b32 v{vCNT}, {L_CNT}")
    a(f"v_cndmask_b32 v{vQT}, v{vT0}, v{vKM}, vcc")
    cnt_arrive(a, vCNT, vT0, off=8)
    a.stamp(6)
    a(f"s_cmp_lg_u32 s{sKOK}, 0")
    a("s_cbranch_scc1 A_HAVEKV")
    a("s_mov_b32 exec_hi, 0")
    poll(a, vFL, vT0, "0")
    a("s_mov_b32 exec_hi, -1")
    a.label("A_RELOAD")
    kv_first(a, vKM)
    a.label("A_HAVEKV")
    check_fast(a, vT1, vT0)
    a(f"v_and_b32 v{vT1}, 31, v{vL}")
    pair_addr(512, L_MREC, vT1, 3)
    flag_words(a, vT1, vL)
    a.stamp(7)
    poll(a, vT1, vT0, f"s{sFQ}", optv("qsleep", 1))
    check_fast(a, vT1, vT0)
    a.stamp(8)
    ldq(0); ldq(1)
    a(f"s_cmp_lg_u32 s{sMODE}, 0")
    a("s_cbranch_scc1 A_TRUEMAX")
    a.c("stand-in for the row max: max over this wave's first 32 keys; checked after the loop, exact-max rerun if unsafe")
    ldq(2); ldq(3)
    a("s_waitcnt vmcnt(4)")
    qk1(0, 0, 0); qk2(0, 0, 0); qk1(1, 0, 1); qk2(1, 0, 1)
    for i in range(4, 8): ldq(i)
    a("s_nop 1")
    rowmax(0, S[2]); rowmax(1, S[2] + 1)
    a(f"v_mov_b32 v{vT0}, v{S[2]}")
    a(f"v_mov_b32 v{vT1}, v{S[2]+1}")
    a("s_nop 0")
    a(f"v_permlane32_swap_b32 v{vT0}, v{S[2]}")
    a(f"v_permlane32_swap_b32 v{vT1}, v{S[2]+1}")
    a(f"v_max_f32 v{S[2]}, v{S[2]}, v{vT0}")
    a(f"v_max_f32 v{S[2]+1}, v{S[2]+1}, v{vT1}")
    a("s_mov_b32 exec_lo, 0")
    for e in range(2): a(f"v_cvt_pk_bf16_f32 v{QT(e)}, -v{S[2]+e}, 0")
    a.label("A_HAVEMAX")
    for e in range(2): a(f"ds_write_b64 v{vP}, {vr(QT(e), 2)} offset:{256*e}")
    a("s_mov_b32 exec_lo, -1")
    cnt_arrive(a, vCNT, vT0)
    a(f"s_add_u32 s{sTGT}, s{sTGT}, 4")
    a(f"s_mov_b32 s{sCNT}, 8")
    a.stamp(9)
    a.stamp(10); a.stamp(NSTAMP + 2, True)
    qk1(0, 0, 0); qk2(0, 0, 0)
    a("s_cmp_lg_u32 0, 0")
    a("s_nop 10")
    a.raw(".p2align 6")
    a.label("A_LOOP")
    PAT0 = (3, 3, 4, 3, 3)
    PAT1 = tuple(int(ch) for ch in sys.argv[sys.argv.index("--pat1") + 1]) if opt("pat1") else PAT0
    PMASK = optv("pmask", 0)
    def slot(sc, nxt, prv, holes, PAT=PAT0):
        e = [0]
        def exps(n):
            for _ in range(n):
                a(f"v_exp_f32 v{S[sc]+e[0]}, v{S[sc]+e[0]}"); e[0] += 1
        ms = [lambda: qk1((sc + 1) & 3, *nxt), lambda: pv(0, (sc - 1) & 3, *prv), lambda: qk2((sc + 1) & 3, *nxt), lambda: pv(1, (sc - 1) & 3, *prv)]
        for j in range(4):
            if nxt is not None or j & 1: ms[j]()
            if j in holes: holes[j]()
            exps(PAT[j])
        holes[4]()
        exps(PAT[4])
    for kb in range(2):
        for q in range(8):
            def hole():
                if q == 0:
                    if kb == 0:
                        a("s_cbranch_scc0 A_FIRST")
                        a.label("A_FIRSTD")
                    a("s_waitcnt vmcnt(2)"); ldv(a, 0, kb ^ 1)
                elif q == 1: ldv(a, 1, kb ^ 1)
                elif q == 2: a(f"s_add_u32 s{sKV}, s{sKV}, {KV_REC}")
                elif q == 3 and kb == 0: a(f"s_sub_u32 s{sCNT}, s{sCNT}, 1")
                elif q == 4 and kb == 0: a(f"s_cmp_eq_u32 s{sCNT}, 0")
                elif q == 4: a("s_cmp_eq_u32 0, 0")
                elif q == 5: a("s_waitcnt vmcnt(2)")
                elif q == 6: ldkm(a, kb, vKM)
                elif q == 7: ldkt(a, kb)
                elif opt("nop"): a("s_nop 0")
            slot(q & 3, ((kb if q < 7 else kb ^ 1), (q + 1) & 7), ((kb if q > 0 else kb ^ 1), (q - 1) & 7), {4: hole}, PAT1 if (PMASK >> q) & 1 else PAT0)
        if kb == 0:
            a.lstamp(sCNT, 0)
            a("s_cbranch_scc1 A_LAST")
    a("s_branch A_LOOP")
    a.label("A_FIRST")
    a(f"s_mov_b32 s{sSPIN}, {SPIN * 16}")
    a("s_waitcnt vmcnt(0)")
    a.label("A_F0")
    a(f"ds_read_b32 v{vT1}, v{vCNT}")
    a("s_mov_b32 exec_lo, 0")
    for i in range(2, 8): a(f"ds_read_b64 {vr(QT(i), 2)}, v{vP+i//2} offset:{256*(i&1)}")
    a("s_mov_b32 exec_lo, -1")
    a("s_waitcnt lgkmcnt(6)")
    a(f"v_readfirstlane_b32 s{sT0}, v{vT1}")
    a(f"s_and_b32 s{sT0}, s{sT0}, 0xffff")
    a(f"s_cmp_ge_u32 s{sT0}, s{sTGT}")
    a("s_cbranch_scc1 A_F0D")
    spin_tail(a, "A_F0")
    a.label("A_F0D")
    a(f"v_and_b32 v{vT0}, 31, v{vL}")
    a(f"v_mul_u32_u24 v{vT0}, {8*36}, v{vT0}")
    a(f"v_sub_u32 v{vT0}, v{vKM}, v{vT0}")
    a(f"v_add_u32 v{vT0}, {(L_OP - 36*L_MREC) & 0xffffffff:#x}, v{vT0}")
    for j in range(4): a(f"v_mad_u32_u24 v{vP+j}, v{vP+j}, 36, v{vT0}")
    a("s_waitcnt lgkmcnt(0)")
    a.lstamp("8", 0)
    a("s_branch A_FIRSTD")
    a.label("A_LAST")
    def wr(i, j): a(f"ds_write_b128 v{vP+i//2}, {vr(O(i)+4*j, 4)} offset:{(i&1)*9216 + (i//2-1)*3072 + j*1024}")
    seq = [0, 2, 4, 6, 3, 5, 7, 1]
    RB = [[188, 200, 216], [16, 28, 40]]
    def rd(e, k):
        s_, j = divmod(k, 3)
        a(f"ds_read_b128 {vr(RB[e][s_]+4*j, 4)}, v{vP} offset:{e*9216 + s_*3072 + j*1024}")
    def echeck(n=2):
        a(f"s_waitcnt lgkmcnt({n})")
        a(f"v_readfirstlane_b32 s{sT0}, v{vT0}")
        a(f"s_cmp_lt_u32 s{sT0}, s{sKOK}")
        a("s_cbranch_scc1 A_EWAIT")
        a.label("A_EOK")
    for n in range(8):
        nxt = (1, seq[n + 1]) if n < 7 else None
        prv = (1, seq[n - 1]) if n > 0 else (0, 7)
        if n == 0: holes = {4: lambda: (a("s_waitcnt vmcnt(2)"), a(f"ds_read_b32 v{vT0}, v{vCNT}"))}
        if n == 1: holes = {4: lambda: (a("s_waitcnt lgkmcnt(0)"), a(f"v_readfirstlane_b32 s{sT0}, v{vT0}"))}
        if n == 2: holes = {4: lambda: (a(f"s_cmp_lt_u32 s{sT0}, 8"), a("s_cbranch_scc1 A_OWAIT"), a.label("A_OFREE"))}
        if n >= 3:
            i = seq[n - 2]
            holes = {2: lambda: wr(i, 0), 3: lambda: wr(i, 1), 4: lambda: wr(i, 2)}
        if n == 4: holes[1] = lambda: (a(f"s_lshl_b32 s{sKOK}, s{sMODE}, 3"), a(f"s_add_u32 s{sKOK}, s{sKOK}, 4"))
        if n == 5: holes[4] = lambda: (wr(i, 2), cnt_arrive(a, vCNT, vT0, off=12))
        if n == (6 if opt("ein") else 7): holes[3] = lambda: (a(f"ds_read_b32 v{vT0}, v{vCNT} offset:12"), wr(i, 1))
        if n == 7 and opt("ein"):
            holes = {0: lambda: (echeck(), rd(0, 0), rd(0, 1)), 1: lambda: (rd(0, 2), rd(0, 3)), 2: lambda: (wr(i, 0), rd(0, 4), rd(0, 5)),
                     3: lambda: (wr(i, 1), rd(0, 6), rd(0, 7)), 4: lambda: (wr(i, 2), rd(0, 8))}
        slot(n & 3, nxt, prv, holes)
    a("s_nop 1")
    pv(0, 3, 1, 1); pv(1, 3, 1, 1)
    a.stamp(11); a.stamp(NSTAMP + 3, True)
    a(f"s_mov_b64 {sr(sBAD, 2)}, 0")
    a(f"s_mov_b32 s{sT1}, {f32bits(2.0**100):#x}")
    for j in range(3): wr(7, j)
    if not opt("ein"):
        a(f"v_mov_b32 v{vT3}, 1")
        a("s_mov_b64 exec, 1")
        a(f"ds_add_u32 v{vCNT}, v{vT3}")
        a("s_mov_b64 exec, -1")
        echeck(6)
        for k in range(9): rd(0, k)
    else: cnt_arrive(a, vCNT, vT0)
    a(f"s_add_u32 s{sTGT}, s{sTGT}, 4")
    a(f"s_max_u32 s{sTGT}, s{sTGT}, 12")
    Z = 52
    for e in range(2):
        A = O(e); P = 128 + 8 * e
        if e == 1:
            cnt_arrive(a, vCNT, vT0, off=12)
            cnt_wait(a, vCNT, vT0, f"s{sTGT}")
            a.stamp(12)
            for k in range(9): rd(1, k)
        for s in range(3):
            if e == 1 or not opt("ein"): a(f"s_waitcnt lgkmcnt({6 - 3*s})")
            elif s == 0: a("s_waitcnt lgkmcnt(4)")
            for j in range(6): a(f"v_pk_add_f32 {vr(A+2*j, 2)}, {vr(A+2*j, 2)}, {vr(RB[e][s]+2*j, 2)}")
        a(f"v_mov_b32 v{vT0}, v{A+8}")
        a(f"v_mov_b32 v{vT2}, v{A+8}")
        a(f"v_pk_mul_f32 {vr(Z, 2)}, {vr(A, 2)}, 0 op_sel_hi:[1,0]")
        a(f"v_pk_fma_f32 {vr(Z, 2)}, {vr(A+2, 2)}, 0, {vr(Z, 2)} op_sel_hi:[1,0,1]")
        a(f"v_permlane32_swap_b32 v{vT0}, v{vT2}")
        a(f"v_rcp_f32 v{vT3}, v{vT2}")
        a(f"v_cmp_nlt_f32 vcc, v{vT2}, s{sT1}")
        for j in range(2, 6): a(f"v_pk_fma_f32 {vr(Z, 2)}, {vr(A+2*j, 2)}, 0, {vr(Z, 2)} op_sel_hi:[1,0,1]")
        a(f"s_or_b64 {sr(sBAD, 2)}, {sr(sBAD, 2)}, vcc")
        for j in range(6): a(f"v_pk_mul_f32 {vr(A+2*j, 2)}, {vr(A+2*j, 2)}, {vr(vT2, 2)} op_sel:[0,1] op_sel_hi:[1,1]")
        a(f"v_cmp_u_f32 vcc, v{Z}, v{Z+1}")
        for j in range(6): a(f"v_cvt_pk_bf16_f32 v{P+j}, v{A+2*j}, v{A+2*j+1}")
        a(f"s_or_b64 {sr(sBAD, 2)}, {sr(sBAD, 2)}, vcc")
        a(f"s_cmp_lg_u32 s{sMODE}, 0")
        a(f"s_cselect_b64 {sr(sBAD, 2)}, 0, {sr(sBAD, 2)}")
        for j in range(6): a(f"v_min_u32 v{P+j}, -2, v{P+j}")
        L = a.uid("NOST")
        a(f"s_cmp_lg_u64 {sr(sBAD, 2)}, 0")
        a(f"s_cbranch_scc1 {L}")
        stores(a, [f"buffer_store_dwordx4 {vr(P, 4)}, v{vKM}, {sr(SWS)}, s{sOm} offen offset:{1024*e}",
                   f"buffer_store_dwordx2 {vr(P+4, 2)}, v{vQT}, {sr(SWS)}, s{sOt} offen offset:{512*e}"])
        a.label(L)
    a(f"s_cmp_lg_u64 {sr(sBAD, 2)}, 0")
    a(f"s_cselect_b32 s{sBAD}, 0x10001, 1")
    cnt_arrive(a, vCNT, vT0, f"s{sBAD}")
    a.stamp(13)
    a("s_setprio 0")
    a(f"s_add_u32 s{sTGT}, s{sTGT}, 4")
    srd(a, SX, pX, 2048 * 1280)
    cnt_wait(a, vCNT, vT0, f"s{sTGT}")
    a(f"s_lshr_b32 s{sT0}, s{sT0}, 16")
    a(f"s_cmp_lg_u32 s{sMODE}, 0")
    a(f"s_cselect_b32 s{sT0}, 0, s{sT0}")
    a(f"s_cmp_lg_u32 s{sT0}, 0")
    a("s_cbranch_scc1 A_RESTART")
    a.stamp(14)
    if PROFILE and opt("iter"):
        a.ldump(0)
        a(f"s_lshl_b32 s100, s{sW}, 6")
        a("v_add_u32 v0, s100, v1")
    final_stage(a, -256, 16, 32, 20, 21, True, 0)
    final_stage(a, 256, 24, 80, 22, 23, "addr", 0)
    a(f"s_cmp_ge_u32 s{sW}, 6")
    a("s_cbranch_scc1 A_F1")
    final_stage(a, 256, 24, 80, 22, 23, "load", 0)
    a.label("A_F1")
    a("s_waitcnt vmcnt(0)")
    final_stage(a, -256, 16, 32, 20, 21, False, 2)
    final_stage(a, 256, 24, 80, 22, 23, False, 2)
    a.stamp(15)
    a("s_barrier")
    final_stage(a, -256, 16, 32, 20, 21, False, 1)
    final_stage(a, -256, 16, 32, 20, 21, False, 3)
    a("s_barrier")
    a.stamp(16)
    a(f"s_cmp_ge_u32 s{sW}, 6")
    a("s_cbranch_scc1 A_F2")
    final_stage(a, 256, 24, 80, 22, 23, False, 1)
    final_stage(a, 256, 24, 80, 22, 23, False, 3)
    a.label("A_F2")
    a.end()
    a.label("A_EWAIT")
    cnt_wait(a, vCNT, vT0, f"s{sKOK}", 0, off=12)
    a("s_branch A_EOK")
    a.label("A_OWAIT")
    cnt_wait(a, vCNT, vT0, 8, 1)
    a("s_branch A_OFREE")
    a.label("A_RESTART")
    a(f"s_mov_b32 s{sMODE}, 1")
    a("s_waitcnt vmcnt(0)")
    att_zero(a)
    a("s_branch A_RELOAD")
    a.label("A_TRUEMAX")
    for i in range(2, 8): ldq(i)
    M = S[2]
    for i in range(8): a(f"v_mov_b32 v{M+i}, 0xff800000")
    a(f"s_sub_u32 s{sT1}, s{sKV}, {KV_REC}")
    a(f"s_mov_b32 s{sCNT}, 16")
    TK, TT = S[1], S[1] + 4
    a.label("A_TM_LOOP")
    a(f"buffer_load_dwordx4 {vr(TK, 4)}, v{vKM}, {sr(SWS)}, s{sT1} offen sc1")
    a(f"buffer_load_dwordx2 {vr(TT, 2)}, v{avKT}, {sr(SWS)}, s{sT1} offen sc1")
    a("s_waitcnt vmcnt(0)")
    for i in range(8):
        a(f"v_mfma_f32_32x32x16_bf16 {vr(S[0], 16)}, {vr(TK, 4)}, {vr(QM(i), 4)}, 0")
        a(f"v_mfma_f32_32x32x8_bf16 {vr(S[0], 16)}, {vr(TT, 2)}, {vr(QT(i), 2)}, {vr(S[0], 16)}")
        a("s_nop 11")
        for j in range(0, 16, 2): a(f"v_max3_f32 v{M+i}, v{M+i}, v{S[0]+j}, v{S[0]+j+1}")
    a(f"s_add_u32 s{sT1}, s{sT1}, {KV_REC}")
    a(f"s_sub_u32 s{sCNT}, s{sCNT}, 1")
    a(f"s_cmp_lg_u32 s{sCNT}, 0")
    a("s_cbranch_scc1 A_TM_LOOP")
    for i in range(8):
        halfop(a, "v_max_f32", M + i, vT0)
        a(f"v_add_u32 v{vT1}, {L_OP - L_MREC}, v{vP+i//2}")
        a(f"ds_write_b32 v{vT1}, v{M+i} offset:{(i//2)*2048 + (i&1)*256}")
    cnt_arrive(a, vCNT, vT0)
    a(f"s_add_u32 s{sTGT}, s{sTGT}, 4")
    cnt_wait(a, vCNT, vT0, f"s{sTGT}")
    a(f"v_add_u32 v{vT1}, {L_OP - L_MREC}, v{vP}")
    for e in range(2):
        for s in range(1, 4): a(f"ds_read_b32 v{S[0]+4*e+s}, v{vT1} offset:{s*2048 + e*256}")
    a("s_waitcnt lgkmcnt(0)")
    for e in range(2):
        a(f"v_max3_f32 v{M+e}, v{M+e}, v{S[0]+4*e+1}, v{S[0]+4*e+2}")
        a(f"v_max_f32 v{M+e}, v{M+e}, v{S[0]+4*e+3}")
    a("s_mov_b32 exec_lo, 0")
    for e in range(2):
        a(f"v_sub_f32 v{M+e}, 0, v{M+e}")
        split3(a, M + e, vT0, vT1, QT(e), QT(e) + 1)
    a("s_branch A_HAVEMAX")

def gen_ffn(a):
    vL, vL16, vTR, vZ = 1, 2, 3, 7
    vA, vG, vPW, vPW2, X = 4, 5, 0, 6, 8
    vNV, vCNT, vT0, vT1 = 12, 13, 14, 15
    F = lambda t: 16 + 16 * t
    WO = lambda k: 96 + 20 * k
    HB = lambda u: 216 + 4 * u
    SL = lambda j: j & 3
    SWO = SDBG
    def dma_piece(p, slot, vd=fD):
        a(f"s_add_u32 m0, s{sM0}, {L_RING + slot*20480 + p*1024}")
        a("s_nop 0")
        a(f"buffer_load_dwordx4 v{vd+p}, {sr(SA)}, s{sSO} offen lds")
    def trr(dst, slot, t, va=vTR):
        a(f"ds_read_b64_tr_b16 {vr(dst+4*t, 2)}, v{va} offset:{slot*20480 + 64*t}")
        a(f"ds_read_b64_tr_b16 {vr(dst+4*t+2, 2)}, v{va} offset:{slot*20480 + 64*t + 2560}")
    def hload(u):
        a(f"buffer_load_dwordx4 {vr(HB(u), 4)}, v{vL16}, {sr(SWS)}, s{sHO} offen sc1")
        a(f"s_add_u32 s{sHO}, s{sHO}, 1024")
    def stage(i, ks):
        row = 16 + 80 * (ks - 8) if ks >= 8 else 20 * ks
        a(f"s_add_u32 s{sT1}, s{sWOB}, {row*1280}")
        for p in range(5):
            a(f"s_add_u32 m0, s{sM0}, {i*20480 + p*1024}")
            a("s_nop 0")
            a(f"buffer_load_dwordx4 v{(fD2 if ks >= 8 else fD)+p}, {sr(SWO)}, s{sT1} offen lds")
    def mf(t, w, h): a(f"v_mfma_f32_32x32x16_bf16 {vr(F(t), 16)}, {vr(w+4*t, 4)}, {vr(h, 4)}, {vr(F(t), 16)}")
    sWOB = sWBASE
    if not opt("pre1"): ffn_pre(a, vL, vT0, vT1)
    srd(a, SA, pW2, 1728 * 1280)
    a(f"s_mul_i32 s{sM0}, s{sQ}, 5120")
    a(f"s_mul_i32 s{sCOL}, s{sHG}, 320")
    a(f"s_mul_i32 s{sSO}, s{sQ}, {27*16*1280}")
    a(f"s_add_u32 s{sSO}, s{sSO}, s{sCOL}")
    a(f"s_add_u32 s{sSO}, s{sSO}, {NS*16*1280}")
    a(f"s_mov_b32 s{sSTEP}, {16*1280}")
    if opt("xpar"):
        a(f"s_and_b32 s{sT0}, s{sT}, 1")
        a(f"s_mul_i32 s{sT0}, s{sT0}, {16*1280}")
        a(f"s_add_u32 s{sSO}, s{sSO}, s{sT0}")
    def fill(js):
        for j in js:
            for p in range(5): dma_piece(p, j)
            a(f"s_add_u32 s{sSO}, s{sSO}, s{sSTEP}")
    NE = optv("ne", 1)
    fill(range(NS, min(4, NS + NE)))
    a("v_mov_b64 v[246:247], 0")
    a(f"v_lshlrev_b32 v{vL16}, 4, v{vL}")
    a(f"v_mov_b32 v{vCNT}, {L_CNT}")
    for t in range(5): zero16(a, F(t), 246)
    a(f"v_mov_b32 v{vTR}, v{fTR}")
    a(f"v_mov_b32 v{vA}, v{fA}")
    a(f"v_mov_b32 v{vG}, v{fG}")
    a(f"v_mov_b32 v{vPW}, v{fPW}")
    a(f"v_add_u32 v{vPW2}, 40960, v{fPW}")
    a(f"v_mov_b32 v{vNV}, s{sNON}")
    a(f"v_mov_b32 v245, 1")
    srd(a, SX, pX, 2048 * 1280)
    srd(a, SB, pOUT, 2048 * 1280)
    srd(a, SWO, pWO, 640 * 1280)
    a(f"s_mul_i32 s{sWOB}, s{sQ}, {160*1280}")
    a(f"s_add_u32 s{sWOB}, s{sWOB}, s{sCOL}")
    a(f"s_lshl_b32 s{sFC}, s{sT}, 2")
    a(f"s_add_u32 s{sFC}, s{sFC}, s{sQ}")
    a(f"s_mul_i32 s{sHO}, s{sQ}, {27*1024}")
    a(f"s_add_u32 s{sHO}, s{sHO}, s{sG}")
    a(f"s_add_u32 s{sHO}, s{sHO}, {20*2048}")
    check_fast(a, vT1, vT0)
    a.stamp(6)
    cnt_wait(a, vCNT, vT0, 4, 1, off=(8 if opt("nogatem") else 0))
    fill(range(min(4, NS + NE), 4))
    a.stamp(7)
    poll(a, fH, vT1, "0", 2)
    check_fast(a, vT1, vT0)
    a.stamp(9)
    if opt("th"):
        a(f"s_mul_i32 s{sT0}, s{sHG}, {54*128}")
        a(f"s_add_u32 s{sT0}, s{sT0}, s{sHO}")
        a(f"v_lshlrev_b32 v{vT0}, 7, v{vL}")
    for u in range(4): hload(u)
    if opt("th"):
        a("s_mov_b32 exec_hi, 0x3fffff")
        a(f"buffer_load_dword v{vT1}, v{vT0}, {sr(SWS)}, s{sT0} offen sc1")
        a("s_mov_b32 exec_hi, -1")
    for t in range(5): trr(WO(0), SL(0), t)
    a(f"s_mov_b32 s{sC}, 0")
    a("s_waitcnt vmcnt(0)")
    a.stamp(10); a.stamp(NSTAMP + 2, True)
    B0 = optv("b0", 1)
    a.raw(".p2align 3")
    a.label("F_LOOP")
    for u in range(4):
        if u == 3:
            a(f"s_cmp_eq_u32 s{sC}, 6")
            a("s_cbranch_scc1 F_DONE")
            a(f"s_cmp_lg_u32 s{sC}, 5")
            a("s_cbranch_scc1 F_NS")
            srd(a, SA, pWO, 640 * 1280)
            a(f"s_add_u32 s{sSO}, s{sWOB}, {20*1280}")
            a(f"s_mov_b32 s{sSTEP}, {40*1280}")
            a(f"s_mov_b32 s{sHO}, 0x40000000")
            a(f"buffer_load_dword v{fH}, v{fO}, {sr(SWS)}, 0 offen sc1")
            a.label("F_NS")
        a("s_waitcnt vmcnt(13) lgkmcnt(0)" if not opt("xhalf") else "s_waitcnt vmcnt(8) lgkmcnt(0)")
        for t in range(5):
            if opt("xdirect"):
                mf(t, WO(u), HB(u))
                a(f"buffer_load_dwordx4 {vr(WO(u)+4*t, 4)}, v{fD+t}, {sr(SA)}, s{sSO} offen")
                a("s_nop 7")
                a("s_nop 1")
                continue
            mf(t, WO(0), HB(u))
            if opt("xnotr"):
                dma_piece(t, SL(u))
                a("s_nop 5")
                continue
            if opt("xhalf") and (u & 1):
                a("s_sleep 1")
                continue
            trr(WO(0), SL(u + 1), t)
            dma_piece(t, SL(u))
        a(f"s_add_u32 s{sSO}, s{sSO}, s{sSTEP}")
        hload(u)
    a(f"s_add_u32 s{sC}, s{sC}, 1")
    a(f"s_sub_u32 s{sT0}, s{sC}, {B0 + 1}")
    a(f"s_cmp_ge_u32 s{sT0}, 3")
    a("s_cbranch_scc1 F_LOOP")
    a(f"s_cmp_eq_u32 s{sT0}, 1")
    a("s_cbranch_scc1 F_X1")
    a(f"s_cmp_eq_u32 s{sT0}, 2")
    a("s_cbranch_scc1 F_X2")
    a(f"s_lshl_b32 s{sT1}, s{sT}, 2")
    a(f"s_add_u32 s{sT1}, s{sT1}, s{sHG}")
    a(f"s_mul_i32 s{sT1}, s{sT1}, 10240")
    a(f"s_mul_i32 s{sT0}, s{sQ}, 3072")
    a(f"s_min_u32 s{sT0}, s{sT0}, 7168")
    a(f"s_add_u32 s{sT0}, s{sT0}, s{sT1}")
    a(f"s_add_u32 s{sT0}, s{sT0}, {WS_O}")
    stores(a, [f"buffer_store_dwordx4 {vr(fBL, 4)}, v{vL16}, {sr(SWS)}, s{sT0} offen offset:{1024*e}" for e in range(3)])
    for i in range(3): stage(i, 2 * i)
    a("s_branch F_LOOP")
    a.label("F_X1")
    for i in range(3):
        for t in range(5): trr(WO(1 + i), i, t, fSTG)
    a(f"s_lshl_b32 s{sT0}, s{sQ}, 2")
    a(f"s_add_u32 s{sT0}, s{sT0}, s{sF2}")
    a("s_mov_b64 exec, 1")
    stores(a, [f"buffer_store_dword v{vNV}, v{vZ}, {sr(SWS)}, s{sT0} offen offset:16"])
    a("s_mov_b64 exec, -1")
    a("s_waitcnt lgkmcnt(0)")
    stage(0, 6); stage(1, 9)
    a("s_branch F_LOOP")
    a.label("F_X2")
    for i in range(2):
        for t in range(5): trr(WO(4 + i), i, t, fSTG)
    cnt_wait(a, vCNT, vT0, 4, 1)
    a("s_mov_b64 exec, 1")
    a(f"ds_add_u32 v{vCNT}, v245")
    a("s_mov_b64 exec, -1")
    a("s_branch F_LOOP")
    a.label("F_DONE")
    a.stamp(11); a.stamp(NSTAMP + 3, True)
    a(f"s_add_u32 s{sSO}, s{sWOB}, {16*1280}")
    a("s_waitcnt lgkmcnt(0)")
    for t in range(5): dma_piece(t, SL(27), fD2)
    final_stage(a, 0, X, 0, vA, vG, "load", 0)
    a(f"v_cmp_ne_u32 vcc, s{sNON}, v{fH}")
    a("s_cbranch_vccz F_BOK")
    poll(a, fO, vT1, "0", 4)
    a.label("F_BOK")
    a(f"s_mul_i32 s{sHO}, s{sFC}, 10240")
    a(f"s_add_u32 s{sHO}, s{sHO}, {WS_O}")
    a(f"s_add_u32 s{sSO}, s{sHO}, 4096")
    a(f"s_add_u32 s{sT1}, s{sHO}, 8192")
    a.stamp(12)
    def oloads(ks):
        for k in ks:
            so = (sHO, sSO, sT1)[k // 4]
            a(f"buffer_load_dwordx4 {vr(HB(k), 4)}, v{vL16}, {sr(SWS)}, s{so} offen offset:{(k%4)*1024} sc1")
    def ocheck(ks):
        for n, k in enumerate(ks):
            a(f"s_waitcnt vmcnt({len(ks)-1-n})")
            if n == 0:
                a(f"v_max3_u32 v{vT0}, v{HB(k)}, v{HB(k)+1}, v{HB(k)+2}")
                a(f"v_max_u32 v{vT0}, v{vT0}, v{HB(k)+3}")
            else:
                a(f"v_max3_u32 v{vT0}, v{vT0}, v{HB(k)}, v{HB(k)+1}")
                a(f"v_max3_u32 v{vT0}, v{vT0}, v{HB(k)+2}, v{HB(k)+3}")
        a(f"v_cmp_eq_u32 vcc, -1, v{vT0}")
    even, rest = [0, 2, 4, 6], [1, 9, 3, 5, 7, 8]
    WR = [WO(0), WO(5), WO(1), WO(2), WO(3), WO(4)]
    cnt_wait(a, vCNT, vT0, 8, 1, off=12)
    a.stamp(13)
    a(f"s_mov_b32 s{sSPIN}, {SPIN}")
    a.label("F_O")
    oloads(even); ocheck(even)
    a("s_cbranch_vccz F_OD")
    a("s_sleep 1")
    spin_tail(a, "F_O")
    a.label("F_OD")
    a.stamp(8)
    for n in range(4):
        if n == optv("on", 1): oloads(rest)
        for t in range(5):
            mf(t, WO(1 + n), HB(even[n]))
            trr(WO(1 + n), SL(28 + n), t)
    cnt_wait(a, vCNT, vT0, 16, 1)
    a(f"s_cmp_lt_u32 s{sT0}, 0x10000")
    a("s_cbranch_scc1 F_NORE")
    cnt_wait(a, vCNT, vT0, 32, 8)
    a.label("F_NORE")
    a(f"s_mov_b32 s{sSPIN}, {SPIN}")
    a.label("F_O2")
    ocheck(rest)
    a("s_cbranch_vccz F_OD2")
    oloads(rest)
    spin_tail(a, "F_O2")
    a("s_waitcnt vmcnt(0)")
    a.label("F_OD2")
    a.stamp(14)
    def fwr(t, g):
        va, off = (vPW, t * 20480) if t < 2 else (vPW2, (t - 2) * 20480)
        a(f"ds_write_b128 v{va}, {vr(F(t)+4*g, 4)} offset:{off + 32*g}")
    for t in range(5):
        for m in range(6):
            mf(t, WR[m], HB(rest[m]))
            if t > 0:
                if t == 3 and m == 1:
                    a("s_waitcnt lgkmcnt(0)")
                    a("s_barrier")
                    a("s_nop 2")
                elif m < 2: a("s_nop 4")
                else: fwr(t - 1, m - 2)
    final_stage(a, 0, X, 176, vA, vG, False, 2)
    a("s_nop 3")
    a.stamp(15)
    for g in range(4): fwr(4, g)
    a("s_waitcnt lgkmcnt(0)")
    a("s_barrier")
    a.stamp(16)
    final_stage(a, 0, X, 176, vA, vG, False, 1)
    final_stage(a, 0, X, 176, vA, vG, False, 3)
    a.end()
```

```python
import sys, struct, math

NAME = "parallel_sum__grouped_kv_mqa__dense_activation_relu__prompt"
def opt(name): return ("--" + name) in sys.argv
def optv(name, d): return int(sys.argv[sys.argv.index("--" + name) + 1]) if opt(name) else d
G_TSTRIDE = 75 * 2048
WS_G = 0
WS_KV = 64 * G_TSTRIDE
KV_REC = 3072
WS_O = (WS_KV + 66 * KV_REC + 4095) // 4096 * 4096
WS_RS = WS_O + 64 * 40 * 1024
WS_CP = WS_RS + 2048 * 16
WS_F1 = WS_CP + 64 * 5120
WS_F2 = WS_F1 + 256 * 128
WS_XC = WS_F2 + 256 * 128
WS_PROF = WS_XC + 8 * 128
PROFILE = opt("prof")
NSTAMP = 18
WS_END = WS_PROF + (256 * 8 * 256 if PROFILE else 0)
OOB = 0x80000000
QSCALE = math.log2(math.e) / math.sqrt(20.0)
SPIN = 0x40000
NS = optv("ns", 3)
NFIRST = optv("nfirst", 1)


def f32bits(x): return struct.unpack("<I", struct.pack("<f", x))[0]

class Asm:
    def __init__(self): self.lines = []; self.n = 0; self.tail = []; self.p2 = False; self.ffn = False
    def __call__(self, s): self.lines.append("    " + s)
    def label(self, s): self.lines.append(s + ":")
    def raw(self, s): self.lines.append(s)
    def c(self, s): self.lines.append("    ; " + s)
    def uid(self, p): self.n += 1; return f"{p}_{self.n}"
    def stamp(self, i, cyc=False):
        if opt("spin") and not cyc and i == optv("spin", 0) and (i < 6 or not self.ffn or i == 17):
            L = self.uid("SPIN")
            self.label(L)
            self("s_memrealtime s[100:101]")
            self("s_waitcnt lgkmcnt(0)")
            self("s_sub_u32 s100, s100, s64")
            self(f"s_cmp_lt_u32 s100, 5000")
            self(f"s_cbranch_scc1 {L}")
        if opt("st") and self.p2 and i in (14, 15, 16): return
        if PROFILE:
            self(f"s_memtime s[100:101]" if cyc else "s_memrealtime s[100:101]")
            self("s_waitcnt lgkmcnt(0)")
            self(f"s_mov_b32 s{64+i}, s100")
    def lstamp(self, slane, v=14):
        if PROFILE and opt("iter"):
            self("s_memrealtime s[100:101]")
            self("s_waitcnt lgkmcnt(0)")
            self(f"s_mov_b32 m0, {slane}" if isinstance(slane, str) else f"s_mov_b32 m0, s{slane}")
            self(f"v_writelane_b32 v{v}, s100, m0")
    def ldump(self, v=14):
        if PROFILE and opt("iter"):
            self(f"s_lshl_b32 s100, s2, 3")
            self(f"s_add_u32 s100, s100, s{sW}")
            self(f"s_lshl_b32 s100, s100, 8")
            self(f"s_add_u32 s100, s100, {WS_PROF+128}")
            self("v_lshlrev_b32 v15, 2, v1")
            self("s_mov_b64 exec, 0xffff")
            self(f"buffer_store_dword v{v}, v15, s[{SWS}:{SWS+3}], s100 offen")
            self("s_mov_b64 exec, -1")
            self("s_waitcnt vmcnt(0)")
    def end(self):
        if opt("spin"): self.stamp(17)
        if PROFILE:
            self("s_waitcnt vmcnt(0)")
            self.stamp(NSTAMP - 1)
            self(f"s_lshl_b32 s3, s2, 3")
            self(f"s_add_u32 s3, s3, s{sW}")
            self(f"s_lshl_b32 s3, s3, 8")
            self(f"s_add_u32 s3, s3, {WS_PROF}")
            self("s_mov_b64 exec, 1")
            self("v_mov_b32 v1, 0")
            for i in range(NSTAMP + 4):
                self(f"v_mov_b32 v2, s{64+i}")
                self(f"buffer_store_dword v2, v1, s[{SWS}:{SWS+3}], s3 offen offset:{4*i}")
        self("s_endpgm")
    def text(self): return "\n".join(self.lines) + "\n"

def vr(b, n=1): return f"v{b}" if n == 1 else f"v[{b}:{b+n-1}]"
def sr(b, n=4): return f"s{b}" if n == 1 else f"s[{b}:{b+n-1}]"
def srd(a, d, p, size):
    a(f"s_mov_b32 s{d}, s{p}")
    a(f"s_mov_b32 s{d+1}, s{p+1}")
    a(f"s_mov_b32 s{d+2}, {size}")
    a(f"s_mov_b32 s{d+3}, 0x00020000")
def csel(a, d, t, f):
    a(f"s_mov_b32 s{d}, {f}")
    a(f"s_cmov_b32 s{d}, {t}")
def split3(a, src, t0, t1, d0, d1):
    a(f"v_and_b32 v{t0}, 0xffff0000, v{src}")
    a(f"v_sub_f32 v{t1}, v{src}, v{t0}")
    a(f"v_lshrrev_b32 v{d0}, 16, v{src}")
    a(f"v_and_b32 v{t0}, 0xffff0000, v{t1}")
    a(f"v_or_b32 v{d0}, v{d0}, v{t0}")
    a(f"v_sub_f32 v{t1}, v{t1}, v{t0}")
    a(f"v_lshrrev_b32 v{d1}, 16, v{t1}")
def halfop(a, op, r, t):
    a(f"v_mov_b32 v{t}, v{r}")
    a("s_nop 1")
    a(f"v_permlane32_swap_b32 v{t}, v{r}")
    a(f"{op} v{r}, v{r}, v{t}")
def umax(a, dst, regs):
    regs = list(regs)
    a(f"v_max3_u32 v{dst}, v{regs[0]}, v{regs[1]}, v{regs[2]}")
    r = regs[3:]
    while len(r) >= 2:
        a(f"v_max3_u32 v{dst}, v{dst}, v{r[0]}, v{r[1]}"); r = r[2:]
    if r: a(f"v_max_u32 v{dst}, v{dst}, v{r[0]}")

SWS, SA, SB, SX, SDBG = 4, 8, 12, 16, 20
sSI = 3
sW, sNON = 24, 25
sRB, sCG, sTT = 26, 27, 28
sQ = sTT
sT0, sT1, sT2 = 29, 30, 31
pX, pWQ, pWK, pWV, pWO, pW1, pW2, pOUT, pDBG, pWS = 32, 34, 36, 38, 40, 44, 46, 48, 50, 52
sWSTEP, sSO, sSTEP, sM0, sC, sDEL, sCC, sOUT, sFL, sQS = range(54, 64)
sT, sHG, sG, sOB = 86, 87, 92, 93
sF2, sWBASE, sT3, sFAST, sST, sSPIN = 94, 95, 96, 97, 98, 99
sXW, sLO = 53, 52
sPB = 51
sSOW, sM0W = 90, 91
sPm, sBAD, sPt = 34, 38, 42
sOm, sOt, sKV, sTGT = 48, 49, 0, 1
sMODE, sCNT, sFQ, sKOK = 8, 9, 88, 89
sCOL, sHO, sFC = 54, 59, 60

def spin_tail(a, L):
    a(f"s_sub_u32 s{sSPIN}, s{sSPIN}, 1")
    a(f"s_cbranch_scc0 {L}")

def poll(a, vaddr, vtmp, soff, sleep=1):
    L, D = a.uid("POLL"), a.uid("POLLED")
    a(f"s_mov_b32 s{sSPIN}, {SPIN}")
    a.label(L)
    a(f"buffer_load_dword v{vtmp}, v{vaddr}, {sr(SWS)}, {soff} offen sc1")
    a("s_waitcnt vmcnt(0)")
    a(f"v_cmp_ne_u32 vcc, s{sNON}, v{vtmp}")
    a(f"s_cbranch_vccz {D}")
    if sleep: a(f"s_sleep {sleep}")
    spin_tail(a, L)
    a.label(D)

def stores(a, lines):
    L, D = a.uid("SLOW"), a.uid("STD")
    a(f"s_cmp_eq_u32 s{sFAST}, 0")
    a(f"s_cbranch_scc1 {L}")
    fl = {"nt": " nt", "sc0": " sc0", "sc0nt": " sc0 nt"}.get(sys.argv[sys.argv.index("--sf") + 1] if opt("sf") else "", "")
    for l in lines: a(l + (fl if l.startswith("buffer_store_dwordx4") else ""))
    a.label(D)
    a.tail.append((L, [l + (" sc1" if l.startswith("buffer_store") else "") for l in lines], D))

def xcc_word(a):
    a(f"s_getreg_b32 s{sXW}, hwreg(HW_REG_XCC_ID, 0, 4)")
    a(f"s_lshl_b32 s{sXW}, s{sXW}, 1")
    a(f"s_xor_b32 s{sXW}, s{sXW}, s{sNON}")

def check_fast(a, vaddr, vtmp):
    L = a.uid("CF")
    a(f"s_cmp_lg_u32 s{sFAST}, 0")
    a(f"s_cbranch_scc1 {L}")
    a(f"s_and_b32 s{sT0}, s2, 7")
    a(f"s_lshl_b32 s{sT0}, s{sT0}, 7")
    a(f"s_add_u32 s{sT0}, s{sT0}, {WS_XC}")
    a(f"v_and_b32 v{vaddr}, 31, v1")
    a(f"v_lshlrev_b32 v{vaddr}, 2, v{vaddr}")
    a(f"buffer_load_dword v{vtmp}, v{vaddr}, {sr(SWS)}, s{sT0} offen sc1")
    a("s_waitcnt vmcnt(0)")
    a(f"v_cmp_ne_u32 vcc, s{sXW}, v{vtmp}")
    a("s_cmp_eq_u64 vcc, 0")
    a(f"s_cselect_b32 s{sFAST}, {0 if opt('slow') else 1}, 0")
    a.label(L)

K1_SLOT = 36864
K1_XOFF = 20480
K1_CS = 147456
K1_ST = K1_CS + 2048
L_VT = 147456
L_OP = 0
L_RING = 73728
L_FP = L_RING - 20480
L_MREC = L_RING + 81920
L_CNT = L_MREC + 2048
LDS_BYTES = L_CNT + 64
fD, fD2, fH, fO, fSTG, fBL, fTR, fA, fG, fPW = 232, 237, 242, 243, 244, 248, 252, 253, 254, 255

aS = [16, 32, 48, 64]
aO = lambda i: 80 + 12 * i
aQM = lambda i: 180 + 4 * i
aQT = lambda i: 212 + 2 * i
aKM = [228, 242]; aKT = [232, 246]; aV0 = [234, 248]; aV1 = [238, 252]
avV, avKT = 14, 15

def ldkm(a, b, va): a(f"buffer_load_dwordx4 {vr(aKM[b], 4)}, v{va}, {sr(SWS)}, s{sKV} offen sc1")
def ldkt(a, b): a(f"buffer_load_dwordx2 {vr(aKT[b], 2)}, v{avKT}, {sr(SWS)}, s{sKV} offen sc1")
def ldv(a, u, b): a(f"buffer_load_dwordx4 {vr((aV0, aV1)[u][b], 4)}, v{avV}, {sr(SWS)}, s{sKV} offen" + (" offset:768" if u else "") + " sc1")
def kv_first(a, va):
    a(f"s_mul_i32 s{sKV}, s{sQ}, {16*KV_REC}")
    a(f"s_add_u32 s{sKV}, s{sKV}, {WS_KV}")
    ldkm(a, 0, va); ldkt(a, 0); ldv(a, 0, 0); ldv(a, 1, 0)
    a(f"s_add_u32 s{sKV}, s{sKV}, {KV_REC}")
    ldkm(a, 1, va); ldkt(a, 1)
def zero16(a, r, z):
    a(f"v_mfma_f32_32x32x8_bf16 {vr(r, 16)}, {vr(z, 2)}, {vr(z, 2)}, 0")
def att_zero(a):
    z = aV0[1]
    for r in range(z, z + 8, 2): a(f"v_mov_b64 {vr(r, 2)}, 0")
    for r in range(176, 180, 2): a(f"v_mov_b64 {vr(r, 2)}, 0")
    for r in range(aS[3], 176, 16): zero16(a, r, z)

def row_offsets(a, dst, vL, t0, t1, extra, ps=range(5)):
    for p in ps:
        a(f"v_add_u32 v{t0}, {64*p}, v{vL}")
        a(f"v_mul_u32_u24 v{t1}, 3277, v{t0}")
        a(f"v_lshrrev_b32 v{t1}, 16, v{t1}")
        a(f"v_lshlrev_b32 v{t0}, 4, v{t0}")
        a(f"v_mad_u32_u24 v{dst+p}, v{t1}, {extra}, v{t0}")

def item_addr(a, base_item, vA, vG, t):
    if base_item: a(f"v_add_u32 v{vA}, {base_item}, v0")
    else: a(f"v_mov_b32 v{vA}, v0")
    a(f"v_lshrrev_b32 v{t}, 7, v{vA}")
    a(f"v_mul_u32_u24 v{t+1}, 20480, v{t}")
    a(f"v_lshlrev_b32 v{vG}, 6, v{t}")
    a(f"v_and_b32 v{t}, 3, v{vA}")
    a(f"v_lshl_add_u32 v{t+1}, v{t}, 5, v{t+1}")
    a(f"v_lshl_add_u32 v{vG}, v{t}, 4, v{vG}")
    a(f"v_bfe_u32 v{t}, v{vA}, 2, 5")
    a(f"v_mul_u32_u24 v{vA}, 144, v{t}")
    a(f"v_mul_u32_u24 v{t}, 1280, v{t}")
    a(f"v_add_u32 v{vG}, v{vG}, v{t}")
    a(f"v_add3_u32 v{vA}, v{vA}, v{t+1}, s100")

def flag_words(a, dst, vL):
    a(f"s_and_b32 s{sT0}, s{sT}, 2")
    a(f"s_and_b32 s{sT1}, s{sT}, 3")
    a(f"s_add_u32 s{sT1}, s{sT1}, 4")
    a(f"v_bfe_u32 v{dst}, v{vL}, 4, 1")
    a(f"v_add_u32 v{dst}, s{sT0}, v{dst}")
    a("s_mov_b32 exec_lo, 0")
    a(f"v_mov_b32 v{dst}, s{sT1}")
    a("s_mov_b32 exec_lo, -1")
    a(f"v_lshlrev_b32 v{dst}, 2, v{dst}")

def ffn_pre(a, vL, t0, t1):
    a("s_movk_i32 s100, 960")
    row_offsets(a, fD, vL, t0, t1, "s100")
    for p in range(5):
        a(f"v_add_u32 v{t0}, {64*p}, v{vL}")
        a(f"v_mul_u32_u24 v{t0}, 3277, v{t0}")
        a(f"v_lshrrev_b32 v{t0}, 18, v{t0}")
        a(f"v_mul_u32_u24 v{t0}, {16*1280}, v{t0}")
        a(f"v_add_u32 v{fD2+p}, v{fD+p}, v{t0}")
    a(f"v_lshrrev_b32 v{t0}, 5, v{vL}")
    a(f"v_bfe_u32 v{t1}, v{vL}, 2, 2")
    a(f"v_lshl_add_u32 v{t0}, v{t0}, 2, v{t1}")
    a(f"v_mul_u32_u24 v{fSTG}, 320, v{t0}")
    a(f"v_bfe_u32 v{t0}, v{vL}, 4, 1")
    a(f"v_lshl_add_u32 v{fSTG}, v{t0}, 5, v{fSTG}")
    a(f"v_and_b32 v{t0}, 3, v{vL}")
    a(f"v_lshl_add_u32 v{fSTG}, v{t0}, 3, v{fSTG}")
    a(f"s_mul_i32 s{sT1}, s{sQ}, 5120")
    a(f"v_add_u32 v{fSTG}, s{sT1}, v{fSTG}")
    a(f"v_add_u32 v{fTR}, {L_RING}, v{fSTG}")
    a(f"v_mov_b64 {vr(fBL, 2)}, -1")
    a(f"v_mov_b64 {vr(fBL+2, 2)}, -1")
    a(f"s_mul_i32 s{sT0}, s{sQ}, {27*26}")
    a(f"s_lshr_b32 s{sT0}, s{sT0}, 8")
    a(f"s_add_u32 s{sT0}, s{sT0}, 4")
    a(f"v_add_u32 v{fH}, s{sT0}, v{t0}")
    a(f"v_min_u32 v{fH}, 14, v{fH}")
    a(f"s_lshr_b32 s{sT2}, s{sT}, 2")
    a(f"s_lshl_b32 s{sT2}, s{sT2}, 11")
    a(f"s_add_u32 s{sT2}, s{sT2}, {WS_F1 + 32}")
    a(f"v_lshl_add_u32 v{fH}, v{fH}, 7, s{sT2}")
    flag_words(a, t1, vL)
    a(f"v_add_u32 v{fH}, v{fH}, v{t1}")
    a(f"s_lshl_b32 s{sT2}, s{sT}, 2")
    a(f"s_add_u32 s{sT2}, s{sT2}, s{sQ}")
    a(f"s_lshl_b32 s{sT2}, s{sT2}, 7")
    a(f"s_add_u32 s{sT2}, s{sT2}, {WS_F2 + 16}")
    a(f"v_lshl_add_u32 v{fO}, v{t0}, 2, s{sT2}")
    a(f"s_mov_b32 s100, {L_FP}")
    item_addr(a, 256, fA, fG, t0)
    a(f"v_and_b32 v{t0}, 31, v{vL}")
    a(f"v_mul_u32_u24 v{t0}, 144, v{t0}")
    a(f"v_lshrrev_b32 v{t1}, 5, v{vL}")
    a(f"v_lshl_add_u32 v{t0}, v{t1}, 4, v{t0}")
    a(f"s_mul_i32 s{sT1}, s{sQ}, 5120")
    a(f"s_add_u32 s{sT1}, s{sT1}, {L_FP}")
    a(f"v_add_u32 v{fPW}, s{sT1}, v{t0}")

def att_scalars(a):
    a(f"s_mul_i32 s{sT2}, s{sHG}, 10240")
    a(f"s_add_u32 s{sT2}, s{sT2}, s{sG}")
    for j in range(4):
        a(f"s_add_u32 s{sT0}, s{sQ}, {j}")
        a(f"s_and_b32 s{sT0}, s{sT0}, 3")
        a(f"s_lshl_b32 s{sPm+j}, s{sT0}, 11")
        a(f"s_add_u32 s{sPm+j}, s{sPm+j}, s{sT2}")
        a(f"s_lshr_b32 s{sT1}, s{sT0}, 1")
        a(f"s_lshl_b32 s{sT1}, s{sT1}, 10")
        a(f"s_and_b32 s{sT0}, s{sT0}, 1")
        a(f"s_lshl_b32 s{sT0}, s{sT0}, 3")
        a(f"s_add_u32 s{sT1}, s{sT1}, s{sT0}")
        a(f"s_add_u32 s{sT1}, s{sT1}, s{sT2}")
        a(f"s_add_u32 s{sPt+j}, s{sT1}, 8192")
    a(f"s_mul_i32 s{sT2}, s{sT}, 40960")
    a(f"s_add_u32 s{sT2}, s{sT2}, {WS_O}")
    a(f"s_sub_u32 s{sT2}, s{sT2}, s{sG}")
    a(f"s_add_u32 s{sOm}, s{sPm}, s{sT2}")
    a(f"s_add_u32 s{sOt}, s{sPt}, s{sT2}")
    a(f"s_mov_b32 s{sTGT}, 0")
    a(f"s_lshr_b32 s{sT0}, s{sT}, 2")
    a(f"s_lshl_b32 s{sT0}, s{sT0}, 4")
    a(f"s_add_u32 s{sT0}, s{sT0}, s{sHG}")
    a(f"s_lshl_b32 s{sT0}, s{sT0}, 7")
    a(f"s_add_u32 s{sFQ}, s{sT0}, {WS_F1 + 32}")

def gen_p1(a):
    vL, vN, vH, vT0, vT1, vT2, vZ = 1, 2, 3, 4, 5, 6, 7
    vX, vD = 8, 16
    vNON, vROW, vFL, vFV = 21, 22, 23, 22
    vG16, vC4 = 26, 27
    vDW = 56
    FB = [28, 32]
    a(f"s_cmp_ge_u32 s2, 256")
    a("s_cbranch_scc1 L_END")
    a("s_load_dwordx16 s[32:47], s[0:1], 0")
    a("s_load_dwordx4 s[48:51], s[0:1], 64")
    a("s_load_dwordx2 s[52:53], s[0:1], 80")
    a("s_memrealtime s[100:101]")
    if not opt("nocp"):
        NL = optv("cp", 2)
        a("s_getpc_b64 s[4:5]")
        a("s_lshr_b32 s6, s2, 3")
        a(f"s_and_b32 s6, s6, {32 // NL - 1}")
        a(f"s_lshl_b32 s6, s6, {10 + NL.bit_length() - 1}")
        a("s_add_u32 s4, s4, s6")
        a("s_addc_u32 s5, s5, 0")
        a(f"v_lshlrev_b32 v60, {NL.bit_length()}, v0")
        a(f"v_and_b32 v60, {(1024 * NL - 128):#x}, v60")
        a("v_mov_b32 v63, s5")
        a("v_add_co_u32 v62, vcc, s4, v60")
        a("s_nop 1")
        a("v_addc_co_u32 v63, vcc, 0, v63, vcc")
        a("global_load_dword v61, v[62:63], off")
    a(f"v_lshrrev_b32 v{vT0}, 6, v0")
    a(f"v_and_b32 v{vL}, 63, v0")
    a(f"v_readfirstlane_b32 s{sW}, v{vT0}")
    a(f"s_and_b32 s{sT1}, s2, 7")
    a(f"s_bfe_u32 s{sSI}, s2, 0x10003")
    a(f"s_lshl_b32 s{sCC}, s{sT1}, 1")
    a(f"s_add_u32 s{sRB}, s{sCC}, s{sSI}")
    a(f"s_lshr_b32 s{sCG}, s2, 4")
    a(f"s_sub_u32 s{sT0}, s{sRB}, 9")
    a(f"s_cmp_ge_u32 s{sRB}, 10")
    a(f"s_cselect_b32 s{sCC}, s{sT0}, s{sRB}")
    a(f"s_mov_b32 s{sST}, s{sCC}")
    a(f"s_and_b32 s{sTT}, s{sW}, 3")
    a(f"s_lshl_b32 s{sT0}, s{sRB}, 2")
    a(f"s_add_u32 s{sT3}, s{sT0}, s{sTT}")
    a(f"s_cmp_lt_u32 s{sW}, 4")
    a("s_cbranch_scc1 P1_A")

    def xpiece(p):
        a(f"s_add_u32 m0, s{sM0}, {1024*p}")
        a("s_nop 0")
        a(f"buffer_load_dwordx4 v{vD+p}, {sr(SX)}, s{sSO} offen lds")
    def wpiece(p, kv=False):
        a(f"s_add_u32 m0, s{sM0W}, {(4096 if kv else 1024)*p}")
        a("s_nop 0")
        if kv: a(f"buffer_load_dwordx4 v{vDW}, {sr(SA if p == 0 else SB)}, s{sSOW} offen lds")
        else: a(f"buffer_load_dwordx4 v{vDW+p}, {sr(SA)}, s{sSOW} offen lds")
    def next_chunk(x, w, dm0):
        a(f"s_add_u32 s{sCC}, s{sCC}, 1")
        a(f"s_cmp_eq_u32 s{sCC}, 10")
        a(f"s_cselect_b32 s{sCC}, 0, s{sCC}")
        if x:
            a(f"s_lshl_b32 s{sSO}, s{sCC}, 7")
            a(f"s_add_u32 s{sM0}, s{sM0}, {dm0}")
        if w:
            a(f"s_mul_i32 s{sSOW}, s{sCC}, s{sWSTEP}")
            a(f"s_add_u32 s{sSOW}, s{sSOW}, s{sWBASE}")
            a(f"s_add_u32 s{sM0W}, s{sM0W}, {dm0}")
    def w_setup(wait):
        a(f"s_sub_u32 s{sT0}, s{sCG}, 4")
        a(f"s_cmp_lt_u32 s{sCG}, 4")
        csel(a, sT2, 1280, 3456)
        a(f"s_cselect_b32 s{sT0}, s{sCG}, s{sT0}")
        a(f"s_mul_i32 s{sT0}, s{sT0}, 320")
        a(f"s_lshl_b32 s{sWBASE}, s{sTT}, 4")
        a(f"s_mul_i32 s{sWBASE}, s{sWBASE}, s{sT2}")
        a(f"s_add_u32 s{sWBASE}, s{sWBASE}, s{sT0}")
        a(f"s_lshl_b32 s{sWSTEP}, s{sT2}, 6")
        a(f"s_sub_u32 s{sT2}, s{sT2}, 320")
        row_offsets(a, vDW, vL, vT0, vT1, f"s{sT2}")
        a(f"s_mul_i32 s{sSOW}, s{sCC}, s{sWSTEP}")
        a(f"s_add_u32 s{sSOW}, s{sSOW}, s{sWBASE}")
        a(f"s_mul_i32 s{sM0W}, s{sTT}, 5120")
        a(f"s_cmp_lt_u32 s{sCG}, 4")
        if wait: a("s_waitcnt lgkmcnt(0)")
        a(f"s_cselect_b32 s{SA}, s{pWQ}, s{pW1}")
        a(f"s_cselect_b32 s{SA+1}, s{pWQ+1}, s{pW1+1}")
        csel(a, SA + 2, 640 * 640 * 2, 640 * 1728 * 2)
        a(f"s_mov_b32 s{SA+3}, 0x00020000")
    def st01():
        if PROFILE or opt("spin"): a("s_mov_b32 s64, s100")
        a.stamp(1)

    RW = 192
    a(f"s_lshl_b32 s{sT0}, s{sT3}, 5")
    a(f"v_lshrrev_b32 v{vT0}, 3, v{vL}")
    a(f"v_add_u32 v{vT0}, s{sT0}, v{vT0}")
    a(f"v_mul_u32_u24 v{vT0}, 1280, v{vT0}")
    a(f"v_lshrrev_b32 v{vT1}, 4, v{vL}")
    a(f"v_and_b32 v{vT2}, 7, v{vL}")
    a(f"v_xor_b32 v{vT1}, v{vT1}, v{vT2}")
    a(f"v_lshl_add_u32 v{vD}, v{vT1}, 4, v{vT0}")
    a(f"v_xor_b32 v{vT1}, 4, v{vT1}")
    a(f"v_lshl_add_u32 v{vD+1}, v{vT1}, 4, v{vT0}")
    a(f"v_add_u32 v{vD+1}, {8*1280}, v{vD+1}")
    a(f"v_add_u32 v{vD+2}, {16*1280}, v{vD}")
    a(f"v_add_u32 v{vD+3}, {16*1280}, v{vD+1}")
    a(f"s_lshl_b32 s{sSO}, s{sCC}, 7")
    a(f"s_lshl_b32 s{sM0}, s{sTT}, 12")
    a(f"s_add_u32 s{sM0}, s{sM0}, {K1_XOFF}")
    a("s_waitcnt lgkmcnt(0)")
    srd(a, SX, pX, 2048 * 1280)
    st01()
    for p in range(4): xpiece(p)
    a("s_barrier")
    a(f"s_cmp_eq_u32 s{sCG}, 15")
    a("s_cbranch_scc1 P1_KB")
    a("s_branch P1_GB")
    a.label("P1_A")
    a(f"s_cmp_eq_u32 s{sCG}, 15")
    a("s_cbranch_scc1 P1_KA0")
    w_setup(True)
    st01()
    for p in range(5): wpiece(p)
    a("s_barrier")

    def tr_addr(dst, tile):
        a(f"s_cmp_lt_u32 s{sCG}, 4")
        if tile == 4:
            a(f"s_cselect_b32 s{sT0}, 32, 0x100")
            a(f"s_cselect_b32 s{sT1}, 160, 32")
            a(f"s_cselect_b32 s{sT2}, 40, 8")
            a(f"v_mad_u32_u24 v{dst}, v{vC4}, s{sT2}, v{vROW}")
        else:
            a(f"s_cselect_b32 s{sT1}, 40, 32")
            if isinstance(tile, tuple):
                a(f"s_lshl_b32 s{sT0}, s{sT1}, 1")
                a(f"s_mul_i32 s{sT0}, s{sT0}, s{tile[1]}")
            else:
                a(f"s_mul_i32 s{sT0}, s{sT1}, {2*tile}")
            a(f"v_lshl_add_u32 v{dst}, v{vC4}, 3, v{vROW}")
        a(f"v_mad_u32_u24 v{dst}, v{vG16}, s{sT1}, v{dst}")
        a(f"v_add_u32 v{dst}, s{sT0}, v{dst}")

    def body(tag, role, kv):
        A_, B_ = role == "A", role == "B"
        nt = 1 if (kv or B_) else 4
        tiles = [0] if kv else ([0, 1, 2, 3] if A_ else [4])
        sstr, rstr = (1024, 40) if kv else (5120, 320)
        vTR = 16 if A_ else 12
        vSA = 13
        FA = [128, 144] if A_ else [36, 40]
        ACC, P = (64, 160) if A_ else (180, 212)
        GAT = 228
        ST, NM, CSR = (36, 40, 44) if A_ else (44, 48, 50)
        ONE, PUB = 24, 52
        nxt = "P2_FFN" if A_ else "P2_ATT"
        def m4(d, x, y):
            a(f"v_mfma_f32_4x4x4_16b_bf16 {vr(d, 4)}, {vr(x, 2)}, {vr(y, 2)}, {vr(d, 4)}")
        def get_nonce(publish):
            L, D = a.uid("NON"), a.uid("NOND")
            a(f"s_mov_b32 s{sSPIN}, {SPIN}")
            a.label(L)
            a(f"v_readfirstlane_b32 s{sNON}, v{vNON}")
            a(f"s_cmp_lg_u32 s{sNON}, 0")
            a(f"s_cbranch_scc1 {D}")
            a(f"buffer_load_dword v{vNON}, v{vZ}, {sr(SDBG)}, 0 offen sc1")
            a("s_waitcnt vmcnt(0)")
            spin_tail(a, L)
            a.label(D)
            xcc_word(a)
            if publish:
                L = a.uid("XW")
                a(f"s_cmp_lg_u32 s{sW}, 0")
                a(f"s_cbranch_scc1 {L}")
                a(f"s_and_b32 s{sT0}, s2, 7")
                a(f"s_lshl_b32 s{sT0}, s{sT0}, 5")
                a(f"s_lshr_b32 s{sT1}, s2, 3")
                a(f"s_add_u32 s{sT0}, s{sT0}, s{sT1}")
                a(f"s_lshl_b32 s{sT0}, s{sT0}, 2")
                a(f"s_add_u32 s{sT0}, s{sT0}, {WS_XC}")
                a(f"v_mov_b32 v{vT1}, s{sXW}")
                a("s_mov_b64 exec, 1")
                a(f"buffer_store_dword v{vT1}, v{vZ}, {sr(SWS)}, s{sT0} offen sc1")
                a("s_mov_b64 exec, -1")
                a.label(L)
        def row_stats(part=None):
            for p, f in enumerate((rs0, rs1, rs2, rs3)):
                if part is None or part == p: f()
        SU, SQ, R = RW + 10, RW + 11, RW + 12
        def rs0():
            a(f"v_mov_b64 {vr(SU, 2)}, 0")
            for j in range(10):
                a(f"v_dot2c_f32_bf16 v{SU}, v{ONE}, v{RW+j}")
                a(f"v_dot2c_f32_bf16 v{SQ}, v{RW+j}, v{RW+j}")
            a("s_nop 2")
        def rs1():
            for m in ("row_shr:1", "row_shr:2", "row_shr:4", "row_shr:8"):
                a(f"v_add_f32_dpp v{SU}, v{SU}, v{SU} {m} row_mask:0xf bank_mask:0xf bound_ctrl:0")
                a(f"v_add_f32_dpp v{SQ}, v{SQ}, v{SQ} {m} row_mask:0xf bank_mask:0xf bound_ctrl:0")
                a("s_nop 0")
            a(f"v_add_f32_dpp v{SU}, v{SU}, v{SU} row_bcast:15 row_mask:0xa bank_mask:0xf")
            a(f"v_add_f32_dpp v{SQ}, v{SQ}, v{SQ} row_bcast:15 row_mask:0xa bank_mask:0xf")
        def rs2():
            a(f"v_mul_f32 v{SU}, {f32bits(1.0/640):#x}, v{SU}")
            a(f"v_mul_f32 v{SQ}, {f32bits(1.0/640):#x}, v{SQ}")
            a(f"v_fma_f32 v{SQ}, -v{SU}, v{SU}, v{SQ}")
            a(f"v_max_f32 v{SQ}, 0, v{SQ}")
            a(f"v_cvt_pk_bf16_f32 v{R}, -v{SU}, -v{SU}")
            a(f"v_cvt_pk_bf16_f32 v{SQ}, v{SQ}, v{SQ}")
            a(f"v_and_b32 v{SQ}, 0xffff0000, v{SQ}")
            a(f"v_add_f32 v{SQ}, {f32bits(1e-5):#x}, v{SQ}")
            a(f"v_cvt_pk_bf16_f32 v{SQ}, v{SQ}, v{SQ}")
            a(f"v_and_b32 v{SQ}, 0xffff0000, v{SQ}")
            a(f"v_sqrt_f32 v{SQ}, v{SQ}")
            a("s_nop 0")
            a(f"v_cvt_pk_bf16_f32 v{SQ}, v{SQ}, v{SQ}")
            a(f"v_and_b32 v{SQ}, 0xffff0000, v{SQ}")
            a(f"v_rcp_f32 v{R+2}, v{SQ}")
        def rs3():
            a(f"v_mov_b32 v{R+1}, v{vNON}")
            a(f"v_mov_b32 v{R+3}, v{vNON}")
            a(f"v_lshlrev_b32 v{vT1}, 4, v{vH}")
            a(f"s_lshl_b32 s{sT0}, s{sSTEP}, 5")
            a(f"s_add_u32 s{sT0}, s{sT0}, {WS_RS}")
            a("s_mov_b32 exec_lo, 0x80000000")
            a("s_mov_b32 exec_hi, 0x80000000")
            a(f"buffer_store_dwordx4 {vr(R, 4)}, v{vT1}, {sr(SWS)}, s{sT0} offen sc1")
            a("s_mov_b64 exec, -1")
        def row_load(dst):
            a(f"s_lshl_b32 s{sT0}, s{sT3}, 9")
            a(f"s_add_u32 s{sT0}, s{sT0}, {WS_RS}")
            a(f"v_lshlrev_b32 v{vT0}, 4, v{vN}")
            a(f"buffer_load_dwordx4 {vr(dst, 4)}, v{vT0}, {sr(SWS)}, s{sT0} offen sc1")
        def tag_check(regs, again, ok):
            a(f"v_xor_b32 v{vT1}, s{sNON}, v{regs[0]}")
            for r in regs[1:]: a(f"v_bitop3_b32 v{vT1}, v{r}, s{sNON}, v{vT1} bitop3:0xbe")
            a(f"v_cmp_ne_u32 vcc, 0, v{vT1}")
            a(f"s_cbranch_vccz {ok}")
            a("s_sleep 2")
            spin_tail(a, again)
            a.label(ok)
        def next_slot():
            a(f"s_and_b32 s{sT0}, s{sC}, 3")
            csel(a, sT1, K1_SLOT, -3*K1_SLOT)
            a(f"s_cmp_eq_u32 s{sT0}, 3")
            csel(a, sDEL, -3*K1_SLOT, K1_SLOT)
            for s in range(4): a(f"v_add_u32 v{vX+s}, s{sDEL}, v{vX+s}")
            for i in range(nt): a(f"v_add_u32 v{vTR+i}, s{sDEL}, v{vTR+i}")
        if A_:
            srd(a, SX, pX, 2048 * 1280)
            a(f"s_lshl_b32 s{sT0}, s{sRB}, 4")
            a(f"s_add_u32 s{sT0}, s{sT0}, s{sCG}")
            a(f"s_lshl_b32 s{sT0}, s{sT0}, 2")
            a(f"s_add_u32 s{sSTEP}, s{sT0}, s{sTT}")
            a(f"s_mul_i32 s{sT0}, s{sSTEP}, 2560")
            a(f"v_mul_u32_u24 v{vT0}, 40, v{vL}")
            a(f"buffer_load_dwordx4 {vr(RW, 4)}, v{vT0}, {sr(SX)}, s{sT0} offen")
            a(f"buffer_load_dwordx4 {vr(RW+4, 4)}, v{vT0}, {sr(SX)}, s{sT0} offen offset:16")
            a(f"buffer_load_dwordx2 {vr(RW+8, 2)}, v{vT0}, {sr(SX)}, s{sT0} offen offset:32")
        if opt("wsoff"):
            a(f"s_add_u32 s{pWS}, s{pWS}, {optv('wsoff', 0) << 20}")
            a(f"s_addc_u32 s{pWS+1}, s{pWS+1}, 0")
        srd(a, SWS, pWS, WS_END)
        srd(a, SDBG, pDBG, 256)
        a(f"v_mov_b32 v{vZ}, 0")
        if A_ and not kv:
            L = a.uid("NONCE")
            a(f"s_or_b32 s{sT0}, s2, s{sW}")
            a(f"s_cbranch_scc1 {L}")
            if PROFILE: a("s_or_b32 s100, s65, 1")
            else: a("s_or_b32 s100, s100, 1")
            a(f"v_mov_b32 v{vT0}, s100")
            a(f"buffer_store_dword v{vT0}, v{vZ}, {sr(SDBG)}, 0 offen sc1")
            a.label(L)
        a(f"v_mov_b64 {vr(PUB, 2)}, 0")
        a(f"v_mov_b64 {vr(PUB+2, 2)}, 0")
        a(f"v_and_b32 v{vN}, 31, v{vL}")
        a(f"v_lshrrev_b32 v{vH}, 5, v{vL}")
        for i in range(nt): zero16(a, ACC + 16 * i, PUB)
        if B_ or kv: zero16(a, P, PUB)
        a(f"v_mov_b32 v{ONE}, 0x3f803f80")
        a(f"v_mov_b32 v{ONE+1}, 0x3f803f80")
        a(f"v_bfe_u32 v{vT0}, v{vL}, 1, 3")
        a(f"v_xor_b32 v{vT0}, v{vT0}, v{vH}")
        if A_ and not kv:
            a(f"s_and_b32 s{sT0}, s{sTT}, 2")
            a(f"s_lshl_b32 s{sT0}, s{sT0}, 12")
        else:
            a(f"s_lshl_b32 s{sT0}, s{sTT}, 12")
        a(f"s_add_u32 s{sT0}, s{sT0}, {K1_XOFF}")
        a(f"v_lshl_add_u32 v{vT1}, v{vN}, 7, s{sT0}")
        for s in range(4):
            a(f"v_xor_b32 v{vT2}, {2*s}, v{vT0}")
            a(f"v_lshl_add_u32 v{vX+s}, v{vT2}, 4, v{vT1}")
        a(f"v_bfe_u32 v{vT0}, v{vL}, 2, 2")
        a(f"v_lshl_add_u32 v{vROW}, v{vH}, 3, v{vT0}")
        a(f"v_bfe_u32 v{vG16}, v{vL}, 4, 1")
        a(f"v_and_b32 v{vC4}, 3, v{vL}")
        if kv:
            a(f"v_lshl_add_u32 v{vT0}, v{vG16}, 2, v{vC4}")
            a(f"v_min_u32 v{vT0}, 4, v{vT0}")
            a(f"v_mul_u32_u24 v{vROW}, 40, v{vROW}")
            a(f"v_lshl_add_u32 v{vTR}, v{vT0}, 3, v{vROW}")
            if B_: a(f"v_add_u32 v{vTR}, 4096, v{vTR}")
        else:
            a(f"v_mul_u32_u24 v{vROW}, 320, v{vROW}")
            if A_:
                a(f"s_and_b32 s{sDEL}, s{sTT}, 1")
                a(f"s_lshl_b32 s{sDEL}, s{sDEL}, 1")
                tr_addr(vTR, ("s", sDEL))
                a(f"s_lshl_b32 s{sT1}, s{sT1}, 1")
                a(f"v_add_u32 v{vTR+1}, s{sT1}, v{vTR}")
            else:
                tr_addr(vTR, 4)
            if B_:
                tr_addr(vSA, ("s", sTT))
                w_setup(False)
        next_chunk(B_, A_ or not kv, K1_SLOT)
        if B_:
            for p in range(4): xpiece(p)
        else:
            for p in range(2 if kv else 5): wpiece(p, kv)
        next_chunk(B_, kv != B_, K1_SLOT)
        a(f"s_and_b32 s{sT}, s2, 7")
        a(f"s_lshl_b32 s{sT}, s{sT}, 3")
        a(f"s_lshr_b32 s{sT0}, s2, 5")
        a(f"s_add_u32 s{sT}, s{sT}, s{sT0}")
        a(f"s_bfe_u32 s{sHG}, s2, 0x20003")
        a(f"s_mul_i32 s{sG}, s{sT}, {G_TSTRIDE}")
        a(f"s_mul_i32 s{sOB}, s{sT}, {32*1280}")
        a(f"s_mul_i32 s{sT0}, s{sHG}, 320")
        a(f"s_add_u32 s{sOB}, s{sOB}, s{sT0}")
        a(f"s_lshl_b32 s{sF2}, s{sT}, 2")
        a(f"s_add_u32 s{sF2}, s{sF2}, s{sHG}")
        a(f"s_lshl_b32 s{sF2}, s{sF2}, 7")
        a(f"s_add_u32 s{sF2}, s{sF2}, {WS_F2}")
        a(f"s_mul_i32 s{sOUT}, s{sT3}, {G_TSTRIDE}")
        a(f"s_mul_i32 s{sT0}, s{sCG}, 10240")
        a(f"s_add_u32 s{sOUT}, s{sOUT}, s{sT0}")
        a(f"s_cmp_lt_u32 s{sCG}, 4")
        a(f"s_cselect_b32 s{sQS}, {f32bits(QSCALE):#x}, 1.0")
        a(f"s_lshl_b32 s{sFL}, s{sRB}, 4")
        a(f"s_add_u32 s{sFL}, s{sFL}, s{sCG}")
        a(f"s_lshl_b32 s{sFL}, s{sFL}, 7")
        a(f"s_add_u32 s{sFL}, s{sFL}, {WS_F1}")
        a(f"s_mov_b32 s{sFAST}, 0")
        a(f"s_mov_b32 s{sC}, 0")
        if B_:
            srd(a, SB, pOUT, 2048 * 1280)
        elif not kv and opt("pre1"):
            ffn_pre(a, vL, vT0, vT1)
        if B_:
            a(f"v_mov_b32 v{vT0}, {L_CNT}")
            a(f"ds_write_b128 v{vT0}, {vr(PUB, 4)}")
        def att_setup(part=None):
            for p, f in ((0, as0), (4, as4)):
                if part is None or part == p: f()
        def as0():
            a(f"v_mul_u32_u24 v{avV}, 384, v{vH}")
            a(f"v_lshl_add_u32 v{avV}, v{vN}, 4, v{avV}")
            a(f"v_add_u32 v{avV}, 1024, v{avV}")
            a(f"v_mov_b32 v{vT0}, {OOB:#x}")
            a(f"v_cmp_gt_u32 vcc, 21, v{vN}")
            a(f"v_min_u32 v{avKT}, 32, v{vL}")
            a(f"v_lshlrev_b32 v{avKT}, 3, v{avKT}")
            a(f"v_cndmask_b32 v{avV}, v{vT0}, v{avV}, vcc")
            a(f"v_add_u32 v{avKT}, 2560, v{avKT}")
        def as4():
            a(f"v_and_b32 v{vT0}, 15, v{vL}")
            a(f"v_lshlrev_b32 v{vT0}, 11, v{vT0}")
            a(f"v_add_u32 v{vT0}, {WS_F1 + 15*128}, v{vT0}")
            a(f"s_and_b32 s{sT0}, s2, 7")
            a(f"s_lshl_b32 s{sT0}, s{sT0}, 7")
            a(f"s_add_u32 s{sT0}, s{sT0}, {WS_XC}")
            a(f"v_cmp_gt_u32 vcc, 32, v{vL}")
            a(f"v_lshl_add_u32 v{vT1}, v{vN}, 2, s{sT0}")
            a("s_nop 0")
            a(f"v_cndmask_b32 v{vFL}, v{vT1}, v{vT0}, vcc")

        if kv:
            nd = 4 if B_ else 2
            XB, WA = [28, ACC + 16], [128, 144] if A_ else [96, 112]
            def pieces(rng):
                for p in rng:
                    if p < nd: xpiece(p) if B_ else wpiece(p, True)
            pieces(range(4))
            next_chunk(B_, A_, K1_SLOT)
            a(f"s_waitcnt vmcnt({2*nd + (3 if A_ else 0)})")
            a.stamp(2)
            a("s_barrier")
            a.stamp(3); a.stamp(NSTAMP, True)
            for s in range(4):
                a(f"ds_read_b128 {vr(XB[0]+4*s, 4)}, v{vX+s}")
                a(f"ds_read_b64_tr_b16 {vr(WA[0]+4*s, 2)}, v{vTR} offset:{s*sstr}")
                a(f"ds_read_b64_tr_b16 {vr(WA[0]+4*s+2, 2)}, v{vTR} offset:{s*sstr+4*rstr}")
            a(f"buffer_load_dword v{vNON}, v{vZ}, {sr(SDBG)}, 0 offen sc1")
            pieces(range(4))
            a.label(f"P1_L{tag}")
            for b in range(2):
                next_slot()
                next_chunk(B_, A_, f"s{sT1}")
                if b == 0:
                    L = a.uid("KS")
                    a(f"s_cmp_lg_u32 s{sC}, 6")
                    a(f"s_cbranch_scc1 {L}")
                    if B_: a(f"s_mov_b32 s{SX+2}, 0")
                    else:
                        a(f"s_mov_b32 s{SA+2}, 0")
                        a(f"s_mov_b32 s{SB+2}, 0")
                    a.label(L)
                a(f"s_waitcnt vmcnt({2*nd}) lgkmcnt(0)")
                a("s_barrier")
                for s in range(4):
                    a(f"v_mfma_f32_32x32x16_bf16 {vr(ACC, 16)}, {vr(WA[b]+4*s, 4)}, {vr(XB[b]+4*s, 4)}, {vr(ACC, 16)}")
                    a(f"ds_read_b128 {vr(XB[b^1]+4*s, 4)}, v{vX+s}")
                    a(f"ds_read_b64_tr_b16 {vr(WA[b^1]+4*s, 2)}, v{vTR} offset:{s*sstr}")
                    a(f"ds_read_b64_tr_b16 {vr(WA[b^1]+4*s+2, 2)}, v{vTR} offset:{s*sstr+4*rstr}")
                    for j in range(2): m4(P + 4*j, ONE, WA[b]+4*s+2*j)
                    pieces([s])
                if b == 1:
                    L, L2 = a.uid("KN"), a.uid("KR")
                    a(f"s_cmp_lg_u32 s{sC}, 1")
                    a(f"s_cbranch_scc1 {L}")
                    get_nonce(A_)
                    if A_: row_stats()
                    a.label(L)
                    a(f"s_cmp_lg_u32 s{sC}, 7")
                    a(f"s_cbranch_scc1 {L2}")
                    row_load(ST + 16)
                    a.label(L2)
                if A_: a.lstamp(sC)
                a(f"s_add_u32 s{sC}, s{sC}, 1")
            a(f"s_cmp_lt_u32 s{sC}, 10")
            a(f"s_cbranch_scc1 P1_L{tag}")
            a.stamp(4); a.stamp(NSTAMP + 1, True)
            if A_: a.ldump()
            R = ST + 16
            a(f"s_mov_b32 s{sSPIN}, {SPIN}")
            a(f"s_branch P1_GW{tag}")
            a.label(f"P1_GA{tag}")
            row_load(R)
            a.label(f"P1_GW{tag}")
            a("s_waitcnt vmcnt(0) lgkmcnt(0)")
            tag_check([R + 1, R + 3], f"P1_GA{tag}", f"P1_FOK{tag}")
            a(f"v_add_f32 v{P}, v{P}, v{P+4}")
            split3(a, P, vT0, vT1, CSR, CSR + 1)
            a(f"v_mov_b32 v{R+1}, v{R}")
            a(f"v_mov_b32 v{R+3}, v{R+2}")
            a(f"v_lshlrev_b32 v{vT2}, 4, v{vL}")
            a(f"v_mfma_f32_32x32x8_bf16 {vr(ACC, 16)}, {vr(CSR, 2)}, {vr(R, 2)}, {vr(ACC, 16)}")
            a("s_nop 9")
            a(f"s_mul_i32 s{sT0}, s{sT3}, {KV_REC}")
            a(f"s_add_u32 s{sT0}, s{sT0}, {WS_KV}")
            for j in range(6): a(f"v_pk_mul_f32 {vr(ACC+2*j, 2)}, {vr(ACC+2*j, 2)}, {vr(R+2, 2)}")
            if A_:
                for j in range(6): a(f"v_cvt_pk_bf16_f32 v{P+j}, v{ACC+2*j}, v{ACC+2*j+1}")
                a(f"v_min_u32 v{vT0}, 32, v{vL}")
                a(f"v_lshlrev_b32 v{vT0}, 3, v{vT0}")
                a("s_mov_b32 exec_lo, 0")
                a(f"v_mov_b32 v{P+4}, 0x3f803f80")
                a(f"v_mov_b32 v{P+5}, 0x3f80")
                a("s_mov_b32 exec_lo, -1")
                a(f"buffer_store_dwordx4 {vr(P, 4)}, v{vT2}, {sr(SWS)}, s{sT0} offen sc1")
                a(f"buffer_store_dwordx2 {vr(P+4, 2)}, v{vT0}, {sr(SWS)}, s{sT0} offen offset:2560 sc1")
            else:
                a("s_mov_b32 exec_lo, 0")
                a(f"v_mov_b32 v{ACC+8}, 1.0")
                a("s_mov_b32 exec_lo, -1")
                for j in range(6): a(f"v_cvt_pk_bf16_f32 v{P+j}, v{ACC+2*j}, v{ACC+2*j+1}")
                a(f"s_mul_i32 s{sT1}, s{sTT}, 1536")
                a(f"s_add_u32 s{sT1}, s{sT1}, {L_VT}")
                a(f"v_lshrrev_b32 v{vT0}, 3, v{vN}")
                a(f"v_mul_u32_u24 v{vT0}, 384, v{vT0}")
                a(f"v_and_b32 v{vT1}, 7, v{vN}")
                a(f"v_lshl_add_u32 v{vT0}, v{vT1}, 1, v{vT0}")
                a(f"v_lshl_add_u32 v{vT0}, v{vH}, 6, v{vT0}")
                a(f"v_add_u32 v{vT0}, s{sT1}, v{vT0}")
                for r in range(12):
                    op = "ds_write_b16" if r % 2 == 0 else "ds_write_b16_d16_hi"
                    a(f"{op} v{vT0}, v{P+r//2} offset:{(r//4)*128 + (r%4)*16}")
                a(f"v_add_u32 v{vT0}, s{sT1}, v{vT2}")
                a("s_waitcnt lgkmcnt(0)")
                a(f"ds_read_b128 {vr(P+8, 4)}, v{vT0}")
                a(f"ds_read_b128 {vr(P+12, 4)}, v{vT0} offset:1024")
                a("s_waitcnt lgkmcnt(0)")
                a(f"buffer_store_dwordx4 {vr(P+8, 4)}, v{vT2}, {sr(SWS)}, s{sT0} offen offset:1024 sc1")
                a("s_mov_b32 exec_hi, 0")
                a(f"buffer_store_dwordx4 {vr(P+12, 4)}, v{vT2}, {sr(SWS)}, s{sT0} offen offset:2048 sc1")
                a("s_mov_b32 exec_hi, -1")
            a.stamp(5)
            a("s_waitcnt vmcnt(0) lgkmcnt(0)")
            a("s_barrier")
            if B_:
                a(f"s_mov_b32 s{sKOK}, 0")
                a(f"s_cmp_lg_u32 s{sW}, 4")
                a(f"s_cbranch_scc1 P1_KNP")
                a("s_mov_b64 exec, 1")
                a(f"buffer_store_dword v{vNON}, v{vZ}, {sr(SWS)}, s{sFL} offen sc1")
                a("s_mov_b64 exec, -1")
                a.label("P1_KNP")
                a(f"s_mul_i32 s{sT0}, s{sHG}, 10240")
                a(f"s_add_u32 s{sT0}, s{sT0}, s{sG}")
                a(f"s_mul_i32 s{sT1}, s{sTT}, 2560")
                a(f"s_add_u32 s{sT0}, s{sT0}, s{sT1}")
                a(f"v_lshlrev_b32 v{vT0}, 7, v{vL}")
                a("s_mov_b64 exec, 0xfffff")
                a(f"buffer_load_dword v20, v{vT0}, {sr(SWS)}, s{sT0} offen")
                a("s_mov_b64 exec, -1")
                att_setup(); att_zero(a); att_scalars(a)
                a("s_waitcnt lgkmcnt(0)")
                a("s_barrier")
            else:
                if opt("pre1"): ffn_pre(a, vL, vT0, vT1)
                else:
                    a("s_movk_i32 s100, 960")
                    row_offsets(a, fD, vL, vT0, vT1, "s100")
                a("s_barrier")
                srd(a, SX, pW2, 1728 * 1280)
                a(f"s_mul_i32 s{sT2}, s{sW}, 5120")
                a(f"s_mul_i32 s{sT0}, s{sW}, {27*16*1280}")
                a(f"s_mul_i32 s{sT1}, s{sHG}, 320")
                a(f"s_add_u32 s{sT0}, s{sT0}, s{sT1}")
                for i in range(NS):
                    for p in range(5):
                        a(f"s_add_u32 m0, s{sT2}, {L_RING + i*20480 + p*1024}")
                        a("s_nop 0")
                        a(f"buffer_load_dwordx4 v{fD+p}, {sr(SX)}, s{sT0} offen lds")
                    a(f"s_add_u32 s{sT0}, s{sT0}, {16*1280}")
            a(f"s_branch {nxt}")
            return

        def mfma(i, p): a(f"v_mfma_f32_32x32x16_bf16 {vr(ACC+16*i, 16)}, {vr(FA[p]+4*i, 4)}, {vr(FB[p], 4)}, {vr(ACC+16*i, 16)}")
        def rdb(q, ns): a(f"ds_read_b128 {vr(FB[q], 4)}, v{vX+ns}")
        def rda(q, i, ns):
            a(f"ds_read_b64_tr_b16 {vr(FA[q]+4*i, 2)}, v{vTR+i} offset:{ns*sstr}")
            a(f"ds_read_b64_tr_b16 {vr(FA[q]+4*i+2, 2)}, v{vTR+i} offset:{ns*sstr+4*rstr}")
        def rank1(i): a(f"v_mfma_f32_32x32x8_bf16 {vr(ACC+16*i, 16)}, {vr(CSR+2*i, 2)}, {vr(NM, 2)}, {vr(ACC+16*i, 16)}")
        def pack_store(i, t):
            for j in range(8): a(f"v_pk_mul_f32 {vr(ACC+16*i+2*j, 2)}, {vr(ACC+16*i+2*j, 2)}, {vr(ST, 2)}")
            for j in range(8): a(f"v_cvt_pk_bf16_f32 v{P+8*i+j}, v{ACC+16*i+2*j}, v{ACC+16*i+2*j+1}")
            L = a.uid("NR")
            a(f"s_cmp_lt_u32 s{sCG}, 4")
            a(f"s_cbranch_scc1 {L}")
            for j in range(8): a(f"v_pk_max_i16 v{P+8*i+j}, v{P+8*i+j}, 0")
            a.label(L)
            a(f"s_add_u32 s{sT0}, s{sOUT}, {t}")
            stores(a, [f"buffer_store_dwordx4 {vr(P+8*i+4*e, 4)}, v{vT2}, {sr(SWS)}, s{sT0} offen offset:{1024*e}" for e in range(2)])
        def signal(vn):
            a.stamp(5)
            if PROFILE and opt("dbgf"):
                a(f"s_lshl_b32 s100, s{sKOK}, 1") if B_ else a("s_mov_b32 s100, 0")
                a(f"s_or_b32 s82, s100, s{sFAST}")
            if B_:
                att_zero(a); att_scalars(a)
            a(f"s_lshl_b32 s{sT0}, s{sW}, 2")
            a(f"s_add_u32 s{sT0}, s{sT0}, s{sFL}")
            a("s_mov_b64 exec, 1")
            a("s_waitcnt vmcnt(0)")
            stores(a, [f"buffer_store_dword v{vn}, v{vZ}, {sr(SWS)}, s{sT0} offen offset:32"])
            a("s_mov_b64 exec, -1")
            if opt("tp") and A_:
                a(f"buffer_load_dword v229, v{vT0}, {sr(SWS)}, s{sOUT} offen sc1")
                a(f"s_add_u32 s{sT0}, s{sOUT}, 8192")
                a("s_mov_b64 exec, 0xffff")
                a(f"buffer_load_dword v229, v{vT0}, {sr(SWS)}, s{sT0} offen sc1")
                a("s_mov_b64 exec, -1")
            a(f"s_branch {nxt}")
        if A_:
            XB, WF = [128, 136], [144, 152]
            REC = [28, 36]
            vRS, vRC = 20, 23
            a(f"s_and_b32 s{sT0}, s{sTT}, 2")
            a(f"s_lshl_b32 s{sT1}, s{sT0}, 10")
            a(f"s_add_u32 s{sT1}, s{sT1}, {K1_ST}")
            a(f"v_lshl_add_u32 v{vRS}, v{vN}, 5, s{sT1}")
            a(f"s_and_b32 s{sT2}, s{sTT}, 1")
            a(f"s_lshl_b32 s{sT1}, s{sT2}, 10")
            a(f"s_add_u32 s{sT1}, s{sT1}, {K1_CS}")
            a(f"v_lshl_add_u32 v{vRC}, v{vL}, 3, s{sT1}")
            a(f"s_mul_i32 s{sT1}, s{sT2}, {4096 - G_TSTRIDE}")
            a(f"s_add_u32 s{sOUT}, s{sOUT}, s{sT1}")
            a(f"v_lshlrev_b32 v{vT2}, 4, v{vL}")
            srd(a, SX, pW2, 1728 * 1280)
            a(f"s_mul_i32 s{sPB}, s{sRB}, 15")
            a(f"s_add_u32 s{sPB}, s{sPB}, s{sCG}")
            a(f"s_lshl_b32 s{sPB}, s{sPB}, 2")
            a(f"s_add_u32 s{sPB}, s{sPB}, s{sTT}")
            a(f"s_mul_i32 s{sSO}, s{sPB}, {7*128}")
            a(f"s_mul_i32 s{sPB}, s{sPB}, {18*128}")
            srd(a, SB, pWO, 640 * 1280)
            a(f"v_lshlrev_b32 v{vT0}, 7, v{vL}")
            def mf(j, i, p): a(f"v_mfma_f32_32x32x16_bf16 {vr(ACC+32*j+16*i, 16)}, {vr(WF[p]+4*i, 4)}, {vr(XB[p]+4*j, 4)}, {vr(ACC+32*j+16*i, 16)}")
            def rx(q, j, ns): a(f"ds_read_b128 {vr(XB[q]+4*j, 4)}, v{vX+ns}" + (" offset:4096" if j else ""))
            def rw(q, i, ns):
                a(f"ds_read_b64_tr_b16 {vr(WF[q]+4*i, 2)}, v{vTR+i} offset:{ns*sstr}")
                a(f"ds_read_b64_tr_b16 {vr(WF[q]+4*i+2, 2)}, v{vTR+i} offset:{ns*sstr+4*rstr}")
            a("s_waitcnt vmcnt(8)")
            a.stamp(2)
            a("s_barrier")
            rx(0, 0, 0); rw(0, 0, 0); rw(0, 1, 0); rx(0, 1, 0)
            a.stamp(3); a.stamp(NSTAMP, True)
            def step(s, pre=None, extra=0):
                p, q, ns = s & 1, (s + 1) & 1, (s + 1) & 3
                if pre is None: a(f"s_waitcnt lgkmcnt({3 + extra})")
                mf(0, 0, p)
                if pre is not None: pre()
                rx(q, 0, ns)
                if pre is None: a(f"s_waitcnt lgkmcnt({1 + extra})")
                mf(0, 1, p)
                rw(q, 0, ns)
                mf(1, 1, p)
                rw(q, 1, ns)
                mf(1, 0, p)
                rx(q, 1, ns)
            a.raw(".p2align 3")
            a.label(f"P1_L{tag}")
            for s in range(3): step(s)
            a(f"s_and_b32 s{sT0}, s{sC}, 3")
            a(f"s_cmp_eq_u32 s{sT0}, 3")
            csel(a, sDEL, -3*K1_SLOT, K1_SLOT)
            for s in range(4): a(f"v_add_u32 v{vX+s}, s{sDEL}, v{vX+s}")
            for i in range(2): a(f"v_add_u32 v{vTR+i}, s{sDEL}, v{vTR+i}")
            TC = optv("tc", 3)
            TO = 9
            a(f"s_bitcmp1_b32 {7 | (1 << TC):#x}, s{sC}")
            a("s_waitcnt lgkmcnt(0)")
            def pre():
                a(f"s_cbranch_scc1 P1_X{tag}")
                a.label(f"P1_W1{tag}")
                a("s_barrier")
            step(3, pre)
            a.lstamp(sC)
            a(f"s_add_u32 s{sC}, s{sC}, 1")
            a(f"s_cmp_lt_u32 s{sC}, 9")
            a(f"s_cbranch_scc1 P1_L{tag}")
            a(f"ds_read_b128 {vr(REC[0], 4)}, v{vRS}")
            a(f"ds_read_b64 {vr(REC[0]+4, 2)}, v{vRS} offset:16")
            a(f"ds_read_b128 {vr(REC[1], 4)}, v{vRS} offset:1024")
            for i in range(2): a(f"ds_read_b64 {vr(CSR+2*i, 2)}, v{vRC} offset:{512*i}")
            step(0, None, 5)
            step(1)
            rds = [lambda: rx(1, 0, 3), lambda: rw(1, 0, 3), lambda: rw(1, 1, 3), lambda: rx(1, 1, 3)]
            for n in range(4):
                j, i = n >> 1, n & 1
                a(f"v_mfma_f32_32x32x8_bf16 {vr(ACC+16*n, 16)}, {vr(CSR+2*i, 2)}, {vr(REC[j], 2)}, {vr(ACC+16*n, 16)}")
                rds[n]()
            a(f"v_readfirstlane_b32 s{sFAST}, v{REC[0]+5}")
            a("s_waitcnt lgkmcnt(3)")
            mf(0, 0, 0); mf(0, 0, 1)
            a("s_waitcnt lgkmcnt(0)")
            a("s_barrier")
            a.stamp(4); a.stamp(NSTAMP + 1, True)
            mf(0, 1, 0); mf(0, 1, 1)
            a("s_nop 7")
            for n in range(4):
                if n < 2: mf(1, n, 0); mf(1, n, 1)
                ST = REC[n >> 1] + 2
                pack_store(n, (n >> 1) * G_TSTRIDE + (n & 1) * 2048)
            a.ldump()
            signal(REC[0] + 4)
            a.label(f"P1_X{tag}")
            for c in range(3):
                L = a.uid("XH")
                a(f"s_cmp_lg_u32 s{sC}, {c}")
                a(f"s_cbranch_scc1 {L}")
                if c == 0:
                    a("s_waitcnt vmcnt(5)")
                    row_stats(0); row_stats(1)
                    a("s_waitcnt vmcnt(0)")
                    a(f"buffer_load_dword v{vNON}, v{vZ}, {sr(SDBG)}, 0 offen sc1")
                elif c == 1:
                    row_stats(2)
                else:
                    a("s_waitcnt vmcnt(0)")
                    get_nonce(True)
                    row_stats(3)
                a(f"s_branch P1_W1{tag}")
                a.label(L)
            if not opt("notq"):
                a(f"s_mul_i32 s{sT0}, s{sHG}, 10240")
                a(f"s_add_u32 s{sT0}, s{sT0}, s{sG}")
                a(f"s_mul_i32 s{sT1}, s{sTT}, 2560")
                a(f"s_add_u32 s{sT0}, s{sT0}, s{sT1}")
                a("s_mov_b64 exec, 0xfffff")
                a(f"buffer_load_dword v229, v{vT0}, {sr(SWS)}, s{sT0} offen")
            a("s_mov_b64 exec, 0x7f")
            a(f"buffer_load_dword v230, v{vT0}, {sr(SB)}, s{sSO} offen")
            a("s_mov_b64 exec, 0x3ffff")
            a(f"buffer_load_dword v231, v{vT0}, {sr(SX)}, s{sPB} offen")
            a("s_mov_b64 exec, -1")
            a(f"s_branch P1_W1{tag}")
            return
        NM, ST = 44, 46
        vWO, CG, RR = 200, 204 - 8, 206
        CG = 196
        a(f"s_lshl_b32 s{sPB}, s{sCG}, 2")
        a(f"s_add_u32 s{sPB}, s{sPB}, s{sTT}")
        a(f"s_mul_i32 s{sPB}, s{sPB}, 5120")
        a(f"s_add_u32 s{sPB}, s{sPB}, {WS_CP}")
        a(f"s_sub_u32 s{sM0}, s{sM0}, {2*K1_SLOT}")
        a(f"s_sub_u32 s{sM0W}, s{sM0W}, {2*K1_SLOT}")
        a("s_setprio 1")
        ops = ["X0"] * 4 + ["D1"] * 4
        def vm(tag_, n=1): ops.extend([tag_] * n)
        def wait(*tags):
            last = max(i for i, t in enumerate(ops) if t in tags)
            return len(ops) - 1 - last
        def xp(c, p):
            a(f"s_add_u32 m0, s{sM0}, {(c & 3)*K1_SLOT + 1024*p}")
            a("s_nop 0")
            a(f"buffer_load_dwordx4 v{vD+p}, {sr(SX)}, s{sSO} offen lds"); vm(f"D{c}")
        def wp(c, p):
            base = (c & 3) * K1_SLOT if c < 10 else L_RING + (c - 10) * 20480
            a(f"s_add_u32 m0, s{sM0W}, {base + 1024*p}")
            a("s_nop 0")
            a(f"buffer_load_dwordx4 v{(vDW if c < 10 else vWO)+p}, {sr(SA)}, s{sSOW} offen lds"); vm(f"D{c}")
        def adv(c):
            if c < 10:
                a(f"s_add_u32 s{sCC}, s{sCC}, 1")
                a(f"s_cmp_eq_u32 s{sCC}, 10")
                a(f"s_cselect_b32 s{sCC}, 0, s{sCC}")
                a(f"s_lshl_b32 s{sSO}, s{sCC}, 7")
                a(f"s_mul_i32 s{sSOW}, s{sCC}, s{sWSTEP}")
                a(f"s_add_u32 s{sSOW}, s{sSOW}, s{sWBASE}")
            elif c == 10:
                srd(a, SA, pW2, 1728 * 1280)
                a(f"s_mul_i32 s{sSOW}, s{sTT}, {27*16*1280}")
                a(f"s_mul_i32 s{sT0}, s{sHG}, 320")
                a(f"s_add_u32 s{sSOW}, s{sSOW}, s{sT0}")
            elif c < 13:
                a(f"s_add_u32 s{sSOW}, s{sSOW}, {16*1280}")
        def f_nonce(): get_nonce(False)
        def f_cspub():
            a(f"v_add_f32 v{PUB}, v{P}, v{P+8}")
            a(f"v_add_f32 v{PUB+2}, v{P+4}, v{P+12}")
            halfop(a, "v_add_f32", PUB, vT0); halfop(a, "v_add_f32", PUB + 2, vT0)
            a(f"v_mov_b32 v{PUB+1}, v{vNON}")
            a(f"v_mov_b32 v{PUB+3}, v{vNON}")
            a(f"v_lshlrev_b32 v{vT2}, 4, v{vL}")
            a(f"s_lshl_b32 s{sT1}, s{sST}, 9")
            a(f"s_add_u32 s{sT0}, s{sPB}, s{sT1}")
            a("s_mov_b32 exec_hi, 0")
            a(f"buffer_store_dwordx4 {vr(PUB, 4)}, v{vT2}, {sr(SWS)}, s{sT0} offen sc1"); vm("S")
            a("s_mov_b32 exec_hi, -1")
        def f_rowpub(): row_stats(3); vm("S")
        def f_wo(ps):
            a(f"s_movk_i32 s{sT2}, 960")
            row_offsets(a, vWO, vL, vT0, vT1, f"s{sT2}", ps)
        def gather(js, count=True):
            for j in js:
                if j == 0:
                    row_load(RR)
                    a(f"v_mul_u32_u24 v{vT1}, 2560, v{vH}")
                    a(f"v_add_u32 v{vSA}, v{vT0}, v{vT1}")
                else:
                    a(f"buffer_load_dwordx4 {vr(GAT+4*(j-1), 4)}, v{vSA}, {sr(SWS)}, s{sPB} offen offset:{512*(j-1)} sc1")
                if count: vm("G")
        def f_words(t):
            a(f"buffer_load_dword v{vFV}, v{vFL}, {sr(SWS)}, 0 offen sc1"); vm(t)
        def f_fin0():
            a(f"s_mov_b32 s{sSPIN}, {SPIN}")
            a(f"s_waitcnt vmcnt({wait('G', 'XW')})")
            a(f"v_cmp_ne_u32 vcc, s{sXW}, v{vFV}")
            a("s_cmp_eq_u32 vcc_hi, 0")
            a(f"s_cselect_b32 s{sFAST}, {0 if opt('slow') else 1}, 0")
            a.label(f"P1_FC{tag}")
            tag_check([RR + 1, RR + 3] + [GAT + 2*j + 1 for j in range(10)], f"P1_GA{tag}", f"P1_FOK{tag}")
        def f_fin1():
            a(f"v_mov_b32 v{NM}, v{RR}")
            a(f"v_mov_b32 v{NM+1}, v{RR}")
            a(f"v_mul_f32 v{ST}, s{sQS}, v{RR+2}")
            a(f"v_mul_f32 v{ST+1}, s{sQS}, v{RR+2}")
            a(f"v_mov_b32 v{RR}, s{sNON}")
            a(f"v_mov_b32 v{RR+1}, s{sFAST}")
            a(f"s_lshl_b32 s{sT0}, s{sTT}, 10")
            a(f"s_add_u32 s{sT0}, s{sT0}, {K1_ST}")
            a(f"v_lshl_add_u32 v{vT0}, v{vN}, 5, s{sT0}")
            a(f"ds_write_b128 v{vT0}, {vr(NM, 4)}")
            a(f"ds_write_b64 v{vT0}, {vr(RR, 2)} offset:16")
            for j in range(1, 5):
                a(f"v_add_f32 v{GAT}, v{GAT}, v{GAT+4*j}")
                a(f"v_add_f32 v{GAT+2}, v{GAT+2}, v{GAT+4*j+2}")
        def f_fin2():
            split3(a, GAT, vT0, vT1, PUB, PUB + 1)
            a(f"s_lshl_b32 s{sT0}, s{sTT}, 9")
            a(f"s_add_u32 s{sT0}, s{sT0}, {K1_CS}")
            a(f"v_lshl_add_u32 v{vT0}, v{vL}, 3, s{sT0}")
            a(f"ds_write_b64 v{vT0}, {vr(PUB, 2)}")
            split3(a, GAT + 2, vT0, vT1, CSR, CSR + 1)
        def f_kv():
            L = a.uid("NOKV")
            a(f"s_waitcnt vmcnt({wait('KF')})")
            a(f"v_cmp_ne_u32 vcc, s{sNON}, v{vFV}")
            a(f"s_mov_b32 s{sKOK}, 0")
            a("s_cmp_lg_u32 vcc_lo, 0")
            a(f"s_cbranch_scc1 {L}")
            kv_first(a, vT2)
            a(f"s_mov_b32 s{sKOK}, 1")
            a.label(L)
        def f_tlb():
            if not opt("tlb"): return
            a(f"v_lshlrev_b32 v{vT0}, 21, v{vL}")
            a("s_mov_b64 exec, 0x7f")
            a(f"buffer_load_dword v20, v{vT0}, {sr(SWS)}, 0 offen"); vm("T")
            a("s_mov_b64 exec, 1")
            a(f"buffer_load_dword v20, v{vZ}, {sr(SB)}, s{sOB} offen"); vm("T")
            a("s_mov_b64 exec, -1")
        def f_code():
            if not opt("code"): return
            a("s_getpc_b64 s[100:101]")
            a.label("PCREF")
            a(f"s_lshr_b32 s{sT0}, s2, 3")
            a(f"s_lshl_b32 s{sT0}, s{sT0}, 2")
            a(f"s_add_u32 s{sT0}, s{sT0}, s{sTT}")
            a(f"s_lshl_b32 s{sT0}, s{sT0}, 7")
            a(f"s_add_u32 s{sT0}, s{sT0}, P2_ATT-PCREF")
            a(f"s_add_u32 s100, s100, s{sT0}")
            a("s_addc_u32 s101, s101, 0")
            a(f"v_mov_b32 v{vT0}, s100")
            a(f"v_mov_b32 v{vT1}, s101")
            a("s_mov_b64 exec, 1")
            a(f"global_load_dword v20, {vr(vT0, 2)}, off"); vm("T")
            a("s_mov_b64 exec, -1")
        fill = {(2, 0): f_nonce, (2, 1): f_cspub, (3, 1): lambda: f_wo((0, 1)), (4, 1): lambda: f_wo((2, 3)), (1, 1): lambda: (f_wo((4,)), att_setup(4)),
                (5, 0): lambda: gather((0,)), (5, 1): lambda: gather((1,)), (5, 2): lambda: gather((2,)),
                (6, 0): lambda: gather((3,)), (6, 1): lambda: gather((4,)), (6, 2): lambda: gather((5,)),
                (4, 2): lambda: f_words("XW"), (7, 0): lambda: att_setup(0)}
        if opt("g7"):
            for k in ((5, 0), (5, 1), (5, 2), (6, 0), (6, 1), (6, 2), (4, 2)): del fill[k]
            fill.update({(6, 2): lambda: gather((0, 1, 2)), (7, 0): lambda: (gather((3, 4, 5)), f_words("XW")), (7, 1): lambda: att_setup(0)})
        if opt("fin8"): fill.update({(8, 0): f_fin0, (8, 1): f_fin1, (8, 2): f_fin2})
        else: fill.update({(7, 2): f_fin0, (8, 0): f_fin1, (8, 1): f_fin2})
        fill.update({(9, 0): lambda: (rank1(0), f_words("KF"))})
        a(f"s_waitcnt vmcnt({wait('X0')})")
        a.stamp(2)
        a("s_barrier")
        rdb(0, 0); rda(0, 0, 0)
        for p in range(5): wp(2, p)
        for p in range(4): xp(2, p)
        a(f"buffer_load_dword v{vNON}, v{vZ}, {sr(SDBG)}, 0 offen sc1"); vm("N")
        a.stamp(3); a.stamp(NSTAMP, True)
        for c in range(10):
            adv(c + 3)
            for s in range(4):
                p, q, ns = s & 1, (s + 1) & 1, (s + 1) & 3
                if c == 0:
                    a(f"ds_read_b64_tr_b16 {vr(CG, 2)}, v{vSA} offset:{s*sstr}")
                    a(f"ds_read_b64_tr_b16 {vr(CG+2, 2)}, v{vSA} offset:{s*sstr+4*rstr}")
                if s == 3 and c < 9:
                    d = -3 * K1_SLOT if (c & 3) == 3 else K1_SLOT
                    for r in list(range(vX, vX + 4)) + [vTR]: a(f"v_add_u32 v{r}, {d}, v{r}")
                a("s_waitcnt lgkmcnt(0)")
                mfma(0, p)
                if c == 0:
                    for j in range(2):
                        m4(P + 8*j, ONE, CG + 2*j); m4(P + 8*j + 4, ONE, FA[p] + 2*j)
                if s == 3:
                    if c < 9: a(f"s_waitcnt vmcnt({wait(f'D{c+1}', 'N') if c == 1 else wait(f'D{c+1}')})")
                    a("s_barrier")
                if c < 9 or s < 3:
                    rdb(q, ns); rda(q, 0, ns)
                if s < 3:
                    if c + 3 < 10 + NS:
                        for pp in ((0, 1), (2, 3), (4,))[s]: wp(c + 3, pp)
                    if c + 3 < 10:
                        for pp in ((0,), (1,), (2, 3))[s]: xp(c + 3, pp)
                    if (c, s) in fill: fill[(c, s)]()
        a.stamp(4); a.stamp(NSTAMP + 1, True)
        a("s_setprio 0")
        a("s_nop 9")
        pack_store(0, 8192); vm("S", 2)
        f_kv()
        signal(vNON)
        a.label(f"P1_GA{tag}")
        gather(range(6), False)
        a("s_waitcnt vmcnt(0)")
        a(f"s_branch P1_FC{tag}")

    body("GA", "A", False)
    a.label("P1_GB")
    body("GB", "B", False)
    a.label("P1_KA0")
    a(f"v_lshlrev_b32 v{vDW}, 4, v{vL}")
    a(f"s_mul_i32 s{sWBASE}, s{sW}, 640")
    a(f"s_mov_b32 s{sWSTEP}, 2560")
    a(f"s_mul_i32 s{sSOW}, s{sCC}, 2560")
    a(f"s_add_u32 s{sSOW}, s{sSOW}, s{sWBASE}")
    a(f"s_lshl_b32 s{sM0W}, s{sW}, 10")
    a("s_waitcnt lgkmcnt(0)")
    srd(a, SA, pWK, 640 * 40)
    srd(a, SB, pWV, 640 * 40)
    st01()
    for p in range(2): wpiece(p, True)
    a("s_barrier")
    body("KA", "A", True)
    a.label("P1_KB")
    body("KB", "B", True)

def kdesc(name, nv, ns=102):
    return f""".amdhsa_kernel {name}
  .amdhsa_next_free_vgpr {nv}
  .amdhsa_next_free_sgpr {ns}
  .amdhsa_accum_offset {(nv+3)//4*4}
  .amdhsa_group_segment_fixed_size 0
  .amdhsa_kernarg_size 88
  .amdhsa_user_sgpr_count 2
  .amdhsa_user_sgpr_kernarg_segment_ptr 1
  .amdhsa_system_sgpr_workgroup_id_x 1
.end_amdhsa_kernel
"""

DOC = """; ---------------------------------------------------------------------------------------------------------------
;
;          which case they meet in that XCD's L2; loads of handed-over data always bypass L1.  Every spin is bounded.
; ---------------------------------------------------------------------------------------------------------------
"""

def build():
    from g16p2 import gen_ffn, gen_att
    hdr = open("cdna_kernels/" + NAME + ".s.ref").read().split("; Override launch")[0]
    out = hdr
    out += f"; @launch grid=(256,1,1) block=(512,1,1) lds={LDS_BYTES}\n"
    out += '.amdgcn_target "amdgcn-amd-amdhsa--gfx950"\n' + DOC + '.text\n'
    a = Asm()
    k = NAME + "_kernel"
    a.raw(f".globl {k}\n.p2align 8\n.type {k},@function")
    a.label(k)
    gen_p1(a)
    a.p2 = True
    a.label("P2_ATT")
    gen_att(a)
    a.ffn = True
    a.label("P2_FFN")
    gen_ffn(a)
    for L, lines, D in a.tail:
        a.label(L)
        for l in lines: a(l)
        a(f"s_branch {D}")
    a.label("L_END")
    a("s_endpgm")
    if not opt("nocp"): a.raw(".fill 1280, 4, 0xbf810000")
    out += a.text()
    out += '.section .rodata,"a"\n.p2align 6\n' + kdesc(k, 256)
    return out

if __name__ == "__main__":
    path = sys.argv[1] if len(sys.argv) > 1 and not sys.argv[1].startswith("--") else "cdna_kernels/" + NAME + ".s"
    open(path, "w").write(build())
```

```python
from g18 import *

LD = {"plain": "", "nt": " nt", "sc0": " sc0"}.get(sys.argv[sys.argv.index("--ld") + 1] if opt("ld") else "", " sc1")
LDO = " nt" if opt("ldo") else " sc1"
def cnt_arrive(a, vaddr, vtmp, inc="1", off=0):
    a(f"v_mov_b32 v{vtmp}, {inc}")
    a("s_mov_b64 exec, 1")
    a(f"ds_add_u32 v{vaddr}, v{vtmp}" + (f" offset:{off}" if off else ""))
    a("s_mov_b64 exec, -1")
def cnt_wait(a, vaddr, vtmp, tgt, sleep=0, off=0):
    L, D = a.uid("CW"), a.uid("CWD")
    a(f"s_mov_b32 s{sSPIN}, {SPIN * 16}")
    a.label(L)
    a(f"ds_read_b32 v{vtmp}, v{vaddr}" + (f" offset:{off}" if off else ""))
    a("s_waitcnt lgkmcnt(0)")
    a(f"v_readfirstlane_b32 s{sT0}, v{vtmp}")
    a(f"s_and_b32 s{sT2}, s{sT0}, 0xffff")
    a(f"s_cmp_ge_u32 s{sT2}, {tgt}")
    a(f"s_cbranch_scc1 {D}")
    if sleep: a(f"s_sleep {sleep}")
    spin_tail(a, L)
    a.label(D)

def final_stage(a, base_item, X, R, vA, vG, load_x, do_rest):
    if load_x and load_x != "load":
        a(f"s_mov_b32 s100, {L_FP}")
        item_addr(a, base_item, vA, vG, X)
    if load_x and load_x != "addr":
        a(f"buffer_load_dwordx4 {vr(X, 4)}, v{vG}, {sr(SX)}, s{sOB} offen")
    if do_rest == 1:
        for s in range(4):
            a(f"ds_read_b128 {vr(R+8*s, 4)}, v{vA} offset:{s*5120}")
            a(f"ds_read_b128 {vr(R+8*s+4, 4)}, v{vA} offset:{s*5120+16}")
    if do_rest == 2:
        for j in range(4):
            a(f"v_lshlrev_b32 v{R+32+2*j}, 16, v{X+j}")
            a(f"v_and_b32 v{R+33+2*j}, 0xffff0000, v{X+j}")
    if do_rest >= 3:
        for s in range(4):
            a(f"s_waitcnt lgkmcnt({6-2*s + (do_rest-3)})")
            for j in range(4):
                a(f"v_pk_add_f32 {vr(R+32+2*j, 2)}, {vr(R+32+2*j, 2)}, {vr(R+8*s+2*j, 2)}")
        for j in range(4): a(f"v_cvt_pk_bf16_f32 v{X+j}, v{R+32+2*j}, v{R+33+2*j}")
        a(f"buffer_store_dwordx4 {vr(X, 4)}, v{vG}, {sr(SB)}, s{sOB} offen")

def gen_att(a):
    vL, vKM, vQT, vIDX, vT0, vT1, vCNT = 1, 2, 3, 4, 5, 6, 7
    vP = 8
    vT2, vT3 = 12, 13
    vFL = 23
    S, O, QM, QT, KM, KT, V0, V1 = aS, aO, aQM, aQT, aKM, aKT, aV0, aV1
    def qk1(s, kb, q): a(f"v_mfma_f32_32x32x16_bf16 {vr(S[s], 16)}, {vr(KM[kb], 4)}, {vr(QM(q), 4)}, 0")
    def qk2(s, kb, q): a(f"v_mfma_f32_32x32x8_bf16 {vr(S[s], 16)}, {vr(KT[kb], 2)}, {vr(QT(q), 2)}, {vr(S[s], 16)}")
    def pv(u, s, vb, q): a(f"v_smfmac_f32_32x32x32_bf16 {vr(O(q), 16)}, {vr((V0, V1)[u][vb], 4)}, {vr(S[s]+8*u, 8)}, v{vIDX}")
    def ldq(i):
        a(f"buffer_load_dwordx4 {vr(QM(i), 4)}, v{vKM}, {sr(SWS)}, s{sPm+i//2} offen" + (" offset:1024" if i & 1 else "") + LD)
        a(f"buffer_load_dwordx2 {vr(QT(i), 2)}, v{vQT}, {sr(SWS)}, s{sPt+i//2} offen" + (" offset:512" if i & 1 else "") + LD)
    def qregs(lo, hi): return list(range(QM(lo), QM(hi))) + list(range(QT(lo), QT(hi)))
    def rowmax(s, dst):
        b = S[s]
        a(f"v_max3_f32 v{dst}, v{b}, v{b+1}, v{b+2}")
        for j in range(3, 15, 2): a(f"v_max3_f32 v{dst}, v{dst}, v{b+j}, v{b+j+1}")
        a(f"v_max_f32 v{dst}, v{dst}, v{b+15}")
    def pair_addr(mul, base, vlane, shift):
        for j in range(4):
            a(f"s_add_u32 s{sT0}, s{sQ}, {j}")
            a(f"s_and_b32 s{sT0}, s{sT0}, 3")
            a(f"s_mul_i32 s{sT0}, s{sT0}, {mul}")
            a(f"s_add_u32 s{sT0}, s{sT0}, {base}")
            a(f"v_lshl_add_u32 v{vP+j}, v{vlane}, {shift}, s{sT0}")

    a("s_setprio 3")
    a(f"s_mov_b32 s{sMODE}, 0")
    a(f"v_lshlrev_b32 v{vKM}, 4, v{vL}")
    a(f"v_mov_b32 v{vT0}, {OOB:#x}")
    a(f"v_cmp_gt_u32 vcc, 32, v{vL}")
    a(f"v_mov_b32 v{vIDX}, 0xdddddddd")
    a(f"v_mov_b32 v{vCNT}, {L_CNT}")
    a(f"v_cndmask_b32 v{vQT}, v{vT0}, v{vKM}, vcc")
    cnt_arrive(a, vCNT, vT0, off=8)
    a.stamp(6)
    a(f"s_cmp_lg_u32 s{sKOK}, 0")
    a("s_cbranch_scc1 A_HAVEKV")
    a("s_mov_b32 exec_hi, 0")
    poll(a, vFL, vT0, "0")
    a("s_mov_b32 exec_hi, -1")
    a.label("A_RELOAD")
    kv_first(a, vKM)
    a.label("A_HAVEKV")
    check_fast(a, vT1, vT0)
    a(f"v_and_b32 v{vT1}, 31, v{vL}")
    pair_addr(512, L_MREC, vT1, 3)
    flag_words(a, vT1, vL)
    a.stamp(7)
    poll(a, vT1, vT0, f"s{sFQ}", optv("qsleep", 1))
    check_fast(a, vT1, vT0)
    a.stamp(8)
    ldq(0); ldq(1)
    a(f"s_cmp_lg_u32 s{sMODE}, 0")
    a("s_cbranch_scc1 A_TRUEMAX")
    a.c("stand-in for the row max: max over this wave's first 32 keys; checked after the loop, exact-max rerun if unsafe")
    ldq(2); ldq(3)
    a("s_waitcnt vmcnt(4)")
    qk1(0, 0, 0); qk2(0, 0, 0); qk1(1, 0, 1); qk2(1, 0, 1)
    for i in range(4, 8): ldq(i)
    a("s_nop 1")
    rowmax(0, S[2]); rowmax(1, S[2] + 1)
    a(f"v_mov_b32 v{vT0}, v{S[2]}")
    a(f"v_mov_b32 v{vT1}, v{S[2]+1}")
    a("s_nop 0")
    a(f"v_permlane32_swap_b32 v{vT0}, v{S[2]}")
    a(f"v_permlane32_swap_b32 v{vT1}, v{S[2]+1}")
    a(f"v_max_f32 v{S[2]}, v{S[2]}, v{vT0}")
    a(f"v_max_f32 v{S[2]+1}, v{S[2]+1}, v{vT1}")
    a("s_mov_b32 exec_lo, 0")
    for e in range(2): a(f"v_cvt_pk_bf16_f32 v{QT(e)}, -v{S[2]+e}, 0")
    a.label("A_HAVEMAX")
    for e in range(2): a(f"ds_write_b64 v{vP}, {vr(QT(e), 2)} offset:{256*e}")
    a("s_mov_b32 exec_lo, -1")
    cnt_arrive(a, vCNT, vT0)
    a(f"s_add_u32 s{sTGT}, s{sTGT}, 4")
    a(f"s_mov_b32 s{sCNT}, 8")
    a.stamp(9)
    a.stamp(10); a.stamp(NSTAMP + 2, True)
    qk1(0, 0, 0); qk2(0, 0, 0)
    a("s_cmp_lg_u32 0, 0")
    a("s_nop 10")
    a.raw(".p2align 6")
    a.label("A_LOOP")
    PAT0 = (3, 3, 4, 3, 3)
    PAT1 = tuple(int(ch) for ch in sys.argv[sys.argv.index("--pat1") + 1]) if opt("pat1") else PAT0
    PMASK = optv("pmask", 0)
    def slot(sc, nxt, prv, holes, PAT=PAT0):
        e = [0]
        def exps(n):
            for _ in range(n):
                a(f"v_exp_f32 v{S[sc]+e[0]}, v{S[sc]+e[0]}"); e[0] += 1
        ms = [lambda: qk1((sc + 1) & 3, *nxt), lambda: pv(0, (sc - 1) & 3, *prv), lambda: qk2((sc + 1) & 3, *nxt), lambda: pv(1, (sc - 1) & 3, *prv)]
        for j in range(4):
            if nxt is not None or j & 1: ms[j]()
            if j in holes: holes[j]()
            exps(PAT[j])
        holes[4]()
        exps(PAT[4])
    for kb in range(2):
        for q in range(8):
            def hole():
                if q == 0:
                    if kb == 0:
                        a("s_cbranch_scc0 A_FIRST")
                        a.label("A_FIRSTD")
                    a("s_waitcnt vmcnt(2)"); ldv(a, 0, kb ^ 1)
                elif q == 1: ldv(a, 1, kb ^ 1)
                elif q == 2: a(f"s_add_u32 s{sKV}, s{sKV}, {KV_REC}")
                elif q == 3 and kb == 0: a(f"s_sub_u32 s{sCNT}, s{sCNT}, 1")
                elif q == 4 and kb == 0: a(f"s_cmp_eq_u32 s{sCNT}, 0")
                elif q == 4: a("s_cmp_eq_u32 0, 0")
                elif q == 5: a("s_waitcnt vmcnt(2)")
                elif q == 6: ldkm(a, kb, vKM)
                elif q == 7: ldkt(a, kb)
                elif opt("nop"): a("s_nop 0")
            slot(q & 3, ((kb if q < 7 else kb ^ 1), (q + 1) & 7), ((kb if q > 0 else kb ^ 1), (q - 1) & 7), {4: hole}, PAT1 if (PMASK >> q) & 1 else PAT0)
        if kb == 0:
            a.lstamp(sCNT, 0)
            a("s_cbranch_scc1 A_LAST")
    a("s_branch A_LOOP")
    a.label("A_FIRST")
    a(f"s_mov_b32 s{sSPIN}, {SPIN * 16}")
    a("s_waitcnt vmcnt(0)")
    a.label("A_F0")
    a(f"ds_read_b32 v{vT1}, v{vCNT}")
    a("s_mov_b32 exec_lo, 0")
    for i in range(2, 8): a(f"ds_read_b64 {vr(QT(i), 2)}, v{vP+i//2} offset:{256*(i&1)}")
    a("s_mov_b32 exec_lo, -1")
    a("s_waitcnt lgkmcnt(6)")
    a(f"v_readfirstlane_b32 s{sT0}, v{vT1}")
    a(f"s_and_b32 s{sT0}, s{sT0}, 0xffff")
    a(f"s_cmp_ge_u32 s{sT0}, s{sTGT}")
    a("s_cbranch_scc1 A_F0D")
    spin_tail(a, "A_F0")
    a.label("A_F0D")
    a(f"v_and_b32 v{vT0}, 31, v{vL}")
    a(f"v_mul_u32_u24 v{vT0}, {8*36}, v{vT0}")
    a(f"v_sub_u32 v{vT0}, v{vKM}, v{vT0}")
    a(f"v_add_u32 v{vT0}, {(L_OP - 36*L_MREC) & 0xffffffff:#x}, v{vT0}")
    for j in range(4): a(f"v_mad_u32_u24 v{vP+j}, v{vP+j}, 36, v{vT0}")
    a("s_waitcnt lgkmcnt(0)")
    a.lstamp("8", 0)
    a("s_branch A_FIRSTD")
    a.label("A_LAST")
    def wr(i, j): a(f"ds_write_b128 v{vP+i//2}, {vr(O(i)+4*j, 4)} offset:{(i&1)*9216 + (i//2-1)*3072 + j*1024}")
    seq = [0, 2, 4, 6, 3, 5, 7, 1]
    RB = [[188, 200, 216], [16, 28, 40]]
    def rd(e, k):
        s_, j = divmod(k, 3)
        a(f"ds_read_b128 {vr(RB[e][s_]+4*j, 4)}, v{vP} offset:{e*9216 + s_*3072 + j*1024}")
    def echeck(n=2):
        a(f"s_waitcnt lgkmcnt({n})")
        a(f"v_readfirstlane_b32 s{sT0}, v{vT0}")
        a(f"s_cmp_lt_u32 s{sT0}, s{sKOK}")
        a("s_cbranch_scc1 A_EWAIT")
        a.label("A_EOK")
    for n in range(8):
        nxt = (1, seq[n + 1]) if n < 7 else None
        prv = (1, seq[n - 1]) if n > 0 else (0, 7)
        if n == 0: holes = {4: lambda: (a("s_waitcnt vmcnt(2)"), a(f"ds_read_b32 v{vT0}, v{vCNT}"))}
        if n == 1: holes = {4: lambda: (a("s_waitcnt lgkmcnt(0)"), a(f"v_readfirstlane_b32 s{sT0}, v{vT0}"))}
        if n == 2: holes = {4: lambda: (a(f"s_cmp_lt_u32 s{sT0}, 8"), a("s_cbranch_scc1 A_OWAIT"), a.label("A_OFREE"))}
        if n >= 3:
            i = seq[n - 2]
            holes = {2: lambda: wr(i, 0), 3: lambda: wr(i, 1), 4: lambda: wr(i, 2)}
        if n == 4: holes[1] = lambda: (a(f"s_lshl_b32 s{sKOK}, s{sMODE}, 3"), a(f"s_add_u32 s{sKOK}, s{sKOK}, 4"))
        if n == 5: holes[4] = lambda: (wr(i, 2), cnt_arrive(a, vCNT, vT0, off=12))
        if n == (6 if opt("ein") else 7): holes[3] = lambda: (a(f"ds_read_b32 v{vT0}, v{vCNT} offset:12"), wr(i, 1))
        if n == 7 and opt("ein"):
            holes = {0: lambda: (echeck(), rd(0, 0), rd(0, 1)), 1: lambda: (rd(0, 2), rd(0, 3)), 2: lambda: (wr(i, 0), rd(0, 4), rd(0, 5)),
                     3: lambda: (wr(i, 1), rd(0, 6), rd(0, 7)), 4: lambda: (wr(i, 2), rd(0, 8))}
        slot(n & 3, nxt, prv, holes)
    a("s_nop 1")
    pv(0, 3, 1, 1); pv(1, 3, 1, 1)
    a.stamp(11); a.stamp(NSTAMP + 3, True)
    a(f"s_mov_b64 {sr(sBAD, 2)}, 0")
    a(f"s_mov_b32 s{sT1}, {f32bits(2.0**100):#x}")
    for j in range(3): wr(7, j)
    if not opt("ein"):
        a(f"v_mov_b32 v{vT3}, 1")
        a("s_mov_b64 exec, 1")
        a(f"ds_add_u32 v{vCNT}, v{vT3}")
        a("s_mov_b64 exec, -1")
        echeck(6)
        for k in range(9): rd(0, k)
    else: cnt_arrive(a, vCNT, vT0)
    a(f"s_add_u32 s{sTGT}, s{sTGT}, 4")
    a(f"s_max_u32 s{sTGT}, s{sTGT}, 12")
    Z = 52
    for e in range(2):
        A = O(e); P = 128 + 8 * e
        if e == 1:
            cnt_arrive(a, vCNT, vT0, off=12)
            cnt_wait(a, vCNT, vT0, f"s{sTGT}")
            a.stamp(12)
            for k in range(9): rd(1, k)
        for s in range(3):
            if e == 1 or not opt("ein"): a(f"s_waitcnt lgkmcnt({6 - 3*s})")
            elif s == 0: a("s_waitcnt lgkmcnt(4)")
            for j in range(6): a(f"v_pk_add_f32 {vr(A+2*j, 2)}, {vr(A+2*j, 2)}, {vr(RB[e][s]+2*j, 2)}")
        a(f"v_mov_b32 v{vT0}, v{A+8}")
        a(f"v_mov_b32 v{vT2}, v{A+8}")
        a(f"v_pk_mul_f32 {vr(Z, 2)}, {vr(A, 2)}, 0 op_sel_hi:[1,0]")
        a(f"v_pk_fma_f32 {vr(Z, 2)}, {vr(A+2, 2)}, 0, {vr(Z, 2)} op_sel_hi:[1,0,1]")
        a(f"v_permlane32_swap_b32 v{vT0}, v{vT2}")
        a(f"v_rcp_f32 v{vT3}, v{vT2}")
        a(f"v_cmp_nlt_f32 vcc, v{vT2}, s{sT1}")
        for j in range(2, 6): a(f"v_pk_fma_f32 {vr(Z, 2)}, {vr(A+2*j, 2)}, 0, {vr(Z, 2)} op_sel_hi:[1,0,1]")
        a(f"s_or_b64 {sr(sBAD, 2)}, {sr(sBAD, 2)}, vcc")
        a(f"v_cmp_nlt_f32 vcc, {f32bits(2.0**-60):#x}, v{vT2}")
        for j in range(6): a(f"v_pk_mul_f32 {vr(A+2*j, 2)}, {vr(A+2*j, 2)}, {vr(vT2, 2)} op_sel:[0,1] op_sel_hi:[1,1]")
        a(f"s_or_b64 {sr(sBAD, 2)}, {sr(sBAD, 2)}, vcc")
        a(f"v_cmp_u_f32 vcc, v{Z}, v{Z+1}")
        for j in range(6): a(f"v_cvt_pk_bf16_f32 v{P+j}, v{A+2*j}, v{A+2*j+1}")
        a(f"s_or_b64 {sr(sBAD, 2)}, {sr(sBAD, 2)}, vcc")
        a(f"s_cmp_lg_u32 s{sMODE}, 0")
        a(f"s_cselect_b64 {sr(sBAD, 2)}, 0, {sr(sBAD, 2)}")
        for j in range(6): a(f"v_min_u32 v{P+j}, -2, v{P+j}")
        L = a.uid("NOST")
        a(f"s_cmp_lg_u64 {sr(sBAD, 2)}, 0")
        a(f"s_cbranch_scc1 {L}")
        stores(a, [f"buffer_store_dwordx4 {vr(P, 4)}, v{vKM}, {sr(SWS)}, s{sOm} offen offset:{1024*e}",
                   f"buffer_store_dwordx2 {vr(P+4, 2)}, v{vQT}, {sr(SWS)}, s{sOt} offen offset:{512*e}"])
        a.label(L)
    a(f"s_cmp_lg_u64 {sr(sBAD, 2)}, 0")
    a(f"s_cselect_b32 s{sBAD}, 0x10001, 1")
    cnt_arrive(a, vCNT, vT0, f"s{sBAD}")
    a.stamp(13)
    a("s_setprio 0")
    a(f"s_add_u32 s{sTGT}, s{sTGT}, 4")
    srd(a, SX, pX, 2048 * 1280)
    cnt_wait(a, vCNT, vT0, f"s{sTGT}")
    a(f"s_lshr_b32 s{sT0}, s{sT0}, 16")
    a(f"s_cmp_lg_u32 s{sMODE}, 0")
    a(f"s_cselect_b32 s{sT0}, 0, s{sT0}")
    a(f"s_cmp_lg_u32 s{sT0}, 0")
    a("s_cbranch_scc1 A_RESTART")
    a.stamp(14)
    if PROFILE and opt("iter"):
        a.ldump(0)
        a(f"s_lshl_b32 s100, s{sW}, 6")
        a("v_add_u32 v0, s100, v1")
    final_stage(a, -256, 16, 32, 20, 21, True, 0)
    final_stage(a, 256, 24, 80, 22, 23, "addr", 0)
    a(f"s_cmp_ge_u32 s{sW}, 6")
    a("s_cbranch_scc1 A_F1")
    final_stage(a, 256, 24, 80, 22, 23, "load", 0)
    a.label("A_F1")
    a("s_waitcnt vmcnt(0)")
    final_stage(a, -256, 16, 32, 20, 21, False, 2)
    final_stage(a, 256, 24, 80, 22, 23, False, 2)
    a.stamp(15)
    a("s_barrier")
    final_stage(a, -256, 16, 32, 20, 21, False, 1)
    final_stage(a, -256, 16, 32, 20, 21, False, 3)
    a("s_barrier")
    a.stamp(16)
    a(f"s_cmp_ge_u32 s{sW}, 6")
    a("s_cbranch_scc1 A_F2")
    final_stage(a, 256, 24, 80, 22, 23, False, 1)
    final_stage(a, 256, 24, 80, 22, 23, False, 3)
    a.label("A_F2")
    a.end()
    a.label("A_EWAIT")
    cnt_wait(a, vCNT, vT0, f"s{sKOK}", 0, off=12)
    a("s_branch A_EOK")
    a.label("A_OWAIT")
    cnt_wait(a, vCNT, vT0, 8, 1)
    a("s_branch A_OFREE")
    a.label("A_RESTART")
    a(f"s_mov_b32 s{sMODE}, 1")
    a("s_waitcnt vmcnt(0)")
    att_zero(a)
    a("s_branch A_RELOAD")
    a.label("A_TRUEMAX")
    for i in range(2, 8): ldq(i)
    M = S[2]
    for i in range(8): a(f"v_mov_b32 v{M+i}, 0xff800000")
    a(f"s_sub_u32 s{sT1}, s{sKV}, {KV_REC}")
    a(f"s_mov_b32 s{sCNT}, 16")
    TK, TT = S[1], S[1] + 4
    a.label("A_TM_LOOP")
    a(f"buffer_load_dwordx4 {vr(TK, 4)}, v{vKM}, {sr(SWS)}, s{sT1} offen sc1")
    a(f"buffer_load_dwordx2 {vr(TT, 2)}, v{avKT}, {sr(SWS)}, s{sT1} offen sc1")
    a("s_waitcnt vmcnt(0)")
    for i in range(8):
        a(f"v_mfma_f32_32x32x16_bf16 {vr(S[0], 16)}, {vr(TK, 4)}, {vr(QM(i), 4)}, 0")
        a(f"v_mfma_f32_32x32x8_bf16 {vr(S[0], 16)}, {vr(TT, 2)}, {vr(QT(i), 2)}, {vr(S[0], 16)}")
        a("s_nop 11")
        for j in range(0, 16, 2): a(f"v_max3_f32 v{M+i}, v{M+i}, v{S[0]+j}, v{S[0]+j+1}")
    a(f"s_add_u32 s{sT1}, s{sT1}, {KV_REC}")
    a(f"s_sub_u32 s{sCNT}, s{sCNT}, 1")
    a(f"s_cmp_lg_u32 s{sCNT}, 0")
    a("s_cbranch_scc1 A_TM_LOOP")
    for i in range(8):
        halfop(a, "v_max_f32", M + i, vT0)
        a(f"v_add_u32 v{vT1}, {L_OP - L_MREC}, v{vP+i//2}")
        a(f"ds_write_b32 v{vT1}, v{M+i} offset:{(i//2)*2048 + (i&1)*256}")
    cnt_arrive(a, vCNT, vT0)
    a(f"s_add_u32 s{sTGT}, s{sTGT}, 4")
    cnt_wait(a, vCNT, vT0, f"s{sTGT}")
    a(f"v_add_u32 v{vT1}, {L_OP - L_MREC}, v{vP}")
    for e in range(2):
        for s in range(1, 4): a(f"ds_read_b32 v{S[0]+4*e+s}, v{vT1} offset:{s*2048 + e*256}")
    a("s_waitcnt lgkmcnt(0)")
    for e in range(2):
        a(f"v_max3_f32 v{M+e}, v{M+e}, v{S[0]+4*e+1}, v{S[0]+4*e+2}")
        a(f"v_max_f32 v{M+e}, v{M+e}, v{S[0]+4*e+3}")
    a("s_mov_b32 exec_lo, 0")
    for e in range(2):
        a(f"v_sub_f32 v{M+e}, 0, v{M+e}")
        split3(a, M + e, vT0, vT1, QT(e), QT(e) + 1)
    a("s_branch A_HAVEMAX")

def gen_ffn(a):
    vL, vL16, vTR, vZ = 1, 2, 3, 7
    vA, vG, vPW, vPW2, X = 4, 5, 0, 6, 8
    vNV, vCNT, vT0, vT1 = 12, 13, 14, 15
    F = lambda t: 16 + 16 * t
    WO = lambda k: 96 + 20 * k
    HB = lambda u: 216 + 4 * u
    SL = lambda j: j & 3
    SWO = SDBG
    def dma_piece(p, slot, vd=fD):
        dma(a, p, vd, SA, sSO, sM0, L_RING + slot*20480)
    def trr(dst, slot, t, va=vTR):
        a(f"ds_read_b64_tr_b16 {vr(dst+4*t, 2)}, v{va} offset:{slot*20480 + 64*t}")
        a(f"ds_read_b64_tr_b16 {vr(dst+4*t+2, 2)}, v{va} offset:{slot*20480 + 64*t + 2560}")
    def hload(u):
        a(f"buffer_load_dwordx4 {vr(HB(u), 4)}, v{vL16}, {sr(SWS)}, s{sHO} offen sc1")
        a(f"s_add_u32 s{sHO}, s{sHO}, 1024")
    def stage(i, ks):
        row = 16 + 80 * (ks - 8) if ks >= 8 else 20 * ks
        a(f"s_add_u32 s{sT1}, s{sWOB}, {row*1280}")
        for p in range(5):
            dma(a, p, fD2 if ks >= 8 else fD, SWO, sT1, sM0, i*20480)
    def mf(t, w, h): a(f"v_mfma_f32_32x32x16_bf16 {vr(F(t), 16)}, {vr(w+4*t, 4)}, {vr(h, 4)}, {vr(F(t), 16)}")
    sWOB = sWBASE
    if not opt("pre1"): ffn_pre(a, vL, vT0, vT1)
    srd(a, SA, pW2, 1728 * 1280)
    a(f"s_mul_i32 s{sM0}, s{sQ}, 5120")
    a(f"s_mul_i32 s{sCOL}, s{sHG}, 320")
    a(f"s_mul_i32 s{sSO}, s{sQ}, {27*16*1280}")
    a(f"s_add_u32 s{sSO}, s{sSO}, s{sCOL}")
    a(f"s_add_u32 s{sSO}, s{sSO}, {NS*16*1280}")
    a(f"s_mov_b32 s{sSTEP}, {16*1280}")
    if opt("xpar"):
        a(f"s_and_b32 s{sT0}, s{sT}, 1")
        a(f"s_mul_i32 s{sT0}, s{sT0}, {16*1280}")
        a(f"s_add_u32 s{sSO}, s{sSO}, s{sT0}")
    def fill(js):
        for j in js:
            for p in range(5): dma_piece(p, j)
            a(f"s_add_u32 s{sSO}, s{sSO}, s{sSTEP}")
    NE = optv("ne", 1)
    fill(range(NS, min(4, NS + NE)))
    a("v_mov_b64 v[246:247], 0")
    a(f"v_lshlrev_b32 v{vL16}, 4, v{vL}")
    a(f"v_mov_b32 v{vCNT}, {L_CNT}")
    for t in range(5): zero16(a, F(t), 246)
    a(f"v_mov_b32 v{vTR}, v{fTR}")
    a(f"v_mov_b32 v{vA}, v{fA}")
    a(f"v_mov_b32 v{vG}, v{fG}")
    a(f"v_mov_b32 v{vPW}, v{fPW}")
    a(f"v_add_u32 v{vPW2}, 40960, v{fPW}")
    a(f"v_mov_b32 v{vNV}, s{sNON}")
    a(f"v_mov_b32 v245, 1")
    srd(a, SX, pX, 2048 * 1280)
    srd(a, SB, pOUT, 2048 * 1280)
    srd(a, SWO, pWO, 640 * 1280)
    a(f"s_mul_i32 s{sWOB}, s{sQ}, {160*1280}")
    a(f"s_add_u32 s{sWOB}, s{sWOB}, s{sCOL}")
    a(f"s_lshl_b32 s{sFC}, s{sT}, 2")
    a(f"s_add_u32 s{sFC}, s{sFC}, s{sQ}")
    a(f"s_mul_i32 s{sHO}, s{sQ}, {27*1024}")
    a(f"s_add_u32 s{sHO}, s{sHO}, s{sG}")
    a(f"s_add_u32 s{sHO}, s{sHO}, {20*2048}")
    check_fast(a, vT1, vT0)
    a.stamp(6)
    cnt_wait(a, vCNT, vT0, 4, 1, off=(8 if opt("nogatem") else 0))
    fill(range(min(4, NS + NE), 4))
    a.stamp(7)
    poll(a, fH, vT1, "0", 2)
    check_fast(a, vT1, vT0)
    a.stamp(9)
    if opt("th"):
        a(f"s_mul_i32 s{sT0}, s{sHG}, {54*128}")
        a(f"s_add_u32 s{sT0}, s{sT0}, s{sHO}")
        a(f"v_lshlrev_b32 v{vT0}, 7, v{vL}")
    for u in range(4): hload(u)
    if opt("th"):
        a("s_mov_b32 exec_hi, 0x3fffff")
        a(f"buffer_load_dword v{vT1}, v{vT0}, {sr(SWS)}, s{sT0} offen sc1")
        a("s_mov_b32 exec_hi, -1")
    for t in range(5): trr(WO(0), SL(0), t)
    a(f"s_mov_b32 s{sC}, 0")
    a("s_waitcnt vmcnt(0)")
    a.stamp(10); a.stamp(NSTAMP + 2, True)
    B0 = optv("b0", 1)
    a.raw(".p2align 3")
    a.label("F_LOOP")
    for u in range(4):
        if u == 3:
            a(f"s_cmp_eq_u32 s{sC}, 6")
            a("s_cbranch_scc1 F_DONE")
            a(f"s_cmp_lg_u32 s{sC}, 5")
            a("s_cbranch_scc1 F_NS")
            srd(a, SA, pWO, 640 * 1280)
            a(f"s_add_u32 s{sSO}, s{sWOB}, {20*1280}")
            a(f"s_mov_b32 s{sSTEP}, {40*1280}")
            a(f"s_mov_b32 s{sHO}, 0x40000000")
            a(f"buffer_load_dword v{fH}, v{fO}, {sr(SWS)}, 0 offen sc1")
            a.label("F_NS")
        a("s_waitcnt vmcnt(13) lgkmcnt(0)" if not opt("xhalf") else "s_waitcnt vmcnt(8) lgkmcnt(0)")
        for t in range(5):
            if opt("xdirect"):
                mf(t, WO(u), HB(u))
                a(f"buffer_load_dwordx4 {vr(WO(u)+4*t, 4)}, v{fD+t}, {sr(SA)}, s{sSO} offen")
                a("s_nop 7")
                a("s_nop 1")
                continue
            mf(t, WO(0), HB(u))
            if opt("xnotr"):
                dma_piece(t, SL(u))
                a("s_nop 5")
                continue
            if opt("xhalf") and (u & 1):
                a("s_sleep 1")
                continue
            trr(WO(0), SL(u + 1), t)
            dma_piece(t, SL(u))
        a(f"s_add_u32 s{sSO}, s{sSO}, s{sSTEP}")
        hload(u)
    a(f"s_add_u32 s{sC}, s{sC}, 1")
    a(f"s_sub_u32 s{sT0}, s{sC}, {B0 + 1}")
    a(f"s_cmp_ge_u32 s{sT0}, 3")
    a("s_cbranch_scc1 F_LOOP")
    a(f"s_cmp_eq_u32 s{sT0}, 1")
    a("s_cbranch_scc1 F_X1")
    a(f"s_cmp_eq_u32 s{sT0}, 2")
    a("s_cbranch_scc1 F_X2")
    a(f"s_lshl_b32 s{sT1}, s{sT}, 2")
    a(f"s_add_u32 s{sT1}, s{sT1}, s{sHG}")
    a(f"s_mul_i32 s{sT1}, s{sT1}, 10240")
    a(f"s_mul_i32 s{sT0}, s{sQ}, 3072")
    a(f"s_min_u32 s{sT0}, s{sT0}, 7168")
    a(f"s_add_u32 s{sT0}, s{sT0}, s{sT1}")
    a(f"s_add_u32 s{sT0}, s{sT0}, {WS_O}")
    stores(a, [f"buffer_store_dwordx4 {vr(fBL, 4)}, v{vL16}, {sr(SWS)}, s{sT0} offen offset:{1024*e}" for e in range(3)])
    for i in range(3): stage(i, 2 * i)
    a("s_branch F_LOOP")
    a.label("F_X1")
    for i in range(3):
        for t in range(5): trr(WO(1 + i), i, t, fSTG)
    a(f"s_lshl_b32 s{sT0}, s{sQ}, 2")
    a(f"s_add_u32 s{sT0}, s{sT0}, s{sF2}")
    a("s_mov_b64 exec, 1")
    stores(a, [f"buffer_store_dword v{vNV}, v{vZ}, {sr(SWS)}, s{sT0} offen offset:16"])
    a("s_mov_b64 exec, -1")
    a("s_waitcnt lgkmcnt(0)")
    stage(0, 6); stage(1, 9)
    a("s_branch F_LOOP")
    a.label("F_X2")
    for i in range(2):
        for t in range(5): trr(WO(4 + i), i, t, fSTG)
    cnt_wait(a, vCNT, vT0, 4, 1)
    a("s_mov_b64 exec, 1")
    a(f"ds_add_u32 v{vCNT}, v245")
    a("s_mov_b64 exec, -1")
    a("s_branch F_LOOP")
    a.label("F_DONE")
    a.stamp(11); a.stamp(NSTAMP + 3, True)
    a(f"s_add_u32 s{sSO}, s{sWOB}, {16*1280}")
    a("s_waitcnt lgkmcnt(0)")
    for t in range(5): dma_piece(t, SL(27), fD2)
    final_stage(a, 0, X, 0, vA, vG, "load", 0)
    a(f"v_cmp_ne_u32 vcc, s{sNON}, v{fH}")
    a("s_cbranch_vccz F_BOK")
    poll(a, fO, vT1, "0", 4)
    a.label("F_BOK")
    a(f"s_mul_i32 s{sHO}, s{sFC}, 10240")
    a(f"s_add_u32 s{sHO}, s{sHO}, {WS_O}")
    a(f"s_add_u32 s{sSO}, s{sHO}, 4096")
    a(f"s_add_u32 s{sT1}, s{sHO}, 8192")
    a.stamp(12)
    def oloads(ks):
        for k in ks:
            so = (sHO, sSO, sT1)[k // 4]
            a(f"buffer_load_dwordx4 {vr(HB(k), 4)}, v{vL16}, {sr(SWS)}, s{so} offen offset:{(k%4)*1024} sc1")
    def ocheck(ks):
        for n, k in enumerate(ks):
            a(f"s_waitcnt vmcnt({len(ks)-1-n})")
            if n == 0:
                a(f"v_max3_u32 v{vT0}, v{HB(k)}, v{HB(k)+1}, v{HB(k)+2}")
                a(f"v_max_u32 v{vT0}, v{vT0}, v{HB(k)+3}")
            else:
                a(f"v_max3_u32 v{vT0}, v{vT0}, v{HB(k)}, v{HB(k)+1}")
                a(f"v_max3_u32 v{vT0}, v{vT0}, v{HB(k)+2}, v{HB(k)+3}")
        a(f"v_cmp_eq_u32 vcc, -1, v{vT0}")
    even, rest = [0, 2, 4, 6], [1, 9, 3, 5, 7, 8]
    WR = [WO(0), WO(5), WO(1), WO(2), WO(3), WO(4)]
    cnt_wait(a, vCNT, vT0, 8, 1, off=12)
    a.stamp(13)
    a(f"s_mov_b32 s{sSPIN}, {SPIN}")
    a.label("F_O")
    oloads(even); ocheck(even)
    a("s_cbranch_vccz F_OD")
    a("s_sleep 1")
    spin_tail(a, "F_O")
    a.label("F_OD")
    a.stamp(8)
    for n in range(4):
        if n == optv("on", 1): oloads(rest)
        for t in range(5):
            mf(t, WO(1 + n), HB(even[n]))
            trr(WO(1 + n), SL(28 + n), t)
    cnt_wait(a, vCNT, vT0, 16, 1)
    a(f"s_cmp_lt_u32 s{sT0}, 0x10000")
    a("s_cbranch_scc1 F_NORE")
    cnt_wait(a, vCNT, vT0, 32, 8)
    a.label("F_NORE")
    a(f"s_mov_b32 s{sSPIN}, {SPIN}")
    a.label("F_O2")
    ocheck(rest)
    a("s_cbranch_vccz F_OD2")
    oloads(rest)
    spin_tail(a, "F_O2")
    a("s_waitcnt vmcnt(0)")
    a.label("F_OD2")
    a.stamp(14)
    def fwr(t, g):
        va, off = (vPW, t * 20480) if t < 2 else (vPW2, (t - 2) * 20480)
        a(f"ds_write_b128 v{va}, {vr(F(t)+4*g, 4)} offset:{off + 32*g}")
    for t in range(5):
        for m in range(6):
            mf(t, WR[m], HB(rest[m]))
            if t > 0:
                if t == 3 and m == 1:
                    a("s_waitcnt lgkmcnt(0)")
                    a("s_barrier")
                    a("s_nop 2")
                elif m < 2: a("s_nop 4")
                else: fwr(t - 1, m - 2)
    final_stage(a, 0, X, 176, vA, vG, False, 2)
    a("s_nop 3")
    a.stamp(15)
    for g in range(4): fwr(4, g)
    a("s_waitcnt lgkmcnt(0)")
    a("s_barrier")
    a.stamp(16)
    final_stage(a, 0, X, 176, vA, vG, False, 1)
    final_stage(a, 0, X, 176, vA, vG, False, 3)
    a.end()
```

```python
import sys, struct, math

NAME = "parallel_sum__grouped_kv_mqa__dense_activation_relu__prompt"
def opt(name): return ("--" + name) in sys.argv
def optv(name, d): return int(sys.argv[sys.argv.index("--" + name) + 1]) if opt(name) else d
G_TSTRIDE = 75 * 2048
WS_G = 0
WS_KV = 64 * G_TSTRIDE
KV_REC = 3072
WS_O = (WS_KV + 66 * KV_REC + 4095) // 4096 * 4096
WS_RS = WS_O + 64 * 40 * 1024
WS_CP = WS_RS + 2048 * 16
WS_F1 = WS_CP + 64 * 5120
WS_F2 = WS_F1 + 256 * 128
WS_XC = WS_F2 + 256 * 128
WS_PROF = WS_XC + 8 * 128
PROFILE = opt("prof")
NSTAMP = 18
WS_END = WS_PROF + (256 * 8 * 256 if PROFILE else 0)
OOB = 0x80000000
QSCALE = math.log2(math.e) / math.sqrt(20.0)
SPIN = 0x40000
NA = optv("na", 3)
NS = optv("ns", 3)
NFIRST = optv("nfirst", 1)


def f32bits(x): return struct.unpack("<I", struct.pack("<f", x))[0]

class Asm:
    def __init__(self): self.lines = []; self.n = 0; self.tail = []; self.p2 = False; self.ffn = False
    def __call__(self, s): self.lines.append("    " + s)
    def label(self, s): self.lines.append(s + ":")
    def raw(self, s): self.lines.append(s)
    def c(self, s): self.lines.append("    ; " + s)
    def uid(self, p): self.n += 1; return f"{p}_{self.n}"
    def stamp(self, i, cyc=False):
        if opt("spin") and not cyc and i == optv("spin", 0) and (i < 6 or not self.ffn or i == 17):
            L = self.uid("SPIN")
            self.label(L)
            self("s_memrealtime s[100:101]")
            self("s_waitcnt lgkmcnt(0)")
            self("s_sub_u32 s100, s100, s64")
            self(f"s_cmp_lt_u32 s100, 5000")
            self(f"s_cbranch_scc1 {L}")
        if opt("st") and self.p2 and i in (14, 15, 16): return
        if PROFILE:
            self(f"s_memtime s[100:101]" if cyc else "s_memrealtime s[100:101]")
            self("s_waitcnt lgkmcnt(0)")
            self(f"s_mov_b32 s{64+i}, s100")
    def lstamp(self, slane, v=14):
        if PROFILE and opt("iter"):
            self("s_memrealtime s[100:101]")
            self("s_waitcnt lgkmcnt(0)")
            self(f"s_mov_b32 m0, {slane}" if isinstance(slane, str) else f"s_mov_b32 m0, s{slane}")
            self(f"v_writelane_b32 v{v}, s100, m0")
    def ldump(self, v=14):
        if PROFILE and opt("iter"):
            self(f"s_lshl_b32 s100, s2, 3")
            self(f"s_add_u32 s100, s100, s{sW}")
            self(f"s_lshl_b32 s100, s100, 8")
            self(f"s_add_u32 s100, s100, {WS_PROF+128}")
            self("v_lshlrev_b32 v15, 2, v1")
            self("s_mov_b64 exec, 0xffff")
            self(f"buffer_store_dword v{v}, v15, s[{SWS}:{SWS+3}], s100 offen")
            self("s_mov_b64 exec, -1")
            self("s_waitcnt vmcnt(0)")
    def end(self):
        if opt("spin"): self.stamp(17)
        if PROFILE:
            self("s_waitcnt vmcnt(0)")
            self.stamp(NSTAMP - 1)
            self(f"s_lshl_b32 s3, s2, 3")
            self(f"s_add_u32 s3, s3, s{sW}")
            self(f"s_lshl_b32 s3, s3, 8")
            self(f"s_add_u32 s3, s3, {WS_PROF}")
            self("s_mov_b64 exec, 1")
            self("v_mov_b32 v1, 0")
            for i in range(NSTAMP + 4):
                self(f"v_mov_b32 v2, s{64+i}")
                self(f"buffer_store_dword v2, v1, s[{SWS}:{SWS+3}], s3 offen offset:{4*i}")
        self("s_endpgm")
    def text(self): return "\n".join(self.lines) + "\n"

def vr(b, n=1): return f"v{b}" if n == 1 else f"v[{b}:{b+n-1}]"
def sr(b, n=4): return f"s{b}" if n == 1 else f"s[{b}:{b+n-1}]"
def srd(a, d, p, size):
    a(f"s_mov_b32 s{d}, s{p}")
    a(f"s_mov_b32 s{d+1}, s{p+1}")
    a(f"s_mov_b32 s{d+2}, {size}")
    a(f"s_mov_b32 s{d+3}, 0x00020000")
def csel(a, d, t, f):
    a(f"s_mov_b32 s{d}, {f}")
    a(f"s_cmov_b32 s{d}, {t}")
def split3(a, src, t0, t1, d0, d1):
    a(f"v_and_b32 v{t0}, 0xffff0000, v{src}")
    a(f"v_sub_f32 v{t1}, v{src}, v{t0}")
    a(f"v_lshrrev_b32 v{d0}, 16, v{src}")
    a(f"v_and_b32 v{t0}, 0xffff0000, v{t1}")
    a(f"v_or_b32 v{d0}, v{d0}, v{t0}")
    a(f"v_sub_f32 v{t1}, v{t1}, v{t0}")
    a(f"v_lshrrev_b32 v{d1}, 16, v{t1}")
def halfop(a, op, r, t):
    a(f"v_mov_b32 v{t}, v{r}")
    a("s_nop 1")
    a(f"v_permlane32_swap_b32 v{t}, v{r}")
    a(f"{op} v{r}, v{r}, v{t}")
def umax(a, dst, regs):
    regs = list(regs)
    a(f"v_max3_u32 v{dst}, v{regs[0]}, v{regs[1]}, v{regs[2]}")
    r = regs[3:]
    while len(r) >= 2:
        a(f"v_max3_u32 v{dst}, v{dst}, v{r[0]}, v{r[1]}"); r = r[2:]
    if r: a(f"v_max_u32 v{dst}, v{dst}, v{r[0]}")

SWS, SA, SB, SX, SDBG = 4, 8, 12, 16, 20
sSI = 3
sW, sNON = 24, 25
sRB, sCG, sTT = 26, 27, 28
sQ = sTT
sT0, sT1, sT2 = 29, 30, 31
pX, pWQ, pWK, pWV, pWO, pW1, pW2, pOUT, pDBG, pWS = 32, 34, 36, 38, 40, 44, 46, 48, 50, 52
sWSTEP, sSO, sSTEP, sM0, sC, sDEL, sCC, sOUT, sFL, sQS = range(54, 64)
sT, sHG, sG, sOB = 86, 87, 92, 93
sF2, sWBASE, sT3, sFAST, sST, sSPIN = 94, 95, 96, 97, 98, 99
sXW, sLO = 53, 52
sPB = 51
sSOW, sM0W = 90, 91
sPm, sBAD, sPt = 34, 38, 42
sOm, sOt, sKV, sTGT = 48, 49, 0, 1
sMODE, sCNT, sFQ, sKOK = 8, 9, 88, 89
sCOL, sHO, sFC = 54, 59, 60

def spin_tail(a, L):
    a(f"s_sub_u32 s{sSPIN}, s{sSPIN}, 1")
    a(f"s_cbranch_scc0 {L}")

def poll(a, vaddr, vtmp, soff, sleep=1):
    L, D = a.uid("POLL"), a.uid("POLLED")
    a(f"s_mov_b32 s{sSPIN}, {SPIN}")
    a.label(L)
    a(f"buffer_load_dword v{vtmp}, v{vaddr}, {sr(SWS)}, {soff} offen sc1")
    a("s_waitcnt vmcnt(0)")
    a(f"v_cmp_ne_u32 vcc, s{sNON}, v{vtmp}")
    a(f"s_cbranch_vccz {D}")
    if sleep: a(f"s_sleep {sleep}")
    spin_tail(a, L)
    a.label(D)

def stores(a, lines):
    L, D = a.uid("SLOW"), a.uid("STD")
    a(f"s_cmp_eq_u32 s{sFAST}, 0")
    a(f"s_cbranch_scc1 {L}")
    fl = {"nt": " nt", "sc0": " sc0", "sc0nt": " sc0 nt"}.get(sys.argv[sys.argv.index("--sf") + 1] if opt("sf") else "", "")
    for l in lines: a(l + (fl if l.startswith("buffer_store_dwordx4") else ""))
    a.label(D)
    a.tail.append((L, [l + (" sc1" if l.startswith("buffer_store") else "") for l in lines], D))

def xcc_word(a):
    a(f"s_getreg_b32 s{sXW}, hwreg(HW_REG_XCC_ID, 0, 4)")
    a(f"s_lshl_b32 s{sXW}, s{sXW}, 1")
    a(f"s_xor_b32 s{sXW}, s{sXW}, s{sNON}")

def check_fast(a, vaddr, vtmp):
    L = a.uid("CF")
    a(f"s_cmp_lg_u32 s{sFAST}, 0")
    a(f"s_cbranch_scc1 {L}")
    a(f"s_and_b32 s{sT0}, s2, 7")
    a(f"s_lshl_b32 s{sT0}, s{sT0}, 7")
    a(f"s_add_u32 s{sT0}, s{sT0}, {WS_XC}")
    a(f"v_and_b32 v{vaddr}, 31, v1")
    a(f"v_lshlrev_b32 v{vaddr}, 2, v{vaddr}")
    a(f"buffer_load_dword v{vtmp}, v{vaddr}, {sr(SWS)}, s{sT0} offen sc1")
    a("s_waitcnt vmcnt(0)")
    a(f"v_cmp_ne_u32 vcc, s{sXW}, v{vtmp}")
    a("s_cmp_eq_u64 vcc, 0")
    a(f"s_cselect_b32 s{sFAST}, {0 if opt('slow') else 1}, 0")
    a.label(L)

K1_SLOT = 36864
K1_XOFF = 20480
K1_CS = 147456
K1_ST = K1_CS + 2048
L_VT = 147456
L_OP = 0
L_RING = 73728
L_FP = L_RING - 20480
L_MREC = L_RING + 81920
L_CNT = L_MREC + 2048
LDS_BYTES = L_CNT + 64
fD, fD2, fH, fO, fSTG, fBL, fTR, fA, fG, fPW = 232, 237, 242, 243, 244, 248, 252, 253, 254, 255

aS = [16, 32, 48, 64]
aO = lambda i: 80 + 12 * i
aQM = lambda i: 180 + 4 * i
aQT = lambda i: 212 + 2 * i
aKM = [228, 242]; aKT = [232, 246]; aV0 = [234, 248]; aV1 = [238, 252]
avV, avKT = 14, 15

def ldkm(a, b, va): a(f"buffer_load_dwordx4 {vr(aKM[b], 4)}, v{va}, {sr(SWS)}, s{sKV} offen sc1")
def ldkt(a, b): a(f"buffer_load_dwordx2 {vr(aKT[b], 2)}, v{avKT}, {sr(SWS)}, s{sKV} offen sc1")
def ldv(a, u, b): a(f"buffer_load_dwordx4 {vr((aV0, aV1)[u][b], 4)}, v{avV}, {sr(SWS)}, s{sKV} offen" + (" offset:768" if u else "") + " sc1")
def kv_first(a, va):
    a(f"s_mul_i32 s{sKV}, s{sQ}, {16*KV_REC}")
    a(f"s_add_u32 s{sKV}, s{sKV}, {WS_KV}")
    ldkm(a, 0, va); ldkt(a, 0); ldv(a, 0, 0); ldv(a, 1, 0)
    a(f"s_add_u32 s{sKV}, s{sKV}, {KV_REC}")
    ldkm(a, 1, va); ldkt(a, 1)
def zero16(a, r, z):
    a(f"v_mfma_f32_32x32x8_bf16 {vr(r, 16)}, {vr(z, 2)}, {vr(z, 2)}, 0")
def att_zero(a):
    z = aV0[1]
    for r in range(z, z + 8, 2): a(f"v_mov_b64 {vr(r, 2)}, 0")
    for r in range(176, 180, 2): a(f"v_mov_b64 {vr(r, 2)}, 0")
    for r in range(aS[3], 176, 16): zero16(a, r, z)

def dma(a, p, vbase, srd_, soff, sm0, base, force=False):
    if p in (0, 4) or force:
        a(f"s_add_u32 m0, s{sm0}, {base + (4096 if p == 4 else 0)}")
        a("s_nop 0")
    a(f"buffer_load_dwordx4 v{vbase+p}, {sr(srd_)}, s{soff} offen" + (f" offset:{1024*p}" if 0 < p < 4 else "") + " lds")

def row_offsets(a, dst, vL, t0, t1, extra, ps=range(5)):
    for p in ps:
        a(f"v_add_u32 v{t0}, {64*p}, v{vL}")
        a(f"v_mul_u32_u24 v{t1}, 3277, v{t0}")
        a(f"v_lshrrev_b32 v{t1}, 16, v{t1}")
        a(f"v_lshlrev_b32 v{t0}, 4, v{t0 if p == 4 else vL}")
        a(f"v_mad_u32_u24 v{dst+p}, v{t1}, {extra}, v{t0}")

def item_addr(a, base_item, vA, vG, t):
    if base_item: a(f"v_add_u32 v{vA}, {base_item}, v0")
    else: a(f"v_mov_b32 v{vA}, v0")
    a(f"v_lshrrev_b32 v{t}, 7, v{vA}")
    a(f"v_mul_u32_u24 v{t+1}, 20480, v{t}")
    a(f"v_lshlrev_b32 v{vG}, 6, v{t}")
    a(f"v_and_b32 v{t}, 3, v{vA}")
    a(f"v_lshl_add_u32 v{t+1}, v{t}, 5, v{t+1}")
    a(f"v_lshl_add_u32 v{vG}, v{t}, 4, v{vG}")
    a(f"v_bfe_u32 v{t}, v{vA}, 2, 5")
    a(f"v_mul_u32_u24 v{vA}, 144, v{t}")
    a(f"v_mul_u32_u24 v{t}, 1280, v{t}")
    a(f"v_add_u32 v{vG}, v{vG}, v{t}")
    a(f"v_add3_u32 v{vA}, v{vA}, v{t+1}, s100")

def flag_words(a, dst, vL):
    a(f"s_and_b32 s{sT0}, s{sT}, 2")
    a(f"s_and_b32 s{sT1}, s{sT}, 3")
    a(f"s_add_u32 s{sT1}, s{sT1}, 4")
    a(f"v_bfe_u32 v{dst}, v{vL}, 4, 1")
    a(f"v_add_u32 v{dst}, s{sT0}, v{dst}")
    a("s_mov_b32 exec_lo, 0")
    a(f"v_mov_b32 v{dst}, s{sT1}")
    a("s_mov_b32 exec_lo, -1")
    a(f"v_lshlrev_b32 v{dst}, 2, v{dst}")

def ffn_pre(a, vL, t0, t1):
    a("s_movk_i32 s100, 960")
    row_offsets(a, fD, vL, t0, t1, "s100")
    for p in range(5):
        a(f"v_add_u32 v{t0}, {64*p}, v{vL}")
        a(f"v_mul_u32_u24 v{t0}, 3277, v{t0}")
        a(f"v_lshrrev_b32 v{t0}, 18, v{t0}")
        a(f"v_mul_u32_u24 v{t0}, {16*1280}, v{t0}")
        a(f"v_add_u32 v{fD2+p}, v{fD+p}, v{t0}")
    a(f"v_lshrrev_b32 v{t0}, 5, v{vL}")
    a(f"v_bfe_u32 v{t1}, v{vL}, 2, 2")
    a(f"v_lshl_add_u32 v{t0}, v{t0}, 2, v{t1}")
    a(f"v_mul_u32_u24 v{fSTG}, 320, v{t0}")
    a(f"v_bfe_u32 v{t0}, v{vL}, 4, 1")
    a(f"v_lshl_add_u32 v{fSTG}, v{t0}, 5, v{fSTG}")
    a(f"v_and_b32 v{t0}, 3, v{vL}")
    a(f"v_lshl_add_u32 v{fSTG}, v{t0}, 3, v{fSTG}")
    a(f"s_mul_i32 s{sT1}, s{sQ}, 5120")
    a(f"v_add_u32 v{fSTG}, s{sT1}, v{fSTG}")
    a(f"v_add_u32 v{fTR}, {L_RING}, v{fSTG}")
    a(f"v_mov_b64 {vr(fBL, 2)}, -1")
    a(f"v_mov_b64 {vr(fBL+2, 2)}, -1")
    a(f"s_mul_i32 s{sT0}, s{sQ}, {27*26}")
    a(f"s_lshr_b32 s{sT0}, s{sT0}, 8")
    a(f"s_add_u32 s{sT0}, s{sT0}, 4")
    a(f"v_add_u32 v{fH}, s{sT0}, v{t0}")
    a(f"v_min_u32 v{fH}, 14, v{fH}")
    a(f"s_lshr_b32 s{sT2}, s{sT}, 2")
    a(f"s_lshl_b32 s{sT2}, s{sT2}, 11")
    a(f"s_add_u32 s{sT2}, s{sT2}, {WS_F1 + 32}")
    a(f"v_lshl_add_u32 v{fH}, v{fH}, 7, s{sT2}")
    flag_words(a, t1, vL)
    a(f"v_add_u32 v{fH}, v{fH}, v{t1}")
    a(f"s_lshl_b32 s{sT2}, s{sT}, 2")
    a(f"s_add_u32 s{sT2}, s{sT2}, s{sQ}")
    a(f"s_lshl_b32 s{sT2}, s{sT2}, 7")
    a(f"s_add_u32 s{sT2}, s{sT2}, {WS_F2 + 16}")
    a(f"v_lshl_add_u32 v{fO}, v{t0}, 2, s{sT2}")
    a(f"s_mov_b32 s100, {L_FP}")
    item_addr(a, 256, fA, fG, t0)
    a(f"v_and_b32 v{t0}, 31, v{vL}")
    a(f"v_mul_u32_u24 v{t0}, 144, v{t0}")
    a(f"v_lshrrev_b32 v{t1}, 5, v{vL}")
    a(f"v_lshl_add_u32 v{t0}, v{t1}, 4, v{t0}")
    a(f"s_mul_i32 s{sT1}, s{sQ}, 5120")
    a(f"s_add_u32 s{sT1}, s{sT1}, {L_FP}")
    a(f"v_add_u32 v{fPW}, s{sT1}, v{t0}")

def att_scalars(a):
    a(f"s_mul_i32 s{sT2}, s{sHG}, 10240")
    a(f"s_add_u32 s{sT2}, s{sT2}, s{sG}")
    for j in range(4):
        a(f"s_add_u32 s{sT0}, s{sQ}, {j}")
        a(f"s_and_b32 s{sT0}, s{sT0}, 3")
        a(f"s_lshl_b32 s{sPm+j}, s{sT0}, 11")
        a(f"s_add_u32 s{sPm+j}, s{sPm+j}, s{sT2}")
        a(f"s_lshr_b32 s{sT1}, s{sT0}, 1")
        a(f"s_lshl_b32 s{sT1}, s{sT1}, 10")
        a(f"s_and_b32 s{sT0}, s{sT0}, 1")
        a(f"s_lshl_b32 s{sT0}, s{sT0}, 3")
        a(f"s_add_u32 s{sT1}, s{sT1}, s{sT0}")
        a(f"s_add_u32 s{sT1}, s{sT1}, s{sT2}")
        a(f"s_add_u32 s{sPt+j}, s{sT1}, 8192")
    a(f"s_mul_i32 s{sT2}, s{sT}, 40960")
    a(f"s_add_u32 s{sT2}, s{sT2}, {WS_O}")
    a(f"s_sub_u32 s{sT2}, s{sT2}, s{sG}")
    a(f"s_add_u32 s{sOm}, s{sPm}, s{sT2}")
    a(f"s_add_u32 s{sOt}, s{sPt}, s{sT2}")
    a(f"s_mov_b32 s{sTGT}, 0")
    a(f"s_lshr_b32 s{sT0}, s{sT}, 2")
    a(f"s_lshl_b32 s{sT0}, s{sT0}, 4")
    a(f"s_add_u32 s{sT0}, s{sT0}, s{sHG}")
    a(f"s_lshl_b32 s{sT0}, s{sT0}, 7")
    a(f"s_add_u32 s{sFQ}, s{sT0}, {WS_F1 + 32}")

def gen_p1(a):
    vL, vN, vH, vT0, vT1, vT2, vZ = 1, 2, 3, 4, 5, 6, 7
    vX, vD = 8, 16
    vNON, vROW, vFL, vFV = 21, 22, 23, 22
    vG16, vC4 = 26, 27
    vDW = 56
    FB = [28, 32]
    a(f"s_cmp_ge_u32 s2, 256")
    a("s_cbranch_scc1 L_END")
    a("s_load_dwordx16 s[32:47], s[0:1], 0")
    a("s_load_dwordx4 s[48:51], s[0:1], 64")
    a("s_load_dwordx2 s[52:53], s[0:1], 80")
    a("s_memrealtime s[100:101]")
    if not opt("nocp"):
        NL = optv("cp", 2)
        a("s_getpc_b64 s[4:5]")
        a("s_lshr_b32 s6, s2, 3")
        a(f"s_and_b32 s6, s6, {32 // NL - 1}")
        a(f"s_lshl_b32 s6, s6, {10 + NL.bit_length() - 1}")
        a("s_add_u32 s4, s4, s6")
        a("s_addc_u32 s5, s5, 0")
        a(f"v_lshlrev_b32 v60, {NL.bit_length()}, v0")
        a(f"v_and_b32 v60, {(1024 * NL - 128):#x}, v60")
        a("v_mov_b32 v63, s5")
        a("v_add_co_u32 v62, vcc, s4, v60")
        a("s_nop 1")
        a("v_addc_co_u32 v63, vcc, 0, v63, vcc")
        a("global_load_dword v61, v[62:63], off")
    a(f"v_lshrrev_b32 v{vT0}, 6, v0")
    a(f"v_and_b32 v{vL}, 63, v0")
    a(f"v_readfirstlane_b32 s{sW}, v{vT0}")
    a(f"s_and_b32 s{sT1}, s2, 7")
    a(f"s_bfe_u32 s{sSI}, s2, 0x10003")
    a(f"s_lshl_b32 s{sCC}, s{sT1}, 1")
    a(f"s_add_u32 s{sRB}, s{sCC}, s{sSI}")
    a(f"s_lshr_b32 s{sCG}, s2, 4")
    a(f"s_sub_u32 s{sT0}, s{sRB}, 9")
    a(f"s_cmp_ge_u32 s{sRB}, 10")
    a(f"s_cselect_b32 s{sCC}, s{sT0}, s{sRB}")
    a(f"s_mov_b32 s{sST}, s{sCC}")
    a(f"s_and_b32 s{sTT}, s{sW}, 3")
    a(f"s_lshl_b32 s{sT0}, s{sRB}, 2")
    a(f"s_add_u32 s{sT3}, s{sT0}, s{sTT}")
    a(f"s_cmp_lt_u32 s{sW}, 4")
    a("s_cbranch_scc1 P1_A")

    def xpiece(p):
        dma(a, p, vD, SX, sSO, sM0, 0)
    def wpiece(p, kv=False):
        if kv:
            a(f"s_add_u32 m0, s{sM0W}, {4096*p}")
            a("s_nop 0")
            a(f"buffer_load_dwordx4 v{vDW}, {sr(SA if p == 0 else SB)}, s{sSOW} offen lds")
        else: dma(a, p, vDW, SA, sSOW, sM0W, 0)
    def next_chunk(x, w, dm0):
        a(f"s_add_u32 s{sCC}, s{sCC}, 1")
        a(f"s_cmp_eq_u32 s{sCC}, 10")
        a(f"s_cselect_b32 s{sCC}, 0, s{sCC}")
        if x:
            a(f"s_lshl_b32 s{sSO}, s{sCC}, 7")
            a(f"s_add_u32 s{sM0}, s{sM0}, {dm0}")
        if w:
            a(f"s_mul_i32 s{sSOW}, s{sCC}, s{sWSTEP}")
            a(f"s_add_u32 s{sSOW}, s{sSOW}, s{sWBASE}")
            a(f"s_add_u32 s{sM0W}, s{sM0W}, {dm0}")
    def w_setup(wait):
        a(f"s_sub_u32 s{sT0}, s{sCG}, 4")
        a(f"s_cmp_lt_u32 s{sCG}, 4")
        csel(a, sT2, 1280, 3456)
        a(f"s_cselect_b32 s{sT0}, s{sCG}, s{sT0}")
        if opt("xw"): a(f"s_and_b32 s{sT0}, s{sT0}, {optv('xw', 14)}")
        a(f"s_mul_i32 s{sT0}, s{sT0}, 320")
        a(f"s_lshl_b32 s{sWBASE}, s{sTT}, 4")
        a(f"s_mul_i32 s{sWBASE}, s{sWBASE}, s{sT2}")
        a(f"s_add_u32 s{sWBASE}, s{sWBASE}, s{sT0}")
        a(f"s_lshl_b32 s{sWSTEP}, s{sT2}, 6")
        a(f"s_sub_u32 s{sT2}, s{sT2}, 320")
        row_offsets(a, vDW, vL, vT0, vT1, f"s{sT2}")
        a(f"s_mul_i32 s{sSOW}, s{sCC}, s{sWSTEP}")
        a(f"s_add_u32 s{sSOW}, s{sSOW}, s{sWBASE}")
        a(f"s_mul_i32 s{sM0W}, s{sTT}, 5120")
        a(f"s_cmp_lt_u32 s{sCG}, 4")
        if wait: a("s_waitcnt lgkmcnt(0)")
        a(f"s_cselect_b32 s{SA}, s{pWQ}, s{pW1}")
        a(f"s_cselect_b32 s{SA+1}, s{pWQ+1}, s{pW1+1}")
        csel(a, SA + 2, 640 * 640 * 2, 640 * 1728 * 2)
        a(f"s_mov_b32 s{SA+3}, 0x00020000")
    def st01():
        if PROFILE or opt("spin"): a("s_mov_b32 s64, s100")
        a.stamp(1)

    RW = 192
    a(f"s_lshl_b32 s{sT0}, s{sT3}, 5")
    a(f"v_lshrrev_b32 v{vT0}, 3, v{vL}")
    a(f"v_add_u32 v{vT0}, s{sT0}, v{vT0}")
    a(f"v_mul_u32_u24 v{vT0}, 1280, v{vT0}")
    a(f"v_lshrrev_b32 v{vT1}, 4, v{vL}")
    a(f"v_and_b32 v{vT2}, 7, v{vL}")
    a(f"v_xor_b32 v{vT1}, v{vT1}, v{vT2}")
    a(f"v_lshl_add_u32 v{vD}, v{vT1}, 4, v{vT0}")
    a(f"v_xor_b32 v{vT1}, 4, v{vT1}")
    a(f"v_lshl_add_u32 v{vD+1}, v{vT1}, 4, v{vT0}")
    a(f"v_add_u32 v{vD+1}, {8*1280 - 1024}, v{vD+1}")
    a(f"v_add_u32 v{vD+2}, {16*1280 - 2048}, v{vD}")
    a(f"v_add_u32 v{vD+3}, {16*1280 - 2048}, v{vD+1}")
    a(f"s_lshl_b32 s{sSO}, s{sCC}, 7")
    a(f"s_lshl_b32 s{sM0}, s{sTT}, 12")
    a(f"s_add_u32 s{sM0}, s{sM0}, {K1_XOFF}")
    a("s_waitcnt lgkmcnt(0)")
    srd(a, SX, pX, 2048 * 1280)
    st01()
    for p in range(4): xpiece(p)
    a("s_barrier")
    a(f"s_cmp_eq_u32 s{sCG}, 15")
    a("s_cbranch_scc1 P1_KB")
    a("s_branch P1_GB")
    a.label("P1_A")
    a(f"s_cmp_eq_u32 s{sCG}, 15")
    a("s_cbranch_scc1 P1_KA0")
    w_setup(True)
    st01()
    for p in range(5): wpiece(p)
    a("s_barrier")

    def tr_addr(dst, tile):
        a(f"s_cmp_lt_u32 s{sCG}, 4")
        if tile == 4:
            a(f"s_cselect_b32 s{sT0}, 32, 0x100")
            a(f"s_cselect_b32 s{sT1}, 160, 32")
            a(f"s_cselect_b32 s{sT2}, 40, 8")
            a(f"v_mad_u32_u24 v{dst}, v{vC4}, s{sT2}, v{vROW}")
        else:
            a(f"s_cselect_b32 s{sT1}, 40, 32")
            if isinstance(tile, tuple):
                a(f"s_lshl_b32 s{sT0}, s{sT1}, 1")
                a(f"s_mul_i32 s{sT0}, s{sT0}, s{tile[1]}")
            else:
                a(f"s_mul_i32 s{sT0}, s{sT1}, {2*tile}")
            a(f"v_lshl_add_u32 v{dst}, v{vC4}, 3, v{vROW}")
        a(f"v_mad_u32_u24 v{dst}, v{vG16}, s{sT1}, v{dst}")
        a(f"v_add_u32 v{dst}, s{sT0}, v{dst}")

    def body(tag, role, kv):
        A_, B_ = role == "A", role == "B"
        nt = 1 if (kv or B_) else 4
        tiles = [0] if kv else ([0, 1, 2, 3] if A_ else [4])
        sstr, rstr = (1024, 40) if kv else (5120, 320)
        vTR = 16 if A_ else 12
        vSA = 13
        FA = [128, 144] if A_ else [36, 40]
        ACC, P = (64, 160) if A_ else (180, 212)
        GAT = 228
        ST, NM, CSR = (36, 40, 44) if A_ else (44, 48, 50)
        ONE, PUB = 24, 52
        nxt = "P2_FFN" if A_ else "P2_ATT"
        def m4(d, x, y):
            a(f"v_mfma_f32_4x4x4_16b_bf16 {vr(d, 4)}, {vr(x, 2)}, {vr(y, 2)}, {vr(d, 4)}")
        def get_nonce(publish):
            L, D = a.uid("NON"), a.uid("NOND")
            a(f"s_mov_b32 s{sSPIN}, {SPIN}")
            a.label(L)
            a(f"v_readfirstlane_b32 s{sNON}, v{vNON}")
            a(f"s_cmp_lg_u32 s{sNON}, 0")
            a(f"s_cbranch_scc1 {D}")
            a(f"buffer_load_dword v{vNON}, v{vZ}, {sr(SDBG)}, 0 offen sc1")
            a("s_waitcnt vmcnt(0)")
            spin_tail(a, L)
            a.label(D)
            xcc_word(a)
            if publish:
                L = a.uid("XW")
                a(f"s_cmp_lg_u32 s{sW}, 0")
                a(f"s_cbranch_scc1 {L}")
                a(f"s_and_b32 s{sT0}, s2, 7")
                a(f"s_lshl_b32 s{sT0}, s{sT0}, 5")
                a(f"s_lshr_b32 s{sT1}, s2, 3")
                a(f"s_add_u32 s{sT0}, s{sT0}, s{sT1}")
                a(f"s_lshl_b32 s{sT0}, s{sT0}, 2")
                a(f"s_add_u32 s{sT0}, s{sT0}, {WS_XC}")
                a(f"v_mov_b32 v{vT1}, s{sXW}")
                a("s_mov_b64 exec, 1")
                a(f"buffer_store_dword v{vT1}, v{vZ}, {sr(SWS)}, s{sT0} offen sc1")
                a("s_mov_b64 exec, -1")
                a.label(L)
        def row_stats(part=None):
            for p, f in enumerate((rs0, rs1, rs2, rs3)):
                if part is None or part == p: f()
        SU, SQ, R = RW + 10, RW + 11, RW + 12
        def rs0():
            a(f"v_mov_b64 {vr(SU, 2)}, 0")
            for j in range(10):
                a(f"v_dot2c_f32_bf16 v{SU}, v{ONE}, v{RW+j}")
                a(f"v_dot2c_f32_bf16 v{SQ}, v{RW+j}, v{RW+j}")
            a("s_nop 2")
        def rs1():
            for m in ("row_shr:1", "row_shr:2", "row_shr:4", "row_shr:8"):
                a(f"v_add_f32_dpp v{SU}, v{SU}, v{SU} {m} row_mask:0xf bank_mask:0xf bound_ctrl:0")
                a(f"v_add_f32_dpp v{SQ}, v{SQ}, v{SQ} {m} row_mask:0xf bank_mask:0xf bound_ctrl:0")
                a("s_nop 0")
            a(f"v_add_f32_dpp v{SU}, v{SU}, v{SU} row_bcast:15 row_mask:0xa bank_mask:0xf")
            a(f"v_add_f32_dpp v{SQ}, v{SQ}, v{SQ} row_bcast:15 row_mask:0xa bank_mask:0xf")
        def rs2():
            a(f"v_mul_f32 v{SU}, {f32bits(1.0/640):#x}, v{SU}")
            a(f"v_mul_f32 v{SQ}, {f32bits(1.0/640):#x}, v{SQ}")
            a(f"v_fma_f32 v{SQ}, -v{SU}, v{SU}, v{SQ}")
            a(f"v_max_f32 v{SQ}, 0, v{SQ}")
            a(f"v_cvt_pk_bf16_f32 v{R}, -v{SU}, -v{SU}")
            a(f"v_cvt_pk_bf16_f32 v{SQ}, v{SQ}, v{SQ}")
            a(f"v_and_b32 v{SQ}, 0xffff0000, v{SQ}")
            a(f"v_add_f32 v{SQ}, {f32bits(1e-5):#x}, v{SQ}")
            a(f"v_cvt_pk_bf16_f32 v{SQ}, v{SQ}, v{SQ}")
            a(f"v_and_b32 v{SQ}, 0xffff0000, v{SQ}")
            a(f"v_sqrt_f32 v{SQ}, v{SQ}")
            a("s_nop 0")
            a(f"v_cvt_pk_bf16_f32 v{SQ}, v{SQ}, v{SQ}")
            a(f"v_and_b32 v{SQ}, 0xffff0000, v{SQ}")
            a(f"v_rcp_f32 v{R+2}, v{SQ}")
        def rs3():
            a(f"v_mov_b32 v{R+1}, v{vNON}")
            a(f"v_mov_b32 v{R+3}, v{vNON}")
            a(f"v_lshlrev_b32 v{vT1}, 4, v{vH}")
            a(f"s_lshl_b32 s{sT0}, s{sSTEP}, 5")
            a(f"s_add_u32 s{sT0}, s{sT0}, {WS_RS}")
            a("s_mov_b32 exec_lo, 0x80000000")
            a("s_mov_b32 exec_hi, 0x80000000")
            a(f"buffer_store_dwordx4 {vr(R, 4)}, v{vT1}, {sr(SWS)}, s{sT0} offen sc1")
            a("s_mov_b64 exec, -1")
        def row_load(dst):
            a(f"s_lshl_b32 s{sT0}, s{sT3}, 9")
            a(f"s_add_u32 s{sT0}, s{sT0}, {WS_RS}")
            a(f"v_lshlrev_b32 v{vT0}, 4, v{vN}")
            a(f"buffer_load_dwordx4 {vr(dst, 4)}, v{vT0}, {sr(SWS)}, s{sT0} offen sc1")
        def tag_check(regs, again, ok):
            a(f"v_xor_b32 v{vT1}, s{sNON}, v{regs[0]}")
            for r in regs[1:]: a(f"v_bitop3_b32 v{vT1}, v{r}, s{sNON}, v{vT1} bitop3:0xbe")
            a(f"v_cmp_ne_u32 vcc, 0, v{vT1}")
            a(f"s_cbranch_vccz {ok}")
            a("s_sleep 2")
            spin_tail(a, again)
            a.label(ok)
        def next_slot():
            a(f"s_and_b32 s{sT0}, s{sC}, 3")
            csel(a, sT1, K1_SLOT, -3*K1_SLOT)
            a(f"s_cmp_eq_u32 s{sT0}, 3")
            csel(a, sDEL, -3*K1_SLOT, K1_SLOT)
            for s in range(4): a(f"v_add_u32 v{vX+s}, s{sDEL}, v{vX+s}")
            for i in range(nt): a(f"v_add_u32 v{vTR+i}, s{sDEL}, v{vTR+i}")
        if A_:
            srd(a, SX, pX, 2048 * 1280)
            a(f"s_lshl_b32 s{sT0}, s{sRB}, 4")
            a(f"s_add_u32 s{sT0}, s{sT0}, s{sCG}")
            a(f"s_lshl_b32 s{sT0}, s{sT0}, 2")
            a(f"s_add_u32 s{sSTEP}, s{sT0}, s{sTT}")
            a(f"s_mul_i32 s{sT0}, s{sSTEP}, 2560")
            a(f"v_mul_u32_u24 v{vT0}, 40, v{vL}")
            a(f"buffer_load_dwordx4 {vr(RW, 4)}, v{vT0}, {sr(SX)}, s{sT0} offen")
            a(f"buffer_load_dwordx4 {vr(RW+4, 4)}, v{vT0}, {sr(SX)}, s{sT0} offen offset:16")
            a(f"buffer_load_dwordx2 {vr(RW+8, 2)}, v{vT0}, {sr(SX)}, s{sT0} offen offset:32")
        if opt("wsoff"):
            a(f"s_add_u32 s{pWS}, s{pWS}, {optv('wsoff', 0) << 20}")
            a(f"s_addc_u32 s{pWS+1}, s{pWS+1}, 0")
        srd(a, SWS, pWS, WS_END)
        srd(a, SDBG, pDBG, 256)
        a(f"v_mov_b32 v{vZ}, 0")
        if A_ and not kv:
            L = a.uid("NONCE")
            a(f"s_or_b32 s{sT0}, s2, s{sW}")
            a(f"s_cbranch_scc1 {L}")
            if PROFILE: a("s_or_b32 s100, s65, 1")
            else: a("s_or_b32 s100, s100, 1")
            a(f"v_mov_b32 v{vT0}, s100")
            a(f"buffer_store_dword v{vT0}, v{vZ}, {sr(SDBG)}, 0 offen sc1")
            a.label(L)
        a(f"v_mov_b64 {vr(PUB, 2)}, 0")
        a(f"v_mov_b64 {vr(PUB+2, 2)}, 0")
        a(f"v_and_b32 v{vN}, 31, v{vL}")
        a(f"v_lshrrev_b32 v{vH}, 5, v{vL}")
        for i in range(nt): zero16(a, ACC + 16 * i, PUB)
        if B_ or kv: zero16(a, P, PUB)
        a(f"v_mov_b32 v{ONE}, 0x3f803f80")
        a(f"v_mov_b32 v{ONE+1}, 0x3f803f80")
        a(f"v_bfe_u32 v{vT0}, v{vL}, 1, 3")
        a(f"v_xor_b32 v{vT0}, v{vT0}, v{vH}")
        if A_ and not kv:
            a(f"s_and_b32 s{sT0}, s{sTT}, 2")
            a(f"s_lshl_b32 s{sT0}, s{sT0}, 12")
        else:
            a(f"s_lshl_b32 s{sT0}, s{sTT}, 12")
        a(f"s_add_u32 s{sT0}, s{sT0}, {K1_XOFF}")
        a(f"v_lshl_add_u32 v{vT1}, v{vN}, 7, s{sT0}")
        for s in range(4):
            a(f"v_xor_b32 v{vT2}, {2*s}, v{vT0}")
            a(f"v_lshl_add_u32 v{vX+s}, v{vT2}, 4, v{vT1}")
        a(f"v_bfe_u32 v{vT0}, v{vL}, 2, 2")
        a(f"v_lshl_add_u32 v{vROW}, v{vH}, 3, v{vT0}")
        a(f"v_bfe_u32 v{vG16}, v{vL}, 4, 1")
        a(f"v_and_b32 v{vC4}, 3, v{vL}")
        if kv:
            a(f"v_lshl_add_u32 v{vT0}, v{vG16}, 2, v{vC4}")
            a(f"v_min_u32 v{vT0}, 4, v{vT0}")
            a(f"v_mul_u32_u24 v{vROW}, 40, v{vROW}")
            a(f"v_lshl_add_u32 v{vTR}, v{vT0}, 3, v{vROW}")
            if B_: a(f"v_add_u32 v{vTR}, 4096, v{vTR}")
        else:
            a(f"v_mul_u32_u24 v{vROW}, 320, v{vROW}")
            if A_:
                a(f"s_and_b32 s{sDEL}, s{sTT}, 1")
                a(f"s_lshl_b32 s{sDEL}, s{sDEL}, 1")
                tr_addr(vTR, ("s", sDEL))
                a(f"s_lshl_b32 s{sT1}, s{sT1}, 1")
                a(f"v_add_u32 v{vTR+1}, s{sT1}, v{vTR}")
            else:
                tr_addr(vTR, 4)
            if B_:
                tr_addr(vSA, ("s", sTT))
                w_setup(False)
        next_chunk(B_, A_ or not kv, K1_SLOT)
        if B_:
            for p in range(4): xpiece(p)
        else:
            for p in range(2 if kv else 5): wpiece(p, kv)
        next_chunk(B_, A_ or not kv, K1_SLOT)
        AW2 = opt("aw2")
        if opt("x2") and B_ and not kv:
            for p in range(4): xpiece(p)
        a(f"s_and_b32 s{sT}, s2, 7")
        a(f"s_lshl_b32 s{sT}, s{sT}, 3")
        a(f"s_lshr_b32 s{sT0}, s2, 5")
        a(f"s_add_u32 s{sT}, s{sT}, s{sT0}")
        a(f"s_bfe_u32 s{sHG}, s2, 0x20003")
        a(f"s_mul_i32 s{sG}, s{sT}, {G_TSTRIDE}")
        a(f"s_mul_i32 s{sOB}, s{sT}, {32*1280}")
        a(f"s_mul_i32 s{sT0}, s{sHG}, 320")
        a(f"s_add_u32 s{sOB}, s{sOB}, s{sT0}")
        a(f"s_lshl_b32 s{sF2}, s{sT}, 2")
        a(f"s_add_u32 s{sF2}, s{sF2}, s{sHG}")
        a(f"s_lshl_b32 s{sF2}, s{sF2}, 7")
        a(f"s_add_u32 s{sF2}, s{sF2}, {WS_F2}")
        a(f"s_mul_i32 s{sOUT}, s{sT3}, {G_TSTRIDE}")
        a(f"s_mul_i32 s{sT0}, s{sCG}, 10240")
        a(f"s_add_u32 s{sOUT}, s{sOUT}, s{sT0}")
        a(f"s_cmp_lt_u32 s{sCG}, 4")
        a(f"s_cselect_b32 s{sQS}, {f32bits(QSCALE):#x}, 1.0")
        a(f"s_lshl_b32 s{sFL}, s{sRB}, 4")
        a(f"s_add_u32 s{sFL}, s{sFL}, s{sCG}")
        a(f"s_lshl_b32 s{sFL}, s{sFL}, 7")
        a(f"s_add_u32 s{sFL}, s{sFL}, {WS_F1}")
        a(f"s_mov_b32 s{sFAST}, 0")
        a(f"s_mov_b32 s{sC}, 0")
        if B_:
            srd(a, SB, pOUT, 2048 * 1280)
        elif not kv and opt("pre1"):
            ffn_pre(a, vL, vT0, vT1)
        if B_:
            a(f"v_mov_b32 v{vT0}, {L_CNT}")
            a(f"ds_write_b128 v{vT0}, {vr(PUB, 4)}")
        def att_setup(part=None):
            for p, f in ((0, as0), (4, as4)):
                if part is None or part == p: f()
        def as0():
            a(f"v_mul_u32_u24 v{avV}, 384, v{vH}")
            a(f"v_lshl_add_u32 v{avV}, v{vN}, 4, v{avV}")
            a(f"v_add_u32 v{avV}, 1024, v{avV}")
            a(f"v_mov_b32 v{vT0}, {OOB:#x}")
            a(f"v_cmp_gt_u32 vcc, 21, v{vN}")
            a(f"v_min_u32 v{avKT}, 32, v{vL}")
            a(f"v_lshlrev_b32 v{avKT}, 3, v{avKT}")
            a(f"v_cndmask_b32 v{avV}, v{vT0}, v{avV}, vcc")
            a(f"v_add_u32 v{avKT}, 2560, v{avKT}")
        def as4():
            a(f"v_and_b32 v{vT0}, 15, v{vL}")
            a(f"v_lshlrev_b32 v{vT0}, 11, v{vT0}")
            a(f"v_add_u32 v{vT0}, {WS_F1 + 15*128}, v{vT0}")
            a(f"s_and_b32 s{sT0}, s2, 7")
            a(f"s_lshl_b32 s{sT0}, s{sT0}, 7")
            a(f"s_add_u32 s{sT0}, s{sT0}, {WS_XC}")
            a(f"v_cmp_gt_u32 vcc, 32, v{vL}")
            a(f"v_lshl_add_u32 v{vT1}, v{vN}, 2, s{sT0}")
            a("s_nop 0")
            a(f"v_cndmask_b32 v{vFL}, v{vT1}, v{vT0}, vcc")

        if kv:
            nd = 4 if B_ else 2
            XB, WA = [28, ACC + 16], [128, 144] if A_ else [96, 112]
            def pieces(rng):
                for p in rng:
                    if p < nd: xpiece(p) if B_ else wpiece(p, True)
            pieces(range(4))
            next_chunk(B_, A_, K1_SLOT)
            a(f"s_waitcnt vmcnt({2*nd + (3 if A_ else 0)})")
            a.stamp(2)
            a("s_barrier")
            a.stamp(3); a.stamp(NSTAMP, True)
            for s in range(4):
                a(f"ds_read_b128 {vr(XB[0]+4*s, 4)}, v{vX+s}")
                a(f"ds_read_b64_tr_b16 {vr(WA[0]+4*s, 2)}, v{vTR} offset:{s*sstr}")
                a(f"ds_read_b64_tr_b16 {vr(WA[0]+4*s+2, 2)}, v{vTR} offset:{s*sstr+4*rstr}")
            a(f"buffer_load_dword v{vNON}, v{vZ}, {sr(SDBG)}, 0 offen sc1")
            pieces(range(4))
            a.label(f"P1_L{tag}")
            for b in range(2):
                next_slot()
                next_chunk(B_, A_, f"s{sT1}")
                if b == 0:
                    L = a.uid("KS")
                    a(f"s_cmp_lg_u32 s{sC}, 6")
                    a(f"s_cbranch_scc1 {L}")
                    if B_: a(f"s_mov_b32 s{SX+2}, 0")
                    else:
                        a(f"s_mov_b32 s{SA+2}, 0")
                        a(f"s_mov_b32 s{SB+2}, 0")
                    a.label(L)
                a(f"s_waitcnt vmcnt({2*nd}) lgkmcnt(0)")
                a("s_barrier")
                for s in range(4):
                    a(f"v_mfma_f32_32x32x16_bf16 {vr(ACC, 16)}, {vr(WA[b]+4*s, 4)}, {vr(XB[b]+4*s, 4)}, {vr(ACC, 16)}")
                    a(f"ds_read_b128 {vr(XB[b^1]+4*s, 4)}, v{vX+s}")
                    a(f"ds_read_b64_tr_b16 {vr(WA[b^1]+4*s, 2)}, v{vTR} offset:{s*sstr}")
                    a(f"ds_read_b64_tr_b16 {vr(WA[b^1]+4*s+2, 2)}, v{vTR} offset:{s*sstr+4*rstr}")
                    for j in range(2): m4(P + 4*j, ONE, WA[b]+4*s+2*j)
                    pieces([s])
                if b == 1:
                    L, L2 = a.uid("KN"), a.uid("KR")
                    a(f"s_cmp_lg_u32 s{sC}, 1")
                    a(f"s_cbranch_scc1 {L}")
                    get_nonce(A_)
                    if A_: row_stats()
                    a.label(L)
                    a(f"s_cmp_lg_u32 s{sC}, 7")
                    a(f"s_cbranch_scc1 {L2}")
                    row_load(ST + 16)
                    a.label(L2)
                if A_: a.lstamp(sC)
                a(f"s_add_u32 s{sC}, s{sC}, 1")
            a(f"s_cmp_lt_u32 s{sC}, 10")
            a(f"s_cbranch_scc1 P1_L{tag}")
            a.stamp(4); a.stamp(NSTAMP + 1, True)
            if A_: a.ldump()
            R = ST + 16
            a(f"s_mov_b32 s{sSPIN}, {SPIN}")
            a(f"s_branch P1_GW{tag}")
            a.label(f"P1_GA{tag}")
            row_load(R)
            a.label(f"P1_GW{tag}")
            a("s_waitcnt vmcnt(0) lgkmcnt(0)")
            tag_check([R + 1, R + 3], f"P1_GA{tag}", f"P1_FOK{tag}")
            a(f"v_add_f32 v{P}, v{P}, v{P+4}")
            split3(a, P, vT0, vT1, CSR, CSR + 1)
            a(f"v_mov_b32 v{R+1}, v{R}")
            a(f"v_mov_b32 v{R+3}, v{R+2}")
            a(f"v_lshlrev_b32 v{vT2}, 4, v{vL}")
            a(f"v_mfma_f32_32x32x8_bf16 {vr(ACC, 16)}, {vr(CSR, 2)}, {vr(R, 2)}, {vr(ACC, 16)}")
            a("s_nop 9")
            a(f"s_mul_i32 s{sT0}, s{sT3}, {KV_REC}")
            a(f"s_add_u32 s{sT0}, s{sT0}, {WS_KV}")
            for j in range(6): a(f"v_pk_mul_f32 {vr(ACC+2*j, 2)}, {vr(ACC+2*j, 2)}, {vr(R+2, 2)}")
            if A_:
                for j in range(6): a(f"v_cvt_pk_bf16_f32 v{P+j}, v{ACC+2*j}, v{ACC+2*j+1}")
                a(f"v_min_u32 v{vT0}, 32, v{vL}")
                a(f"v_lshlrev_b32 v{vT0}, 3, v{vT0}")
                a("s_mov_b32 exec_lo, 0")
                a(f"v_mov_b32 v{P+4}, 0x3f803f80")
                a(f"v_mov_b32 v{P+5}, 0x3f80")
                a("s_mov_b32 exec_lo, -1")
                a(f"buffer_store_dwordx4 {vr(P, 4)}, v{vT2}, {sr(SWS)}, s{sT0} offen sc1")
                a(f"buffer_store_dwordx2 {vr(P+4, 2)}, v{vT0}, {sr(SWS)}, s{sT0} offen offset:2560 sc1")
            else:
                a("s_mov_b32 exec_lo, 0")
                a(f"v_mov_b32 v{ACC+8}, 1.0")
                a("s_mov_b32 exec_lo, -1")
                for j in range(6): a(f"v_cvt_pk_bf16_f32 v{P+j}, v{ACC+2*j}, v{ACC+2*j+1}")
                a(f"s_mul_i32 s{sT1}, s{sTT}, 1536")
                a(f"s_add_u32 s{sT1}, s{sT1}, {L_VT}")
                a(f"v_lshrrev_b32 v{vT0}, 3, v{vN}")
                a(f"v_mul_u32_u24 v{vT0}, 384, v{vT0}")
                a(f"v_and_b32 v{vT1}, 7, v{vN}")
                a(f"v_lshl_add_u32 v{vT0}, v{vT1}, 1, v{vT0}")
                a(f"v_lshl_add_u32 v{vT0}, v{vH}, 6, v{vT0}")
                a(f"v_add_u32 v{vT0}, s{sT1}, v{vT0}")
                for r in range(12):
                    op = "ds_write_b16" if r % 2 == 0 else "ds_write_b16_d16_hi"
                    a(f"{op} v{vT0}, v{P+r//2} offset:{(r//4)*128 + (r%4)*16}")
                a(f"v_add_u32 v{vT0}, s{sT1}, v{vT2}")
                a("s_waitcnt lgkmcnt(0)")
                a(f"ds_read_b128 {vr(P+8, 4)}, v{vT0}")
                a(f"ds_read_b128 {vr(P+12, 4)}, v{vT0} offset:1024")
                a("s_waitcnt lgkmcnt(0)")
                a(f"buffer_store_dwordx4 {vr(P+8, 4)}, v{vT2}, {sr(SWS)}, s{sT0} offen offset:1024 sc1")
                a("s_mov_b32 exec_hi, 0")
                a(f"buffer_store_dwordx4 {vr(P+12, 4)}, v{vT2}, {sr(SWS)}, s{sT0} offen offset:2048 sc1")
                a("s_mov_b32 exec_hi, -1")
            a.stamp(5)
            a("s_waitcnt vmcnt(0) lgkmcnt(0)")
            a("s_barrier")
            if B_:
                a(f"s_mov_b32 s{sKOK}, 0")
                a(f"s_cmp_lg_u32 s{sW}, 4")
                a(f"s_cbranch_scc1 P1_KNP")
                a("s_mov_b64 exec, 1")
                a(f"buffer_store_dword v{vNON}, v{vZ}, {sr(SWS)}, s{sFL} offen sc1")
                a("s_mov_b64 exec, -1")
                a.label("P1_KNP")
                a(f"s_mul_i32 s{sT0}, s{sHG}, 10240")
                a(f"s_add_u32 s{sT0}, s{sT0}, s{sG}")
                a(f"s_mul_i32 s{sT1}, s{sTT}, 2560")
                a(f"s_add_u32 s{sT0}, s{sT0}, s{sT1}")
                a(f"v_lshlrev_b32 v{vT0}, 7, v{vL}")
                a("s_mov_b64 exec, 0xfffff")
                a(f"buffer_load_dword v20, v{vT0}, {sr(SWS)}, s{sT0} offen")
                a("s_mov_b64 exec, -1")
                att_setup(); att_zero(a); att_scalars(a)
                a("s_waitcnt lgkmcnt(0)")
                a("s_barrier")
            else:
                if opt("pre1"): ffn_pre(a, vL, vT0, vT1)
                else:
                    a("s_movk_i32 s100, 960")
                    row_offsets(a, fD, vL, vT0, vT1, "s100")
                a("s_barrier")
                srd(a, SX, pW2, 1728 * 1280)
                a(f"s_mul_i32 s{sT2}, s{sW}, 5120")
                a(f"s_mul_i32 s{sT0}, s{sW}, {27*16*1280}")
                a(f"s_mul_i32 s{sT1}, s{sHG}, 320")
                a(f"s_add_u32 s{sT0}, s{sT0}, s{sT1}")
                for i in range(NS):
                    for p in range(5):
                        dma(a, p, fD, SX, sT0, sT2, L_RING + i*20480)
                    a(f"s_add_u32 s{sT0}, s{sT0}, {16*1280}")
            a(f"s_branch {nxt}")
            return

        def mfma(i, p): a(f"v_mfma_f32_32x32x16_bf16 {vr(ACC+16*i, 16)}, {vr(FA[p]+4*i, 4)}, {vr(FB[p], 4)}, {vr(ACC+16*i, 16)}")
        def rdb(q, ns): a(f"ds_read_b128 {vr(FB[q], 4)}, v{vX+ns}")
        def rda(q, i, ns):
            a(f"ds_read_b64_tr_b16 {vr(FA[q]+4*i, 2)}, v{vTR+i} offset:{ns*sstr}")
            a(f"ds_read_b64_tr_b16 {vr(FA[q]+4*i+2, 2)}, v{vTR+i} offset:{ns*sstr+4*rstr}")
        def rank1(i): a(f"v_mfma_f32_32x32x8_bf16 {vr(ACC+16*i, 16)}, {vr(CSR+2*i, 2)}, {vr(NM, 2)}, {vr(ACC+16*i, 16)}")
        def pack_store(i, t):
            for j in range(8): a(f"v_pk_mul_f32 {vr(ACC+16*i+2*j, 2)}, {vr(ACC+16*i+2*j, 2)}, {vr(ST, 2)}")
            for j in range(8): a(f"v_cvt_pk_bf16_f32 v{P+8*i+j}, v{ACC+16*i+2*j}, v{ACC+16*i+2*j+1}")
            L = a.uid("NR")
            a(f"s_cmp_lt_u32 s{sCG}, 4")
            a(f"s_cbranch_scc1 {L}")
            for j in range(8): a(f"v_pk_max_i16 v{P+8*i+j}, v{P+8*i+j}, 0")
            a.label(L)
            a(f"s_add_u32 s{sT0}, s{sOUT}, {t}")
            stores(a, [f"buffer_store_dwordx4 {vr(P+8*i+4*e, 4)}, v{vT2}, {sr(SWS)}, s{sT0} offen offset:{1024*e}" for e in range(2)])
        def signal(vn):
            a.stamp(5)
            if PROFILE and opt("dbgf"):
                a(f"s_lshl_b32 s100, s{sKOK}, 1") if B_ else a("s_mov_b32 s100, 0")
                a(f"s_or_b32 s82, s100, s{sFAST}")
            if B_:
                att_zero(a); att_scalars(a)
            a(f"s_lshl_b32 s{sT0}, s{sW}, 2")
            a(f"s_add_u32 s{sT0}, s{sT0}, s{sFL}")
            a("s_mov_b64 exec, 1")
            a("s_waitcnt vmcnt(0)")
            stores(a, [f"buffer_store_dword v{vn}, v{vZ}, {sr(SWS)}, s{sT0} offen offset:32"])
            a("s_mov_b64 exec, -1")
            if opt("tp") and A_:
                a(f"buffer_load_dword v229, v{vT0}, {sr(SWS)}, s{sOUT} offen sc1")
                a(f"s_add_u32 s{sT0}, s{sOUT}, 8192")
                a("s_mov_b64 exec, 0xffff")
                a(f"buffer_load_dword v229, v{vT0}, {sr(SWS)}, s{sT0} offen sc1")
                a("s_mov_b64 exec, -1")
            a(f"s_branch {nxt}")
        if A_:
            XB, WF = [128, 136], [144, 152]
            REC = [28, 36]
            vRS, vRC = 20, 23
            a(f"s_and_b32 s{sT0}, s{sTT}, 2")
            a(f"s_lshl_b32 s{sT1}, s{sT0}, 10")
            a(f"s_add_u32 s{sT1}, s{sT1}, {K1_ST}")
            a(f"v_lshl_add_u32 v{vRS}, v{vN}, 5, s{sT1}")
            a(f"s_and_b32 s{sT2}, s{sTT}, 1")
            a(f"s_lshl_b32 s{sT1}, s{sT2}, 10")
            a(f"s_add_u32 s{sT1}, s{sT1}, {K1_CS}")
            a(f"v_lshl_add_u32 v{vRC}, v{vL}, 3, s{sT1}")
            a(f"s_mul_i32 s{sT1}, s{sT2}, {4096 - G_TSTRIDE}")
            a(f"s_add_u32 s{sOUT}, s{sOUT}, s{sT1}")
            a(f"v_lshlrev_b32 v{vT2}, 4, v{vL}")
            srd(a, SX, pW2, 1728 * 1280)
            a(f"s_mul_i32 s{sPB}, s{sRB}, 15")
            a(f"s_add_u32 s{sPB}, s{sPB}, s{sCG}")
            a(f"s_lshl_b32 s{sPB}, s{sPB}, 2")
            a(f"s_add_u32 s{sPB}, s{sPB}, s{sTT}")
            a(f"s_mul_i32 s{sSO}, s{sPB}, {7*128}")
            a(f"s_mul_i32 s{sPB}, s{sPB}, {18*128}")
            srd(a, SB, pWO, 640 * 1280)
            a(f"v_lshlrev_b32 v{vT0}, 7, v{vL}")
            def mf(j, i, p): a(f"v_mfma_f32_32x32x16_bf16 {vr(ACC+32*j+16*i, 16)}, {vr(WF[p]+4*i, 4)}, {vr(XB[p]+4*j, 4)}, {vr(ACC+32*j+16*i, 16)}")
            def rx(q, j, ns): a(f"ds_read_b128 {vr(XB[q]+4*j, 4)}, v{vX+ns}" + (" offset:4096" if j else ""))
            def rw(q, i, ns):
                a(f"ds_read_b64_tr_b16 {vr(WF[q]+4*i, 2)}, v{vTR+i} offset:{ns*sstr}")
                a(f"ds_read_b64_tr_b16 {vr(WF[q]+4*i+2, 2)}, v{vTR+i} offset:{ns*sstr+4*rstr}")
            for p in range(NA): wpiece(p)
            if NA: next_chunk(False, True, K1_SLOT)
            a(f"s_waitcnt vmcnt({8 + NA})")
            a.stamp(2)
            a("s_barrier")
            rx(0, 0, 0); rw(0, 0, 0); rw(0, 1, 0); rx(0, 1, 0)
            a.stamp(3); a.stamp(NSTAMP, True)
            def step(s, pre=None, extra=0, g3=None, g4=None):
                p, q, ns = s & 1, (s + 1) & 1, (s + 1) & 3
                if pre is None: a(f"s_waitcnt lgkmcnt({3 + extra})")
                mf(0, 0, p)
                if pre is not None: pre()
                rx(q, 0, ns); rw(q, 0, ns)
                if pre is None: a(f"s_waitcnt lgkmcnt({3 + extra})")
                mf(0, 1, p)
                rw(q, 1, ns); rx(q, 1, ns)
                mf(1, 1, p)
                if g3: g3()
                mf(1, 0, p)
                if g4: g4()
            def apiece(p):
                def f():
                    if p >= NA: return
                    L = a.uid("SK")
                    a(f"s_cbranch_vccz {L}")
                    wpiece(p)
                    a.label(L)
                return f
            def ring():
                a(f"s_and_b32 s{sT0}, s{sC}, 3")
                if NA: csel(a, sRNG, K1_SLOT, -3*K1_SLOT)
                a(f"s_cmp_eq_u32 s{sT0}, 3")
                csel(a, sDEL, -3*K1_SLOT, K1_SLOT)
            sRNG = sM0
            def adds():
                for s in range(4): a(f"v_add_u32 v{vX+s}, s{sDEL}, v{vX+s}")
                for i in range(2): a(f"v_add_u32 v{vTR+i}, s{sDEL}, v{vTR+i}")
            TC = 6 if NA else optv("tc", 3)
            a("s_mov_b64 vcc, -1")
            a.raw(".p2align 3")
            a.label(f"P1_L{tag}")
            step(0, None, 0, apiece(0))
            step(1, None, 0, apiece(1), ring)
            step(2, None, 0, adds, apiece(2))
            a(f"s_bitcmp1_b32 {0x107 | (1 << TC):#x}, s{sC}")
            a("s_waitcnt lgkmcnt(0)")
            def pre():
                if NA: a(f"s_waitcnt vmcnt({2*NA})")
                a(f"s_cbranch_scc1 P1_X{tag}")
                a.label(f"P1_W1{tag}")
                a("s_barrier")
            step(3, pre, 0, (lambda: next_chunk(False, True, f"s{sRNG}")) if NA else None)
            a.lstamp(sC)
            a(f"s_add_u32 s{sC}, s{sC}, 1")
            a(f"s_cmp_lt_u32 s{sC}, 9")
            a(f"s_cbranch_scc1 P1_L{tag}")
            a(f"ds_read_b128 {vr(REC[0], 4)}, v{vRS}")
            a(f"ds_read_b64 {vr(REC[0]+4, 2)}, v{vRS} offset:16")
            a(f"ds_read_b128 {vr(REC[1], 4)}, v{vRS} offset:1024")
            for i in range(2): a(f"ds_read_b64 {vr(CSR+2*i, 2)}, v{vRC} offset:{512*i}")
            step(0, None, 5)
            step(1)
            rds = [lambda: (rx(1, 0, 3), rw(1, 0, 3)), lambda: (rw(1, 1, 3), rx(1, 1, 3)), lambda: None, lambda: None]
            for n in range(4):
                j, i = n >> 1, n & 1
                a(f"v_mfma_f32_32x32x8_bf16 {vr(ACC+16*n, 16)}, {vr(CSR+2*i, 2)}, {vr(REC[j], 2)}, {vr(ACC+16*n, 16)}")
                rds[n]()
            a(f"v_readfirstlane_b32 s{sFAST}, v{REC[0]+5}")
            a("s_waitcnt lgkmcnt(3)")
            mf(0, 0, 0); mf(0, 0, 1)
            a("s_waitcnt lgkmcnt(0)")
            a("s_barrier")
            a.stamp(4); a.stamp(NSTAMP + 1, True)
            mf(0, 1, 0); mf(0, 1, 1)
            a("s_nop 7")
            for n in range(4):
                if n < 2: mf(1, n, 0); mf(1, n, 1)
                ST = REC[n >> 1] + 2
                pack_store(n, (n >> 1) * G_TSTRIDE + (n & 1) * 2048)
            a.ldump()
            signal(REC[0] + 4)
            a.label(f"P1_X{tag}")
            for c in (0, 1, 2, 8):
                L = a.uid("XH")
                a(f"s_cmp_lg_u32 s{sC}, {c}")
                a(f"s_cbranch_scc1 {L}")
                if c == 0:
                    if not NA: a("s_waitcnt vmcnt(5)")
                    row_stats(0); row_stats(1)
                    if not NA: a("s_waitcnt vmcnt(0)")
                    a(f"buffer_load_dword v{vNON}, v{vZ}, {sr(SDBG)}, 0 offen sc1")
                elif c == 1:
                    row_stats(2)
                elif c == 2:
                    if not NA: a("s_waitcnt vmcnt(0)")
                    get_nonce(True)
                    row_stats(3)
                elif NA:
                    a("s_waitcnt vmcnt(3)")
                a(f"s_branch P1_W1{tag}")
                a.label(L)
            a("s_mov_b64 vcc, 0")
            if not opt("notq"):
                a(f"s_mul_i32 s{sT0}, s{sHG}, 10240")
                a(f"s_add_u32 s{sT0}, s{sT0}, s{sG}")
                a(f"s_mul_i32 s{sT1}, s{sTT}, 2560")
                a(f"s_add_u32 s{sT0}, s{sT0}, s{sT1}")
                a("s_mov_b64 exec, 0xfffff")
                a(f"buffer_load_dword v229, v{vT0}, {sr(SWS)}, s{sT0} offen")
            a("s_mov_b64 exec, 0x7f")
            a(f"buffer_load_dword v230, v{vT0}, {sr(SB)}, s{sSO} offen")
            a("s_mov_b64 exec, 0x3ffff")
            a(f"buffer_load_dword v231, v{vT0}, {sr(SX)}, s{sPB} offen")
            a("s_mov_b64 exec, -1")
            a(f"s_branch P1_W1{tag}")
            return
        NM, ST = 44, 46
        vWO, CG, RR = 200, 204 - 8, 206
        CG = 196
        a(f"s_lshl_b32 s{sPB}, s{sCG}, 2")
        a(f"s_add_u32 s{sPB}, s{sPB}, s{sTT}")
        a(f"s_mul_i32 s{sPB}, s{sPB}, 5120")
        a(f"s_add_u32 s{sPB}, s{sPB}, {WS_CP}")
        a(f"s_sub_u32 s{sM0}, s{sM0}, {2*K1_SLOT}")
        a(f"s_sub_u32 s{sM0W}, s{sM0W}, {2*K1_SLOT}")
        a("s_setprio 1")
        ops = ["X0"] * 4 + ["D1"] * 4 + (["D2"] * 4 if opt("x2") else [])
        def vm(tag_, n=1): ops.extend([tag_] * n)
        def wait(*tags):
            last = max(i for i, t in enumerate(ops) if t in tags)
            return len(ops) - 1 - last
        def xp(c, p):
            if opt("xnodma") and c > 2 and p > 0: return
            dma(a, p, vD, SX, sSO, sM0, (c & 3)*K1_SLOT); vm(f"D{c}")
        def wp(c, p):
            base = (c & 3) * K1_SLOT if c < 10 else L_RING + (c - 10) * 20480
            if (opt("xnodma") or opt("xnow")) and c > 2: return
            dma(a, p, vDW if c < 10 else vWO, SA, sSOW, sM0W, base, c < 10 and p == NA); vm(f"D{c}")
        def adv(c):
            if c < 10:
                a(f"s_add_u32 s{sCC}, s{sCC}, 1")
                a(f"s_cmp_eq_u32 s{sCC}, 10")
                a(f"s_cselect_b32 s{sCC}, 0, s{sCC}")
                a(f"s_lshl_b32 s{sSO}, s{sCC}, 7")
                a(f"s_mul_i32 s{sSOW}, s{sCC}, s{sWSTEP}")
                a(f"s_add_u32 s{sSOW}, s{sSOW}, s{sWBASE}")
            elif c == 10:
                srd(a, SA, pW2, 1728 * 1280)
                a(f"s_mul_i32 s{sSOW}, s{sTT}, {27*16*1280}")
                a(f"s_mul_i32 s{sT0}, s{sHG}, 320")
                a(f"s_add_u32 s{sSOW}, s{sSOW}, s{sT0}")
            elif c < 13:
                a(f"s_add_u32 s{sSOW}, s{sSOW}, {16*1280}")
        def f_nonce(): get_nonce(False)
        def f_cspub():
            a(f"v_add_f32 v{PUB}, v{P}, v{P+8}")
            a(f"v_add_f32 v{PUB+2}, v{P+4}, v{P+12}")
            halfop(a, "v_add_f32", PUB, vT0); halfop(a, "v_add_f32", PUB + 2, vT0)
            a(f"v_mov_b32 v{PUB+1}, v{vNON}")
            a(f"v_mov_b32 v{PUB+3}, v{vNON}")
            a(f"v_lshlrev_b32 v{vT2}, 4, v{vL}")
            a(f"s_lshl_b32 s{sT1}, s{sST}, 9")
            a(f"s_add_u32 s{sT0}, s{sPB}, s{sT1}")
            a("s_mov_b32 exec_hi, 0")
            a(f"buffer_store_dwordx4 {vr(PUB, 4)}, v{vT2}, {sr(SWS)}, s{sT0} offen sc1"); vm("S")
            a("s_mov_b32 exec_hi, -1")
        def f_rowpub(): row_stats(3); vm("S")
        def f_wo(ps):
            a(f"s_movk_i32 s{sT2}, 960")
            row_offsets(a, vWO, vL, vT0, vT1, f"s{sT2}", ps)
        def gather(js, count=True):
            for j in js:
                if j == 0:
                    row_load(RR)
                    a(f"v_mul_u32_u24 v{vT1}, 2560, v{vH}")
                    a(f"v_add_u32 v{vSA}, v{vT0}, v{vT1}")
                else:
                    a(f"buffer_load_dwordx4 {vr(GAT+4*(j-1), 4)}, v{vSA}, {sr(SWS)}, s{sPB} offen offset:{512*(j-1)} sc1")
                if count: vm("G")
        def f_words(t):
            a(f"buffer_load_dword v{vFV}, v{vFL}, {sr(SWS)}, 0 offen sc1"); vm(t)
        def f_fin0():
            a(f"s_mov_b32 s{sSPIN}, {SPIN}")
            a(f"s_waitcnt vmcnt({wait('G', 'XW')})")
            a(f"v_cmp_ne_u32 vcc, s{sXW}, v{vFV}")
            a("s_cmp_eq_u32 vcc_hi, 0")
            a(f"s_cselect_b32 s{sFAST}, {0 if opt('slow') else 1}, 0")
            a.label(f"P1_FC{tag}")
            tag_check([RR + 1, RR + 3] + [GAT + 2*j + 1 for j in range(10)], f"P1_GA{tag}", f"P1_FOK{tag}")
        def f_fin1():
            a(f"v_mov_b32 v{NM}, v{RR}")
            a(f"v_mov_b32 v{NM+1}, v{RR}")
            a(f"v_mul_f32 v{ST}, s{sQS}, v{RR+2}")
            a(f"v_mul_f32 v{ST+1}, s{sQS}, v{RR+2}")
            a(f"v_mov_b32 v{RR}, s{sNON}")
            a(f"v_mov_b32 v{RR+1}, s{sFAST}")
            a(f"s_lshl_b32 s{sT0}, s{sTT}, 10")
            a(f"s_add_u32 s{sT0}, s{sT0}, {K1_ST}")
            a(f"v_lshl_add_u32 v{vT0}, v{vN}, 5, s{sT0}")
            a(f"ds_write_b128 v{vT0}, {vr(NM, 4)}")
            a(f"ds_write_b64 v{vT0}, {vr(RR, 2)} offset:16")
            for j in range(1, 5):
                a(f"v_add_f32 v{GAT}, v{GAT}, v{GAT+4*j}")
                a(f"v_add_f32 v{GAT+2}, v{GAT+2}, v{GAT+4*j+2}")
        def f_fin2():
            split3(a, GAT, vT0, vT1, PUB, PUB + 1)
            a(f"s_lshl_b32 s{sT0}, s{sTT}, 9")
            a(f"s_add_u32 s{sT0}, s{sT0}, {K1_CS}")
            a(f"v_lshl_add_u32 v{vT0}, v{vL}, 3, s{sT0}")
            a(f"ds_write_b64 v{vT0}, {vr(PUB, 2)}")
            split3(a, GAT + 2, vT0, vT1, CSR, CSR + 1)
        def f_kv():
            L = a.uid("NOKV")
            a(f"s_waitcnt vmcnt({wait('KF')})")
            a(f"v_cmp_ne_u32 vcc, s{sNON}, v{vFV}")
            a(f"s_mov_b32 s{sKOK}, 0")
            a("s_cmp_lg_u32 vcc_lo, 0")
            a(f"s_cbranch_scc1 {L}")
            kv_first(a, vT2)
            a(f"s_mov_b32 s{sKOK}, 1")
            a.label(L)
        def f_tlb():
            if not opt("tlb"): return
            a(f"v_lshlrev_b32 v{vT0}, 21, v{vL}")
            a("s_mov_b64 exec, 0x7f")
            a(f"buffer_load_dword v20, v{vT0}, {sr(SWS)}, 0 offen"); vm("T")
            a("s_mov_b64 exec, 1")
            a(f"buffer_load_dword v20, v{vZ}, {sr(SB)}, s{sOB} offen"); vm("T")
            a("s_mov_b64 exec, -1")
        def f_code():
            if not opt("code"): return
            a("s_getpc_b64 s[100:101]")
            a.label("PCREF")
            a(f"s_lshr_b32 s{sT0}, s2, 3")
            a(f"s_lshl_b32 s{sT0}, s{sT0}, 2")
            a(f"s_add_u32 s{sT0}, s{sT0}, s{sTT}")
            a(f"s_lshl_b32 s{sT0}, s{sT0}, 7")
            a(f"s_add_u32 s{sT0}, s{sT0}, P2_ATT-PCREF")
            a(f"s_add_u32 s100, s100, s{sT0}")
            a("s_addc_u32 s101, s101, 0")
            a(f"v_mov_b32 v{vT0}, s100")
            a(f"v_mov_b32 v{vT1}, s101")
            a("s_mov_b64 exec, 1")
            a(f"global_load_dword v20, {vr(vT0, 2)}, off"); vm("T")
            a("s_mov_b64 exec, -1")
        fill = {(2, 0): f_nonce, (2, 1): f_cspub, (3, 1): lambda: f_wo((0, 1)), (4, 1): lambda: f_wo((2, 3)), (1, 1): lambda: (f_wo((4,)), att_setup(4)),
                (5, 0): lambda: gather((0,)), (5, 1): lambda: gather((1,)), (5, 2): lambda: gather((2,)),
                (6, 0): lambda: gather((3,)), (6, 1): lambda: gather((4,)), (6, 2): lambda: gather((5,)),
                (4, 2): lambda: f_words("XW"), (7, 0): lambda: att_setup(0)}
        if opt("g7"):
            for k in ((5, 0), (5, 1), (5, 2), (6, 0), (6, 1), (6, 2), (4, 2)): del fill[k]
            fill.update({(6, 2): lambda: gather((0, 1, 2)), (7, 0): lambda: (gather((3, 4, 5)), f_words("XW")), (7, 1): lambda: att_setup(0)})
        if opt("fin8"): fill.update({(8, 0): f_fin0, (8, 1): f_fin1, (8, 2): f_fin2})
        else: fill.update({(7, 2): f_fin0, (8, 0): f_fin1, (8, 1): f_fin2})
        fill.update({(9, 0): lambda: (rank1(0), f_words("KF"))})
        a(f"s_waitcnt vmcnt({wait('X0')})")
        a.stamp(2)
        a("s_barrier")
        rdb(0, 0); rda(0, 0, 0)
        for p in range(NA, 5): wp(2, p)
        if not opt("x2"):
            for p in range(4): xp(2, p)
        a(f"buffer_load_dword v{vNON}, v{vZ}, {sr(SDBG)}, 0 offen sc1"); vm("N")
        a.stamp(3); a.stamp(NSTAMP, True)
        for c in range(10):
            adv(c + 3)
            for s in range(4):
                p, q, ns = s & 1, (s + 1) & 1, (s + 1) & 3
                if c == 0:
                    a(f"ds_read_b64_tr_b16 {vr(CG, 2)}, v{vSA} offset:{s*sstr}")
                    a(f"ds_read_b64_tr_b16 {vr(CG+2, 2)}, v{vSA} offset:{s*sstr+4*rstr}")
                if s == 3 and c < 9:
                    d = -3 * K1_SLOT if (c & 3) == 3 else K1_SLOT
                    for r in list(range(vX, vX + 4)) + [vTR]: a(f"v_add_u32 v{r}, {d}, v{r}")
                a("s_waitcnt lgkmcnt(0)")
                if not opt("xnobm"): mfma(0, p)
                if c == 0:
                    for j in range(2):
                        m4(P + 8*j, ONE, CG + 2*j); m4(P + 8*j + 4, ONE, FA[p] + 2*j)
                if s == 3:
                    if c < 9: a(f"s_waitcnt vmcnt({wait(f'D{c+1}', 'N') if c == 1 else wait(f'D{c+1}')})")
                    a("s_barrier")
                if c < 9 or s < 3:
                    rdb(q, ns); rda(q, 0, ns)
                if s < 3:
                    if c + 3 < 10:
                        lst = [("w", p_) for p_ in range(NA, 5)] + [("x", p_) for p_ in range(4)]
                        n = len(lst)
                        for kind, pp in lst[(n * s + 2) // 3:(n * (s + 1) + 2) // 3]: (wp if kind == "w" else xp)(c + 3, pp)
                    elif c + 3 < 10 + NS:
                        for pp in ((0, 1), (2, 3), (4,))[s]: wp(c + 3, pp)
                    if (c, s) in fill: fill[(c, s)]()
        a.stamp(4); a.stamp(NSTAMP + 1, True)
        a("s_setprio 0")
        a("s_nop 9")
        pack_store(0, 8192); vm("S", 2)
        f_kv()
        signal(vNON)
        a.label(f"P1_GA{tag}")
        gather(range(6), False)
        a("s_waitcnt vmcnt(0)")
        a(f"s_branch P1_FC{tag}")

    body("GA", "A", False)
    a.label("P1_GB")
    body("GB", "B", False)
    a.label("P1_KA0")
    a(f"v_lshlrev_b32 v{vDW}, 4, v{vL}")
    a(f"s_mul_i32 s{sWBASE}, s{sW}, 640")
    a(f"s_mov_b32 s{sWSTEP}, 2560")
    a(f"s_mul_i32 s{sSOW}, s{sCC}, 2560")
    a(f"s_add_u32 s{sSOW}, s{sSOW}, s{sWBASE}")
    a(f"s_lshl_b32 s{sM0W}, s{sW}, 10")
    a("s_waitcnt lgkmcnt(0)")
    srd(a, SA, pWK, 640 * 40)
    srd(a, SB, pWV, 640 * 40)
    st01()
    for p in range(2): wpiece(p, True)
    a("s_barrier")
    body("KA", "A", True)
    a.label("P1_KB")
    body("KB", "B", True)

def kdesc(name, nv, ns=102):
    return f""".amdhsa_kernel {name}
  .amdhsa_next_free_vgpr {nv}
  .amdhsa_next_free_sgpr {ns}
  .amdhsa_accum_offset {(nv+3)//4*4}
  .amdhsa_group_segment_fixed_size 0
  .amdhsa_kernarg_size 88
  .amdhsa_user_sgpr_count 2
  .amdhsa_user_sgpr_kernarg_segment_ptr 1
  .amdhsa_system_sgpr_workgroup_id_x 1
.end_amdhsa_kernel
"""

DOC = """; ---------------------------------------------------------------------------------------------------------------
;
;          which case they meet in that XCD's L2; loads of handed-over data always bypass L1.  Every spin is bounded.
; ---------------------------------------------------------------------------------------------------------------
"""

def build():
    from g18p2 import gen_ffn, gen_att
    hdr = open("cdna_kernels/" + NAME + ".s.ref").read().split("; Override launch")[0]
    out = hdr
    out += f"; @launch grid=(256,1,1) block=(512,1,1) lds={LDS_BYTES}\n"
    out += '.amdgcn_target "amdgcn-amd-amdhsa--gfx950"\n' + DOC + '.text\n'
    a = Asm()
    k = NAME + "_kernel"
    a.raw(f".globl {k}\n.p2align 8\n.type {k},@function")
    a.label(k)
    gen_p1(a)
    a.p2 = True
    a.label("P2_ATT")
    gen_att(a)
    a.ffn = True
    a.label("P2_FFN")
    gen_ffn(a)
    for L, lines, D in a.tail:
        a.label(L)
        for l in lines: a(l)
        a(f"s_branch {D}")
    a.label("L_END")
    a("s_endpgm")
    if not opt("nocp"): a.raw(f"    .fill (0x8100 - (. - {k})) / 4, 4, 0xbf810000      ; the code read-ahead stays inside .text")
    out += a.text()
    out += '.section .rodata,"a"\n.p2align 6\n' + kdesc(k, 256)
    return out

if __name__ == "__main__":
    path = sys.argv[1] if len(sys.argv) > 1 and not sys.argv[1].startswith("--") else "cdna_kernels/" + NAME + ".s"
    open(path, "w").write(build())
```

```python
from g18 import *

LD = {"plain": "", "nt": " nt", "sc0": " sc0"}.get(sys.argv[sys.argv.index("--ld") + 1] if opt("ld") else "", " sc1")
LDO = " nt" if opt("ldo") else " sc1"
def cnt_arrive(a, vaddr, vtmp, inc="1", off=0):
    a(f"v_mov_b32 v{vtmp}, {inc}")
    a("s_mov_b64 exec, 1")
    a(f"ds_add_u32 v{vaddr}, v{vtmp}" + (f" offset:{off}" if off else ""))
    a("s_mov_b64 exec, -1")
def cnt_wait(a, vaddr, vtmp, tgt, sleep=0, off=0):
    L, D = a.uid("CW"), a.uid("CWD")
    a(f"s_mov_b32 s{sSPIN}, {SPIN * 16}")
    a.label(L)
    a(f"ds_read_b32 v{vtmp}, v{vaddr}" + (f" offset:{off}" if off else ""))
    a("s_waitcnt lgkmcnt(0)")
    a(f"v_readfirstlane_b32 s{sT0}, v{vtmp}")
    a(f"s_and_b32 s{sT2}, s{sT0}, 0xffff")
    a(f"s_cmp_ge_u32 s{sT2}, {tgt}")
    a(f"s_cbranch_scc1 {D}")
    if sleep: a(f"s_sleep {sleep}")
    spin_tail(a, L)
    a.label(D)

def final_stage(a, base_item, X, R, vA, vG, load_x, do_rest):
    if load_x and load_x != "load":
        a(f"s_mov_b32 s100, {L_FP}")
        item_addr(a, base_item, vA, vG, X)
    if load_x and load_x != "addr":
        a(f"buffer_load_dwordx4 {vr(X, 4)}, v{vG}, {sr(SX)}, s{sOB} offen")
    if do_rest == 1:
        for s in range(4):
            a(f"ds_read_b128 {vr(R+8*s, 4)}, v{vA} offset:{s*5120}")
            a(f"ds_read_b128 {vr(R+8*s+4, 4)}, v{vA} offset:{s*5120+16}")
    if do_rest == 2:
        for j in range(4):
            a(f"v_lshlrev_b32 v{R+32+2*j}, 16, v{X+j}")
            a(f"v_and_b32 v{R+33+2*j}, 0xffff0000, v{X+j}")
    if do_rest >= 3:
        for s in range(4):
            a(f"s_waitcnt lgkmcnt({6-2*s + (do_rest-3)})")
            for j in range(4):
                a(f"v_pk_add_f32 {vr(R+32+2*j, 2)}, {vr(R+32+2*j, 2)}, {vr(R+8*s+2*j, 2)}")
        for j in range(4): a(f"v_cvt_pk_bf16_f32 v{X+j}, v{R+32+2*j}, v{R+33+2*j}")
        a(f"buffer_store_dwordx4 {vr(X, 4)}, v{vG}, {sr(SB)}, s{sOB} offen")

def gen_att(a):
    vL, vKM, vQT, vIDX, vT0, vT1, vCNT = 1, 2, 3, 4, 5, 6, 7
    vP = 8
    vT2, vT3 = 12, 13
    vFL = 23
    S, O, QM, QT, KM, KT, V0, V1 = aS, aO, aQM, aQT, aKM, aKT, aV0, aV1
    def qk1(s, kb, q): a(f"v_mfma_f32_32x32x16_bf16 {vr(S[s], 16)}, {vr(KM[kb], 4)}, {vr(QM(q), 4)}, 0")
    def qk2(s, kb, q): a(f"v_mfma_f32_32x32x8_bf16 {vr(S[s], 16)}, {vr(KT[kb], 2)}, {vr(QT(q), 2)}, {vr(S[s], 16)}")
    def pv(u, s, vb, q): a(f"v_smfmac_f32_32x32x32_bf16 {vr(O(q), 16)}, {vr((V0, V1)[u][vb], 4)}, {vr(S[s]+8*u, 8)}, v{vIDX}")
    def ldq(i):
        a(f"buffer_load_dwordx4 {vr(QM(i), 4)}, v{vKM}, {sr(SWS)}, s{sPm+i//2} offen" + (" offset:1024" if i & 1 else "") + LD)
        a(f"buffer_load_dwordx2 {vr(QT(i), 2)}, v{vQT}, {sr(SWS)}, s{sPt+i//2} offen" + (" offset:512" if i & 1 else "") + LD)
    def qregs(lo, hi): return list(range(QM(lo), QM(hi))) + list(range(QT(lo), QT(hi)))
    def rowmax(s, dst):
        b = S[s]
        a(f"v_max3_f32 v{dst}, v{b}, v{b+1}, v{b+2}")
        for j in range(3, 15, 2): a(f"v_max3_f32 v{dst}, v{dst}, v{b+j}, v{b+j+1}")
        a(f"v_max_f32 v{dst}, v{dst}, v{b+15}")
    def pair_addr(mul, base, vlane, shift):
        for j in range(4):
            a(f"s_add_u32 s{sT0}, s{sQ}, {j}")
            a(f"s_and_b32 s{sT0}, s{sT0}, 3")
            a(f"s_mul_i32 s{sT0}, s{sT0}, {mul}")
            a(f"s_add_u32 s{sT0}, s{sT0}, {base}")
            a(f"v_lshl_add_u32 v{vP+j}, v{vlane}, {shift}, s{sT0}")

    if not opt("latep"): a("s_setprio 3")
    a(f"s_mov_b32 s{sMODE}, 0")
    a(f"v_lshlrev_b32 v{vKM}, 4, v{vL}")
    a(f"v_mov_b32 v{vT0}, {OOB:#x}")
    a(f"v_cmp_gt_u32 vcc, 32, v{vL}")
    a(f"v_mov_b32 v{vIDX}, 0xdddddddd")
    a(f"v_mov_b32 v{vCNT}, {L_CNT}")
    a(f"v_cndmask_b32 v{vQT}, v{vT0}, v{vKM}, vcc")
    cnt_arrive(a, vCNT, vT0, off=8)
    a.stamp(6)
    a(f"s_cmp_lg_u32 s{sKOK}, 0")
    a("s_cbranch_scc1 A_HAVEKV")
    a("s_mov_b32 exec_hi, 0")
    poll(a, vFL, vT0, "0")
    a("s_mov_b32 exec_hi, -1")
    a.label("A_RELOAD")
    kv_first(a, vKM)
    a.label("A_HAVEKV")
    check_fast(a, vT1, vT0)
    a(f"v_and_b32 v{vT1}, 31, v{vL}")
    pair_addr(512, L_MREC, vT1, 3)
    flag_words(a, vT1, vL)
    a.stamp(7)
    poll(a, vT1, vT0, f"s{sFQ}", optv("qsleep", 1))
    check_fast(a, vT1, vT0)
    a.stamp(8)
    if opt("latep"): a("s_setprio 3")
    ldq(0); ldq(1)
    a(f"s_cmp_lg_u32 s{sMODE}, 0")
    a("s_cbranch_scc1 A_TRUEMAX")
    a.c("stand-in for the row max: max over this wave's first 32 keys; checked after the loop, exact-max rerun if unsafe")
    ldq(2); ldq(3)
    a("s_waitcnt vmcnt(4)")
    qk1(0, 0, 0); qk2(0, 0, 0); qk1(1, 0, 1); qk2(1, 0, 1)
    for i in range(4, 8): ldq(i)
    a("s_nop 1")
    rowmax(0, S[2]); rowmax(1, S[2] + 1)
    a(f"v_mov_b32 v{vT0}, v{S[2]}")
    a(f"v_mov_b32 v{vT1}, v{S[2]+1}")
    a("s_nop 0")
    a(f"v_permlane32_swap_b32 v{vT0}, v{S[2]}")
    a(f"v_permlane32_swap_b32 v{vT1}, v{S[2]+1}")
    a(f"v_max_f32 v{S[2]}, v{S[2]}, v{vT0}")
    a(f"v_max_f32 v{S[2]+1}, v{S[2]+1}, v{vT1}")
    a("s_mov_b32 exec_lo, 0")
    for e in range(2): a(f"v_cvt_pk_bf16_f32 v{QT(e)}, -v{S[2]+e}, 0")
    a.label("A_HAVEMAX")
    for e in range(2): a(f"ds_write_b64 v{vP}, {vr(QT(e), 2)} offset:{256*e}")
    a("s_mov_b32 exec_lo, -1")
    cnt_arrive(a, vCNT, vT0)
    a(f"s_add_u32 s{sTGT}, s{sTGT}, 4")
    a(f"s_mov_b32 s{sCNT}, 8")
    a.stamp(9)
    a.stamp(10); a.stamp(NSTAMP + 2, True)
    qk1(0, 0, 0); qk2(0, 0, 0)
    a("s_cmp_lg_u32 0, 0")
    a("s_nop 10")
    a.raw(".p2align 6")
    a.label("A_LOOP")
    PAT0 = (3, 3, 4, 3, 3)
    PAT1 = tuple(int(ch) for ch in sys.argv[sys.argv.index("--pat1") + 1]) if opt("pat1") else PAT0
    PMASK = optv("pmask", 0)
    def slot(sc, nxt, prv, holes, PAT=PAT0):
        e = [0]
        def exps(n):
            for _ in range(n):
                a(f"v_exp_f32 v{S[sc]+e[0]}, v{S[sc]+e[0]}"); e[0] += 1
        ms = [lambda: qk1((sc + 1) & 3, *nxt), lambda: pv(0, (sc - 1) & 3, *prv), lambda: qk2((sc + 1) & 3, *nxt), lambda: pv(1, (sc - 1) & 3, *prv)]
        for j in range(4):
            if nxt is not None or j & 1: ms[j]()
            if j in holes: holes[j]()
            exps(PAT[j])
        holes[4]()
        exps(PAT[4])
    for kb in range(2):
        for q in range(8):
            def hole():
                if q == 0:
                    if kb == 0:
                        a("s_cbranch_scc0 A_FIRST")
                        a.label("A_FIRSTD")
                    a("s_waitcnt vmcnt(2)"); ldv(a, 0, kb ^ 1)
                elif q == 1: ldv(a, 1, kb ^ 1)
                elif q == 2: a(f"s_add_u32 s{sKV}, s{sKV}, {KV_REC}")
                elif q == 3 and kb == 0: a(f"s_sub_u32 s{sCNT}, s{sCNT}, 1")
                elif q == 4 and kb == 0: a(f"s_cmp_eq_u32 s{sCNT}, 0")
                elif q == 4: a("s_cmp_eq_u32 0, 0")
                elif q == 5: a("s_waitcnt vmcnt(2)")
                elif q == 6: ldkm(a, kb, vKM)
                elif q == 7: ldkt(a, kb)
                elif opt("nop"): a("s_nop 0")
            slot(q & 3, ((kb if q < 7 else kb ^ 1), (q + 1) & 7), ((kb if q > 0 else kb ^ 1), (q - 1) & 7), {4: hole}, PAT1 if (PMASK >> q) & 1 else PAT0)
        if kb == 0:
            a.lstamp(sCNT, 0)
            a("s_cbranch_scc1 A_LAST")
    a("s_branch A_LOOP")
    a.label("A_FIRST")
    a(f"s_mov_b32 s{sSPIN}, {SPIN * 16}")
    a("s_waitcnt vmcnt(0)")
    a.label("A_F0")
    a(f"ds_read_b32 v{vT1}, v{vCNT}")
    a("s_mov_b32 exec_lo, 0")
    for i in range(2, 8): a(f"ds_read_b64 {vr(QT(i), 2)}, v{vP+i//2} offset:{256*(i&1)}")
    a("s_mov_b32 exec_lo, -1")
    a("s_waitcnt lgkmcnt(6)")
    a(f"v_readfirstlane_b32 s{sT0}, v{vT1}")
    a(f"s_and_b32 s{sT0}, s{sT0}, 0xffff")
    a(f"s_cmp_ge_u32 s{sT0}, s{sTGT}")
    a("s_cbranch_scc1 A_F0D")
    spin_tail(a, "A_F0")
    a.label("A_F0D")
    a(f"v_and_b32 v{vT0}, 31, v{vL}")
    a(f"v_mul_u32_u24 v{vT0}, {8*36}, v{vT0}")
    a(f"v_sub_u32 v{vT0}, v{vKM}, v{vT0}")
    a(f"v_add_u32 v{vT0}, {(L_OP - 36*L_MREC) & 0xffffffff:#x}, v{vT0}")
    for j in range(4): a(f"v_mad_u32_u24 v{vP+j}, v{vP+j}, 36, v{vT0}")
    a("s_waitcnt lgkmcnt(0)")
    a.lstamp("8", 0)
    a("s_branch A_FIRSTD")
    a.label("A_LAST")
    def wr(i, j): a(f"ds_write_b128 v{vP+i//2}, {vr(O(i)+4*j, 4)} offset:{(i&1)*9216 + (i//2-1)*3072 + j*1024}")
    seq = [0, 2, 4, 6, 3, 5, 7, 1]
    RB = [[188, 200, 216], [16, 28, 40]]
    def rd(e, k):
        s_, j = divmod(k, 3)
        a(f"ds_read_b128 {vr(RB[e][s_]+4*j, 4)}, v{vP} offset:{e*9216 + s_*3072 + j*1024}")
    def echeck(n=2):
        a(f"s_waitcnt lgkmcnt({n})")
        a(f"v_readfirstlane_b32 s{sT0}, v{vT0}")
        a(f"s_cmp_lt_u32 s{sT0}, s{sKOK}")
        a("s_cbranch_scc1 A_EWAIT")
        a.label("A_EOK")
    for n in range(8):
        nxt = (1, seq[n + 1]) if n < 7 else None
        prv = (1, seq[n - 1]) if n > 0 else (0, 7)
        if n == 0: holes = {4: lambda: (a("s_waitcnt vmcnt(2)"), a(f"ds_read_b32 v{vT0}, v{vCNT}"))}
        if n == 1: holes = {4: lambda: (a("s_waitcnt lgkmcnt(0)"), a(f"v_readfirstlane_b32 s{sT0}, v{vT0}"))}
        if n == 2: holes = {4: lambda: (a(f"s_cmp_lt_u32 s{sT0}, 8"), a("s_cbranch_scc1 A_OWAIT"), a.label("A_OFREE"))}
        if n >= 3:
            i = seq[n - 2]
            holes = {2: lambda: wr(i, 0), 3: lambda: wr(i, 1), 4: lambda: wr(i, 2)}
        if n == 4: holes[1] = lambda: (a(f"s_lshl_b32 s{sKOK}, s{sMODE}, 3"), a(f"s_add_u32 s{sKOK}, s{sKOK}, 4"))
        if n == 5: holes[4] = lambda: (wr(i, 2), cnt_arrive(a, vCNT, vT0, off=12))
        if n == (6 if opt("ein") else 7): holes[3] = lambda: (a(f"ds_read_b32 v{vT0}, v{vCNT} offset:12"), wr(i, 1))
        if n == 7 and opt("ein"):
            holes = {0: lambda: (echeck(), rd(0, 0), rd(0, 1)), 1: lambda: (rd(0, 2), rd(0, 3)), 2: lambda: (wr(i, 0), rd(0, 4), rd(0, 5)),
                     3: lambda: (wr(i, 1), rd(0, 6), rd(0, 7)), 4: lambda: (wr(i, 2), rd(0, 8))}
        slot(n & 3, nxt, prv, holes)
    a("s_nop 1")
    pv(0, 3, 1, 1); pv(1, 3, 1, 1)
    a.stamp(11); a.stamp(NSTAMP + 3, True)
    a(f"s_mov_b64 {sr(sBAD, 2)}, 0")
    a(f"s_mov_b32 s{sT1}, {f32bits(2.0**100):#x}")
    for j in range(3): wr(7, j)
    if not opt("ein"):
        a(f"v_mov_b32 v{vT3}, 1")
        a("s_mov_b64 exec, 1")
        a(f"ds_add_u32 v{vCNT}, v{vT3}")
        a("s_mov_b64 exec, -1")
        echeck(6)
        for k in range(9): rd(0, k)
    else: cnt_arrive(a, vCNT, vT0)
    a(f"s_add_u32 s{sTGT}, s{sTGT}, 4")
    a(f"s_max_u32 s{sTGT}, s{sTGT}, 12")
    Z = 52
    for e in range(2):
        A = O(e); P = 128 + 8 * e
        if e == 1:
            cnt_arrive(a, vCNT, vT0, off=12)
            cnt_wait(a, vCNT, vT0, f"s{sTGT}")
            a.stamp(12)
            for k in range(9): rd(1, k)
        for s in range(3):
            if e == 1 or not opt("ein"): a(f"s_waitcnt lgkmcnt({6 - 3*s})")
            elif s == 0: a("s_waitcnt lgkmcnt(4)")
            for j in range(6): a(f"v_pk_add_f32 {vr(A+2*j, 2)}, {vr(A+2*j, 2)}, {vr(RB[e][s]+2*j, 2)}")
        a(f"v_mov_b32 v{vT0}, v{A+8}")
        a(f"v_mov_b32 v{vT2}, v{A+8}")
        a(f"v_pk_mul_f32 {vr(Z, 2)}, {vr(A, 2)}, 0 op_sel_hi:[1,0]")
        a(f"v_pk_fma_f32 {vr(Z, 2)}, {vr(A+2, 2)}, 0, {vr(Z, 2)} op_sel_hi:[1,0,1]")
        a(f"v_permlane32_swap_b32 v{vT0}, v{vT2}")
        a(f"v_rcp_f32 v{vT3}, v{vT2}")
        a(f"v_cmp_nlt_f32 vcc, v{vT2}, s{sT1}")
        for j in range(2, 6): a(f"v_pk_fma_f32 {vr(Z, 2)}, {vr(A+2*j, 2)}, 0, {vr(Z, 2)} op_sel_hi:[1,0,1]")
        a(f"s_or_b64 {sr(sBAD, 2)}, {sr(sBAD, 2)}, vcc")
        a(f"v_cmp_nlt_f32 vcc, {f32bits(2.0**-60):#x}, v{vT2}")
        for j in range(6): a(f"v_pk_mul_f32 {vr(A+2*j, 2)}, {vr(A+2*j, 2)}, {vr(vT2, 2)} op_sel:[0,1] op_sel_hi:[1,1]")
        a(f"s_or_b64 {sr(sBAD, 2)}, {sr(sBAD, 2)}, vcc")
        a(f"v_cmp_u_f32 vcc, v{Z}, v{Z+1}")
        for j in range(6): a(f"v_cvt_pk_bf16_f32 v{P+j}, v{A+2*j}, v{A+2*j+1}")
        a(f"s_or_b64 {sr(sBAD, 2)}, {sr(sBAD, 2)}, vcc")
        a(f"s_cmp_lg_u32 s{sMODE}, 0")
        a(f"s_cselect_b64 {sr(sBAD, 2)}, 0, {sr(sBAD, 2)}")
        for j in range(6): a(f"v_min_u32 v{P+j}, -2, v{P+j}")
        L = a.uid("NOST")
        a(f"s_cmp_lg_u64 {sr(sBAD, 2)}, 0")
        a(f"s_cbranch_scc1 {L}")
        stores(a, [f"buffer_store_dwordx4 {vr(P, 4)}, v{vKM}, {sr(SWS)}, s{sOm} offen offset:{1024*e}",
                   f"buffer_store_dwordx2 {vr(P+4, 2)}, v{vQT}, {sr(SWS)}, s{sOt} offen offset:{512*e}"])
        a.label(L)
    a(f"s_cmp_lg_u64 {sr(sBAD, 2)}, 0")
    a(f"s_cselect_b32 s{sBAD}, 0x10001, 1")
    cnt_arrive(a, vCNT, vT0, f"s{sBAD}")
    a.stamp(13)
    a("s_setprio 0")
    a(f"s_add_u32 s{sTGT}, s{sTGT}, 4")
    srd(a, SX, pX, 2048 * 1280)
    cnt_wait(a, vCNT, vT0, f"s{sTGT}")
    a(f"s_lshr_b32 s{sT0}, s{sT0}, 16")
    a(f"s_cmp_lg_u32 s{sMODE}, 0")
    a(f"s_cselect_b32 s{sT0}, 0, s{sT0}")
    a(f"s_cmp_lg_u32 s{sT0}, 0")
    a("s_cbranch_scc1 A_RESTART")
    a.stamp(14)
    if PROFILE and opt("iter"):
        a.ldump(0)
        a(f"s_lshl_b32 s100, s{sW}, 6")
        a("v_add_u32 v0, s100, v1")
    final_stage(a, -256, 16, 32, 20, 21, True, 0)
    final_stage(a, 256, 24, 80, 22, 23, "addr", 0)
    a(f"s_cmp_ge_u32 s{sW}, 6")
    a("s_cbranch_scc1 A_F1")
    final_stage(a, 256, 24, 80, 22, 23, "load", 0)
    a.label("A_F1")
    a("s_waitcnt vmcnt(0)")
    final_stage(a, -256, 16, 32, 20, 21, False, 2)
    final_stage(a, 256, 24, 80, 22, 23, False, 2)
    a.stamp(15)
    a("s_barrier")
    final_stage(a, -256, 16, 32, 20, 21, False, 1)
    final_stage(a, -256, 16, 32, 20, 21, False, 3)
    a("s_barrier")
    a.stamp(16)
    a(f"s_cmp_ge_u32 s{sW}, 6")
    a("s_cbranch_scc1 A_F2")
    final_stage(a, 256, 24, 80, 22, 23, False, 1)
    final_stage(a, 256, 24, 80, 22, 23, False, 3)
    a.label("A_F2")
    a.end()
    a.label("A_EWAIT")
    cnt_wait(a, vCNT, vT0, f"s{sKOK}", 0, off=12)
    a("s_branch A_EOK")
    a.label("A_OWAIT")
    cnt_wait(a, vCNT, vT0, 8, 1)
    a("s_branch A_OFREE")
    a.label("A_RESTART")
    a(f"s_mov_b32 s{sMODE}, 1")
    a("s_waitcnt vmcnt(0)")
    att_zero(a)
    a("s_branch A_RELOAD")
    a.label("A_TRUEMAX")
    for i in range(2, 8): ldq(i)
    M = S[2]
    for i in range(8): a(f"v_mov_b32 v{M+i}, 0xff800000")
    a(f"s_sub_u32 s{sT1}, s{sKV}, {KV_REC}")
    a(f"s_mov_b32 s{sCNT}, 16")
    TK, TT = S[1], S[1] + 4
    a.label("A_TM_LOOP")
    a(f"buffer_load_dwordx4 {vr(TK, 4)}, v{vKM}, {sr(SWS)}, s{sT1} offen sc1")
    a(f"buffer_load_dwordx2 {vr(TT, 2)}, v{avKT}, {sr(SWS)}, s{sT1} offen sc1")
    a("s_waitcnt vmcnt(0)")
    for i in range(8):
        a(f"v_mfma_f32_32x32x16_bf16 {vr(S[0], 16)}, {vr(TK, 4)}, {vr(QM(i), 4)}, 0")
        a(f"v_mfma_f32_32x32x8_bf16 {vr(S[0], 16)}, {vr(TT, 2)}, {vr(QT(i), 2)}, {vr(S[0], 16)}")
        a("s_nop 11")
        for j in range(0, 16, 2): a(f"v_max3_f32 v{M+i}, v{M+i}, v{S[0]+j}, v{S[0]+j+1}")
    a(f"s_add_u32 s{sT1}, s{sT1}, {KV_REC}")
    a(f"s_sub_u32 s{sCNT}, s{sCNT}, 1")
    a(f"s_cmp_lg_u32 s{sCNT}, 0")
    a("s_cbranch_scc1 A_TM_LOOP")
    for i in range(8):
        halfop(a, "v_max_f32", M + i, vT0)
        a(f"v_add_u32 v{vT1}, {L_OP - L_MREC}, v{vP+i//2}")
        a(f"ds_write_b32 v{vT1}, v{M+i} offset:{(i//2)*2048 + (i&1)*256}")
    cnt_arrive(a, vCNT, vT0)
    a(f"s_add_u32 s{sTGT}, s{sTGT}, 4")
    cnt_wait(a, vCNT, vT0, f"s{sTGT}")
    a(f"v_add_u32 v{vT1}, {L_OP - L_MREC}, v{vP}")
    for e in range(2):
        for s in range(1, 4): a(f"ds_read_b32 v{S[0]+4*e+s}, v{vT1} offset:{s*2048 + e*256}")
    a("s_waitcnt lgkmcnt(0)")
    for e in range(2):
        a(f"v_max3_f32 v{M+e}, v{M+e}, v{S[0]+4*e+1}, v{S[0]+4*e+2}")
        a(f"v_max_f32 v{M+e}, v{M+e}, v{S[0]+4*e+3}")
    a("s_mov_b32 exec_lo, 0")
    for e in range(2):
        a(f"v_sub_f32 v{M+e}, 0, v{M+e}")
        split3(a, M + e, vT0, vT1, QT(e), QT(e) + 1)
    a("s_branch A_HAVEMAX")

def gen_ffn(a):
    vL, vL16, vTR, vZ = 1, 2, 3, 7
    vA, vG, vPW, vPW2, X = 4, 5, 0, 6, 8
    vNV, vCNT, vT0, vT1 = 12, 13, 14, 15
    F = lambda t: 16 + 16 * t
    WO = lambda k: 96 + 20 * k
    HB = lambda u: 216 + 4 * u
    SL = lambda j: j & 3
    SWO = SDBG
    def dma_piece(p, slot, vd=fD):
        dma(a, p, vd, SA, sSO, sM0, L_RING + slot*20480, opt("fm0"))
    def trr(dst, slot, t, va=vTR):
        a(f"ds_read_b64_tr_b16 {vr(dst+4*t, 2)}, v{va} offset:{slot*20480 + 64*t}")
        a(f"ds_read_b64_tr_b16 {vr(dst+4*t+2, 2)}, v{va} offset:{slot*20480 + 64*t + 2560}")
    def hload(u):
        a(f"buffer_load_dwordx4 {vr(HB(u), 4)}, v{vL16}, {sr(SWS)}, s{sHO} offen sc1")
        if opt("xh2"):
            a(f"s_xor_b32 s{sT2}, s{sHO}, 0x40000")
            a(f"buffer_load_dwordx4 {vr(HB(u), 4)}, v{vL16}, {sr(SWS)}, s{sT2} offen sc1")
        a(f"s_add_u32 s{sHO}, s{sHO}, 1024")
    def stage(i, ks):
        row = 16 + 80 * (ks - 8) if ks >= 8 else 20 * ks
        a(f"s_add_u32 s{sT1}, s{sWOB}, {row*1280}")
        for p in range(5):
            dma(a, p, fD2 if ks >= 8 else fD, SWO, sT1, sM0, i*20480)
    def mf(t, w, h): a(f"v_mfma_f32_32x32x16_bf16 {vr(F(t), 16)}, {vr(w+4*t, 4)}, {vr(h, 4)}, {vr(F(t), 16)}")
    sWOB = sWBASE
    if not opt("pre1"): ffn_pre(a, vL, vT0, vT1)
    srd(a, SA, pW2, 1728 * 1280)
    a(f"s_mul_i32 s{sM0}, s{sQ}, 5120")
    a(f"s_mul_i32 s{sCOL}, s{sHG}, 320")
    a(f"s_mul_i32 s{sSO}, s{sQ}, {27*16*1280}")
    a(f"s_add_u32 s{sSO}, s{sSO}, s{sCOL}")
    a(f"s_add_u32 s{sSO}, s{sSO}, {NS*16*1280}")
    a(f"s_mov_b32 s{sSTEP}, {16*1280}")
    if opt("xpar"):
        a(f"s_and_b32 s{sT0}, s{sT}, 1")
        a(f"s_mul_i32 s{sT0}, s{sT0}, {16*1280}")
        a(f"s_add_u32 s{sSO}, s{sSO}, s{sT0}")
    def fill(js):
        for j in js:
            for p in range(5): dma_piece(p, j)
            a(f"s_add_u32 s{sSO}, s{sSO}, s{sSTEP}")
    NE = optv("ne", 1)
    fill(range(NS, min(4, NS + NE)))
    a("v_mov_b64 v[246:247], 0")
    a(f"v_lshlrev_b32 v{vL16}, 4, v{vL}")
    a(f"v_mov_b32 v{vCNT}, {L_CNT}")
    for t in range(5): zero16(a, F(t), 246)
    a(f"v_mov_b32 v{vTR}, v{fTR}")
    a(f"v_mov_b32 v{vA}, v{fA}")
    a(f"v_mov_b32 v{vG}, v{fG}")
    a(f"v_mov_b32 v{vPW}, v{fPW}")
    a(f"v_add_u32 v{vPW2}, 40960, v{fPW}")
    a(f"v_mov_b32 v{vNV}, s{sNON}")
    a(f"v_mov_b32 v245, 1")
    srd(a, SX, pX, 2048 * 1280)
    srd(a, SB, pOUT, 2048 * 1280)
    srd(a, SWO, pWO, 640 * 1280)
    a(f"s_mul_i32 s{sWOB}, s{sQ}, {160*1280}")
    a(f"s_add_u32 s{sWOB}, s{sWOB}, s{sCOL}")
    a(f"s_lshl_b32 s{sFC}, s{sT}, 2")
    a(f"s_add_u32 s{sFC}, s{sFC}, s{sQ}")
    a(f"s_mul_i32 s{sHO}, s{sQ}, {27*1024}")
    a(f"s_add_u32 s{sHO}, s{sHO}, s{sG}")
    a(f"s_add_u32 s{sHO}, s{sHO}, {20*2048}")
    check_fast(a, vT1, vT0)
    a.stamp(6)
    cnt_wait(a, vCNT, vT0, 4, 1, off=(8 if opt("nogatem") else 0))
    fill(range(min(4, NS + NE), 4))
    a.stamp(7)
    poll(a, fH, vT1, "0", 2)
    check_fast(a, vT1, vT0)
    a.stamp(9)
    if opt("th"):
        a(f"s_mul_i32 s{sT0}, s{sHG}, {54*128}")
        a(f"s_add_u32 s{sT0}, s{sT0}, s{sHO}")
        a(f"v_lshlrev_b32 v{vT0}, 7, v{vL}")
    for u in range(4): hload(u)
    if opt("th"):
        a("s_mov_b32 exec_hi, 0x3fffff")
        a(f"buffer_load_dword v{vT1}, v{vT0}, {sr(SWS)}, s{sT0} offen sc1")
        a("s_mov_b32 exec_hi, -1")
    for t in range(5): trr(WO(0), SL(0), t)
    a(f"s_mov_b32 s{sC}, 0")
    a("s_waitcnt vmcnt(0)")
    a.stamp(10); a.stamp(NSTAMP + 2, True)
    B0 = optv("b0", 1)
    a.raw(".p2align 3")
    a.label("F_LOOP")
    for u in range(4):
        if u == 3:
            a(f"s_cmp_eq_u32 s{sC}, 6")
            a("s_cbranch_scc1 F_DONE")
            a(f"s_cmp_lg_u32 s{sC}, 5")
            a("s_cbranch_scc1 F_NS")
            srd(a, SA, pWO, 640 * 1280)
            a(f"s_add_u32 s{sSO}, s{sWOB}, {20*1280}")
            a(f"s_mov_b32 s{sSTEP}, {40*1280}")
            a(f"s_mov_b32 s{sHO}, 0x40000000")
            a(f"buffer_load_dword v{fH}, v{fO}, {sr(SWS)}, 0 offen sc1")
            a.label("F_NS")
        a("s_waitcnt vmcnt(13) lgkmcnt(0)" if not opt("xhalf") else f"s_waitcnt vmcnt({11 if opt('xh2') else 8}) lgkmcnt(0)")
        for t in range(5):
            if opt("xdirect"):
                mf(t, WO(u), HB(u))
                a(f"buffer_load_dwordx4 {vr(WO(u)+4*t, 4)}, v{fD+t}, {sr(SA)}, s{sSO} offen")
                a("s_nop 7")
                a("s_nop 1")
                continue
            mf(t, WO(0), HB(u))
            if opt("xnotr"):
                dma_piece(t, SL(u))
                a("s_nop 5")
                continue
            if opt("xhalf") and (u & 1):
                a("s_sleep 1")
                continue
            if opt("dfirst"):
                dma_piece(t, SL(u))
                trr(WO(0), SL(u + 1), t)
            else:
                trr(WO(0), SL(u + 1), t)
                dma_piece(t, SL(u))
            if opt("jit") and t < 4: a("s_waitcnt lgkmcnt(0)")
        a(f"s_add_u32 s{sSO}, s{sSO}, s{sSTEP}")
        hload(u)
    a(f"s_add_u32 s{sC}, s{sC}, 1")
    a(f"s_sub_u32 s{sT0}, s{sC}, {B0 + 1}")
    a(f"s_cmp_ge_u32 s{sT0}, 3")
    a("s_cbranch_scc1 F_LOOP")
    a(f"s_cmp_eq_u32 s{sT0}, 1")
    a("s_cbranch_scc1 F_X1")
    a(f"s_cmp_eq_u32 s{sT0}, 2")
    a("s_cbranch_scc1 F_X2")
    a(f"s_lshl_b32 s{sT1}, s{sT}, 2")
    a(f"s_add_u32 s{sT1}, s{sT1}, s{sHG}")
    a(f"s_mul_i32 s{sT1}, s{sT1}, 10240")
    a(f"s_mul_i32 s{sT0}, s{sQ}, 3072")
    a(f"s_min_u32 s{sT0}, s{sT0}, 7168")
    a(f"s_add_u32 s{sT0}, s{sT0}, s{sT1}")
    a(f"s_add_u32 s{sT0}, s{sT0}, {WS_O}")
    stores(a, [f"buffer_store_dwordx4 {vr(fBL, 4)}, v{vL16}, {sr(SWS)}, s{sT0} offen offset:{1024*e}" for e in range(3)])
    for i in range(3): stage(i, 2 * i)
    a("s_branch F_LOOP")
    a.label("F_X1")
    for i in range(3):
        for t in range(5): trr(WO(1 + i), i, t, fSTG)
    a(f"s_lshl_b32 s{sT0}, s{sQ}, 2")
    a(f"s_add_u32 s{sT0}, s{sT0}, s{sF2}")
    a("s_mov_b64 exec, 1")
    stores(a, [f"buffer_store_dword v{vNV}, v{vZ}, {sr(SWS)}, s{sT0} offen offset:16"])
    a("s_mov_b64 exec, -1")
    a("s_waitcnt lgkmcnt(0)")
    stage(0, 6); stage(1, 9)
    a("s_branch F_LOOP")
    a.label("F_X2")
    for i in range(2):
        for t in range(5): trr(WO(4 + i), i, t, fSTG)
    cnt_wait(a, vCNT, vT0, 4, 1)
    a("s_mov_b64 exec, 1")
    a(f"ds_add_u32 v{vCNT}, v245")
    a("s_mov_b64 exec, -1")
    a("s_branch F_LOOP")
    a.label("F_DONE")
    a.stamp(11); a.stamp(NSTAMP + 3, True)
    a(f"s_add_u32 s{sSO}, s{sWOB}, {16*1280}")
    a("s_waitcnt lgkmcnt(0)")
    for t in range(5): dma_piece(t, SL(27), fD2)
    final_stage(a, 0, X, 0, vA, vG, "load", 0)
    a(f"v_cmp_ne_u32 vcc, s{sNON}, v{fH}")
    a("s_cbranch_vccz F_BOK")
    poll(a, fO, vT1, "0", 4)
    a.label("F_BOK")
    a(f"s_mul_i32 s{sHO}, s{sFC}, 10240")
    a(f"s_add_u32 s{sHO}, s{sHO}, {WS_O}")
    a(f"s_add_u32 s{sSO}, s{sHO}, 4096")
    a(f"s_add_u32 s{sT1}, s{sHO}, 8192")
    a.stamp(12)
    def oloads(ks):
        for k in ks:
            so = (sHO, sSO, sT1)[k // 4]
            a(f"buffer_load_dwordx4 {vr(HB(k), 4)}, v{vL16}, {sr(SWS)}, s{so} offen offset:{(k%4)*1024} sc1")
    def ocheck(ks):
        for n, k in enumerate(ks):
            a(f"s_waitcnt vmcnt({len(ks)-1-n})")
            if n == 0:
                a(f"v_max3_u32 v{vT0}, v{HB(k)}, v{HB(k)+1}, v{HB(k)+2}")
                a(f"v_max_u32 v{vT0}, v{vT0}, v{HB(k)+3}")
            else:
                a(f"v_max3_u32 v{vT0}, v{vT0}, v{HB(k)}, v{HB(k)+1}")
                a(f"v_max3_u32 v{vT0}, v{vT0}, v{HB(k)+2}, v{HB(k)+3}")
        a(f"v_cmp_eq_u32 vcc, -1, v{vT0}")
    even, rest = [0, 2, 4, 6], [1, 9, 3, 5, 7, 8]
    WR = [WO(0), WO(5), WO(1), WO(2), WO(3), WO(4)]
    cnt_wait(a, vCNT, vT0, 8, 1, off=12)
    a.stamp(13)
    a(f"s_mov_b32 s{sSPIN}, {SPIN}")
    a.label("F_O")
    oloads(even); ocheck(even)
    a("s_cbranch_vccz F_OD")
    a("s_sleep 1")
    spin_tail(a, "F_O")
    a.label("F_OD")
    a.stamp(8)
    for n in range(4):
        if n == optv("on", 1): oloads(rest)
        for t in range(5):
            mf(t, WO(1 + n), HB(even[n]))
            trr(WO(1 + n), SL(28 + n), t)
    cnt_wait(a, vCNT, vT0, 16, 1)
    a(f"s_cmp_lt_u32 s{sT0}, 0x10000")
    a("s_cbranch_scc1 F_NORE")
    cnt_wait(a, vCNT, vT0, 32, 8)
    a.label("F_NORE")
    a(f"s_mov_b32 s{sSPIN}, {SPIN}")
    a.label("F_O2")
    ocheck(rest)
    a("s_cbranch_vccz F_OD2")
    oloads(rest)
    spin_tail(a, "F_O2")
    a("s_waitcnt vmcnt(0)")
    a.label("F_OD2")
    a.stamp(14)
    def fwr(t, g):
        va, off = (vPW, t * 20480) if t < 2 else (vPW2, (t - 2) * 20480)
        a(f"ds_write_b128 v{va}, {vr(F(t)+4*g, 4)} offset:{off + 32*g}")
    for t in range(5):
        for m in range(6):
            mf(t, WR[m], HB(rest[m]))
            if t > 0:
                if t == 3 and m == 1:
                    a("s_waitcnt lgkmcnt(0)")
                    a("s_barrier")
                    a("s_nop 2")
                elif m < 2: a("s_nop 4")
                else: fwr(t - 1, m - 2)
    final_stage(a, 0, X, 176, vA, vG, False, 2)
    a("s_nop 3")
    a.stamp(15)
    for g in range(4): fwr(4, g)
    a("s_waitcnt lgkmcnt(0)")
    a("s_barrier")
    a.stamp(16)
    final_stage(a, 0, X, 176, vA, vG, False, 1)
    final_stage(a, 0, X, 176, vA, vG, False, 3)
    a.end()
```

```python
import sys, struct, math

NAME = "parallel_sum__grouped_kv_mqa__dense_activation_relu__prompt"
def opt(name): return ("--" + name) in sys.argv
def optv(name, d): return int(sys.argv[sys.argv.index("--" + name) + 1]) if opt(name) else d
G_TSTRIDE = 75 * 2048
WS_G = 0
WS_KV = 64 * G_TSTRIDE
KV_REC = 3072
WS_O = (WS_KV + 66 * KV_REC + 4095) // 4096 * 4096
WS_RS = WS_O + 64 * 40 * 1024
WS_CP = WS_RS + 2048 * 16
WS_F1 = WS_CP + 64 * 5120
WS_F2 = WS_F1 + 256 * 128
WS_XC = WS_F2 + 256 * 128
WS_PROF = WS_XC + 8 * 128
PROFILE = opt("prof")
NSTAMP = 18
WS_END = WS_PROF + (256 * 8 * 256 if PROFILE else 0)
OOB = 0x80000000
QSCALE = math.log2(math.e) / math.sqrt(20.0)
SPIN = 0x40000
NA = optv("na", 2)
NS = optv("ns", 3)
NFIRST = optv("nfirst", 1)


def f32bits(x): return struct.unpack("<I", struct.pack("<f", x))[0]

class Asm:
    def __init__(self): self.lines = []; self.n = 0; self.tail = []; self.p2 = False; self.ffn = False
    def __call__(self, s): self.lines.append("    " + s)
    def label(self, s): self.lines.append(s + ":")
    def raw(self, s): self.lines.append(s)
    def c(self, s): self.lines.append("    ; " + s)
    def uid(self, p): self.n += 1; return f"{p}_{self.n}"
    def stamp(self, i, cyc=False):
        if opt("spin") and not cyc and i == optv("spin", 0) and (i < 6 or not self.ffn or i == 17):
            L = self.uid("SPIN")
            self.label(L)
            self("s_memrealtime s[100:101]")
            self("s_waitcnt lgkmcnt(0)")
            self("s_sub_u32 s100, s100, s64")
            self(f"s_cmp_lt_u32 s100, 5000")
            self(f"s_cbranch_scc1 {L}")
        if opt("st") and self.p2 and i in (14, 15, 16): return
        if PROFILE:
            self(f"s_memtime s[100:101]" if cyc else "s_memrealtime s[100:101]")
            self("s_waitcnt lgkmcnt(0)")
            self(f"s_mov_b32 s{64+i}, s100")
    def lstamp(self, slane, v=14):
        if PROFILE and opt("iter"):
            self("s_memrealtime s[100:101]")
            self("s_waitcnt lgkmcnt(0)")
            self(f"s_mov_b32 m0, {slane}" if isinstance(slane, str) else f"s_mov_b32 m0, s{slane}")
            self(f"v_writelane_b32 v{v}, s100, m0")
    def ldump(self, v=14):
        if PROFILE and opt("iter"):
            self(f"s_lshl_b32 s100, s2, 3")
            self(f"s_add_u32 s100, s100, s{sW}")
            self(f"s_lshl_b32 s100, s100, 8")
            self(f"s_add_u32 s100, s100, {WS_PROF+128}")
            self("v_lshlrev_b32 v15, 2, v1")
            self("s_mov_b64 exec, 0xffff")
            self(f"buffer_store_dword v{v}, v15, s[{SWS}:{SWS+3}], s100 offen")
            self("s_mov_b64 exec, -1")
            self("s_waitcnt vmcnt(0)")
    def end(self):
        if opt("spin"): self.stamp(17)
        if PROFILE:
            self("s_waitcnt vmcnt(0)")
            self.stamp(NSTAMP - 1)
            self(f"s_lshl_b32 s3, s2, 3")
            self(f"s_add_u32 s3, s3, s{sW}")
            self(f"s_lshl_b32 s3, s3, 8")
            self(f"s_add_u32 s3, s3, {WS_PROF}")
            self("s_mov_b64 exec, 1")
            self("v_mov_b32 v1, 0")
            for i in range(NSTAMP + 4):
                self(f"v_mov_b32 v2, s{64+i}")
                self(f"buffer_store_dword v2, v1, s[{SWS}:{SWS+3}], s3 offen offset:{4*i}")
        self("s_endpgm")
    def text(self): return "\n".join(self.lines) + "\n"

def vr(b, n=1): return f"v{b}" if n == 1 else f"v[{b}:{b+n-1}]"
def sr(b, n=4): return f"s{b}" if n == 1 else f"s[{b}:{b+n-1}]"
def srd(a, d, p, size):
    a(f"s_mov_b32 s{d}, s{p}")
    a(f"s_mov_b32 s{d+1}, s{p+1}")
    a(f"s_mov_b32 s{d+2}, {size}")
    a(f"s_mov_b32 s{d+3}, 0x00020000")
def csel(a, d, t, f):
    a(f"s_mov_b32 s{d}, {f}")
    a(f"s_cmov_b32 s{d}, {t}")
def split3(a, src, t0, t1, d0, d1):
    a(f"v_and_b32 v{t0}, 0xffff0000, v{src}")
    a(f"v_sub_f32 v{t1}, v{src}, v{t0}")
    a(f"v_lshrrev_b32 v{d0}, 16, v{src}")
    a(f"v_and_b32 v{t0}, 0xffff0000, v{t1}")
    a(f"v_or_b32 v{d0}, v{d0}, v{t0}")
    a(f"v_sub_f32 v{t1}, v{t1}, v{t0}")
    a(f"v_lshrrev_b32 v{d1}, 16, v{t1}")
def halfop(a, op, r, t):
    a(f"v_mov_b32 v{t}, v{r}")
    a("s_nop 1")
    a(f"v_permlane32_swap_b32 v{t}, v{r}")
    a(f"{op} v{r}, v{r}, v{t}")
def umax(a, dst, regs):
    regs = list(regs)
    a(f"v_max3_u32 v{dst}, v{regs[0]}, v{regs[1]}, v{regs[2]}")
    r = regs[3:]
    while len(r) >= 2:
        a(f"v_max3_u32 v{dst}, v{dst}, v{r[0]}, v{r[1]}"); r = r[2:]
    if r: a(f"v_max_u32 v{dst}, v{dst}, v{r[0]}")

SWS, SA, SB, SX, SDBG = 4, 8, 12, 16, 20
sSI = 3
sW, sNON = 24, 25
sRB, sCG, sTT = 26, 27, 28
sQ = sTT
sT0, sT1, sT2 = 29, 30, 31
pX, pWQ, pWK, pWV, pWO, pW1, pW2, pOUT, pDBG, pWS = 32, 34, 36, 38, 40, 44, 46, 48, 50, 52
sWSTEP, sSO, sSTEP, sM0, sC, sDEL, sCC, sOUT, sFL, sQS = range(54, 64)
sT, sHG, sG, sOB = 86, 87, 92, 93
sF2, sWBASE, sT3, sFAST, sST, sSPIN = 94, 95, 96, 97, 98, 99
sXW, sLO = 53, 52
sPB = 51
sSOW, sM0W = 90, 91
sPm, sBAD, sPt = 34, 38, 42
sOm, sOt, sKV, sTGT = 48, 49, 0, 1
sMODE, sCNT, sFQ, sKOK = 8, 9, 88, 89
sCOL, sHO, sFC = 54, 59, 60

def spin_tail(a, L):
    a(f"s_sub_u32 s{sSPIN}, s{sSPIN}, 1")
    a(f"s_cbranch_scc0 {L}")

def poll(a, vaddr, vtmp, soff, sleep=1):
    L, D = a.uid("POLL"), a.uid("POLLED")
    a(f"s_mov_b32 s{sSPIN}, {SPIN}")
    a.label(L)
    a(f"buffer_load_dword v{vtmp}, v{vaddr}, {sr(SWS)}, {soff} offen sc1")
    a("s_waitcnt vmcnt(0)")
    a(f"v_cmp_ne_u32 vcc, s{sNON}, v{vtmp}")
    a(f"s_cbranch_vccz {D}")
    if sleep: a(f"s_sleep {sleep}")
    spin_tail(a, L)
    a.label(D)

def stores(a, lines):
    L, D = a.uid("SLOW"), a.uid("STD")
    a(f"s_cmp_eq_u32 s{sFAST}, 0")
    a(f"s_cbranch_scc1 {L}")
    fl = {"nt": " nt", "sc0": " sc0", "sc0nt": " sc0 nt"}.get(sys.argv[sys.argv.index("--sf") + 1] if opt("sf") else "", "")
    for l in lines: a(l + (fl if l.startswith("buffer_store_dwordx4") else ""))
    a.label(D)
    a.tail.append((L, [l + (" sc1" if l.startswith("buffer_store") else "") for l in lines], D))

def xcc_word(a):
    a(f"s_getreg_b32 s{sXW}, hwreg(HW_REG_XCC_ID, 0, 4)")
    a(f"s_lshl_b32 s{sXW}, s{sXW}, 1")
    a(f"s_xor_b32 s{sXW}, s{sXW}, s{sNON}")

def check_fast(a, vaddr, vtmp):
    L = a.uid("CF")
    a(f"s_cmp_lg_u32 s{sFAST}, 0")
    a(f"s_cbranch_scc1 {L}")
    a(f"s_and_b32 s{sT0}, s2, 7")
    a(f"s_lshl_b32 s{sT0}, s{sT0}, 7")
    a(f"s_add_u32 s{sT0}, s{sT0}, {WS_XC}")
    a(f"v_and_b32 v{vaddr}, 31, v1")
    a(f"v_lshlrev_b32 v{vaddr}, 2, v{vaddr}")
    a(f"buffer_load_dword v{vtmp}, v{vaddr}, {sr(SWS)}, s{sT0} offen sc1")
    a("s_waitcnt vmcnt(0)")
    a(f"v_cmp_ne_u32 vcc, s{sXW}, v{vtmp}")
    a("s_cmp_eq_u64 vcc, 0")
    a(f"s_cselect_b32 s{sFAST}, {0 if opt('slow') else 1}, 0")
    a.label(L)

K1_SLOT = 36864
K1_XOFF = 20480
K1_CS = 147456
K1_ST = K1_CS + 2048
L_VT = 147456
L_OP = 0
L_RING = 73728
L_FP = L_RING - 20480
L_MREC = L_RING + 81920
L_CNT = L_MREC + 2048
LDS_BYTES = L_CNT + 64
fD, fD2, fH, fO, fSTG, fBL, fTR, fA, fG, fPW = 232, 237, 242, 243, 244, 248, 252, 253, 254, 255

aS = [16, 32, 48, 64]
aO = lambda i: 80 + 12 * i
aQM = lambda i: 180 + 4 * i
aQT = lambda i: 212 + 2 * i
aKM = [228, 242]; aKT = [232, 246]; aV0 = [234, 248]; aV1 = [238, 252]
avV, avKT = 14, 15

def ldkm(a, b, va): a(f"buffer_load_dwordx4 {vr(aKM[b], 4)}, v{va}, {sr(SWS)}, s{sKV} offen sc1")
def ldkt(a, b): a(f"buffer_load_dwordx2 {vr(aKT[b], 2)}, v{avKT}, {sr(SWS)}, s{sKV} offen sc1")
def ldv(a, u, b): a(f"buffer_load_dwordx4 {vr((aV0, aV1)[u][b], 4)}, v{avV}, {sr(SWS)}, s{sKV} offen" + (" offset:768" if u else "") + " sc1")
def kv_first(a, va):
    a(f"s_mul_i32 s{sKV}, s{sQ}, {16*KV_REC}")
    a(f"s_add_u32 s{sKV}, s{sKV}, {WS_KV}")
    ldkm(a, 0, va); ldkt(a, 0); ldv(a, 0, 0); ldv(a, 1, 0)
    a(f"s_add_u32 s{sKV}, s{sKV}, {KV_REC}")
    ldkm(a, 1, va); ldkt(a, 1)
def zero16(a, r, z):
    a(f"v_mfma_f32_32x32x8_bf16 {vr(r, 16)}, {vr(z, 2)}, {vr(z, 2)}, 0")
def att_zero(a):
    z = aV0[1]
    for r in range(z, z + 8, 2): a(f"v_mov_b64 {vr(r, 2)}, 0")
    for r in range(176, 180, 2): a(f"v_mov_b64 {vr(r, 2)}, 0")
    for r in range(aS[3], 176, 16): zero16(a, r, z)

def dma(a, p, vbase, srd_, soff, sm0, base, force=False):
    if p in (0, 4) or force:
        a(f"s_add_u32 m0, s{sm0}, {base + (4096 if p == 4 else 0)}")
        a("s_nop 0")
    a(f"buffer_load_dwordx4 v{vbase+p}, {sr(srd_)}, s{soff} offen" + (f" offset:{1024*p}" if 0 < p < 4 else "") + " lds")

def row_offsets(a, dst, vL, t0, t1, extra, ps=range(5)):
    for p in ps:
        a(f"v_add_u32 v{t0}, {64*p}, v{vL}")
        a(f"v_mul_u32_u24 v{t1}, 3277, v{t0}")
        a(f"v_lshrrev_b32 v{t1}, 16, v{t1}")
        a(f"v_lshlrev_b32 v{t0}, 4, v{t0 if p == 4 else vL}")
        a(f"v_mad_u32_u24 v{dst+p}, v{t1}, {extra}, v{t0}")

def item_addr(a, base_item, vA, vG, t):
    if base_item: a(f"v_add_u32 v{vA}, {base_item}, v0")
    else: a(f"v_mov_b32 v{vA}, v0")
    a(f"v_lshrrev_b32 v{t}, 7, v{vA}")
    a(f"v_mul_u32_u24 v{t+1}, 20480, v{t}")
    a(f"v_lshlrev_b32 v{vG}, 6, v{t}")
    a(f"v_and_b32 v{t}, 3, v{vA}")
    a(f"v_lshl_add_u32 v{t+1}, v{t}, 5, v{t+1}")
    a(f"v_lshl_add_u32 v{vG}, v{t}, 4, v{vG}")
    a(f"v_bfe_u32 v{t}, v{vA}, 2, 5")
    a(f"v_mul_u32_u24 v{vA}, 144, v{t}")
    a(f"v_mul_u32_u24 v{t}, 1280, v{t}")
    a(f"v_add_u32 v{vG}, v{vG}, v{t}")
    a(f"v_add3_u32 v{vA}, v{vA}, v{t+1}, s100")

def flag_words(a, dst, vL):
    a(f"s_and_b32 s{sT0}, s{sT}, 2")
    a(f"s_and_b32 s{sT1}, s{sT}, 3")
    a(f"s_add_u32 s{sT1}, s{sT1}, 4")
    a(f"v_bfe_u32 v{dst}, v{vL}, 4, 1")
    a(f"v_add_u32 v{dst}, s{sT0}, v{dst}")
    a("s_mov_b32 exec_lo, 0")
    a(f"v_mov_b32 v{dst}, s{sT1}")
    a("s_mov_b32 exec_lo, -1")
    a(f"v_lshlrev_b32 v{dst}, 2, v{dst}")

def ffn_pre(a, vL, t0, t1):
    a("s_movk_i32 s100, 960")
    row_offsets(a, fD, vL, t0, t1, "s100")
    for p in range(5):
        a(f"v_add_u32 v{t0}, {64*p}, v{vL}")
        a(f"v_mul_u32_u24 v{t0}, 3277, v{t0}")
        a(f"v_lshrrev_b32 v{t0}, 18, v{t0}")
        a(f"v_mul_u32_u24 v{t0}, {16*1280}, v{t0}")
        a(f"v_add_u32 v{fD2+p}, v{fD+p}, v{t0}")
    a(f"v_lshrrev_b32 v{t0}, 5, v{vL}")
    a(f"v_bfe_u32 v{t1}, v{vL}, 2, 2")
    a(f"v_lshl_add_u32 v{t0}, v{t0}, 2, v{t1}")
    a(f"v_mul_u32_u24 v{fSTG}, 320, v{t0}")
    a(f"v_bfe_u32 v{t0}, v{vL}, 4, 1")
    a(f"v_lshl_add_u32 v{fSTG}, v{t0}, 5, v{fSTG}")
    a(f"v_and_b32 v{t0}, 3, v{vL}")
    a(f"v_lshl_add_u32 v{fSTG}, v{t0}, 3, v{fSTG}")
    a(f"s_mul_i32 s{sT1}, s{sQ}, 5120")
    a(f"v_add_u32 v{fSTG}, s{sT1}, v{fSTG}")
    a(f"v_add_u32 v{fTR}, {L_RING}, v{fSTG}")
    a(f"v_mov_b64 {vr(fBL, 2)}, -1")
    a(f"v_mov_b64 {vr(fBL+2, 2)}, -1")
    a(f"s_mul_i32 s{sT0}, s{sQ}, {27*26}")
    a(f"s_lshr_b32 s{sT0}, s{sT0}, 8")
    a(f"s_add_u32 s{sT0}, s{sT0}, 4")
    a(f"v_add_u32 v{fH}, s{sT0}, v{t0}")
    a(f"v_min_u32 v{fH}, 14, v{fH}")
    a(f"s_lshr_b32 s{sT2}, s{sT}, 2")
    a(f"s_lshl_b32 s{sT2}, s{sT2}, 11")
    a(f"s_add_u32 s{sT2}, s{sT2}, {WS_F1 + 32}")
    a(f"v_lshl_add_u32 v{fH}, v{fH}, 7, s{sT2}")
    flag_words(a, t1, vL)
    a(f"v_add_u32 v{fH}, v{fH}, v{t1}")
    a(f"s_lshl_b32 s{sT2}, s{sT}, 2")
    a(f"s_add_u32 s{sT2}, s{sT2}, s{sQ}")
    a(f"s_lshl_b32 s{sT2}, s{sT2}, 7")
    a(f"s_add_u32 s{sT2}, s{sT2}, {WS_F2 + 16}")
    a(f"v_lshl_add_u32 v{fO}, v{t0}, 2, s{sT2}")
    a(f"s_mov_b32 s100, {L_FP}")
    item_addr(a, 256, fA, fG, t0)
    a(f"v_and_b32 v{t0}, 31, v{vL}")
    a(f"v_mul_u32_u24 v{t0}, 144, v{t0}")
    a(f"v_lshrrev_b32 v{t1}, 5, v{vL}")
    a(f"v_lshl_add_u32 v{t0}, v{t1}, 4, v{t0}")
    a(f"s_mul_i32 s{sT1}, s{sQ}, 5120")
    a(f"s_add_u32 s{sT1}, s{sT1}, {L_FP}")
    a(f"v_add_u32 v{fPW}, s{sT1}, v{t0}")

def att_scalars(a):
    a(f"s_mul_i32 s{sT2}, s{sHG}, 10240")
    a(f"s_add_u32 s{sT2}, s{sT2}, s{sG}")
    for j in range(4):
        a(f"s_add_u32 s{sT0}, s{sQ}, {j}")
        a(f"s_and_b32 s{sT0}, s{sT0}, 3")
        a(f"s_lshl_b32 s{sPm+j}, s{sT0}, 11")
        a(f"s_add_u32 s{sPm+j}, s{sPm+j}, s{sT2}")
        a(f"s_lshr_b32 s{sT1}, s{sT0}, 1")
        a(f"s_lshl_b32 s{sT1}, s{sT1}, 10")
        a(f"s_and_b32 s{sT0}, s{sT0}, 1")
        a(f"s_lshl_b32 s{sT0}, s{sT0}, 3")
        a(f"s_add_u32 s{sT1}, s{sT1}, s{sT0}")
        a(f"s_add_u32 s{sT1}, s{sT1}, s{sT2}")
        a(f"s_add_u32 s{sPt+j}, s{sT1}, 8192")
    a(f"s_mul_i32 s{sT2}, s{sT}, 40960")
    a(f"s_add_u32 s{sT2}, s{sT2}, {WS_O}")
    a(f"s_sub_u32 s{sT2}, s{sT2}, s{sG}")
    a(f"s_add_u32 s{sOm}, s{sPm}, s{sT2}")
    a(f"s_add_u32 s{sOt}, s{sPt}, s{sT2}")
    a(f"s_mov_b32 s{sTGT}, 0")
    a(f"s_lshr_b32 s{sT0}, s{sT}, 2")
    a(f"s_lshl_b32 s{sT0}, s{sT0}, 4")
    a(f"s_add_u32 s{sT0}, s{sT0}, s{sHG}")
    a(f"s_lshl_b32 s{sT0}, s{sT0}, 7")
    a(f"s_add_u32 s{sFQ}, s{sT0}, {WS_F1 + 32}")

def gen_p1(a):
    vL, vN, vH, vT0, vT1, vT2, vZ = 1, 2, 3, 4, 5, 6, 7
    vX, vD = 8, 16
    vNON, vROW, vFL, vFV = 21, 22, 23, 22
    vG16, vC4 = 26, 27
    vDW = 56
    FB = [28, 32]
    a(f"s_cmp_ge_u32 s2, 256")
    a("s_cbranch_scc1 L_END")
    a("s_load_dwordx16 s[32:47], s[0:1], 0")
    a("s_load_dwordx4 s[48:51], s[0:1], 64")
    a("s_load_dwordx2 s[52:53], s[0:1], 80")
    a("s_memrealtime s[100:101]")
    if not opt("nocp"):
        NL = optv("cp", 2)
        a("s_getpc_b64 s[4:5]")
        a("s_lshr_b32 s6, s2, 3")
        a(f"s_and_b32 s6, s6, {32 // NL - 1}")
        a(f"s_lshl_b32 s6, s6, {10 + NL.bit_length() - 1}")
        a("s_add_u32 s4, s4, s6")
        a("s_addc_u32 s5, s5, 0")
        a(f"v_lshlrev_b32 v60, {NL.bit_length()}, v0")
        a(f"v_and_b32 v60, {(1024 * NL - 128):#x}, v60")
        a("v_mov_b32 v63, s5")
        a("v_add_co_u32 v62, vcc, s4, v60")
        a("s_nop 1")
        a("v_addc_co_u32 v63, vcc, 0, v63, vcc")
        a("global_load_dword v61, v[62:63], off")
    a(f"v_lshrrev_b32 v{vT0}, 6, v0")
    a(f"v_and_b32 v{vL}, 63, v0")
    a(f"v_readfirstlane_b32 s{sW}, v{vT0}")
    a(f"s_and_b32 s{sT1}, s2, 7")
    a(f"s_bfe_u32 s{sSI}, s2, 0x10003")
    a(f"s_lshl_b32 s{sCC}, s{sT1}, 1")
    a(f"s_add_u32 s{sRB}, s{sCC}, s{sSI}")
    a(f"s_lshr_b32 s{sCG}, s2, 4")
    a(f"s_sub_u32 s{sT0}, s{sRB}, 9")
    a(f"s_cmp_ge_u32 s{sRB}, 10")
    a(f"s_cselect_b32 s{sCC}, s{sT0}, s{sRB}")
    a(f"s_mov_b32 s{sST}, s{sCC}")
    a(f"s_and_b32 s{sTT}, s{sW}, 3")
    a(f"s_lshl_b32 s{sT0}, s{sRB}, 2")
    a(f"s_add_u32 s{sT3}, s{sT0}, s{sTT}")
    a(f"s_cmp_lt_u32 s{sW}, 4")
    a("s_cbranch_scc1 P1_A")

    def xpiece(p):
        dma(a, p, vD, SX, sSO, sM0, 0)
    def wpiece(p, kv=False):
        if kv:
            a(f"s_add_u32 m0, s{sM0W}, {4096*p}")
            a("s_nop 0")
            a(f"buffer_load_dwordx4 v{vDW}, {sr(SA if p == 0 else SB)}, s{sSOW} offen lds")
        else: dma(a, p, vDW, SA, sSOW, sM0W, 0)
    def next_chunk(x, w, dm0):
        a(f"s_add_u32 s{sCC}, s{sCC}, 1")
        a(f"s_cmp_eq_u32 s{sCC}, 10")
        a(f"s_cselect_b32 s{sCC}, 0, s{sCC}")
        if x:
            a(f"s_lshl_b32 s{sSO}, s{sCC}, 7")
            a(f"s_add_u32 s{sM0}, s{sM0}, {dm0}")
        if w:
            a(f"s_mul_i32 s{sSOW}, s{sCC}, s{sWSTEP}")
            a(f"s_add_u32 s{sSOW}, s{sSOW}, s{sWBASE}")
            a(f"s_add_u32 s{sM0W}, s{sM0W}, {dm0}")
    def w_setup(wait):
        a(f"s_sub_u32 s{sT0}, s{sCG}, 4")
        a(f"s_cmp_lt_u32 s{sCG}, 4")
        csel(a, sT2, 1280, 3456)
        a(f"s_cselect_b32 s{sT0}, s{sCG}, s{sT0}")
        if opt("xw"): a(f"s_and_b32 s{sT0}, s{sT0}, {optv('xw', 14)}")
        a(f"s_mul_i32 s{sT0}, s{sT0}, 320")
        a(f"s_lshl_b32 s{sWBASE}, s{sTT}, 4")
        a(f"s_mul_i32 s{sWBASE}, s{sWBASE}, s{sT2}")
        a(f"s_add_u32 s{sWBASE}, s{sWBASE}, s{sT0}")
        a(f"s_lshl_b32 s{sWSTEP}, s{sT2}, 6")
        a(f"s_sub_u32 s{sT2}, s{sT2}, 320")
        row_offsets(a, vDW, vL, vT0, vT1, f"s{sT2}")
        a(f"s_mul_i32 s{sSOW}, s{sCC}, s{sWSTEP}")
        a(f"s_add_u32 s{sSOW}, s{sSOW}, s{sWBASE}")
        a(f"s_mul_i32 s{sM0W}, s{sTT}, 5120")
        a(f"s_cmp_lt_u32 s{sCG}, 4")
        if wait: a("s_waitcnt lgkmcnt(0)")
        a(f"s_cselect_b32 s{SA}, s{pWQ}, s{pW1}")
        a(f"s_cselect_b32 s{SA+1}, s{pWQ+1}, s{pW1+1}")
        csel(a, SA + 2, 640 * 640 * 2, 640 * 1728 * 2)
        a(f"s_mov_b32 s{SA+3}, 0x00020000")
    def st01():
        if PROFILE or opt("spin"): a("s_mov_b32 s64, s100")
        a.stamp(1)

    RW = 192
    a(f"s_lshl_b32 s{sT0}, s{sT3}, 5")
    a(f"v_lshrrev_b32 v{vT0}, 3, v{vL}")
    a(f"v_add_u32 v{vT0}, s{sT0}, v{vT0}")
    a(f"v_mul_u32_u24 v{vT0}, 1280, v{vT0}")
    a(f"v_lshrrev_b32 v{vT1}, 4, v{vL}")
    a(f"v_and_b32 v{vT2}, 7, v{vL}")
    a(f"v_xor_b32 v{vT1}, v{vT1}, v{vT2}")
    a(f"v_lshl_add_u32 v{vD}, v{vT1}, 4, v{vT0}")
    a(f"v_xor_b32 v{vT1}, 4, v{vT1}")
    a(f"v_lshl_add_u32 v{vD+1}, v{vT1}, 4, v{vT0}")
    a(f"v_add_u32 v{vD+1}, {8*1280 - 1024}, v{vD+1}")
    a(f"v_add_u32 v{vD+2}, {16*1280 - 2048}, v{vD}")
    a(f"v_add_u32 v{vD+3}, {16*1280 - 2048}, v{vD+1}")
    a(f"s_lshl_b32 s{sSO}, s{sCC}, 7")
    a(f"s_lshl_b32 s{sM0}, s{sTT}, 12")
    a(f"s_add_u32 s{sM0}, s{sM0}, {K1_XOFF}")
    a("s_waitcnt lgkmcnt(0)")
    srd(a, SX, pX, 2048 * 1280)
    st01()
    for p in range(4): xpiece(p)
    a("s_barrier")
    a(f"s_cmp_eq_u32 s{sCG}, 15")
    a("s_cbranch_scc1 P1_KB")
    a("s_branch P1_GB")
    a.label("P1_A")
    a(f"s_cmp_eq_u32 s{sCG}, 15")
    a("s_cbranch_scc1 P1_KA0")
    w_setup(True)
    st01()
    for p in range(5): wpiece(p)
    a("s_barrier")

    def tr_addr(dst, tile):
        a(f"s_cmp_lt_u32 s{sCG}, 4")
        if tile == 4:
            a(f"s_cselect_b32 s{sT0}, 32, 0x100")
            a(f"s_cselect_b32 s{sT1}, 160, 32")
            a(f"s_cselect_b32 s{sT2}, 40, 8")
            a(f"v_mad_u32_u24 v{dst}, v{vC4}, s{sT2}, v{vROW}")
        else:
            a(f"s_cselect_b32 s{sT1}, 40, 32")
            if isinstance(tile, tuple):
                a(f"s_lshl_b32 s{sT0}, s{sT1}, 1")
                a(f"s_mul_i32 s{sT0}, s{sT0}, s{tile[1]}")
            else:
                a(f"s_mul_i32 s{sT0}, s{sT1}, {2*tile}")
            a(f"v_lshl_add_u32 v{dst}, v{vC4}, 3, v{vROW}")
        a(f"v_mad_u32_u24 v{dst}, v{vG16}, s{sT1}, v{dst}")
        a(f"v_add_u32 v{dst}, s{sT0}, v{dst}")

    def body(tag, role, kv):
        A_, B_ = role == "A", role == "B"
        nt = 1 if (kv or B_) else 4
        tiles = [0] if kv else ([0, 1, 2, 3] if A_ else [4])
        sstr, rstr = (1024, 40) if kv else (5120, 320)
        vTR = 16 if A_ else 12
        vSA = 13
        FA = [128, 144] if A_ else [36, 40]
        ACC, P = (64, 160) if A_ else (180, 212)
        GAT = 228
        ST, NM, CSR = (36, 40, 44) if A_ else (44, 48, 50)
        ONE, PUB = 24, 52
        nxt = "P2_FFN" if A_ else "P2_ATT"
        def m4(d, x, y):
            a(f"v_mfma_f32_4x4x4_16b_bf16 {vr(d, 4)}, {vr(x, 2)}, {vr(y, 2)}, {vr(d, 4)}")
        def get_nonce(publish):
            L, D = a.uid("NON"), a.uid("NOND")
            a(f"s_mov_b32 s{sSPIN}, {SPIN}")
            a.label(L)
            a(f"v_readfirstlane_b32 s{sNON}, v{vNON}")
            a(f"s_cmp_lg_u32 s{sNON}, 0")
            a(f"s_cbranch_scc1 {D}")
            a(f"buffer_load_dword v{vNON}, v{vZ}, {sr(SDBG)}, 0 offen sc1")
            a("s_waitcnt vmcnt(0)")
            spin_tail(a, L)
            a.label(D)
            xcc_word(a)
            if publish:
                L = a.uid("XW")
                a(f"s_cmp_lg_u32 s{sW}, 0")
                a(f"s_cbranch_scc1 {L}")
                a(f"s_and_b32 s{sT0}, s2, 7")
                a(f"s_lshl_b32 s{sT0}, s{sT0}, 5")
                a(f"s_lshr_b32 s{sT1}, s2, 3")
                a(f"s_add_u32 s{sT0}, s{sT0}, s{sT1}")
                a(f"s_lshl_b32 s{sT0}, s{sT0}, 2")
                a(f"s_add_u32 s{sT0}, s{sT0}, {WS_XC}")
                a(f"v_mov_b32 v{vT1}, s{sXW}")
                a("s_mov_b64 exec, 1")
                a(f"buffer_store_dword v{vT1}, v{vZ}, {sr(SWS)}, s{sT0} offen sc1")
                a("s_mov_b64 exec, -1")
                a.label(L)
        def row_stats(part=None):
            for p, f in enumerate((rs0, rs1, rs2, rs3)):
                if part is None or part == p: f()
        SU, SQ, R = RW + 10, RW + 11, RW + 12
        def rs0():
            a(f"v_mov_b64 {vr(SU, 2)}, 0")
            for j in range(10):
                a(f"v_dot2c_f32_bf16 v{SU}, v{ONE}, v{RW+j}")
                a(f"v_dot2c_f32_bf16 v{SQ}, v{RW+j}, v{RW+j}")
            a("s_nop 2")
        def rs1():
            for m in ("row_shr:1", "row_shr:2", "row_shr:4", "row_shr:8"):
                a(f"v_add_f32_dpp v{SU}, v{SU}, v{SU} {m} row_mask:0xf bank_mask:0xf bound_ctrl:0")
                a(f"v_add_f32_dpp v{SQ}, v{SQ}, v{SQ} {m} row_mask:0xf bank_mask:0xf bound_ctrl:0")
                a("s_nop 0")
            a(f"v_add_f32_dpp v{SU}, v{SU}, v{SU} row_bcast:15 row_mask:0xa bank_mask:0xf")
            a(f"v_add_f32_dpp v{SQ}, v{SQ}, v{SQ} row_bcast:15 row_mask:0xa bank_mask:0xf")
        def rs2():
            a(f"v_mul_f32 v{SU}, {f32bits(1.0/640):#x}, v{SU}")
            a(f"v_mul_f32 v{SQ}, {f32bits(1.0/640):#x}, v{SQ}")
            a(f"v_fma_f32 v{SQ}, -v{SU}, v{SU}, v{SQ}")
            a(f"v_max_f32 v{SQ}, 0, v{SQ}")
            a(f"v_cvt_pk_bf16_f32 v{R}, -v{SU}, -v{SU}")
            a(f"v_cvt_pk_bf16_f32 v{SQ}, v{SQ}, v{SQ}")
            a(f"v_and_b32 v{SQ}, 0xffff0000, v{SQ}")
            a(f"v_add_f32 v{SQ}, {f32bits(1e-5):#x}, v{SQ}")
            a(f"v_cvt_pk_bf16_f32 v{SQ}, v{SQ}, v{SQ}")
            a(f"v_and_b32 v{SQ}, 0xffff0000, v{SQ}")
            a(f"v_sqrt_f32 v{SQ}, v{SQ}")
            a("s_nop 0")
            a(f"v_cvt_pk_bf16_f32 v{SQ}, v{SQ}, v{SQ}")
            a(f"v_and_b32 v{SQ}, 0xffff0000, v{SQ}")
            a(f"v_rcp_f32 v{R+2}, v{SQ}")
        def rs3():
            a(f"v_mov_b32 v{R+1}, v{vNON}")
            a(f"v_mov_b32 v{R+3}, v{vNON}")
            a(f"v_lshlrev_b32 v{vT1}, 4, v{vH}")
            a(f"s_lshl_b32 s{sT0}, s{sSTEP}, 5")
            a(f"s_add_u32 s{sT0}, s{sT0}, {WS_RS}")
            a("s_mov_b32 exec_lo, 0x80000000")
            a("s_mov_b32 exec_hi, 0x80000000")
            a(f"buffer_store_dwordx4 {vr(R, 4)}, v{vT1}, {sr(SWS)}, s{sT0} offen sc1")
            a("s_mov_b64 exec, -1")
        def row_load(dst):
            a(f"s_lshl_b32 s{sT0}, s{sT3}, 9")
            a(f"s_add_u32 s{sT0}, s{sT0}, {WS_RS}")
            a(f"v_lshlrev_b32 v{vT0}, 4, v{vN}")
            a(f"buffer_load_dwordx4 {vr(dst, 4)}, v{vT0}, {sr(SWS)}, s{sT0} offen sc1")
        def tag_check(regs, again, ok):
            a(f"v_xor_b32 v{vT1}, s{sNON}, v{regs[0]}")
            for r in regs[1:]: a(f"v_bitop3_b32 v{vT1}, v{r}, s{sNON}, v{vT1} bitop3:0xbe")
            a(f"v_cmp_ne_u32 vcc, 0, v{vT1}")
            a(f"s_cbranch_vccz {ok}")
            a("s_sleep 2")
            spin_tail(a, again)
            a.label(ok)
        def next_slot():
            a(f"s_and_b32 s{sT0}, s{sC}, 3")
            csel(a, sT1, K1_SLOT, -3*K1_SLOT)
            a(f"s_cmp_eq_u32 s{sT0}, 3")
            csel(a, sDEL, -3*K1_SLOT, K1_SLOT)
            for s in range(4): a(f"v_add_u32 v{vX+s}, s{sDEL}, v{vX+s}")
            for i in range(nt): a(f"v_add_u32 v{vTR+i}, s{sDEL}, v{vTR+i}")
        if A_:
            srd(a, SX, pX, 2048 * 1280)
            a(f"s_lshl_b32 s{sT0}, s{sRB}, 4")
            a(f"s_add_u32 s{sT0}, s{sT0}, s{sCG}")
            a(f"s_lshl_b32 s{sT0}, s{sT0}, 2")
            a(f"s_add_u32 s{sSTEP}, s{sT0}, s{sTT}")
            a(f"s_mul_i32 s{sT0}, s{sSTEP}, 2560")
            a(f"v_mul_u32_u24 v{vT0}, 40, v{vL}")
            a(f"buffer_load_dwordx4 {vr(RW, 4)}, v{vT0}, {sr(SX)}, s{sT0} offen")
            a(f"buffer_load_dwordx4 {vr(RW+4, 4)}, v{vT0}, {sr(SX)}, s{sT0} offen offset:16")
            a(f"buffer_load_dwordx2 {vr(RW+8, 2)}, v{vT0}, {sr(SX)}, s{sT0} offen offset:32")
        if opt("wsoff"):
            a(f"s_add_u32 s{pWS}, s{pWS}, {optv('wsoff', 0) << 20}")
            a(f"s_addc_u32 s{pWS+1}, s{pWS+1}, 0")
        srd(a, SWS, pWS, WS_END)
        srd(a, SDBG, pDBG, 256)
        a(f"v_mov_b32 v{vZ}, 0")
        if A_ and not kv:
            L = a.uid("NONCE")
            a(f"s_or_b32 s{sT0}, s2, s{sW}")
            a(f"s_cbranch_scc1 {L}")
            if PROFILE: a("s_or_b32 s100, s65, 1")
            else: a("s_or_b32 s100, s100, 1")
            a(f"v_mov_b32 v{vT0}, s100")
            a(f"buffer_store_dword v{vT0}, v{vZ}, {sr(SDBG)}, 0 offen sc1")
            a.label(L)
        a(f"v_mov_b64 {vr(PUB, 2)}, 0")
        a(f"v_mov_b64 {vr(PUB+2, 2)}, 0")
        a(f"v_and_b32 v{vN}, 31, v{vL}")
        a(f"v_lshrrev_b32 v{vH}, 5, v{vL}")
        for i in range(nt): zero16(a, ACC + 16 * i, PUB)
        if B_ or kv: zero16(a, P, PUB)
        a(f"v_mov_b32 v{ONE}, 0x3f803f80")
        a(f"v_mov_b32 v{ONE+1}, 0x3f803f80")
        a(f"v_bfe_u32 v{vT0}, v{vL}, 1, 3")
        a(f"v_xor_b32 v{vT0}, v{vT0}, v{vH}")
        if A_ and not kv:
            a(f"s_and_b32 s{sT0}, s{sTT}, 2")
            a(f"s_lshl_b32 s{sT0}, s{sT0}, 12")
        else:
            a(f"s_lshl_b32 s{sT0}, s{sTT}, 12")
        a(f"s_add_u32 s{sT0}, s{sT0}, {K1_XOFF}")
        a(f"v_lshl_add_u32 v{vT1}, v{vN}, 7, s{sT0}")
        for s in range(4):
            a(f"v_xor_b32 v{vT2}, {2*s}, v{vT0}")
            a(f"v_lshl_add_u32 v{vX+s}, v{vT2}, 4, v{vT1}")
        a(f"v_bfe_u32 v{vT0}, v{vL}, 2, 2")
        a(f"v_lshl_add_u32 v{vROW}, v{vH}, 3, v{vT0}")
        a(f"v_bfe_u32 v{vG16}, v{vL}, 4, 1")
        a(f"v_and_b32 v{vC4}, 3, v{vL}")
        if kv:
            a(f"v_lshl_add_u32 v{vT0}, v{vG16}, 2, v{vC4}")
            a(f"v_min_u32 v{vT0}, 4, v{vT0}")
            a(f"v_mul_u32_u24 v{vROW}, 40, v{vROW}")
            a(f"v_lshl_add_u32 v{vTR}, v{vT0}, 3, v{vROW}")
            if B_: a(f"v_add_u32 v{vTR}, 4096, v{vTR}")
        else:
            a(f"v_mul_u32_u24 v{vROW}, 320, v{vROW}")
            if A_:
                a(f"s_and_b32 s{sDEL}, s{sTT}, 1")
                a(f"s_lshl_b32 s{sDEL}, s{sDEL}, 1")
                tr_addr(vTR, ("s", sDEL))
                a(f"s_lshl_b32 s{sT1}, s{sT1}, 1")
                a(f"v_add_u32 v{vTR+1}, s{sT1}, v{vTR}")
            else:
                tr_addr(vTR, 4)
            if B_:
                tr_addr(vSA, ("s", sTT))
                w_setup(False)
        next_chunk(B_, A_ or not kv, K1_SLOT)
        if B_:
            for p in range(4): xpiece(p)
        else:
            for p in range(2 if kv else 5): wpiece(p, kv)
        next_chunk(B_, A_ or not kv, K1_SLOT)
        AW2 = opt("aw2")
        if opt("x2") and B_ and not kv:
            for p in range(4): xpiece(p)
        a(f"s_and_b32 s{sT}, s2, 7")
        a(f"s_lshl_b32 s{sT}, s{sT}, 3")
        a(f"s_lshr_b32 s{sT0}, s2, 5")
        a(f"s_add_u32 s{sT}, s{sT}, s{sT0}")
        a(f"s_bfe_u32 s{sHG}, s2, 0x20003")
        a(f"s_mul_i32 s{sG}, s{sT}, {G_TSTRIDE}")
        a(f"s_mul_i32 s{sOB}, s{sT}, {32*1280}")
        a(f"s_mul_i32 s{sT0}, s{sHG}, 320")
        a(f"s_add_u32 s{sOB}, s{sOB}, s{sT0}")
        a(f"s_lshl_b32 s{sF2}, s{sT}, 2")
        a(f"s_add_u32 s{sF2}, s{sF2}, s{sHG}")
        a(f"s_lshl_b32 s{sF2}, s{sF2}, 7")
        a(f"s_add_u32 s{sF2}, s{sF2}, {WS_F2}")
        a(f"s_mul_i32 s{sOUT}, s{sT3}, {G_TSTRIDE}")
        a(f"s_mul_i32 s{sT0}, s{sCG}, 10240")
        a(f"s_add_u32 s{sOUT}, s{sOUT}, s{sT0}")
        a(f"s_cmp_lt_u32 s{sCG}, 4")
        a(f"s_cselect_b32 s{sQS}, {f32bits(QSCALE):#x}, 1.0")
        a(f"s_lshl_b32 s{sFL}, s{sRB}, 4")
        a(f"s_add_u32 s{sFL}, s{sFL}, s{sCG}")
        a(f"s_lshl_b32 s{sFL}, s{sFL}, 7")
        a(f"s_add_u32 s{sFL}, s{sFL}, {WS_F1}")
        a(f"s_mov_b32 s{sFAST}, 0")
        a(f"s_mov_b32 s{sC}, 0")
        if B_:
            srd(a, SB, pOUT, 2048 * 1280)
        elif not kv and opt("pre1"):
            ffn_pre(a, vL, vT0, vT1)
        if B_:
            a(f"v_mov_b32 v{vT0}, {L_CNT}")
            a(f"ds_write_b128 v{vT0}, {vr(PUB, 4)}")
        def att_setup(part=None):
            for p, f in ((0, as0), (4, as4)):
                if part is None or part == p: f()
        def as0():
            a(f"v_mul_u32_u24 v{avV}, 384, v{vH}")
            a(f"v_lshl_add_u32 v{avV}, v{vN}, 4, v{avV}")
            a(f"v_add_u32 v{avV}, 1024, v{avV}")
            a(f"v_mov_b32 v{vT0}, {OOB:#x}")
            a(f"v_cmp_gt_u32 vcc, 21, v{vN}")
            a(f"v_min_u32 v{avKT}, 32, v{vL}")
            a(f"v_lshlrev_b32 v{avKT}, 3, v{avKT}")
            a(f"v_cndmask_b32 v{avV}, v{vT0}, v{avV}, vcc")
            a(f"v_add_u32 v{avKT}, 2560, v{avKT}")
        def as4():
            a(f"v_and_b32 v{vT0}, 15, v{vL}")
            a(f"v_lshlrev_b32 v{vT0}, 11, v{vT0}")
            a(f"v_add_u32 v{vT0}, {WS_F1 + 15*128}, v{vT0}")
            a(f"s_and_b32 s{sT0}, s2, 7")
            a(f"s_lshl_b32 s{sT0}, s{sT0}, 7")
            a(f"s_add_u32 s{sT0}, s{sT0}, {WS_XC}")
            a(f"v_cmp_gt_u32 vcc, 32, v{vL}")
            a(f"v_lshl_add_u32 v{vT1}, v{vN}, 2, s{sT0}")
            a("s_nop 0")
            a(f"v_cndmask_b32 v{vFL}, v{vT1}, v{vT0}, vcc")

        if kv:
            nd = 4 if B_ else 2
            XB, WA = [28, ACC + 16], [128, 144] if A_ else [96, 112]
            def pieces(rng):
                for p in rng:
                    if p < nd: xpiece(p) if B_ else wpiece(p, True)
            pieces(range(4))
            next_chunk(B_, A_, K1_SLOT)
            a(f"s_waitcnt vmcnt({2*nd + (3 if A_ else 0)})")
            a.stamp(2)
            a("s_barrier")
            a.stamp(3); a.stamp(NSTAMP, True)
            for s in range(4):
                a(f"ds_read_b128 {vr(XB[0]+4*s, 4)}, v{vX+s}")
                a(f"ds_read_b64_tr_b16 {vr(WA[0]+4*s, 2)}, v{vTR} offset:{s*sstr}")
                a(f"ds_read_b64_tr_b16 {vr(WA[0]+4*s+2, 2)}, v{vTR} offset:{s*sstr+4*rstr}")
            a(f"buffer_load_dword v{vNON}, v{vZ}, {sr(SDBG)}, 0 offen sc1")
            pieces(range(4))
            a.label(f"P1_L{tag}")
            for b in range(2):
                next_slot()
                next_chunk(B_, A_, f"s{sT1}")
                if b == 0:
                    L = a.uid("KS")
                    a(f"s_cmp_lg_u32 s{sC}, 6")
                    a(f"s_cbranch_scc1 {L}")
                    if B_: a(f"s_mov_b32 s{SX+2}, 0")
                    else:
                        a(f"s_mov_b32 s{SA+2}, 0")
                        a(f"s_mov_b32 s{SB+2}, 0")
                    a.label(L)
                a(f"s_waitcnt vmcnt({2*nd}) lgkmcnt(0)")
                a("s_barrier")
                for s in range(4):
                    a(f"v_mfma_f32_32x32x16_bf16 {vr(ACC, 16)}, {vr(WA[b]+4*s, 4)}, {vr(XB[b]+4*s, 4)}, {vr(ACC, 16)}")
                    a(f"ds_read_b128 {vr(XB[b^1]+4*s, 4)}, v{vX+s}")
                    a(f"ds_read_b64_tr_b16 {vr(WA[b^1]+4*s, 2)}, v{vTR} offset:{s*sstr}")
                    a(f"ds_read_b64_tr_b16 {vr(WA[b^1]+4*s+2, 2)}, v{vTR} offset:{s*sstr+4*rstr}")
                    for j in range(2): m4(P + 4*j, ONE, WA[b]+4*s+2*j)
                    pieces([s])
                if b == 1:
                    L, L2 = a.uid("KN"), a.uid("KR")
                    a(f"s_cmp_lg_u32 s{sC}, 1")
                    a(f"s_cbranch_scc1 {L}")
                    get_nonce(A_)
                    if A_: row_stats()
                    a.label(L)
                    a(f"s_cmp_lg_u32 s{sC}, 7")
                    a(f"s_cbranch_scc1 {L2}")
                    row_load(ST + 16)
                    a.label(L2)
                if A_: a.lstamp(sC)
                a(f"s_add_u32 s{sC}, s{sC}, 1")
            a(f"s_cmp_lt_u32 s{sC}, 10")
            a(f"s_cbranch_scc1 P1_L{tag}")
            a.stamp(4); a.stamp(NSTAMP + 1, True)
            if A_: a.ldump()
            R = ST + 16
            a(f"s_mov_b32 s{sSPIN}, {SPIN}")
            a(f"s_branch P1_GW{tag}")
            a.label(f"P1_GA{tag}")
            row_load(R)
            a.label(f"P1_GW{tag}")
            a("s_waitcnt vmcnt(0) lgkmcnt(0)")
            tag_check([R + 1, R + 3], f"P1_GA{tag}", f"P1_FOK{tag}")
            a(f"v_add_f32 v{P}, v{P}, v{P+4}")
            split3(a, P, vT0, vT1, CSR, CSR + 1)
            a(f"v_mov_b32 v{R+1}, v{R}")
            a(f"v_mov_b32 v{R+3}, v{R+2}")
            a(f"v_lshlrev_b32 v{vT2}, 4, v{vL}")
            a(f"v_mfma_f32_32x32x8_bf16 {vr(ACC, 16)}, {vr(CSR, 2)}, {vr(R, 2)}, {vr(ACC, 16)}")
            a("s_nop 9")
            a(f"s_mul_i32 s{sT0}, s{sT3}, {KV_REC}")
            a(f"s_add_u32 s{sT0}, s{sT0}, {WS_KV}")
            for j in range(6): a(f"v_pk_mul_f32 {vr(ACC+2*j, 2)}, {vr(ACC+2*j, 2)}, {vr(R+2, 2)}")
            if A_:
                for j in range(6): a(f"v_cvt_pk_bf16_f32 v{P+j}, v{ACC+2*j}, v{ACC+2*j+1}")
                a(f"v_min_u32 v{vT0}, 32, v{vL}")
                a(f"v_lshlrev_b32 v{vT0}, 3, v{vT0}")
                a("s_mov_b32 exec_lo, 0")
                a(f"v_mov_b32 v{P+4}, 0x3f803f80")
                a(f"v_mov_b32 v{P+5}, 0x3f80")
                a("s_mov_b32 exec_lo, -1")
                a(f"buffer_store_dwordx4 {vr(P, 4)}, v{vT2}, {sr(SWS)}, s{sT0} offen sc1")
                a(f"buffer_store_dwordx2 {vr(P+4, 2)}, v{vT0}, {sr(SWS)}, s{sT0} offen offset:2560 sc1")
            else:
                a("s_mov_b32 exec_lo, 0")
                a(f"v_mov_b32 v{ACC+8}, 1.0")
                a("s_mov_b32 exec_lo, -1")
                for j in range(6): a(f"v_cvt_pk_bf16_f32 v{P+j}, v{ACC+2*j}, v{ACC+2*j+1}")
                a(f"s_mul_i32 s{sT1}, s{sTT}, 1536")
                a(f"s_add_u32 s{sT1}, s{sT1}, {L_VT}")
                a(f"v_lshrrev_b32 v{vT0}, 3, v{vN}")
                a(f"v_mul_u32_u24 v{vT0}, 384, v{vT0}")
                a(f"v_and_b32 v{vT1}, 7, v{vN}")
                a(f"v_lshl_add_u32 v{vT0}, v{vT1}, 1, v{vT0}")
                a(f"v_lshl_add_u32 v{vT0}, v{vH}, 6, v{vT0}")
                a(f"v_add_u32 v{vT0}, s{sT1}, v{vT0}")
                for r in range(12):
                    op = "ds_write_b16" if r % 2 == 0 else "ds_write_b16_d16_hi"
                    a(f"{op} v{vT0}, v{P+r//2} offset:{(r//4)*128 + (r%4)*16}")
                a(f"v_add_u32 v{vT0}, s{sT1}, v{vT2}")
                a("s_waitcnt lgkmcnt(0)")
                a(f"ds_read_b128 {vr(P+8, 4)}, v{vT0}")
                a(f"ds_read_b128 {vr(P+12, 4)}, v{vT0} offset:1024")
                a("s_waitcnt lgkmcnt(0)")
                a(f"buffer_store_dwordx4 {vr(P+8, 4)}, v{vT2}, {sr(SWS)}, s{sT0} offen offset:1024 sc1")
                a("s_mov_b32 exec_hi, 0")
                a(f"buffer_store_dwordx4 {vr(P+12, 4)}, v{vT2}, {sr(SWS)}, s{sT0} offen offset:2048 sc1")
                a("s_mov_b32 exec_hi, -1")
            a.stamp(5)
            a("s_waitcnt vmcnt(0) lgkmcnt(0)")
            a("s_barrier")
            if B_:
                a(f"s_mov_b32 s{sKOK}, 0")
                a(f"s_cmp_lg_u32 s{sW}, 4")
                a(f"s_cbranch_scc1 P1_KNP")
                a("s_mov_b64 exec, 1")
                a(f"buffer_store_dword v{vNON}, v{vZ}, {sr(SWS)}, s{sFL} offen sc1")
                a("s_mov_b64 exec, -1")
                a.label("P1_KNP")
                a(f"s_mul_i32 s{sT0}, s{sHG}, 10240")
                a(f"s_add_u32 s{sT0}, s{sT0}, s{sG}")
                a(f"s_mul_i32 s{sT1}, s{sTT}, 2560")
                a(f"s_add_u32 s{sT0}, s{sT0}, s{sT1}")
                a(f"v_lshlrev_b32 v{vT0}, 7, v{vL}")
                a("s_mov_b64 exec, 0xfffff")
                a(f"buffer_load_dword v20, v{vT0}, {sr(SWS)}, s{sT0} offen sc1")
                a("s_mov_b64 exec, -1")
                att_setup(); att_zero(a); att_scalars(a)
                a("s_waitcnt lgkmcnt(0)")
                a("s_barrier")
            else:
                if opt("pre1"): ffn_pre(a, vL, vT0, vT1)
                else:
                    a("s_movk_i32 s100, 960")
                    row_offsets(a, fD, vL, vT0, vT1, "s100")
                a("s_barrier")
                srd(a, SX, pW2, 1728 * 1280)
                a(f"s_mul_i32 s{sT2}, s{sW}, 5120")
                a(f"s_mul_i32 s{sT0}, s{sW}, {27*16*1280}")
                a(f"s_mul_i32 s{sT1}, s{sHG}, 320")
                a(f"s_add_u32 s{sT0}, s{sT0}, s{sT1}")
                for i in range(NS):
                    for p in range(5):
                        dma(a, p, fD, SX, sT0, sT2, L_RING + i*20480)
                    a(f"s_add_u32 s{sT0}, s{sT0}, {16*1280}")
            a(f"s_branch {nxt}")
            return

        def mfma(i, p): a(f"v_mfma_f32_32x32x16_bf16 {vr(ACC+16*i, 16)}, {vr(FA[p]+4*i, 4)}, {vr(FB[p], 4)}, {vr(ACC+16*i, 16)}")
        def rdb(q, ns): a(f"ds_read_b128 {vr(FB[q], 4)}, v{vX+ns}")
        def rda(q, i, ns):
            a(f"ds_read_b64_tr_b16 {vr(FA[q]+4*i, 2)}, v{vTR+i} offset:{ns*sstr}")
            a(f"ds_read_b64_tr_b16 {vr(FA[q]+4*i+2, 2)}, v{vTR+i} offset:{ns*sstr+4*rstr}")
        def rank1(i): a(f"v_mfma_f32_32x32x8_bf16 {vr(ACC+16*i, 16)}, {vr(CSR+2*i, 2)}, {vr(NM, 2)}, {vr(ACC+16*i, 16)}")
        def pack_store(i, t):
            for j in range(8): a(f"v_pk_mul_f32 {vr(ACC+16*i+2*j, 2)}, {vr(ACC+16*i+2*j, 2)}, {vr(ST, 2)}")
            for j in range(8): a(f"v_cvt_pk_bf16_f32 v{P+8*i+j}, v{ACC+16*i+2*j}, v{ACC+16*i+2*j+1}")
            L = a.uid("NR")
            a(f"s_cmp_lt_u32 s{sCG}, 4")
            a(f"s_cbranch_scc1 {L}")
            for j in range(8): a(f"v_pk_max_i16 v{P+8*i+j}, v{P+8*i+j}, 0")
            a.label(L)
            a(f"s_add_u32 s{sT0}, s{sOUT}, {t}")
            stores(a, [f"buffer_store_dwordx4 {vr(P+8*i+4*e, 4)}, v{vT2}, {sr(SWS)}, s{sT0} offen offset:{1024*e}" for e in range(2)])
        def signal(vn):
            a.stamp(5)
            if PROFILE and opt("dbgf"):
                a(f"s_lshl_b32 s100, s{sKOK}, 1") if B_ else a("s_mov_b32 s100, 0")
                a(f"s_or_b32 s82, s100, s{sFAST}")
            if B_:
                att_zero(a); att_scalars(a)
            a(f"s_lshl_b32 s{sT0}, s{sW}, 2")
            a(f"s_add_u32 s{sT0}, s{sT0}, s{sFL}")
            a("s_mov_b64 exec, 1")
            a("s_waitcnt vmcnt(0)")
            stores(a, [f"buffer_store_dword v{vn}, v{vZ}, {sr(SWS)}, s{sT0} offen offset:32"])
            a("s_mov_b64 exec, -1")
            if opt("tp") and A_:
                a(f"buffer_load_dword v229, v{vT0}, {sr(SWS)}, s{sOUT} offen sc1")
                a(f"s_add_u32 s{sT0}, s{sOUT}, 8192")
                a("s_mov_b64 exec, 0xffff")
                a(f"buffer_load_dword v229, v{vT0}, {sr(SWS)}, s{sT0} offen sc1")
                a("s_mov_b64 exec, -1")
            a(f"s_branch {nxt}")
        if A_:
            XB, WF = [128, 136], [144, 152]
            REC = [28, 36]
            vRS, vRC = 20, 23
            a(f"s_and_b32 s{sT0}, s{sTT}, 2")
            a(f"s_lshl_b32 s{sT1}, s{sT0}, 10")
            a(f"s_add_u32 s{sT1}, s{sT1}, {K1_ST}")
            a(f"v_lshl_add_u32 v{vRS}, v{vN}, 5, s{sT1}")
            a(f"s_and_b32 s{sT2}, s{sTT}, 1")
            a(f"s_lshl_b32 s{sT1}, s{sT2}, 10")
            a(f"s_add_u32 s{sT1}, s{sT1}, {K1_CS}")
            a(f"v_lshl_add_u32 v{vRC}, v{vL}, 3, s{sT1}")
            a(f"s_mul_i32 s{sT1}, s{sT2}, {4096 - G_TSTRIDE}")
            a(f"s_add_u32 s{sOUT}, s{sOUT}, s{sT1}")
            a(f"v_lshlrev_b32 v{vT2}, 4, v{vL}")
            srd(a, SX, pW2, 1728 * 1280)
            a(f"s_mul_i32 s{sPB}, s{sRB}, 15")
            a(f"s_add_u32 s{sPB}, s{sPB}, s{sCG}")
            a(f"s_lshl_b32 s{sPB}, s{sPB}, 2")
            a(f"s_add_u32 s{sPB}, s{sPB}, s{sTT}")
            a(f"s_mul_i32 s{sSO}, s{sPB}, {7*128}")
            a(f"s_mul_i32 s{sPB}, s{sPB}, {18*128}")
            srd(a, SB, pWO, 640 * 1280)
            a(f"v_lshlrev_b32 v{vT0}, 7, v{vL}")
            def mf(j, i, p): a(f"v_mfma_f32_32x32x16_bf16 {vr(ACC+32*j+16*i, 16)}, {vr(WF[p]+4*i, 4)}, {vr(XB[p]+4*j, 4)}, {vr(ACC+32*j+16*i, 16)}")
            def rx(q, j, ns): a(f"ds_read_b128 {vr(XB[q]+4*j, 4)}, v{vX+ns}" + (" offset:4096" if j else ""))
            def rw(q, i, ns):
                a(f"ds_read_b64_tr_b16 {vr(WF[q]+4*i, 2)}, v{vTR+i} offset:{ns*sstr}")
                a(f"ds_read_b64_tr_b16 {vr(WF[q]+4*i+2, 2)}, v{vTR+i} offset:{ns*sstr+4*rstr}")
            if opt("pg"):
                L = a.uid("PG")
                a(f"s_cmp_lg_u32 s{sW}, 3")
                a(f"s_cbranch_scc1 {L}")
                a(f"v_lshlrev_b32 v{vT1}, 21, v{vL}")
                a("s_mov_b64 exec, 0x7f")
                a(f"buffer_load_dword v229, v{vT1}, {sr(SWS)}, 0 offen")
                a(f"buffer_load_dword v230, v{vT1}, {sr(SB)}, 0 offen")
                a(f"buffer_load_dword v231, v{vT1}, {sr(SX)}, 0 offen")
                a("s_mov_b64 exec, -1")
                a.label(L)
            for p in range(NA): wpiece(p)
            if NA: next_chunk(False, True, K1_SLOT)
            a(f"s_waitcnt vmcnt({8 + NA})")
            a.stamp(2)
            a("s_barrier")
            rx(0, 0, 0); rw(0, 0, 0); rw(0, 1, 0); rx(0, 1, 0)
            a.stamp(3); a.stamp(NSTAMP, True)
            def step(s, pre=None, extra=0, g3=None, g4=None):
                p, q, ns = s & 1, (s + 1) & 1, (s + 1) & 3
                if pre is None: a(f"s_waitcnt lgkmcnt({3 + extra})")
                mf(0, 0, p)
                if pre is not None: pre()
                rx(q, 0, ns); rw(q, 0, ns)
                if pre is None: a(f"s_waitcnt lgkmcnt({3 + extra})")
                mf(0, 1, p)
                rw(q, 1, ns); rx(q, 1, ns)
                mf(1, 1, p)
                if g3: g3()
                mf(1, 0, p)
                if g4: g4()
            def apiece(p):
                def f():
                    if p >= NA: return
                    L = a.uid("SK")
                    a(f"s_cbranch_vccz {L}")
                    wpiece(p)
                    a.label(L)
                return f
            def ring():
                a(f"s_and_b32 s{sT0}, s{sC}, 3")
                if NA: csel(a, sRNG, K1_SLOT, -3*K1_SLOT)
                a(f"s_cmp_eq_u32 s{sT0}, 3")
                csel(a, sDEL, -3*K1_SLOT, K1_SLOT)
            sRNG = sM0
            def adds():
                for s in range(4): a(f"v_add_u32 v{vX+s}, s{sDEL}, v{vX+s}")
                for i in range(2): a(f"v_add_u32 v{vTR+i}, s{sDEL}, v{vTR+i}")
            TC = 6 if NA else optv("tc", 3)
            a("s_mov_b64 vcc, -1")
            a.raw(".p2align 3")
            a.label(f"P1_L{tag}")
            step(0, None, 0, apiece(0))
            step(1, None, 0, apiece(1), ring)
            step(2, None, 0, adds, apiece(2))
            a(f"s_bitcmp1_b32 {0x107 | (1 << TC):#x}, s{sC}")
            a("s_waitcnt lgkmcnt(0)")
            def pre():
                if NA: a(f"s_waitcnt vmcnt({2*NA})")
                a(f"s_cbranch_scc1 P1_X{tag}")
                a.label(f"P1_W1{tag}")
                a("s_barrier")
            step(3, pre, 0, (lambda: next_chunk(False, True, f"s{sRNG}")) if NA else None)
            a.lstamp(sC)
            a(f"s_add_u32 s{sC}, s{sC}, 1")
            a(f"s_cmp_lt_u32 s{sC}, 9")
            a(f"s_cbranch_scc1 P1_L{tag}")
            a(f"ds_read_b128 {vr(REC[0], 4)}, v{vRS}")
            a(f"ds_read_b64 {vr(REC[0]+4, 2)}, v{vRS} offset:16")
            a(f"ds_read_b128 {vr(REC[1], 4)}, v{vRS} offset:1024")
            for i in range(2): a(f"ds_read_b64 {vr(CSR+2*i, 2)}, v{vRC} offset:{512*i}")
            step(0, None, 5)
            step(1)
            rds = [lambda: (rx(1, 0, 3), rw(1, 0, 3)), lambda: (rw(1, 1, 3), rx(1, 1, 3)), lambda: None, lambda: None]
            for n in range(4):
                j, i = n >> 1, n & 1
                a(f"v_mfma_f32_32x32x8_bf16 {vr(ACC+16*n, 16)}, {vr(CSR+2*i, 2)}, {vr(REC[j], 2)}, {vr(ACC+16*n, 16)}")
                rds[n]()
            a(f"v_readfirstlane_b32 s{sFAST}, v{REC[0]+5}")
            a("s_waitcnt lgkmcnt(3)")
            mf(0, 0, 0); mf(0, 0, 1)
            a("s_waitcnt lgkmcnt(0)")
            a("s_barrier")
            a.stamp(4); a.stamp(NSTAMP + 1, True)
            mf(0, 1, 0); mf(0, 1, 1)
            a("s_nop 7")
            for n in range(4):
                if n < 2: mf(1, n, 0); mf(1, n, 1)
                ST = REC[n >> 1] + 2
                pack_store(n, (n >> 1) * G_TSTRIDE + (n & 1) * 2048)
            a.ldump()
            signal(REC[0] + 4)
            a.label(f"P1_X{tag}")
            for c in (0, 1, 2, 8):
                L = a.uid("XH")
                a(f"s_cmp_lg_u32 s{sC}, {c}")
                a(f"s_cbranch_scc1 {L}")
                if c == 0:
                    if not NA: a("s_waitcnt vmcnt(5)")
                    row_stats(0); row_stats(1)
                    if not NA: a("s_waitcnt vmcnt(0)")
                    a(f"buffer_load_dword v{vNON}, v{vZ}, {sr(SDBG)}, 0 offen sc1")
                elif c == 1:
                    row_stats(2)
                elif c == 2:
                    if not NA: a("s_waitcnt vmcnt(0)")
                    get_nonce(True)
                    row_stats(3)
                elif NA:
                    a("s_waitcnt vmcnt(3)")
                a(f"s_branch P1_W1{tag}")
                a.label(L)
            a("s_mov_b64 vcc, 0")
            if not opt("notq"):
                a(f"s_mul_i32 s{sT0}, s{sHG}, 10240")
                a(f"s_add_u32 s{sT0}, s{sT0}, s{sG}")
                a(f"s_mul_i32 s{sT1}, s{sTT}, 2560")
                a(f"s_add_u32 s{sT0}, s{sT0}, s{sT1}")
                if opt("noq"): a(f"s_mov_b32 s{sT0}, 0x40000000")
                a("s_mov_b64 exec, 0xfffff")
                a(f"buffer_load_dword v229, v{vT0}, {sr(SWS)}, s{sT0} offen sc1")
            if opt("now"):
                a(f"s_mov_b32 s{SB+2}, 0")
                a(f"s_mov_b32 s{SX+2}, 0")
            a("s_mov_b64 exec, 0x7f")
            a(f"buffer_load_dword v230, v{vT0}, {sr(SB)}, s{sSO} offen")
            a("s_mov_b64 exec, 0x3ffff")
            a(f"buffer_load_dword v231, v{vT0}, {sr(SX)}, s{sPB} offen")
            a("s_mov_b64 exec, -1")
            a(f"s_branch P1_W1{tag}")
            return
        NM, ST = 44, 46
        vWO, CG, RR = 200, 204 - 8, 206
        CG = 196
        a(f"s_lshl_b32 s{sPB}, s{sCG}, 2")
        a(f"s_add_u32 s{sPB}, s{sPB}, s{sTT}")
        a(f"s_mul_i32 s{sPB}, s{sPB}, 5120")
        a(f"s_add_u32 s{sPB}, s{sPB}, {WS_CP}")
        a(f"s_sub_u32 s{sM0}, s{sM0}, {2*K1_SLOT}")
        a(f"s_sub_u32 s{sM0W}, s{sM0W}, {2*K1_SLOT}")
        a("s_setprio 1")
        ops = ["X0"] * 4 + ["D1"] * 4 + (["D2"] * 4 if opt("x2") else [])
        def vm(tag_, n=1): ops.extend([tag_] * n)
        def wait(*tags):
            last = max(i for i, t in enumerate(ops) if t in tags)
            return len(ops) - 1 - last
        def xp(c, p):
            if opt("xnodma") and c > 2 and p > 0: return
            dma(a, p, vD, SX, sSO, sM0, (c & 3)*K1_SLOT); vm(f"D{c}")
        def wp(c, p):
            base = (c & 3) * K1_SLOT if c < 10 else L_RING + (c - 10) * 20480
            if (opt("xnodma") or opt("xnow")) and c > 2: return
            dma(a, p, vDW if c < 10 else vWO, SA, sSOW, sM0W, base, c < 10 and p == NA); vm(f"D{c}")
        def adv(c):
            if c < 10:
                a(f"s_add_u32 s{sCC}, s{sCC}, 1")
                a(f"s_cmp_eq_u32 s{sCC}, 10")
                a(f"s_cselect_b32 s{sCC}, 0, s{sCC}")
                a(f"s_lshl_b32 s{sSO}, s{sCC}, 7")
                a(f"s_mul_i32 s{sSOW}, s{sCC}, s{sWSTEP}")
                a(f"s_add_u32 s{sSOW}, s{sSOW}, s{sWBASE}")
            elif c == 10:
                srd(a, SA, pW2, 1728 * 1280)
                a(f"s_mul_i32 s{sSOW}, s{sTT}, {27*16*1280}")
                a(f"s_mul_i32 s{sT0}, s{sHG}, 320")
                a(f"s_add_u32 s{sSOW}, s{sSOW}, s{sT0}")
            elif c < 13:
                a(f"s_add_u32 s{sSOW}, s{sSOW}, {16*1280}")
        def f_nonce(): get_nonce(False)
        def f_cspub():
            a(f"v_add_f32 v{PUB}, v{P}, v{P+8}")
            a(f"v_add_f32 v{PUB+2}, v{P+4}, v{P+12}")
            halfop(a, "v_add_f32", PUB, vT0); halfop(a, "v_add_f32", PUB + 2, vT0)
            a(f"v_mov_b32 v{PUB+1}, v{vNON}")
            a(f"v_mov_b32 v{PUB+3}, v{vNON}")
            a(f"v_lshlrev_b32 v{vT2}, 4, v{vL}")
            a(f"s_lshl_b32 s{sT1}, s{sST}, 9")
            a(f"s_add_u32 s{sT0}, s{sPB}, s{sT1}")
            a("s_mov_b32 exec_hi, 0")
            a(f"buffer_store_dwordx4 {vr(PUB, 4)}, v{vT2}, {sr(SWS)}, s{sT0} offen sc1"); vm("S")
            a("s_mov_b32 exec_hi, -1")
        def f_rowpub(): row_stats(3); vm("S")
        def f_wo(ps):
            a(f"s_movk_i32 s{sT2}, 960")
            row_offsets(a, vWO, vL, vT0, vT1, f"s{sT2}", ps)
        def gather(js, count=True):
            for j in js:
                if j == 0:
                    row_load(RR)
                    a(f"v_mul_u32_u24 v{vT1}, 2560, v{vH}")
                    a(f"v_add_u32 v{vSA}, v{vT0}, v{vT1}")
                else:
                    a(f"buffer_load_dwordx4 {vr(GAT+4*(j-1), 4)}, v{vSA}, {sr(SWS)}, s{sPB} offen offset:{512*(j-1)} sc1")
                if count: vm("G")
        def f_words(t):
            a(f"buffer_load_dword v{vFV}, v{vFL}, {sr(SWS)}, 0 offen sc1"); vm(t)
        def f_fin0():
            a(f"s_mov_b32 s{sSPIN}, {SPIN}")
            a(f"s_waitcnt vmcnt({wait('G', 'XW')})")
            a(f"v_cmp_ne_u32 vcc, s{sXW}, v{vFV}")
            a("s_cmp_eq_u32 vcc_hi, 0")
            a(f"s_cselect_b32 s{sFAST}, {0 if opt('slow') else 1}, 0")
            a.label(f"P1_FC{tag}")
            tag_check([RR + 1, RR + 3] + [GAT + 2*j + 1 for j in range(10)], f"P1_GA{tag}", f"P1_FOK{tag}")
        def f_fin1():
            a(f"v_mov_b32 v{NM}, v{RR}")
            a(f"v_mov_b32 v{NM+1}, v{RR}")
            a(f"v_mul_f32 v{ST}, s{sQS}, v{RR+2}")
            a(f"v_mul_f32 v{ST+1}, s{sQS}, v{RR+2}")
            a(f"v_mov_b32 v{RR}, s{sNON}")
            a(f"v_mov_b32 v{RR+1}, s{sFAST}")
            a(f"s_lshl_b32 s{sT0}, s{sTT}, 10")
            a(f"s_add_u32 s{sT0}, s{sT0}, {K1_ST}")
            a(f"v_lshl_add_u32 v{vT0}, v{vN}, 5, s{sT0}")
            a(f"ds_write_b128 v{vT0}, {vr(NM, 4)}")
            a(f"ds_write_b64 v{vT0}, {vr(RR, 2)} offset:16")
            for j in range(1, 5):
                a(f"v_add_f32 v{GAT}, v{GAT}, v{GAT+4*j}")
                a(f"v_add_f32 v{GAT+2}, v{GAT+2}, v{GAT+4*j+2}")
        def f_fin2():
            split3(a, GAT, vT0, vT1, PUB, PUB + 1)
            a(f"s_lshl_b32 s{sT0}, s{sTT}, 9")
            a(f"s_add_u32 s{sT0}, s{sT0}, {K1_CS}")
            a(f"v_lshl_add_u32 v{vT0}, v{vL}, 3, s{sT0}")
            a(f"ds_write_b64 v{vT0}, {vr(PUB, 2)}")
            split3(a, GAT + 2, vT0, vT1, CSR, CSR + 1)
        def f_kv():
            L = a.uid("NOKV")
            a(f"s_waitcnt vmcnt({wait('KF')})")
            a(f"v_cmp_ne_u32 vcc, s{sNON}, v{vFV}")
            a(f"s_mov_b32 s{sKOK}, 0")
            a("s_cmp_lg_u32 vcc_lo, 0")
            a(f"s_cbranch_scc1 {L}")
            kv_first(a, vT2)
            a(f"s_mov_b32 s{sKOK}, 1")
            a.label(L)
        def f_tlb():
            if not opt("tlb"): return
            a(f"v_lshlrev_b32 v{vT0}, 21, v{vL}")
            a("s_mov_b64 exec, 0x7f")
            a(f"buffer_load_dword v20, v{vT0}, {sr(SWS)}, 0 offen"); vm("T")
            a("s_mov_b64 exec, 1")
            a(f"buffer_load_dword v20, v{vZ}, {sr(SB)}, s{sOB} offen"); vm("T")
            a("s_mov_b64 exec, -1")
        def f_code():
            if not opt("code"): return
            a("s_getpc_b64 s[100:101]")
            a.label("PCREF")
            a(f"s_lshr_b32 s{sT0}, s2, 3")
            a(f"s_lshl_b32 s{sT0}, s{sT0}, 2")
            a(f"s_add_u32 s{sT0}, s{sT0}, s{sTT}")
            a(f"s_lshl_b32 s{sT0}, s{sT0}, 7")
            a(f"s_add_u32 s{sT0}, s{sT0}, P2_ATT-PCREF")
            a(f"s_add_u32 s100, s100, s{sT0}")
            a("s_addc_u32 s101, s101, 0")
            a(f"v_mov_b32 v{vT0}, s100")
            a(f"v_mov_b32 v{vT1}, s101")
            a("s_mov_b64 exec, 1")
            a(f"global_load_dword v20, {vr(vT0, 2)}, off"); vm("T")
            a("s_mov_b64 exec, -1")
        fill = {(2, 0): f_nonce, (2, 1): f_cspub, (3, 1): lambda: f_wo((0, 1)), (4, 1): lambda: f_wo((2, 3)), (1, 1): lambda: (f_wo((4,)), att_setup(4)),
                (5, 0): lambda: gather((0,)), (5, 1): lambda: gather((1,)), (5, 2): lambda: gather((2,)),
                (6, 0): lambda: gather((3,)), (6, 1): lambda: gather((4,)), (6, 2): lambda: gather((5,)),
                (4, 2): lambda: f_words("XW"), (7, 0): lambda: att_setup(0)}
        if opt("g7"):
            for k in ((5, 0), (5, 1), (5, 2), (6, 0), (6, 1), (6, 2), (4, 2)): del fill[k]
            fill.update({(6, 2): lambda: gather((0, 1, 2)), (7, 0): lambda: (gather((3, 4, 5)), f_words("XW")), (7, 1): lambda: att_setup(0)})
        if opt("fin8"): fill.update({(8, 0): f_fin0, (8, 1): f_fin1, (8, 2): f_fin2})
        else: fill.update({(7, 2): f_fin0, (8, 0): f_fin1, (8, 1): f_fin2})
        fill.update({(9, 0): lambda: (rank1(0), f_words("KF"))})
        a(f"s_waitcnt vmcnt({wait('X0')})")
        a.stamp(2)
        a("s_barrier")
        rdb(0, 0); rda(0, 0, 0)
        for p in range(NA, 5): wp(2, p)
        if not opt("x2"):
            for p in range(4): xp(2, p)
        a(f"buffer_load_dword v{vNON}, v{vZ}, {sr(SDBG)}, 0 offen sc1"); vm("N")
        a.stamp(3); a.stamp(NSTAMP, True)
        for c in range(10):
            adv(c + 3)
            for s in range(4):
                p, q, ns = s & 1, (s + 1) & 1, (s + 1) & 3
                if c == 0:
                    a(f"ds_read_b64_tr_b16 {vr(CG, 2)}, v{vSA} offset:{s*sstr}")
                    a(f"ds_read_b64_tr_b16 {vr(CG+2, 2)}, v{vSA} offset:{s*sstr+4*rstr}")
                if s == 3 and c < 9:
                    d = -3 * K1_SLOT if (c & 3) == 3 else K1_SLOT
                    for r in list(range(vX, vX + 4)) + [vTR]: a(f"v_add_u32 v{r}, {d}, v{r}")
                a("s_waitcnt lgkmcnt(0)")
                if not opt("xnobm"): mfma(0, p)
                if c == 0:
                    for j in range(2):
                        m4(P + 8*j, ONE, CG + 2*j); m4(P + 8*j + 4, ONE, FA[p] + 2*j)
                if s == 3:
                    if c < 9: a(f"s_waitcnt vmcnt({wait(f'D{c+1}', 'N') if c == 1 else wait(f'D{c+1}')})")
                    a("s_barrier")
                if c < 9 or s < 3:
                    rdb(q, ns); rda(q, 0, ns)
                if s < 3:
                    if c + 3 < 10:
                        lst = [("w", p_) for p_ in range(NA, 5)] + [("x", p_) for p_ in range(4)]
                        n = len(lst)
                        for kind, pp in lst[(n * s + 2) // 3:(n * (s + 1) + 2) // 3]: (wp if kind == "w" else xp)(c + 3, pp)
                    elif c + 3 < 10 + NS:
                        for pp in ((0, 1), (2, 3), (4,))[s]: wp(c + 3, pp)
                    if (c, s) in fill: fill[(c, s)]()
        a.stamp(4); a.stamp(NSTAMP + 1, True)
        a("s_setprio 0" if not opt("bhi") else "s_nop 0")
        a("s_nop 9")
        pack_store(0, 8192); vm("S", 2)
        if opt("bhi"): a("s_setprio 0")
        f_kv()
        signal(vNON)
        a.label(f"P1_GA{tag}")
        gather(range(6), False)
        a("s_waitcnt vmcnt(0)")
        a(f"s_branch P1_FC{tag}")

    body("GA", "A", False)
    a.label("P1_GB")
    body("GB", "B", False)
    a.label("P1_KA0")
    a(f"v_lshlrev_b32 v{vDW}, 4, v{vL}")
    a(f"s_mul_i32 s{sWBASE}, s{sW}, 640")
    a(f"s_mov_b32 s{sWSTEP}, 2560")
    a(f"s_mul_i32 s{sSOW}, s{sCC}, 2560")
    a(f"s_add_u32 s{sSOW}, s{sSOW}, s{sWBASE}")
    a(f"s_lshl_b32 s{sM0W}, s{sW}, 10")
    a("s_waitcnt lgkmcnt(0)")
    srd(a, SA, pWK, 640 * 40)
    srd(a, SB, pWV, 640 * 40)
    st01()
    for p in range(2): wpiece(p, True)
    a("s_barrier")
    body("KA", "A", True)
    a.label("P1_KB")
    body("KB", "B", True)

def kdesc(name, nv, ns=102):
    return f""".amdhsa_kernel {name}
  .amdhsa_next_free_vgpr {nv}
  .amdhsa_next_free_sgpr {ns}
  .amdhsa_accum_offset {(nv+3)//4*4}
  .amdhsa_group_segment_fixed_size 0
  .amdhsa_kernarg_size 88
  .amdhsa_user_sgpr_count 2
  .amdhsa_user_sgpr_kernarg_segment_ptr 1
  .amdhsa_system_sgpr_workgroup_id_x 1
.end_amdhsa_kernel
"""

DOC = """; ---------------------------------------------------------------------------------------------------------------
;
;          which case they meet in that XCD's L2; loads of handed-over data always bypass L1.  Every spin is bounded.
; ---------------------------------------------------------------------------------------------------------------
"""

def build():
    from g18p2 import gen_ffn, gen_att
    hdr = open("cdna_kernels/" + NAME + ".s.ref").read().split("; Override launch")[0]
    out = hdr
    out += f"; @launch grid=(256,1,1) block=(512,1,1) lds={LDS_BYTES}\n"
    out += '.amdgcn_target "amdgcn-amd-amdhsa--gfx950"\n' + DOC + '.text\n'
    a = Asm()
    k = NAME + "_kernel"
    a.raw(f".globl {k}\n.p2align 8\n.type {k},@function")
    a.label(k)
    gen_p1(a)
    a.p2 = True
    a.label("P2_ATT")
    gen_att(a)
    a.ffn = True
    a.label("P2_FFN")
    gen_ffn(a)
    for L, lines, D in a.tail:
        a.label(L)
        for l in lines: a(l)
        a(f"s_branch {D}")
    a.label("L_END")
    a("s_endpgm")
    if not opt("nocp"): a.raw(f"    .fill (0x8100 - (. - {k})) / 4, 4, 0xbf810000      ; the code read-ahead stays inside .text")
    out += a.text()
    out += '.section .rodata,"a"\n.p2align 6\n' + kdesc(k, 256)
    return out

if __name__ == "__main__":
    path = sys.argv[1] if len(sys.argv) > 1 and not sys.argv[1].startswith("--") else "cdna_kernels/" + NAME + ".s"
    open(path, "w").write(build())
```

```python
from g18 import *

LD = {"plain": "", "nt": " nt", "sc0": " sc0"}.get(sys.argv[sys.argv.index("--ld") + 1] if opt("ld") else "", " sc1")
LDO = " nt" if opt("ldo") else " sc1"
def cnt_arrive(a, vaddr, vtmp, inc="1", off=0):
    a(f"v_mov_b32 v{vtmp}, {inc}")
    a("s_mov_b64 exec, 1")
    a(f"ds_add_u32 v{vaddr}, v{vtmp}" + (f" offset:{off}" if off else ""))
    a("s_mov_b64 exec, -1")
def cnt_wait(a, vaddr, vtmp, tgt, sleep=0, off=0):
    L, D = a.uid("CW"), a.uid("CWD")
    a(f"s_mov_b32 s{sSPIN}, {SPIN * 16}")
    a.label(L)
    a(f"ds_read_b32 v{vtmp}, v{vaddr}" + (f" offset:{off}" if off else ""))
    a("s_waitcnt lgkmcnt(0)")
    a(f"v_readfirstlane_b32 s{sT0}, v{vtmp}")
    a(f"s_and_b32 s{sT2}, s{sT0}, 0xffff")
    a(f"s_cmp_ge_u32 s{sT2}, {tgt}")
    a(f"s_cbranch_scc1 {D}")
    if sleep: a(f"s_sleep {sleep}")
    spin_tail(a, L)
    a.label(D)

def final_stage(a, base_item, X, R, vA, vG, load_x, do_rest):
    if load_x and load_x != "load":
        a(f"s_mov_b32 s100, {L_FP}")
        item_addr(a, base_item, vA, vG, X)
    if load_x and load_x != "addr":
        a(f"buffer_load_dwordx4 {vr(X, 4)}, v{vG}, {sr(SX)}, s{sOB} offen")
    if do_rest == 1:
        for s in range(4):
            a(f"ds_read_b128 {vr(R+8*s, 4)}, v{vA} offset:{s*5120}")
            a(f"ds_read_b128 {vr(R+8*s+4, 4)}, v{vA} offset:{s*5120+16}")
    if do_rest == 2:
        for j in range(4):
            a(f"v_lshlrev_b32 v{R+32+2*j}, 16, v{X+j}")
            a(f"v_and_b32 v{R+33+2*j}, 0xffff0000, v{X+j}")
    if do_rest >= 3:
        for s in range(4):
            a(f"s_waitcnt lgkmcnt({6-2*s + (do_rest-3)})")
            for j in range(4):
                a(f"v_pk_add_f32 {vr(R+32+2*j, 2)}, {vr(R+32+2*j, 2)}, {vr(R+8*s+2*j, 2)}")
        if opt("xscale"):
            for j in range(8): a(f"v_mul_f32 v{R+32+j}, {f32bits(1 + optv('xscale', 0) / 1000.0):#x}, v{R+32+j}")
        if opt("xone"):
            a("s_cmp_eq_u32 s2, 77")
            a("s_cselect_b64 exec, 1, 0")
            a(f"v_add_f32 v{R+32}, {f32bits(optv('xone', 0) / 100.0):#x}, v{R+32}")
            a("s_mov_b64 exec, -1")
        for j in range(4): a(f"v_cvt_pk_bf16_f32 v{X+j}, v{R+32+2*j}, v{R+33+2*j}")
        a(f"buffer_store_dwordx4 {vr(X, 4)}, v{vG}, {sr(SB)}, s{sOB} offen")

def gen_att(a):
    vL, vKM, vQT, vIDX, vT0, vT1, vCNT = 1, 2, 3, 4, 5, 6, 7
    vP = 8
    vT2, vT3 = 12, 13
    vFL = 23
    S, O, QM, QT, KM, KT, V0, V1 = aS, aO, aQM, aQT, aKM, aKT, aV0, aV1
    def qk1(s, kb, q): a(f"v_mfma_f32_32x32x16_bf16 {vr(S[s], 16)}, {vr(KM[kb], 4)}, {vr(QM(q), 4)}, 0")
    def qk2(s, kb, q): a(f"v_mfma_f32_32x32x8_bf16 {vr(S[s], 16)}, {vr(KT[kb], 2)}, {vr(QT(q), 2)}, {vr(S[s], 16)}")
    def pv(u, s, vb, q): a(f"v_smfmac_f32_32x32x32_bf16 {vr(O(q), 16)}, {vr((V0, V1)[u][vb], 4)}, {vr(S[s]+8*u, 8)}, v{vIDX}")
    def ldq(i):
        a(f"buffer_load_dwordx4 {vr(QM(i), 4)}, v{vKM}, {sr(SWS)}, s{sPm+i//2} offen" + (" offset:1024" if i & 1 else "") + LD)
        a(f"buffer_load_dwordx2 {vr(QT(i), 2)}, v{vQT}, {sr(SWS)}, s{sPt+i//2} offen" + (" offset:512" if i & 1 else "") + LD)
    def qregs(lo, hi): return list(range(QM(lo), QM(hi))) + list(range(QT(lo), QT(hi)))
    def rowmax(s, dst):
        b = S[s]
        a(f"v_max3_f32 v{dst}, v{b}, v{b+1}, v{b+2}")
        for j in range(3, 15, 2): a(f"v_max3_f32 v{dst}, v{dst}, v{b+j}, v{b+j+1}")
        a(f"v_max_f32 v{dst}, v{dst}, v{b+15}")
    def pair_addr(mul, base, vlane, shift):
        for j in range(4):
            a(f"s_add_u32 s{sT0}, s{sQ}, {j}")
            a(f"s_and_b32 s{sT0}, s{sT0}, 3")
            a(f"s_mul_i32 s{sT0}, s{sT0}, {mul}")
            a(f"s_add_u32 s{sT0}, s{sT0}, {base}")
            a(f"v_lshl_add_u32 v{vP+j}, v{vlane}, {shift}, s{sT0}")

    if not opt("latep"): a("s_setprio 3")
    a(f"s_mov_b32 s{sMODE}, 0")
    a(f"v_lshlrev_b32 v{vKM}, 4, v{vL}")
    a(f"v_mov_b32 v{vT0}, {OOB:#x}")
    a(f"v_cmp_gt_u32 vcc, 32, v{vL}")
    a(f"v_mov_b32 v{vIDX}, 0xdddddddd")
    a(f"v_mov_b32 v{vCNT}, {L_CNT}")
    a(f"v_cndmask_b32 v{vQT}, v{vT0}, v{vKM}, vcc")
    cnt_arrive(a, vCNT, vT0, off=8)
    a.stamp(6)
    a(f"s_cmp_lg_u32 s{sKOK}, 0")
    a("s_cbranch_scc1 A_HAVEKV")
    a("s_mov_b32 exec_hi, 0")
    poll(a, vFL, vT0, "0")
    a("s_mov_b32 exec_hi, -1")
    a.label("A_RELOAD")
    kv_first(a, vKM)
    a.label("A_HAVEKV")
    check_fast(a, vT1, vT0)
    a(f"v_and_b32 v{vT1}, 31, v{vL}")
    pair_addr(512, L_MREC, vT1, 3)
    flag_words(a, vT1, vL)
    a.stamp(7)
    poll(a, vT1, vT0, f"s{sFQ}", optv("qsleep", 1))
    check_fast(a, vT1, vT0)
    a.stamp(8)
    if opt("latep"): a("s_setprio 3")
    ldq(0); ldq(1)
    a(f"s_cmp_lg_u32 s{sMODE}, 0")
    a("s_cbranch_scc1 A_TRUEMAX")
    a.c("stand-in for the row max: max over this wave's first 32 keys; checked after the loop, exact-max rerun if unsafe")
    ldq(2); ldq(3)
    a("s_waitcnt vmcnt(4)")
    qk1(0, 0, 0); qk2(0, 0, 0); qk1(1, 0, 1); qk2(1, 0, 1)
    for i in range(4, 8): ldq(i)
    a("s_nop 1")
    rowmax(0, S[2]); rowmax(1, S[2] + 1)
    a(f"v_mov_b32 v{vT0}, v{S[2]}")
    a(f"v_mov_b32 v{vT1}, v{S[2]+1}")
    a("s_nop 0")
    a(f"v_permlane32_swap_b32 v{vT0}, v{S[2]}")
    a(f"v_permlane32_swap_b32 v{vT1}, v{S[2]+1}")
    a(f"v_max_f32 v{S[2]}, v{S[2]}, v{vT0}")
    a(f"v_max_f32 v{S[2]+1}, v{S[2]+1}, v{vT1}")
    a("s_mov_b32 exec_lo, 0")
    for e in range(2): a(f"v_cvt_pk_bf16_f32 v{QT(e)}, -v{S[2]+e}, 0")
    a.label("A_HAVEMAX")
    for e in range(2): a(f"ds_write_b64 v{vP}, {vr(QT(e), 2)} offset:{256*e}")
    a("s_mov_b32 exec_lo, -1")
    cnt_arrive(a, vCNT, vT0)
    a(f"s_add_u32 s{sTGT}, s{sTGT}, 4")
    a(f"s_mov_b32 s{sCNT}, 8")
    a.stamp(9)
    a.stamp(10); a.stamp(NSTAMP + 2, True)
    qk1(0, 0, 0); qk2(0, 0, 0)
    a("s_cmp_lg_u32 0, 0")
    a("s_nop 10")
    a.raw(".p2align 6")
    a.label("A_LOOP")
    PAT0 = (3, 3, 4, 3, 3)
    PAT1 = tuple(int(ch) for ch in sys.argv[sys.argv.index("--pat1") + 1]) if opt("pat1") else PAT0
    PMASK = optv("pmask", 0)
    def slot(sc, nxt, prv, holes, PAT=PAT0):
        e = [0]
        def exps(n):
            for _ in range(n):
                a(f"v_exp_f32 v{S[sc]+e[0]}, v{S[sc]+e[0]}"); e[0] += 1
        ms = [lambda: qk1((sc + 1) & 3, *nxt), lambda: pv(0, (sc - 1) & 3, *prv), lambda: qk2((sc + 1) & 3, *nxt), lambda: pv(1, (sc - 1) & 3, *prv)]
        for j in range(4):
            if nxt is not None or j & 1: ms[j]()
            if j in holes: holes[j]()
            exps(PAT[j])
        holes[4]()
        exps(PAT[4])
    for kb in range(2):
        for q in range(8):
            def hole():
                if q == 0:
                    if kb == 0:
                        a("s_cbranch_scc0 A_FIRST")
                        a.label("A_FIRSTD")
                    a("s_waitcnt vmcnt(2)"); ldv(a, 0, kb ^ 1)
                elif q == 1: ldv(a, 1, kb ^ 1)
                elif q == 2: a(f"s_add_u32 s{sKV}, s{sKV}, {KV_REC}")
                elif q == 3 and kb == 0: a(f"s_sub_u32 s{sCNT}, s{sCNT}, 1")
                elif q == 4 and kb == 0: a(f"s_cmp_eq_u32 s{sCNT}, 0")
                elif q == 4: a("s_cmp_eq_u32 0, 0")
                elif q == 5: a("s_waitcnt vmcnt(2)")
                elif q == 6: ldkm(a, kb, vKM)
                elif q == 7: ldkt(a, kb)
                elif opt("nop"): a("s_nop 0")
            slot(q & 3, ((kb if q < 7 else kb ^ 1), (q + 1) & 7), ((kb if q > 0 else kb ^ 1), (q - 1) & 7), {4: hole}, PAT1 if (PMASK >> q) & 1 else PAT0)
        if kb == 0:
            a.lstamp(sCNT, 0)
            a("s_cbranch_scc1 A_LAST")
    a("s_branch A_LOOP")
    a.label("A_FIRST")
    a(f"s_mov_b32 s{sSPIN}, {SPIN * 16}")
    a("s_waitcnt vmcnt(0)")
    a.label("A_F0")
    a(f"ds_read_b32 v{vT1}, v{vCNT}")
    a("s_mov_b32 exec_lo, 0")
    for i in range(2, 8): a(f"ds_read_b64 {vr(QT(i), 2)}, v{vP+i//2} offset:{256*(i&1)}")
    a("s_mov_b32 exec_lo, -1")
    a("s_waitcnt lgkmcnt(6)")
    a(f"v_readfirstlane_b32 s{sT0}, v{vT1}")
    a(f"s_and_b32 s{sT0}, s{sT0}, 0xffff")
    a(f"s_cmp_ge_u32 s{sT0}, s{sTGT}")
    a("s_cbranch_scc1 A_F0D")
    spin_tail(a, "A_F0")
    a.label("A_F0D")
    a(f"v_and_b32 v{vT0}, 31, v{vL}")
    a(f"v_mul_u32_u24 v{vT0}, {8*36}, v{vT0}")
    a(f"v_sub_u32 v{vT0}, v{vKM}, v{vT0}")
    a(f"v_add_u32 v{vT0}, {(L_OP - 36*L_MREC) & 0xffffffff:#x}, v{vT0}")
    for j in range(4): a(f"v_mad_u32_u24 v{vP+j}, v{vP+j}, 36, v{vT0}")
    a("s_waitcnt lgkmcnt(0)")
    a.lstamp("8", 0)
    a("s_branch A_FIRSTD")
    a.label("A_LAST")
    def wr(i, j): a(f"ds_write_b128 v{vP+i//2}, {vr(O(i)+4*j, 4)} offset:{(i&1)*9216 + (i//2-1)*3072 + j*1024}")
    seq = [0, 2, 4, 6, 3, 5, 7, 1]
    RB = [[188, 200, 216], [16, 28, 40]]
    def rd(e, k):
        s_, j = divmod(k, 3)
        a(f"ds_read_b128 {vr(RB[e][s_]+4*j, 4)}, v{vP} offset:{e*9216 + s_*3072 + j*1024}")
    def echeck(n=2):
        a(f"s_waitcnt lgkmcnt({n})")
        a(f"v_readfirstlane_b32 s{sT0}, v{vT0}")
        a(f"s_cmp_lt_u32 s{sT0}, s{sKOK}")
        a("s_cbranch_scc1 A_EWAIT")
        a.label("A_EOK")
    for n in range(8):
        nxt = (1, seq[n + 1]) if n < 7 else None
        prv = (1, seq[n - 1]) if n > 0 else (0, 7)
        if n == 0: holes = {4: lambda: (a("s_waitcnt vmcnt(2)"), a(f"ds_read_b32 v{vT0}, v{vCNT}"))}
        if n == 1: holes = {4: lambda: (a("s_waitcnt lgkmcnt(0)"), a(f"v_readfirstlane_b32 s{sT0}, v{vT0}"))}
        if n == 2: holes = {4: lambda: (a(f"s_cmp_lt_u32 s{sT0}, 8"), a("s_cbranch_scc1 A_OWAIT"), a.label("A_OFREE"))}
        if n >= 3:
            i = seq[n - 2]
            holes = {2: lambda: wr(i, 0), 3: lambda: wr(i, 1), 4: lambda: wr(i, 2)}
        if n == 4: holes[1] = lambda: (a(f"s_lshl_b32 s{sKOK}, s{sMODE}, 3"), a(f"s_add_u32 s{sKOK}, s{sKOK}, 4"))
        if n == 5: holes[4] = lambda: (wr(i, 2), cnt_arrive(a, vCNT, vT0, off=12))
        if n == (6 if opt("ein") else 7): holes[3] = lambda: (a(f"ds_read_b32 v{vT0}, v{vCNT} offset:12"), wr(i, 1))
        if n == 7 and opt("ein"):
            holes = {0: lambda: (echeck(), rd(0, 0), rd(0, 1)), 1: lambda: (rd(0, 2), rd(0, 3)), 2: lambda: (wr(i, 0), rd(0, 4), rd(0, 5)),
                     3: lambda: (wr(i, 1), rd(0, 6), rd(0, 7)), 4: lambda: (wr(i, 2), rd(0, 8))}
        slot(n & 3, nxt, prv, holes)
    a("s_nop 1")
    pv(0, 3, 1, 1); pv(1, 3, 1, 1)
    a.stamp(11); a.stamp(NSTAMP + 3, True)
    a(f"s_mov_b64 {sr(sBAD, 2)}, 0")
    a(f"s_mov_b32 s{sT1}, {f32bits(2.0**100):#x}")
    for j in range(3): wr(7, j)
    if not opt("ein"):
        a(f"v_mov_b32 v{vT3}, 1")
        a("s_mov_b64 exec, 1")
        a(f"ds_add_u32 v{vCNT}, v{vT3}")
        a("s_mov_b64 exec, -1")
        echeck(6)
        for k in range(9): rd(0, k)
    else: cnt_arrive(a, vCNT, vT0)
    a(f"s_add_u32 s{sTGT}, s{sTGT}, 4")
    a(f"s_max_u32 s{sTGT}, s{sTGT}, 12")
    Z = 52
    for e in range(2):
        A = O(e); P = 128 + 8 * e
        if e == 1:
            cnt_arrive(a, vCNT, vT0, off=12)
            cnt_wait(a, vCNT, vT0, f"s{sTGT}")
            a.stamp(12)
            for k in range(9): rd(1, k)
        for s in range(3):
            if e == 1 or not opt("ein"): a(f"s_waitcnt lgkmcnt({6 - 3*s})")
            elif s == 0: a("s_waitcnt lgkmcnt(4)")
            for j in range(6): a(f"v_pk_add_f32 {vr(A+2*j, 2)}, {vr(A+2*j, 2)}, {vr(RB[e][s]+2*j, 2)}")
        a(f"v_mov_b32 v{vT0}, v{A+8}")
        a(f"v_mov_b32 v{vT2}, v{A+8}")
        a(f"v_pk_mul_f32 {vr(Z, 2)}, {vr(A, 2)}, 0 op_sel_hi:[1,0]")
        a(f"v_pk_fma_f32 {vr(Z, 2)}, {vr(A+2, 2)}, 0, {vr(Z, 2)} op_sel_hi:[1,0,1]")
        a(f"v_permlane32_swap_b32 v{vT0}, v{vT2}")
        a(f"v_rcp_f32 v{vT3}, v{vT2}")
        a(f"v_cmp_nlt_f32 vcc, v{vT2}, s{sT1}")
        for j in range(2, 6): a(f"v_pk_fma_f32 {vr(Z, 2)}, {vr(A+2*j, 2)}, 0, {vr(Z, 2)} op_sel_hi:[1,0,1]")
        a(f"s_or_b64 {sr(sBAD, 2)}, {sr(sBAD, 2)}, vcc")
        a(f"v_cmp_nlt_f32 vcc, {f32bits(2.0**-60):#x}, v{vT2}")
        for j in range(6): a(f"v_pk_mul_f32 {vr(A+2*j, 2)}, {vr(A+2*j, 2)}, {vr(vT2, 2)} op_sel:[0,1] op_sel_hi:[1,1]")
        a(f"s_or_b64 {sr(sBAD, 2)}, {sr(sBAD, 2)}, vcc")
        a(f"v_cmp_u_f32 vcc, v{Z}, v{Z+1}")
        for j in range(6): a(f"v_cvt_pk_bf16_f32 v{P+j}, v{A+2*j}, v{A+2*j+1}")
        a(f"s_or_b64 {sr(sBAD, 2)}, {sr(sBAD, 2)}, vcc")
        a(f"s_cmp_lg_u32 s{sMODE}, 0")
        a(f"s_cselect_b64 {sr(sBAD, 2)}, 0, {sr(sBAD, 2)}")
        for j in range(6): a(f"v_min_u32 v{P+j}, -2, v{P+j}")
        L = a.uid("NOST")
        a(f"s_cmp_lg_u64 {sr(sBAD, 2)}, 0")
        a(f"s_cbranch_scc1 {L}")
        stores(a, [f"buffer_store_dwordx4 {vr(P, 4)}, v{vKM}, {sr(SWS)}, s{sOm} offen offset:{1024*e}",
                   f"buffer_store_dwordx2 {vr(P+4, 2)}, v{vQT}, {sr(SWS)}, s{sOt} offen offset:{512*e}"])
        a.label(L)
    a(f"s_cmp_lg_u64 {sr(sBAD, 2)}, 0")
    a(f"s_cselect_b32 s{sBAD}, 0x10001, 1")
    cnt_arrive(a, vCNT, vT0, f"s{sBAD}")
    a.stamp(13)
    a("s_setprio 0")
    a(f"s_add_u32 s{sTGT}, s{sTGT}, 4")
    srd(a, SX, pX, 2048 * 1280)
    cnt_wait(a, vCNT, vT0, f"s{sTGT}")
    a(f"s_lshr_b32 s{sT0}, s{sT0}, 16")
    a(f"s_cmp_lg_u32 s{sMODE}, 0")
    a(f"s_cselect_b32 s{sT0}, 0, s{sT0}")
    a(f"s_cmp_lg_u32 s{sT0}, 0")
    a("s_cbranch_scc1 A_RESTART")
    a.stamp(14)
    if PROFILE and opt("iter"):
        a.ldump(0)
        a(f"s_lshl_b32 s100, s{sW}, 6")
        a("v_add_u32 v0, s100, v1")
    final_stage(a, -256, 16, 32, 20, 21, True, 0)
    final_stage(a, 256, 24, 80, 22, 23, "addr", 0)
    a(f"s_cmp_ge_u32 s{sW}, 6")
    a("s_cbranch_scc1 A_F1")
    final_stage(a, 256, 24, 80, 22, 23, "load", 0)
    a.label("A_F1")
    a("s_waitcnt vmcnt(0)")
    final_stage(a, -256, 16, 32, 20, 21, False, 2)
    final_stage(a, 256, 24, 80, 22, 23, False, 2)
    a.stamp(15)
    a("s_barrier")
    final_stage(a, -256, 16, 32, 20, 21, False, 1)
    final_stage(a, -256, 16, 32, 20, 21, False, 3)
    a("s_barrier")
    a.stamp(16)
    a(f"s_cmp_ge_u32 s{sW}, 6")
    a("s_cbranch_scc1 A_F2")
    final_stage(a, 256, 24, 80, 22, 23, False, 1)
    final_stage(a, 256, 24, 80, 22, 23, False, 3)
    a.label("A_F2")
    a.end()
    a.label("A_EWAIT")
    cnt_wait(a, vCNT, vT0, f"s{sKOK}", 0, off=12)
    a("s_branch A_EOK")
    a.label("A_OWAIT")
    cnt_wait(a, vCNT, vT0, 8, 1)
    a("s_branch A_OFREE")
    a.label("A_RESTART")
    a(f"s_mov_b32 s{sMODE}, 1")
    a("s_waitcnt vmcnt(0)")
    att_zero(a)
    a("s_branch A_RELOAD")
    a.label("A_TRUEMAX")
    for i in range(2, 8): ldq(i)
    M = S[2]
    for i in range(8): a(f"v_mov_b32 v{M+i}, 0xff800000")
    a(f"s_sub_u32 s{sT1}, s{sKV}, {KV_REC}")
    a(f"s_mov_b32 s{sCNT}, 16")
    TK, TT = S[1], S[1] + 4
    a.label("A_TM_LOOP")
    a(f"buffer_load_dwordx4 {vr(TK, 4)}, v{vKM}, {sr(SWS)}, s{sT1} offen sc1")
    a(f"buffer_load_dwordx2 {vr(TT, 2)}, v{avKT}, {sr(SWS)}, s{sT1} offen sc1")
    a("s_waitcnt vmcnt(0)")
    for i in range(8):
        a(f"v_mfma_f32_32x32x16_bf16 {vr(S[0], 16)}, {vr(TK, 4)}, {vr(QM(i), 4)}, 0")
        a(f"v_mfma_f32_32x32x8_bf16 {vr(S[0], 16)}, {vr(TT, 2)}, {vr(QT(i), 2)}, {vr(S[0], 16)}")
        a("s_nop 11")
        for j in range(0, 16, 2): a(f"v_max3_f32 v{M+i}, v{M+i}, v{S[0]+j}, v{S[0]+j+1}")
    a(f"s_add_u32 s{sT1}, s{sT1}, {KV_REC}")
    a(f"s_sub_u32 s{sCNT}, s{sCNT}, 1")
    a(f"s_cmp_lg_u32 s{sCNT}, 0")
    a("s_cbranch_scc1 A_TM_LOOP")
    for i in range(8):
        halfop(a, "v_max_f32", M + i, vT0)
        a(f"v_add_u32 v{vT1}, {L_OP - L_MREC}, v{vP+i//2}")
        a(f"ds_write_b32 v{vT1}, v{M+i} offset:{(i//2)*2048 + (i&1)*256}")
    cnt_arrive(a, vCNT, vT0)
    a(f"s_add_u32 s{sTGT}, s{sTGT}, 4")
    cnt_wait(a, vCNT, vT0, f"s{sTGT}")
    a(f"v_add_u32 v{vT1}, {L_OP - L_MREC}, v{vP}")
    for e in range(2):
        for s in range(1, 4): a(f"ds_read_b32 v{S[0]+4*e+s}, v{vT1} offset:{s*2048 + e*256}")
    a("s_waitcnt lgkmcnt(0)")
    for e in range(2):
        a(f"v_max3_f32 v{M+e}, v{M+e}, v{S[0]+4*e+1}, v{S[0]+4*e+2}")
        a(f"v_max_f32 v{M+e}, v{M+e}, v{S[0]+4*e+3}")
    a("s_mov_b32 exec_lo, 0")
    for e in range(2):
        a(f"v_sub_f32 v{M+e}, 0, v{M+e}")
        split3(a, M + e, vT0, vT1, QT(e), QT(e) + 1)
    a("s_branch A_HAVEMAX")

def gen_ffn(a):
    vL, vL16, vTR, vZ = 1, 2, 3, 7
    vA, vG, vPW, vPW2, X = 4, 5, 0, 6, 8
    vNV, vCNT, vT0, vT1 = 12, 13, 14, 15
    F = lambda t: 16 + 16 * t
    WO = lambda k: 96 + 20 * k
    HB = lambda u: 216 + 4 * u
    SL = lambda j: j & 3
    SWO = SDBG
    def dma_piece(p, slot, vd=fD):
        dma(a, p, vd, SA, sSO, sM0, L_RING + slot*20480, opt("fm0"))
    def trr(dst, slot, t, va=vTR):
        a(f"ds_read_b64_tr_b16 {vr(dst+4*t, 2)}, v{va} offset:{slot*20480 + 64*t}")
        a(f"ds_read_b64_tr_b16 {vr(dst+4*t+2, 2)}, v{va} offset:{slot*20480 + 64*t + 2560}")
    def hload(u):
        a(f"buffer_load_dwordx4 {vr(HB(u), 4)}, v{vL16}, {sr(SWS)}, s{sHO} offen sc1")
        if opt("xh2"):
            a(f"s_xor_b32 s{sT2}, s{sHO}, 0x40000")
            a(f"buffer_load_dwordx4 {vr(HB(u), 4)}, v{vL16}, {sr(SWS)}, s{sT2} offen sc1")
        a(f"s_add_u32 s{sHO}, s{sHO}, 1024")
    def stage(i, ks):
        row = 16 + 80 * (ks - 8) if ks >= 8 else 20 * ks
        a(f"s_add_u32 s{sT1}, s{sWOB}, {row*1280}")
        for p in range(5):
            dma(a, p, fD2 if ks >= 8 else fD, SWO, sT1, sM0, i*20480)
    def mf(t, w, h): a(f"v_mfma_f32_32x32x16_bf16 {vr(F(t), 16)}, {vr(w+4*t, 4)}, {vr(h, 4)}, {vr(F(t), 16)}")
    sWOB = sWBASE
    if not opt("pre1"): ffn_pre(a, vL, vT0, vT1)
    srd(a, SA, pW2, 1728 * 1280)
    a(f"s_mul_i32 s{sM0}, s{sQ}, 5120")
    a(f"s_mul_i32 s{sCOL}, s{sHG}, 320")
    a(f"s_mul_i32 s{sSO}, s{sQ}, {27*16*1280}")
    a(f"s_add_u32 s{sSO}, s{sSO}, s{sCOL}")
    a(f"s_add_u32 s{sSO}, s{sSO}, {NS*16*1280}")
    a(f"s_mov_b32 s{sSTEP}, {16*1280}")
    if opt("xpar"):
        a(f"s_and_b32 s{sT0}, s{sT}, 1")
        a(f"s_mul_i32 s{sT0}, s{sT0}, {16*1280}")
        a(f"s_add_u32 s{sSO}, s{sSO}, s{sT0}")
    def fill(js):
        for j in js:
            for p in range(5): dma_piece(p, j)
            a(f"s_add_u32 s{sSO}, s{sSO}, s{sSTEP}")
    NE = optv("ne", 1)
    fill(range(NS, min(4, NS + NE)))
    a("v_mov_b64 v[246:247], 0")
    a(f"v_lshlrev_b32 v{vL16}, 4, v{vL}")
    a(f"v_mov_b32 v{vCNT}, {L_CNT}")
    for t in range(5): zero16(a, F(t), 246)
    a(f"v_mov_b32 v{vTR}, v{fTR}")
    a(f"v_mov_b32 v{vA}, v{fA}")
    a(f"v_mov_b32 v{vG}, v{fG}")
    a(f"v_mov_b32 v{vPW}, v{fPW}")
    a(f"v_add_u32 v{vPW2}, 40960, v{fPW}")
    a(f"v_mov_b32 v{vNV}, s{sNON}")
    a(f"v_mov_b32 v245, 1")
    srd(a, SX, pX, 2048 * 1280)
    srd(a, SB, pOUT, 2048 * 1280)
    srd(a, SWO, pWO, 640 * 1280)
    a(f"s_mul_i32 s{sWOB}, s{sQ}, {160*1280}")
    a(f"s_add_u32 s{sWOB}, s{sWOB}, s{sCOL}")
    a(f"s_lshl_b32 s{sFC}, s{sT}, 2")
    a(f"s_add_u32 s{sFC}, s{sFC}, s{sQ}")
    a(f"s_mul_i32 s{sHO}, s{sQ}, {27*1024}")
    a(f"s_add_u32 s{sHO}, s{sHO}, s{sG}")
    a(f"s_add_u32 s{sHO}, s{sHO}, {20*2048}")
    check_fast(a, vT1, vT0)
    a.stamp(6)
    cnt_wait(a, vCNT, vT0, 4, 1, off=(8 if opt("nogatem") else 0))
    fill(range(min(4, NS + NE), 4))
    a.stamp(7)
    poll(a, fH, vT1, "0", 2)
    check_fast(a, vT1, vT0)
    a.stamp(9)
    if opt("th"):
        a(f"s_mul_i32 s{sT0}, s{sHG}, {54*128}")
        a(f"s_add_u32 s{sT0}, s{sT0}, s{sHO}")
        a(f"v_lshlrev_b32 v{vT0}, 7, v{vL}")
    for u in range(4): hload(u)
    if opt("th"):
        a("s_mov_b32 exec_hi, 0x3fffff")
        a(f"buffer_load_dword v{vT1}, v{vT0}, {sr(SWS)}, s{sT0} offen sc1")
        a("s_mov_b32 exec_hi, -1")
    for t in range(5): trr(WO(0), SL(0), t)
    a(f"s_mov_b32 s{sC}, 0")
    a("s_waitcnt vmcnt(0)")
    a.stamp(10); a.stamp(NSTAMP + 2, True)
    B0 = optv("b0", 1)
    a.raw(".p2align 3")
    a.label("F_LOOP")
    for u in range(4):
        if u == 3:
            a(f"s_cmp_eq_u32 s{sC}, 6")
            a("s_cbranch_scc1 F_DONE")
            a(f"s_cmp_lg_u32 s{sC}, 5")
            a("s_cbranch_scc1 F_NS")
            srd(a, SA, pWO, 640 * 1280)
            a(f"s_add_u32 s{sSO}, s{sWOB}, {20*1280}")
            a(f"s_mov_b32 s{sSTEP}, {40*1280}")
            a(f"s_mov_b32 s{sHO}, 0x40000000")
            a(f"buffer_load_dword v{fH}, v{fO}, {sr(SWS)}, 0 offen sc1")
            a.label("F_NS")
        a("s_waitcnt vmcnt(13) lgkmcnt(0)" if not opt("xhalf") else f"s_waitcnt vmcnt({11 if opt('xh2') else 8}) lgkmcnt(0)")
        for t in range(5):
            if opt("xdirect"):
                mf(t, WO(u), HB(u))
                a(f"buffer_load_dwordx4 {vr(WO(u)+4*t, 4)}, v{fD+t}, {sr(SA)}, s{sSO} offen")
                a("s_nop 7")
                a("s_nop 1")
                continue
            mf(t, WO(0), HB(u))
            if opt("xnotr"):
                dma_piece(t, SL(u))
                a("s_nop 5")
                continue
            if opt("xhalf") and (u & 1):
                a("s_sleep 1")
                continue
            if opt("dfirst"):
                dma_piece(t, SL(u))
                trr(WO(0), SL(u + 1), t)
            else:
                trr(WO(0), SL(u + 1), t)
                dma_piece(t, SL(u))
            if opt("jit") and t < 4: a("s_waitcnt lgkmcnt(0)")
        a(f"s_add_u32 s{sSO}, s{sSO}, s{sSTEP}")
        hload(u)
    a(f"s_add_u32 s{sC}, s{sC}, 1")
    a(f"s_sub_u32 s{sT0}, s{sC}, {B0 + 1}")
    a(f"s_cmp_ge_u32 s{sT0}, 3")
    a("s_cbranch_scc1 F_LOOP")
    a(f"s_cmp_eq_u32 s{sT0}, 1")
    a("s_cbranch_scc1 F_X1")
    a(f"s_cmp_eq_u32 s{sT0}, 2")
    a("s_cbranch_scc1 F_X2")
    a(f"s_lshl_b32 s{sT1}, s{sT}, 2")
    a(f"s_add_u32 s{sT1}, s{sT1}, s{sHG}")
    a(f"s_mul_i32 s{sT1}, s{sT1}, 10240")
    a(f"s_mul_i32 s{sT0}, s{sQ}, 3072")
    a(f"s_min_u32 s{sT0}, s{sT0}, 7168")
    a(f"s_add_u32 s{sT0}, s{sT0}, s{sT1}")
    a(f"s_add_u32 s{sT0}, s{sT0}, {WS_O}")
    stores(a, [f"buffer_store_dwordx4 {vr(fBL, 4)}, v{vL16}, {sr(SWS)}, s{sT0} offen offset:{1024*e}" for e in range(3)])
    for i in range(3): stage(i, 2 * i)
    a("s_branch F_LOOP")
    a.label("F_X1")
    for i in range(3):
        for t in range(5): trr(WO(1 + i), i, t, fSTG)
    a(f"s_lshl_b32 s{sT0}, s{sQ}, 2")
    a(f"s_add_u32 s{sT0}, s{sT0}, s{sF2}")
    a("s_mov_b64 exec, 1")
    stores(a, [f"buffer_store_dword v{vNV}, v{vZ}, {sr(SWS)}, s{sT0} offen offset:16"])
    a("s_mov_b64 exec, -1")
    a("s_waitcnt lgkmcnt(0)")
    stage(0, 6); stage(1, 9)
    a("s_branch F_LOOP")
    a.label("F_X2")
    for i in range(2):
        for t in range(5): trr(WO(4 + i), i, t, fSTG)
    cnt_wait(a, vCNT, vT0, 4, 1)
    a("s_mov_b64 exec, 1")
    a(f"ds_add_u32 v{vCNT}, v245")
    a("s_mov_b64 exec, -1")
    a("s_branch F_LOOP")
    a.label("F_DONE")
    a.stamp(11); a.stamp(NSTAMP + 3, True)
    a(f"s_add_u32 s{sSO}, s{sWOB}, {16*1280}")
    a("s_waitcnt lgkmcnt(0)")
    for t in range(5): dma_piece(t, SL(27), fD2)
    final_stage(a, 0, X, 0, vA, vG, "load", 0)
    a(f"v_cmp_ne_u32 vcc, s{sNON}, v{fH}")
    a("s_cbranch_vccz F_BOK")
    poll(a, fO, vT1, "0", 4)
    a.label("F_BOK")
    a(f"s_mul_i32 s{sHO}, s{sFC}, 10240")
    a(f"s_add_u32 s{sHO}, s{sHO}, {WS_O}")
    a(f"s_add_u32 s{sSO}, s{sHO}, 4096")
    a(f"s_add_u32 s{sT1}, s{sHO}, 8192")
    a.stamp(12)
    def oloads(ks):
        for k in ks:
            so = (sHO, sSO, sT1)[k // 4]
            a(f"buffer_load_dwordx4 {vr(HB(k), 4)}, v{vL16}, {sr(SWS)}, s{so} offen offset:{(k%4)*1024} sc1")
    def ocheck(ks):
        for n, k in enumerate(ks):
            a(f"s_waitcnt vmcnt({len(ks)-1-n})")
            if n == 0:
                a(f"v_max3_u32 v{vT0}, v{HB(k)}, v{HB(k)+1}, v{HB(k)+2}")
                a(f"v_max_u32 v{vT0}, v{vT0}, v{HB(k)+3}")
            else:
                a(f"v_max3_u32 v{vT0}, v{vT0}, v{HB(k)}, v{HB(k)+1}")
                a(f"v_max3_u32 v{vT0}, v{vT0}, v{HB(k)+2}, v{HB(k)+3}")
        a(f"v_cmp_eq_u32 vcc, -1, v{vT0}")
    even, rest = [0, 2, 4, 6], [1, 9, 3, 5, 7, 8]
    WR = [WO(0), WO(5), WO(1), WO(2), WO(3), WO(4)]
    cnt_wait(a, vCNT, vT0, 8, 1, off=12)
    a.stamp(13)
    a(f"s_mov_b32 s{sSPIN}, {SPIN}")
    a.label("F_O")
    oloads(even); ocheck(even)
    a("s_cbranch_vccz F_OD")
    a("s_sleep 1")
    spin_tail(a, "F_O")
    a.label("F_OD")
    a.stamp(8)
    for n in range(4):
        if n == optv("on", 1): oloads(rest)
        for t in range(5):
            mf(t, WO(1 + n), HB(even[n]))
            trr(WO(1 + n), SL(28 + n), t)
    cnt_wait(a, vCNT, vT0, 16, 1)
    a(f"s_cmp_lt_u32 s{sT0}, 0x10000")
    a("s_cbranch_scc1 F_NORE")
    cnt_wait(a, vCNT, vT0, 32, 8)
    a.label("F_NORE")
    a(f"s_mov_b32 s{sSPIN}, {SPIN}")
    a.label("F_O2")
    ocheck(rest)
    a("s_cbranch_vccz F_OD2")
    oloads(rest)
    spin_tail(a, "F_O2")
    a("s_waitcnt vmcnt(0)")
    a.label("F_OD2")
    a.stamp(14)
    def fwr(t, g):
        va, off = (vPW, t * 20480) if t < 2 else (vPW2, (t - 2) * 20480)
        a(f"ds_write_b128 v{va}, {vr(F(t)+4*g, 4)} offset:{off + 32*g}")
    for t in range(5):
        for m in range(6):
            mf(t, WR[m], HB(rest[m]))
            if t > 0:
                if t == 3 and m == 1:
                    a("s_waitcnt lgkmcnt(0)")
                    a("s_barrier")
                    a("s_nop 2")
                elif m < 2: a("s_nop 4")
                else: fwr(t - 1, m - 2)
    final_stage(a, 0, X, 176, vA, vG, False, 2)
    a("s_nop 3")
    a.stamp(15)
    for g in range(4): fwr(4, g)
    a("s_waitcnt lgkmcnt(0)")
    a("s_barrier")
    a.stamp(16)
    final_stage(a, 0, X, 176, vA, vG, False, 1)
    final_stage(a, 0, X, 176, vA, vG, False, 3)
    a.end()
```

```python
from g18 import *

LD = {"plain": "", "nt": " nt", "sc0": " sc0"}.get(sys.argv[sys.argv.index("--ld") + 1] if opt("ld") else "", " sc1")
LDO = " nt" if opt("ldo") else " sc1"
def cnt_arrive(a, vaddr, vtmp, inc="1", off=0):
    a(f"v_mov_b32 v{vtmp}, {inc}")
    a("s_mov_b64 exec, 1")
    a(f"ds_add_u32 v{vaddr}, v{vtmp}" + (f" offset:{off}" if off else ""))
    a("s_mov_b64 exec, -1")
def cnt_wait(a, vaddr, vtmp, tgt, sleep=0, off=0):
    L, D = a.uid("CW"), a.uid("CWD")
    a(f"s_mov_b32 s{sSPIN}, {SPIN * 16}")
    a.label(L)
    a(f"ds_read_b32 v{vtmp}, v{vaddr}" + (f" offset:{off}" if off else ""))
    a("s_waitcnt lgkmcnt(0)")
    a(f"v_readfirstlane_b32 s{sT0}, v{vtmp}")
    a(f"s_and_b32 s{sT2}, s{sT0}, 0xffff")
    a(f"s_cmp_ge_u32 s{sT2}, {tgt}")
    a(f"s_cbranch_scc1 {D}")
    if sleep: a(f"s_sleep {sleep}")
    spin_tail(a, L)
    a.label(D)

def final_stage(a, base_item, X, R, vA, vG, load_x, do_rest):
    if load_x and load_x != "load":
        a(f"s_mov_b32 s100, {L_FP}")
        item_addr(a, base_item, vA, vG, X)
    if load_x and load_x != "addr":
        a(f"buffer_load_dwordx4 {vr(X, 4)}, v{vG}, {sr(SX)}, s{sOB} offen")
    if do_rest == 1:
        for s in range(4):
            a(f"ds_read_b128 {vr(R+8*s, 4)}, v{vA} offset:{s*5120}")
            a(f"ds_read_b128 {vr(R+8*s+4, 4)}, v{vA} offset:{s*5120+16}")
    if do_rest == 2:
        for j in range(4):
            a(f"v_lshlrev_b32 v{R+32+2*j}, 16, v{X+j}")
            a(f"v_and_b32 v{R+33+2*j}, 0xffff0000, v{X+j}")
    if do_rest >= 3:
        for s in range(4):
            a(f"s_waitcnt lgkmcnt({6-2*s + (do_rest-3)})")
            for j in range(4):
                a(f"v_pk_add_f32 {vr(R+32+2*j, 2)}, {vr(R+32+2*j, 2)}, {vr(R+8*s+2*j, 2)}")
        if opt("xscale"):
            for j in range(8): a(f"v_mul_f32 v{R+32+j}, {f32bits(1 + optv('xscale', 0) / 1000.0):#x}, v{R+32+j}")
        if opt("xone"):
            a("s_cmp_eq_u32 s2, 77")
            a("s_cselect_b64 exec, 1, 0")
            a(f"v_add_f32 v{R+32}, {f32bits(optv('xone', 0) / 100.0):#x}, v{R+32}")
            a("s_mov_b64 exec, -1")
        for j in range(4): a(f"v_cvt_pk_bf16_f32 v{X+j}, v{R+32+2*j}, v{R+33+2*j}")
        a(f"buffer_store_dwordx4 {vr(X, 4)}, v{vG}, {sr(SB)}, s{sOB} offen")

def gen_att(a):
    vL, vKM, vQT, vIDX, vT0, vT1, vCNT = 1, 2, 3, 4, 5, 6, 7
    vP = 8
    vT2, vT3 = 12, 13
    vFL = 23
    S, O, QM, QT, KM, KT, V0, V1 = aS, aO, aQM, aQT, aKM, aKT, aV0, aV1
    def qk1(s, kb, q): a(f"v_mfma_f32_32x32x16_bf16 {vr(S[s], 16)}, {vr(KM[kb], 4)}, {vr(QM(q), 4)}, 0")
    def qk2(s, kb, q): a(f"v_mfma_f32_32x32x8_bf16 {vr(S[s], 16)}, {vr(KT[kb], 2)}, {vr(QT(q), 2)}, {vr(S[s], 16)}")
    if opt("f2"):
        def qk1(s, kb, q): a(f"v_mfma_f32_32x32x8_bf16 {vr(S[s], 16)}, {vr(KT[kb], 2)}, {vr(QT(q), 2)}, 0")
        def qk2(s, kb, q): a(f"v_mfma_f32_32x32x16_bf16 {vr(S[s], 16)}, {vr(KM[kb], 4)}, {vr(QM(q), 4)}, {vr(S[s], 16)}")
    def pv(u, s, vb, q): a(f"v_smfmac_f32_32x32x32_bf16 {vr(O(q), 16)}, {vr((V0, V1)[u][vb], 4)}, {vr(S[s]+8*u, 8)}, v{vIDX}")
    def ldq(i):
        a(f"buffer_load_dwordx4 {vr(QM(i), 4)}, v{vKM}, {sr(SWS)}, s{sPm+i//2} offen" + (" offset:1024" if i & 1 else "") + LD)
        a(f"buffer_load_dwordx2 {vr(QT(i), 2)}, v{vQT}, {sr(SWS)}, s{sPt+i//2} offen" + (" offset:512" if i & 1 else "") + LD)
    def qregs(lo, hi): return list(range(QM(lo), QM(hi))) + list(range(QT(lo), QT(hi)))
    def rowmax(s, dst):
        b = S[s]
        a(f"v_max3_f32 v{dst}, v{b}, v{b+1}, v{b+2}")
        for j in range(3, 15, 2): a(f"v_max3_f32 v{dst}, v{dst}, v{b+j}, v{b+j+1}")
        a(f"v_max_f32 v{dst}, v{dst}, v{b+15}")
    def pair_addr(mul, base, vlane, shift):
        for j in range(4):
            a(f"s_add_u32 s{sT0}, s{sQ}, {j}")
            a(f"s_and_b32 s{sT0}, s{sT0}, 3")
            a(f"s_mul_i32 s{sT0}, s{sT0}, {mul}")
            a(f"s_add_u32 s{sT0}, s{sT0}, {base}")
            a(f"v_lshl_add_u32 v{vP+j}, v{vlane}, {shift}, s{sT0}")

    if not opt("latep"): a("s_setprio 3")
    a(f"s_mov_b32 s{sMODE}, 0")
    a(f"v_lshlrev_b32 v{vKM}, 4, v{vL}")
    a(f"v_mov_b32 v{vT0}, {OOB:#x}")
    a(f"v_cmp_gt_u32 vcc, 32, v{vL}")
    a(f"v_mov_b32 v{vIDX}, 0xdddddddd")
    a(f"v_mov_b32 v{vCNT}, {L_CNT}")
    a(f"v_cndmask_b32 v{vQT}, v{vT0}, v{vKM}, vcc")
    cnt_arrive(a, vCNT, vT0, off=8)
    a.stamp(6)
    a(f"s_cmp_lg_u32 s{sKOK}, 0")
    a("s_cbranch_scc1 A_HAVEKV")
    a("s_mov_b32 exec_hi, 0")
    poll(a, vFL, vT0, "0")
    a("s_mov_b32 exec_hi, -1")
    a.label("A_RELOAD")
    kv_first(a, vKM)
    a.label("A_HAVEKV")
    check_fast(a, vT1, vT0)
    a(f"v_and_b32 v{vT1}, 31, v{vL}")
    pair_addr(512, L_MREC, vT1, 3)
    flag_words(a, vT1, vL)
    a.stamp(7)
    poll(a, vT1, vT0, f"s{sFQ}", optv("qsleep", 1))
    check_fast(a, vT1, vT0)
    a.stamp(8)
    if opt("latep"): a("s_setprio 3")
    ldq(0); ldq(1)
    a(f"s_cmp_lg_u32 s{sMODE}, 0")
    a("s_cbranch_scc1 A_TRUEMAX")
    a.c("stand-in for the row max: max over this wave's first 32 keys; checked after the loop, exact-max rerun if unsafe")
    ldq(2); ldq(3)
    a("s_waitcnt vmcnt(4)")
    qk1(0, 0, 0); qk2(0, 0, 0); qk1(1, 0, 1); qk2(1, 0, 1)
    for i in range(4, 8): ldq(i)
    a("s_nop 1")
    rowmax(0, S[2]); rowmax(1, S[2] + 1)
    a(f"v_mov_b32 v{vT0}, v{S[2]}")
    a(f"v_mov_b32 v{vT1}, v{S[2]+1}")
    a("s_nop 0")
    a(f"v_permlane32_swap_b32 v{vT0}, v{S[2]}")
    a(f"v_permlane32_swap_b32 v{vT1}, v{S[2]+1}")
    a(f"v_max_f32 v{S[2]}, v{S[2]}, v{vT0}")
    a(f"v_max_f32 v{S[2]+1}, v{S[2]+1}, v{vT1}")
    a("s_mov_b32 exec_lo, 0")
    for e in range(2): a(f"v_cvt_pk_bf16_f32 v{QT(e)}, -v{S[2]+e}, 0")
    a.label("A_HAVEMAX")
    for e in range(2): a(f"ds_write_b64 v{vP}, {vr(QT(e), 2)} offset:{256*e}")
    a("s_mov_b32 exec_lo, -1")
    cnt_arrive(a, vCNT, vT0)
    a(f"s_add_u32 s{sTGT}, s{sTGT}, 4")
    a(f"s_mov_b32 s{sCNT}, 8")
    a.stamp(9)
    a.stamp(10); a.stamp(NSTAMP + 2, True)
    qk1(0, 0, 0); qk2(0, 0, 0)
    a("s_cmp_lg_u32 0, 0")
    a("s_nop 10")
    a.raw(".p2align 6")
    a.label("A_LOOP")
    PAT0 = (4, 3, 3, 3, 3) if opt("f2") else (3, 3, 4, 3, 3)
    PAT1 = tuple(int(ch) for ch in sys.argv[sys.argv.index("--pat1") + 1]) if opt("pat1") else PAT0
    PMASK = optv("pmask", 0)
    def slot(sc, nxt, prv, holes, PAT=PAT0):
        e = [0]
        def exps(n):
            for _ in range(n):
                a(f"v_exp_f32 v{S[sc]+e[0]}, v{S[sc]+e[0]}"); e[0] += 1
        ms = [lambda: qk1((sc + 1) & 3, *nxt), lambda: pv(0, (sc - 1) & 3, *prv), lambda: qk2((sc + 1) & 3, *nxt), lambda: pv(1, (sc - 1) & 3, *prv)]
        for j in range(4):
            if nxt is not None or j & 1: ms[j]()
            if j in holes: holes[j]()
            exps(PAT[j])
        holes[4]()
        exps(PAT[4])
    for kb in range(2):
        for q in range(8):
            def hole():
                if q == 0:
                    if kb == 0:
                        a("s_cbranch_scc0 A_FIRST")
                        a.label("A_FIRSTD")
                    a("s_waitcnt vmcnt(2)"); ldv(a, 0, kb ^ 1)
                elif q == 1: ldv(a, 1, kb ^ 1)
                elif q == 2: a(f"s_add_u32 s{sKV}, s{sKV}, {KV_REC}")
                elif q == 3 and kb == 0: a(f"s_sub_u32 s{sCNT}, s{sCNT}, 1")
                elif q == 4 and kb == 0: a(f"s_cmp_eq_u32 s{sCNT}, 0")
                elif q == 4: a("s_cmp_eq_u32 0, 0")
                elif q == 5: a("s_waitcnt vmcnt(2)")
                elif q == 6: ldkm(a, kb, vKM)
                elif q == 7: ldkt(a, kb)
                elif opt("nop"): a("s_nop 0")
            slot(q & 3, ((kb if q < 7 else kb ^ 1), (q + 1) & 7), ((kb if q > 0 else kb ^ 1), (q - 1) & 7), {4: hole}, PAT1 if (PMASK >> q) & 1 else PAT0)
        if kb == 0:
            a.lstamp(sCNT, 0)
            a("s_cbranch_scc1 A_LAST")
    a("s_branch A_LOOP")
    a.label("A_FIRST")
    a(f"s_mov_b32 s{sSPIN}, {SPIN * 16}")
    a("s_waitcnt vmcnt(0)")
    a.label("A_F0")
    a(f"ds_read_b32 v{vT1}, v{vCNT}")
    a("s_mov_b32 exec_lo, 0")
    for i in range(2, 8): a(f"ds_read_b64 {vr(QT(i), 2)}, v{vP+i//2} offset:{256*(i&1)}")
    a("s_mov_b32 exec_lo, -1")
    a("s_waitcnt lgkmcnt(6)")
    a(f"v_readfirstlane_b32 s{sT0}, v{vT1}")
    a(f"s_and_b32 s{sT0}, s{sT0}, 0xffff")
    a(f"s_cmp_ge_u32 s{sT0}, s{sTGT}")
    a("s_cbranch_scc1 A_F0D")
    spin_tail(a, "A_F0")
    a.label("A_F0D")
    a(f"v_and_b32 v{vT0}, 31, v{vL}")
    a(f"v_mul_u32_u24 v{vT0}, {8*36}, v{vT0}")
    a(f"v_sub_u32 v{vT0}, v{vKM}, v{vT0}")
    a(f"v_add_u32 v{vT0}, {(L_OP - 36*L_MREC) & 0xffffffff:#x}, v{vT0}")
    for j in range(4): a(f"v_mad_u32_u24 v{vP+j}, v{vP+j}, 36, v{vT0}")
    a("s_waitcnt lgkmcnt(0)")
    a.lstamp("8", 0)
    a("s_branch A_FIRSTD")
    a.label("A_LAST")
    def wr(i, j): a(f"ds_write_b128 v{vP+i//2}, {vr(O(i)+4*j, 4)} offset:{(i&1)*9216 + (i//2-1)*3072 + j*1024}")
    seq = [0, 2, 4, 6, 3, 5, 7, 1]
    RB = [[188, 200, 216], [16, 28, 40]]
    def rd(e, k):
        s_, j = divmod(k, 3)
        a(f"ds_read_b128 {vr(RB[e][s_]+4*j, 4)}, v{vP} offset:{e*9216 + s_*3072 + j*1024}")
    def echeck(n=2):
        a(f"s_waitcnt lgkmcnt({n})")
        a(f"v_readfirstlane_b32 s{sT0}, v{vT0}")
        a(f"s_cmp_lt_u32 s{sT0}, s{sKOK}")
        a("s_cbranch_scc1 A_EWAIT")
        a.label("A_EOK")
    for n in range(8):
        nxt = (1, seq[n + 1]) if n < 7 else None
        prv = (1, seq[n - 1]) if n > 0 else (0, 7)
        if n == 0: holes = {4: lambda: (a("s_waitcnt vmcnt(2)"), a(f"ds_read_b32 v{vT0}, v{vCNT}"))}
        if n == 1: holes = {4: lambda: (a("s_waitcnt lgkmcnt(0)"), a(f"v_readfirstlane_b32 s{sT0}, v{vT0}"))}
        if n == 2: holes = {4: lambda: (a(f"s_cmp_lt_u32 s{sT0}, 8"), a("s_cbranch_scc1 A_OWAIT"), a.label("A_OFREE"))}
        if n >= 3:
            i = seq[n - 2]
            holes = {2: lambda: wr(i, 0), 3: lambda: wr(i, 1), 4: lambda: wr(i, 2)}
        if n == 4: holes[1] = lambda: (a(f"s_lshl_b32 s{sKOK}, s{sMODE}, 3"), a(f"s_add_u32 s{sKOK}, s{sKOK}, 4"))
        if n == 5: holes[4] = lambda: (wr(i, 2), cnt_arrive(a, vCNT, vT0, off=12))
        if n == (6 if opt("ein") else 7): holes[3] = lambda: (a(f"ds_read_b32 v{vT0}, v{vCNT} offset:12"), wr(i, 1))
        if n == 7 and opt("ein"):
            holes = {0: lambda: (echeck(), rd(0, 0), rd(0, 1)), 1: lambda: (rd(0, 2), rd(0, 3)), 2: lambda: (wr(i, 0), rd(0, 4), rd(0, 5)),
                     3: lambda: (wr(i, 1), rd(0, 6), rd(0, 7)), 4: lambda: (wr(i, 2), rd(0, 8))}
        slot(n & 3, nxt, prv, holes)
    a("s_nop 1")
    pv(0, 3, 1, 1); pv(1, 3, 1, 1)
    a.stamp(11); a.stamp(NSTAMP + 3, True)
    a(f"s_mov_b64 {sr(sBAD, 2)}, 0")
    a(f"s_mov_b32 s{sT1}, {f32bits(2.0**100):#x}")
    for j in range(3): wr(7, j)
    if not opt("ein"):
        a(f"v_mov_b32 v{vT3}, 1")
        a("s_mov_b64 exec, 1")
        a(f"ds_add_u32 v{vCNT}, v{vT3}")
        a("s_mov_b64 exec, -1")
        echeck(6)
        for k in range(9): rd(0, k)
    else: cnt_arrive(a, vCNT, vT0)
    a(f"s_add_u32 s{sTGT}, s{sTGT}, 4")
    a(f"s_max_u32 s{sTGT}, s{sTGT}, 12")
    Z = 52
    for e in range(2):
        A = O(e); P = 128 + 8 * e
        if e == 1:
            cnt_arrive(a, vCNT, vT0, off=12)
            cnt_wait(a, vCNT, vT0, f"s{sTGT}")
            a.stamp(12)
            for k in range(9): rd(1, k)
        for s in range(3):
            if e == 1 or not opt("ein"): a(f"s_waitcnt lgkmcnt({6 - 3*s})")
            elif s == 0: a("s_waitcnt lgkmcnt(4)")
            for j in range(6): a(f"v_pk_add_f32 {vr(A+2*j, 2)}, {vr(A+2*j, 2)}, {vr(RB[e][s]+2*j, 2)}")
        a(f"v_mov_b32 v{vT0}, v{A+8}")
        a(f"v_mov_b32 v{vT2}, v{A+8}")
        a(f"v_pk_mul_f32 {vr(Z, 2)}, {vr(A, 2)}, 0 op_sel_hi:[1,0]")
        a(f"v_pk_fma_f32 {vr(Z, 2)}, {vr(A+2, 2)}, 0, {vr(Z, 2)} op_sel_hi:[1,0,1]")
        a(f"v_permlane32_swap_b32 v{vT0}, v{vT2}")
        a(f"v_rcp_f32 v{vT3}, v{vT2}")
        a(f"v_cmp_nlt_f32 vcc, v{vT2}, s{sT1}")
        for j in range(2, 6): a(f"v_pk_fma_f32 {vr(Z, 2)}, {vr(A+2*j, 2)}, 0, {vr(Z, 2)} op_sel_hi:[1,0,1]")
        a(f"s_or_b64 {sr(sBAD, 2)}, {sr(sBAD, 2)}, vcc")
        a(f"v_cmp_nlt_f32 vcc, {f32bits(2.0**-60):#x}, v{vT2}")
        for j in range(6): a(f"v_pk_mul_f32 {vr(A+2*j, 2)}, {vr(A+2*j, 2)}, {vr(vT2, 2)} op_sel:[0,1] op_sel_hi:[1,1]")
        a(f"s_or_b64 {sr(sBAD, 2)}, {sr(sBAD, 2)}, vcc")
        a(f"v_cmp_u_f32 vcc, v{Z}, v{Z+1}")
        for j in range(6): a(f"v_cvt_pk_bf16_f32 v{P+j}, v{A+2*j}, v{A+2*j+1}")
        a(f"s_or_b64 {sr(sBAD, 2)}, {sr(sBAD, 2)}, vcc")
        a(f"s_cmp_lg_u32 s{sMODE}, 0")
        a(f"s_cselect_b64 {sr(sBAD, 2)}, 0, {sr(sBAD, 2)}")
        for j in range(6): a(f"v_min_u32 v{P+j}, -2, v{P+j}")
        L = a.uid("NOST")
        a(f"s_cmp_lg_u64 {sr(sBAD, 2)}, 0")
        a(f"s_cbranch_scc1 {L}")
        stores(a, [f"buffer_store_dwordx4 {vr(P, 4)}, v{vKM}, {sr(SWS)}, s{sOm} offen offset:{1024*e}",
                   f"buffer_store_dwordx2 {vr(P+4, 2)}, v{vQT}, {sr(SWS)}, s{sOt} offen offset:{512*e}"])
        a.label(L)
    a(f"s_cmp_lg_u64 {sr(sBAD, 2)}, 0")
    a(f"s_cselect_b32 s{sBAD}, 0x10001, 1")
    cnt_arrive(a, vCNT, vT0, f"s{sBAD}")
    a.stamp(13)
    a("s_setprio 0")
    a(f"s_add_u32 s{sTGT}, s{sTGT}, 4")
    srd(a, SX, pX, 2048 * 1280)
    cnt_wait(a, vCNT, vT0, f"s{sTGT}")
    a(f"s_lshr_b32 s{sT0}, s{sT0}, 16")
    a(f"s_cmp_lg_u32 s{sMODE}, 0")
    a(f"s_cselect_b32 s{sT0}, 0, s{sT0}")
    a(f"s_cmp_lg_u32 s{sT0}, 0")
    a("s_cbranch_scc1 A_RESTART")
    a.stamp(14)
    if PROFILE and opt("iter"):
        a.ldump(0)
        a(f"s_lshl_b32 s100, s{sW}, 6")
        a("v_add_u32 v0, s100, v1")
    final_stage(a, -256, 16, 32, 20, 21, True, 0)
    final_stage(a, 256, 24, 80, 22, 23, "addr", 0)
    a(f"s_cmp_ge_u32 s{sW}, 6")
    a("s_cbranch_scc1 A_F1")
    final_stage(a, 256, 24, 80, 22, 23, "load", 0)
    a.label("A_F1")
    a("s_waitcnt vmcnt(0)")
    final_stage(a, -256, 16, 32, 20, 21, False, 2)
    final_stage(a, 256, 24, 80, 22, 23, False, 2)
    a.stamp(15)
    a("s_barrier")
    final_stage(a, -256, 16, 32, 20, 21, False, 1)
    final_stage(a, -256, 16, 32, 20, 21, False, 3)
    a("s_barrier")
    a.stamp(16)
    a(f"s_cmp_ge_u32 s{sW}, 6")
    a("s_cbranch_scc1 A_F2")
    final_stage(a, 256, 24, 80, 22, 23, False, 1)
    final_stage(a, 256, 24, 80, 22, 23, False, 3)
    a.label("A_F2")
    a.end()
    a.label("A_EWAIT")
    cnt_wait(a, vCNT, vT0, f"s{sKOK}", 0, off=12)
    a("s_branch A_EOK")
    a.label("A_OWAIT")
    cnt_wait(a, vCNT, vT0, 8, 1)
    a("s_branch A_OFREE")
    a.label("A_RESTART")
    a(f"s_mov_b32 s{sMODE}, 1")
    a("s_waitcnt vmcnt(0)")
    att_zero(a)
    a("s_branch A_RELOAD")
    a.label("A_TRUEMAX")
    for i in range(2, 8): ldq(i)
    M = S[2]
    for i in range(8): a(f"v_mov_b32 v{M+i}, 0xff800000")
    a(f"s_sub_u32 s{sT1}, s{sKV}, {KV_REC}")
    a(f"s_mov_b32 s{sCNT}, 16")
    TK, TT = S[1], S[1] + 4
    a.label("A_TM_LOOP")
    a(f"buffer_load_dwordx4 {vr(TK, 4)}, v{vKM}, {sr(SWS)}, s{sT1} offen sc1")
    a(f"buffer_load_dwordx2 {vr(TT, 2)}, v{avKT}, {sr(SWS)}, s{sT1} offen sc1")
    a("s_waitcnt vmcnt(0)")
    for i in range(8):
        a(f"v_mfma_f32_32x32x16_bf16 {vr(S[0], 16)}, {vr(TK, 4)}, {vr(QM(i), 4)}, 0")
        a(f"v_mfma_f32_32x32x8_bf16 {vr(S[0], 16)}, {vr(TT, 2)}, {vr(QT(i), 2)}, {vr(S[0], 16)}")
        a("s_nop 11")
        for j in range(0, 16, 2): a(f"v_max3_f32 v{M+i}, v{M+i}, v{S[0]+j}, v{S[0]+j+1}")
    a(f"s_add_u32 s{sT1}, s{sT1}, {KV_REC}")
    a(f"s_sub_u32 s{sCNT}, s{sCNT}, 1")
    a(f"s_cmp_lg_u32 s{sCNT}, 0")
    a("s_cbranch_scc1 A_TM_LOOP")
    for i in range(8):
        halfop(a, "v_max_f32", M + i, vT0)
        a(f"v_add_u32 v{vT1}, {L_OP - L_MREC}, v{vP+i//2}")
        a(f"ds_write_b32 v{vT1}, v{M+i} offset:{(i//2)*2048 + (i&1)*256}")
    cnt_arrive(a, vCNT, vT0)
    a(f"s_add_u32 s{sTGT}, s{sTGT}, 4")
    cnt_wait(a, vCNT, vT0, f"s{sTGT}")
    a(f"v_add_u32 v{vT1}, {L_OP - L_MREC}, v{vP}")
    for e in range(2):
        for s in range(1, 4): a(f"ds_read_b32 v{S[0]+4*e+s}, v{vT1} offset:{s*2048 + e*256}")
    a("s_waitcnt lgkmcnt(0)")
    for e in range(2):
        a(f"v_max3_f32 v{M+e}, v{M+e}, v{S[0]+4*e+1}, v{S[0]+4*e+2}")
        a(f"v_max_f32 v{M+e}, v{M+e}, v{S[0]+4*e+3}")
    a("s_mov_b32 exec_lo, 0")
    for e in range(2):
        a(f"v_sub_f32 v{M+e}, 0, v{M+e}")
        split3(a, M + e, vT0, vT1, QT(e), QT(e) + 1)
    a("s_branch A_HAVEMAX")

def gen_ffn(a):
    vL, vL16, vTR, vZ = 1, 2, 3, 7
    vA, vG, vPW, vPW2, X = 4, 5, 0, 6, 8
    vNV, vCNT, vT0, vT1 = 12, 13, 14, 15
    F = lambda t: 16 + 16 * t
    WO = lambda k: 96 + 20 * k
    HB = lambda u: 216 + 4 * u
    SL = lambda j: j & 3
    SWO = SDBG
    def dma_piece(p, slot, vd=fD):
        dma(a, p, vd, SA, sSO, sM0, L_RING + slot*20480, opt("fm0"))
    def trr(dst, slot, t, va=vTR):
        a(f"ds_read_b64_tr_b16 {vr(dst+4*t, 2)}, v{va} offset:{slot*20480 + 64*t}")
        a(f"ds_read_b64_tr_b16 {vr(dst+4*t+2, 2)}, v{va} offset:{slot*20480 + 64*t + 2560}")
    def hload(u):
        a(f"buffer_load_dwordx4 {vr(HB(u), 4)}, v{vL16}, {sr(SWS)}, s{sHO} offen sc1")
        if opt("xh2"):
            a(f"s_xor_b32 s{sT2}, s{sHO}, 0x40000")
            a(f"buffer_load_dwordx4 {vr(HB(u), 4)}, v{vL16}, {sr(SWS)}, s{sT2} offen sc1")
        a(f"s_add_u32 s{sHO}, s{sHO}, 1024")
    def stage(i, ks):
        row = 16 + 80 * (ks - 8) if ks >= 8 else 20 * ks
        a(f"s_add_u32 s{sT1}, s{sWOB}, {row*1280}")
        for p in range(5):
            dma(a, p, fD2 if ks >= 8 else fD, SWO, sT1, sM0, i*20480)
    def mf(t, w, h): a(f"v_mfma_f32_32x32x16_bf16 {vr(F(t), 16)}, {vr(w+4*t, 4)}, {vr(h, 4)}, {vr(F(t), 16)}")
    sWOB = sWBASE
    if not opt("pre1"): ffn_pre(a, vL, vT0, vT1)
    srd(a, SA, pW2, 1728 * 1280)
    a(f"s_mul_i32 s{sM0}, s{sQ}, 5120")
    a(f"s_mul_i32 s{sCOL}, s{sHG}, 320")
    a(f"s_mul_i32 s{sSO}, s{sQ}, {27*16*1280}")
    a(f"s_add_u32 s{sSO}, s{sSO}, s{sCOL}")
    a(f"s_add_u32 s{sSO}, s{sSO}, {NS*16*1280}")
    a(f"s_mov_b32 s{sSTEP}, {16*1280}")
    if opt("xpar"):
        a(f"s_and_b32 s{sT0}, s{sT}, 1")
        a(f"s_mul_i32 s{sT0}, s{sT0}, {16*1280}")
        a(f"s_add_u32 s{sSO}, s{sSO}, s{sT0}")
    def fill(js):
        for j in js:
            for p in range(5): dma_piece(p, j)
            a(f"s_add_u32 s{sSO}, s{sSO}, s{sSTEP}")
    NE = optv("ne", 1)
    fill(range(NS, min(4, NS + NE)))
    a("v_mov_b64 v[246:247], 0")
    a(f"v_lshlrev_b32 v{vL16}, 4, v{vL}")
    a(f"v_mov_b32 v{vCNT}, {L_CNT}")
    for t in range(5): zero16(a, F(t), 246)
    a(f"v_mov_b32 v{vTR}, v{fTR}")
    a(f"v_mov_b32 v{vA}, v{fA}")
    a(f"v_mov_b32 v{vG}, v{fG}")
    a(f"v_mov_b32 v{vPW}, v{fPW}")
    a(f"v_add_u32 v{vPW2}, 40960, v{fPW}")
    a(f"v_mov_b32 v{vNV}, s{sNON}")
    a(f"v_mov_b32 v245, 1")
    srd(a, SX, pX, 2048 * 1280)
    srd(a, SB, pOUT, 2048 * 1280)
    srd(a, SWO, pWO, 640 * 1280)
    a(f"s_mul_i32 s{sWOB}, s{sQ}, {160*1280}")
    a(f"s_add_u32 s{sWOB}, s{sWOB}, s{sCOL}")
    a(f"s_lshl_b32 s{sFC}, s{sT}, 2")
    a(f"s_add_u32 s{sFC}, s{sFC}, s{sQ}")
    a(f"s_mul_i32 s{sHO}, s{sQ}, {27*1024}")
    a(f"s_add_u32 s{sHO}, s{sHO}, s{sG}")
    a(f"s_add_u32 s{sHO}, s{sHO}, {20*2048}")
    check_fast(a, vT1, vT0)
    a.stamp(6)
    cnt_wait(a, vCNT, vT0, 4, 1, off=(8 if opt("nogatem") else 0))
    fill(range(min(4, NS + NE), 4))
    a.stamp(7)
    poll(a, fH, vT1, "0", 2)
    check_fast(a, vT1, vT0)
    a.stamp(9)
    if opt("th"):
        a(f"s_mul_i32 s{sT0}, s{sHG}, {54*128}")
        a(f"s_add_u32 s{sT0}, s{sT0}, s{sHO}")
        a(f"v_lshlrev_b32 v{vT0}, 7, v{vL}")
    for u in range(4): hload(u)
    if opt("th"):
        a("s_mov_b32 exec_hi, 0x3fffff")
        a(f"buffer_load_dword v{vT1}, v{vT0}, {sr(SWS)}, s{sT0} offen sc1")
        a("s_mov_b32 exec_hi, -1")
    for t in range(5): trr(WO(0), SL(0), t)
    a(f"s_mov_b32 s{sC}, 0")
    a("s_waitcnt vmcnt(0)")
    a.stamp(10); a.stamp(NSTAMP + 2, True)
    B0 = optv("b0", 1)
    a.raw(".p2align 3")
    a.label("F_LOOP")
    for u in range(4):
        if u == 3:
            a(f"s_cmp_eq_u32 s{sC}, 6")
            a("s_cbranch_scc1 F_DONE")
            a(f"s_cmp_lg_u32 s{sC}, 5")
            a("s_cbranch_scc1 F_NS")
            srd(a, SA, pWO, 640 * 1280)
            a(f"s_add_u32 s{sSO}, s{sWOB}, {20*1280}")
            a(f"s_mov_b32 s{sSTEP}, {40*1280}")
            a(f"s_mov_b32 s{sHO}, 0x40000000")
            a(f"buffer_load_dword v{fH}, v{fO}, {sr(SWS)}, 0 offen sc1")
            a.label("F_NS")
        a("s_waitcnt vmcnt(13) lgkmcnt(0)" if not opt("xhalf") else f"s_waitcnt vmcnt({11 if opt('xh2') else 8}) lgkmcnt(0)")
        for t in range(5):
            if opt("xdirect"):
                mf(t, WO(u), HB(u))
                a(f"buffer_load_dwordx4 {vr(WO(u)+4*t, 4)}, v{fD+t}, {sr(SA)}, s{sSO} offen")
                a("s_nop 7")
                a("s_nop 1")
                continue
            mf(t, WO(0), HB(u))
            if opt("xnotr"):
                dma_piece(t, SL(u))
                a("s_nop 5")
                continue
            if opt("xhalf") and (u & 1):
                a("s_sleep 1")
                continue
            if opt("dfirst"):
                dma_piece(t, SL(u))
                trr(WO(0), SL(u + 1), t)
            else:
                trr(WO(0), SL(u + 1), t)
                dma_piece(t, SL(u))
            if opt("jit") and t < 4: a("s_waitcnt lgkmcnt(0)")
        a(f"s_add_u32 s{sSO}, s{sSO}, s{sSTEP}")
        hload(u)
    a(f"s_add_u32 s{sC}, s{sC}, 1")
    a(f"s_sub_u32 s{sT0}, s{sC}, {B0 + 1}")
    a(f"s_cmp_ge_u32 s{sT0}, 3")
    a("s_cbranch_scc1 F_LOOP")
    a(f"s_cmp_eq_u32 s{sT0}, 1")
    a("s_cbranch_scc1 F_X1")
    a(f"s_cmp_eq_u32 s{sT0}, 2")
    a("s_cbranch_scc1 F_X2")
    a(f"s_lshl_b32 s{sT1}, s{sT}, 2")
    a(f"s_add_u32 s{sT1}, s{sT1}, s{sHG}")
    a(f"s_mul_i32 s{sT1}, s{sT1}, 10240")
    a(f"s_mul_i32 s{sT0}, s{sQ}, 3072")
    a(f"s_min_u32 s{sT0}, s{sT0}, 7168")
    a(f"s_add_u32 s{sT0}, s{sT0}, s{sT1}")
    a(f"s_add_u32 s{sT0}, s{sT0}, {WS_O}")
    stores(a, [f"buffer_store_dwordx4 {vr(fBL, 4)}, v{vL16}, {sr(SWS)}, s{sT0} offen offset:{1024*e}" for e in range(3)])
    for i in range(3): stage(i, 2 * i)
    a("s_branch F_LOOP")
    a.label("F_X1")
    for i in range(3):
        for t in range(5): trr(WO(1 + i), i, t, fSTG)
    a(f"s_lshl_b32 s{sT0}, s{sQ}, 2")
    a(f"s_add_u32 s{sT0}, s{sT0}, s{sF2}")
    a("s_mov_b64 exec, 1")
    stores(a, [f"buffer_store_dword v{vNV}, v{vZ}, {sr(SWS)}, s{sT0} offen offset:16"])
    a("s_mov_b64 exec, -1")
    a("s_waitcnt lgkmcnt(0)")
    stage(0, 6); stage(1, 9)
    a("s_branch F_LOOP")
    a.label("F_X2")
    for i in range(2):
        for t in range(5): trr(WO(4 + i), i, t, fSTG)
    cnt_wait(a, vCNT, vT0, 4, 1)
    a("s_mov_b64 exec, 1")
    a(f"ds_add_u32 v{vCNT}, v245")
    a("s_mov_b64 exec, -1")
    a("s_branch F_LOOP")
    a.label("F_DONE")
    a.stamp(11); a.stamp(NSTAMP + 3, True)
    a(f"s_add_u32 s{sSO}, s{sWOB}, {16*1280}")
    a("s_waitcnt lgkmcnt(0)")
    for t in range(5): dma_piece(t, SL(27), fD2)
    final_stage(a, 0, X, 0, vA, vG, "load", 0)
    a(f"v_cmp_ne_u32 vcc, s{sNON}, v{fH}")
    a("s_cbranch_vccz F_BOK")
    poll(a, fO, vT1, "0", 4)
    a.label("F_BOK")
    a(f"s_mul_i32 s{sHO}, s{sFC}, 10240")
    a(f"s_add_u32 s{sHO}, s{sHO}, {WS_O}")
    a(f"s_add_u32 s{sSO}, s{sHO}, 4096")
    a(f"s_add_u32 s{sT1}, s{sHO}, 8192")
    a.stamp(12)
    def oloads(ks):
        for k in ks:
            so = (sHO, sSO, sT1)[k // 4]
            a(f"buffer_load_dwordx4 {vr(HB(k), 4)}, v{vL16}, {sr(SWS)}, s{so} offen offset:{(k%4)*1024} sc1")
    def ocheck(ks):
        for n, k in enumerate(ks):
            a(f"s_waitcnt vmcnt({len(ks)-1-n})")
            if n == 0:
                a(f"v_max3_u32 v{vT0}, v{HB(k)}, v{HB(k)+1}, v{HB(k)+2}")
                a(f"v_max_u32 v{vT0}, v{vT0}, v{HB(k)+3}")
            else:
                a(f"v_max3_u32 v{vT0}, v{vT0}, v{HB(k)}, v{HB(k)+1}")
                a(f"v_max3_u32 v{vT0}, v{vT0}, v{HB(k)+2}, v{HB(k)+3}")
        a(f"v_cmp_eq_u32 vcc, -1, v{vT0}")
    even, rest = [0, 2, 4, 6], [1, 9, 3, 5, 7, 8]
    WR = [WO(0), WO(5), WO(1), WO(2), WO(3), WO(4)]
    cnt_wait(a, vCNT, vT0, 8, 1, off=12)
    a.stamp(13)
    a(f"s_mov_b32 s{sSPIN}, {SPIN}")
    a.label("F_O")
    oloads(even); ocheck(even)
    a("s_cbranch_vccz F_OD")
    a("s_sleep 1")
    spin_tail(a, "F_O")
    a.label("F_OD")
    a.stamp(8)
    for n in range(4):
        if n == optv("on", 1): oloads(rest)
        for t in range(5):
            mf(t, WO(1 + n), HB(even[n]))
            trr(WO(1 + n), SL(28 + n), t)
    cnt_wait(a, vCNT, vT0, 16, 1)
    a(f"s_cmp_lt_u32 s{sT0}, 0x10000")
    a("s_cbranch_scc1 F_NORE")
    cnt_wait(a, vCNT, vT0, 32, 8)
    a.label("F_NORE")
    a(f"s_mov_b32 s{sSPIN}, {SPIN}")
    a.label("F_O2")
    ocheck(rest)
    a("s_cbranch_vccz F_OD2")
    oloads(rest)
    spin_tail(a, "F_O2")
    a("s_waitcnt vmcnt(0)")
    a.label("F_OD2")
    a.stamp(14)
    def fwr(t, g):
        va, off = (vPW, t * 20480) if t < 2 else (vPW2, (t - 2) * 20480)
        a(f"ds_write_b128 v{va}, {vr(F(t)+4*g, 4)} offset:{off + 32*g}")
    for t in range(5):
        for m in range(6):
            mf(t, WR[m], HB(rest[m]))
            if t > 0:
                if t == 3 and m == 1:
                    a("s_waitcnt lgkmcnt(0)")
                    a("s_barrier")
                    a("s_nop 2")
                elif m < 2: a("s_nop 4")
                else: fwr(t - 1, m - 2)
    final_stage(a, 0, X, 176, vA, vG, False, 2)
    a("s_nop 3")
    a.stamp(15)
    for g in range(4): fwr(4, g)
    a("s_waitcnt lgkmcnt(0)")
    a("s_barrier")
    a.stamp(16)
    final_stage(a, 0, X, 176, vA, vG, False, 1)
    final_stage(a, 0, X, 176, vA, vG, False, 3)
    a.end()
```

```python
import sys, struct, math

NAME = "parallel_sum__grouped_kv_mqa__dense_activation_relu__prompt"
def opt(name): return ("--" + name) in sys.argv
def optv(name, d): return int(sys.argv[sys.argv.index("--" + name) + 1]) if opt(name) else d
G_TSTRIDE = 75 * 2048
WS_G = 0
WS_KV = 64 * G_TSTRIDE
KV_REC = 3072
WS_O = (WS_KV + 66 * KV_REC + 4095) // 4096 * 4096
WS_RS = WS_O + 64 * 40 * 1024
WS_CP = WS_RS + 2048 * 16
WS_F1 = WS_CP + 64 * 5120
WS_F2 = WS_F1 + 256 * 128
WS_XC = WS_F2 + 256 * 128
WS_PROF = WS_XC + 8 * 128
PROFILE = opt("prof")
NSTAMP = 18
WS_END = WS_PROF + (256 * 8 * 256 if PROFILE else 0)
OOB = 0x80000000
QSCALE = math.log2(math.e) / math.sqrt(20.0)
SPIN = 0x40000
NA = optv("na", 2)
NS = optv("ns", 3)
NFIRST = optv("nfirst", 1)


def f32bits(x): return struct.unpack("<I", struct.pack("<f", x))[0]

class Asm:
    def __init__(self): self.lines = []; self.n = 0; self.tail = []; self.p2 = False; self.ffn = False
    def __call__(self, s): self.lines.append("    " + s)
    def label(self, s): self.lines.append(s + ":")
    def raw(self, s): self.lines.append(s)
    def c(self, s): self.lines.append("    ; " + s)
    def uid(self, p): self.n += 1; return f"{p}_{self.n}"
    def stamp(self, i, cyc=False):
        if opt("jitter") and not cyc and i > 1:
            L, D = self.uid("JIT"), self.uid("JITD")
            self("s_cselect_b32 s66, 1, 0")
            self("s_memtime s[64:65]")
            self("s_waitcnt lgkmcnt(0)")
            self("s_mul_i32 s64, s64, 0x9e3779b1")
            self("s_lshr_b32 s65, s64, 29")
            self("s_cmp_lg_u32 s65, 0")
            self(f"s_cbranch_scc1 {D}")
            self(f"s_bfe_u32 s64, s64, 0x{optv('jitter', 6):x}0010")
            self.label(L)
            self("s_sleep 8")
            self("s_sub_u32 s64, s64, 1")
            self(f"s_cbranch_scc0 {L}")
            self.label(D)
            self("s_cmp_lg_u32 s66, 0")
        if opt("spin") and not cyc and i == optv("spin", 0) and (i < 6 or not self.ffn or i == 17):
            L = self.uid("SPIN")
            self.label(L)
            self("s_memrealtime s[100:101]")
            self("s_waitcnt lgkmcnt(0)")
            self("s_sub_u32 s100, s100, s64")
            self(f"s_cmp_lt_u32 s100, 5000")
            self(f"s_cbranch_scc1 {L}")
        if opt("st") and self.p2 and i in (14, 15, 16): return
        if PROFILE:
            self(f"s_memtime s[100:101]" if cyc else "s_memrealtime s[100:101]")
            self("s_waitcnt lgkmcnt(0)")
            self(f"s_mov_b32 s{64+i}, s100")
    def lstamp(self, slane, v=14):
        if opt("jitter"): self.stamp(2)
        if PROFILE and opt("iter"):
            self("s_memrealtime s[100:101]")
            self("s_waitcnt lgkmcnt(0)")
            self(f"s_mov_b32 m0, {slane}" if isinstance(slane, str) else f"s_mov_b32 m0, s{slane}")
            self(f"v_writelane_b32 v{v}, s100, m0")
    def ldump(self, v=14):
        if PROFILE and opt("iter"):
            self(f"s_lshl_b32 s100, s2, 3")
            self(f"s_add_u32 s100, s100, s{sW}")
            self(f"s_lshl_b32 s100, s100, 8")
            self(f"s_add_u32 s100, s100, {WS_PROF+128}")
            self("v_lshlrev_b32 v15, 2, v1")
            self("s_mov_b64 exec, 0xffff")
            self(f"buffer_store_dword v{v}, v15, s[{SWS}:{SWS+3}], s100 offen")
            self("s_mov_b64 exec, -1")
            self("s_waitcnt vmcnt(0)")
    def end(self):
        if opt("spin"): self.stamp(17)
        if PROFILE:
            self("s_waitcnt vmcnt(0)")
            self.stamp(NSTAMP - 1)
            self(f"s_lshl_b32 s3, s2, 3")
            self(f"s_add_u32 s3, s3, s{sW}")
            self(f"s_lshl_b32 s3, s3, 8")
            self(f"s_add_u32 s3, s3, {WS_PROF}")
            self("s_mov_b64 exec, 1")
            self("v_mov_b32 v1, 0")
            for i in range(NSTAMP + 4):
                self(f"v_mov_b32 v2, s{64+i}")
                self(f"buffer_store_dword v2, v1, s[{SWS}:{SWS+3}], s3 offen offset:{4*i}")
        self("s_endpgm")
    def text(self): return "\n".join(self.lines) + "\n"

def vr(b, n=1): return f"v{b}" if n == 1 else f"v[{b}:{b+n-1}]"
def sr(b, n=4): return f"s{b}" if n == 1 else f"s[{b}:{b+n-1}]"
def srd(a, d, p, size):
    a(f"s_mov_b32 s{d}, s{p}")
    a(f"s_mov_b32 s{d+1}, s{p+1}")
    a(f"s_mov_b32 s{d+2}, {size}")
    a(f"s_mov_b32 s{d+3}, 0x00020000")
def csel(a, d, t, f):
    a(f"s_mov_b32 s{d}, {f}")
    a(f"s_cmov_b32 s{d}, {t}")
def split3(a, src, t0, t1, d0, d1):
    a(f"v_and_b32 v{t0}, 0xffff0000, v{src}")
    a(f"v_sub_f32 v{t1}, v{src}, v{t0}")
    a(f"v_lshrrev_b32 v{d0}, 16, v{src}")
    a(f"v_and_b32 v{t0}, 0xffff0000, v{t1}")
    a(f"v_or_b32 v{d0}, v{d0}, v{t0}")
    a(f"v_sub_f32 v{t1}, v{t1}, v{t0}")
    a(f"v_lshrrev_b32 v{d1}, 16, v{t1}")
def halfop(a, op, r, t):
    a(f"v_mov_b32 v{t}, v{r}")
    a("s_nop 1")
    a(f"v_permlane32_swap_b32 v{t}, v{r}")
    a(f"{op} v{r}, v{r}, v{t}")
def umax(a, dst, regs):
    regs = list(regs)
    a(f"v_max3_u32 v{dst}, v{regs[0]}, v{regs[1]}, v{regs[2]}")
    r = regs[3:]
    while len(r) >= 2:
        a(f"v_max3_u32 v{dst}, v{dst}, v{r[0]}, v{r[1]}"); r = r[2:]
    if r: a(f"v_max_u32 v{dst}, v{dst}, v{r[0]}")

SWS, SA, SB, SX, SDBG = 4, 8, 12, 16, 20
sSI = 3
sW, sNON = 24, 25
sRB, sCG, sTT = 26, 27, 28
sQ = sTT
sT0, sT1, sT2 = 29, 30, 31
pX, pWQ, pWK, pWV, pWO, pW1, pW2, pOUT, pDBG, pWS = 32, 34, 36, 38, 40, 44, 46, 48, 50, 52
sWSTEP, sSO, sSTEP, sM0, sC, sDEL, sCC, sOUT, sFL, sQS = range(54, 64)
sT, sHG, sG, sOB = 86, 87, 92, 93
sF2, sWBASE, sT3, sFAST, sST, sSPIN = 94, 95, 96, 97, 98, 99
sXW, sLO = 53, 52
sPB = 51
sSOW, sM0W = 90, 91
sPm, sBAD, sPt = 34, 38, 42
sOm, sOt, sKV, sTGT = 48, 49, 0, 1
sMODE, sCNT, sFQ, sKOK = 8, 9, 88, 89
sCOL, sHO, sFC = 54, 59, 60

def spin_tail(a, L):
    a(f"s_sub_u32 s{sSPIN}, s{sSPIN}, 1")
    a(f"s_cbranch_scc0 {L}")

def poll(a, vaddr, vtmp, soff, sleep=1):
    L, D = a.uid("POLL"), a.uid("POLLED")
    a(f"s_mov_b32 s{sSPIN}, {SPIN}")
    a.label(L)
    a(f"buffer_load_dword v{vtmp}, v{vaddr}, {sr(SWS)}, {soff} offen sc1")
    a("s_waitcnt vmcnt(0)")
    a(f"v_cmp_ne_u32 vcc, s{sNON}, v{vtmp}")
    a(f"s_cbranch_vccz {D}")
    if sleep: a(f"s_sleep {sleep}")
    spin_tail(a, L)
    a.label(D)

def stores(a, lines):
    L, D = a.uid("SLOW"), a.uid("STD")
    a(f"s_cmp_eq_u32 s{sFAST}, 0")
    a(f"s_cbranch_scc1 {L}")
    fl = {"nt": " nt", "sc0": " sc0", "sc0nt": " sc0 nt"}.get(sys.argv[sys.argv.index("--sf") + 1] if opt("sf") else "", "")
    for l in lines: a(l + (fl if l.startswith("buffer_store_dwordx4") else ""))
    a.label(D)
    a.tail.append((L, [l + (" sc1" if l.startswith("buffer_store") else "") for l in lines], D))

def xcc_word(a):
    a(f"s_getreg_b32 s{sXW}, hwreg(HW_REG_XCC_ID, 0, 4)")
    a(f"s_lshl_b32 s{sXW}, s{sXW}, 1")
    a(f"s_xor_b32 s{sXW}, s{sXW}, s{sNON}")

def check_fast(a, vaddr, vtmp):
    L = a.uid("CF")
    a(f"s_cmp_lg_u32 s{sFAST}, 0")
    a(f"s_cbranch_scc1 {L}")
    a(f"s_and_b32 s{sT0}, s2, 7")
    a(f"s_lshl_b32 s{sT0}, s{sT0}, 7")
    a(f"s_add_u32 s{sT0}, s{sT0}, {WS_XC}")
    a(f"v_and_b32 v{vaddr}, 31, v1")
    a(f"v_lshlrev_b32 v{vaddr}, 2, v{vaddr}")
    a(f"buffer_load_dword v{vtmp}, v{vaddr}, {sr(SWS)}, s{sT0} offen sc1")
    a("s_waitcnt vmcnt(0)")
    a(f"v_cmp_ne_u32 vcc, s{sXW}, v{vtmp}")
    a("s_cmp_eq_u64 vcc, 0")
    a(f"s_cselect_b32 s{sFAST}, {0 if opt('slow') else 1}, 0")
    a.label(L)

K1_SLOT = 36864
K1_XOFF = 20480
K1_CS = 147456
K1_ST = K1_CS + 2048
L_VT = 147456
L_OP = 0
L_RING = 73728
L_FP = L_RING - 20480
L_MREC = L_RING + 81920
L_CNT = L_MREC + 2048
LDS_BYTES = L_CNT + 64
fD, fD2, fH, fO, fSTG, fBL, fTR, fA, fG, fPW = 232, 237, 242, 243, 244, 248, 252, 253, 254, 255

aS = [16, 32, 48, 64]
aO = lambda i: 80 + 12 * i
aQM = lambda i: 180 + 4 * i
aQT = lambda i: 212 + 2 * i
aKM = [228, 242]; aKT = [232, 246]; aV0 = [234, 248]; aV1 = [238, 252]
avV, avKT = 14, 15

def ldkm(a, b, va): a(f"buffer_load_dwordx4 {vr(aKM[b], 4)}, v{va}, {sr(SWS)}, s{sKV} offen sc1")
def ldkt(a, b): a(f"buffer_load_dwordx2 {vr(aKT[b], 2)}, v{avKT}, {sr(SWS)}, s{sKV} offen sc1")
def ldv(a, u, b): a(f"buffer_load_dwordx4 {vr((aV0, aV1)[u][b], 4)}, v{avV}, {sr(SWS)}, s{sKV} offen" + (" offset:768" if u else "") + " sc1")
def kv_first(a, va):
    a(f"s_mul_i32 s{sKV}, s{sQ}, {16*KV_REC}")
    a(f"s_add_u32 s{sKV}, s{sKV}, {WS_KV}")
    ldkm(a, 0, va); ldkt(a, 0); ldv(a, 0, 0); ldv(a, 1, 0)
    a(f"s_add_u32 s{sKV}, s{sKV}, {KV_REC}")
    ldkm(a, 1, va); ldkt(a, 1)
def zero16(a, r, z):
    a(f"v_mfma_f32_32x32x8_bf16 {vr(r, 16)}, {vr(z, 2)}, {vr(z, 2)}, 0")
def att_zero(a):
    z = aV0[1]
    for r in range(z, z + 8, 2): a(f"v_mov_b64 {vr(r, 2)}, 0")
    for r in range(176, 180, 2): a(f"v_mov_b64 {vr(r, 2)}, 0")
    for r in range(aS[3], 176, 16): zero16(a, r, z)

def dma(a, p, vbase, srd_, soff, sm0, base, force=False):
    if p in (0, 4) or force:
        a(f"s_add_u32 m0, s{sm0}, {base + (4096 if p == 4 else 0)}")
        a("s_nop 0")
    a(f"buffer_load_dwordx4 v{vbase+p}, {sr(srd_)}, s{soff} offen" + (f" offset:{1024*p}" if 0 < p < 4 else "") + " lds")

def row_offsets(a, dst, vL, t0, t1, extra, ps=range(5)):
    for p in ps:
        a(f"v_add_u32 v{t0}, {64*p}, v{vL}")
        a(f"v_mul_u32_u24 v{t1}, 3277, v{t0}")
        a(f"v_lshrrev_b32 v{t1}, 16, v{t1}")
        a(f"v_lshlrev_b32 v{t0}, 4, v{t0 if p == 4 else vL}")
        a(f"v_mad_u32_u24 v{dst+p}, v{t1}, {extra}, v{t0}")

def item_addr(a, base_item, vA, vG, t):
    if base_item: a(f"v_add_u32 v{vA}, {base_item}, v0")
    else: a(f"v_mov_b32 v{vA}, v0")
    a(f"v_lshrrev_b32 v{t}, 7, v{vA}")
    a(f"v_mul_u32_u24 v{t+1}, 20480, v{t}")
    a(f"v_lshlrev_b32 v{vG}, 6, v{t}")
    a(f"v_and_b32 v{t}, 3, v{vA}")
    a(f"v_lshl_add_u32 v{t+1}, v{t}, 5, v{t+1}")
    a(f"v_lshl_add_u32 v{vG}, v{t}, 4, v{vG}")
    a(f"v_bfe_u32 v{t}, v{vA}, 2, 5")
    a(f"v_mul_u32_u24 v{vA}, 144, v{t}")
    a(f"v_mul_u32_u24 v{t}, 1280, v{t}")
    a(f"v_add_u32 v{vG}, v{vG}, v{t}")
    a(f"v_add3_u32 v{vA}, v{vA}, v{t+1}, s100")

def flag_words(a, dst, vL):
    a(f"s_and_b32 s{sT0}, s{sT}, 2")
    a(f"s_and_b32 s{sT1}, s{sT}, 3")
    a(f"s_add_u32 s{sT1}, s{sT1}, 4")
    a(f"v_bfe_u32 v{dst}, v{vL}, 4, 1")
    a(f"v_add_u32 v{dst}, s{sT0}, v{dst}")
    a("s_mov_b32 exec_lo, 0")
    a(f"v_mov_b32 v{dst}, s{sT1}")
    a("s_mov_b32 exec_lo, -1")
    a(f"v_lshlrev_b32 v{dst}, 2, v{dst}")

def ffn_pre(a, vL, t0, t1):
    a("s_movk_i32 s100, 960")
    row_offsets(a, fD, vL, t0, t1, "s100")
    for p in range(5):
        a(f"v_add_u32 v{t0}, {64*p}, v{vL}")
        a(f"v_mul_u32_u24 v{t0}, 3277, v{t0}")
        a(f"v_lshrrev_b32 v{t0}, 18, v{t0}")
        a(f"v_mul_u32_u24 v{t0}, {16*1280}, v{t0}")
        a(f"v_add_u32 v{fD2+p}, v{fD+p}, v{t0}")
    a(f"v_lshrrev_b32 v{t0}, 5, v{vL}")
    a(f"v_bfe_u32 v{t1}, v{vL}, 2, 2")
    a(f"v_lshl_add_u32 v{t0}, v{t0}, 2, v{t1}")
    a(f"v_mul_u32_u24 v{fSTG}, 320, v{t0}")
    a(f"v_bfe_u32 v{t0}, v{vL}, 4, 1")
    a(f"v_lshl_add_u32 v{fSTG}, v{t0}, 5, v{fSTG}")
    a(f"v_and_b32 v{t0}, 3, v{vL}")
    a(f"v_lshl_add_u32 v{fSTG}, v{t0}, 3, v{fSTG}")
    a(f"s_mul_i32 s{sT1}, s{sQ}, 5120")
    a(f"v_add_u32 v{fSTG}, s{sT1}, v{fSTG}")
    a(f"v_add_u32 v{fTR}, {L_RING}, v{fSTG}")
    a(f"v_mov_b64 {vr(fBL, 2)}, -1")
    a(f"v_mov_b64 {vr(fBL+2, 2)}, -1")
    a(f"s_mul_i32 s{sT0}, s{sQ}, {27*26}")
    a(f"s_lshr_b32 s{sT0}, s{sT0}, 8")
    a(f"s_add_u32 s{sT0}, s{sT0}, 4")
    a(f"v_add_u32 v{fH}, s{sT0}, v{t0}")
    a(f"v_min_u32 v{fH}, 14, v{fH}")
    a(f"s_lshr_b32 s{sT2}, s{sT}, 2")
    a(f"s_lshl_b32 s{sT2}, s{sT2}, 11")
    a(f"s_add_u32 s{sT2}, s{sT2}, {WS_F1 + 32}")
    a(f"v_lshl_add_u32 v{fH}, v{fH}, 7, s{sT2}")
    flag_words(a, t1, vL)
    a(f"v_add_u32 v{fH}, v{fH}, v{t1}")
    a(f"s_lshl_b32 s{sT2}, s{sT}, 2")
    a(f"s_add_u32 s{sT2}, s{sT2}, s{sQ}")
    a(f"s_lshl_b32 s{sT2}, s{sT2}, 7")
    a(f"s_add_u32 s{sT2}, s{sT2}, {WS_F2 + 16}")
    a(f"v_lshl_add_u32 v{fO}, v{t0}, 2, s{sT2}")
    a(f"s_mov_b32 s100, {L_FP}")
    item_addr(a, 256, fA, fG, t0)
    a(f"v_and_b32 v{t0}, 31, v{vL}")
    a(f"v_mul_u32_u24 v{t0}, 144, v{t0}")
    a(f"v_lshrrev_b32 v{t1}, 5, v{vL}")
    a(f"v_lshl_add_u32 v{t0}, v{t1}, 4, v{t0}")
    a(f"s_mul_i32 s{sT1}, s{sQ}, 5120")
    a(f"s_add_u32 s{sT1}, s{sT1}, {L_FP}")
    a(f"v_add_u32 v{fPW}, s{sT1}, v{t0}")

def att_scalars(a):
    a(f"s_mul_i32 s{sT2}, s{sHG}, 10240")
    a(f"s_add_u32 s{sT2}, s{sT2}, s{sG}")
    for j in range(4):
        a(f"s_add_u32 s{sT0}, s{sQ}, {j}")
        a(f"s_and_b32 s{sT0}, s{sT0}, 3")
        a(f"s_lshl_b32 s{sPm+j}, s{sT0}, 11")
        a(f"s_add_u32 s{sPm+j}, s{sPm+j}, s{sT2}")
        a(f"s_lshr_b32 s{sT1}, s{sT0}, 1")
        a(f"s_lshl_b32 s{sT1}, s{sT1}, 10")
        a(f"s_and_b32 s{sT0}, s{sT0}, 1")
        a(f"s_lshl_b32 s{sT0}, s{sT0}, 3")
        a(f"s_add_u32 s{sT1}, s{sT1}, s{sT0}")
        a(f"s_add_u32 s{sT1}, s{sT1}, s{sT2}")
        a(f"s_add_u32 s{sPt+j}, s{sT1}, 8192")
    a(f"s_mul_i32 s{sT2}, s{sT}, 40960")
    a(f"s_add_u32 s{sT2}, s{sT2}, {WS_O}")
    a(f"s_sub_u32 s{sT2}, s{sT2}, s{sG}")
    a(f"s_add_u32 s{sOm}, s{sPm}, s{sT2}")
    a(f"s_add_u32 s{sOt}, s{sPt}, s{sT2}")
    a(f"s_mov_b32 s{sTGT}, 0")
    a(f"s_lshr_b32 s{sT0}, s{sT}, 2")
    a(f"s_lshl_b32 s{sT0}, s{sT0}, 4")
    a(f"s_add_u32 s{sT0}, s{sT0}, s{sHG}")
    a(f"s_lshl_b32 s{sT0}, s{sT0}, 7")
    a(f"s_add_u32 s{sFQ}, s{sT0}, {WS_F1 + 32}")

def gen_p1(a):
    vL, vN, vH, vT0, vT1, vT2, vZ = 1, 2, 3, 4, 5, 6, 7
    vX, vD = 8, 16
    vNON, vROW, vFL, vFV = 21, 22, 23, 22
    vG16, vC4 = 26, 27
    vDW = 56
    FB = [28, 32]
    a(f"s_cmp_ge_u32 s2, 256")
    a("s_cbranch_scc1 L_END")
    a("s_load_dwordx16 s[32:47], s[0:1], 0")
    a("s_load_dwordx4 s[48:51], s[0:1], 64")
    a("s_load_dwordx2 s[52:53], s[0:1], 80")
    a("s_memrealtime s[100:101]")
    if not opt("nocp"):
        NL = optv("cp", 2)
        a("s_getpc_b64 s[4:5]")
        a("s_lshr_b32 s6, s2, 3")
        a(f"s_and_b32 s6, s6, {32 // NL - 1}")
        a(f"s_lshl_b32 s6, s6, {10 + NL.bit_length() - 1}")
        a("s_add_u32 s4, s4, s6")
        a("s_addc_u32 s5, s5, 0")
        a(f"v_lshlrev_b32 v60, {NL.bit_length()}, v0")
        a(f"v_and_b32 v60, {(1024 * NL - 128):#x}, v60")
        a("v_mov_b32 v63, s5")
        a("v_add_co_u32 v62, vcc, s4, v60")
        a("s_nop 1")
        a("v_addc_co_u32 v63, vcc, 0, v63, vcc")
        a("global_load_dword v61, v[62:63], off")
    a(f"v_lshrrev_b32 v{vT0}, 6, v0")
    a(f"v_and_b32 v{vL}, 63, v0")
    a(f"v_readfirstlane_b32 s{sW}, v{vT0}")
    a(f"s_and_b32 s{sT1}, s2, 7")
    a(f"s_bfe_u32 s{sSI}, s2, 0x10003")
    a(f"s_lshl_b32 s{sCC}, s{sT1}, 1")
    a(f"s_add_u32 s{sRB}, s{sCC}, s{sSI}")
    a(f"s_lshr_b32 s{sCG}, s2, 4")
    a(f"s_sub_u32 s{sT0}, s{sRB}, 9")
    a(f"s_cmp_ge_u32 s{sRB}, 10")
    a(f"s_cselect_b32 s{sCC}, s{sT0}, s{sRB}")
    a(f"s_mov_b32 s{sST}, s{sCC}")
    a(f"s_and_b32 s{sTT}, s{sW}, 3")
    a(f"s_lshl_b32 s{sT0}, s{sRB}, 2")
    a(f"s_add_u32 s{sT3}, s{sT0}, s{sTT}")
    a(f"s_cmp_lt_u32 s{sW}, 4")
    a("s_cbranch_scc1 P1_A")

    def xpiece(p):
        dma(a, p, vD, SX, sSO, sM0, 0)
    def wpiece(p, kv=False):
        if kv:
            a(f"s_add_u32 m0, s{sM0W}, {4096*p}")
            a("s_nop 0")
            a(f"buffer_load_dwordx4 v{vDW}, {sr(SA if p == 0 else SB)}, s{sSOW} offen lds")
        else: dma(a, p, vDW, SA, sSOW, sM0W, 0)
    def next_chunk(x, w, dm0):
        a(f"s_add_u32 s{sCC}, s{sCC}, 1")
        a(f"s_cmp_eq_u32 s{sCC}, 10")
        a(f"s_cselect_b32 s{sCC}, 0, s{sCC}")
        if x:
            a(f"s_lshl_b32 s{sSO}, s{sCC}, 7")
            a(f"s_add_u32 s{sM0}, s{sM0}, {dm0}")
        if w:
            a(f"s_mul_i32 s{sSOW}, s{sCC}, s{sWSTEP}")
            a(f"s_add_u32 s{sSOW}, s{sSOW}, s{sWBASE}")
            a(f"s_add_u32 s{sM0W}, s{sM0W}, {dm0}")
    def w_setup(wait):
        a(f"s_sub_u32 s{sT0}, s{sCG}, 4")
        a(f"s_cmp_lt_u32 s{sCG}, 4")
        csel(a, sT2, 1280, 3456)
        a(f"s_cselect_b32 s{sT0}, s{sCG}, s{sT0}")
        if opt("xw"): a(f"s_and_b32 s{sT0}, s{sT0}, {optv('xw', 14)}")
        a(f"s_mul_i32 s{sT0}, s{sT0}, 320")
        a(f"s_lshl_b32 s{sWBASE}, s{sTT}, 4")
        a(f"s_mul_i32 s{sWBASE}, s{sWBASE}, s{sT2}")
        a(f"s_add_u32 s{sWBASE}, s{sWBASE}, s{sT0}")
        a(f"s_lshl_b32 s{sWSTEP}, s{sT2}, 6")
        a(f"s_sub_u32 s{sT2}, s{sT2}, 320")
        row_offsets(a, vDW, vL, vT0, vT1, f"s{sT2}")
        a(f"s_mul_i32 s{sSOW}, s{sCC}, s{sWSTEP}")
        a(f"s_add_u32 s{sSOW}, s{sSOW}, s{sWBASE}")
        a(f"s_mul_i32 s{sM0W}, s{sTT}, 5120")
        a(f"s_cmp_lt_u32 s{sCG}, 4")
        if wait: a("s_waitcnt lgkmcnt(0)")
        a(f"s_cselect_b32 s{SA}, s{pWQ}, s{pW1}")
        a(f"s_cselect_b32 s{SA+1}, s{pWQ+1}, s{pW1+1}")
        csel(a, SA + 2, 640 * 640 * 2, 640 * 1728 * 2)
        a(f"s_mov_b32 s{SA+3}, 0x00020000")
    def st01():
        if PROFILE or opt("spin"): a("s_mov_b32 s64, s100")
        a.stamp(1)

    RW = 192
    a(f"s_lshl_b32 s{sT0}, s{sT3}, 5")
    a(f"v_lshrrev_b32 v{vT0}, 3, v{vL}")
    a(f"v_add_u32 v{vT0}, s{sT0}, v{vT0}")
    a(f"v_mul_u32_u24 v{vT0}, 1280, v{vT0}")
    a(f"v_lshrrev_b32 v{vT1}, 4, v{vL}")
    a(f"v_and_b32 v{vT2}, 7, v{vL}")
    a(f"v_xor_b32 v{vT1}, v{vT1}, v{vT2}")
    a(f"v_lshl_add_u32 v{vD}, v{vT1}, 4, v{vT0}")
    a(f"v_xor_b32 v{vT1}, 4, v{vT1}")
    a(f"v_lshl_add_u32 v{vD+1}, v{vT1}, 4, v{vT0}")
    a(f"v_add_u32 v{vD+1}, {8*1280 - 1024}, v{vD+1}")
    a(f"v_add_u32 v{vD+2}, {16*1280 - 2048}, v{vD}")
    a(f"v_add_u32 v{vD+3}, {16*1280 - 2048}, v{vD+1}")
    a(f"s_lshl_b32 s{sSO}, s{sCC}, 7")
    a(f"s_lshl_b32 s{sM0}, s{sTT}, 12")
    a(f"s_add_u32 s{sM0}, s{sM0}, {K1_XOFF}")
    a("s_waitcnt lgkmcnt(0)")
    srd(a, SX, pX, 2048 * 1280)
    st01()
    for p in range(4): xpiece(p)
    a("s_barrier")
    a(f"s_cmp_eq_u32 s{sCG}, 15")
    a("s_cbranch_scc1 P1_KB")
    a("s_branch P1_GB")
    a.label("P1_A")
    a(f"s_cmp_eq_u32 s{sCG}, 15")
    a("s_cbranch_scc1 P1_KA0")
    w_setup(True)
    st01()
    for p in range(5): wpiece(p)
    a("s_barrier")

    def tr_addr(dst, tile):
        a(f"s_cmp_lt_u32 s{sCG}, 4")
        if tile == 4:
            a(f"s_cselect_b32 s{sT0}, 32, 0x100")
            a(f"s_cselect_b32 s{sT1}, 160, 32")
            a(f"s_cselect_b32 s{sT2}, 40, 8")
            a(f"v_mad_u32_u24 v{dst}, v{vC4}, s{sT2}, v{vROW}")
        else:
            a(f"s_cselect_b32 s{sT1}, 40, 32")
            if isinstance(tile, tuple):
                a(f"s_lshl_b32 s{sT0}, s{sT1}, 1")
                a(f"s_mul_i32 s{sT0}, s{sT0}, s{tile[1]}")
            else:
                a(f"s_mul_i32 s{sT0}, s{sT1}, {2*tile}")
            a(f"v_lshl_add_u32 v{dst}, v{vC4}, 3, v{vROW}")
        a(f"v_mad_u32_u24 v{dst}, v{vG16}, s{sT1}, v{dst}")
        a(f"v_add_u32 v{dst}, s{sT0}, v{dst}")

    def body(tag, role, kv):
        A_, B_ = role == "A", role == "B"
        nt = 1 if (kv or B_) else 4
        tiles = [0] if kv else ([0, 1, 2, 3] if A_ else [4])
        sstr, rstr = (1024, 40) if kv else (5120, 320)
        vTR = 16 if A_ else 12
        vSA = 13
        FA = [128, 144] if A_ else [36, 40]
        ACC, P = (64, 160) if A_ else (180, 212)
        GAT = 228
        ST, NM, CSR = (36, 40, 44) if A_ else (44, 48, 50)
        ONE, PUB = 24, 52
        nxt = "P2_FFN" if A_ else "P2_ATT"
        def m4(d, x, y):
            a(f"v_mfma_f32_4x4x4_16b_bf16 {vr(d, 4)}, {vr(x, 2)}, {vr(y, 2)}, {vr(d, 4)}")
        def get_nonce(publish):
            L, D = a.uid("NON"), a.uid("NOND")
            a(f"s_mov_b32 s{sSPIN}, {SPIN}")
            a.label(L)
            a(f"v_readfirstlane_b32 s{sNON}, v{vNON}")
            a(f"s_cmp_lg_u32 s{sNON}, 0")
            a(f"s_cbranch_scc1 {D}")
            a(f"buffer_load_dword v{vNON}, v{vZ}, {sr(SDBG)}, 0 offen sc1")
            a("s_waitcnt vmcnt(0)")
            spin_tail(a, L)
            a.label(D)
            xcc_word(a)
            if publish:
                L = a.uid("XW")
                a(f"s_cmp_lg_u32 s{sW}, 0")
                a(f"s_cbranch_scc1 {L}")
                a(f"s_and_b32 s{sT0}, s2, 7")
                a(f"s_lshl_b32 s{sT0}, s{sT0}, 5")
                a(f"s_lshr_b32 s{sT1}, s2, 3")
                a(f"s_add_u32 s{sT0}, s{sT0}, s{sT1}")
                a(f"s_lshl_b32 s{sT0}, s{sT0}, 2")
                a(f"s_add_u32 s{sT0}, s{sT0}, {WS_XC}")
                a(f"v_mov_b32 v{vT1}, s{sXW}")
                a("s_mov_b64 exec, 1")
                a(f"buffer_store_dword v{vT1}, v{vZ}, {sr(SWS)}, s{sT0} offen sc1")
                a("s_mov_b64 exec, -1")
                a.label(L)
        def row_stats(part=None):
            for p, f in enumerate((rs0, rs1, rs2, rs3)):
                if part is None or part == p: f()
        SU, SQ, R = RW + 10, RW + 11, RW + 12
        def rs0():
            a(f"v_mov_b64 {vr(SU, 2)}, 0")
            for j in range(10):
                a(f"v_dot2c_f32_bf16 v{SU}, v{ONE}, v{RW+j}")
                a(f"v_dot2c_f32_bf16 v{SQ}, v{RW+j}, v{RW+j}")
            a("s_nop 2")
        def rs1():
            for m in ("row_shr:1", "row_shr:2", "row_shr:4", "row_shr:8"):
                a(f"v_add_f32_dpp v{SU}, v{SU}, v{SU} {m} row_mask:0xf bank_mask:0xf bound_ctrl:0")
                a(f"v_add_f32_dpp v{SQ}, v{SQ}, v{SQ} {m} row_mask:0xf bank_mask:0xf bound_ctrl:0")
                a("s_nop 0")
            a(f"v_add_f32_dpp v{SU}, v{SU}, v{SU} row_bcast:15 row_mask:0xa bank_mask:0xf")
            a(f"v_add_f32_dpp v{SQ}, v{SQ}, v{SQ} row_bcast:15 row_mask:0xa bank_mask:0xf")
        def rs2():
            a(f"v_mul_f32 v{SU}, {f32bits(1.0/640):#x}, v{SU}")
            a(f"v_mul_f32 v{SQ}, {f32bits(1.0/640):#x}, v{SQ}")
            a(f"v_fma_f32 v{SQ}, -v{SU}, v{SU}, v{SQ}")
            a(f"v_max_f32 v{SQ}, 0, v{SQ}")
            a(f"v_cvt_pk_bf16_f32 v{R}, -v{SU}, -v{SU}")
            a(f"v_cvt_pk_bf16_f32 v{SQ}, v{SQ}, v{SQ}")
            a(f"v_and_b32 v{SQ}, 0xffff0000, v{SQ}")
            a(f"v_add_f32 v{SQ}, {f32bits(1e-5):#x}, v{SQ}")
            a(f"v_cvt_pk_bf16_f32 v{SQ}, v{SQ}, v{SQ}")
            a(f"v_and_b32 v{SQ}, 0xffff0000, v{SQ}")
            a(f"v_sqrt_f32 v{SQ}, v{SQ}")
            a("s_nop 0")
            a(f"v_cvt_pk_bf16_f32 v{SQ}, v{SQ}, v{SQ}")
            a(f"v_and_b32 v{SQ}, 0xffff0000, v{SQ}")
            a(f"v_rcp_f32 v{R+2}, v{SQ}")
        def rs3():
            a(f"v_mov_b32 v{R+1}, v{vNON}")
            a(f"v_mov_b32 v{R+3}, v{vNON}")
            a(f"v_lshlrev_b32 v{vT1}, 4, v{vH}")
            a(f"s_lshl_b32 s{sT0}, s{sSTEP}, 5")
            a(f"s_add_u32 s{sT0}, s{sT0}, {WS_RS}")
            a("s_mov_b32 exec_lo, 0x80000000")
            a("s_mov_b32 exec_hi, 0x80000000")
            a(f"buffer_store_dwordx4 {vr(R, 4)}, v{vT1}, {sr(SWS)}, s{sT0} offen sc1")
            a("s_mov_b64 exec, -1")
        def row_load(dst):
            a(f"s_lshl_b32 s{sT0}, s{sT3}, 9")
            a(f"s_add_u32 s{sT0}, s{sT0}, {WS_RS}")
            a(f"v_lshlrev_b32 v{vT0}, 4, v{vN}")
            a(f"buffer_load_dwordx4 {vr(dst, 4)}, v{vT0}, {sr(SWS)}, s{sT0} offen sc1")
        def tag_check(regs, again, ok):
            a(f"v_xor_b32 v{vT1}, s{sNON}, v{regs[0]}")
            for r in regs[1:]: a(f"v_bitop3_b32 v{vT1}, v{r}, s{sNON}, v{vT1} bitop3:0xbe")
            a(f"v_cmp_ne_u32 vcc, 0, v{vT1}")
            a(f"s_cbranch_vccz {ok}")
            a("s_sleep 2")
            spin_tail(a, again)
            a.label(ok)
        def next_slot():
            a(f"s_and_b32 s{sT0}, s{sC}, 3")
            csel(a, sT1, K1_SLOT, -3*K1_SLOT)
            a(f"s_cmp_eq_u32 s{sT0}, 3")
            csel(a, sDEL, -3*K1_SLOT, K1_SLOT)
            for s in range(4): a(f"v_add_u32 v{vX+s}, s{sDEL}, v{vX+s}")
            for i in range(nt): a(f"v_add_u32 v{vTR+i}, s{sDEL}, v{vTR+i}")
        if A_:
            srd(a, SX, pX, 2048 * 1280)
            a(f"s_lshl_b32 s{sT0}, s{sRB}, 4")
            a(f"s_add_u32 s{sT0}, s{sT0}, s{sCG}")
            a(f"s_lshl_b32 s{sT0}, s{sT0}, 2")
            a(f"s_add_u32 s{sSTEP}, s{sT0}, s{sTT}")
            a(f"s_mul_i32 s{sT0}, s{sSTEP}, 2560")
            a(f"v_mul_u32_u24 v{vT0}, 40, v{vL}")
            a(f"buffer_load_dwordx4 {vr(RW, 4)}, v{vT0}, {sr(SX)}, s{sT0} offen")
            a(f"buffer_load_dwordx4 {vr(RW+4, 4)}, v{vT0}, {sr(SX)}, s{sT0} offen offset:16")
            a(f"buffer_load_dwordx2 {vr(RW+8, 2)}, v{vT0}, {sr(SX)}, s{sT0} offen offset:32")
        if opt("wsoff"):
            a(f"s_add_u32 s{pWS}, s{pWS}, {optv('wsoff', 0) << 20}")
            a(f"s_addc_u32 s{pWS+1}, s{pWS+1}, 0")
        srd(a, SWS, pWS, WS_END)
        srd(a, SDBG, pDBG, 256)
        a(f"v_mov_b32 v{vZ}, 0")
        if A_ and not kv:
            L = a.uid("NONCE")
            a(f"s_or_b32 s{sT0}, s2, s{sW}")
            a(f"s_cbranch_scc1 {L}")
            if PROFILE: a("s_or_b32 s100, s65, 1")
            else: a("s_or_b32 s100, s100, 1")
            a(f"v_mov_b32 v{vT0}, s100")
            a(f"buffer_store_dword v{vT0}, v{vZ}, {sr(SDBG)}, 0 offen sc1")
            a.label(L)
        a(f"v_mov_b64 {vr(PUB, 2)}, 0")
        a(f"v_mov_b64 {vr(PUB+2, 2)}, 0")
        a(f"v_and_b32 v{vN}, 31, v{vL}")
        a(f"v_lshrrev_b32 v{vH}, 5, v{vL}")
        for i in range(nt): zero16(a, ACC + 16 * i, PUB)
        if B_ or kv: zero16(a, P, PUB)
        a(f"v_mov_b32 v{ONE}, 0x3f803f80")
        a(f"v_mov_b32 v{ONE+1}, 0x3f803f80")
        a(f"v_bfe_u32 v{vT0}, v{vL}, 1, 3")
        a(f"v_xor_b32 v{vT0}, v{vT0}, v{vH}")
        if A_ and not kv:
            a(f"s_and_b32 s{sT0}, s{sTT}, 2")
            a(f"s_lshl_b32 s{sT0}, s{sT0}, 12")
        else:
            a(f"s_lshl_b32 s{sT0}, s{sTT}, 12")
        a(f"s_add_u32 s{sT0}, s{sT0}, {K1_XOFF}")
        a(f"v_lshl_add_u32 v{vT1}, v{vN}, 7, s{sT0}")
        for s in range(4):
            a(f"v_xor_b32 v{vT2}, {2*s}, v{vT0}")
            a(f"v_lshl_add_u32 v{vX+s}, v{vT2}, 4, v{vT1}")
        a(f"v_bfe_u32 v{vT0}, v{vL}, 2, 2")
        a(f"v_lshl_add_u32 v{vROW}, v{vH}, 3, v{vT0}")
        a(f"v_bfe_u32 v{vG16}, v{vL}, 4, 1")
        a(f"v_and_b32 v{vC4}, 3, v{vL}")
        if kv:
            a(f"v_lshl_add_u32 v{vT0}, v{vG16}, 2, v{vC4}")
            a(f"v_min_u32 v{vT0}, 4, v{vT0}")
            a(f"v_mul_u32_u24 v{vROW}, 40, v{vROW}")
            a(f"v_lshl_add_u32 v{vTR}, v{vT0}, 3, v{vROW}")
            if B_: a(f"v_add_u32 v{vTR}, 4096, v{vTR}")
        else:
            a(f"v_mul_u32_u24 v{vROW}, 320, v{vROW}")
            if A_:
                a(f"s_and_b32 s{sDEL}, s{sTT}, 1")
                a(f"s_lshl_b32 s{sDEL}, s{sDEL}, 1")
                tr_addr(vTR, ("s", sDEL))
                a(f"s_lshl_b32 s{sT1}, s{sT1}, 1")
                a(f"v_add_u32 v{vTR+1}, s{sT1}, v{vTR}")
            else:
                tr_addr(vTR, 4)
            if B_:
                tr_addr(vSA, ("s", sTT))
                w_setup(False)
        next_chunk(B_, A_ or not kv, K1_SLOT)
        if B_:
            for p in range(4): xpiece(p)
        else:
            for p in range(2 if kv else 5): wpiece(p, kv)
        next_chunk(B_, A_ or not kv, K1_SLOT)
        AW2 = opt("aw2")
        if opt("x2") and B_ and not kv:
            for p in range(4): xpiece(p)
        a(f"s_and_b32 s{sT}, s2, 7")
        a(f"s_lshl_b32 s{sT}, s{sT}, 3")
        a(f"s_lshr_b32 s{sT0}, s2, 5")
        a(f"s_add_u32 s{sT}, s{sT}, s{sT0}")
        a(f"s_bfe_u32 s{sHG}, s2, 0x20003")
        a(f"s_mul_i32 s{sG}, s{sT}, {G_TSTRIDE}")
        a(f"s_mul_i32 s{sOB}, s{sT}, {32*1280}")
        a(f"s_mul_i32 s{sT0}, s{sHG}, 320")
        a(f"s_add_u32 s{sOB}, s{sOB}, s{sT0}")
        a(f"s_lshl_b32 s{sF2}, s{sT}, 2")
        a(f"s_add_u32 s{sF2}, s{sF2}, s{sHG}")
        a(f"s_lshl_b32 s{sF2}, s{sF2}, 7")
        a(f"s_add_u32 s{sF2}, s{sF2}, {WS_F2}")
        a(f"s_mul_i32 s{sOUT}, s{sT3}, {G_TSTRIDE}")
        a(f"s_mul_i32 s{sT0}, s{sCG}, 10240")
        a(f"s_add_u32 s{sOUT}, s{sOUT}, s{sT0}")
        a(f"s_cmp_lt_u32 s{sCG}, 4")
        a(f"s_cselect_b32 s{sQS}, {f32bits(QSCALE):#x}, 1.0")
        a(f"s_lshl_b32 s{sFL}, s{sRB}, 4")
        a(f"s_add_u32 s{sFL}, s{sFL}, s{sCG}")
        a(f"s_lshl_b32 s{sFL}, s{sFL}, 7")
        a(f"s_add_u32 s{sFL}, s{sFL}, {WS_F1}")
        a(f"s_mov_b32 s{sFAST}, 0")
        a(f"s_mov_b32 s{sC}, 0")
        if B_:
            srd(a, SB, pOUT, 2048 * 1280)
        elif not kv and opt("pre1"):
            ffn_pre(a, vL, vT0, vT1)
        if B_:
            a(f"v_mov_b32 v{vT0}, {L_CNT}")
            a(f"ds_write_b128 v{vT0}, {vr(PUB, 4)}")
        def att_setup(part=None):
            for p, f in ((0, as0), (4, as4)):
                if part is None or part == p: f()
        def as0():
            a(f"v_mul_u32_u24 v{avV}, 384, v{vH}")
            a(f"v_lshl_add_u32 v{avV}, v{vN}, 4, v{avV}")
            a(f"v_add_u32 v{avV}, 1024, v{avV}")
            a(f"v_mov_b32 v{vT0}, {OOB:#x}")
            a(f"v_cmp_gt_u32 vcc, 21, v{vN}")
            a(f"v_min_u32 v{avKT}, 32, v{vL}")
            a(f"v_lshlrev_b32 v{avKT}, 3, v{avKT}")
            a(f"v_cndmask_b32 v{avV}, v{vT0}, v{avV}, vcc")
            a(f"v_add_u32 v{avKT}, 2560, v{avKT}")
        def as4():
            a(f"v_and_b32 v{vT0}, 15, v{vL}")
            a(f"v_lshlrev_b32 v{vT0}, 11, v{vT0}")
            a(f"v_add_u32 v{vT0}, {WS_F1 + 15*128}, v{vT0}")
            a(f"s_and_b32 s{sT0}, s2, 7")
            a(f"s_lshl_b32 s{sT0}, s{sT0}, 7")
            a(f"s_add_u32 s{sT0}, s{sT0}, {WS_XC}")
            a(f"v_cmp_gt_u32 vcc, 32, v{vL}")
            a(f"v_lshl_add_u32 v{vT1}, v{vN}, 2, s{sT0}")
            a("s_nop 0")
            a(f"v_cndmask_b32 v{vFL}, v{vT1}, v{vT0}, vcc")

        if kv:
            nd = 4 if B_ else 2
            XB, WA = [28, ACC + 16], [128, 144] if A_ else [96, 112]
            def pieces(rng):
                for p in rng:
                    if p < nd: xpiece(p) if B_ else wpiece(p, True)
            pieces(range(4))
            next_chunk(B_, A_, K1_SLOT)
            a(f"s_waitcnt vmcnt({2*nd + (3 if A_ else 0)})")
            a.stamp(2)
            a("s_barrier")
            a.stamp(3); a.stamp(NSTAMP, True)
            for s in range(4):
                a(f"ds_read_b128 {vr(XB[0]+4*s, 4)}, v{vX+s}")
                a(f"ds_read_b64_tr_b16 {vr(WA[0]+4*s, 2)}, v{vTR} offset:{s*sstr}")
                a(f"ds_read_b64_tr_b16 {vr(WA[0]+4*s+2, 2)}, v{vTR} offset:{s*sstr+4*rstr}")
            a(f"buffer_load_dword v{vNON}, v{vZ}, {sr(SDBG)}, 0 offen sc1")
            pieces(range(4))
            a.label(f"P1_L{tag}")
            for b in range(2):
                next_slot()
                next_chunk(B_, A_, f"s{sT1}")
                if b == 0:
                    L = a.uid("KS")
                    a(f"s_cmp_lg_u32 s{sC}, 6")
                    a(f"s_cbranch_scc1 {L}")
                    if B_: a(f"s_mov_b32 s{SX+2}, 0")
                    else:
                        a(f"s_mov_b32 s{SA+2}, 0")
                        a(f"s_mov_b32 s{SB+2}, 0")
                    a.label(L)
                a(f"s_waitcnt vmcnt({2*nd}) lgkmcnt(0)")
                a("s_barrier")
                for s in range(4):
                    a(f"v_mfma_f32_32x32x16_bf16 {vr(ACC, 16)}, {vr(WA[b]+4*s, 4)}, {vr(XB[b]+4*s, 4)}, {vr(ACC, 16)}")
                    a(f"ds_read_b128 {vr(XB[b^1]+4*s, 4)}, v{vX+s}")
                    a(f"ds_read_b64_tr_b16 {vr(WA[b^1]+4*s, 2)}, v{vTR} offset:{s*sstr}")
                    a(f"ds_read_b64_tr_b16 {vr(WA[b^1]+4*s+2, 2)}, v{vTR} offset:{s*sstr+4*rstr}")
                    for j in range(2): m4(P + 4*j, ONE, WA[b]+4*s+2*j)
                    pieces([s])
                if b == 1:
                    L, L2 = a.uid("KN"), a.uid("KR")
                    a(f"s_cmp_lg_u32 s{sC}, 1")
                    a(f"s_cbranch_scc1 {L}")
                    get_nonce(A_)
                    if A_: row_stats()
                    a.label(L)
                    a(f"s_cmp_lg_u32 s{sC}, 7")
                    a(f"s_cbranch_scc1 {L2}")
                    row_load(ST + 16)
                    a.label(L2)
                if A_: a.lstamp(sC)
                a(f"s_add_u32 s{sC}, s{sC}, 1")
            a(f"s_cmp_lt_u32 s{sC}, 10")
            a(f"s_cbranch_scc1 P1_L{tag}")
            a.stamp(4); a.stamp(NSTAMP + 1, True)
            if A_: a.ldump()
            R = ST + 16
            a(f"s_mov_b32 s{sSPIN}, {SPIN}")
            a(f"s_branch P1_GW{tag}")
            a.label(f"P1_GA{tag}")
            row_load(R)
            a.label(f"P1_GW{tag}")
            a("s_waitcnt vmcnt(0) lgkmcnt(0)")
            tag_check([R + 1, R + 3], f"P1_GA{tag}", f"P1_FOK{tag}")
            a(f"v_add_f32 v{P}, v{P}, v{P+4}")
            split3(a, P, vT0, vT1, CSR, CSR + 1)
            a(f"v_mov_b32 v{R+1}, v{R}")
            a(f"v_mov_b32 v{R+3}, v{R+2}")
            a(f"v_lshlrev_b32 v{vT2}, 4, v{vL}")
            a(f"v_mfma_f32_32x32x8_bf16 {vr(ACC, 16)}, {vr(CSR, 2)}, {vr(R, 2)}, {vr(ACC, 16)}")
            a("s_nop 9")
            a(f"s_mul_i32 s{sT0}, s{sT3}, {KV_REC}")
            a(f"s_add_u32 s{sT0}, s{sT0}, {WS_KV}")
            for j in range(6): a(f"v_pk_mul_f32 {vr(ACC+2*j, 2)}, {vr(ACC+2*j, 2)}, {vr(R+2, 2)}")
            if A_:
                for j in range(6): a(f"v_cvt_pk_bf16_f32 v{P+j}, v{ACC+2*j}, v{ACC+2*j+1}")
                a(f"v_min_u32 v{vT0}, 32, v{vL}")
                a(f"v_lshlrev_b32 v{vT0}, 3, v{vT0}")
                a("s_mov_b32 exec_lo, 0")
                a(f"v_mov_b32 v{P+4}, 0x3f803f80")
                a(f"v_mov_b32 v{P+5}, 0x3f80")
                a("s_mov_b32 exec_lo, -1")
                a(f"buffer_store_dwordx4 {vr(P, 4)}, v{vT2}, {sr(SWS)}, s{sT0} offen sc1")
                a(f"buffer_store_dwordx2 {vr(P+4, 2)}, v{vT0}, {sr(SWS)}, s{sT0} offen offset:2560 sc1")
            else:
                a("s_mov_b32 exec_lo, 0")
                a(f"v_mov_b32 v{ACC+8}, 1.0")
                a("s_mov_b32 exec_lo, -1")
                for j in range(6): a(f"v_cvt_pk_bf16_f32 v{P+j}, v{ACC+2*j}, v{ACC+2*j+1}")
                a(f"s_mul_i32 s{sT1}, s{sTT}, 1536")
                a(f"s_add_u32 s{sT1}, s{sT1}, {L_VT}")
                a(f"v_lshrrev_b32 v{vT0}, 3, v{vN}")
                a(f"v_mul_u32_u24 v{vT0}, 384, v{vT0}")
                a(f"v_and_b32 v{vT1}, 7, v{vN}")
                a(f"v_lshl_add_u32 v{vT0}, v{vT1}, 1, v{vT0}")
                a(f"v_lshl_add_u32 v{vT0}, v{vH}, 6, v{vT0}")
                a(f"v_add_u32 v{vT0}, s{sT1}, v{vT0}")
                for r in range(12):
                    op = "ds_write_b16" if r % 2 == 0 else "ds_write_b16_d16_hi"
                    a(f"{op} v{vT0}, v{P+r//2} offset:{(r//4)*128 + (r%4)*16}")
                a(f"v_add_u32 v{vT0}, s{sT1}, v{vT2}")
                a("s_waitcnt lgkmcnt(0)")
                a(f"ds_read_b128 {vr(P+8, 4)}, v{vT0}")
                a(f"ds_read_b128 {vr(P+12, 4)}, v{vT0} offset:1024")
                a("s_waitcnt lgkmcnt(0)")
                a(f"buffer_store_dwordx4 {vr(P+8, 4)}, v{vT2}, {sr(SWS)}, s{sT0} offen offset:1024 sc1")
                a("s_mov_b32 exec_hi, 0")
                a(f"buffer_store_dwordx4 {vr(P+12, 4)}, v{vT2}, {sr(SWS)}, s{sT0} offen offset:2048 sc1")
                a("s_mov_b32 exec_hi, -1")
            a.stamp(5)
            a("s_waitcnt vmcnt(0) lgkmcnt(0)")
            a("s_barrier")
            if B_:
                a(f"s_mov_b32 s{sKOK}, 0")
                a(f"s_cmp_lg_u32 s{sW}, 4")
                a(f"s_cbranch_scc1 P1_KNP")
                a("s_mov_b64 exec, 1")
                a(f"buffer_store_dword v{vNON}, v{vZ}, {sr(SWS)}, s{sFL} offen sc1")
                a("s_mov_b64 exec, -1")
                a.label("P1_KNP")
                a(f"s_mul_i32 s{sT0}, s{sHG}, 10240")
                a(f"s_add_u32 s{sT0}, s{sT0}, s{sG}")
                a(f"s_mul_i32 s{sT1}, s{sTT}, 2560")
                a(f"s_add_u32 s{sT0}, s{sT0}, s{sT1}")
                a(f"v_lshlrev_b32 v{vT0}, 7, v{vL}")
                a("s_mov_b64 exec, 0xfffff")
                a(f"buffer_load_dword v20, v{vT0}, {sr(SWS)}, s{sT0} offen sc1")
                a("s_mov_b64 exec, -1")
                att_setup(); att_zero(a); att_scalars(a)
                a("s_waitcnt lgkmcnt(0)")
                a("s_barrier")
            else:
                if opt("pre1"): ffn_pre(a, vL, vT0, vT1)
                else:
                    a("s_movk_i32 s100, 960")
                    row_offsets(a, fD, vL, vT0, vT1, "s100")
                a("s_barrier")
                srd(a, SX, pW2, 1728 * 1280)
                a(f"s_mul_i32 s{sT2}, s{sW}, 5120")
                a(f"s_mul_i32 s{sT0}, s{sW}, {27*16*1280}")
                a(f"s_mul_i32 s{sT1}, s{sHG}, 320")
                a(f"s_add_u32 s{sT0}, s{sT0}, s{sT1}")
                for i in range(NS):
                    for p in range(5):
                        dma(a, p, fD, SX, sT0, sT2, L_RING + i*20480)
                    a(f"s_add_u32 s{sT0}, s{sT0}, {16*1280}")
            a(f"s_branch {nxt}")
            return

        def mfma(i, p): a(f"v_mfma_f32_32x32x16_bf16 {vr(ACC+16*i, 16)}, {vr(FA[p]+4*i, 4)}, {vr(FB[p], 4)}, {vr(ACC+16*i, 16)}")
        def rdb(q, ns): a(f"ds_read_b128 {vr(FB[q], 4)}, v{vX+ns}")
        def rda(q, i, ns):
            a(f"ds_read_b64_tr_b16 {vr(FA[q]+4*i, 2)}, v{vTR+i} offset:{ns*sstr}")
            a(f"ds_read_b64_tr_b16 {vr(FA[q]+4*i+2, 2)}, v{vTR+i} offset:{ns*sstr+4*rstr}")
        def rank1(i): a(f"v_mfma_f32_32x32x8_bf16 {vr(ACC+16*i, 16)}, {vr(CSR+2*i, 2)}, {vr(NM, 2)}, {vr(ACC+16*i, 16)}")
        def pack_store(i, t):
            for j in range(8): a(f"v_pk_mul_f32 {vr(ACC+16*i+2*j, 2)}, {vr(ACC+16*i+2*j, 2)}, {vr(ST, 2)}")
            for j in range(8): a(f"v_cvt_pk_bf16_f32 v{P+8*i+j}, v{ACC+16*i+2*j}, v{ACC+16*i+2*j+1}")
            L = a.uid("NR")
            a(f"s_cmp_lt_u32 s{sCG}, 4")
            a(f"s_cbranch_scc1 {L}")
            for j in range(8): a(f"v_pk_max_i16 v{P+8*i+j}, v{P+8*i+j}, 0")
            a.label(L)
            a(f"s_add_u32 s{sT0}, s{sOUT}, {t}")
            stores(a, [f"buffer_store_dwordx4 {vr(P+8*i+4*e, 4)}, v{vT2}, {sr(SWS)}, s{sT0} offen offset:{1024*e}" for e in range(2)])
        def signal(vn):
            a.stamp(5)
            if PROFILE and opt("dbgf"):
                a(f"s_lshl_b32 s100, s{sKOK}, 1") if B_ else a("s_mov_b32 s100, 0")
                a(f"s_or_b32 s82, s100, s{sFAST}")
            if B_:
                att_zero(a); att_scalars(a)
            a(f"s_lshl_b32 s{sT0}, s{sW}, 2")
            a(f"s_add_u32 s{sT0}, s{sT0}, s{sFL}")
            a("s_mov_b64 exec, 1")
            a("s_waitcnt vmcnt(0)")
            stores(a, [f"buffer_store_dword v{vn}, v{vZ}, {sr(SWS)}, s{sT0} offen offset:32"])
            a("s_mov_b64 exec, -1")
            if opt("tp") and A_:
                a(f"buffer_load_dword v229, v{vT0}, {sr(SWS)}, s{sOUT} offen sc1")
                a(f"s_add_u32 s{sT0}, s{sOUT}, 8192")
                a("s_mov_b64 exec, 0xffff")
                a(f"buffer_load_dword v229, v{vT0}, {sr(SWS)}, s{sT0} offen sc1")
                a("s_mov_b64 exec, -1")
            a(f"s_branch {nxt}")
        if A_:
            XB, WF = [128, 136], [144, 152]
            REC = [28, 36]
            vRS, vRC = 20, 23
            a(f"s_and_b32 s{sT0}, s{sTT}, 2")
            a(f"s_lshl_b32 s{sT1}, s{sT0}, 10")
            a(f"s_add_u32 s{sT1}, s{sT1}, {K1_ST}")
            a(f"v_lshl_add_u32 v{vRS}, v{vN}, 5, s{sT1}")
            a(f"s_and_b32 s{sT2}, s{sTT}, 1")
            a(f"s_lshl_b32 s{sT1}, s{sT2}, 10")
            a(f"s_add_u32 s{sT1}, s{sT1}, {K1_CS}")
            a(f"v_lshl_add_u32 v{vRC}, v{vL}, 3, s{sT1}")
            a(f"s_mul_i32 s{sT1}, s{sT2}, {4096 - G_TSTRIDE}")
            a(f"s_add_u32 s{sOUT}, s{sOUT}, s{sT1}")
            a(f"v_lshlrev_b32 v{vT2}, 4, v{vL}")
            srd(a, SX, pW2, 1728 * 1280)
            a(f"s_mul_i32 s{sPB}, s{sRB}, 15")
            a(f"s_add_u32 s{sPB}, s{sPB}, s{sCG}")
            a(f"s_lshl_b32 s{sPB}, s{sPB}, 2")
            a(f"s_add_u32 s{sPB}, s{sPB}, s{sTT}")
            a(f"s_mul_i32 s{sSO}, s{sPB}, {7*128}")
            a(f"s_mul_i32 s{sPB}, s{sPB}, {18*128}")
            srd(a, SB, pWO, 640 * 1280)
            a(f"v_lshlrev_b32 v{vT0}, 7, v{vL}")
            def mf(j, i, p): a(f"v_mfma_f32_32x32x16_bf16 {vr(ACC+32*j+16*i, 16)}, {vr(WF[p]+4*i, 4)}, {vr(XB[p]+4*j, 4)}, {vr(ACC+32*j+16*i, 16)}")
            def rx(q, j, ns): a(f"ds_read_b128 {vr(XB[q]+4*j, 4)}, v{vX+ns}" + (" offset:4096" if j else ""))
            def rw(q, i, ns):
                a(f"ds_read_b64_tr_b16 {vr(WF[q]+4*i, 2)}, v{vTR+i} offset:{ns*sstr}")
                a(f"ds_read_b64_tr_b16 {vr(WF[q]+4*i+2, 2)}, v{vTR+i} offset:{ns*sstr+4*rstr}")
            if opt("pg"):
                L = a.uid("PG")
                a(f"s_cmp_lg_u32 s{sW}, 3")
                a(f"s_cbranch_scc1 {L}")
                a(f"v_lshlrev_b32 v{vT1}, 21, v{vL}")
                a("s_mov_b64 exec, 0x7f")
                a(f"buffer_load_dword v229, v{vT1}, {sr(SWS)}, 0 offen")
                a(f"buffer_load_dword v230, v{vT1}, {sr(SB)}, 0 offen")
                a(f"buffer_load_dword v231, v{vT1}, {sr(SX)}, 0 offen")
                a("s_mov_b64 exec, -1")
                a.label(L)
            for p in range(NA): wpiece(p)
            if NA: next_chunk(False, True, K1_SLOT)
            a(f"s_waitcnt vmcnt({8 + NA})")
            a.stamp(2)
            a("s_barrier")
            rx(0, 0, 0); rw(0, 0, 0); rw(0, 1, 0); rx(0, 1, 0)
            a.stamp(3); a.stamp(NSTAMP, True)
            def step(s, pre=None, extra=0, g3=None, g4=None):
                p, q, ns = s & 1, (s + 1) & 1, (s + 1) & 3
                if pre is None: a(f"s_waitcnt lgkmcnt({3 + extra})")
                mf(0, 0, p)
                if pre is not None: pre()
                rx(q, 0, ns); rw(q, 0, ns)
                if pre is None: a(f"s_waitcnt lgkmcnt({3 + extra})")
                mf(0, 1, p)
                rw(q, 1, ns); rx(q, 1, ns)
                mf(1, 1, p)
                if g3: g3()
                mf(1, 0, p)
                if g4: g4()
            def apiece(p):
                def f():
                    if p >= NA: return
                    L = a.uid("SK")
                    a(f"s_cbranch_vccz {L}")
                    wpiece(p)
                    a.label(L)
                return f
            def ring():
                a(f"s_and_b32 s{sT0}, s{sC}, 3")
                if NA: csel(a, sRNG, K1_SLOT, -3*K1_SLOT)
                a(f"s_cmp_eq_u32 s{sT0}, 3")
                csel(a, sDEL, -3*K1_SLOT, K1_SLOT)
            sRNG = sM0
            def adds():
                for s in range(4): a(f"v_add_u32 v{vX+s}, s{sDEL}, v{vX+s}")
                for i in range(2): a(f"v_add_u32 v{vTR+i}, s{sDEL}, v{vTR+i}")
            TC = 6 if NA else optv("tc", 3)
            a("s_mov_b64 vcc, -1")
            a.raw(".p2align 3")
            a.label(f"P1_L{tag}")
            step(0, None, 0, apiece(0))
            step(1, None, 0, apiece(1), ring)
            step(2, None, 0, adds, apiece(2))
            a(f"s_bitcmp1_b32 {0x107 | (1 << TC):#x}, s{sC}")
            a("s_waitcnt lgkmcnt(0)")
            def pre():
                if NA: a(f"s_waitcnt vmcnt({2*NA})")
                a(f"s_cbranch_scc1 P1_X{tag}")
                a.label(f"P1_W1{tag}")
                a("s_barrier")
            step(3, pre, 0, (lambda: next_chunk(False, True, f"s{sRNG}")) if NA else None)
            a.lstamp(sC)
            a(f"s_add_u32 s{sC}, s{sC}, 1")
            a(f"s_cmp_lt_u32 s{sC}, 9")
            a(f"s_cbranch_scc1 P1_L{tag}")
            if opt("fin9"):
                step(0); step(1); step(2)
                a("s_waitcnt lgkmcnt(0)")
                mf(0, 0, 1)
                a("s_barrier")
                a.stamp(4); a.stamp(NSTAMP + 1, True)
                a(f"ds_read_b128 {vr(REC[0], 4)}, v{vRS}")
                for i in range(2): a(f"ds_read_b64 {vr(CSR+2*i, 2)}, v{vRC} offset:{512*i}")
                a(f"ds_read_b128 {vr(REC[1], 4)}, v{vRS} offset:1024")
                a(f"ds_read_b64 {vr(REC[0]+4, 2)}, v{vRS} offset:16")
                mf(0, 1, 1); mf(1, 0, 1); mf(1, 1, 1)
                a("s_waitcnt lgkmcnt(0)")
                for n in range(4):
                    j, i = n >> 1, n & 1
                    a(f"v_mfma_f32_32x32x8_bf16 {vr(ACC+16*n, 16)}, {vr(CSR+2*i, 2)}, {vr(REC[j], 2)}, {vr(ACC+16*n, 16)}")
                a(f"v_readfirstlane_b32 s{sFAST}, v{REC[0]+5}")
                a("s_nop 7")
                for n in range(4):
                    ST = REC[n >> 1] + 2
                    pack_store(n, (n >> 1) * G_TSTRIDE + (n & 1) * 2048)
            else:
                a(f"ds_read_b128 {vr(REC[0], 4)}, v{vRS}")
                a(f"ds_read_b64 {vr(REC[0]+4, 2)}, v{vRS} offset:16")
                a(f"ds_read_b128 {vr(REC[1], 4)}, v{vRS} offset:1024")
                for i in range(2): a(f"ds_read_b64 {vr(CSR+2*i, 2)}, v{vRC} offset:{512*i}")
                step(0, None, 5)
                step(1)
                rds = [lambda: (rx(1, 0, 3), rw(1, 0, 3)), lambda: (rw(1, 1, 3), rx(1, 1, 3)), lambda: None, lambda: None]
                for n in range(4):
                    j, i = n >> 1, n & 1
                    a(f"v_mfma_f32_32x32x8_bf16 {vr(ACC+16*n, 16)}, {vr(CSR+2*i, 2)}, {vr(REC[j], 2)}, {vr(ACC+16*n, 16)}")
                    rds[n]()
                a(f"v_readfirstlane_b32 s{sFAST}, v{REC[0]+5}")
                a("s_waitcnt lgkmcnt(3)")
                mf(0, 0, 0); mf(0, 0, 1)
                a("s_waitcnt lgkmcnt(0)")
                a("s_barrier")
                a.stamp(4); a.stamp(NSTAMP + 1, True)
                mf(0, 1, 0); mf(0, 1, 1)
                a("s_nop 7")
                for n in range(4):
                    if n < 2: mf(1, n, 0); mf(1, n, 1)
                    ST = REC[n >> 1] + 2
                    pack_store(n, (n >> 1) * G_TSTRIDE + (n & 1) * 2048)
            a.ldump()
            signal(REC[0] + 4)
            a.label(f"P1_X{tag}")
            for c in (0, 1, 2, 8):
                L = a.uid("XH")
                a(f"s_cmp_lg_u32 s{sC}, {c}")
                a(f"s_cbranch_scc1 {L}")
                if c == 0:
                    if not NA: a("s_waitcnt vmcnt(5)")
                    row_stats(0); row_stats(1)
                    if not NA: a("s_waitcnt vmcnt(0)")
                    a(f"buffer_load_dword v{vNON}, v{vZ}, {sr(SDBG)}, 0 offen sc1")
                elif c == 1:
                    row_stats(2)
                elif c == 2:
                    if not NA: a("s_waitcnt vmcnt(0)")
                    get_nonce(True)
                    row_stats(3)
                elif NA:
                    a("s_waitcnt vmcnt(3)")
                a(f"s_branch P1_W1{tag}")
                a.label(L)
            a("s_mov_b64 vcc, 0")
            if not opt("notq"):
                a(f"s_mul_i32 s{sT0}, s{sHG}, 10240")
                a(f"s_add_u32 s{sT0}, s{sT0}, s{sG}")
                a(f"s_mul_i32 s{sT1}, s{sTT}, 2560")
                a(f"s_add_u32 s{sT0}, s{sT0}, s{sT1}")
                if opt("noq"): a(f"s_mov_b32 s{sT0}, 0x40000000")
                a("s_mov_b64 exec, 0xfffff")
                a(f"buffer_load_dword v229, v{vT0}, {sr(SWS)}, s{sT0} offen sc1")
            if opt("now"):
                a(f"s_mov_b32 s{SB+2}, 0")
                a(f"s_mov_b32 s{SX+2}, 0")
            a("s_mov_b64 exec, 0x7f")
            a(f"buffer_load_dword v230, v{vT0}, {sr(SB)}, s{sSO} offen")
            a("s_mov_b64 exec, 0x3ffff")
            a(f"buffer_load_dword v231, v{vT0}, {sr(SX)}, s{sPB} offen")
            a("s_mov_b64 exec, -1")
            a(f"s_branch P1_W1{tag}")
            return
        NM, ST = 44, 46
        vWO, CG, RR = 200, 204 - 8, 206
        CG = 196
        a(f"s_lshl_b32 s{sPB}, s{sCG}, 2")
        a(f"s_add_u32 s{sPB}, s{sPB}, s{sTT}")
        a(f"s_mul_i32 s{sPB}, s{sPB}, 5120")
        a(f"s_add_u32 s{sPB}, s{sPB}, {WS_CP}")
        a(f"s_sub_u32 s{sM0}, s{sM0}, {2*K1_SLOT}")
        a(f"s_sub_u32 s{sM0W}, s{sM0W}, {2*K1_SLOT}")
        a("s_setprio 1")
        ops = ["X0"] * 4 + ["D1"] * 4 + (["D2"] * 4 if opt("x2") else [])
        def vm(tag_, n=1): ops.extend([tag_] * n)
        def wait(*tags):
            last = max(i for i, t in enumerate(ops) if t in tags)
            return len(ops) - 1 - last
        def xp(c, p):
            if opt("xnodma") and c > 2 and p > 0: return
            dma(a, p, vD, SX, sSO, sM0, (c & 3)*K1_SLOT); vm(f"D{c}")
        def wp(c, p):
            base = (c & 3) * K1_SLOT if c < 10 else L_RING + (c - 10) * 20480
            if (opt("xnodma") or opt("xnow")) and c > 2: return
            dma(a, p, vDW if c < 10 else vWO, SA, sSOW, sM0W, base, c < 10 and p == NA); vm(f"D{c}")
        def adv(c):
            if c < 10:
                a(f"s_add_u32 s{sCC}, s{sCC}, 1")
                a(f"s_cmp_eq_u32 s{sCC}, 10")
                a(f"s_cselect_b32 s{sCC}, 0, s{sCC}")
                a(f"s_lshl_b32 s{sSO}, s{sCC}, 7")
                a(f"s_mul_i32 s{sSOW}, s{sCC}, s{sWSTEP}")
                a(f"s_add_u32 s{sSOW}, s{sSOW}, s{sWBASE}")
            elif c == 10:
                srd(a, SA, pW2, 1728 * 1280)
                a(f"s_mul_i32 s{sSOW}, s{sTT}, {27*16*1280}")
                a(f"s_mul_i32 s{sT0}, s{sHG}, 320")
                a(f"s_add_u32 s{sSOW}, s{sSOW}, s{sT0}")
            elif c < 13:
                a(f"s_add_u32 s{sSOW}, s{sSOW}, {16*1280}")
        def f_nonce(): get_nonce(False)
        def f_cspub():
            a(f"v_add_f32 v{PUB}, v{P}, v{P+8}")
            a(f"v_add_f32 v{PUB+2}, v{P+4}, v{P+12}")
            halfop(a, "v_add_f32", PUB, vT0); halfop(a, "v_add_f32", PUB + 2, vT0)
            a(f"v_mov_b32 v{PUB+1}, v{vNON}")
            a(f"v_mov_b32 v{PUB+3}, v{vNON}")
            a(f"v_lshlrev_b32 v{vT2}, 4, v{vL}")
            a(f"s_lshl_b32 s{sT1}, s{sST}, 9")
            a(f"s_add_u32 s{sT0}, s{sPB}, s{sT1}")
            a("s_mov_b32 exec_hi, 0")
            a(f"buffer_store_dwordx4 {vr(PUB, 4)}, v{vT2}, {sr(SWS)}, s{sT0} offen sc1"); vm("S")
            a("s_mov_b32 exec_hi, -1")
        def f_rowpub(): row_stats(3); vm("S")
        def f_wo(ps):
            a(f"s_movk_i32 s{sT2}, 960")
            row_offsets(a, vWO, vL, vT0, vT1, f"s{sT2}", ps)
        def gather(js, count=True):
            for j in js:
                if j == 0:
                    row_load(RR)
                    a(f"v_mul_u32_u24 v{vT1}, 2560, v{vH}")
                    a(f"v_add_u32 v{vSA}, v{vT0}, v{vT1}")
                else:
                    a(f"buffer_load_dwordx4 {vr(GAT+4*(j-1), 4)}, v{vSA}, {sr(SWS)}, s{sPB} offen offset:{512*(j-1)} sc1")
                if count: vm("G")
        def f_words(t):
            a(f"buffer_load_dword v{vFV}, v{vFL}, {sr(SWS)}, 0 offen sc1"); vm(t)
        def f_fin0():
            a(f"s_mov_b32 s{sSPIN}, {SPIN}")
            a(f"s_waitcnt vmcnt({wait('G', 'XW')})")
            a(f"v_cmp_ne_u32 vcc, s{sXW}, v{vFV}")
            a("s_cmp_eq_u32 vcc_hi, 0")
            a(f"s_cselect_b32 s{sFAST}, {0 if opt('slow') else 1}, 0")
            a.label(f"P1_FC{tag}")
            tag_check([RR + 1, RR + 3] + [GAT + 2*j + 1 for j in range(10)], f"P1_GA{tag}", f"P1_FOK{tag}")
        def f_fin1():
            a(f"v_mov_b32 v{NM}, v{RR}")
            a(f"v_mov_b32 v{NM+1}, v{RR}")
            a(f"v_mul_f32 v{ST}, s{sQS}, v{RR+2}")
            a(f"v_mul_f32 v{ST+1}, s{sQS}, v{RR+2}")
            a(f"v_mov_b32 v{RR}, s{sNON}")
            a(f"v_mov_b32 v{RR+1}, s{sFAST}")
            a(f"s_lshl_b32 s{sT0}, s{sTT}, 10")
            a(f"s_add_u32 s{sT0}, s{sT0}, {K1_ST}")
            a(f"v_lshl_add_u32 v{vT0}, v{vN}, 5, s{sT0}")
            a(f"ds_write_b128 v{vT0}, {vr(NM, 4)}")
            a(f"ds_write_b64 v{vT0}, {vr(RR, 2)} offset:16")
            for j in range(1, 5):
                a(f"v_add_f32 v{GAT}, v{GAT}, v{GAT+4*j}")
                a(f"v_add_f32 v{GAT+2}, v{GAT+2}, v{GAT+4*j+2}")
        def f_fin2():
            split3(a, GAT, vT0, vT1, PUB, PUB + 1)
            a(f"s_lshl_b32 s{sT0}, s{sTT}, 9")
            a(f"s_add_u32 s{sT0}, s{sT0}, {K1_CS}")
            a(f"v_lshl_add_u32 v{vT0}, v{vL}, 3, s{sT0}")
            a(f"ds_write_b64 v{vT0}, {vr(PUB, 2)}")
            split3(a, GAT + 2, vT0, vT1, CSR, CSR + 1)
        def f_kv():
            L = a.uid("NOKV")
            a(f"s_waitcnt vmcnt({wait('KF')})")
            a(f"v_cmp_ne_u32 vcc, s{sNON}, v{vFV}")
            a(f"s_mov_b32 s{sKOK}, 0")
            a("s_cmp_lg_u32 vcc_lo, 0")
            a(f"s_cbranch_scc1 {L}")
            kv_first(a, vT2)
            a(f"s_mov_b32 s{sKOK}, 1")
            a.label(L)
        def f_tlb():
            if not opt("tlb"): return
            a(f"v_lshlrev_b32 v{vT0}, 21, v{vL}")
            a("s_mov_b64 exec, 0x7f")
            a(f"buffer_load_dword v20, v{vT0}, {sr(SWS)}, 0 offen"); vm("T")
            a("s_mov_b64 exec, 1")
            a(f"buffer_load_dword v20, v{vZ}, {sr(SB)}, s{sOB} offen"); vm("T")
            a("s_mov_b64 exec, -1")
        def f_code():
            if not opt("code"): return
            a("s_getpc_b64 s[100:101]")
            a.label("PCREF")
            a(f"s_lshr_b32 s{sT0}, s2, 3")
            a(f"s_lshl_b32 s{sT0}, s{sT0}, 2")
            a(f"s_add_u32 s{sT0}, s{sT0}, s{sTT}")
            a(f"s_lshl_b32 s{sT0}, s{sT0}, 7")
            a(f"s_add_u32 s{sT0}, s{sT0}, P2_ATT-PCREF")
            a(f"s_add_u32 s100, s100, s{sT0}")
            a("s_addc_u32 s101, s101, 0")
            a(f"v_mov_b32 v{vT0}, s100")
            a(f"v_mov_b32 v{vT1}, s101")
            a("s_mov_b64 exec, 1")
            a(f"global_load_dword v20, {vr(vT0, 2)}, off"); vm("T")
            a("s_mov_b64 exec, -1")
        fill = {(2, 0): f_nonce, (2, 1): f_cspub, (3, 1): lambda: f_wo((0, 1)), (4, 1): lambda: f_wo((2, 3)), (1, 1): lambda: (f_wo((4,)), att_setup(4)),
                (5, 0): lambda: gather((0,)), (5, 1): lambda: gather((1,)), (5, 2): lambda: gather((2,)),
                (6, 0): lambda: gather((3,)), (6, 1): lambda: gather((4,)), (6, 2): lambda: gather((5,)),
                (4, 2): lambda: f_words("XW"), (7, 0): lambda: att_setup(0)}
        if opt("g7"):
            for k in ((5, 0), (5, 1), (5, 2), (6, 0), (6, 1), (6, 2), (4, 2)): del fill[k]
            fill.update({(6, 2): lambda: gather((0, 1, 2)), (7, 0): lambda: (gather((3, 4, 5)), f_words("XW")), (7, 1): lambda: att_setup(0)})
        if opt("fin9"): fill.update({(8, 2): f_fin0, (9, 1): f_fin2, (9, 2): lambda: (a("s_nop 1"), rank1(0))})
        elif opt("fin8"): fill.update({(8, 0): f_fin0, (8, 1): f_fin1, (8, 2): f_fin2})
        else: fill.update({(7, 2): f_fin0, (8, 0): f_fin1, (8, 1): f_fin2})
        fill.update({(9, 0): (lambda: (f_words("KF"), f_fin1())) if opt("fin9") else (lambda: (rank1(0), f_words("KF")))})
        a(f"s_waitcnt vmcnt({wait('X0')})")
        a.stamp(2)
        a("s_barrier")
        rdb(0, 0); rda(0, 0, 0)
        for p in range(NA, 5): wp(2, p)
        if not opt("x2"):
            for p in range(4): xp(2, p)
        a(f"buffer_load_dword v{vNON}, v{vZ}, {sr(SDBG)}, 0 offen sc1"); vm("N")
        a.stamp(3); a.stamp(NSTAMP, True)
        for c in range(10):
            adv(c + 3)
            for s in range(4):
                p, q, ns = s & 1, (s + 1) & 1, (s + 1) & 3
                if c == 0:
                    a(f"ds_read_b64_tr_b16 {vr(CG, 2)}, v{vSA} offset:{s*sstr}")
                    a(f"ds_read_b64_tr_b16 {vr(CG+2, 2)}, v{vSA} offset:{s*sstr+4*rstr}")
                if s == 3 and c < 9:
                    d = -3 * K1_SLOT if (c & 3) == 3 else K1_SLOT
                    for r in list(range(vX, vX + 4)) + [vTR]: a(f"v_add_u32 v{r}, {d}, v{r}")
                a("s_waitcnt lgkmcnt(0)")
                if not opt("xnobm"): mfma(0, p)
                if c == 0:
                    for j in range(2):
                        m4(P + 8*j, ONE, CG + 2*j); m4(P + 8*j + 4, ONE, FA[p] + 2*j)
                if s == 3:
                    if c < 9: a(f"s_waitcnt vmcnt({wait(f'D{c+1}', 'N') if c == 1 else wait(f'D{c+1}')})")
                    a("s_barrier")
                if c < 9 or s < 3:
                    rdb(q, ns); rda(q, 0, ns)
                if s < 3:
                    if c + 3 < 10:
                        lst = [("w", p_) for p_ in range(NA, 5)] + [("x", p_) for p_ in range(4)]
                        n = len(lst)
                        for kind, pp in lst[(n * s + 2) // 3:(n * (s + 1) + 2) // 3]: (wp if kind == "w" else xp)(c + 3, pp)
                    elif c + 3 < 10 + NS:
                        for pp in ((0, 1), (2, 3), (4,))[s]: wp(c + 3, pp)
                    if (c, s) in fill: fill[(c, s)]()
        a.stamp(4); a.stamp(NSTAMP + 1, True)
        a("s_setprio 0" if not opt("bhi") else "s_nop 0")
        a("s_nop 9")
        pack_store(0, 8192); vm("S", 2)
        if opt("bhi"): a("s_setprio 0")
        f_kv()
        signal(vNON)
        a.label(f"P1_GA{tag}")
        gather(range(6), False)
        a("s_waitcnt vmcnt(0)")
        a(f"s_branch P1_FC{tag}")

    body("GA", "A", False)
    a.label("P1_GB")
    body("GB", "B", False)
    a.label("P1_KA0")
    a(f"v_lshlrev_b32 v{vDW}, 4, v{vL}")
    a(f"s_mul_i32 s{sWBASE}, s{sW}, 640")
    a(f"s_mov_b32 s{sWSTEP}, 2560")
    a(f"s_mul_i32 s{sSOW}, s{sCC}, 2560")
    a(f"s_add_u32 s{sSOW}, s{sSOW}, s{sWBASE}")
    a(f"s_lshl_b32 s{sM0W}, s{sW}, 10")
    a("s_waitcnt lgkmcnt(0)")
    srd(a, SA, pWK, 640 * 40)
    srd(a, SB, pWV, 640 * 40)
    st01()
    for p in range(2): wpiece(p, True)
    a("s_barrier")
    body("KA", "A", True)
    a.label("P1_KB")
    body("KB", "B", True)

def kdesc(name, nv, ns=102):
    return f""".amdhsa_kernel {name}
  .amdhsa_next_free_vgpr {nv}
  .amdhsa_next_free_sgpr {ns}
  .amdhsa_accum_offset {(nv+3)//4*4}
  .amdhsa_group_segment_fixed_size 0
  .amdhsa_kernarg_size 88
  .amdhsa_user_sgpr_count 2
  .amdhsa_user_sgpr_kernarg_segment_ptr 1
  .amdhsa_system_sgpr_workgroup_id_x 1
.end_amdhsa_kernel
"""

DOC = """; ---------------------------------------------------------------------------------------------------------------
;
;          which case they meet in that XCD's L2; loads of handed-over data always bypass L1.  Every spin is bounded.
; ---------------------------------------------------------------------------------------------------------------
"""

def build():
    from g18p2 import gen_ffn, gen_att
    hdr = open("cdna_kernels/" + NAME + ".s.ref").read().split("; Override launch")[0]
    out = hdr
    out += f"; @launch grid=(256,1,1) block=(512,1,1) lds={LDS_BYTES}\n"
    out += '.amdgcn_target "amdgcn-amd-amdhsa--gfx950"\n' + DOC + '.text\n'
    a = Asm()
    k = NAME + "_kernel"
    a.raw(f".globl {k}\n.p2align 8\n.type {k},@function")
    a.label(k)
    gen_p1(a)
    a.p2 = True
    a.label("P2_ATT")
    gen_att(a)
    a.ffn = True
    a.label("P2_FFN")
    gen_ffn(a)
    for L, lines, D in a.tail:
        a.label(L)
        for l in lines: a(l)
        a(f"s_branch {D}")
    a.label("L_END")
    a("s_endpgm")
    if not opt("nocp"): a.raw(f"    .fill (0x8100 - (. - {k})) / 4, 4, 0xbf810000      ; the code read-ahead stays inside .text")
    out += a.text()
    out += '.section .rodata,"a"\n.p2align 6\n' + kdesc(k, 256)
    return out

if __name__ == "__main__":
    path = sys.argv[1] if len(sys.argv) > 1 and not sys.argv[1].startswith("--") else "cdna_kernels/" + NAME + ".s"
    open(path, "w").write(build())
```
